```python
import torch

def _softmax(x, axis=-1):
    return torch.softmax(x, dim=axis)

def _gelu(x):
    return torch.nn.functional.gelu(x, approximate='tanh')

def _silu(x):
    return torch.nn.functional.silu(x)

def _sigmoid(x):
    return torch.sigmoid(x)

def _layernorm(x, axis=-1, eps=1e-05):
    m = x.mean(dim=axis, keepdim=True)
    v = x.var(dim=axis, keepdim=True, unbiased=False)
    return (x - m) / torch.sqrt(v + eps)

def _scatter_add(tgt, idx, src, axis=0):
    return tgt.clone().index_add_(axis, idx, src)

def _segment_sum(src, seg, n):
    out = torch.zeros((n,) + src.shape[1:], dtype=src.dtype)
    return out.index_add_(0, seg, src)

def _pad(x, pw):
    flat = tuple((v for pair in reversed(pw) for v in pair))
    return torch.nn.functional.pad(x, flat)
kernel_name = 'adaLN_cond__ssm_conv_s4__glu_gated_geglu__prompt'

def setup_inputs():

    _w = lambda a: (lambda t: t.to(torch.bfloat16) if t.is_floating_point() else t)(torch.as_tensor(a))

    def _A_setup():
        B, L, D, N = (1, 2048, 512, 128)
        A_re = -(lambda _x: torch.exp(torch.as_tensor(_x)))((lambda *s: torch.randn(*s, dtype=torch.bfloat16) * 3.2)(D, N))
        A_im = torch.pi * (lambda *s: torch.randn(*s, dtype=torch.bfloat16) * 0.1)(D, N)
        B_re = (lambda *s: torch.randn(*s, dtype=torch.bfloat16) * 0.1)(D, N)
        B_im = (lambda *s: torch.randn(*s, dtype=torch.bfloat16) * 0.1)(D, N)
        C_re = (lambda *s: torch.randn(*s, dtype=torch.bfloat16) * 0.1)(D, N)
        C_im = (lambda *s: torch.randn(*s, dtype=torch.bfloat16) * 0.1)(D, N)
        log_dt = (lambda *s: torch.randn(*s, dtype=torch.bfloat16) * 0.1)(D) * 0.5 - 4.0
        Dskip = (lambda *s: torch.randn(*s, dtype=torch.bfloat16) * 0.1)(D)
        return {'u': _w((lambda *s: torch.randn(*s, dtype=torch.bfloat16) * 0.05)(B, L, D)), 'A_re': _w(A_re), 'A_im': _w(A_im), 'B_re': _w(B_re), 'B_im': _w(B_im), 'C_re': _w(C_re), 'C_im': _w(C_im), 'log_dt': _w(log_dt), 'Dskip': _w(Dskip)}
    _A_in = _A_setup()

    def _B_setup():
        B, S, Dm, Df = (1, 2048, 512, 1792)
        return {'x': _w((lambda *s: torch.randn(*s, dtype=torch.bfloat16) * 0.05)(B, S, Dm)), 'w_gate': _w((lambda *s: torch.randn(*s, dtype=torch.bfloat16) * 1.6)(Dm, Df) * Dm ** (-0.5)), 'w_up': _w((lambda *s: torch.randn(*s, dtype=torch.bfloat16) * 1.6)(Dm, Df) * Dm ** (-0.5)), 'w_down': _w((lambda *s: torch.randn(*s, dtype=torch.bfloat16) * 1.6)(Df, Dm) * Df ** (-0.5))}
    _B_in = _B_setup()
    return {'A_u': _A_in['u'], 'A_A_re': _A_in['A_re'], 'A_A_im': _A_in['A_im'], 'A_B_re': _A_in['B_re'], 'A_B_im': _A_in['B_im'], 'A_C_re': _A_in['C_re'], 'A_C_im': _A_in['C_im'], 'A_log_dt': _A_in['log_dt'], 'A_Dskip': _A_in['Dskip'], 'B_x': _B_in['x'], 'B_w_gate': _B_in['w_gate'], 'B_w_up': _B_in['w_up'], 'B_w_down': _B_in['w_down'], 'c': _w((lambda *s: torch.randn(*s, dtype=torch.bfloat16) * 0.1)(1, 512) * 8.0), 'w_mod': _w((lambda *s: torch.randn(*s, dtype=torch.bfloat16) * 0.1)(512, 6 * 512) * 512 ** (-0.5) * 8.0)}

def reference(A_u, A_A_re, A_A_im, A_B_re, A_B_im, A_C_re, A_C_im, A_log_dt, A_Dskip, B_x, B_w_gate, B_w_up, B_w_down, c, w_mod):

    def _A_ref(u, A_re, A_im, B_re, B_im, C_re, C_im, log_dt, Dskip):
        Bsz, L, D = u.shape
        dt = torch.exp(log_dt)[:, None]
        A = A_re + 1j * A_im
        Bc = B_re + 1j * B_im
        Cc = C_re + 1j * C_im
        logdA = dt * A
        dB = dt * Bc
        l = (lambda x, dt: x.to(dt))(torch.arange(L), A_re.dtype)
        P = torch.exp(logdA[:, :, None] * l[None, None, :])
        K = torch.einsum('dn,dnl,dn->dl', Cc, P, dB).real
        L2 = 2 * L
        Kp = _pad(K, ((0, 0), (0, L)))
        up = (lambda x, *d: x.permute(*d))(u, 0, 2, 1)
        up = _pad(up, ((0, 0), (0, 0), (0, L)))
        Kf = (lambda x, axes=(-2, -1): torch.fft.rfft2(x.float(), dim=axes))(Kp[:, None, :], axes=(-2, -1))
        Uf = (lambda x, axes=(-2, -1): torch.fft.rfft2(x.float(), dim=axes))(up[:, :, None, :], axes=(-2, -1))
        Yf = Uf * Kf[None, :, :, :]
        y = (lambda x, s, axes=(-2, -1): torch.fft.irfft2(x, s=s, dim=axes).to(torch.bfloat16))(Yf, (1, L2), axes=(-2, -1))[:, :, 0, :L]
        y = (lambda x, *d: x.permute(*d))(y, 0, 2, 1) + u * Dskip[None, None, :]
        return y

    def _B_ref(x, w_gate, w_up, w_down):
        g = torch.einsum('bsd,df->bsf', x, w_gate)
        u = torch.einsum('bsd,df->bsf', x, w_up)
        h = _gelu(g) * u
        return torch.einsum('bsf,fd->bsd', h, w_down)
    x = A_u
    mod = (_silu(c) @ w_mod).reshape(c.shape[0], 6, 1, -1)
    sa, ca, ga, sb, cb, gb = (mod[:, 0].clone(), mod[:, 1].clone(), mod[:, 2].clone(), mod[:, 3].clone(), mod[:, 4].clone(), mod[:, 5].clone())
    h = _layernorm(x, axis=-1) * (1 + ca) + sa
    x = x + ga * _A_ref(h, A_A_re, A_A_im, A_B_re, A_B_im, A_C_re, A_C_im, A_log_dt, A_Dskip)
    h = _layernorm(x, axis=-1) * (1 + cb) + sb
    x = x + gb * _B_ref(h, B_w_gate, B_w_up, B_w_down)
    return x
```

```python
import re

TRANS = ("v_exp_f32", "v_log_f32", "v_rcp_f32", "v_rsq_f32", "v_sqrt_f32", "v_sin_f32", "v_cos_f32")

class Ins:
    __slots__ = ("text", "kind", "tok", "wait", "note")
    def __init__(self, text, kind=None, tok=None, wait=None):
        self.text = text; self.kind = kind; self.tok = tok; self.wait = wait

def _expand(op):
    op = op.strip()
    op = re.sub(r"^-", "", op)
    m = re.match(r"^abs\((.*)\)$", op)
    if m: op = m.group(1)
    op = op.strip("|")
    m = re.match(r"^([vas])(\d+)$", op)
    if m: return [(m.group(1), int(m.group(2)))]
    m = re.match(r"^([vas])\[(\d+):(\d+)\]$", op)
    if m: return [(m.group(1), i) for i in range(int(m.group(2)), int(m.group(3)) + 1)]
    if op == "vcc": return [("s", 106), ("s", 107)]
    if op == "vcc_lo": return [("s", 106)]
    if op == "vcc_hi": return [("s", 107)]
    if op == "m0": return [("s", 124)]
    if op == "exec": return [("s", 126), ("s", 127)]
    return []

def parse(text):
    t = text.split(";")[0].strip()
    parts = t.split(None, 1)
    mn = parts[0]
    ops = []
    if len(parts) > 1:
        depth = 0; cur = ""
        for ch in parts[1]:
            if ch in "[(": depth += 1
            if ch in "])": depth -= 1
            if ch == "," and depth == 0:
                ops.append(cur.strip()); cur = ""
            else: cur += ch
        ops.append(cur.strip())
        ops = [o.split()[0] if o and not o.startswith("hwreg") else o for o in ops]
    return mn, ops

def classify(text):
    mn, ops = parse(text)
    base = re.sub(r"_(e32|e64|dpp|sdwa)$", "", mn)
    d = dict(mn=base, kind="other", dst=set(), src=set(), srcc=set(), srcab=set(), passes=0, dpp=False, wide_store=set(), _ops=(mn, ops))
    E = lambda i: set(_expand(ops[i])) if i < len(ops) else set()
    allops = lambda a: set().union(*[E(i) for i in range(a, len(ops))]) if len(ops) > a else set()
    if base.startswith("v_mfma"):
        d["kind"] = "mfma"; d["dst"] = E(0); d["srcab"] = E(1) | E(2); d["srcc"] = E(3); d["src"] = d["srcab"] | d["srcc"]
        d["passes"] = 8 if "32x32" in base else 4
    elif base.startswith("v_"):
        d["kind"] = "valu"
        if base in TRANS: d["kind"] = "trans"
        d["dpp"] = mn.endswith("_dpp") or "row_" in text or "quad_perm" in text
        if base.startswith("v_cmp"):
            d["dst"] = E(0); d["src"] = allops(1)
        elif base in ("v_readlane_b32", "v_readfirstlane_b32"):
            d["dst"] = E(0); d["src"] = allops(1); d["kind"] = "readlane"
        elif base.startswith("v_permlane") and "swap" in base:
            d["dst"] = E(0) | E(1); d["src"] = E(0) | E(1); d["kind"] = "permlane"
        elif base in ("v_add_co_u32", "v_addc_co_u32", "v_sub_co_u32"):
            d["dst"] = E(0) | E(1); d["src"] = allops(2)
        else:
            d["dst"] = E(0); d["src"] = allops(1)
            if base in ("v_fmac_f32", "v_dot2c_f32_bf16", "v_writelane_b32") or d["dpp"] or "sdwa" in mn: d["src"] |= E(0)
            if base == "v_cndmask_b32" and len(ops) == 3: d["src"] |= {("s", 106), ("s", 107)}
    elif base.startswith("ds_"):
        d["kind"] = "ds"
        if "read" in base or "permute" in base or "swizzle" in base:
            d["dst"] = E(0); d["src"] = allops(1)
        else: d["src"] = allops(0)
    elif base.startswith("buffer_") or base.startswith("global_"):
        d["kind"] = "vmem"
        lds = " lds" in text or "_lds_" in base
        if base in ("buffer_inv", "buffer_wbl2"): pass
        elif "load" in base and not lds:
            d["dst"] = E(0); d["src"] = allops(1)
            if "d16" in base: d["src"] |= E(0)
        elif lds:
            d["src"] = allops(0) | {("s", 124)}; d["ldsdma"] = True
        else:
            d["src"] = allops(0)
            if base.endswith("x4") or base.endswith("x3"):
                d["wide_store"] = E(0) if base.startswith("buffer_") else E(1)
            if "atomic" in base and " sc0" in text: d["dst"] = E(0)
    elif base.startswith("s_"):
        d["kind"] = "salu"
        if base.startswith("s_load") or base.startswith("s_memtime") or base.startswith("s_memrealtime"):
            d["kind"] = "smem"; d["dst"] = E(0); d["src"] = allops(1)
        elif base.startswith("s_cmp") or base.startswith("s_cbranch") or base in ("s_branch", "s_barrier", "s_waitcnt", "s_nop", "s_endpgm", "s_setprio", "s_sleep") or base.startswith("s_bitcmp"):
            d["src"] = allops(0)
        else:
            d["dst"] = E(0); d["src"] = allops(1)
            if "saveexec" in base: d["dst"] |= {("s", 126), ("s", 127)}
        if base == "s_nop": d["nop"] = int(ops[0], 0) + 1
    return d

def need_states(p, c):
    n = 0
    pv = p["kind"] in ("valu", "trans", "readlane", "permlane")
    cv = c["kind"] in ("valu", "trans", "readlane", "permlane")
    vd = {r for r in p["dst"] if r[0] in "va"}
    sd = {r for r in p["dst"] if r[0] == "s"}
    if pv:
        if c["kind"] == "mfma" and vd & c["src"]: n = max(n, 2)
        if cv and c["dpp"] and vd & c["src"]: n = max(n, 2)
        if c["kind"] == "readlane" and vd & c["src"]: n = max(n, 1)
        if c["kind"] == "permlane" and vd & c["src"]: n = max(n, 2)
        if p["kind"] == "trans" and cv and vd & c["src"] and c["kind"] != "trans": n = max(n, 1)
        if p["kind"] == "trans" and c["kind"] == "trans" and vd & c["src"]: n = max(n, 1)
        if p["kind"] == "trans" and c["kind"] in ("ds", "vmem") and vd & c["src"]: n = max(n, 1)
        if sd:
            if cv and sd & c["src"]: n = max(n, 4 if c["kind"] == "readlane" else 2)
            if c["kind"] == "vmem" and sd & c["src"]: n = max(n, 5)
            if c["kind"] in ("salu", "smem") and sd & c["src"]: n = max(n, 1)
            if c["mn"] in ("s_cbranch_vccz", "s_cbranch_vccnz") and sd & {("s", 106), ("s", 107)}: n = max(n, 1)
    if p["mn"].startswith("v_dot2") and vd:
        if c["mn"] == p["mn"]:
            mn_, ops_ = c["_ops"]
            ab = set(_expand(ops_[1])) | set(_expand(ops_[2]))
            if vd & ab: n = max(n, 3)
        elif vd & (c["src"] | c["dst"]): n = max(n, 3)
    if p["kind"] == "mfma":
        P = p["passes"]
        big = {4: 8, 8: 12}[P]; mid = {4: 6, 8: 10}[P]; war = {4: 3, 8: 7}[P]
        if c["kind"] == "mfma":
            if vd & c["srcab"]: n = max(n, big)
            if vd & c["srcc"]:
                if not (c["srcc"] == p["dst"] and c["passes"] == P): n = max(n, mid)
            if vd & c["dst"] and not vd & c["srcc"]: n = max(n, mid)
        elif cv or c["kind"] in ("ds", "vmem"):
            if vd & (c["src"] | c["dst"]): n = max(n, big)
        if cv and p["srcc"] & c["dst"]: n = max(n, war)
    if p["kind"] == "vmem" and p["wide_store"]:
        if p["wide_store"] & c["dst"]: n = max(n, 2)
    if p["kind"] == "salu" and ("s", 124) in p["dst"] and c.get("ldsdma"): n = max(n, 1)
    return n

class Prog:
    def __init__(self):
        self.ins = []
        self.ntok = 0
    def e(self, text):
        for line in text.strip().split("\n"):
            line = line.strip()
            if line: self.ins.append(Ins(line))
    def tok(self, text):
        self.ntok += 1
        self.ins.append(Ins(text, tok=self.ntok))
        return self.ntok
    def wait(self, *toks):
        toks = [t for t in toks if t is not None]
        flat = []
        for t in toks:
            if isinstance(t, (list, tuple)): flat += list(t)
            else: flat.append(t)
        if flat: self.ins.append(Ins("WAIT", wait=flat))
    def label(self, name): self.ins.append(Ins(name + ":", kind="label"))
    def take(self):
        r = self.ins; self.ins = []; return r
    def put(self, lst): self.ins += lst

def resolve(ins):
    out = []
    vm = []
    lg = []
    smem_out = False
    for i in ins:
        if i.wait is not None:
            nv = None; nl = None
            for t in i.wait:
                if t in vm:
                    k = len(vm) - 1 - vm.index(t)
                    nv = k if nv is None else min(nv, k)
                elif t in lg:
                    k = len(lg) - 1 - lg.index(t)
                    if smem_out: k = 0
                    nl = k if nl is None else min(nl, k)
            s = []
            if nv is not None:
                nv = min(nv, 63); s.append(f"vmcnt({nv})"); vm = vm[len(vm) - nv:] if nv else []
            if nl is not None:
                nl = min(nl, 15); s.append(f"lgkmcnt({nl})"); lg = lg[len(lg) - nl:] if nl else []
                if nl == 0: smem_out = False
            if s: out.append(Ins("s_waitcnt " + " ".join(s)))
            continue
        if i.kind == "label":
            out.append(i); continue
        mn = i.text.split()[0]
        if mn.startswith("buffer_") or mn.startswith("global_"):
            vm.append(i.tok)
        elif mn.startswith("ds_"):
            lg.append(i.tok)
        elif mn.startswith("s_load") or mn.startswith("s_memtime") or mn.startswith("s_memrealtime"):
            lg.append(i.tok); smem_out = True
        elif mn == "s_waitcnt":
            m = re.search(r"vmcnt\((\d+)\)", i.text)
            if m:
                n = int(m.group(1)); vm = vm[len(vm) - n:] if n and n <= len(vm) else ([] if n == 0 else vm)
            m = re.search(r"lgkmcnt\((\d+)\)", i.text)
            if m:
                n = int(m.group(1)); lg = lg[len(lg) - n:] if n and n <= len(lg) else ([] if n == 0 else lg)
                if n == 0: smem_out = False
        out.append(i)
    return out

def pad_hazards(ins, window=24):
    out = []; hist = []
    nins = 0
    for i in ins:
        if i.kind == "label" or i.text.startswith("."):
            out.append(i); continue
        c = classify(i.text)
        need = 0; dist = 0
        for p in reversed(hist):
            n = need_states(p, c)
            if n - dist > need: need = n - dist
            dist += p.get("nop", 1)
            if dist >= window: break
        while need > 0:
            k = min(need, 16)
            t = f"s_nop {k-1}"
            out.append(Ins(t)); hist.append(classify(t)); need -= k; nins += 1
        out.append(i); hist.append(c)
        if len(hist) > 64: hist = hist[-40:]
    return out, nins

def merge(main, fill, slots):
    out = []; fi = 0
    n = len(main); k = 0
    def cost(i):
        if i.wait is not None or i.kind == "label": return 0
        mn = i.text.split()[0]
        if mn.startswith("s_"): return 0 if not mn.startswith("s_nop") else 4
        if re.sub(r"_(e32|e64)$", "", mn) in TRANS: return 8
        return 4
    while k < n:
        i = main[k]; out.append(i); k += 1
        if i.wait is None and i.text.startswith("v_mfma"):
            used = 0; seg = []
            while k < n and not (main[k].wait is None and main[k].text.startswith("v_mfma")):
                used += cost(main[k]); seg.append(main[k]); k += 1
            tail = []
            while seg and (seg[-1].wait is not None or seg[-1].text.startswith("s_waitcnt") or seg[-1].text.startswith("s_barrier")):
                tail.insert(0, seg.pop())
            out += seg
            while fi < len(fill) and used + cost(fill[fi]) <= slots:
                used += cost(fill[fi]); out.append(fill[fi]); fi += 1
            out += tail
    return out, fill[fi:]

def render(ins):
    return "\n".join(("" if i.kind == "label" else "    ") + i.text for i in ins)
```

```python
import sys, struct, math
from asmlib import *

KN = "adaLN_cond__ssm_conv_s4__glu_gated_geglu__prompt_kernel"
WS_ST1 = 0x1000; WS_MODP = 0x8000; WS_MODF = 0x20000; WS_ST2 = 0x24000
WS_DBG = 0x40000; WS_X1 = 0x100000; WS_X1S = 0x300000; WS_H = 0x500000; WS_SIZE = 0xC00000
L_TAB = 0; TABW = 17408; TPITCH = 272
L_K = 69632; KCH = 8320; KODD = 4160
L_HI = 86272; HCH = 4608
L_Z = 95488
L_MOD = 111872
L_SS = 131072
L_ST2 = 133120
L_ST2P = 141312
L_XR = 142336
LDS_BYTES = 163840
S_WS = 4; S_WG = 8; S_WU = 12
P_X, P_ARE, P_AIM, P_BRE, P_BIM, P_CRE, P_CIM, P_LDT, P_DSK, P_BX, P_WG, P_WU, P_WD, P_C, P_WM, P_OUT, P_DBG, P_WS = [16 + 2 * i for i in range(18)]
S_X = 52; S_WM = 56; S_WD = 60; S_OUT = 64
S_TAG = 68; S_E = 69; S_WV = 70; S_D0 = 71; S_LDT = 72; S_DSK = 73
S_T0 = 74; S_T1 = 75; S_T2 = 76; S_T3 = 77; S_SPIN = 78; S_IDX = 79; S_XCD = 80
S_M = 82
S_EX = 94
S_ST = 96
S_G1 = 98; S_G2 = 99; S_G3 = 100
SENT = 0xFFFFFFFF
def f2u(x): return struct.unpack("<I", struct.pack("<f", x))[0]
def hx(x): return "0x%08x" % (x & 0xFFFFFFFF)
def fl(x): return hx(f2u(x))
LOG2E = 1.4426950408889634
GAM = (2 * 0.7978845608028654 * LOG2E * 0.044715) ** (1.0 / 3)
GC = 2 * 0.7978845608028654 * LOG2E / GAM
def vr(b, n): return f"v[{b}:{b+n-1}]" if n > 1 else f"v{b}"
def ar(b, n): return f"a[{b}:{b+n-1}]" if n > 1 else f"a{b}"
def sr(b, n): return f"s[{b}:{b+n-1}]" if n > 1 else f"s{b}"

class G:
    def __init__(self, cfg):
        self.cfg = cfg; self.p = Prog(); self.nlab = 0; self.nstamp = 0
    def lab(self, base):
        self.nlab += 1; return f"L{self.cfg['uid']}_{base}_{self.nlab}"
    def e(self, t): self.p.e(t)
    def tok(self, t): return self.p.tok(t)
    def wait(self, *t): self.p.wait(*t)
    def label(self, l): self.p.label(l)
    def stamp(self, i):
        if not self.cfg.get("stamps"): return
        e = self.e
        e(f"s_memtime s[{S_ST}:{S_ST+1}]")
        e("s_waitcnt lgkmcnt(0)")
        e(f"v_writelane_b32 v255, s{S_ST}, {i}")
    def stamp_flush(self):
        if not self.cfg.get("stamps"): return
        e = self.e
        e(f"s_memrealtime s[{S_ST}:{S_ST+1}]")
        e("s_waitcnt lgkmcnt(0)")
        e(f"v_writelane_b32 v255, s{S_ST}, 63")
        e(f"s_lshl_b32 s{S_T0}, s2, 10")
        e(f"s_add_u32 s{S_T0}, s{S_T0}, {WS_DBG + self.cfg.get('dbgoff', 0)}")
        e("v_lshlrev_b32 v254, 2, v0")
        e(f"buffer_store_dword v255, v254, s[{S_WS}:{S_WS+3}], s{S_T0} offen")

    def srd(self, s, ptr, size):
        self.e(f"s_mov_b32 s{s}, s{ptr}\ns_mov_b32 s{s+1}, s{ptr+1}\ns_mov_b32 s{s+2}, {hx(size)}\ns_mov_b32 s{s+3}, 0x20000")

    def prologue(self):
        e = self.e
        e("s_cmp_ge_u32 s2, 256")
        e(f"s_cbranch_scc1 {self.cfg['uid']}_end")
        e("s_load_dwordx16 s[16:31], s[0:1], 0")
        e("s_load_dwordx16 s[32:47], s[0:1], 64")
        e("s_load_dwordx4 s[48:51], s[0:1], 128")
        if self.cfg.get("stamps"):
            e("v_mov_b32 v255, 0")
            e(f"s_memrealtime s[{S_ST}:{S_ST+1}]")
        e("v_and_b32 v1, 63, v0")
        e("v_lshrrev_b32 v2, 6, v0")
        e(f"s_and_b32 s{S_XCD}, s2, 7")
        e(f"v_readfirstlane_b32 s{S_WV}, v2")
        e(f"s_lshr_b32 s{S_IDX}, s2, 3")
        e(f"s_lshl_b32 s{S_D0}, s{S_XCD}, 5")
        e(f"s_add_u32 s{S_D0}, s{S_D0}, s{S_IDX}")
        e(f"s_lshl_b32 s{S_D0}, s{S_D0}, 1")
        e("s_waitcnt lgkmcnt(0)")
        if self.cfg.get("stamps"):
            e(f"v_writelane_b32 v255, s{S_ST}, 62")
        e(f"s_load_dword s{S_E}, s[{P_WS}:{P_WS+1}], 0")
        e(f"s_lshl_b32 s{S_T0}, s{S_D0}, 1")
        e(f"s_load_dword s{S_LDT}, s[{P_LDT}:{P_LDT+1}], s{S_T0}")
        e(f"s_load_dword s{S_DSK}, s[{P_DSK}:{P_DSK+1}], s{S_T0}")
        self.srd(S_WS, P_WS, WS_SIZE)
        self.srd(S_X, P_X, 2097152)
        self.srd(S_WM, P_WM, 3145728)
        self.srd(S_WG, P_WG, 1835008)
        self.srd(S_WU, P_WU, 1835008)
        self.srd(S_WD, P_WD, 1835008)
        self.srd(S_OUT, P_OUT, 2097152)
        self.stamp(0)
    def tag_ready(self):
        e = self.e
        e("s_waitcnt lgkmcnt(0)")
        e(f"s_mul_i32 s{S_TAG}, s{S_E}, 0x9E3779B1")
        e(f"s_add_u32 s{S_TAG}, s{S_TAG}, 0x7F4A7C15")

    def p0_issue(self, do0, do1):
        e = self.e; T = {}
        if do1:
            e(f"v_mov_b32 v4, -1\nv_mov_b32 v5, -1\nv_mov_b32 v6, -1\nv_mov_b32 v7, -1")
            e("v_lshrrev_b32 v3, 3, v0")
            e("v_lshlrev_b32 v3, 15, v3")
            e("v_and_b32 v8, 7, v0")
            e("v_lshl_add_u32 v3, v8, 4, v3")
            e(f"s_lshl_b32 s{S_T0}, s{S_D0}, 6")
            e(f"s_add_u32 s{S_T0}, s{S_T0}, {hx(WS_X1S)}")
            e(f"s_add_u32 s{S_T1}, s{S_T0}, {hx(32*32768)}")
            if self.cfg.get("fill"):
                T["fill"] = [self.tok(f"buffer_store_dwordx4 v[4:7], v3, s[{S_WS}:{S_WS+3}], s{S_T0} offen sc1"),
                             self.tok(f"buffer_store_dwordx4 v[4:7], v3, s[{S_WS}:{S_WS+3}], s{S_T1} offen sc1")]
        if do0:
            e(f"s_lshl_b32 s{S_T0}, s2, 13")
            e(f"s_lshl_b32 s{S_T1}, s{S_WV}, 11")
            e(f"s_add_u32 s{S_T0}, s{S_T0}, s{S_T1}")
            e("v_lshlrev_b32 v9, 4, v1")
            T["xr"] = [self.tok(f"buffer_load_dwordx4 v[10:13], v9, s[{S_X}:{S_X+3}], s{S_T0} offen"),
                       self.tok(f"buffer_load_dwordx4 v[14:17], v9, s[{S_X}:{S_X+3}], s{S_T0} offen offset:1024")]
        if do1:
            e(f"s_lshl_b32 s{S_T2}, s{S_D0}, 8")
            e(f"v_lshl_add_u32 v8, v0, 1, s{S_T2}")
            T["ssm"] = [self.tok(f"global_load_ushort v{18+i}, v8, s[{P_ARE+2*i}:{P_ARE+2*i+1}]") for i in range(6)]
        if do0:
            skip = self.lab("nomod")
            e("s_cmp_ge_u32 s2, 192")
            e(f"s_cbranch_scc1 {skip}")
            e(f"s_mul_i32 s{S_G1}, s2, 1366")
            e(f"s_lshr_b32 s{S_G1}, s{S_G1}, 16")
            e(f"s_mul_i32 s{S_T0}, s{S_G1}, 48")
            e(f"s_sub_u32 s{S_G2}, s2, s{S_T0}")
            e(f"s_lshl_b32 s{S_T0}, s{S_G1}, 8")
            e(f"v_lshl_add_u32 v3, v1, 2, s{S_T0}")
            self.tok(f"global_load_dword v24, v3, s[{P_C}:{P_C+1}]")
            e("v_lshrrev_b32 v3, 1, v1")
            e("v_mul_u32_u24 v3, 6144, v3")
            e("v_and_b32 v4, 1, v1")
            e("v_lshl_add_u32 v3, v4, 4, v3")
            e(f"s_mul_i32 s{S_T0}, s{S_G1}, {128*6144}")
            e(f"s_lshl_b32 s{S_T1}, s{S_G2}, 7")
            e(f"s_add_u32 s{S_T0}, s{S_T0}, s{S_T1}")
            e(f"s_lshl_b32 s{S_T1}, s{S_WV}, 5")
            e(f"s_add_u32 s{S_T0}, s{S_T0}, s{S_T1}")
            e(f"s_lshl_b32 s{S_T1}, s{S_WV}, 12")
            e(f"s_add_u32 s{S_T1}, s{S_T1}, {L_MOD}")
            for j in range(4):
                e(f"s_mov_b32 m0, s{S_T1}")
                e(f"s_add_u32 s{S_T1}, s{S_T1}, 1024")
                self.tok(f"buffer_load_dwordx4 v3, s[{S_WM}:{S_WM+3}], s{S_T0} offen lds")
                e(f"s_add_u32 s{S_T0}, s{S_T0}, {32*6144}")
            jn = self.lab("modj")
            e(f"s_branch {jn}")
            self.label(skip)
            for j in range(5): e(f"global_load_dword v24, v9, s[{P_X}:{P_X+1}]")
            self.label(jn)
        if do1:
            e("v_lshlrev_b32 v25, 13, v0")
            e(f"s_lshl_b32 s{S_T0}, s{S_D0}, 1")
            for j in range(4):
                e(f"buffer_load_dword v{26+j}, v25, s[{S_X}:{S_X+3}], s{S_T0} offen offset:{j*1024}")
            e(f"s_add_u32 s{S_T0}, s{S_T0}, 4096")
            for j in range(4):
                e(f"buffer_load_dword v{30+j}, v25, s[{S_X}:{S_X+3}], s{S_T0} offen offset:{j*1024}")
        self.n_after_xr = (6 if do1 else 0) + (5 if do0 else 0) + (8 if do1 else 0)
        self.n_after_ssm = (5 if do0 else 0) + (8 if do1 else 0)
        self.n_after_mod = (8 if do1 else 0)
        return T

    def reduce16(self, regs):
        for ctl in ["quad_perm:[1,0,3,2]", "quad_perm:[2,3,0,1]", "row_half_mirror", "row_mirror"]:
            for r in regs:
                self.e(f"v_add_f32_dpp v{r}, v{r}, v{r} {ctl} row_mask:0xf bank_mask:0xf")

    def stat_finish(self, vs, vq, t0, t1):
        e = self.e
        e(f"v_mul_f32 v{vs}, {fl(1/512)}, v{vs}")
        e(f"v_mul_f32 v{t0}, v{vs}, v{vs}")
        e(f"v_mul_f32 v{vq}, {fl(1/512)}, v{vq}")
        e(f"v_sub_f32 v{vq}, v{vq}, v{t0}")
        e(f"v_max_f32 v{vq}, 0, v{vq}")
        e(f"v_cvt_pk_bf16_f32 v{t0}, v{vq}, v{vq}")
        e(f"v_and_b32 v{t0}, 0xffff0000, v{t0}")
        e(f"v_add_f32 v{t0}, {fl(1e-5)}, v{t0}")
        e(f"v_cvt_pk_bf16_f32 v{t0}, v{t0}, v{t0}")
        e(f"v_and_b32 v{t0}, 0xffff0000, v{t0}")
        e(f"v_sqrt_f32 v{t0}, v{t0}")
        e(f"v_cvt_pk_bf16_f32 v{vs}, v{t0}, v{vs}")

    def p0_stats(self):
        e = self.e
        e(f"s_waitcnt vmcnt({self.n_after_xr})")
        e("v_mov_b32 v3, 0x3f803f80")
        for i in range(4):
            c = lambda r: (f"v{r}" if i else "0")
            e(f"v_dot2_f32_bf16 v4, v{10+i}, v3, {c(4)}")
            e(f"v_dot2_f32_bf16 v5, v{10+i}, v{10+i}, {c(5)}")
            e(f"v_dot2_f32_bf16 v6, v{14+i}, v3, {c(6)}")
            e(f"v_dot2_f32_bf16 v7, v{14+i}, v{14+i}, {c(7)}")
        self.reduce16([4, 5, 6, 7])
        e("v_permlane16_swap_b32 v4, v5\nv_permlane16_swap_b32 v6, v7")
        e("v_add_f32 v4, v4, v5\nv_add_f32 v6, v6, v7")
        e("v_permlane32_swap_b32 v4, v6")
        e("v_add_f32 v4, v4, v6")
        e("v_mov_b32 v5, v4")
        e("v_permlane16_swap_b32 v4, v5")
        self.stat_finish(4, 5, 6, 7)
        e(f"v_mov_b32 v5, s{S_TAG}")
        e("v_lshrrev_b32 v6, 2, v1")
        e(f"s_lshl_b32 s{S_T0}, s2, 6")
        e(f"s_lshl_b32 s{S_T1}, s{S_WV}, 4")
        e(f"s_add_u32 s{S_T0}, s{S_T0}, s{S_T1}")
        e(f"s_add_u32 s{S_T0}, s{S_T0}, {WS_ST1}")
        e("s_mov_b32 exec_lo, 1\ns_mov_b32 exec_hi, 1")
        e(f"buffer_store_dwordx2 v[4:5], v6, s[{S_WS}:{S_WS+3}], s{S_T0} offen sc1")
        e("s_mov_b64 exec, -1")
        self.n_after_ssm += 1; self.n_after_mod += 1

    def p0_mod(self):
        e = self.e
        skip = self.lab("nomod2")
        e("s_cmp_ge_u32 s2, 192")
        e(f"s_cbranch_scc1 {skip}")
        e(f"s_waitcnt vmcnt({self.n_after_mod + 4})")
        e("v_lshlrev_b32 v3, 16, v24\nv_and_b32 v4, 0xffff0000, v24")
        e(f"v_mul_f32 v5, {fl(-LOG2E)}, v3\nv_mul_f32 v6, {fl(-LOG2E)}, v4")
        e("v_exp_f32 v5, v5\nv_exp_f32 v6, v6")
        e("v_add_f32 v5, 1.0, v5\nv_add_f32 v6, 1.0, v6")
        e("v_rcp_f32 v5, v5\nv_rcp_f32 v6, v6")
        e("v_mul_f32 v3, v3, v5\nv_mul_f32 v4, v4, v6")
        e("v_cvt_pk_bf16_f32 v3, v3, v4")
        e(f"s_lshl_b32 s{S_T0}, s{S_WV}, 8")
        e(f"s_add_u32 s{S_T0}, s{S_T0}, {L_MOD + 16384}")
        e(f"v_lshl_add_u32 v4, v1, 2, s{S_T0}")
        e("ds_write_b32 v4, v3")
        e("v_lshrrev_b32 v5, 4, v1")
        e(f"v_lshl_add_u32 v4, v5, 4, s{S_T0}")
        e("v_bfe_u32 v6, v1, 2, 2")
        e("v_lshl_add_u32 v6, v5, 3, v6")
        e("v_lshlrev_b32 v6, 5, v6")
        e("v_and_b32 v7, 3, v1")
        e("v_lshl_add_u32 v6, v7, 3, v6")
        e(f"s_lshl_b32 s{S_T1}, s{S_WV}, 12")
        e(f"s_add_u32 s{S_T1}, s{S_T1}, {L_MOD}")
        e(f"v_add_u32 v6, s{S_T1}, v6")
        e(f"s_waitcnt vmcnt({self.n_after_mod}) lgkmcnt(0)")
        for ks in range(4):
            e(f"ds_read_b128 v[{36+8*ks}:{39+8*ks}], v4 offset:{64*ks}")
            e(f"ds_read_b64_tr_b16 v[{40+8*ks}:{41+8*ks}], v6 offset:{1024*ks}")
            e(f"ds_read_b64_tr_b16 v[{42+8*ks}:{43+8*ks}], v6 offset:{1024*ks+128}")
        for ks in range(4):
            e(f"s_waitcnt lgkmcnt({9-3*ks})")
            e(f"v_mfma_f32_16x16x32_bf16 v[68:71], v[{36+8*ks}:{39+8*ks}], v[{40+8*ks}:{43+8*ks}], {'v[68:71]' if ks else '0'}")
        e(f"s_mul_i32 s{S_T0}, s{S_G1}, {3072*8}")
        e(f"s_lshl_b32 s{S_T1}, s{S_G2}, 9")
        e(f"s_add_u32 s{S_T0}, s{S_T0}, s{S_T1}")
        e(f"s_lshl_b32 s{S_T1}, s{S_WV}, 7")
        e(f"s_add_u32 s{S_T0}, s{S_T0}, s{S_T1}")
        e(f"s_add_u32 s{S_T0}, s{S_T0}, {WS_MODP}")
        e("v_lshlrev_b32 v6, 3, v1")
        e(f"v_mov_b32 v69, s{S_TAG}")
        e("s_mov_b64 exec, 0xffff")
        e(f"buffer_store_dwordx2 v[68:69], v6, s[{S_WS}:{S_WS+3}], s{S_T0} offen sc1")
        e("s_mov_b64 exec, -1")
        self.label(skip)

    def cmul_list(self, jobs):
        e = self.e; i = 0
        f1 = lambda d, a, b: f"v_pk_mul_f32 {vr(d,2)}, {vr(a,2)}, {vr(b,2)} op_sel:[0,0] op_sel_hi:[0,1]"
        f2 = lambda d, a, b: f"v_pk_fma_f32 {vr(d,2)}, {vr(a,2)}, {vr(b,2)}, {vr(d,2)} op_sel:[1,1,0] op_sel_hi:[1,0,1] neg_lo:[0,1,0]"
        while i < len(jobs):
            j = jobs[i]
            if i + 1 < len(jobs) and j[0] not in jobs[i+1][1:] and jobs[i+1][0] not in j:
                k = jobs[i+1]
                e(f1(*j)); e(f1(*k)); e(f2(*j)); e(f2(*k)); i += 2
            else:
                e(f1(*j)); e(f2(*j)); i += 1

    def kgen(self):
        e = self.e
        e("v_mov_b32 v36, 0\nv_mov_b32 v37, 0\nv_mov_b32 v38, 0\nv_mov_b32 v39, 0")
        e("v_lshrrev_b32 v3, 5, v0")
        e(f"v_mul_u32_u24 v3, {HCH}, v3")
        e("v_and_b32 v4, 31, v0")
        e("v_lshl_add_u32 v3, v4, 4, v3")
        e(f"v_add_u32 v3, {L_HI}, v3")
        e("v_bfe_u32 v4, v0, 2, 2")
        e(f"v_mul_u32_u24 v4, {KODD}, v4")
        e("v_and_b32 v5, 3, v0")
        e("v_lshl_add_u32 v4, v5, 4, v4")
        e(f"v_add_u32 v4, {L_K + 4096}, v4")
        e("v_cmp_gt_u32 vcc, 64, v0")
        e("v_cndmask_b32 v3, v4, v3, vcc")
        e("v_cmp_gt_u32 vcc, 80, v0")
        e(f"s_and_saveexec_b64 s[{S_EX}:{S_EX+1}], vcc")
        zl = self.lab("z")
        e(f"s_cbranch_execz {zl}")
        e("ds_write_b128 v3, v[36:39]")
        self.label(zl)
        e(f"s_mov_b64 exec, s[{S_EX}:{S_EX+1}]")
        e(f"s_lshr_b32 s{S_T0}, s{S_WV}, 1")
        e(f"s_lshl_b32 s{S_T0}, s{S_T0}, 4")
        e(f"s_lshr_b32 s{S_T1}, s{S_LDT}, s{S_T0}")
        e(f"s_lshl_b32 s{S_T1}, s{S_T1}, 16")
        e(f"v_mov_b32 v3, {fl(LOG2E)}")
        e(f"v_mul_f32 v3, s{S_T1}, v3")
        e("v_exp_f32 v3, v3")
        e("v_cvt_pk_bf16_f32 v3, v3, v3")
        e("v_and_b32 v3, 0xffff0000, v3")
        e(f"s_waitcnt vmcnt({self.n_after_ssm})")
        for i in range(6): e(f"v_lshlrev_b32 v{18+i}, 16, v{18+i}")
        e("v_mul_f32 v18, v18, v3\nv_mul_f32 v19, v19, v3\nv_mul_f32 v20, v20, v3\nv_mul_f32 v21, v21, v3")
        e(f"v_mul_f32 v18, {fl(LOG2E)}, v18")
        e("v_mul_f32 v19, 0.15915494, v19")
        S = lambda j: 40 + 2 * j
        Gt = lambda T: 74 + 2 * (T - 1)
        PB = 88
        Pn = lambda n: PB + 2 * n
        TE = 120
        def direct(dst, t, a, b, c):
            if t == 1:
                e(f"v_exp_f32 v{a}, v18\nv_fract_f32 v{b}, v19")
            else:
                e(f"v_mul_f32 v{a}, {fl(float(t))}, v18\nv_mul_f32 v{b}, {fl(float(t))}, v19")
                e(f"v_exp_f32 v{a}, v{a}\nv_fract_f32 v{b}, v{b}")
            e(f"v_cos_f32 v{c}, v{b}\nv_sin_f32 v{b}, v{b}")
            e(f"v_mul_f32 v{dst}, v{a}, v{c}\nv_mul_f32 v{dst+1}, v{a}, v{b}")
        direct(S(1), 1, 4, 5, 6); direct(S(16), 16, 7, 8, 9); direct(Gt(1), 256, 4, 5, 6)
        e(f"v_mov_b32 v{S(0)}, 1.0\nv_mov_b32 v{S(0)+1}, 0")
        e(f"s_mul_i32 s{S_T0}, s{S_WV}, {TABW}")
        e(f"v_lshl_add_u32 v34, v1, 2, s{S_T0}")
        state = {"n": 0}
        def put4(grp, srcs, neg=False):
            pk = 128 + 4 * (state["n"] & 1); ad = 136 + (state["n"] & 1); state["n"] += 1
            for i, s_ in enumerate(srcs):
                e(f"v_cvt_pk_bf16_f32 v{pk+i}, v{s_}, {'-' if neg else ''}v{s_+1}")
            e(f"v_add_u32 v{ad}, {L_TAB + grp*4*TPITCH}, v34")
            e(f"ds_write2_b32 v{ad}, v{pk}, v{pk+1} offset0:0 offset1:68")
            e(f"ds_write2_b32 v{ad}, v{pk+2}, v{pk+3} offset0:136 offset1:204")
        S32, S64, S128 = 138, 140, 142
        self.cmul_list([(Pn(0), 22, 20), (S(2), S(1), S(1)), (Gt(2), Gt(1), Gt(1)), (S(3), S(2), S(1)), (S(4), S(2), S(2)), (S32, S(16), S(16)),
                        (Pn(1), Pn(0), S(16)), (Gt(3), Gt(2), Gt(1)), (Gt(4), Gt(2), Gt(2))])
        put4(0, [S(0), S(1), S(2), S(3)])
        self.cmul_list([(S(5), S(4), S(1)), (S(6), S(4), S(2)), (S(7), S(4), S(3)), (S(8), S(4), S(4)), (S64, S32, S32), (Pn(2), Pn(0), S32),
                        (Pn(3), Pn(1), S32), (Gt(5), Gt(4), Gt(1)), (Gt(6), Gt(4), Gt(2)), (Gt(7), Gt(4), Gt(3))])
        put4(1, [S(4), S(5), S(6), S(7)])
        put4(12, [Pn(0), Pn(1), Pn(2), Pn(3)], neg=True)
        self.cmul_list([(S(9), S(8), S(1)), (S(10), S(8), S(2)), (S(11), S(8), S(3)), (S(12), S(8), S(4)), (S(13), S(8), S(5)), (S(14), S(8), S(6)),
                        (S(15), S(8), S(7)), (S128, S64, S64)] + [(Pn(4+i), Pn(i), S64) for i in range(4)])
        put4(2, [S(8), S(9), S(10), S(11)])
        put4(3, [S(12), S(13), S(14), S(15)])
        put4(13, [Pn(4), Pn(5), Pn(6), Pn(7)], neg=True)
        self.cmul_list([(Pn(8+i), Pn(i), S128) for i in range(8)])
        put4(14, [Pn(8), Pn(9), Pn(10), Pn(11)], neg=True)
        put4(15, [Pn(12), Pn(13), Pn(14), Pn(15)], neg=True)
        ents = {0: [(1, 0), (1, 2), (1, 4), (1, 6), (1, 8), (4, 0), (4, 8), (4, 16)],
                1: [(1, 8), (1, 10), (1, 12), (1, 14), (1, 16), (5, 0), (5, 8), (5, 16)],
                2: [(2, 0), (2, 4), (2, 8), (2, 12), (2, 16), (6, 0), (6, 8), (6, 16)],
                3: [(3, 0), (3, 4), (3, 8), (3, 12), (3, 16), (7, 0), (7, 8), (7, 16)]}
        tb = 0
        for q in range(4):
            for blk in range(2):
                four = ents[q][4*blk:4*blk+4]
                base = (88 if tb & 1 else 96) + 0; tb += 1
                jobs = []; srcs = []
                for i, (T, j) in enumerate(four):
                    if j == 0: srcs.append(Gt(T))
                    else:
                        jobs.append((base + 2*i, Gt(T), S(j))); srcs.append(base + 2*i)
                self.cmul_list(jobs)
                put4(4 + 4*blk + q, srcs)
        e("v_and_b32 v3, 15, v1")
        e(f"v_mul_u32_u24 v3, {TPITCH}, v3")
        e("v_lshrrev_b32 v4, 4, v1")
        e("v_lshl_add_u32 v3, v4, 4, v3")
        e(f"v_add_u32 v3, s{S_T0}, v3")
        e("s_waitcnt lgkmcnt(0)")
        F = 40
        toks = {}
        for ks in range(4):
            for b in (3, 0, 1, 2):
                r = F + 16*ks + 4*b
                toks[(ks, b)] = self.tok(f"ds_read_b128 v[{r}:{r+3}], v3 offset:{L_TAB + b*16*TPITCH + ks*64}")
        ACC = 104
        for ks in range(4):
            for b in range(3):
                self.wait(toks[(ks, b)])
                r = F + 16*ks
                e(f"v_mfma_f32_16x16x32_bf16 v[{ACC+4*b}:{ACC+4*b+3}], v[{r+4*b}:{r+4*b+3}], v[{r+12}:{r+15}], {vr(ACC+4*b,4) if ks else '0'}")
        e(f"v_lshl_add_u32 v4, v1, 4, s{S_T0}")
        e(f"s_xor_b32 s{S_T1}, s{S_WV}, 1")
        e(f"s_mul_i32 s{S_T1}, s{S_T1}, {TABW}")
        e(f"v_lshl_add_u32 v5, v1, 4, s{S_T1}")
        for b in range(3): e(f"ds_write_b128 v4, v[{ACC+4*b}:{ACC+4*b+3}] offset:{L_TAB + 1024*b}")
        e(f"s_lshr_b32 s{S_T2}, s{S_WV}, 1")
        e(f"s_mul_i32 s{S_T2}, s{S_T2}, {KCH}")
        e(f"s_add_u32 s{S_T2}, s{S_T2}, {L_K}")
        e("v_and_b32 v6, 15, v1")
        e("v_lshlrev_b32 v6, 5, v6")
        e(f"v_sub_u32 v6, s{S_T2}, v6")
        e("v_lshrrev_b32 v7, 4, v1")
        e("s_waitcnt lgkmcnt(0)")
        e("s_barrier")
        h1 = self.lab("kh1"); jn = self.lab("kj")
        e(f"s_bitcmp1_b32 s{S_WV}, 0")
        e(f"s_cbranch_scc1 {h1}")
        e(f"ds_read_b128 v[40:43], v5 offset:{L_TAB}")
        e(f"ds_read_b128 v[44:47], v5 offset:{L_TAB + 2048}")
        e("v_lshlrev_b32 v8, 3, v7\nv_sub_u32 v8, v6, v8")
        e("v_lshlrev_b32 v9, 9, v7\nv_sub_u32 v9, v6, v9")
        e("s_waitcnt lgkmcnt(0)")
        for r in range(4): e(f"v_add_f32 v{40+r}, v{40+r}, v{ACC+r}")
        for r in range(1, 4): e(f"v_add_f32 v{44+r}, v{44+r}, v{ACC+8+r}")
        e("v_cvt_pk_bf16_f32 v48, v43, v42\nv_cvt_pk_bf16_f32 v49, v41, v40")
        e(f"ds_write_b64 v8, v[48:49] offset:{2*2044}")
        f0, f1, f2 = 45, 46, 47
        for i, (a, b) in enumerate([(f2, f2), (f2, f2), (f1, f1), (f1, f1), (f1, f1), (f1, f0), (f0, f0), (f0, f0)]):
            e(f"v_cvt_pk_bf16_f32 v{52+i}, v{a}, v{b}")
        e(f"ds_write_b128 v9, v[52:55] offset:{2*(2032-1024)}")
        e(f"ds_write_b128 v9, v[56:59] offset:{2*(2032-1024)+16}")
        e(f"s_branch {jn}")
        self.label(h1)
        e(f"ds_read_b128 v[40:43], v5 offset:{L_TAB + 1024}")
        e(f"ds_read_b32 v44, v5 offset:{L_TAB + 2048}")
        e("v_lshlrev_b32 v8, 4, v7\nv_sub_u32 v8, v6, v8")
        e("v_lshlrev_b32 v9, 9, v7\nv_sub_u32 v9, v6, v9")
        e("s_waitcnt lgkmcnt(0)")
        for r in range(4): e(f"v_add_f32 v{40+r}, v{40+r}, v{ACC+4+r}")
        e(f"v_add_f32 v44, v44, v{ACC+8}")
        E_ = lambda j: 40 + j
        for i, (a, b) in enumerate([(4, 3), (2, 2), (2, 1), (0, 0)]):
            e(f"v_cvt_pk_bf16_f32 v{48+i}, v{E_(a)}, v{E_(b)}")
        for i, (a, b) in enumerate([(4, 4), (3, 3), (3, 2), (2, 2), (2, 2), (1, 1), (1, 0), (0, 0)]):
            e(f"v_cvt_pk_bf16_f32 v{52+i}, v{E_(a)}, v{E_(b)}")
        e("s_mov_b32 exec_hi, 0")
        e(f"ds_write_b128 v8, v[48:51] offset:{2*(2040-256)}")
        e("s_mov_b32 exec_lo, 0\ns_mov_b32 exec_hi, -1")
        e(f"ds_write_b128 v9, v[52:55] offset:{2*2032}")
        e(f"ds_write_b128 v9, v[56:59] offset:{2*2032+16}")
        e("s_mov_b64 exec, -1")
        self.label(jn)
        e("v_and_b32 v3, 127, v0")
        e(f"v_lshl_add_u32 v3, v3, 5, s{S_T2}")
        e("s_waitcnt lgkmcnt(0)")
        e("s_barrier")
        e("ds_read_b128 v[40:43], v3\nds_read_b128 v[44:47], v3 offset:16\nds_read_b32 v48, v3 offset:32")
        e("s_waitcnt lgkmcnt(0)")
        for i in range(8): e(f"v_alignbit_b32 v{52+i}, v{41+i}, v{40+i}, 16")
        e(f"ds_write_b128 v3, v[52:55] offset:{KODD}\nds_write_b128 v3, v[56:59] offset:{KODD+16}")

    def spin_check(self, retry_label, out_label=None):
        e = self.e
        e(f"s_sub_u32 s{S_SPIN}, s{S_SPIN}, 1")
        e(f"s_cmp_lg_u32 s{S_SPIN}, 0")
        e(f"s_cbranch_scc1 {retry_label}")

    def hbuild(self):
        e = self.e
        e("v_lshlrev_b32 v3, 6, v0")
        e("v_and_b32 v4, 3, v1")
        e(f"v_mul_u32_u24 v4, {3072*8}, v4")
        e("v_lshrrev_b32 v5, 3, v1")
        e("v_min_u32 v5, 5, v5")
        e("v_lshl_add_u32 v4, v5, 12, v4")
        e("v_bfe_u32 v6, v1, 2, 1")
        e("v_lshl_add_u32 v4, v6, 3, v4")
        e(f"s_lshl_b32 s{S_T0}, s{S_D0}, 3")
        e(f"s_add_u32 s{S_T0}, s{S_T0}, {WS_MODP}")
        e(f"s_mov_b32 s{S_T1}, {WS_ST1}")
        e(f"s_mov_b32 s{S_SPIN}, {self.cfg['spin']}")
        rt = self.lab("h0"); ok = self.lab("h0ok")
        self.label(rt)
        e(f"buffer_load_dwordx2 v[8:9], v4, s[{S_WS}:{S_WS+3}], s{S_T0} offen sc1")
        for i in range(4):
            e(f"buffer_load_dwordx4 v[{40+4*i}:{43+4*i}], v3, s[{S_WS}:{S_WS+3}], s{S_T1} offen offset:{16*i} sc1")
        e("s_waitcnt vmcnt(0)")
        e(f"v_xor_b32 v7, s{S_TAG}, v9")
        for i in range(8):
            e(f"v_xor_b32 v10, s{S_TAG}, v{41+2*i}")
            e("v_or_b32 v7, v7, v10")
        e("v_cmp_ne_u32 vcc, 0, v7")
        e(f"s_cbranch_vccz {ok}")
        self.spin_check(rt)
        self.label(ok)
        self.stamp(4)
        e("v_add_f32_dpp v8, v8, v8 quad_perm:[1,0,3,2] row_mask:0xf bank_mask:0xf")
        e("v_add_f32_dpp v8, v8, v8 quad_perm:[2,3,0,1] row_mask:0xf bank_mask:0xf")
        for i in range(8):
            e(f"v_lshlrev_b32 v{41+2*i}, 16, v{40+2*i}")
            e(f"v_rcp_f32 v{41+2*i}, v{41+2*i}")
            e(f"v_and_b32 v{40+2*i}, 0xffff0000, v{40+2*i}")
            if i == 0:
                e("v_cvt_pk_bf16_f32 v8, v8, v8\nv_and_b32 v8, 0xffff0000, v8")
                e("v_add_f32 v9, 1.0, v8")
                e("v_cvt_pk_bf16_f32 v9, v9, v9\nv_and_b32 v9, 0xffff0000, v9")
            if i < 6:
                src = 9 if i in (1, 4) else 8
                e(f"v_readlane_b32 s{S_M+2*i}, v{src}, {8*i}")
                e(f"v_readlane_b32 s{S_M+2*i+1}, v{src}, {8*i+4}")
        sa, sA, ga, sb, sB, gb = [S_M + 2*i for i in range(6)]
        e(f"v_mov_b32 v16, s{ga}\nv_mov_b32 v17, s{ga+1}")
        e(f"v_mul_f32 v10, s{sA}, v16\nv_mul_f32 v11, s{sA+1}, v17")
        e(f"v_mul_f32 v12, s{sa}, v16\nv_mul_f32 v13, s{sa+1}, v17")
        e(f"s_lshl_b32 s{S_T0}, s{S_DSK}, 16\ns_and_b32 s{S_T1}, s{S_DSK}, 0xffff0000")
        e(f"v_mov_b32 v14, s{S_T0}\nv_mov_b32 v15, s{S_T1}")
        nm = self.lab("nomodf")
        e(f"s_cmp_lg_u32 s{S_WV}, 0")
        e(f"s_cbranch_scc1 {nm}")
        e(f"s_lshr_b32 s{S_T0}, s{sB}, 16\ns_or_b32 s{S_T0}, s{S_T0}, s{sb}")
        e(f"s_lshr_b32 s{S_T1}, s{sB+1}, 16\ns_or_b32 s{S_T1}, s{S_T1}, s{sb+1}")
        e(f"v_mov_b32 v20, s{S_T0}\nv_mov_b32 v21, s{S_TAG}\nv_mov_b32 v22, s{gb}\nv_mov_b32 v23, s{S_TAG}")
        e(f"v_writelane_b32 v20, s{S_T1}, 1\nv_writelane_b32 v22, s{gb+1}, 1")
        e("v_lshlrev_b32 v19, 4, v1")
        e(f"s_lshl_b32 s{S_T0}, s{S_D0}, 4\ns_add_u32 s{S_T0}, s{S_T0}, {WS_MODF}")
        e("s_mov_b64 exec, 3")
        e(f"buffer_store_dwordx4 v[20:23], v19, s[{S_WS}:{S_WS+3}], s{S_T0} offen sc1")
        e("s_mov_b64 exec, -1")
        self.label(nm)
        X = 60; Hh = 76; Z = 92
        for j in range(8):
            e(f"v_lshlrev_b32 v{X+2*j}, 16, v{26+j}")
            e(f"v_and_b32 v{X+2*j+1}, 0xffff0000, v{26+j}")
        for j in range(8):
            e(f"v_pk_add_f32 {vr(Hh+2*j,2)}, {vr(X+2*j,2)}, {vr(40+2*j,2)} op_sel:[0,0] op_sel_hi:[1,0] neg_lo:[0,1] neg_hi:[0,1]")
        for j in range(8):
            e(f"v_pk_mul_f32 {vr(Hh+2*j,2)}, {vr(Hh+2*j,2)}, {vr(40+2*j,2)} op_sel:[0,1] op_sel_hi:[1,1]")
        for j in range(8):
            e(f"v_pk_fma_f32 {vr(Hh+2*j,2)}, {vr(Hh+2*j,2)}, v[10:11], v[12:13]")
        e(f"v_lshlrev_b32 v3, 4, v0\nv_add_u32 v3, {L_HI + 512}, v3")
        e(f"v_lshlrev_b32 v4, 6, v0\nv_add_u32 v4, {L_Z}, v4")
        for j in range(8):
            e(f"v_pk_fma_f32 {vr(Z+2*j,2)}, {vr(Hh+2*j,2)}, v[14:15], {vr(X+2*j,2)}")
        for ch in range(2):
            for j in range(4):
                e(f"v_cvt_pk_bf16_f32 v{108+4*ch+j}, v{Hh+4*j+ch}, v{Hh+4*j+2+ch}")
            e(f"ds_write_b128 v3, v[{108+4*ch}:{111+4*ch}] offset:{HCH*ch}")
        for j in range(4): e(f"ds_write_b128 v4, v[{Z+4*j}:{Z+4*j+3}] offset:{16*j}")

    def conv(self, fillers=None):
        e = self.e
        ACC = 4
        FA = [40, 104]; FB = [72, 136]
        e(f"s_lshr_b32 s{S_T2}, s{S_WV}, 1")
        e(f"s_and_b32 s{S_T3}, s{S_WV}, 1")
        e("v_and_b32 v36, 15, v1\nv_lshrrev_b32 v37, 4, v1")
        e("v_lshlrev_b32 v38, 3, v37")
        e("v_sub_u32 v38, v38, v36")
        e("v_add_u32 v38, 2031, v38")
        e("v_lshrrev_b32 v38, 1, v38")
        e("v_and_b32 v39, 1, v1\nv_xor_b32 v39, 1, v39")
        e(f"v_mul_u32_u24 v39, {KODD}, v39")
        e("v_lshl_add_u32 v38, v38, 2, v39")
        e(f"s_mul_i32 s{S_T0}, s{S_T2}, {KCH}")
        e(f"s_lshl_b32 s{S_T1}, s{S_T3}, 8")
        e(f"s_sub_u32 s{S_T0}, s{S_T0}, s{S_T1}")
        e(f"s_add_u32 s{S_T0}, s{S_T0}, {L_K - 192 - 512}")
        for j in range(4):
            e(f"v_add_u32 v{168+j}, s{S_T0}, v38")
            if j < 3: e(f"s_sub_u32 s{S_T0}, s{S_T0}, 1024")
        e("v_lshlrev_b32 v38, 5, v36")
        e("v_lshl_add_u32 v38, v37, 4, v38")
        e(f"s_mul_i32 s{S_T0}, s{S_T2}, {HCH}")
        e(f"s_sub_u32 s{S_T0}, s{S_T0}, s{S_T1}")
        e(f"s_add_u32 s{S_T0}, s{S_T0}, {L_HI + 480 - 192}")
        e(f"v_add_u32 v172, s{S_T0}, v38")
        e("v_lshlrev_b32 v38, 2, v38")
        e("v_lshlrev_b32 v39, 5, v37")
        e("v_sub_u32 v38, v38, v39")
        e(f"s_lshl_b32 s{S_T0}, s{S_T2}, 2")
        e(f"s_lshl_b32 s{S_T1}, s{S_T3}, 13")
        e(f"s_add_u32 s{S_T0}, s{S_T0}, s{S_T1}")
        e(f"s_add_u32 s{S_T0}, s{S_T0}, {L_Z}")
        e(f"v_add_u32 v173, s{S_T0}, v38")
        e("s_waitcnt lgkmcnt(0)")
        e("s_barrier")
        self.stamp(5)
        p1 = self.lab("cp1"); jn = self.lab("cj")
        e(f"s_cmp_lg_u32 s{S_T3}, 0")
        e(f"s_cbranch_scc1 {p1}")
        for par in range(2):
            for c in range(4):
                r = ACC + 4 * (4*par + c)
                if c: e(f"v_add_u32 v174, {2048*c}, v173")
                a = 174 if c else 173
                e(f"ds_read2_b32 v[{r}:{r+1}], v{a} offset0:0 offset1:2")
                e(f"ds_read2_b32 v[{r+2}:{r+3}], v{a} offset0:4 offset1:6")
            for r in range(16): e(f"v_mov_b32 v{ACC + 16*(1-par) + r}, 0")
            if par == 0:
                e(f"s_branch {jn}"); self.label(p1)
        self.label(jn)
        def loads(it):
            s = it & 1; L = []; o = 16 * (3 - it)
            tk = {}
            for k in range(8):
                tk[("B", k)] = self.tok(f"ds_read_b128 {vr(FB[s]+4*k,4)}, v172 offset:{512*k + 64*(3-it)}")
                b = 168 + (k >> 1); oo = o + (0 if k & 1 else 128)
                self.tok(f"ds_read2_b32 {vr(FA[s]+4*k,2)}, v{b} offset0:{oo} offset1:{oo+1}")
                tk[("A", k)] = self.tok(f"ds_read2_b32 {vr(FA[s]+4*k+2,2)}, v{b} offset0:{oo+2} offset1:{oo+3}")
            return tk
        pre = self.p.take()
        tks = [None] * 4
        tks[0] = loads(0)
        main = self.p.take()
        for it in range(4):
            nxt = []
            if it < 3:
                tks[it+1] = loads(it+1); nxt = self.p.take()
            s = it & 1
            order = sorted([(u, v) for u in range(8) for v in range(8 - u)], key=lambda t: (max(t), t[0]))
            seen = set(); k = 0
            for (u, v) in order:
                need = [t for t in (("A", u), ("B", v)) if t not in seen]
                if need:
                    self.wait(*[tks[it][t] for t in need]); seen |= set(need)
                cb = u + v
                e(f"v_mfma_f32_16x16x32_bf16 {vr(ACC+4*cb,4)}, {vr(FA[s]+4*u,4)}, {vr(FB[s]+4*v,4)}, {vr(ACC+4*cb,4)}")
                if nxt and (it > 0 or k >= 12):
                    self.p.put([nxt.pop(0)])
                k += 1
            self.p.put(nxt)
            main += self.p.take()
        if fillers:
            main, left = merge(main, fillers, 8)
            main += left
        self.p.put(pre + main)
        self.stamp(6)
        e(f"s_lshl_b32 s{S_T0}, s{S_WV}, 12")
        e(f"s_add_u32 s{S_T0}, s{S_T0}, {L_MOD}")
        e(f"v_lshl_add_u32 v36, v1, 4, s{S_T0}")
        e(f"s_xor_b32 s{S_T1}, s{S_WV}, 1\ns_lshl_b32 s{S_T1}, s{S_T1}, 12\ns_add_u32 s{S_T1}, s{S_T1}, {L_MOD}")
        e(f"v_lshl_add_u32 v37, v1, 4, s{S_T1}")
        p1 = self.lab("ep1"); jn = self.lab("ej")
        e(f"s_cmp_lg_u32 s{S_T3}, 0")
        e(f"s_cbranch_scc1 {p1}")
        for par in range(2):
            e("s_nop 7")
            for c in range(4):
                r = ACC + 4 * (4*(1-par) + c)
                e(f"ds_write_b128 v36, {vr(r,4)} offset:{1024*c}")
            e("s_waitcnt lgkmcnt(0)")
            e("s_barrier")
            for c in range(4): e(f"ds_read_b128 {vr(40+4*c,4)}, v37 offset:{1024*c}")
            for c in range(4):
                e(f"s_waitcnt lgkmcnt({3-c})")
                r = ACC + 4 * (4*par + c)
                e(f"v_pk_add_f32 {vr(40+4*c,2)}, {vr(40+4*c,2)}, {vr(r,2)}")
                e(f"v_pk_add_f32 {vr(42+4*c,2)}, {vr(42+4*c,2)}, {vr(r+2,2)}")
            if par == 0:
                e(f"s_branch {jn}"); self.label(p1)
        self.label(jn)
        sB = S_M + 8
        e(f"s_cmp_eq_u32 s{S_T2}, 0")
        e(f"s_cselect_b32 s{S_T0}, s{sB}, s{sB+1}")
        e(f"v_mov_b32 v38, s{S_T0}\nv_mov_b32 v39, s{S_T0}")
        e("v_and_b32 v56, 15, v1\nv_lshrrev_b32 v57, 4, v1")
        e("v_lshrrev_b32 v58, 1, v56")
        e("v_and_b32 v59, 1, v57")
        e("v_lshl_add_u32 v58, v59, 3, v58")
        e("v_lshlrev_b32 v58, 15, v58")
        e("v_and_b32 v56, 1, v56")
        e("v_lshl_add_u32 v58, v56, 5, v58")
        e("v_lshrrev_b32 v57, 1, v57")
        e("v_lshl_add_u32 v58, v57, 4, v58")
        e(f"s_add_u32 s{S_T0}, s{S_D0}, s{S_T2}")
        e(f"s_lshl_b32 s{S_T0}, s{S_T0}, 6")
        e(f"s_lshl_b32 s{S_T1}, s{S_T3}, 20")
        e(f"s_add_u32 s{S_T0}, s{S_T0}, s{S_T1}")
        e(f"s_add_u32 s{S_T1}, s{S_T0}, {hx(WS_X1S)}")
        e(f"s_add_u32 s{S_T0}, s{S_T0}, {hx(WS_X1)}")
        for pr in range(2):
            a = 40 + 8*pr
            d = 60 + 8*pr
            for h in range(4): e(f"v_pk_mul_f32 {vr(76+2*h,2)}, {vr(a+2*h,2)}, v[38:39]")
            for h in range(4): e(f"v_cvt_pk_bf16_f32 v{d+h}, v{76+2*h}, v{77+2*h}")
            for h in range(4): e(f"v_cvt_pk_bf16_f32 v{d+4+h}, v{a+2*h}, v{a+2*h+1}")
            e(f"v_permlane16_swap_b32 v{d}, v{d+2}\nv_permlane16_swap_b32 v{d+1}, v{d+3}")
            e(f"buffer_store_dwordx4 {vr(d,4)}, v58, s[{S_WS}:{S_WS+3}], s{S_T1} offen sc1")
            e(f"v_permlane16_swap_b32 v{d+4}, v{d+6}\nv_permlane16_swap_b32 v{d+5}, v{d+7}")
            e(f"buffer_store_dwordx4 {vr(d+4,4)}, v58, s[{S_WS}:{S_WS+3}], s{S_T0} offen sc1")
            if pr == 0:
                e(f"s_add_u32 s{S_T0}, s{S_T0}, {hx(16*32768)}\ns_add_u32 s{S_T1}, s{S_T1}, {hx(16*32768)}")
        self.stamp(7)

    def stats2(self):
        e = self.e
        e("v_lshlrev_b32 v3, 6, v1")
        e(f"s_lshr_b32 s{S_T0}, s2, 2\ns_lshl_b32 s{S_T0}, s{S_T0}, 15")
        e(f"s_and_b32 s{S_T1}, s2, 3\ns_lshl_b32 s{S_T1}, s{S_T1}, 4")
        e(f"s_add_u32 s{S_T0}, s{S_T0}, s{S_T1}")
        e(f"s_lshl_b32 s{S_T1}, s{S_WV}, 13")
        e(f"s_add_u32 s{S_T0}, s{S_T0}, s{S_T1}")
        e(f"s_add_u32 s{S_T0}, s{S_T0}, {hx(WS_X1)}")
        e(f"s_add_u32 s{S_T2}, s{S_T0}, 4096")
        e(f"s_lshl_b32 s{S_T1}, s{S_WV}, 11")
        e(f"s_add_u32 s{S_T1}, s{S_T1}, {L_ST2}")
        e("v_lshrrev_b32 v4, 4, v1\nv_lshlrev_b32 v4, 3, v4")
        e("v_bfe_u32 v5, v1, 1, 1\nv_lshl_add_u32 v4, v5, 2, v4")
        e("v_bfe_u32 v5, v1, 2, 2\nv_add_u32 v4, v4, v5")
        e("v_lshlrev_b32 v4, 4, v4")
        e("v_and_b32 v5, 1, v1\nv_lshl_add_u32 v4, v5, 3, v4")
        e(f"v_add_u32 v4, s{S_T1}, v4")
        e("v_mov_b32 v5, 0x3f803f80")
        e(f"s_mov_b32 s{S_SPIN}, {self.cfg['spin']}")
        rt = self.lab("s2"); ok = self.lab("s2ok")
        self.label(rt)
        e(f"s_mov_b32 m0, s{S_T1}")
        e("s_nop 0")
        e(f"buffer_load_dwordx4 v3, s[{S_WS}:{S_WS+3}], s{S_T0} offen sc1 lds")
        e(f"s_add_u32 m0, s{S_T1}, 1024")
        e("s_nop 0")
        e(f"buffer_load_dwordx4 v3, s[{S_WS}:{S_WS+3}], s{S_T2} offen sc1 lds")
        e("s_waitcnt vmcnt(0)")
        for i in range(4): e(f"ds_read_b64_tr_b16 v[{8+2*i}:{9+2*i}], v4 offset:{512*i}")
        e("s_waitcnt lgkmcnt(0)")
        for i in range(8):
            e(f"v_dot2_f32_bf16 v6, v{8+i}, v5, {'v6' if i else '0'}")
            e(f"v_dot2_f32_bf16 v7, v{8+i}, v{8+i}, {'v7' if i else '0'}")
        if self.cfg.get("fill"):
            e("v_cmp_u_f32 vcc, v7, v7")
            e(f"s_cbranch_vccz {ok}")
            self.spin_check(rt)
        self.label(ok)
        e("v_add_f32_dpp v6, v6, v6 row_ror:8 row_mask:0xf bank_mask:0xf")
        e("v_add_f32_dpp v7, v7, v7 row_ror:8 row_mask:0xf bank_mask:0xf")
        e("v_permlane16_swap_b32 v6, v7")
        e("v_add_f32 v6, v6, v7")
        e("v_mov_b32 v7, v6")
        e("v_permlane32_swap_b32 v6, v7")
        e("v_add_f32 v6, v6, v7")
        e(f"s_lshl_b32 s{S_T1}, s{S_WV}, 7\ns_add_u32 s{S_T1}, s{S_T1}, {L_ST2P}")
        e("v_and_b32 v8, 31, v1")
        e(f"v_lshl_add_u32 v8, v8, 2, s{S_T1}")
        e("ds_write_b32 v8, v6")
        e("v_and_b32 v8, 7, v1\nv_lshlrev_b32 v8, 2, v8")
        e(f"v_add_u32 v8, {L_ST2P}, v8")
        e("s_waitcnt lgkmcnt(0)")
        e("s_barrier")
        sk = self.lab("s2w")
        e(f"s_cmp_lg_u32 s{S_WV}, 0")
        e(f"s_cbranch_scc1 {sk}")
        for w in range(4): e(f"ds_read2_b32 v[{10+2*w}:{11+2*w}], v8 offset0:{32*w} offset1:{32*w+16}")
        e("s_waitcnt lgkmcnt(0)")
        e("v_pk_add_f32 v[10:11], v[10:11], v[12:13]\nv_pk_add_f32 v[14:15], v[14:15], v[16:17]\nv_pk_add_f32 v[10:11], v[10:11], v[14:15]")
        self.stat_finish(10, 11, 12, 13)
        e(f"v_mov_b32 v11, s{S_TAG}")
        e("v_lshlrev_b32 v12, 3, v1")
        e(f"s_lshl_b32 s{S_T0}, s2, 6\ns_add_u32 s{S_T0}, s{S_T0}, {WS_ST2}")
        e("s_mov_b64 exec, 0xff")
        e(f"buffer_store_dwordx2 v[10:11], v12, s[{S_WS}:{S_WS+3}], s{S_T0} offen sc1")
        e("s_mov_b64 exec, -1")
        self.label(sk)

    def g1_map(self):
        e = self.e
        e(f"s_lshr_b32 s{S_G1}, s{S_XCD}, 1\ns_lshl_b32 s{S_G1}, s{S_G1}, 2")
        e(f"s_and_b32 s{S_T0}, s{S_IDX}, 3\ns_add_u32 s{S_G1}, s{S_G1}, s{S_T0}")
        e(f"s_and_b32 s{S_G2}, s{S_XCD}, 1\ns_mul_i32 s{S_G2}, s{S_G2}, 7")
        e(f"s_lshr_b32 s{S_T0}, s{S_IDX}, 2\ns_add_u32 s{S_G2}, s{S_G2}, s{S_T0}")
        e(f"s_lshl_b32 s{S_G2}, s{S_G2}, 7")
        e(f"s_lshl_b32 s{S_T0}, s{S_WV}, 5\ns_add_u32 s{S_G2}, s{S_G2}, s{S_T0}")

    NSLOT = 8
    def w_setup(self):
        e = self.e
        e("v_lshrrev_b32 v240, 2, v1")
        e("v_mul_u32_u24 v240, 3584, v240")
        e("v_and_b32 v241, 3, v1")
        e("v_lshl_add_u32 v240, v241, 4, v240")
        e(f"s_lshl_b32 s{S_T0}, s{S_G2}, 1")
        e(f"v_add_u32 v240, s{S_T0}, v240")
        e("v_xor_b32 v241, 32, v240")
        e(f"s_lshl_b32 s{S_G3}, s{S_WV}, 14")
        e(f"s_add_u32 s{S_G3}, s{S_G3}, {L_TAB}")
        e("v_bfe_u32 v242, v1, 4, 1")
        e("v_mul_u32_u24 v242, 1056, v242")
        e("v_lshrrev_b32 v243, 5, v1")
        e("v_lshl_add_u32 v242, v243, 9, v242")
        e("v_bfe_u32 v243, v1, 2, 2")
        e("v_lshl_add_u32 v242, v243, 6, v242")
        e("v_and_b32 v243, 1, v1")
        e("v_lshl_add_u32 v242, v243, 4, v242")
        e("v_bfe_u32 v243, v1, 1, 1")
        e("v_lshl_add_u32 v242, v243, 3, v242")
        e(f"v_add_u32 v242, s{S_G3}, v242")
        e("v_xor_b32 v243, 32, v242")
    def w_issue(self, ks):
        e = self.e
        sl = ks % self.NSLOT
        e(f"s_add_u32 m0, s{S_G3}, {2048*sl}")
        e(f"s_mov_b32 s101, {ks*16*3584}")
        self.tok(f"buffer_load_dwordx4 v240, s[{S_WG}:{S_WG+3}], s101 offen lds")
        e(f"s_add_u32 m0, s{S_G3}, {2048*sl + 1024}")
        e("s_nop 0")
        return self.tok(f"buffer_load_dwordx4 v241, s[{S_WU}:{S_WU+3}], s101 offen lds")
    def w_read(self, ks):
        sl = ks % self.NSLOT; t_ = None
        for t in range(2):
            for i in range(2):
                a = (t*32 + ks)*4 + 2*i
                t_ = self.tok(f"ds_read_b64_tr_b16 {ar(a,2)}, v{242+t} offset:{2048*sl + 256*i}")
        return t_
    def w_stage_all(self):
        tk = {}
        for ks in range(self.NSLOT): tk[ks] = self.w_issue(ks)
        for ks in range(32):
            self.wait(tk[ks])
            r = self.w_read(ks)
            if ks + self.NSLOT < 32:
                self.wait(r)
                tk[ks + self.NSLOT] = self.w_issue(ks + self.NSLOT)

    U1 = 176; U2 = 208
    def ss_u(self):
        e = self.e
        e("v_lshlrev_b32 v3, 5, v0")
        e(f"s_mov_b32 s{S_T0}, {WS_MODF}")
        e(f"s_mov_b32 s{S_SPIN}, {self.cfg['spin']}")
        rt = self.lab("ss"); ok = self.lab("ssok")
        self.label(rt)
        e(f"buffer_load_dwordx2 v[4:5], v3, s[{S_WS}:{S_WS+3}], s{S_T0} offen sc1")
        e(f"buffer_load_dwordx2 v[6:7], v3, s[{S_WS}:{S_WS+3}], s{S_T0} offen offset:16 sc1")
        e("s_waitcnt vmcnt(0)")
        e(f"v_xor_b32 v5, s{S_TAG}, v5\nv_xor_b32 v7, s{S_TAG}, v7\nv_or_b32 v5, v5, v7")
        e("v_cmp_ne_u32 vcc, 0, v5")
        e(f"s_cbranch_vccz {ok}")
        self.spin_check(rt)
        self.label(ok)
        e("s_mov_b32 s101, 0x05040100\nv_perm_b32 v5, v6, v4, s101")
        e("s_mov_b32 s101, 0x07060302\nv_perm_b32 v7, v6, v4, s101")
        e(f"v_lshlrev_b32 v3, 2, v0\nv_add_u32 v3, {L_SS}, v3")
        e("ds_write2st64_b32 v3, v5, v7 offset0:0 offset1:4")
        e("v_bfe_u32 v3, v1, 4, 1\nv_lshlrev_b32 v3, 10, v3")
        e("v_lshrrev_b32 v4, 5, v1\nv_lshl_add_u32 v3, v4, 4, v3")
        e(f"v_add_u32 v3, {L_SS}, v3")
        e("s_waitcnt lgkmcnt(0)")
        e("s_barrier")
        R = 8; tk = {}
        for ks in range(R): tk[ks] = self.tok(f"ds_read_b128 {vr(8+4*ks,4)}, v3 offset:{32*ks}")
        for ks in range(32):
            self.wait(tk[ks])
            for t in range(2):
                acc = vr(self.U1 + 16*t, 16)
                e(f"v_mfma_f32_32x32x16_bf16 {acc}, {ar((t*32+ks)*4,4)}, {vr(8+4*(ks%R),4)}, {acc if ks else '0'}")
            if ks + R < 32: tk[ks+R] = self.tok(f"ds_read_b128 {vr(8+4*(ks%R),4)}, v3 offset:{32*(ks+R)}")
        for r in range(32): e(f"v_mov_b32 v{self.U2+r}, v{self.U1+r}")
        for r in range(32): e(f"v_permlane16_swap_b32 v{self.U1+r}, v{self.U2+r}")
        for r in range(32):
            e(f"v_mul_f32 v{self.U2+r}, {fl(GAM if (r & 15) < 8 else 1/GAM)}, v{self.U2+r}")

    def g1_epilogue(self, g, acc, stat):
        e = self.e
        save = self.p.take()
        T = 148
        rG, mG, rU, mU = stat, stat+1, stat+2, stat+3
        for t in range(2):
            for half in range(2):
                regs = [4*half + j for j in range(4)]
                gq = [T + j for j in range(4)]; uq = [T + 4 + j for j in range(4)]; q = [T + 8 + j for j in range(4)]
                if half: gq = [x + 12 for x in gq]; uq = [x + 12 for x in uq]; q = [x + 12 for x in q]
                for j, r in enumerate(regs): e(f"v_fma_f32 v{gq[j]}, v{mG}, v{self.U1+16*t+r}, v{self.U2+16*t+r}")
                for j, r in enumerate(regs): e(f"v_fmac_f32 v{gq[j]}, v{rG}, v{acc+16*t+r}")
                for j in range(4): e(f"v_fma_f32 v{q[j]}, -v{gq[j]}, v{gq[j]}, s{S_T3}")
                for j in range(4): e(f"v_mul_f32 v{q[j]}, v{gq[j]}, v{q[j]}")
                for j, r in enumerate(regs):
                    e(f"v_exp_f32 v{q[j]}, v{q[j]}")
                    e(f"v_fma_f32 v{uq[j]}, v{mU}, v{self.U1+16*t+8+r}, v{self.U2+16*t+8+r}")
                for j, r in enumerate(regs):
                    e(f"v_add_f32 v{q[j]}, 1.0, v{q[j]}")
                    e(f"v_fmac_f32 v{uq[j]}, v{rU}, v{acc+16*t+8+r}")
                for j in range(4):
                    e(f"v_rcp_f32 v{q[j]}, v{q[j]}")
                    e(f"v_mul_f32 v{uq[j]}, v{gq[j]}, v{uq[j]}")
                for j in range(4): e(f"v_mul_f32 v{uq[j]}, v{uq[j]}, v{q[j]}")
                e(f"v_cvt_pk_bf16_f32 v{172+2*half}, v{uq[0]}, v{uq[1]}")
                e(f"v_cvt_pk_bf16_f32 v{173+2*half}, v{uq[2]}, v{uq[3]}")
            e(f"s_add_u32 s101, s{S_T2}, {g*112*1024 + t*1024}")
            e(f"buffer_store_dwordx4 v[172:175], v147, s[{S_WS}:{S_WS+3}], s101 offen sc1")
        out = self.p.take(); self.p.put(save)
        return out

    def g1_stat_load(self):
        e = self.e
        e("v_and_b32 v145, 31, v1\nv_lshlrev_b32 v145, 3, v145")
        e(f"s_lshl_b32 s{S_T0}, s{S_G1}, 10\ns_add_u32 s{S_T0}, s{S_T0}, {WS_ST2}")
        e(f"s_mov_b32 s{S_SPIN}, {self.cfg['spin']}")
        rt = self.lab("st2"); ok = self.lab("st2ok")
        self.label(rt)
        for g in range(4):
            e(f"buffer_load_dwordx2 v[{128+4*g}:{129+4*g}], v145, s[{S_WS}:{S_WS+3}], s{S_T0} offen offset:{256*g} sc1")
        e("s_waitcnt vmcnt(0)")
        e(f"v_xor_b32 v146, s{S_TAG}, v129")
        for g in range(1, 4): e(f"v_xor_b32 v{130+4*g}, s{S_TAG}, v{129+4*g}\nv_or_b32 v146, v146, v{130+4*g}")
        e("v_cmp_ne_u32 vcc, 0, v146")
        e(f"s_cbranch_vccz {ok}")
        self.spin_check(rt)
        self.label(ok)
        for g in range(4):
            b = 128 + 4*g
            e(f"v_lshlrev_b32 v{b+2}, 16, v{b}\nv_rcp_f32 v{b+2}, v{b+2}")
            e(f"v_and_b32 v{b+3}, 0xffff0000, v{b}")
            e(f"v_mul_f32 v{b+3}, v{b+3}, v{b+2}")
            e(f"v_mul_f32 v{b}, {fl(GAM)}, v{b+2}\nv_mul_f32 v{b+1}, {fl(-GAM)}, v{b+3}")
            e(f"v_mul_f32 v{b+2}, {fl(1/GAM)}, v{b+2}\nv_mul_f32 v{b+3}, {fl(-1/GAM)}, v{b+3}")

    def gemm1(self):
        e = self.e
        e("v_lshlrev_b32 v147, 4, v1")
        e(f"s_lshl_b32 s{S_T0}, s{S_G1}, 17")
        e(f"s_lshl_b32 s{S_T1}, s{S_WV}, 13")
        e(f"s_add_u32 s{S_T0}, s{S_T0}, s{S_T1}")
        e(f"s_add_u32 s{S_T0}, s{S_T0}, {hx(WS_X1S)}")
        xt = {}
        for g in range(4):
            for j in range(8):
                off = g*32768 + j*1024
                e(f"s_add_u32 m0, s{S_T1}, {off}")
                e(f"s_add_u32 s101, s{S_T0}, {off}")
                xt[g] = self.tok(f"buffer_load_dwordx4 v147, s[{S_WS}:{S_WS+3}], s101 offen sc1 lds")
        e("v_lshrrev_b32 v144, 5, v1\nv_lshlrev_b32 v144, 9, v144")
        e("v_bfe_u32 v145, v1, 2, 2\nv_lshl_add_u32 v144, v145, 6, v144")
        e("v_bfe_u32 v145, v1, 4, 1\nv_lshl_add_u32 v144, v145, 5, v144")
        e("v_and_b32 v145, 3, v1\nv_lshl_add_u32 v144, v145, 3, v144")
        e("v_add_u32 v2, 0x10000, v144")
        self.g1_stat_load()
        e(f"s_mul_i32 s{S_T2}, s{S_G1}, {4*112*1024}")
        e(f"s_lshl_b32 s{S_T0}, s{S_G2}, 6")
        e(f"s_add_u32 s{S_T2}, s{S_T2}, s{S_T0}")
        e(f"s_add_u32 s{S_T2}, s{S_T2}, {hx(WS_H)}")
        e(f"s_mov_b32 s{S_T3}, {fl(-GC)}")
        e("s_barrier")
        self.stamp(12)
        ACC = [4, 36, 68]; BR = 100; R = 7
        seq = [(g, ks) for g in range(4) for ks in range(32)]
        def bread(n):
            g, ks = seq[n]; b = BR + 4*(n % R); ad = 144 if g < 2 else 2
            o = (g & 1)*32768 + ks*1024
            self.tok(f"ds_read_b64_tr_b16 {vr(b,2)}, v{ad} offset:{o}")
            return self.tok(f"ds_read_b64_tr_b16 {vr(b+2,2)}, v{ad} offset:{o+256}")
        PF = R - 1
        tk = {}
        for n in range(PF): tk[n] = bread(n)
        pend = []
        for g in range(4):
            pre = self.p.take()
            for ks in range(32):
                n = g*32 + ks
                self.wait(tk[n])
                for t in range(2):
                    acc = vr(ACC[g % 3] + 16*t, 16)
                    e(f"v_mfma_f32_32x32x16_bf16 {acc}, {ar((t*32+ks)*4,4)}, {vr(BR+4*(n%R),4)}, {acc if ks else '0'}")
                    if t == 0 and n + PF < 128: tk[n+PF] = bread(n+PF)
            main = self.p.take()
            main, pend = merge(main, pend, 24)
            self.p.put(pre + main + pend)
            pend = self.g1_epilogue(g, ACC[g % 3], 128 + 4*g)
            pend = [Ins("s_nop 0")] * 0 + pend
        self.stamp(13)
        self.p.put(pend)
        self.stamp(14)

    def g2_map(self):
        e = self.e
        e(f"s_lshl_b32 s{S_G1}, s{S_XCD}, 1\ns_bfe_u32 s{S_T0}, s{S_IDX}, 0x10004\ns_add_u32 s{S_G1}, s{S_G1}, s{S_T0}")
        e(f"s_lshl_b32 s{S_G1}, s{S_G1}, 2")
        e(f"s_bfe_u32 s{S_T0}, s{S_IDX}, 0x10003")
        e(f"s_sub_u32 s{S_G2}, s{S_G1}, s{S_T0}\ns_add_u32 s{S_G2}, s{S_G2}, 3")
        e(f"s_add_u32 s{S_G1}, s{S_G1}, s{S_T0}")
        e(f"s_and_b32 s{S_G3}, s{S_IDX}, 7")

    def gemm2(self):
        e = self.e
        NS = 16
        e("v_lshrrev_b32 v240, 3, v1")
        e("v_bfe_u32 v241, v1, 4, 1\nv_lshlrev_b32 v241, 2, v241")
        e("v_and_b32 v242, 7, v1\nv_xor_b32 v241, v241, v242")
        e("v_lshlrev_b32 v240, 10, v240\nv_lshl_add_u32 v240, v241, 4, v240")
        e(f"s_mul_i32 s{S_T0}, s{S_WV}, {448*1024}")
        e(f"s_lshl_b32 s{S_T1}, s{S_G3}, 7\ns_add_u32 s{S_T0}, s{S_T0}, s{S_T1}")
        e(f"s_lshl_b32 s{S_T1}, s{S_WV}, 15")
        e("v_lshrrev_b32 v242, 5, v1\nv_lshlrev_b32 v242, 10, v242")
        e("v_bfe_u32 v243, v1, 2, 2\nv_lshl_add_u32 v242, v243, 7, v242")
        e("v_bfe_u32 v243, v1, 3, 1\nv_lshl_add_u32 v242, v243, 6, v242")
        e("v_and_b32 v243, 1, v1\nv_lshl_add_u32 v242, v243, 5, v242")
        e("v_bfe_u32 v243, v1, 1, 1\nv_lshl_add_u32 v242, v243, 3, v242")
        e("v_bfe_u32 v243, v1, 4, 1\nv_lshl_add_u32 v242, v243, 4, v242")
        e(f"v_add_u32 v242, s{S_T1}, v242\nv_xor_b32 v243, 64, v242")
        def issue(ks):
            sl = ks % NS
            e(f"s_add_u32 m0, s{S_T1}, {2048*sl}\ns_add_u32 s101, s{S_T0}, {ks*16384}")
            self.tok(f"buffer_load_dwordx4 v240, s[{S_WD}:{S_WD+3}], s101 offen lds")
            e(f"s_add_u32 m0, s{S_T1}, {2048*sl+1024}\ns_add_u32 s101, s{S_T0}, {ks*16384+8192}")
            return self.tok(f"buffer_load_dwordx4 v240, s[{S_WD}:{S_WD+3}], s101 offen lds")
        def rd(ks):
            sl = ks % NS; t_ = None
            for t in range(2):
                for i in range(2):
                    t_ = self.tok(f"ds_read_b64_tr_b16 {ar((ks*2+t)*4+2*i,2)}, v{242+t} offset:{2048*sl + 512*i}")
            return t_
        e("s_barrier")
        tk = {}
        for ks in range(NS): tk[ks] = issue(ks)
        e(f"s_bitcmp1_b32 s{S_WV}, 1\ns_cselect_b32 s{S_T2}, s{S_G2}, s{S_G1}")
        e(f"s_and_b32 s{S_T3}, s{S_WV}, 1\ns_lshl_b32 s{S_T3}, s{S_T3}, 5")
        e(f"s_lshl_b32 s{S_M}, s{S_G3}, 6\ns_add_u32 s{S_T3}, s{S_T3}, s{S_M}")
        e(f"s_lshl_b32 s{S_M}, s{S_T2}, 15\ns_lshl_b32 s{S_M+1}, s{S_T3}, 6\ns_add_u32 s{S_M}, s{S_M}, s{S_M+1}")
        e(f"s_add_u32 s{S_M}, s{S_M}, {hx(WS_X1)}")
        e(f"s_lshl_b32 s{S_M+1}, s{S_WV}, 11\ns_add_u32 s{S_M+1}, s{S_M+1}, {L_XR}")
        e("v_lshlrev_b32 v244, 4, v1")
        e(f"s_mov_b32 m0, s{S_M+1}\ns_nop 0")
        self.tok(f"buffer_load_dwordx4 v244, s[{S_WS}:{S_WS+3}], s{S_M} offen sc1 lds")
        xr = self.tok(f"buffer_load_dwordx4 v244, s[{S_WS}:{S_WS+3}], s{S_M} offen offset:1024 sc1 lds")
        e("v_lshrrev_b32 v245, 5, v1\nv_lshlrev_b32 v245, 8, v245")
        e(f"s_lshl_b32 s{S_M+2}, s{S_T3}, 4\ns_add_u32 s{S_M+2}, s{S_M+2}, {WS_MODF + 8}")
        gbt = [self.tok(f"buffer_load_dword v{208+j}, v245, s[{S_WS}:{S_WS+3}], s{S_M+2} offen offset:{16*j} sc1") for j in range(16)]
        for ks in range(28):
            self.wait(tk[ks])
            r = rd(ks)
            if ks + NS < 28:
                self.wait(r); tk[ks+NS] = issue(ks+NS)
        self.stamp(16)
        HB = 68
        e(f"s_mul_i32 s{S_M+4}, s{S_G1}, {112*1024}\ns_mul_i32 s{S_M+5}, s{S_G2}, {112*1024}")
        e(f"s_mul_i32 s{S_M+6}, s{S_WV}, {28*1024}\ns_add_u32 s{S_M+6}, s{S_M+6}, {hx(WS_H)}")
        e(f"s_add_u32 s{S_M+4}, s{S_M+4}, s{S_M+6}\ns_add_u32 s{S_M+5}, s{S_M+5}, s{S_M+6}")
        def hl(nt, ks):
            if ks % 4 == 0: e(f"s_add_u32 s101, s{S_M+4+nt}, {ks*1024}")
            return self.tok(f"buffer_load_dwordx4 {vr(HB+4*ks,4)}, v244, s[{S_WS}:{S_WS+3}], s101 offen offset:{(ks%4)*1024} sc1")
        ht = {}
        for ks in range(28): ht[(0, ks)] = hl(0, ks)
        e("s_waitcnt lgkmcnt(0)")
        for nt in range(2):
            for ks in range(28):
                self.wait(ht[(nt, ks)])
                for t in range(2):
                    acc = vr(4 + 32*nt + 16*t, 16)
                    e(f"v_mfma_f32_32x32x16_bf16 {acc}, {ar((ks*2+t)*4,4)}, {vr(HB+4*ks,4)}, {acc if ks else '0'}")
                if nt == 0: ht[(1, ks)] = hl(1, ks)
        self.stamp(17)
        e("s_barrier")
        e(f"s_lshl_b32 s{S_T0}, s{S_WV}, 12")
        e(f"v_add_u32 v246, s{S_T0}, v244")
        e(f"s_lshl_b32 s{S_T0}, s{S_WV}, 14")
        e(f"v_add_u32 v247, s{S_T0}, v244")
        e("s_nop 7")
        for T in range(4):
            for j in range(4):
                e(f"ds_write_b128 v246, {vr(4+16*T+4*j,4)} offset:{16384*T + 1024*j}")
        e("v_lshrrev_b32 v248, 5, v1\nv_lshlrev_b32 v248, 10, v248")
        e("v_bfe_u32 v249, v1, 2, 2\nv_lshl_add_u32 v248, v249, 6, v248")
        e("v_bfe_u32 v249, v1, 4, 1\nv_lshl_add_u32 v248, v249, 5, v248")
        e("v_and_b32 v249, 3, v1\nv_lshl_add_u32 v248, v249, 3, v248")
        e(f"v_add_u32 v248, s{S_M+1}, v248")
        for j in range(4): e(f"ds_read_b64_tr_b16 {vr(224+2*j,2)}, v248 offset:{256*j}")
        e("v_and_b32 v249, 31, v1\nv_lshlrev_b32 v249, 10, v249")
        e("v_lshrrev_b32 v250, 5, v1\nv_lshl_add_u32 v249, v250, 5, v249")
        e(f"s_lshl_b32 s{S_T0}, s{S_T2}, 15\ns_lshl_b32 s{S_T1}, s{S_T3}, 1\ns_add_u32 s{S_T0}, s{S_T0}, s{S_T1}")
        e("s_waitcnt lgkmcnt(0)")
        e("s_barrier")
        rt = {}
        for w in range(4):
            for j in range(4): rt[(w, j)] = self.tok(f"ds_read_b128 {vr(68+16*w+4*j,4)}, v247 offset:{4096*w + 1024*j}")
        for j in range(8):
            e(f"v_lshlrev_b32 v{4+2*j}, 16, v{224+j}\nv_and_b32 v{5+2*j}, 0xffff0000, v{224+j}")
        self.wait(rt[(1, 3)])
        for j in range(8): e(f"v_pk_add_f32 {vr(68+2*j,2)}, {vr(68+2*j,2)}, {vr(84+2*j,2)}")
        self.wait(rt[(3, 3)])
        for j in range(8): e(f"v_pk_add_f32 {vr(100+2*j,2)}, {vr(100+2*j,2)}, {vr(116+2*j,2)}")
        for j in range(8): e(f"v_pk_add_f32 {vr(68+2*j,2)}, {vr(68+2*j,2)}, {vr(100+2*j,2)}")
        for j in range(8): e(f"v_pk_fma_f32 {vr(68+2*j,2)}, {vr(68+2*j,2)}, {vr(208+2*j,2)}, {vr(4+2*j,2)}")
        for j in range(8): e(f"v_cvt_pk_bf16_f32 v{24+j}, v{68+2*j}, v{69+2*j}")
        e(f"buffer_store_dwordx4 v[24:27], v249, s[{S_OUT}:{S_OUT+3}], s{S_T0} offen")
        e(f"buffer_store_dwordx4 v[28:31], v249, s[{S_OUT}:{S_OUT+3}], s{S_T0} offen offset:16")
        self.stamp(18)

    def bump_epoch(self):
        e = self.e
        sk = self.lab("ep")
        e("s_cmp_lg_u32 s2, 0")
        e(f"s_cbranch_scc1 {sk}")
        e(f"s_add_u32 s{S_T0}, s{S_E}, 1")
        e(f"v_mov_b32 v3, s{S_T0}\nv_mov_b32 v4, 0")
        e("s_mov_b64 exec, 1")
        e(f"buffer_store_dword v3, v4, s[{S_WS}:{S_WS+3}], 0 offen sc1")
        e("s_mov_b64 exec, -1")
        self.label(sk)

    def finish(self):
        self.stamp_flush()
        self.label(f"{self.cfg['uid']}_end")
        self.e("s_endpgm")
        ins = resolve(self.p.take())
        ins, n = pad_hazards(ins)
        return render(ins)

def kernel_text(name, body, vgpr=512, accum=256):
    return f""".text
.globl {name}
.p2align 8
.type {name},@function
{name}:
{body}
.section .rodata,"a"
.p2align 6
.amdhsa_kernel {name}
  .amdhsa_next_free_vgpr {vgpr}
  .amdhsa_next_free_sgpr 102
  .amdhsa_accum_offset {accum}
  .amdhsa_group_segment_fixed_size 0
  .amdhsa_kernarg_size 144
  .amdhsa_user_sgpr_count 2
  .amdhsa_user_sgpr_kernarg_segment_ptr 1
  .amdhsa_system_sgpr_workgroup_id_x 1
.end_amdhsa_kernel
"""

def build(mode, stamps=False):
    hdr = open("adaLN_cond__ssm_conv_s4__glu_gated_geglu__prompt.s.ref").read().split("; Override launch")[0]
    base = dict(spin=200000, stamps=stamps)
    out = []
    if mode == "split":
        names = ["p0_kernel", "p1_kernel", "p2_kernel", "p3_kernel", "p4_kernel"]
        for i, nm in enumerate(names):
            g = G(dict(base, uid=nm[:2], dbgoff=0 if i else 0))
            g.prologue()
            if i == 0:
                g.p0_issue(True, False); g.tag_ready(); g.p0_stats(); g.p0_mod()
            elif i == 1:
                g.p0_issue(False, True); g.tag_ready(); g.kgen(); g.hbuild(); g.conv()
            elif i == 2:
                g.tag_ready(); g.stats2()
            elif i == 3:
                g.tag_ready()
                g.e(f"s_cmp_ge_u32 s{S_IDX}, 28\ns_cbranch_scc1 {nm[:2]}_end")
                g.g1_map(); g.w_setup(); g.w_stage_all(); g.ss_u(); g.e("s_barrier"); g.gemm1()
            else:
                g.tag_ready(); g.g2_map(); g.gemm2(); g.bump_epoch()
            out.append(kernel_text(nm, g.finish()))
        launch = "".join(f"; @launch kernel={nm} grid=(256,1,1) block=(256,1,1) lds={LDS_BYTES}\n" for nm in names)
    return hdr + launch + '.amdgcn_target "amdgcn-amd-amdhsa--gfx950"\n' + "".join(out)

if __name__ == "__main__":
    mode = sys.argv[1]
    print(build(mode, stamps="stamps" in sys.argv[2:]))
```

```python
import re

TRANS = ("v_exp_f32", "v_log_f32", "v_rcp_f32", "v_rsq_f32", "v_sqrt_f32", "v_sin_f32", "v_cos_f32")

class Ins:
    __slots__ = ("text", "kind", "tok", "wait", "note")
    def __init__(self, text, kind=None, tok=None, wait=None):
        self.text = text; self.kind = kind; self.tok = tok; self.wait = wait

def _expand(op):
    op = op.strip()
    op = re.sub(r"^-", "", op)
    m = re.match(r"^abs\((.*)\)$", op)
    if m: op = m.group(1)
    op = op.strip("|")
    m = re.match(r"^([vas])(\d+)$", op)
    if m: return [(m.group(1), int(m.group(2)))]
    m = re.match(r"^([vas])\[(\d+):(\d+)\]$", op)
    if m: return [(m.group(1), i) for i in range(int(m.group(2)), int(m.group(3)) + 1)]
    if op == "vcc": return [("s", 106), ("s", 107)]
    if op == "vcc_lo": return [("s", 106)]
    if op == "vcc_hi": return [("s", 107)]
    if op == "m0": return [("s", 124)]
    if op == "exec": return [("s", 126), ("s", 127)]
    return []

def parse(text):
    t = text.split(";")[0].strip()
    parts = t.split(None, 1)
    mn = parts[0]
    ops = []
    if len(parts) > 1:
        depth = 0; cur = ""
        for ch in parts[1]:
            if ch in "[(": depth += 1
            if ch in "])": depth -= 1
            if ch == "," and depth == 0:
                ops.append(cur.strip()); cur = ""
            else: cur += ch
        ops.append(cur.strip())
        ops = [o.split()[0] if o and not o.startswith("hwreg") else o for o in ops]
    return mn, ops

def classify(text):
    mn, ops = parse(text)
    base = re.sub(r"_(e32|e64|dpp|sdwa)$", "", mn)
    d = dict(mn=base, kind="other", dst=set(), src=set(), srcc=set(), srcab=set(), passes=0, dpp=False, wide_store=set(), _ops=(mn, ops))
    E = lambda i: set(_expand(ops[i])) if i < len(ops) else set()
    allops = lambda a: set().union(*[E(i) for i in range(a, len(ops))]) if len(ops) > a else set()
    if base.startswith("v_mfma"):
        d["kind"] = "mfma"; d["dst"] = E(0); d["srcab"] = E(1) | E(2); d["srcc"] = E(3); d["src"] = d["srcab"] | d["srcc"]
        d["passes"] = 8 if "32x32" in base else 4
    elif base.startswith("v_"):
        d["kind"] = "valu"
        if base in TRANS: d["kind"] = "trans"
        d["dpp"] = mn.endswith("_dpp") or "row_" in text or "quad_perm" in text
        if base.startswith("v_cmp"):
            d["dst"] = E(0); d["src"] = allops(1)
        elif base in ("v_readlane_b32", "v_readfirstlane_b32"):
            d["dst"] = E(0); d["src"] = allops(1); d["kind"] = "readlane"
        elif base.startswith("v_permlane") and "swap" in base:
            d["dst"] = E(0) | E(1); d["src"] = E(0) | E(1); d["kind"] = "permlane"
        elif base in ("v_add_co_u32", "v_addc_co_u32", "v_sub_co_u32"):
            d["dst"] = E(0) | E(1); d["src"] = allops(2)
        else:
            d["dst"] = E(0); d["src"] = allops(1)
            if base in ("v_fmac_f32", "v_dot2c_f32_bf16", "v_writelane_b32") or d["dpp"] or "sdwa" in mn: d["src"] |= E(0)
            if base == "v_cndmask_b32" and len(ops) == 3: d["src"] |= {("s", 106), ("s", 107)}
    elif base.startswith("ds_"):
        d["kind"] = "ds"
        if "read" in base or "permute" in base or "swizzle" in base:
            d["dst"] = E(0); d["src"] = allops(1)
        else: d["src"] = allops(0)
    elif base.startswith("buffer_") or base.startswith("global_"):
        d["kind"] = "vmem"
        lds = " lds" in text or "_lds_" in base
        if base in ("buffer_inv", "buffer_wbl2"): pass
        elif "load" in base and not lds:
            d["dst"] = E(0); d["src"] = allops(1)
            if "d16" in base: d["src"] |= E(0)
        elif lds:
            d["src"] = allops(0) | {("s", 124)}; d["ldsdma"] = True
        else:
            d["src"] = allops(0)
            if base.endswith("x4") or base.endswith("x3"):
                d["wide_store"] = E(0) if base.startswith("buffer_") else E(1)
            if "atomic" in base and " sc0" in text: d["dst"] = E(0)
    elif base.startswith("s_"):
        d["kind"] = "salu"
        if base.startswith("s_load") or base.startswith("s_memtime") or base.startswith("s_memrealtime"):
            d["kind"] = "smem"; d["dst"] = E(0); d["src"] = allops(1)
        elif base.startswith("s_cmp") or base.startswith("s_cbranch") or base in ("s_branch", "s_barrier", "s_waitcnt", "s_nop", "s_endpgm", "s_setprio", "s_sleep") or base.startswith("s_bitcmp"):
            d["src"] = allops(0)
        else:
            d["dst"] = E(0); d["src"] = allops(1)
            if "saveexec" in base: d["dst"] |= {("s", 126), ("s", 127)}
        if base == "s_nop": d["nop"] = int(ops[0], 0) + 1
    return d

def need_states(p, c):
    n = 0
    pv = p["kind"] in ("valu", "trans", "readlane", "permlane")
    cv = c["kind"] in ("valu", "trans", "readlane", "permlane")
    vd = {r for r in p["dst"] if r[0] in "va"}
    sd = {r for r in p["dst"] if r[0] == "s"}
    if pv:
        if c["kind"] == "mfma" and vd & c["src"]: n = max(n, 2)
        if cv and c["dpp"] and vd & c["src"]: n = max(n, 2)
        if c["kind"] == "readlane" and vd & c["src"]: n = max(n, 1)
        if c["kind"] == "permlane" and vd & c["src"]: n = max(n, 2)
        if p["kind"] == "trans" and cv and vd & c["src"] and c["kind"] != "trans": n = max(n, 1)
        if p["kind"] == "trans" and c["kind"] == "trans" and vd & c["src"]: n = max(n, 1)
        if p["kind"] == "trans" and c["kind"] in ("ds", "vmem") and vd & c["src"]: n = max(n, 1)
        if sd:
            if cv and sd & c["src"]: n = max(n, 4 if c["kind"] == "readlane" else 2)
            if c["kind"] == "vmem" and sd & c["src"]: n = max(n, 5)
            if c["kind"] in ("salu", "smem") and sd & c["src"]: n = max(n, 1)
            if c["mn"] in ("s_cbranch_vccz", "s_cbranch_vccnz") and sd & {("s", 106), ("s", 107)}: n = max(n, 1)
    if p["mn"].startswith("v_dot2") and vd:
        if c["mn"] == p["mn"]:
            mn_, ops_ = c["_ops"]
            ab = set(_expand(ops_[1])) | set(_expand(ops_[2]))
            if vd & ab: n = max(n, 3)
        elif vd & (c["src"] | c["dst"]): n = max(n, 3)
    if p["kind"] == "mfma":
        P = p["passes"]
        big = {4: 8, 8: 12}[P]; mid = {4: 6, 8: 10}[P]; war = {4: 3, 8: 7}[P]
        if c["kind"] == "mfma":
            if vd & c["srcab"]: n = max(n, big)
            if vd & c["srcc"]:
                if not (c["srcc"] == p["dst"] and c["passes"] == P): n = max(n, mid)
            if vd & c["dst"] and not vd & c["srcc"]: n = max(n, mid)
        elif cv or c["kind"] in ("ds", "vmem"):
            if vd & (c["src"] | c["dst"]): n = max(n, big)
        if cv and p["srcc"] & c["dst"]: n = max(n, war)
    if p["kind"] == "vmem" and p["wide_store"]:
        if p["wide_store"] & c["dst"]: n = max(n, 2)
    if p["kind"] == "salu" and ("s", 124) in p["dst"] and c.get("ldsdma"): n = max(n, 1)
    return n

class Prog:
    def __init__(self):
        self.ins = []
        self.ntok = 0
    def e(self, text):
        for line in text.strip().split("\n"):
            line = line.strip()
            if line: self.ins.append(Ins(line))
    def tok(self, text):
        self.ntok += 1
        self.ins.append(Ins(text, tok=self.ntok))
        return self.ntok
    def wait(self, *toks):
        toks = [t for t in toks if t is not None]
        flat = []
        for t in toks:
            if isinstance(t, (list, tuple)): flat += list(t)
            else: flat.append(t)
        if flat: self.ins.append(Ins("WAIT", wait=flat))
    def nc(self, text): self.ins.append(Ins(text, kind="nc"))
    def label(self, name): self.ins.append(Ins(name + ":", kind="label"))
    def take(self):
        r = self.ins; self.ins = []; return r
    def put(self, lst): self.ins += lst

def resolve(ins):
    out = []
    vm = []
    lg = []
    smem_out = False
    for i in ins:
        if i.wait is not None:
            nv = None; nl = None
            for t in i.wait:
                if t in vm:
                    k = len(vm) - 1 - vm.index(t)
                    nv = k if nv is None else min(nv, k)
                elif t in lg:
                    k = len(lg) - 1 - lg.index(t)
                    if smem_out: k = 0
                    nl = k if nl is None else min(nl, k)
            s = []
            if nv is not None:
                nv = min(nv, 63); s.append(f"vmcnt({nv})"); vm = vm[len(vm) - nv:] if nv else []
            if nl is not None:
                nl = min(nl, 15); s.append(f"lgkmcnt({nl})"); lg = lg[len(lg) - nl:] if nl else []
                if nl == 0: smem_out = False
            if s: out.append(Ins("s_waitcnt " + " ".join(s)))
            continue
        if i.kind == "label":
            out.append(i); continue
        mn = i.text.split()[0]
        if i.kind == "nc":
            pass
        elif mn.startswith("buffer_") or mn.startswith("global_"):
            vm.append(i.tok)
        elif mn.startswith("ds_"):
            lg.append(i.tok)
        elif mn.startswith("s_load") or mn.startswith("s_memtime") or mn.startswith("s_memrealtime"):
            lg.append(i.tok); smem_out = True
        elif mn == "s_waitcnt":
            m = re.search(r"vmcnt\((\d+)\)", i.text)
            if m:
                n = int(m.group(1)); vm = vm[len(vm) - n:] if n and n <= len(vm) else ([] if n == 0 else vm)
            m = re.search(r"lgkmcnt\((\d+)\)", i.text)
            if m:
                n = int(m.group(1)); lg = lg[len(lg) - n:] if n and n <= len(lg) else ([] if n == 0 else lg)
                if n == 0: smem_out = False
        out.append(i)
    return out

def pad_hazards(ins, window=24):
    out = []; hist = []
    nins = 0
    for i in ins:
        if i.kind == "label" or i.text.startswith("."):
            out.append(i); continue
        c = classify(i.text)
        need = 0; dist = 0
        for p in reversed(hist):
            n = need_states(p, c)
            if n - dist > need: need = n - dist
            dist += p.get("nop", 1)
            if dist >= window: break
        while need > 0:
            k = min(need, 16)
            t = f"s_nop {k-1}"
            out.append(Ins(t)); hist.append(classify(t)); need -= k; nins += 1
        out.append(i); hist.append(c)
        if len(hist) > 64: hist = hist[-40:]
    return out, nins

def _isscalar(i):
    return i.kind != "label" and (i.wait is not None or i.text.startswith("s_"))
def _isv(i): return i.wait is None and i.kind != "label" and (i.text.startswith("buffer_") or i.text.startswith("global_"))
def _cost(i):
    if i.kind == "label": return 0
    if i.wait is not None: return 4
    mn = i.text.split()[0]
    if re.sub(r"_(e32|e64)$", "", mn) in TRANS: return 8
    if mn.startswith("ds_write_b128"): return 12
    return 4
def merge(main, fill, slots, pace=2, start=0):
    out = []; fi = 0
    n = len(main); k = 0; nm = 0; lastv = -99
    ism = lambda i: i.wait is None and i.kind != "label" and i.text.startswith("v_mfma")
    while k < n:
        i = main[k]; out.append(i); k += 1
        if not ism(i): continue
        nm += 1
        seg = []
        while k < n and not ism(main[k]):
            seg.append(main[k]); k += 1
        free = True
        if seg and seg[-1].wait is not None and not any(s.tok in seg[-1].wait for s in seg if s.tok) and not any(s.wait is None and s.text.startswith("s_barrier") for s in seg):
            out.append(seg.pop()); free = False
        elif seg and _isscalar(seg[0]):
            out.append(seg.pop(0)); free = False
        elif nm > start and fi < len(fill) and _isscalar(fill[fi]):
            out.append(fill[fi]); fi += 1; free = False
        tail = []
        while seg and (seg[-1].wait is not None or seg[-1].text.startswith("s_waitcnt") or seg[-1].text.startswith("s_barrier")):
            tail.insert(0, seg.pop())
        used = sum(_cost(s) for s in seg) + sum(_cost(s) for s in tail)
        out += seg
        while nm > start and fi < len(fill) and used + _cost(fill[fi]) <= slots:
            f = fill[fi]
            if _isv(f):
                if nm - lastv < pace: break
                lastv = nm
            if _isscalar(f) and used + 8 > slots: break
            used += _cost(f); out.append(f); fi += 1
        out += tail
    return out, fill[fi:]

def spread(a, b):
    out = []; nb = len(b); bi = 0
    step = len(a) / (nb + 1) if nb else 0
    nxt = step
    for idx, ins in enumerate(a):
        while bi < nb and idx >= max(nxt, b[bi][0]):
            out += b[bi][1]; bi += 1; nxt = max(nxt + step, idx + step * 0.6)
            break
        out.append(ins)
    for c in b[bi:]: out += c[1]
    return out

def weave(a, b, every):
    out = []; bi = 0; cnt = 0
    for ins in a:
        if cnt >= every and bi < len(b) and ins.wait is None and ins.kind != "label" and ins.text.startswith("v_") and not ins.text.startswith("v_cmp"):
            out += b[bi]; bi += 1; cnt = 0
        out.append(ins); cnt += 1
    for c in b[bi:]: out += c
    return out

def render(ins):
    return "\n".join(("" if i.kind == "label" else "    ") + i.text for i in ins)
```

```python
import sys, struct, math
from asmlib import *
KN = "adaLN_cond__ssm_conv_s4__glu_gated_geglu__prompt_kernel"
WS_ST1 = 0x1000; WS_MODP = 0x8000; WS_MODF = 0x20000; WS_ST2 = 0x24000
WS_FL1 = 0x28000; WS_FL2 = 0x40000; WS_XB = 0xC00000; WS_DBG = 0x1000000; WS_X1 = 0x100000; WS_X1S = 0x300000; WS_H = 0x500000; WS_SIZE = 0x1200000
L_TAB = 0; TABW = 17408; TPITCH = 272
L_K = 69632; KCH = 8320; KODD = 4164
L_HI = 86272; HCH = 4608
L_Z = 95488
L_MOD = 111872
L_SP = 131072
L_XT = 155648
L_SS = L_XT
L_XR2 = L_XT
LDS_BYTES = 163840
_POOL = [L_SP, L_SP + 8192, L_SP + 16384, L_MOD, L_MOD + 8192] + [L_TAB + 8192*i for i in range(8)]
def wslot(ks):
    if ks < 26: return _POOL[ks % 13]
    if ks < 29: return L_K + 8192*(ks-26)
    return L_SP + 8192*(ks-29)
S_WS = 4; S_WG = 8; S_WU = 12
P_X, P_ARE, P_AIM, P_BRE, P_BIM, P_CRE, P_CIM, P_LDT, P_DSK, P_BX, P_WG, P_WU, P_WD, P_C, P_WM, P_OUT, P_DBG, P_WS = [16 + 2 * i for i in range(18)]
S_X = 52; S_WM = 56; S_WD = 60; S_OUT = 64
S_TAG = 68; S_E = 69; S_WV = 70; S_D0 = 71; S_LDT = 72; S_DSK = 73
S_T0 = 74; S_T1 = 75; S_T2 = 76; S_T3 = 77; S_SPIN = 78; S_IDX = 79; S_XCD = 80
S_M = 82
S_EX = 94
S_ST = 96
S_G1 = 98; S_G2 = 99; S_G3 = 100
SENT = 0xFFFFFFFF
def f2u(x): return struct.unpack("<I", struct.pack("<f", x))[0]
def hx(x): return "0x%08x" % (x & 0xFFFFFFFF)
def fl(x): return hx(f2u(x))
LOG2E = 1.4426950408889634
GAM = (2 * 0.7978845608028654 * LOG2E * 0.044715) ** (1.0 / 3)
GC = 2 * 0.7978845608028654 * LOG2E / GAM
def vr(b, n): return f"v[{b}:{b+n-1}]" if n > 1 else f"v{b}"
def ar(b, n): return f"a[{b}:{b+n-1}]" if n > 1 else f"a{b}"
def sr(b, n): return f"s[{b}:{b+n-1}]" if n > 1 else f"s{b}"
class G:
    def __init__(self, cfg):
        self.cfg = cfg; self.p = Prog(); self.nlab = 0; self.nstamp = 0; self.ool = []
    def lab(self, base):
        self.nlab += 1; return f"L{self.cfg['uid']}_{base}_{self.nlab}"
    def e(self, t): self.p.e(t)
    def tok(self, t): return self.p.tok(t)
    def wait(self, *t): self.p.wait(*t)
    def label(self, l): self.p.label(l)
    def stamp(self, i):
        if not self.cfg.get("stamps"): return
        e = self.e
        e(f"s_memtime s[{S_ST}:{S_ST+1}]")
        e("s_waitcnt lgkmcnt(0)")
        e(f"v_writelane_b32 v255, s{S_ST}, {i}")
    def stamp_flush(self):
        if not self.cfg.get("stamps"): return
        e = self.e
        e(f"s_memrealtime s[{S_ST}:{S_ST+1}]")
        e("s_waitcnt lgkmcnt(0)")
        e(f"v_writelane_b32 v255, s{S_ST}, 63")
        e(f"s_lshl_b32 s{S_T0}, s2, 10")
        e(f"s_add_u32 s{S_T0}, s{S_T0}, {WS_DBG + self.cfg.get('dbgoff', 0)}")
        e("v_lshlrev_b32 v254, 2, v0")
        e(f"buffer_store_dword v255, v254, s[{S_WS}:{S_WS+3}], s{S_T0} offen")
    def srd(self, s, ptr, size):
        self.e(f"s_mov_b32 s{s}, s{ptr}\ns_mov_b32 s{s+1}, s{ptr+1}\ns_mov_b32 s{s+2}, {hx(size)}\ns_mov_b32 s{s+3}, 0x20000")
    def prologue(self):
        e = self.e
        e("s_cmp_ge_u32 s2, 256")
        e(f"s_cbranch_scc1 {self.cfg['uid']}_end")
        e("s_load_dwordx16 s[16:31], s[0:1], 0")
        e("s_load_dwordx16 s[32:47], s[0:1], 64")
        e("s_load_dwordx4 s[48:51], s[0:1], 128")
        if self.cfg.get("stamps"):
            e("v_mov_b32 v255, 0")
            e(f"s_memrealtime s[{S_ST}:{S_ST+1}]")
        e("v_and_b32 v1, 63, v0")
        e("v_lshrrev_b32 v2, 6, v0")
        e(f"s_and_b32 s{S_XCD}, s2, 7")
        e(f"v_readfirstlane_b32 s{S_WV}, v2")
        e(f"s_lshr_b32 s{S_IDX}, s2, 3")
        e(f"s_lshl_b32 s{S_D0}, s{S_XCD}, 5")
        e(f"s_add_u32 s{S_D0}, s{S_D0}, s{S_IDX}")
        e(f"s_lshl_b32 s{S_D0}, s{S_D0}, 1")
        e("s_waitcnt lgkmcnt(0)")
        if self.cfg.get("stamps"):
            e(f"v_writelane_b32 v255, s{S_ST}, 62")
        self.stamp(0)
        e(f"s_load_dword s{S_E}, s[{P_WS}:{P_WS+1}], 0")
        e(f"s_lshl_b32 s{S_T0}, s{S_D0}, 1")
        e(f"s_load_dword s{S_LDT}, s[{P_LDT}:{P_LDT+1}], s{S_T0}")
        e(f"s_load_dword s{S_DSK}, s[{P_DSK}:{P_DSK+1}], s{S_T0}")
        self.srd(S_WS, P_WS, WS_SIZE)
        self.srd(S_X, P_X, 2097152)
        self.srd(S_WM, P_WM, 3145728)
        self.srd(S_WD, P_WD, 1835008)
        self.srd(S_OUT, P_OUT, 2097152)
    def tag_ready(self):
        e = self.e
        e("s_waitcnt lgkmcnt(0)")
        e(f"s_mul_i32 s{S_TAG}, s{S_E}, 0x9E3779B1")
        e(f"s_add_u32 s{S_TAG}, s{S_TAG}, 0x7F4A7C15")
    def reduce16(self, regs):
        for ctl in ["quad_perm:[1,0,3,2]", "quad_perm:[2,3,0,1]", "row_half_mirror", "row_mirror"]:
            for r in regs:
                self.e(f"v_add_f32_dpp v{r}, v{r}, v{r} {ctl} row_mask:0xf bank_mask:0xf")
    def stat_finish(self, vs, vq, t0, t1):
        e = self.e
        e(f"v_mul_f32 v{vs}, {fl(1/512)}, v{vs}")
        e(f"v_mul_f32 v{t0}, v{vs}, v{vs}")
        e(f"v_mul_f32 v{vq}, {fl(1/512)}, v{vq}")
        e(f"v_sub_f32 v{vq}, v{vq}, v{t0}")
        e(f"v_max_f32 v{vq}, 0, v{vq}")
        e(f"v_cvt_pk_bf16_f32 v{t0}, v{vq}, v{vq}")
        e(f"v_and_b32 v{t0}, 0xffff0000, v{t0}")
        e(f"v_add_f32 v{t0}, {fl(1e-5)}, v{t0}")
        e(f"v_cvt_pk_bf16_f32 v{t0}, v{t0}, v{t0}")
        e(f"v_and_b32 v{t0}, 0xffff0000, v{t0}")
        e(f"v_sqrt_f32 v{t0}, v{t0}")
        e(f"v_cvt_pk_bf16_f32 v{vs}, v{t0}, v{vs}")
    def cmul_list(self, jobs):
        e = self.e; i = 0
        f1 = lambda d, a, b: f"v_pk_mul_f32 {vr(d,2)}, {vr(a,2)}, {vr(b,2)} op_sel:[0,0] op_sel_hi:[0,1]"
        f2 = lambda d, a, b: f"v_pk_fma_f32 {vr(d,2)}, {vr(a,2)}, {vr(b,2)}, {vr(d,2)} op_sel:[1,1,0] op_sel_hi:[1,0,1] neg_lo:[0,1,0]"
        while i < len(jobs):
            j = jobs[i]
            if i + 1 < len(jobs) and j[0] not in jobs[i+1][1:] and jobs[i+1][0] not in j:
                k = jobs[i+1]
                e(f1(*j)); e(f1(*k)); e(f2(*j)); e(f2(*k)); i += 2
            else:
                e(f1(*j)); e(f2(*j)); i += 1
    def kgen_pre(self):
        e = self.e
        e("v_mov_b32 v36, 0\nv_mov_b32 v37, 0\nv_mov_b32 v38, 0\nv_mov_b32 v39, 0")
        e("v_lshrrev_b32 v3, 5, v0")
        e(f"v_mul_u32_u24 v3, {HCH}, v3")
        e("v_and_b32 v4, 31, v0")
        e("v_lshl_add_u32 v3, v4, 4, v3")
        e(f"v_add_u32 v3, {L_HI}, v3")
        e("v_bfe_u32 v4, v0, 2, 2")
        e(f"v_mul_u32_u24 v4, 4160, v4")
        e("v_and_b32 v5, 3, v0")
        e("v_lshl_add_u32 v4, v5, 4, v4")
        e(f"v_add_u32 v4, {L_K + 4096}, v4")
        e("v_cmp_gt_u32 vcc, 64, v0")
        e("v_cndmask_b32 v3, v4, v3, vcc")
        e("v_cmp_gt_u32 vcc, 80, v0")
        e(f"s_and_saveexec_b64 s[{S_EX}:{S_EX+1}], vcc")
        zl = self.lab("z")
        e(f"s_cbranch_execz {zl}")
        e("ds_write_b128 v3, v[36:39]")
        self.label(zl)
        e(f"s_mov_b64 exec, s[{S_EX}:{S_EX+1}]")
        e(f"s_lshr_b32 s{S_T0}, s{S_WV}, 1")
        e(f"s_lshl_b32 s{S_T0}, s{S_T0}, 4")
        e(f"s_lshr_b32 s{S_T1}, s{S_LDT}, s{S_T0}")
        e(f"s_lshl_b32 s{S_T1}, s{S_T1}, 16")
        e(f"v_mov_b32 v3, {fl(LOG2E)}")
        e(f"v_mul_f32 v3, s{S_T1}, v3")
        e("v_exp_f32 v3, v3")
        e("v_cvt_pk_bf16_f32 v3, v3, v3")
        e("v_and_b32 v35, 0xffff0000, v3")
    def kgen_tab(self, chunks=()):
        e = self.e
        keep = self.p.take()
        for i in range(6): e(f"v_lshlrev_b32 v{26+i}, 16, v{18+i}")
        e("v_mul_f32 v26, v26, v35\nv_mul_f32 v27, v27, v35\nv_mul_f32 v28, v28, v35\nv_mul_f32 v29, v29, v35")
        e(f"v_mul_f32 v26, {fl(LOG2E)}, v26")
        e("v_mul_f32 v27, 0.15915494, v27")
        S = lambda j: 40 + 2 * j
        Gt = lambda T: 74 + 2 * (T - 1)
        Pn = lambda n: 88 + 2 * n
        S32, S64, S128 = 138, 140, 142
        def direct(dst, t, a, b, c):
            if t == 1:
                e(f"v_exp_f32 v{a}, v26\nv_fract_f32 v{b}, v27")
            else:
                e(f"v_mul_f32 v{a}, {fl(float(t))}, v26\nv_mul_f32 v{b}, {fl(float(t))}, v27")
                e(f"v_exp_f32 v{a}, v{a}\nv_fract_f32 v{b}, v{b}")
            e(f"v_cos_f32 v{c}, v{b}\nv_sin_f32 v{b}, v{b}\ns_nop 0")
            e(f"v_mul_f32 v{dst}, v{a}, v{c}\nv_mul_f32 v{dst+1}, v{a}, v{b}")
        e(f"s_mul_i32 s{S_T0}, s{S_WV}, {TABW}")
        e(f"v_lshl_add_u32 v34, v1, 2, s{S_T0}")
        st = {"n": 0}
        def pair(ent, jobs, srcs, neg=False):
            self.cmul_list(jobs)
            pk = 128 + 2*(st["n"] & 3); st["n"] += 1
            grp = ent >> 2; ad = 136 + (grp & 1)
            if (ent & 3) == 0 or st.get(ad) != grp:
                e(f"v_add_u32 v{ad}, {L_TAB + grp*4*TPITCH}, v34"); st[ad] = grp
            for i in range(2):
                if srcs[i] is None: e(f"v_mov_b32 v{pk+i}, 0x3f80")
                else: e(f"v_cvt_pk_bf16_f32 v{pk+i}, v{srcs[i]}, {'-' if neg else ''}v{srcs[i]+1}")
            o = 68*(ent & 3)
            e(f"ds_write2_b32 v{ad}, v{pk}, v{pk+1} offset0:{o} offset1:{o+68}")
        direct(S(1), 1, 120, 121, 122)
        pair(0, [], [None, S(1)])
        direct(S(16), 16, 123, 124, 125)
        pair(2, [(S(2), S(1), S(1)), (Pn(0), 30, 28), (S(3), S(2), S(1))], [S(2), S(3)])
        direct(Gt(1), 256, 120, 121, 122)
        pair(48, [(Pn(1), Pn(0), S(16)), (S32, S(16), S(16))], [Pn(0), Pn(1)], True)
        pair(4, [(S(4), S(2), S(2)), (S(5), S(3), S(2))], [S(4), S(5)])
        pair(6, [(S(6), S(4), S(2)), (S(7), S(4), S(3))], [S(6), S(7)])
        pair(50, [(Pn(2), Pn(0), S32), (Pn(3), Pn(1), S32), (S64, S32, S32)], [Pn(2), Pn(3)], True)
        pair(8, [(S(8), S(4), S(4)), (S(9), S(5), S(4))], [S(8), S(9)])
        pair(10, [(S(10), S(8), S(2)), (S(11), S(8), S(3))], [S(10), S(11)])
        pair(52, [(Pn(4), Pn(0), S64), (Pn(5), Pn(1), S64)], [Pn(4), Pn(5)], True)
        pair(54, [(Pn(6), Pn(2), S64), (Pn(7), Pn(3), S64), (S128, S64, S64)], [Pn(6), Pn(7)], True)
        pair(12, [(S(12), S(8), S(4)), (S(13), S(8), S(5))], [S(12), S(13)])
        pair(14, [(S(14), S(8), S(6)), (S(15), S(8), S(7))], [S(14), S(15)])
        aux = [[(Gt(2), Gt(1), Gt(1))], [(Gt(3), Gt(2), Gt(1))], [(Gt(4), Gt(2), Gt(2))], []]
        for i in range(4):
            pair(56 + 2*i, [(Pn(8+2*i), Pn(2*i), S128), (Pn(9+2*i), Pn(2*i+1), S128)] + aux[i], [Pn(8+2*i), Pn(9+2*i)], True)
        ents = {0: [(1, 0), (1, 2), (1, 4), (1, 6), (1, 8), (4, 0), (4, 8), (4, 16)],
                1: [(1, 8), (1, 10), (1, 12), (1, 14), (1, 16), (5, 0), (5, 8), (5, 16)],
                2: [(2, 0), (2, 4), (2, 8), (2, 12), (2, 16), (6, 0), (6, 8), (6, 16)],
                3: [(3, 0), (3, 4), (3, 8), (3, 12), (3, 16), (7, 0), (7, 8), (7, 16)]}
        extra = {(0, 0): (Gt(5), Gt(4), Gt(1)), (2, 0): (Gt(6), Gt(4), Gt(2)), (3, 0): (Gt(7), Gt(4), Gt(3))}
        tb = 0
        for q in range(4):
            for h in range(4):
                two = ents[q][2*h:2*h+2]; base = 88 + 4*(tb & 3); tb += 1
                jobs = []; srcs = []
                for i, (T, j) in enumerate(two):
                    if j == 0: srcs.append(Gt(T))
                    else: jobs.append((base + 2*i, Gt(T), S(j))); srcs.append(base + 2*i)
                if (q, h) in extra: jobs.append(extra[(q, h)])
                pair(16 + 16*(h >> 1) + 4*q + 2*(h & 1), jobs, srcs)
        body = self.p.take()
        self.p.put(keep + spread(body, [(0, c) for c in chunks]))

    def kgen_post(self, post_b2=None):
        e = self.e
        e(f"s_lshr_b32 s{S_T2}, s{S_WV}, 1\ns_mul_i32 s{S_T0}, s{S_T2}, {2*TABW}")
        e(f"v_and_b32 v6, 15, v1\nv_mul_u32_u24 v3, {TPITCH}, v6")
        e("v_lshrrev_b32 v7, 4, v1\nv_lshl_add_u32 v3, v7, 4, v3")
        e(f"v_add_u32 v3, s{S_T0}, v3")
        e(f"s_and_b32 s{S_T1}, s{S_WV}, 1\ns_mul_i32 s{S_T1}, s{S_T1}, {16*TPITCH}\nv_add_u32 v4, s{S_T1}, v3")
        e(f"s_mul_i32 s{S_T2}, s{S_T2}, {KCH}\ns_add_u32 s{S_T2}, s{S_T2}, {L_K}")
        e(f"v_lshlrev_b32 v6, 5, v6\nv_sub_u32 v6, s{S_T2}, v6")
        e("v_lshlrev_b32 v9, 9, v7\nv_sub_u32 v9, v6, v9")
        e("s_waitcnt lgkmcnt(0)\ns_barrier")
        self.stamp(21)
        F = 40; toks = {}
        for ks in range(8):
            o = L_TAB + (ks >> 2)*TABW + (ks & 3)*64; r = F + 12*ks
            self.tok(f"ds_read_b128 {vr(r+8,4)}, v3 offset:{o + 48*TPITCH}")
            toks[(ks, 0)] = self.tok(f"ds_read_b128 {vr(r,4)}, v4 offset:{o}")
            toks[(ks, 1)] = self.tok(f"ds_read_b128 {vr(r+4,4)}, v3 offset:{o + 32*TPITCH}")
        A0 = 136; A2 = 140
        for ks in range(8):
            r = F + 12*ks
            for b, acc in ((0, A0), (1, A2)):
                self.wait(toks[(ks, b)])
                e(f"v_mfma_f32_16x16x32_bf16 {vr(acc,4)}, {vr(r+4*b,4)}, {vr(r+8,4)}, {vr(acc,4) if ks else '0'}")
        e("s_barrier")
        if post_b2: post_b2()
        h1 = self.lab("kh1"); jn = self.lab("kj")
        e(f"s_bitcmp1_b32 s{S_WV}, 0\ns_cbranch_scc1 {h1}")
        def cv(d, lst):
            for i, (a, b) in enumerate(lst): e(f"v_cvt_pk_bf16_f32 v{d+i}, v{a}, v{b}")
        O = KODD - 4
        e("v_lshlrev_b32 v8, 3, v7\nv_sub_u32 v8, v6, v8")
        f0, f1, f2 = A2+1, A2+2, A2+3
        cv(52, [(f2, f2), (f2, f2), (f1, f1), (f1, f1), (f1, f1), (f1, f0), (f0, f0), (f0, f0)])
        e(f"ds_write_b128 v9, v[52:55] offset:{2*(2032-1024)}")
        cv(60, [(f2, f2), (f2, f2), (f2, f1), (f1, f1), (f1, f1), (f1, f1), (f0, f0), (f0, f0)])
        e(f"ds_write_b128 v9, v[56:59] offset:{2*(2032-1024)+16}")
        cv(48, [(A0+3, A0+2), (A0+1, A0), (A0+2, A0+1)])
        e(f"ds_write_b128 v9, v[60:63] offset:{2*(2032-1024) + O}")
        e(f"ds_write_b128 v9, v[64:67] offset:{2*(2032-1024) + O + 16}")
        e(f"ds_write_b64 v8, v[48:49] offset:{2*2044}")
        e(f"ds_write_b16 v8, v48 offset:{2*2044 + O + 2}")
        e(f"ds_write_b32 v8, v50 offset:{2*2044 + O + 4}")
        e(f"ds_write_b16_d16_hi v8, v49 offset:{2*2044 + O + 8}")
        e(f"s_branch {jn}")
        self.label(h1)
        e("v_lshlrev_b32 v8, 4, v7\nv_sub_u32 v8, v6, v8")
        E_ = lambda j: A0 + j if j < 4 else A2
        C = lambda lst: [(E_(a), E_(b)) for a, b in lst]
        cv(52, C([(4, 4), (3, 3), (3, 2), (2, 2), (2, 2), (1, 1), (1, 0), (0, 0)]))
        e("s_mov_b32 exec_lo, 0")
        e(f"ds_write_b128 v9, v[52:55] offset:{2*2032}\nds_write_b128 v9, v[56:59] offset:{2*2032+16}")
        e("s_mov_b32 exec_lo, -1")
        cv(60, C([(4, 4), (4, 3), (3, 3), (2, 2), (2, 2), (2, 1), (1, 1), (0, 0)]))
        e("s_mov_b32 exec_lo, 0")
        e(f"ds_write_b128 v9, v[60:63] offset:{2*2032 + O}\nds_write_b128 v9, v[64:67] offset:{2*2032 + O + 16}")
        e("s_mov_b32 exec_lo, -1")
        cv(40, C([(4, 3), (2, 2), (2, 1), (0, 0), (4, 4), (3, 2), (2, 2), (1, 0)]))
        e("s_mov_b32 exec_hi, 0")
        e(f"ds_write_b128 v8, v[40:43] offset:{2*(2040-256)}\nds_write_b128 v8, v[44:47] offset:{2*(2040-256) + O}")
        e(f"ds_write_b16 v8, v43 offset:{2*(2040-256) + O + 16}")
        e("s_mov_b32 exec_hi, -1")
        self.label(jn)

    def spin_check(self, retry_label, out_label=None):
        e = self.e
        e(f"s_sub_u32 s{S_SPIN}, s{S_SPIN}, 1")
        e(f"s_cmp_lg_u32 s{S_SPIN}, 0")
        e(f"s_cbranch_scc1 {retry_label}")
    def hbuild(self, after_first=None, mid=None):
        e = self.e
        e("v_lshlrev_b32 v3, 6, v0")
        e("v_and_b32 v4, 3, v1")
        e(f"v_mul_u32_u24 v4, {3072*8}, v4")
        e("v_lshrrev_b32 v5, 3, v1")
        e("v_min_u32 v5, 5, v5")
        e("v_lshl_add_u32 v4, v5, 12, v4")
        e("v_bfe_u32 v6, v1, 2, 1")
        e("v_lshl_add_u32 v4, v6, 3, v4")
        e(f"s_lshl_b32 s{S_T0}, s{S_D0}, 3")
        e(f"s_add_u32 s{S_T0}, s{S_T0}, {WS_MODP}")
        e(f"s_mov_b32 s{S_T1}, {WS_ST1}")
        e(f"s_lshl_b32 s{S_T2}, s{S_D0}, 13\ns_add_u32 s{S_T2}, s{S_T2}, {hx(WS_XB)}")
        e(f"s_mov_b32 s{S_SPIN}, {self.cfg['spin']}")
        rt = self.lab("h0"); ok = self.lab("h0ok"); ck = self.lab("h0ck")
        def pl():
            self.tok(f"buffer_load_dwordx2 v[8:9], v4, s[{S_WS}:{S_WS+3}], s{S_T0} offen sc1")
            for i in range(4):
                t_ = self.tok(f"buffer_load_dwordx4 v[{40+4*i}:{43+4*i}], v3, s[{S_WS}:{S_WS+3}], s{S_T1} offen offset:{16*i} sc1")
            for i in range(4):
                t_ = self.tok(f"buffer_load_dwordx4 v[{20+4*i}:{23+4*i}], v3, s[{S_WS}:{S_WS+3}], s{S_T2} offen offset:{16*i} sc1")
            return t_
        if after_first:
            t_ = pl(); after_first(); self.wait(t_)
            e(f"s_branch {ck}")
            keep = self.p.take()
            self.label(rt); pl(); e("s_waitcnt vmcnt(0)"); e(f"s_branch {ck}")
            self.ool += self.p.take(); self.p.put(keep[:-1])
            self.label(ck)
        else:
            self.label(rt); pl(); e("s_waitcnt vmcnt(0)")
        e(f"v_mov_b32 v10, s{S_TAG}")
        for i in range(8):
            e(f"v_min3_u32 v11, v{41+2*i}, v{21+2*i}, {'v11' if i else 'v9'}")
            e(f"v_max3_u32 v12, v{41+2*i}, v{21+2*i}, {'v12' if i else 'v9'}")
        e("v_xor_b32 v11, v11, v10\nv_xor_b32 v12, v12, v10\nv_or_b32 v7, v11, v12")
        e("v_cmp_ne_u32 vcc, 0, v7")
        e(f"s_cbranch_vccz {ok}")
        self.spin_check(rt)
        self.label(ok)
        self.stamp(4)
        keep_ = self.p.take()
        e("v_add_f32_dpp v8, v8, v8 quad_perm:[1,0,3,2] row_mask:0xf bank_mask:0xf")
        for i in range(4): e(f"v_lshlrev_b32 v{64+i}, 16, v{40+2*i}")
        e("v_add_f32_dpp v8, v8, v8 quad_perm:[2,3,0,1] row_mask:0xf bank_mask:0xf")
        for i in range(4, 8): e(f"v_lshlrev_b32 v{64+i}, 16, v{40+2*i}")
        e("v_cvt_pk_bf16_f32 v8, v8, v8\nv_rcp_f32 v64, v64\nv_and_b32 v8, 0xffff0000, v8\nv_rcp_f32 v65, v65")
        e("v_add_f32 v9, 1.0, v8\nv_rcp_f32 v66, v66")
        e("v_cvt_pk_bf16_f32 v9, v9, v9\nv_rcp_f32 v67, v67\nv_and_b32 v9, 0xffff0000, v9")
        X = 72; Hh = 88; Z = 104
        for i in range(8):
            if i < 6:
                src = 9 if i in (1, 4) else 8
                e(f"v_readlane_b32 s{S_M+2*i}, v{src}, {8*i}")
                e(f"v_readlane_b32 s{S_M+2*i+1}, v{src}, {8*i+4}")
            if i >= 4: e(f"v_rcp_f32 v{64+i}, v{64+i}")
            e(f"v_and_b32 v{56+i}, 0xffff0000, v{40+2*i}")
            k_ = i >> 1; src_ = 20 + 4*k_ + 2*(i & 1); dst_ = X + 8*(k_ & 1) + 4*(k_ >> 1) + 2*(i & 1)
            e(f"v_lshlrev_b32 v{dst_}, 16, v{src_}")
            e(f"v_and_b32 v{dst_+1}, 0xffff0000, v{src_}")
        sa, sA, ga, sb, sB, gb = [S_M + 2*i for i in range(6)]
        e(f"v_mov_b32 v16, s{ga}\nv_mov_b32 v17, s{ga+1}")
        for k in range(8):
            e(f"v_pk_add_f32 {vr(Hh+2*k,2)}, {vr(X+2*k,2)}, {vr(56+2*(k&3),2)} neg_lo:[0,1] neg_hi:[0,1]")
        e(f"v_mul_f32 v10, s{sA}, v16\nv_mul_f32 v11, s{sA+1}, v17")
        e(f"v_mul_f32 v12, s{sa}, v16\nv_mul_f32 v13, s{sa+1}, v17")
        e(f"s_lshl_b32 s{S_T0}, s{S_DSK}, 16\ns_and_b32 s{S_T1}, s{S_DSK}, 0xffff0000")
        e(f"v_mov_b32 v14, s{S_T0}\nv_mov_b32 v15, s{S_T1}")
        for k in range(8):
            e(f"v_pk_mul_f32 {vr(Hh+2*k,2)}, {vr(Hh+2*k,2)}, {vr(64+2*(k&3),2)}")
        for k in range(8):
            c = k >> 2
            e(f"v_pk_fma_f32 {vr(Hh+2*k,2)}, {vr(Hh+2*k,2)}, v[10:11], v[12:13] op_sel:[0,{c},{c}] op_sel_hi:[1,{c},{c}]")
        e(f"v_lshlrev_b32 v3, 4, v0\nv_add_u32 v3, {L_HI + 512}, v3")
        e(f"v_lshlrev_b32 v4, 5, v0\nv_add_u32 v4, {L_Z}, v4")
        for ch in range(2):
            for j in range(4):
                e(f"v_cvt_pk_bf16_f32 v{120+4*ch+j}, v{Hh+8*ch+2*j}, v{Hh+8*ch+2*j+1}")
            e(f"ds_write_b128 v3, v[{120+4*ch}:{123+4*ch}] offset:{HCH*ch}")
        for k in range(8):
            c = k >> 2
            e(f"v_pk_fma_f32 {vr(Z+2*k,2)}, {vr(Hh+2*k,2)}, v[14:15], {vr(X+2*k,2)} op_sel:[0,{c},0] op_sel_hi:[1,{c},1]")
            if k & 1: e(f"ds_write_b128 v4, {vr(Z+2*k-2,4)} offset:{8192*c + 16*((k>>1)&1)}")
        body_ = self.p.take()
        self.p.put(keep_ + spread(body_, [(0, c_) for c_ in (mid() if mid else [])]))
        nm = self.lab("nomodf")
        e(f"s_cmp_lg_u32 s{S_WV}, 0")
        e(f"s_cbranch_scc1 {nm}")
        e(f"s_lshr_b32 s{S_T0}, s{sB}, 16\ns_or_b32 s{S_T0}, s{S_T0}, s{sb}")
        e(f"s_lshr_b32 s{S_T1}, s{sB+1}, 16\ns_or_b32 s{S_T1}, s{S_T1}, s{sb+1}")
        e(f"v_mov_b32 v20, s{S_T0}\nv_mov_b32 v21, s{S_TAG}\nv_mov_b32 v22, s{gb}\nv_mov_b32 v23, s{S_TAG}")
        e(f"v_writelane_b32 v20, s{S_T1}, 1\nv_writelane_b32 v22, s{gb+1}, 1")
        e("v_lshlrev_b32 v19, 4, v1")
        e(f"s_lshl_b32 s{S_T0}, s{S_D0}, 4\ns_add_u32 s{S_T0}, s{S_T0}, {WS_MODF}")
        e("s_mov_b64 exec, 3")
        self.p.nc(f"buffer_store_dwordx4 v[20:23], v19, s[{S_WS}:{S_WS+3}], s{S_T0} offen sc1")
        e("s_mov_b64 exec, -1")
        self.label(nm)
    def conv(self, fillers=None, pre_start=None, pre_bar=None, post_bar=None):
        e = self.e
        ACC = 4
        FA = [40, 104]; FB = [72, 136]
        e(f"s_lshr_b32 s{S_T2}, s{S_WV}, 1")
        e(f"s_and_b32 s{S_T3}, s{S_WV}, 1")
        e("v_and_b32 v36, 15, v1\nv_lshrrev_b32 v37, 4, v1")
        e("v_lshlrev_b32 v38, 3, v37")
        e("v_sub_u32 v38, v38, v36")
        e("v_add_u32 v38, 2031, v38")
        e("v_lshrrev_b32 v38, 1, v38")
        e("v_and_b32 v39, 1, v1\nv_xor_b32 v39, 1, v39")
        e(f"v_mul_u32_u24 v39, {KODD}, v39")
        e("v_lshl_add_u32 v38, v38, 2, v39")
        e(f"s_mul_i32 s{S_T0}, s{S_T2}, {KCH}")
        e(f"s_lshl_b32 s{S_T1}, s{S_T3}, 8")
        e(f"s_sub_u32 s{S_T0}, s{S_T0}, s{S_T1}")
        e(f"s_add_u32 s{S_T0}, s{S_T0}, {L_K - 192 - 512}")
        for j in range(4):
            e(f"v_add_u32 v{168+j}, s{S_T0}, v38")
            if j < 3: e(f"s_sub_u32 s{S_T0}, s{S_T0}, 1024")
        e("v_lshlrev_b32 v38, 5, v36")
        e("v_lshl_add_u32 v38, v37, 4, v38")
        e(f"s_mul_i32 s{S_T0}, s{S_T2}, {HCH}")
        e(f"s_sub_u32 s{S_T0}, s{S_T0}, s{S_T1}")
        e(f"s_add_u32 s{S_T0}, s{S_T0}, {L_HI + 480 - 192}")
        e(f"v_add_u32 v172, s{S_T0}, v38")
        e("v_lshl_add_u32 v38, v36, 5, v38")
        e(f"s_lshl_b32 s{S_T0}, s{S_T2}, 13")
        e(f"s_lshl_b32 s{S_T1}, s{S_T3}, 12")
        e(f"s_add_u32 s{S_T0}, s{S_T0}, s{S_T1}")
        e(f"s_add_u32 s{S_T0}, s{S_T0}, {L_Z}")
        e(f"v_add_u32 v173, s{S_T0}, v38")
        if pre_start: pre_start()
        e("s_waitcnt lgkmcnt(0)")
        e("s_barrier")
        self.stamp(5)
        p1 = self.lab("cp1"); jn = self.lab("cj")
        e(f"s_cmp_lg_u32 s{S_T3}, 0")
        e(f"s_cbranch_scc1 {p1}")
        for par in range(2):
            for c in range(4):
                r = ACC + 4 * (4*par + c)
                e(f"ds_read_b128 v[{r}:{r+3}], v173 offset:{1024*c}")
            for r in range(16): e(f"v_mov_b32 v{ACC + 16*(1-par) + r}, 0")
            if par == 0:
                e(f"s_branch {jn}"); self.label(p1)
        self.label(jn)
        def loads(it):
            s = it & 1; L = []; o = 16 * (3 - it)
            tk = {}
            for k in range(8):
                tk[("B", k)] = self.tok(f"ds_read_b128 {vr(FB[s]+4*k,4)}, v172 offset:{512*k + 64*(3-it)}")
                b = 168 + (k >> 1); oo = o + (0 if k & 1 else 128)
                self.tok(f"ds_read2_b32 {vr(FA[s]+4*k,2)}, v{b} offset0:{oo} offset1:{oo+1}")
                tk[("A", k)] = self.tok(f"ds_read2_b32 {vr(FA[s]+4*k+2,2)}, v{b} offset0:{oo+2} offset1:{oo+3}")
            return tk
        pre = self.p.take()
        tks = [None] * 4
        tks[0] = loads(0)
        main = self.p.take()
        carry = []
        for it in range(4):
            nxt = []
            if it < 3:
                tks[it+1] = loads(it+1); nxt = self.p.take()
            s = it & 1
            order = sorted([(u, v) for u in range(8) for v in range(8 - u)], key=lambda t: (max(t), t[0]))
            seen = set(); k = 0
            for (u, v) in order:
                need = [t for t in (("A", u), ("B", v)) if t not in seen]
                if need:
                    self.wait(*[tks[it][t] for t in need]); seen |= set(need)
                cb = u + v
                e(f"v_mfma_f32_16x16x32_bf16 {vr(ACC+4*cb,4)}, {vr(FA[s]+4*u,4)}, {vr(FB[s]+4*v,4)}, {vr(ACC+4*cb,4)}")
                if nxt and (it > 0 or k >= 12):
                    self.p.put([nxt.pop(0)])
                k += 1
            self.p.put(nxt)
            seg = self.p.take()
            if it == 0: seg = main + seg; main = []
            carry = carry + (fillers.get(it, []) if fillers else [])
            seg, carry = merge(seg, carry, 8, pace=self.cfg["cpace"])
            if it == 3: seg += carry; carry = []
            main += seg
        self.p.put(pre + main)
        self.stamp(6)
        e(f"s_lshl_b32 s{S_T0}, s{S_WV}, 12")
        e(f"s_add_u32 s{S_T0}, s{S_T0}, {L_Z}")
        e(f"v_lshl_add_u32 v36, v1, 4, s{S_T0}")
        e(f"s_xor_b32 s{S_T1}, s{S_WV}, 1\ns_lshl_b32 s{S_T1}, s{S_T1}, 12\ns_add_u32 s{S_T1}, s{S_T1}, {L_Z}")
        e(f"v_lshl_add_u32 v37, v1, 4, s{S_T1}")
        if pre_bar: pre_bar()
        p1 = self.lab("ep1"); jn = self.lab("ej")
        e(f"s_cmp_lg_u32 s{S_T3}, 0")
        e(f"s_cbranch_scc1 {p1}")
        for par in range(2):
            e("s_nop 7")
            for c in range(4):
                r = ACC + 4 * (4*(1-par) + c)
                e(f"ds_write_b128 v36, {vr(r,4)} offset:{1024*c}")
            e("s_waitcnt lgkmcnt(0)")
            e("s_barrier")
            for c in range(4): e(f"ds_read_b128 {vr(40+4*c,4)}, v37 offset:{1024*c}")
            for c in range(4):
                e(f"s_waitcnt lgkmcnt({3-c})")
                r = ACC + 4 * (4*par + c)
                e(f"v_pk_add_f32 {vr(40+4*c,2)}, {vr(40+4*c,2)}, {vr(r,2)}")
                e(f"v_pk_add_f32 {vr(42+4*c,2)}, {vr(42+4*c,2)}, {vr(r+2,2)}")
            if par == 0:
                e(f"s_branch {jn}"); self.label(p1)
        self.label(jn)
        sB = S_M + 8
        e(f"s_cmp_eq_u32 s{S_T2}, 0")
        e(f"s_cselect_b32 s{S_T0}, s{sB}, s{sB+1}")
        e(f"v_mov_b32 v38, s{S_T0}\nv_mov_b32 v39, s{S_T0}")
        e("v_and_b32 v56, 15, v1\nv_lshrrev_b32 v57, 4, v1")
        e("v_lshrrev_b32 v58, 1, v56")
        e("v_and_b32 v59, 1, v57")
        e("v_lshl_add_u32 v58, v59, 3, v58")
        e("v_lshlrev_b32 v58, 15, v58")
        e("v_and_b32 v56, 1, v56")
        e("v_lshl_add_u32 v58, v56, 5, v58")
        e("v_lshrrev_b32 v57, 1, v57")
        e("v_lshl_add_u32 v58, v57, 4, v58")
        e(f"s_add_u32 s{S_T0}, s{S_D0}, s{S_T2}")
        e(f"s_lshl_b32 s{S_T0}, s{S_T0}, 6")
        e(f"s_lshl_b32 s{S_T1}, s{S_T3}, 20")
        e(f"s_add_u32 s{S_T0}, s{S_T0}, s{S_T1}")
        e(f"s_add_u32 s{S_T1}, s{S_T0}, {hx(WS_X1S)}")
        e(f"s_add_u32 s{S_T0}, s{S_T0}, {hx(WS_X1)}")
        if post_bar: post_bar()
        for pr in range(2):
            a = 40 + 8*pr
            d = 60 + 8*pr
            for h in range(4): e(f"v_pk_mul_f32 {vr(76+2*h,2)}, {vr(a+2*h,2)}, v[38:39]")
            for h in range(4): e(f"v_cvt_pk_bf16_f32 v{d+h}, v{76+2*h}, v{77+2*h}")
            for h in range(4): e(f"v_cvt_pk_bf16_f32 v{d+4+h}, v{a+2*h}, v{a+2*h+1}")
            e(f"v_permlane16_swap_b32 v{d}, v{d+2}\nv_permlane16_swap_b32 v{d+1}, v{d+3}")
            e(f"buffer_store_dwordx4 {vr(d,4)}, v58, s[{S_WS}:{S_WS+3}], s{S_T1} offen sc1")
            e(f"v_permlane16_swap_b32 v{d+4}, v{d+6}\nv_permlane16_swap_b32 v{d+5}, v{d+7}")
            e(f"buffer_store_dwordx4 {vr(d+4,4)}, v58, s[{S_WS}:{S_WS+3}], s{S_T0} offen sc1")
            if pr == 0:
                e(f"s_add_u32 s{S_T0}, s{S_T0}, {hx(16*32768)}\ns_add_u32 s{S_T1}, s{S_T1}, {hx(16*32768)}")
        self.stamp(7)
    def g1_map(self):
        e = self.e
        e(f"s_lshr_b32 s{S_G1}, s{S_XCD}, 1\ns_lshl_b32 s{S_G1}, s{S_G1}, 2")
        e(f"s_and_b32 s{S_T0}, s{S_IDX}, 3\ns_add_u32 s{S_G1}, s{S_G1}, s{S_T0}")
        e(f"s_and_b32 s{S_G2}, s{S_XCD}, 1\ns_mul_i32 s{S_G2}, s{S_G2}, 7")
        e(f"s_lshr_b32 s{S_T0}, s{S_IDX}, 2\ns_add_u32 s{S_G2}, s{S_G2}, s{S_T0}")
        e(f"s_lshl_b32 s{S_G2}, s{S_G2}, 7")
        e(f"s_lshl_b32 s{S_T0}, s{S_WV}, 5\ns_add_u32 s{S_G2}, s{S_G2}, s{S_T0}")
    def g1_epilogue(self, g, acc, stat):
        e = self.e
        save = self.p.take()
        T = 148
        rG, mG, rU, mU = stat, stat+1, stat+2, stat+3
        for t in range(2):
            for half in range(2):
                regs = [4*half + j for j in range(4)]
                gq = [T + j for j in range(4)]; uq = [T + 4 + j for j in range(4)]; q = [T + 8 + j for j in range(4)]
                if half: gq = [x + 12 for x in gq]; uq = [x + 12 for x in uq]; q = [x + 12 for x in q]
                for j, r in enumerate(regs): e(f"v_fma_f32 v{gq[j]}, v{mG}, v{self.U1+16*t+r}, v{self.U2+16*t+r}")
                for j, r in enumerate(regs): e(f"v_fmac_f32 v{gq[j]}, v{rG}, v{acc+16*t+r}")
                for j in range(4): e(f"v_fma_f32 v{q[j]}, -v{gq[j]}, v{gq[j]}, s{S_T3}")
                for j in range(4): e(f"v_mul_f32 v{q[j]}, v{gq[j]}, v{q[j]}")
                for j, r in enumerate(regs):
                    e(f"v_exp_f32 v{q[j]}, v{q[j]}")
                    e(f"v_fma_f32 v{uq[j]}, v{mU}, v{self.U1+16*t+8+r}, v{self.U2+16*t+8+r}")
                for j, r in enumerate(regs):
                    e(f"v_add_f32 v{q[j]}, 1.0, v{q[j]}")
                    e(f"v_fmac_f32 v{uq[j]}, v{rU}, v{acc+16*t+8+r}")
                for j in range(4):
                    e(f"v_rcp_f32 v{q[j]}, v{q[j]}")
                    e(f"v_mul_f32 v{uq[j]}, v{gq[j]}, v{uq[j]}")
                for j in range(4): e(f"v_mul_f32 v{uq[j]}, v{uq[j]}, v{q[j]}")
                e(f"v_cvt_pk_bf16_f32 v{172+2*half}, v{uq[0]}, v{uq[1]}")
                e(f"v_cvt_pk_bf16_f32 v{173+2*half}, v{uq[2]}, v{uq[3]}")
            e(f"s_add_u32 s101, s{S_T2}, {g*112*1024 + t*1024}")
            tk_ = self.tok(f"buffer_store_dwordx4 v[172:175], v147, s[{S_WS}:{S_WS+3}], s101 offen sc1")
        if hasattr(self, "htok"): self.htok[g] = tk_
        out = self.p.take(); self.p.put(save)
        return out
    def g2_map(self):
        e = self.e
        e(f"s_lshl_b32 s{S_G1}, s{S_XCD}, 1\ns_bfe_u32 s{S_T0}, s{S_IDX}, 0x10004\ns_add_u32 s{S_G1}, s{S_G1}, s{S_T0}")
        e(f"s_lshl_b32 s{S_G1}, s{S_G1}, 2")
        e(f"s_bfe_u32 s{S_T0}, s{S_IDX}, 0x10003")
        e(f"s_sub_u32 s{S_G2}, s{S_G1}, s{S_T0}\ns_add_u32 s{S_G2}, s{S_G2}, 3")
        e(f"s_add_u32 s{S_G1}, s{S_G1}, s{S_T0}")
        e(f"s_and_b32 s{S_G3}, s{S_IDX}, 7")
    XT = lambda self, g: (3 - g) * 32768
    S_HB = 81
    def x1s_issue(self, g):
        t = None
        for j in range(8):
            if j % 4 == 0:
                self.e(f"s_add_u32 m0, s{S_T1}, {self.XT(g) + j*1024}")
                self.e(f"s_add_u32 s13, s{S_T0}, {g*32768 + j*1024}")
            t = self.tok(f"buffer_load_dwordx4 v147, s[{S_WS}:{S_WS+3}], s13 offen offset:{(j%4)*1024} sc1 lds")
        return t
    def x1s_check(self, g, T, explicit=False):
        e = self.e
        for rnd in range(2):
            tk = [self.tok(f"ds_read_b128 {vr(T+4*j,4)}, v146 offset:{self.XT(g) % 65536 + (4*rnd+j)*1024}".replace("v146", "v146" if self.XT(g) < 65536 else "v143")) for j in range(4)]
            for j in range(4):
                if explicit: e(f"s_waitcnt lgkmcnt({3-j})")
                else: self.wait(tk[j])
                first = (rnd == 0 and j == 0)
                e(f"v_max3_u32 v{T+16}, v{T+4*j}, v{T+4*j+1}, {'0' if first else 'v%d' % (T+16)}")
                e(f"v_max3_u32 v{T+16}, v{T+4*j+2}, v{T+4*j+3}, v{T+16}")
        e(f"v_cmp_eq_u32 vcc, -1, v{T+16}")
    def x1s_guard(self, g, T, tok):
        e = self.e
        rt = self.lab("xr"); lp = self.lab("xl"); bk = self.lab("xb")
        self.wait(tok)
        self.x1s_check(g, T)
        e(f"s_cbranch_vccnz {rt}")
        self.label(bk)
        def rout():
            self.label(rt)
            e(f"s_mov_b32 s{S_SPIN}, {self.cfg['spin']}")
            self.label(lp)
            self.x1s_issue(g)
            e("s_waitcnt vmcnt(0) lgkmcnt(0)")
            self.x1s_check(g, T, explicit=True)
            e("s_nop 1")
            e(f"s_cbranch_vccz {bk}")
            self.spin_check(lp)
            e(f"s_branch {bk}")
        o, _ = self.capture(rout); self.ool += o
    def modf_issue(self):
        self.e(f"v_lshlrev_b32 v236, 5, v0\ns_mov_b32 s101, {WS_MODF}")
        self.tok(f"buffer_load_dwordx2 v[232:233], v236, s[{S_WS}:{S_WS+3}], s101 offen sc1")
        return self.tok(f"buffer_load_dwordx2 v[234:235], v236, s[{S_WS}:{S_WS+3}], s101 offen offset:16 sc1")
    def xfill(self):
        e = self.e
        e("v_mov_b32 v248, -1\nv_mov_b32 v249, -1\nv_mov_b32 v250, -1\nv_mov_b32 v251, -1")
        e("v_lshrrev_b32 v252, 3, v0\nv_lshlrev_b32 v252, 15, v252\nv_and_b32 v253, 7, v0\nv_lshl_add_u32 v252, v253, 4, v252")
        t = None
        for base in (WS_X1S, WS_X1S + 32*32768, WS_X1, WS_X1 + 32*32768):
            e(f"s_lshl_b32 s101, s{S_D0}, 6\ns_add_u32 s101, s101, {hx(base)}")
            t = self.tok(f"buffer_store_dwordx4 v[248:251], v252, s[{S_WS}:{S_WS+3}], s101 offen sc1") if not self.cfg.get('nofill') else None
        return t
    def gate_pub(self):
        e = self.e
        sk = self.lab("gp")
        e(f"s_cmp_lg_u32 s{S_WV}, 0\ns_cbranch_scc1 {sk}")
        e(f"s_lshl_b32 s101, s{S_D0}, 5\ns_add_u32 s101, s101, {WS_FL1}")
        e(f"v_mov_b32 v252, 0\nv_mov_b32 v253, s{S_TAG}")
        self.p.nc(f"buffer_store_dword v253, v252, s[{S_WS}:{S_WS+3}], s101 offen sc1")
        self.label(sk)
    S_FB = 3
    def hbase(self):
        e = self.e
        e(f"s_mul_i32 s{self.S_HB}, s{S_G1}, {4*112*1024}")
        e(f"s_lshl_b32 s101, s{S_G2}, 6")
        e(f"s_add_u32 s{self.S_HB}, s{self.S_HB}, s101")
        e(f"s_add_u32 s{self.S_HB}, s{self.S_HB}, {hx(WS_H)}")
        e(f"s_mul_i32 s{self.S_FB}, s{S_G1}, {4*56*64}")
        e(f"s_lshl_b32 s101, s{S_G2}, 1")
        e(f"s_add_u32 s{self.S_FB}, s{self.S_FB}, s101")
        e(f"s_add_u32 s{self.S_FB}, s{self.S_FB}, {WS_FL2}")
        e(f"s_cmp_ge_u32 s{S_IDX}, 28")
        e(f"s_cselect_b32 s{self.S_FB}, 0x7f000000, s{self.S_FB}")
    def hflag(self, g, vz, vt):
        self.wait(self.htok[g])
        self.e(f"s_add_u32 s101, s{self.S_FB}, {g*56*64}")
        self.e(f"buffer_store_dword v{vt}, v{vz}, s[{S_WS}:{S_WS+3}], s101 offen sc1")
    def capture(self, fn):
        keep = self.p.take(); r = fn(); out = self.p.take(); self.p.put(keep); return out, r
    def cap(self, fn): return self.capture(fn)[0]
    def guard(self, name, chk, reissue, cond="vccnz"):
        e = self.e
        rt = self.lab(name + "r"); lp = self.lab(name + "l"); bk = self.lab(name + "b")
        chk(False)
        e(f"s_cbranch_vccnz {rt}")
        self.label(bk)
        def rout():
            self.label(rt); e(f"s_mov_b32 s{S_SPIN}, {self.cfg['spin']}"); self.label(lp)
            reissue(); chk(True); e("s_nop 1")
            e(f"s_cbranch_vccz {bk}"); self.spin_check(lp); e(f"s_branch {bk}")
        self.ool += self.cap(rout)

    def p0_issue(self):
        e = self.e; T = self.T = {}
        e(f"s_lshl_b32 s{S_T0}, s2, 13\ns_lshl_b32 s{S_T1}, s{S_WV}, 11\ns_add_u32 s{S_T0}, s{S_T0}, s{S_T1}")
        e("v_lshlrev_b32 v9, 4, v1")
        self.tok(f"buffer_load_dwordx4 v[10:13], v9, s[{S_X}:{S_X+3}], s{S_T0} offen")
        T["xr"] = self.tok(f"buffer_load_dwordx4 v[14:17], v9, s[{S_X}:{S_X+3}], s{S_T0} offen offset:1024")
        e("v_lshrrev_b32 v4, 3, v1\nv_and_b32 v5, 7, v1\nv_lshlrev_b32 v5, 4, v5\nv_lshl_add_u32 v3, v4, 10, v5")
        e(f"s_lshl_b32 s{S_T0}, s{S_IDX}, 16\ns_lshl_b32 s{S_T2}, s{S_XCD}, 7\ns_add_u32 s{S_T0}, s{S_T0}, s{S_T2}")
        e(f"s_lshl_b32 s{S_T2}, s{S_WV}, 14\ns_add_u32 s{S_T0}, s{S_T0}, s{S_T2}")
        e(f"s_add_u32 m0, s{S_T1}, {L_XT}\ns_add_u32 s{S_T2}, s{S_T0}, 8192")
        self.tok(f"buffer_load_dwordx4 v3, s[{S_X}:{S_X+3}], s{S_T0} offen lds")
        e(f"s_add_u32 m0, s{S_T1}, {L_XT + 1024}")
        T["xt"] = self.tok(f"buffer_load_dwordx4 v3, s[{S_X}:{S_X+3}], s{S_T2} offen lds")
        e(f"s_lshl_b32 s{S_T2}, s{S_D0}, 8")
        e(f"v_lshl_add_u32 v8, v0, 1, s{S_T2}")
        for i in range(6): T["ssm"] = self.tok(f"global_load_ushort v{18+i}, v8, s[{P_ARE+2*i}:{P_ARE+2*i+1}]")
        skip = self.lab("nomod"); jn = self.lab("modj")
        e(f"s_cmp_ge_u32 s2, 192\ns_cbranch_scc1 {skip}")
        e(f"s_mul_i32 s{S_M}, s2, 1366\ns_lshr_b32 s{S_M}, s{S_M}, 16")
        e(f"s_mul_i32 s{S_T0}, s{S_M}, 48\ns_sub_u32 s{S_M+1}, s2, s{S_T0}")
        e(f"s_lshl_b32 s{S_T0}, s{S_M}, 8")
        e(f"v_lshl_add_u32 v3, v1, 2, s{S_T0}")
        T["c"] = self.tok(f"global_load_dword v24, v3, s[{P_C}:{P_C+1}]")
        e("v_mul_u32_u24 v3, 6144, v4\nv_add_u32 v3, v3, v5")
        e(f"s_mul_i32 s{S_T0}, s{S_M}, {128*6144}\ns_lshl_b32 s{S_T2}, s{S_M+1}, 7\ns_add_u32 s{S_T0}, s{S_T0}, s{S_T2}")
        e(f"s_mul_i32 s{S_T2}, s{S_WV}, {32*6144}\ns_add_u32 s{S_T0}, s{S_T0}, s{S_T2}")
        e(f"s_lshl_b32 s{S_T1}, s{S_WV}, 12")
        for j in range(4):
            e(f"s_add_u32 m0, s{S_T1}, {L_MOD + 1024*j}")
            if j: e(f"s_add_u32 s{S_T0}, s{S_T0}, {8*6144}")
            T["wm"] = self.tok(f"buffer_load_dwordx4 v3, s[{S_WM}:{S_WM+3}], s{S_T0} offen lds")
        e(f"s_branch {jn}")
        self.label(skip)
        for j in range(5): self.p.nc(f"global_load_dword v24, v9, s[{P_C}:{P_C+1}]")
        self.label(jn)

    def p0_stats(self):
        e = self.e
        e("v_mov_b32 v3, 0x3f803f80")
        self.wait(self.T["xr"])
        for i in range(4):
            c = lambda r: (f"v{r}" if i else "0")
            e(f"v_dot2_f32_bf16 v4, v{10+i}, v3, {c(4)}")
            e(f"v_dot2_f32_bf16 v5, v{10+i}, v{10+i}, {c(5)}")
            e(f"v_dot2_f32_bf16 v6, v{14+i}, v3, {c(6)}")
            e(f"v_dot2_f32_bf16 v7, v{14+i}, v{14+i}, {c(7)}")
        self.reduce16([4, 5, 6, 7])
        e("v_permlane16_swap_b32 v4, v5\nv_permlane16_swap_b32 v6, v7")
        e("v_add_f32 v4, v4, v5\nv_add_f32 v6, v6, v7")
        e("v_permlane32_swap_b32 v4, v6")
        e("v_add_f32 v4, v4, v6")
        e("v_mov_b32 v5, v4")
        e("v_permlane16_swap_b32 v4, v5")
        self.stat_finish(4, 5, 6, 7)
        e(f"v_mov_b32 v5, s{S_TAG}")
        e("v_lshrrev_b32 v6, 2, v1")
        e(f"s_lshl_b32 s{S_T0}, s2, 6\ns_lshl_b32 s{S_T1}, s{S_WV}, 4\ns_add_u32 s{S_T0}, s{S_T0}, s{S_T1}\ns_add_u32 s{S_T0}, s{S_T0}, {WS_ST1}")
        e("s_mov_b32 exec_lo, 1\ns_mov_b32 exec_hi, 1")
        e(f"buffer_store_dwordx2 v[4:5], v6, s[{S_WS}:{S_WS+3}], s{S_T0} offen sc1")
        e("s_mov_b64 exec, -1")

    def p0_xb(self):
        e = self.e
        e(f"s_lshl_b32 s{S_T1}, s{S_WV}, 5\ns_add_u32 s{S_T1}, s{S_T1}, {L_XT}")
        e("v_lshrrev_b32 v25, 2, v1\nv_lshlrev_b32 v25, 7, v25\nv_and_b32 v4, 3, v1\nv_lshl_add_u32 v25, v4, 3, v25")
        e(f"v_add_u32 v3, s{S_T1}, v25")
        e("v_bfe_u32 v4, v1, 1, 3\nv_lshlrev_b32 v4, 14, v4")
        e("v_lshrrev_b32 v5, 4, v1\nv_lshl_add_u32 v4, v5, 5, v4")
        e("v_and_b32 v5, 1, v1\nv_lshl_add_u32 v4, v5, 4, v4")
        e(f"s_lshl_b32 s{S_T0}, s{S_XCD}, 19\ns_lshl_b32 s{S_T1}, s{S_WV}, 17\ns_add_u32 s{S_T0}, s{S_T0}, s{S_T1}")
        e(f"s_lshl_b32 s{S_T1}, s{S_IDX}, 9\ns_add_u32 s{S_T0}, s{S_T0}, s{S_T1}\ns_add_u32 s{S_T0}, s{S_T0}, {hx(WS_XB)}")
        for i in range(4): e(f"v_mov_b32 v{39+4*i}, s{S_TAG}")
        self.wait(self.T["xt"])
        e("s_barrier")
        tk = [self.tok(f"ds_read_b64_tr_b16 v[{36+4*i}:{37+4*i}], v3 offset:{2048*i}") for i in range(4)]
        for i in range(4):
            self.wait(tk[i])
            e(f"v_mov_b32 v{38+4*i}, v{37+4*i}\nv_mov_b32 v{37+4*i}, s{S_TAG}")
            e(f"buffer_store_dwordx4 v[{36+4*i}:{39+4*i}], v4, s[{S_WS}:{S_WS+3}], s{S_T0} offen offset:{128*i}" + ("" if self.cfg.get('xbplain') else " sc1"))

    def p0_mod(self):
        e = self.e
        skip = self.lab("nomod2")
        self.wait(self.T["ssm"])
        e(f"s_cmp_ge_u32 s2, 192\ns_cbranch_scc1 {skip}")
        self.wait(self.T["c"])
        e("v_lshlrev_b32 v3, 16, v24\nv_and_b32 v4, 0xffff0000, v24")
        e(f"v_mul_f32 v5, {fl(-LOG2E)}, v3\nv_mul_f32 v6, {fl(-LOG2E)}, v4")
        e("v_exp_f32 v5, v5\nv_exp_f32 v6, v6")
        e("v_add_f32 v5, 1.0, v5\nv_add_f32 v6, 1.0, v6")
        e("v_rcp_f32 v5, v5\nv_rcp_f32 v6, v6")
        e("v_mul_f32 v3, v3, v5\nv_mul_f32 v4, v4, v6")
        e("v_cvt_pk_bf16_f32 v3, v3, v4")
        e(f"s_lshl_b32 s{S_T0}, s{S_WV}, 8\ns_add_u32 s{S_T0}, s{S_T0}, {L_MOD + 16384}")
        e(f"v_lshl_add_u32 v4, v1, 2, s{S_T0}")
        e("ds_write_b32 v4, v3")
        e("v_lshrrev_b32 v5, 4, v1")
        e(f"v_lshl_add_u32 v4, v5, 4, s{S_T0}")
        e("v_lshl_add_u32 v6, v5, 9, v25")
        e(f"s_lshl_b32 s{S_T1}, s{S_WV}, 5\ns_add_u32 s{S_T1}, s{S_T1}, {L_MOD}")
        e(f"v_add_u32 v6, s{S_T1}, v6")
        self.wait(self.T["wm"])
        e("s_waitcnt lgkmcnt(0)\ns_barrier")
        for ks in range(4):
            e(f"ds_read_b128 v[{52+8*ks}:{55+8*ks}], v4 offset:{64*ks}")
            e(f"ds_read_b64_tr_b16 v[{56+8*ks}:{57+8*ks}], v6 offset:{4096*ks}")
            e(f"ds_read_b64_tr_b16 v[{58+8*ks}:{59+8*ks}], v6 offset:{4096*ks+512}")
        e(f"s_mul_i32 s{S_T0}, s{S_M}, {3072*8}\ns_lshl_b32 s{S_T1}, s{S_M+1}, 9\ns_add_u32 s{S_T0}, s{S_T0}, s{S_T1}")
        e(f"s_lshl_b32 s{S_T1}, s{S_WV}, 7\ns_add_u32 s{S_T0}, s{S_T0}, s{S_T1}\ns_add_u32 s{S_T0}, s{S_T0}, {WS_MODP}")
        e("v_lshlrev_b32 v6, 3, v1")
        for ks in range(4):
            e(f"s_waitcnt lgkmcnt({9-3*ks})")
            e(f"v_mfma_f32_16x16x32_bf16 v[84:87], v[{52+8*ks}:{55+8*ks}], v[{56+8*ks}:{59+8*ks}], {'v[84:87]' if ks else '0'}")
        e("s_barrier")
        e(f"v_mov_b32 v85, s{S_TAG}")
        e("s_mov_b64 exec, 0xffff")
        self.p.nc(f"buffer_store_dwordx2 v[84:85], v6, s[{S_WS}:{S_WS+3}], s{S_T0} offen sc1")
        e("s_mov_b64 exec, -1")
        self.label(skip)

    def touch(self):
        e = self.e
        e(f"s_mul_i32 s{S_T0}, s2, {56*128}")
        e("v_min_u32 v3, 55, v1\nv_lshlrev_b32 v3, 7, v3")
        e(f"v_add_u32 v3, s{S_T0}, v3")
        e(f"s_cmp_eq_u32 s{S_WV}, 0\ns_cselect_b32 s{S_T2}, s{P_WG}, s{P_WU}\ns_cselect_b32 s{S_T3}, s{P_WG+1}, s{P_WU+1}")
        e(f"s_cmp_ge_u32 s{S_WV}, 2\ns_cselect_b32 s{S_T2}, s{P_WD}, s{S_T2}\ns_cselect_b32 s{S_T3}, s{P_WD+1}, s{S_T3}")
        e(f"global_load_dword v253, v3, s[{S_T2}:{S_T3}]")

    def w_setup(self):
        e = self.e
        e(f"s_bitcmp1_b32 s{S_WV}, 0\ns_cselect_b32 s8, s{P_WU}, s{P_WG}\ns_cselect_b32 s9, s{P_WU+1}, s{P_WG+1}")
        e(f"s_cmp_ge_u32 s{S_IDX}, 28\ns_cselect_b32 s10, 0, {hx(0 if self.cfg.get('now') else 1835008)}\ns_mov_b32 s11, 0x20000")
        e("v_lshrrev_b32 v241, 4, v1\nv_mul_u32_u24 v240, 3584, v241")
        e(f"s_and_b32 s13, s{S_WV}, 1\nv_lshl_add_u32 v241, v241, 1, s13")
        e("v_bfe_u32 v242, v1, 1, 3\nv_xor_b32 v241, v241, v242\nv_lshl_add_u32 v240, v241, 5, v240")
        e("v_and_b32 v241, 1, v1\nv_lshl_add_u32 v240, v241, 4, v240")
        e(f"s_lshr_b32 s14, s{S_WV}, 1\ns_mul_i32 s15, s14, {8*3584}")
        e(f"s_and_b32 s101, s{S_G2}, 0xffffff80\ns_lshl_b32 s101, s101, 1\ns_add_u32 s15, s15, s101")
        e(f"v_add_u32 v240, s15, v240\nv_add_u32 v247, {4*3584 - 1024}, v240")
        e("s_lshl_b32 s12, s13, 12\ns_lshl_b32 s14, s14, 11\ns_add_u32 s12, s12, s14")
        e("v_bfe_u32 v241, v1, 4, 1\nv_bfe_u32 v242, v1, 2, 2")
        e("v_lshl_add_u32 v243, v242, 1, v241")
        e(f"s_lshl_b32 s13, s{S_WV}, 1\nv_xor_b32 v243, s13, v243\nv_lshlrev_b32 v243, 5, v243")
        e("v_lshl_add_u32 v243, v241, 12, v243\nv_lshl_add_u32 v243, v242, 8, v243")
        e("v_lshrrev_b32 v241, 5, v1\nv_lshl_add_u32 v243, v241, 11, v243")
        e("v_and_b32 v241, 1, v1\nv_lshl_add_u32 v243, v241, 4, v243")
        e("v_bfe_u32 v241, v1, 1, 1\nv_lshl_add_u32 v241, v241, 3, v243")
        e("v_xor_b32 v242, 32, v241")
        e("v_add_u32 v243, 0x10000, v241\nv_add_u32 v244, 0x10000, v242\nv_add_u32 v245, 0x20000, v241\nv_add_u32 v246, 0x20000, v242")
        self.wt = {}
    def w_issue(self, ks):
        e = self.e
        if self.cfg.get('noch'):
            self.wt[ks] = None; e("s_nop 0\ns_nop 0\ns_nop 0\ns_nop 0"); return
        e(f"s_add_u32 m0, s12, {wslot(ks)}\ns_mov_b32 s14, {ks*16*3584}")
        self.tok("buffer_load_dwordx4 v240, s[8:11], s14 offen lds")
        self.wt[ks] = self.tok("buffer_load_dwordx4 v247, s[8:11], s14 offen offset:1024 lds")
    def w_read(self, ks):
        b = wslot(ks); t_ = None
        for t in range(2):
            for i in range(2):
                o = b + 1024*i
                t_ = self.tok(f"ds_read_b64_tr_b16 {ar((t*32+ks)*4+2*i,2)}, v{241 + 2*(o >> 16) + t} offset:{o & 0xffff}")
        return t_
    def w_issue_l(self, r):
        for ks in r: self.w_issue(ks)
    def w_chunks(self, r):
        out = []
        for ks in r:
            l = self.cap(lambda: self.w_issue(ks)); out += [l[:3], l[3:]]
        return out
    def w_read_l(self, r):
        t = None
        for ks in r: t = self.w_read(ks)
        return t

    U1 = 176; U2 = 208
    def modf_check(self, tok):
        e = self.e
        self.wait(tok)
        def chk(ex):
            e(f"v_xor_b32 v233, s{S_TAG}, v233\nv_xor_b32 v235, s{S_TAG}, v235\nv_or_b32 v233, v233, v235")
            e("v_cmp_ne_u32 vcc, 0, v233")
        self.guard("mf", chk, lambda: (self.modf_issue(), e("s_waitcnt vmcnt(0)")))
    def gate_issue(self):
        self.e(f"v_lshlrev_b32 v141, 6, v0\ns_mov_b32 s101, {WS_FL1}")
        return self.tok(f"buffer_load_dword v140, v141, s[{S_WS}:{S_WS+3}], s101 offen sc1")
    def gate_check(self, tok):
        self.wait(tok)
        self.guard("gt", lambda ex: self.e(f"v_cmp_ne_u32 vcc, s{S_TAG}, v140"), lambda: (self.gate_issue(), self.e("s_waitcnt vmcnt(0)")))
    def shadow1(self):
        e = self.e; c = self.cfg
        e("s_mov_b32 s101, 0x05040100\nv_perm_b32 v5, v234, v232, s101")
        e("s_mov_b32 s101, 0x07060302\nv_perm_b32 v7, v234, v232, s101")
        e(f"v_lshlrev_b32 v3, 2, v0\nv_add_u32 v3, {L_SS}, v3")
        e("ds_write2st64_b32 v3, v5, v7 offset0:0 offset1:4")
        e("v_bfe_u32 v2, v1, 4, 1\nv_lshlrev_b32 v2, 10, v2")
        e("v_lshrrev_b32 v4, 5, v1\nv_lshl_add_u32 v2, v4, 4, v2")
        e(f"v_add_u32 v2, {L_SS}, v2")
        self.w_issue_l(range(26, 29))
        self.wait(self.wt[21])
        e("s_waitcnt lgkmcnt(0)\ns_barrier")
        self.stamp(8)
        R = 8; tk = {}
        def umf(k0, k1, wtok={}):
            for ks in range(k0, min(k0 + R, k1)): tk[ks] = self.tok(f"ds_read_b128 {vr(100+4*(ks%R),4)}, v2 offset:{32*ks}")
            for ks in range(k0, k1):
                self.wait(tk[ks], wtok.get(ks))
                for t in range(2):
                    acc = vr(self.U1 + 16*t, 16)
                    e(f"v_mfma_f32_32x32x16_bf16 {acc}, {ar((t*32+ks)*4,4)}, {vr(100+4*(ks%R),4)}, {acc if ks else '0'}")
                if ks + R < k1: tk[ks+R] = self.tok(f"ds_read_b128 {vr(100+4*(ks%R),4)}, v2 offset:{32*(ks+R)}")
        def setup():
            e(f"s_lshl_b32 s{S_T1}, s{S_WV}, 13")
            e("v_lshlrev_b32 v147, 4, v1")
            e(f"v_add_u32 v146, s{S_T1}, v147\nv_add_u32 v143, 0x10000, v146")
            e(f"s_lshl_b32 s{S_T0}, s{S_G1}, 17\ns_add_u32 s{S_T0}, s{S_T0}, s{S_T1}\ns_add_u32 s{S_T0}, s{S_T0}, {hx(WS_X1S)}")
            e("v_lshrrev_b32 v144, 5, v1\nv_lshlrev_b32 v144, 9, v144")
            e("v_bfe_u32 v145, v1, 2, 2\nv_lshl_add_u32 v144, v145, 6, v144")
            e("v_bfe_u32 v145, v1, 4, 1\nv_lshl_add_u32 v144, v145, 5, v144")
            e("v_and_b32 v145, 3, v1\nv_lshl_add_u32 v144, v145, 3, v144")
            e("v_add_u32 v142, 0x10000, v144")
            e("v_and_b32 v145, 31, v1\nv_lshlrev_b32 v145, 3, v145")
        hold = {}
        cap = self.cap
        f = cap(lambda: hold.__setitem__("g", self.gate_issue())) + cap(lambda: (self.wait(self.w_read_l(range(13, 22)), self.wt[25]), e("s_barrier")))
        f += cap(lambda: self.w_issue_l(range(29, 32))) + cap(setup) + cap(lambda: hold.__setitem__("d", self.w_read_l(range(22, 26))))
        m, left = merge(cap(lambda: umf(0, 13)), f, 24, pace=2); self.p.put(m + left)
        ga = c["ga"]
        umf(13, ga)
        self.gate_check(hold["g"])
        self.stamp(9)
        f = cap(lambda: hold.__setitem__("x", self.x1s_issue(0)))
        self.wait(hold["d"])
        m, left = merge(cap(lambda: umf(ga, 26)), f, 24, pace=2); self.p.put(m + left)
        self.wait(self.wt[31])
        e("s_barrier")
        r = self.w_read_l(range(26, 32)); self.wait(r)
        umf(26, 32)
        for r in range(32): e(f"v_mov_b32 v{self.U2+r}, v{self.U1+r}")
        for r in range(32): e(f"v_permlane16_swap_b32 v{self.U1+r}, v{self.U2+r}")
        for r in range(32): e(f"v_mul_f32 v{self.U2+r}, {fl(GAM if (r & 15) < 8 else 1/GAM)}, v{self.U2+r}")
        self.stamp(10)
        self.x1s_guard(0, 148, hold["x"])
        e("s_waitcnt lgkmcnt(0)\ns_barrier")
        self.stamp(12)

    def stats2_job(self):
        e = self.e
        e(f"s_lshl_b32 s{S_T2}, s{S_XCD}, 2\ns_add_u32 s{S_T2}, s{S_T2}, s{S_IDX}\ns_sub_u32 s{S_T2}, s{S_T2}, 28")
        e(f"s_lshl_b32 s{S_T1}, s{S_WV}, 13")
        e(f"s_lshl_b32 s{S_T0}, s{S_T2}, 16\ns_add_u32 s{S_T0}, s{S_T0}, s{S_T1}\ns_add_u32 s{S_T0}, s{S_T0}, {hx(WS_X1)}")
        e("v_lshlrev_b32 v147, 4, v1\nv_lshlrev_b32 v146, 7, v1")
        e("v_lshrrev_b32 v144, 5, v1\nv_lshlrev_b32 v144, 9, v144")
        e("v_bfe_u32 v145, v1, 2, 2\nv_lshl_add_u32 v144, v145, 6, v144")
        e("v_bfe_u32 v145, v1, 4, 1\nv_lshl_add_u32 v144, v145, 5, v144")
        e("v_and_b32 v145, 3, v1\nv_lshl_add_u32 v144, v145, 3, v144")
        e(f"s_lshl_b32 s{S_T1}, s{S_WV}, 14\nv_add_u32 v144, s{S_T1}, v144")
        e("v_mov_b32 v5, 0x3f803f80")
        e("s_waitcnt vmcnt(0)\ns_barrier")
        self.gate_issue(); e("s_waitcnt vmcnt(0)")
        self.guard("g2", lambda ex: e(f"v_cmp_ne_u32 vcc, s{S_TAG}, v140"), lambda: (self.gate_issue(), e("s_waitcnt vmcnt(0)")))
        e(f"s_mov_b32 s{S_SPIN}, {self.cfg['spin']}")
        lp = self.lab("pj"); go = self.lab("pg"); ok = self.lab("pk")
        self.label(lp)
        e(f"s_add_u32 s101, s{S_T0}, 32768")
        e(f"buffer_load_dword v6, v146, s[{S_WS}:{S_WS+3}], s{S_T0} offen sc1")
        e(f"buffer_load_dword v7, v146, s[{S_WS}:{S_WS+3}], s101 offen offset:64 sc1")
        e("s_waitcnt vmcnt(0)\nv_max_u32 v6, v6, v7\nv_cmp_eq_u32 vcc, -1, v6\ns_nop 1")
        e(f"s_cbranch_vccz {go}")
        self.spin_check(lp)
        e(f"s_mov_b32 s{S_SPIN}, 1")
        self.label(go)
        for b in range(2):
            for j in range(8):
                e(f"s_add_u32 m0, s{S_T1}, {b*8192 + j*1024}\ns_add_u32 s101, s{S_T0}, {b*32768 + j*1024}")
                e(f"buffer_load_dwordx4 v147, s[{S_WS}:{S_WS+3}], s101 offen sc1 lds")
        for b in range(2):
            e(f"s_waitcnt vmcnt({8*(1-b)})")
            for j in range(16): e(f"ds_read_b64_tr_b16 {vr(40+2*j,2)}, v144 offset:{b*8192 + (j>>1)*1024 + (j&1)*256}")
            for j in range(32):
                if j % 8 == 0: e(f"s_waitcnt lgkmcnt({12 - j//2})")
                e(f"v_dot2_f32_bf16 v{8+2*b}, v{40+j}, v5, {'v%d' % (8+2*b) if j else '0'}")
                e(f"v_dot2_f32_bf16 v{9+2*b}, v{40+j}, v{40+j}, {'v%d' % (9+2*b) if j else '0'}")
        e("s_nop 2\nv_add_f32 v6, v9, v11\nv_cmp_u_f32 vcc, v6, v6\ns_nop 1")
        e(f"s_cbranch_vccz {ok}")
        self.spin_check(lp)
        self.label(ok)
        e("v_permlane32_swap_b32 v8, v10\nv_permlane32_swap_b32 v9, v11")
        e("v_add_f32 v8, v8, v10\nv_add_f32 v9, v9, v11")
        e(f"s_lshl_b32 s101, s{S_WV}, 9\ns_add_u32 s101, s101, {L_SS}")
        e("v_lshlrev_b32 v12, 3, v1\nv_add_u32 v13, s101, v12")
        e("ds_write_b64 v13, v[8:9]")
        e(f"v_add_u32 v13, {L_SS}, v12")
        e("s_waitcnt lgkmcnt(0)\ns_barrier")
        sk = self.lab("s2w")
        e(f"s_cmp_lg_u32 s{S_WV}, 0\ns_cbranch_scc1 {sk}")
        for w in range(4): e(f"ds_read_b64 v[{14+2*w}:{15+2*w}], v13 offset:{512*w}")
        e("s_waitcnt lgkmcnt(0)")
        e("v_pk_add_f32 v[14:15], v[14:15], v[16:17]\nv_pk_add_f32 v[18:19], v[18:19], v[20:21]\nv_pk_add_f32 v[14:15], v[14:15], v[18:19]")
        self.stat_finish(14, 15, 16, 17)
        e(f"v_mov_b32 v15, s{S_TAG}")
        e(f"s_lshl_b32 s101, s{S_T2}, 9\ns_add_u32 s101, s101, {WS_ST2}")
        e(f"buffer_store_dwordx2 v[14:15], v12, s[{S_WS}:{S_WS+3}], s101 offen sc1")
        self.label(sk)
        e("s_barrier")

    def wd_setup(self):
        e = self.e
        e("v_lshrrev_b32 v240, 3, v1")
        e("v_bfe_u32 v241, v1, 4, 1\nv_lshlrev_b32 v241, 2, v241")
        e("v_and_b32 v242, 7, v1\nv_xor_b32 v241, v241, v242")
        e("v_lshlrev_b32 v240, 10, v240\nv_lshl_add_u32 v240, v241, 4, v240")
        e(f"v_add_u32 v241, {8192 - 1024}, v240")
        e(f"s_mul_i32 s{S_LDT}, s{S_WV}, {448*1024}")
        e(f"s_and_b32 s101, s{S_IDX}, 7\ns_lshl_b32 s101, s101, 7\ns_add_u32 s{S_LDT}, s{S_LDT}, s101")
        e(f"s_mul_i32 s{S_M+8}, s{S_WV}, 6144\ns_add_u32 s{S_M+8}, s{S_M+8}, {L_SP}")
        e(f"s_lshl_b32 s{S_M+9}, s{S_WV}, 13")
        e("v_lshrrev_b32 v242, 5, v1\nv_lshlrev_b32 v242, 10, v242")
        e("v_bfe_u32 v243, v1, 2, 2\nv_lshl_add_u32 v242, v243, 7, v242")
        e("v_bfe_u32 v243, v1, 3, 1\nv_lshl_add_u32 v242, v243, 6, v242")
        e("v_and_b32 v243, 1, v1\nv_lshl_add_u32 v242, v243, 5, v242")
        e("v_bfe_u32 v243, v1, 1, 1\nv_lshl_add_u32 v242, v243, 3, v242")
        e("v_bfe_u32 v243, v1, 4, 1\nv_lshl_add_u32 v242, v243, 4, v242")
    def wd_loc(self, ks):
        sl = ks if ks < 19 else ks - 19
        if sl < 3: return 0, 2048*sl
        q, r = divmod(sl - 3, 4)
        return 1, (3 - q)*32768 + 2048*r
    def wd_issue(self, ks):
        e = self.e
        r, o = self.wd_loc(ks)
        e(f"s_add_u32 m0, s{S_M+8+r}, {o}\ns_add_u32 s15, s{S_LDT}, {ks*16384}")
        self.tok(f"buffer_load_dwordx4 v240, s[{S_WD}:{S_WD+3}], s15 offen lds")
        self.wdt[ks] = self.tok(f"buffer_load_dwordx4 v241, s[{S_WD}:{S_WD+3}], s15 offen offset:1024 lds")
    def wd_chunks(self, r):
        out = []
        for ks in r:
            l = self.cap(lambda: self.wd_issue(ks)); out += [l[:3], l[3:]]
        return out
    def wd_read(self, ks):
        r, o = self.wd_loc(ks); t_ = None
        for t in range(2):
            for i in range(2):
                oo = o + 512*i
                reg = 230 if r == 0 else (232 if oo < 65536 else 234)
                t_ = self.tok(f"ds_read_b64_tr_b16 {ar((ks*2+t)*4+2*i,2)}, v{reg+t} offset:{oo & 0xffff}")
        return t_

    def gemm1f(self):
        e = self.e; c = self.cfg; cap = self.cap
        e(f"s_mov_b32 s{S_T2}, s{self.S_HB}\ns_mov_b32 s{S_T3}, {fl(-GC)}")
        ACC = [4, 36, 68]; BR = 100; R = 7
        seq = [(g, ks) for g in range(4) for ks in range(32)]
        def bread(n):
            g, ks = seq[n]; b = BR + 4*(n % R); base = self.XT(g); ad = 144 if base < 65536 else 142
            o = base % 65536 + ks*1024
            self.tok(f"ds_read_b64_tr_b16 {vr(b,2)}, v{ad} offset:{o}")
            return self.tok(f"ds_read_b64_tr_b16 {vr(b+2,2)}, v{ad} offset:{o+256}")
        PF = R - 1
        tk = {}
        for n in range(PF): tk[n] = bread(n)
        ST = [128, 132, 136, 248]
        def st_issue():
            e(f"s_lshl_b32 s101, s{S_G1}, 10\ns_add_u32 s101, s101, {WS_ST2}")
            t = None
            for g in range(4):
                t = self.tok(f"buffer_load_dwordx2 {vr(ST[g],2)}, v145, s[{S_WS}:{S_WS+3}], s101 offen offset:{256*g} sc1")
            return t
        def st_chk(ex):
            e(f"v_xor_b32 v140, s{S_TAG}, v{ST[0]+1}")
            for g in range(1, 4): e(f"v_xor_b32 v{ST[g]+2}, s{S_TAG}, v{ST[g]+1}\nv_or_b32 v140, v140, v{ST[g]+2}")
            e("v_cmp_ne_u32 vcc, 0, v140")
        def st_guard(tok):
            self.wait(tok)
            self.guard("st", st_chk, lambda: (st_issue(), e("s_waitcnt vmcnt(0)")))
            for g in range(4):
                b = ST[g]
                e(f"v_lshlrev_b32 v{b+2}, 16, v{b}\nv_rcp_f32 v{b+2}, v{b+2}")
                e(f"v_and_b32 v{b+3}, 0xffff0000, v{b}")
                e(f"v_mul_f32 v{b+3}, v{b+3}, v{b+2}")
                e(f"v_mul_f32 v{b}, {fl(GAM)}, v{b+2}\nv_mul_f32 v{b+1}, {fl(-GAM)}, v{b+3}")
                e(f"v_mul_f32 v{b+2}, {fl(1/GAM)}, v{b+2}\nv_mul_f32 v{b+3}, {fl(-1/GAM)}, v{b+3}")
        def steps(g, k0, k1):
            for ks in range(k0, k1):
                n = g*32 + ks
                self.wait(tk[n])
                for t in range(2):
                    acc = vr(ACC[g % 3] + 16*t, 16)
                    e(f"v_mfma_f32_32x32x16_bf16 {acc}, {ar((t*32+ks)*4,4)}, {vr(BR+4*(n%R),4)}, {acc if ks else '0'}")
                    if t == 0 and n + PF < 128: tk[n+PF] = bread(n+PF)
        def seg(g, k0, k1, fill, flush=True):
            m = cap(lambda: steps(g, k0, k1))
            m, left = merge(m, fill, 24, pace=c["gpace"])
            self.p.put(m)
            if flush: self.p.put(left); return []
            return left
        xt = {}; hold = {}; self.wdt = {}; self.htok = {}
        xi = lambda g: cap(lambda: xt.__setitem__(g, self.x1s_issue(g)))
        seg(0, 0, c["x1k"], xi(1) + xi(2) + cap(lambda: (e(f"v_mov_b32 v252, 0\nv_mov_b32 v253, s{S_TAG}"), self.wd_setup())))
        seg(0, c["x1k"], 25, cap(lambda: self.x1s_guard(1, 148, xt[1])))
        e("s_barrier")
        pend = seg(0, 25, 32, xi(3), flush=False)
        pend += cap(lambda: self.x1s_guard(2, 148, xt[2])) + sum(self.wd_chunks(range(3)), [])
        pend = seg(1, 0, c["sti"], pend)
        pend = cap(lambda: hold.__setitem__("t", st_issue())) + cap(lambda: self.x1s_guard(3, 148, xt[3]))
        seg(1, c["sti"], c["stk"], pend)
        e("s_barrier")
        self.stamp(13)
        ep0 = cap(lambda: st_guard(hold["t"])) + weave(self.g1_epilogue(0, ACC[0], ST[0]), self.wd_chunks(range(3, 7)), 20)
        pend = seg(1, c["stk"], 32, ep0, flush=False)
        pend = seg(2, 0, 2, pend, flush=False)
        e("s_barrier")
        ep1 = weave(self.g1_epilogue(1, ACC[1], ST[1]), self.wd_chunks(range(7, 11)), 20) + cap(lambda: self.hflag(0, 252, 253))
        pend = seg(2, 2, 32, pend + ep1, flush=False)
        if len(pend) > len(ep1):
            self.p.put(pend[:len(pend) - len(ep1)]); pend = pend[len(pend) - len(ep1):]
        pend = seg(3, 0, 2, pend, flush=False)
        e("s_barrier")
        ep2 = weave(self.g1_epilogue(2, ACC[2], ST[2]), self.wd_chunks(range(11, 15)), 20) + cap(lambda: self.hflag(1, 252, 253))
        pend = seg(3, 2, 32, pend + ep2, flush=False)
        self.stamp(14)
        self.p.put(pend + self.g1_epilogue(3, ACC[0], ST[3]))
        self.stamp(15)

    def gemm2f(self):
        e = self.e; c = self.cfg; cap = self.cap
        e(f"v_add_u32 v230, s{S_M+8}, v242\nv_xor_b32 v231, 64, v230")
        e(f"v_add_u32 v232, s{S_M+9}, v242\nv_xor_b32 v233, 64, v232\nv_add_u32 v234, 0x10000, v232\nv_add_u32 v235, 0x10000, v233")
        e("v_lshlrev_b32 v244, 4, v1")
        e("v_min_u32 v246, 13, v1\nv_lshlrev_b32 v246, 6, v246")
        e(f"s_mul_i32 s{S_M+2}, s{S_WV}, {14*64}\ns_add_u32 s{S_M+2}, s{S_M+2}, {WS_FL2}")
        e(f"s_mul_i32 s{S_M+3}, s{S_G2}, {56*64}\ns_add_u32 s{S_M+3}, s{S_M+3}, s{S_M+2}")
        e(f"s_mul_i32 s101, s{S_G1}, {56*64}\ns_add_u32 s{S_M+2}, s{S_M+2}, s101")
        def fl_issue(nt): return self.tok(f"buffer_load_dword v{247-2*nt}, v246, s[{S_WS}:{S_WS+3}], s{S_M+2+nt} offen sc1")
        f0 = fl_issue(0)
        e(f"s_mul_i32 s{S_M+4}, s{S_G1}, {112*1024}\ns_mul_i32 s{S_M+5}, s{S_G2}, {112*1024}")
        e(f"s_mul_i32 s{S_M+6}, s{S_WV}, {28*1024}\ns_add_u32 s{S_M+6}, s{S_M+6}, {hx(WS_H)}")
        e(f"s_add_u32 s{S_M+4}, s{S_M+4}, s{S_M+6}\ns_add_u32 s{S_M+5}, s{S_M+5}, s{S_M+6}")
        e(f"v_mov_b32 v228, 0\nv_mov_b32 v229, s{S_TAG}")
        rd = {}
        for ks in range(15):
            self.wait(self.wdt[ks]); rd[ks] = self.wd_read(ks)
        e("s_barrier")
        HB = 68
        def hl(nt, ks):
            e(f"s_add_u32 s101, s{S_M+4+nt}, {ks*1024}")
            return self.tok(f"buffer_load_dwordx4 {vr(HB+4*ks,4)}, v244, s[{S_WS}:{S_WS+3}], s101 offen sc1")
        self.wait(f0)
        self.guard("f0", lambda ex: e(f"v_cmp_ne_u32 vcc, s{S_TAG}, v247"), lambda: (fl_issue(0), e("s_waitcnt vmcnt(0)")))
        self.stamp(16)
        self.hflag(2, 228, 229)
        ht = {}
        order = [("h", ks) for ks in range(15)]
        for ks in range(15, 28): order += [("w", ks), ("h", ks)]
        def iss(it):
            if it[0] == "h": ht[(0, it[1])] = hl(0, it[1])
            else: self.wd_issue(it[1])
        NPRE = c["npre"]
        self.wait(rd[14])
        for it in order[:NPRE]: iss(it)
        self.hflag(3, 228, 229)
        e(f"s_bitcmp1_b32 s{S_WV}, 1\ns_cselect_b32 s{S_T2}, s{S_G2}, s{S_G1}")
        e(f"s_and_b32 s{S_T3}, s{S_WV}, 1\ns_lshl_b32 s{S_T3}, s{S_T3}, 5")
        e(f"s_lshl_b32 s{S_M}, s{S_G3}, 6\ns_add_u32 s{S_T3}, s{S_T3}, s{S_M}")
        e(f"s_lshl_b32 s{S_M}, s{S_T2}, 15\ns_lshl_b32 s{S_M+1}, s{S_T3}, 6\ns_add_u32 s{S_M}, s{S_M}, s{S_M+1}")
        e(f"s_add_u32 s{S_M}, s{S_M}, {hx(WS_X1)}")
        e(f"s_lshl_b32 s{S_M+1}, s{S_WV}, 11\ns_add_u32 s{S_M+1}, s{S_M+1}, {L_XR2}")
        def mm(nt, ks):
            for t in range(2):
                acc = vr(4 + 32*nt + 16*t, 16)
                e(f"v_mfma_f32_32x32x16_bf16 {acc}, {ar((ks*2+t)*4,4)}, {vr(HB+4*ks,4)}, {acc if ks else '0'}")
        rest = order[NPRE:]
        KC = c["kc"]; f1 = None
        def rdw(ks):
            if 15 <= ks < 28 and ks not in rd:
                self.wait(self.wdt[ks]); rd[ks] = self.wd_read(ks)
        for ks in range(KC):
            for _ in range(2):
                if rest: iss(rest.pop(0))
            if not rest and f1 is None: f1 = fl_issue(1)
            rdw(ks + 1)
            self.wait(ht[(0, ks)], rd[ks]); mm(0, ks)
        assert not rest and f1 is not None
        slow = self.lab("g2slow"); jn = self.lab("g2j")
        self.wait(f1)
        e(f"v_cmp_ne_u32 vcc, s{S_TAG}, v245\ns_cbranch_vccnz {slow}")
        pendw = [ks for ks in range(15, 28) if ks not in rd]
        nx = 0
        for ks in range(KC, 28):
            for _ in range(c["nb"]):
                if nx < ks: ht[(1, nx)] = hl(1, nx); nx += 1
            rdw(ks + 1)
            self.wait(ht[(0, ks)], rd[ks]); mm(0, ks)
        while nx < 28: ht[(1, nx)] = hl(1, nx); nx += 1
        self.label(jn)
        def rout():
            lp = self.lab("g2l"); ok = self.lab("g2ok")
            self.label(slow)
            e("s_waitcnt vmcnt(0)")
            for ks in pendw: self.wd_read(ks)
            fl_issue(1)
            e("s_waitcnt lgkmcnt(0)")
            for ks in range(KC, 28): mm(0, ks)
            e(f"s_mov_b32 s{S_SPIN}, {self.cfg['spin']}")
            self.label(lp)
            e(f"s_waitcnt vmcnt(0)\nv_cmp_ne_u32 vcc, s{S_TAG}, v245\ns_nop 1\ns_cbranch_vccz {ok}")
            fl_issue(1)
            self.spin_check(lp)
            e("s_waitcnt vmcnt(0)")
            self.label(ok)
            for ks in range(28): hl(1, ks)
            e(f"s_branch {jn}")
        self.ool += cap(rout)
        self.stamp(19)
        def extras():
            e(f"s_mov_b32 m0, s{S_M+1}\ns_nop 0")
            self.tok(f"buffer_load_dwordx4 v244, s[{S_WS}:{S_WS+3}], s{S_M} offen sc1 lds")
            self.xr = self.tok(f"buffer_load_dwordx4 v244, s[{S_WS}:{S_WS+3}], s{S_M} offen offset:1024 sc1 lds")
            e("v_lshrrev_b32 v245, 5, v1\nv_lshlrev_b32 v245, 8, v245")
            e(f"s_lshl_b32 s{S_M+2}, s{S_T3}, 4\ns_add_u32 s{S_M+2}, s{S_M+2}, {WS_MODF + 8}")
            for j in range(16): self.gbt = self.tok(f"buffer_load_dword v{208+j}, v245, s[{S_WS}:{S_WS+3}], s{S_M+2} offen offset:{16*j} sc1")
        def wr(T):
            for j in range(4): e(f"ds_write_b128 v{246 + (T >> 1)}, {vr(4+16*T+4*j,4)} offset:{(T & 1)*32768 + 1024*j}")
        def addrs():
            e(f"v_add_u32 v246, s{S_M+9}, v244\nv_add_u32 v247, 0x10000, v246")
            e(f"s_lshl_b32 s{S_T0}, s{S_WV}, 15\nv_add_u32 v236, s{S_T0}, v244")
            e("v_lshrrev_b32 v248, 5, v1\nv_lshlrev_b32 v248, 10, v248")
            e("v_bfe_u32 v249, v1, 2, 2\nv_lshl_add_u32 v248, v249, 6, v248")
            e("v_bfe_u32 v249, v1, 4, 1\nv_lshl_add_u32 v248, v249, 5, v248")
            e("v_and_b32 v249, 3, v1\nv_lshl_add_u32 v248, v249, 3, v248")
            e(f"v_add_u32 v248, s{S_M+1}, v248")
            e("v_and_b32 v249, 31, v1\nv_lshlrev_b32 v249, 10, v249")
            e("v_lshrrev_b32 v250, 5, v1\nv_lshl_add_u32 v249, v250, 5, v249")
            e(f"s_lshl_b32 s{S_T0}, s{S_T2}, 15\ns_lshl_b32 s{S_T1}, s{S_T3}, 1\ns_add_u32 s{S_T0}, s{S_T0}, s{S_T1}")
        def resid():
            self.wait(self.xr)
            tk = [self.tok(f"ds_read_b64_tr_b16 {vr(224+2*j,2)}, v248 offset:{256*j}") for j in range(4)]
            self.wait(tk[3])
            for j in range(8): e(f"v_lshlrev_b32 v{184+2*j}, 16, v{224+j}\nv_and_b32 v{185+2*j}, 0xffff0000, v{224+j}")
        def nt1():
            for ks in range(28):
                self.wait(ht[(1, ks)]); mm(1, ks)
        fill = cap(extras) + cap(addrs) + cap(lambda: (wr(0), wr(1))) + cap(resid)
        m, left = merge(cap(nt1), fill, 24, pace=1); self.p.put(m + left)
        self.stamp(17)
        wr(2); wr(3)
        e("s_waitcnt lgkmcnt(0)\ns_barrier")
        rt = {}
        for w in range(4):
            for j in range(4): rt[(w, j)] = self.tok(f"ds_read_b128 {vr(68+16*w+4*j,4)}, v236 offset:{8192*w + 1024*j}")
        self.wait(rt[(1, 3)])
        for j in range(8): e(f"v_pk_add_f32 {vr(68+2*j,2)}, {vr(68+2*j,2)}, {vr(84+2*j,2)}")
        self.wait(rt[(3, 3)], self.gbt)
        for j in range(8): e(f"v_pk_add_f32 {vr(100+2*j,2)}, {vr(100+2*j,2)}, {vr(116+2*j,2)}")
        for h in range(2):
            for j in range(4*h, 4*h+4): e(f"v_pk_add_f32 {vr(68+2*j,2)}, {vr(68+2*j,2)}, {vr(100+2*j,2)}")
            for j in range(4*h, 4*h+4): e(f"v_pk_fma_f32 {vr(68+2*j,2)}, {vr(68+2*j,2)}, {vr(208+2*j,2)}, {vr(184+2*j,2)}")
            for j in range(4*h, 4*h+4): e(f"v_cvt_pk_bf16_f32 v{24+j}, v{68+2*j}, v{69+2*j}")
            e(f"buffer_store_dwordx4 {vr(24+4*h,4)}, v249, s[{S_OUT}:{S_OUT+3}], s{S_T0} offen offset:{16*h}")
        self.stamp(18)

    def bump_epoch(self):
        e = self.e
        sk = self.lab("ep")
        e("s_cmp_lg_u32 s2, 0")
        e(f"s_cbranch_scc1 {sk}")
        e(f"s_add_u32 s{S_T0}, s{S_E}, 1")
        e(f"v_mov_b32 v3, s{S_T0}\nv_mov_b32 v4, 0")
        e("s_mov_b64 exec, 1")
        e(f"buffer_store_dword v3, v4, s[{S_WS}:{S_WS+3}], 0 offen sc1")
        e("s_mov_b64 exec, -1")
        self.label(sk)
    def finish(self):
        self.stamp_flush()
        self.label(f"{self.cfg['uid']}_end")
        self.e("s_endpgm")
        ins = resolve(self.p.take()) + self.ool
        ins, n = pad_hazards(ins)
        return render(ins)
def kernel_text(name, body, vgpr=512, accum=256):
    return f""".text
.globl {name}
.p2align 8
.type {name},@function
{name}:
{body}
.section .rodata,"a"
.p2align 6
.amdhsa_kernel {name}
  .amdhsa_next_free_vgpr {vgpr}
  .amdhsa_next_free_sgpr 102
  .amdhsa_accum_offset {accum}
  .amdhsa_group_segment_fixed_size 0
  .amdhsa_kernarg_size 144
  .amdhsa_user_sgpr_count 2
  .amdhsa_user_sgpr_kernarg_segment_ptr 1
  .amdhsa_system_sgpr_workgroup_id_x 1
.end_amdhsa_kernel
"""

def build(stamps=False, over={}):
    hdr = open("adaLN_cond__ssm_conv_s4__glu_gated_geglu__prompt.s.ref").read().split("; Override launch")[0]
    cfg = dict(spin=200000, stamps=stamps, uid="F", x1k=19, sti=8, stk=20, kc=22, nb=4, npre=16, ga=18, cpace=4, gpace=2, nb1=4, touch=1)
    cfg.update(over)
    g = G(cfg); e = g.e
    g.prologue()
    g.p0_issue()
    g.g1_map(); g.w_setup(); g.hbase()
    g.tag_ready(); g.stamp(1)
    g.kgen_pre()
    g.p0_stats(); g.stamp(2); g.p0_xb(); g.stamp(23); g.p0_mod(); g.stamp(22)
    if cfg['touch']: g.touch()
    g.kgen_tab(g.w_chunks(range(0, 5)))
    nb1 = cfg["nb1"]
    g.kgen_post(post_b2=lambda: g.w_issue_l(range(5, 5 + nb1)))
    g.stamp(3)
    g.hbuild(after_first=lambda: None, mid=lambda: g.w_chunks(range(5 + nb1, 13)))
    hold = {}
    cap = g.cap
    f0, hold["fill"] = g.capture(g.xfill)
    f1 = cap(lambda: (g.wait(g.w_read_l(range(0, 9)), g.wt[12]), e("s_barrier")))
    f2 = cap(lambda: g.w_issue_l(range(13, 15))) + cap(lambda: hold.__setitem__("r", g.w_read_l(range(9, 13)))) + cap(lambda: g.w_issue_l(range(15, 22)))
    f3 = cap(lambda: (g.wait(hold["r"]), e("s_barrier"), g.w_issue_l(range(22, 26))))
    f4, hold["modf"] = g.capture(g.modf_issue)
    g.conv(fillers={0: f1 + f0 + f2 + f4 + f3}, pre_start=lambda: g.wait(g.wt[8]),
           pre_bar=lambda: g.wait(hold["fill"]), post_bar=g.gate_pub)
    g.modf_check(hold["modf"])
    e(f"s_cmp_ge_u32 s{S_IDX}, 28\ns_cbranch_scc1 F_alt")
    g.shadow1()
    g.gemm1f()
    g.label("F_g2")
    def alt():
        g.label("F_alt")
        g.stats2_job(); g.stamp(11)
        g.wd_setup()
        keep = dict(g.wdt)
        for ks in range(15): g.wd_issue(ks)
        g.wdt = keep
        e("s_waitcnt vmcnt(0)\ns_branch F_g2")
    g.ool += g.cap(alt)
    g.g2_map(); g.gemm2f(); g.bump_epoch()
    launch = f"; @launch grid=(256,1,1) block=(256,1,1) lds={LDS_BYTES}\n"
    return hdr + launch + '.amdgcn_target "amdgcn-amd-amdhsa--gfx950"\n' + kernel_text(KN, g.finish())

if __name__ == "__main__":
    over = {}
    for a in sys.argv[1:]:
        if "=" in a:
            k, v = a.split("="); over[k] = int(v)
    print(build(stamps="stamps" in sys.argv[1:], over=over))
```

```python
import sys, struct, math
from asmlib import *
KN = "adaLN_cond__ssm_conv_s4__glu_gated_geglu__prompt_kernel"
WS_ST1 = 0x1000; WS_MODP = 0x8000; WS_MODF = 0x20000; WS_ST2 = 0x24000
WS_FL1 = 0x28000; WS_FL2 = 0x40000; WS_XB = 0xC00000; WS_DBG = 0x1000000; WS_X1 = 0x100000; WS_X1S = 0x300000; WS_H = 0x500000; WS_SIZE = 0x1200000
L_TAB = 0; TABW = 17408; TPITCH = 272
L_K = 69632; KCH = 8320; KODD = 4164
L_HI = 86272; HCH = 4608
L_Z = 95488
L_MOD = 111872
L_SP = 131072
L_XT = 155648
L_SS = L_XT
L_XR2 = L_XT
LDS_BYTES = 163840
_POOL = [L_SP, L_SP + 8192, L_SP + 16384, L_MOD, L_MOD + 8192] + [L_TAB + 8192*i for i in range(8)]
def wslot(ks):
    if ks < 26: return _POOL[ks % 13]
    if ks < 29: return L_K + 8192*(ks-26)
    return L_SP + 8192*(ks-29)
S_WS = 4; S_WG = 8; S_WU = 12
P_X, P_ARE, P_AIM, P_BRE, P_BIM, P_CRE, P_CIM, P_LDT, P_DSK, P_BX, P_WG, P_WU, P_WD, P_C, P_WM, P_OUT, P_DBG, P_WS = [16 + 2 * i for i in range(18)]
S_X = 52; S_WM = 56; S_WD = 60; S_OUT = 64
S_TAG = 68; S_E = 69; S_WV = 70; S_D0 = 71; S_LDT = 72; S_DSK = 73
S_T0 = 74; S_T1 = 75; S_T2 = 76; S_T3 = 77; S_SPIN = 78; S_IDX = 79; S_XCD = 80
S_M = 82
S_EX = 94
S_ST = 96
S_G1 = 98; S_G2 = 99; S_G3 = 100
SENT = 0xFFFFFFFF
def f2u(x): return struct.unpack("<I", struct.pack("<f", x))[0]
def hx(x): return "0x%08x" % (x & 0xFFFFFFFF)
def fl(x): return hx(f2u(x))
LOG2E = 1.4426950408889634
GAM = (2 * 0.7978845608028654 * LOG2E * 0.044715) ** (1.0 / 3)
GC = 2 * 0.7978845608028654 * LOG2E / GAM
def vr(b, n): return f"v[{b}:{b+n-1}]" if n > 1 else f"v{b}"
def ar(b, n): return f"a[{b}:{b+n-1}]" if n > 1 else f"a{b}"
def sr(b, n): return f"s[{b}:{b+n-1}]" if n > 1 else f"s{b}"
class G:
    def __init__(self, cfg):
        self.cfg = cfg; self.p = Prog(); self.nlab = 0; self.nstamp = 0; self.ool = []
    def lab(self, base):
        self.nlab += 1; return f"L{self.cfg['uid']}_{base}_{self.nlab}"
    def e(self, t): self.p.e(t)
    def tok(self, t): return self.p.tok(t)
    def wait(self, *t): self.p.wait(*t)
    def label(self, l): self.p.label(l)
    def stamp(self, i):
        if not self.cfg.get("stamps"): return
        e = self.e
        e(f"s_memtime s[{S_ST}:{S_ST+1}]")
        e("s_waitcnt lgkmcnt(0)")
        e(f"v_writelane_b32 v255, s{S_ST}, {i}")
    def stamp_flush(self):
        if not self.cfg.get("stamps"): return
        e = self.e
        e(f"s_memrealtime s[{S_ST}:{S_ST+1}]")
        e("s_waitcnt lgkmcnt(0)")
        e(f"v_writelane_b32 v255, s{S_ST}, 63")
        e(f"s_lshl_b32 s{S_T0}, s2, 10")
        e(f"s_add_u32 s{S_T0}, s{S_T0}, {WS_DBG + self.cfg.get('dbgoff', 0)}")
        e("v_lshlrev_b32 v254, 2, v0")
        e(f"buffer_store_dword v255, v254, s[{S_WS}:{S_WS+3}], s{S_T0} offen")
        if self.cfg.get("dbgout"):
            sk = self.lab("dbg")
            e(f"s_cmp_lg_u32 s2, {self.cfg['dbgout']}\ns_cbranch_scc1 {sk}\ns_cmp_lg_u32 s{S_WV}, 0\ns_cbranch_scc1 {sk}")
            e(f"v_readlane_b32 s{S_T1}, v255, 0\nv_readlane_b32 s{S_T2}, v255, 62\nv_readlane_b32 s{S_T3}, v255, 63\nv_mov_b32 v4, 0")
            for i, st in enumerate([1, 2, 23, 22, 21, 3, 4, 5, 6, 7, 12, 14, 16, 19, 18]):
                e(f"v_readlane_b32 s{S_T0}, v255, {st}\ns_sub_u32 s{S_T0}, s{S_T0}, s{S_T1}\nv_mov_b32 v3, s{S_T0}")
                e(f"global_store_dword v4, v3, s[{P_DBG}:{P_DBG+1}] offset:{4*i}")
            e(f"s_sub_u32 s{S_T0}, s{S_T3}, s{S_T2}\nv_mov_b32 v3, s{S_T0}")
            e(f"global_store_dword v4, v3, s[{P_DBG}:{P_DBG+1}] offset:60")
            self.label(sk)
    def srd(self, s, ptr, size):
        self.e(f"s_mov_b32 s{s}, s{ptr}\ns_mov_b32 s{s+1}, s{ptr+1}\ns_mov_b32 s{s+2}, {hx(size)}\ns_mov_b32 s{s+3}, 0x20000")
    def prologue(self):
        e = self.e
        e("s_cmp_ge_u32 s2, 256")
        e(f"s_cbranch_scc1 {self.cfg['uid']}_end")
        e("s_load_dwordx16 s[16:31], s[0:1], 0")
        e("s_load_dwordx16 s[32:47], s[0:1], 64")
        e("s_load_dwordx4 s[48:51], s[0:1], 128")
        if self.cfg.get("stamps"):
            e("v_mov_b32 v255, 0")
            e(f"s_memrealtime s[{S_ST}:{S_ST+1}]")
        e("v_and_b32 v1, 63, v0")
        e("v_lshrrev_b32 v2, 6, v0")
        e(f"s_and_b32 s{S_XCD}, s2, 7")
        e(f"v_readfirstlane_b32 s{S_WV}, v2")
        e(f"s_lshr_b32 s{S_IDX}, s2, 3")
        e(f"s_lshl_b32 s{S_D0}, s{S_XCD}, 5")
        e(f"s_add_u32 s{S_D0}, s{S_D0}, s{S_IDX}")
        e(f"s_lshl_b32 s{S_D0}, s{S_D0}, 1")
        e("s_waitcnt lgkmcnt(0)")
        if self.cfg.get("stamps"):
            e(f"v_writelane_b32 v255, s{S_ST}, 62")
        self.stamp(0)
        e(f"s_load_dword s{S_E}, s[{P_WS}:{P_WS+1}], 0")
        e(f"s_lshl_b32 s{S_T0}, s{S_D0}, 1")
        e(f"s_load_dword s{S_LDT}, s[{P_LDT}:{P_LDT+1}], s{S_T0}")
        e(f"s_load_dword s{S_DSK}, s[{P_DSK}:{P_DSK+1}], s{S_T0}")
        self.srd(S_WS, P_WS, WS_SIZE)
        self.srd(S_X, P_X, 2097152)
        self.srd(S_WM, P_WM, 3145728)
        self.srd(S_WD, P_WD, 1835008)
        self.srd(S_OUT, P_OUT, 2097152)
    def tag_ready(self):
        e = self.e
        e("s_waitcnt lgkmcnt(0)")
        e(f"s_mul_i32 s{S_TAG}, s{S_E}, 0x9E3779B1")
        e(f"s_add_u32 s{S_TAG}, s{S_TAG}, 0x7F4A7C15")
    def reduce16(self, regs):
        for ctl in ["quad_perm:[1,0,3,2]", "quad_perm:[2,3,0,1]", "row_half_mirror", "row_mirror"]:
            for r in regs:
                self.e(f"v_add_f32_dpp v{r}, v{r}, v{r} {ctl} row_mask:0xf bank_mask:0xf")
    def stat_finish(self, vs, vq, t0, t1):
        e = self.e
        e(f"v_mul_f32 v{vs}, {fl(1/512)}, v{vs}")
        e(f"v_mul_f32 v{t0}, v{vs}, v{vs}")
        e(f"v_mul_f32 v{vq}, {fl(1/512)}, v{vq}")
        e(f"v_sub_f32 v{vq}, v{vq}, v{t0}")
        e(f"v_max_f32 v{vq}, 0, v{vq}")
        e(f"v_cvt_pk_bf16_f32 v{t0}, v{vq}, v{vq}")
        e(f"v_and_b32 v{t0}, 0xffff0000, v{t0}")
        e(f"v_add_f32 v{t0}, {fl(1e-5)}, v{t0}")
        e(f"v_cvt_pk_bf16_f32 v{t0}, v{t0}, v{t0}")
        e(f"v_and_b32 v{t0}, 0xffff0000, v{t0}")
        e(f"v_sqrt_f32 v{t0}, v{t0}")
        e(f"v_cvt_pk_bf16_f32 v{vs}, v{t0}, v{vs}")
    def cmul_list(self, jobs):
        e = self.e; i = 0
        f1 = lambda d, a, b: f"v_pk_mul_f32 {vr(d,2)}, {vr(a,2)}, {vr(b,2)} op_sel:[0,0] op_sel_hi:[0,1]"
        f2 = lambda d, a, b: f"v_pk_fma_f32 {vr(d,2)}, {vr(a,2)}, {vr(b,2)}, {vr(d,2)} op_sel:[1,1,0] op_sel_hi:[1,0,1] neg_lo:[0,1,0]"
        while i < len(jobs):
            j = jobs[i]
            if i + 1 < len(jobs) and j[0] not in jobs[i+1][1:] and jobs[i+1][0] not in j:
                k = jobs[i+1]
                e(f1(*j)); e(f1(*k)); e(f2(*j)); e(f2(*k)); i += 2
            else:
                e(f1(*j)); e(f2(*j)); i += 1
    def kgen_pre(self):
        e = self.e
        e("v_mov_b32 v36, 0\nv_mov_b32 v37, 0\nv_mov_b32 v38, 0\nv_mov_b32 v39, 0")
        e("v_lshrrev_b32 v3, 5, v0")
        e(f"v_mul_u32_u24 v3, {HCH}, v3")
        e("v_and_b32 v4, 31, v0")
        e("v_lshl_add_u32 v3, v4, 4, v3")
        e(f"v_add_u32 v3, {L_HI}, v3")
        e("v_bfe_u32 v4, v0, 2, 2")
        e(f"v_mul_u32_u24 v4, 4160, v4")
        e("v_and_b32 v5, 3, v0")
        e("v_lshl_add_u32 v4, v5, 4, v4")
        e(f"v_add_u32 v4, {L_K + 4096}, v4")
        e("v_cmp_gt_u32 vcc, 64, v0")
        e("v_cndmask_b32 v3, v4, v3, vcc")
        e("v_cmp_gt_u32 vcc, 80, v0")
        e(f"s_and_saveexec_b64 s[{S_EX}:{S_EX+1}], vcc")
        zl = self.lab("z")
        e(f"s_cbranch_execz {zl}")
        e("ds_write_b128 v3, v[36:39]")
        self.label(zl)
        e(f"s_mov_b64 exec, s[{S_EX}:{S_EX+1}]")
        e(f"s_lshr_b32 s{S_T0}, s{S_WV}, 1")
        e(f"s_lshl_b32 s{S_T0}, s{S_T0}, 4")
        e(f"s_lshr_b32 s{S_T1}, s{S_LDT}, s{S_T0}")
        e(f"s_lshl_b32 s{S_T1}, s{S_T1}, 16")
        e(f"v_mov_b32 v3, {fl(LOG2E)}")
        e(f"v_mul_f32 v3, s{S_T1}, v3")
        e("v_exp_f32 v3, v3")
        e("v_cvt_pk_bf16_f32 v3, v3, v3")
        e("v_and_b32 v35, 0xffff0000, v3")
    def kgen_tab(self, chunks=()):
        e = self.e
        keep = self.p.take()
        for i in range(6): e(f"v_lshlrev_b32 v{26+i}, 16, v{18+i}")
        e("v_mul_f32 v26, v26, v35\nv_mul_f32 v27, v27, v35\nv_mul_f32 v28, v28, v35\nv_mul_f32 v29, v29, v35")
        e(f"v_mul_f32 v26, {fl(LOG2E)}, v26")
        e("v_mul_f32 v27, 0.15915494, v27")
        S = lambda j: 40 + 2 * j
        Gt = lambda T: 74 + 2 * (T - 1)
        Pn = lambda n: 88 + 2 * n
        S32, S64, S128 = 138, 140, 142
        def direct(dst, t, a, b, c):
            if t == 1:
                e(f"v_exp_f32 v{a}, v26\nv_fract_f32 v{b}, v27")
            else:
                e(f"v_mul_f32 v{a}, {fl(float(t))}, v26\nv_mul_f32 v{b}, {fl(float(t))}, v27")
                e(f"v_exp_f32 v{a}, v{a}\nv_fract_f32 v{b}, v{b}")
            e(f"v_cos_f32 v{c}, v{b}\nv_sin_f32 v{b}, v{b}\ns_nop 0")
            e(f"v_mul_f32 v{dst}, v{a}, v{c}\nv_mul_f32 v{dst+1}, v{a}, v{b}")
        e(f"s_mul_i32 s{S_T0}, s{S_WV}, {TABW}")
        e(f"v_lshl_add_u32 v34, v1, 2, s{S_T0}")
        st = {"n": 0}
        def pair(ent, jobs, srcs, neg=False):
            self.cmul_list(jobs)
            pk = 128 + 2*(st["n"] & 3); st["n"] += 1
            grp = ent >> 2; ad = 136 + (grp & 1)
            if (ent & 3) == 0 or st.get(ad) != grp:
                e(f"v_add_u32 v{ad}, {L_TAB + grp*4*TPITCH}, v34"); st[ad] = grp
            for i in range(2):
                if srcs[i] is None: e(f"v_mov_b32 v{pk+i}, 0x3f80")
                else: e(f"v_cvt_pk_bf16_f32 v{pk+i}, v{srcs[i]}, {'-' if neg else ''}v{srcs[i]+1}")
            o = 68*(ent & 3)
            e(f"ds_write2_b32 v{ad}, v{pk}, v{pk+1} offset0:{o} offset1:{o+68}")
        direct(S(1), 1, 120, 121, 122)
        pair(0, [], [None, S(1)])
        direct(S(16), 16, 123, 124, 125)
        pair(2, [(S(2), S(1), S(1)), (Pn(0), 30, 28), (S(3), S(2), S(1))], [S(2), S(3)])
        direct(Gt(1), 256, 120, 121, 122)
        pair(48, [(Pn(1), Pn(0), S(16)), (S32, S(16), S(16))], [Pn(0), Pn(1)], True)
        pair(4, [(S(4), S(2), S(2)), (S(5), S(3), S(2))], [S(4), S(5)])
        pair(6, [(S(6), S(4), S(2)), (S(7), S(4), S(3))], [S(6), S(7)])
        pair(50, [(Pn(2), Pn(0), S32), (Pn(3), Pn(1), S32), (S64, S32, S32)], [Pn(2), Pn(3)], True)
        pair(8, [(S(8), S(4), S(4)), (S(9), S(5), S(4))], [S(8), S(9)])
        pair(10, [(S(10), S(8), S(2)), (S(11), S(8), S(3))], [S(10), S(11)])
        pair(52, [(Pn(4), Pn(0), S64), (Pn(5), Pn(1), S64)], [Pn(4), Pn(5)], True)
        pair(54, [(Pn(6), Pn(2), S64), (Pn(7), Pn(3), S64), (S128, S64, S64)], [Pn(6), Pn(7)], True)
        pair(12, [(S(12), S(8), S(4)), (S(13), S(8), S(5))], [S(12), S(13)])
        pair(14, [(S(14), S(8), S(6)), (S(15), S(8), S(7))], [S(14), S(15)])
        aux = [[(Gt(2), Gt(1), Gt(1))], [(Gt(3), Gt(2), Gt(1))], [(Gt(4), Gt(2), Gt(2))], []]
        for i in range(4):
            pair(56 + 2*i, [(Pn(8+2*i), Pn(2*i), S128), (Pn(9+2*i), Pn(2*i+1), S128)] + aux[i], [Pn(8+2*i), Pn(9+2*i)], True)
        ents = {0: [(1, 0), (1, 2), (1, 4), (1, 6), (1, 8), (4, 0), (4, 8), (4, 16)],
                1: [(1, 8), (1, 10), (1, 12), (1, 14), (1, 16), (5, 0), (5, 8), (5, 16)],
                2: [(2, 0), (2, 4), (2, 8), (2, 12), (2, 16), (6, 0), (6, 8), (6, 16)],
                3: [(3, 0), (3, 4), (3, 8), (3, 12), (3, 16), (7, 0), (7, 8), (7, 16)]}
        extra = {(0, 0): (Gt(5), Gt(4), Gt(1)), (2, 0): (Gt(6), Gt(4), Gt(2)), (3, 0): (Gt(7), Gt(4), Gt(3))}
        tb = 0
        for q in range(4):
            for h in range(4):
                two = ents[q][2*h:2*h+2]; base = 88 + 4*(tb & 3); tb += 1
                jobs = []; srcs = []
                for i, (T, j) in enumerate(two):
                    if j == 0: srcs.append(Gt(T))
                    else: jobs.append((base + 2*i, Gt(T), S(j))); srcs.append(base + 2*i)
                if (q, h) in extra: jobs.append(extra[(q, h)])
                pair(16 + 16*(h >> 1) + 4*q + 2*(h & 1), jobs, srcs)
        body = self.p.take()
        self.p.put(keep + spread(body, [(0, c) for c in chunks]))

    def kgen_post(self, post_b2=None):
        e = self.e
        e(f"s_lshr_b32 s{S_T2}, s{S_WV}, 1\ns_mul_i32 s{S_T0}, s{S_T2}, {2*TABW}")
        e(f"v_and_b32 v6, 15, v1\nv_mul_u32_u24 v3, {TPITCH}, v6")
        e("v_lshrrev_b32 v7, 4, v1\nv_lshl_add_u32 v3, v7, 4, v3")
        e(f"v_add_u32 v3, s{S_T0}, v3")
        e(f"s_and_b32 s{S_T1}, s{S_WV}, 1\ns_mul_i32 s{S_T1}, s{S_T1}, {16*TPITCH}\nv_add_u32 v4, s{S_T1}, v3")
        e(f"s_mul_i32 s{S_T2}, s{S_T2}, {KCH}\ns_add_u32 s{S_T2}, s{S_T2}, {L_K}")
        e(f"v_lshlrev_b32 v6, 5, v6\nv_sub_u32 v6, s{S_T2}, v6")
        e("v_lshlrev_b32 v9, 9, v7\nv_sub_u32 v9, v6, v9")
        e("s_waitcnt lgkmcnt(0)\ns_barrier")
        self.stamp(21)
        F = 40; toks = {}
        for ks in range(8):
            o = L_TAB + (ks >> 2)*TABW + (ks & 3)*64; r = F + 12*ks
            self.tok(f"ds_read_b128 {vr(r+8,4)}, v3 offset:{o + 48*TPITCH}")
            toks[(ks, 0)] = self.tok(f"ds_read_b128 {vr(r,4)}, v4 offset:{o}")
            toks[(ks, 1)] = self.tok(f"ds_read_b128 {vr(r+4,4)}, v3 offset:{o + 32*TPITCH}")
        A0 = 136; A2 = 140
        for ks in range(8):
            r = F + 12*ks
            for b, acc in ((0, A0), (1, A2)):
                self.wait(toks[(ks, b)])
                e(f"v_mfma_f32_16x16x32_bf16 {vr(acc,4)}, {vr(r+4*b,4)}, {vr(r+8,4)}, {vr(acc,4) if ks else '0'}")
        e("s_barrier")
        if post_b2: post_b2()
        h1 = self.lab("kh1"); jn = self.lab("kj")
        e(f"s_bitcmp1_b32 s{S_WV}, 0\ns_cbranch_scc1 {h1}")
        def cv(d, lst):
            for i, (a, b) in enumerate(lst): e(f"v_cvt_pk_bf16_f32 v{d+i}, v{a}, v{b}")
        O = KODD - 4
        e("v_lshlrev_b32 v8, 3, v7\nv_sub_u32 v8, v6, v8")
        f0, f1, f2 = A2+1, A2+2, A2+3
        cv(52, [(f2, f2), (f2, f2), (f1, f1), (f1, f1), (f1, f1), (f1, f0), (f0, f0), (f0, f0)])
        e(f"ds_write_b128 v9, v[52:55] offset:{2*(2032-1024)}")
        cv(60, [(f2, f2), (f2, f2), (f2, f1), (f1, f1), (f1, f1), (f1, f1), (f0, f0), (f0, f0)])
        e(f"ds_write_b128 v9, v[56:59] offset:{2*(2032-1024)+16}")
        cv(48, [(A0+3, A0+2), (A0+1, A0), (A0+2, A0+1)])
        e(f"ds_write_b128 v9, v[60:63] offset:{2*(2032-1024) + O}")
        e(f"ds_write_b128 v9, v[64:67] offset:{2*(2032-1024) + O + 16}")
        e(f"ds_write_b64 v8, v[48:49] offset:{2*2044}")
        e(f"ds_write_b16 v8, v48 offset:{2*2044 + O + 2}")
        e(f"ds_write_b32 v8, v50 offset:{2*2044 + O + 4}")
        e(f"ds_write_b16_d16_hi v8, v49 offset:{2*2044 + O + 8}")
        e(f"s_branch {jn}")
        self.label(h1)
        e("v_lshlrev_b32 v8, 4, v7\nv_sub_u32 v8, v6, v8")
        E_ = lambda j: A0 + j if j < 4 else A2
        C = lambda lst: [(E_(a), E_(b)) for a, b in lst]
        cv(52, C([(4, 4), (3, 3), (3, 2), (2, 2), (2, 2), (1, 1), (1, 0), (0, 0)]))
        e("s_mov_b32 exec_lo, 0")
        e(f"ds_write_b128 v9, v[52:55] offset:{2*2032}\nds_write_b128 v9, v[56:59] offset:{2*2032+16}")
        e("s_mov_b32 exec_lo, -1")
        cv(60, C([(4, 4), (4, 3), (3, 3), (2, 2), (2, 2), (2, 1), (1, 1), (0, 0)]))
        e("s_mov_b32 exec_lo, 0")
        e(f"ds_write_b128 v9, v[60:63] offset:{2*2032 + O}\nds_write_b128 v9, v[64:67] offset:{2*2032 + O + 16}")
        e("s_mov_b32 exec_lo, -1")
        cv(40, C([(4, 3), (2, 2), (2, 1), (0, 0), (4, 4), (3, 2), (2, 2), (1, 0)]))
        e("s_mov_b32 exec_hi, 0")
        e(f"ds_write_b128 v8, v[40:43] offset:{2*(2040-256)}\nds_write_b128 v8, v[44:47] offset:{2*(2040-256) + O}")
        e(f"ds_write_b16 v8, v43 offset:{2*(2040-256) + O + 16}")
        e("s_mov_b32 exec_hi, -1")
        self.label(jn)

    def spin_check(self, retry_label, out_label=None):
        e = self.e
        e(f"s_sub_u32 s{S_SPIN}, s{S_SPIN}, 1")
        e(f"s_cmp_lg_u32 s{S_SPIN}, 0")
        e(f"s_cbranch_scc1 {retry_label}")
    def hbuild(self, after_first=None, mid=None):
        e = self.e
        e("v_lshlrev_b32 v3, 6, v0")
        e("v_and_b32 v4, 3, v1")
        e(f"v_mul_u32_u24 v4, {3072*8}, v4")
        e("v_lshrrev_b32 v5, 3, v1")
        e("v_min_u32 v5, 5, v5")
        e("v_lshl_add_u32 v4, v5, 12, v4")
        e("v_bfe_u32 v6, v1, 2, 1")
        e("v_lshl_add_u32 v4, v6, 3, v4")
        e(f"s_lshl_b32 s{S_T0}, s{S_D0}, 3")
        e(f"s_add_u32 s{S_T0}, s{S_T0}, {WS_MODP}")
        e(f"s_mov_b32 s{S_T1}, {WS_ST1}")
        e(f"s_lshl_b32 s{S_T2}, s{S_D0}, 13\ns_add_u32 s{S_T2}, s{S_T2}, {hx(WS_XB)}")
        e(f"s_mov_b32 s{S_SPIN}, {self.cfg['spin']}")
        rt = self.lab("h0"); ok = self.lab("h0ok"); ck = self.lab("h0ck")
        def pl():
            self.tok(f"buffer_load_dwordx2 v[8:9], v4, s[{S_WS}:{S_WS+3}], s{S_T0} offen sc1")
            for i in range(4):
                t_ = self.tok(f"buffer_load_dwordx4 v[{40+4*i}:{43+4*i}], v3, s[{S_WS}:{S_WS+3}], s{S_T1} offen offset:{16*i} sc1")
            for i in range(4):
                t_ = self.tok(f"buffer_load_dwordx4 v[{20+4*i}:{23+4*i}], v3, s[{S_WS}:{S_WS+3}], s{S_T2} offen offset:{16*i} sc1")
            return t_
        if after_first:
            t_ = pl(); after_first(); self.wait(t_)
            e(f"s_branch {ck}")
            keep = self.p.take()
            self.label(rt); pl(); e("s_waitcnt vmcnt(0)"); e(f"s_branch {ck}")
            self.ool += self.p.take(); self.p.put(keep[:-1])
            self.label(ck)
        else:
            self.label(rt); pl(); e("s_waitcnt vmcnt(0)")
        e(f"v_mov_b32 v10, s{S_TAG}")
        for i in range(8):
            e(f"v_min3_u32 v11, v{41+2*i}, v{21+2*i}, {'v11' if i else 'v9'}")
            e(f"v_max3_u32 v12, v{41+2*i}, v{21+2*i}, {'v12' if i else 'v9'}")
        e("v_xor_b32 v11, v11, v10\nv_xor_b32 v12, v12, v10\nv_or_b32 v7, v11, v12")
        e("v_cmp_ne_u32 vcc, 0, v7")
        e(f"s_cbranch_vccz {ok}")
        self.spin_check(rt)
        self.label(ok)
        self.stamp(4)
        keep_ = self.p.take()
        e("v_add_f32_dpp v8, v8, v8 quad_perm:[1,0,3,2] row_mask:0xf bank_mask:0xf")
        for i in range(4): e(f"v_lshlrev_b32 v{64+i}, 16, v{40+2*i}")
        e("v_add_f32_dpp v8, v8, v8 quad_perm:[2,3,0,1] row_mask:0xf bank_mask:0xf")
        for i in range(4, 8): e(f"v_lshlrev_b32 v{64+i}, 16, v{40+2*i}")
        e("v_cvt_pk_bf16_f32 v8, v8, v8\nv_rcp_f32 v64, v64\nv_and_b32 v8, 0xffff0000, v8\nv_rcp_f32 v65, v65")
        e("v_add_f32 v9, 1.0, v8\nv_rcp_f32 v66, v66")
        e("v_cvt_pk_bf16_f32 v9, v9, v9\nv_rcp_f32 v67, v67\nv_and_b32 v9, 0xffff0000, v9")
        X = 72; Hh = 88; Z = 104
        for i in range(8):
            if i < 6:
                src = 9 if i in (1, 4) else 8
                e(f"v_readlane_b32 s{S_M+2*i}, v{src}, {8*i}")
                e(f"v_readlane_b32 s{S_M+2*i+1}, v{src}, {8*i+4}")
            if i >= 4: e(f"v_rcp_f32 v{64+i}, v{64+i}")
            e(f"v_and_b32 v{56+i}, 0xffff0000, v{40+2*i}")
            k_ = i >> 1; src_ = 20 + 4*k_ + 2*(i & 1); dst_ = X + 8*(k_ & 1) + 4*(k_ >> 1) + 2*(i & 1)
            e(f"v_lshlrev_b32 v{dst_}, 16, v{src_}")
            e(f"v_and_b32 v{dst_+1}, 0xffff0000, v{src_}")
        sa, sA, ga, sb, sB, gb = [S_M + 2*i for i in range(6)]
        e(f"v_mov_b32 v16, s{ga}\nv_mov_b32 v17, s{ga+1}")
        for k in range(8):
            e(f"v_pk_add_f32 {vr(Hh+2*k,2)}, {vr(X+2*k,2)}, {vr(56+2*(k&3),2)} neg_lo:[0,1] neg_hi:[0,1]")
        e(f"v_mul_f32 v10, s{sA}, v16\nv_mul_f32 v11, s{sA+1}, v17")
        e(f"v_mul_f32 v12, s{sa}, v16\nv_mul_f32 v13, s{sa+1}, v17")
        e(f"s_lshl_b32 s{S_T0}, s{S_DSK}, 16\ns_and_b32 s{S_T1}, s{S_DSK}, 0xffff0000")
        e(f"v_mov_b32 v14, s{S_T0}\nv_mov_b32 v15, s{S_T1}")
        for k in range(8):
            e(f"v_pk_mul_f32 {vr(Hh+2*k,2)}, {vr(Hh+2*k,2)}, {vr(64+2*(k&3),2)}")
        for k in range(8):
            c = k >> 2
            e(f"v_pk_fma_f32 {vr(Hh+2*k,2)}, {vr(Hh+2*k,2)}, v[10:11], v[12:13] op_sel:[0,{c},{c}] op_sel_hi:[1,{c},{c}]")
        e(f"v_lshlrev_b32 v3, 4, v0\nv_add_u32 v3, {L_HI + 512}, v3")
        e(f"v_lshlrev_b32 v4, 5, v0\nv_add_u32 v4, {L_Z}, v4")
        for ch in range(2):
            for j in range(4):
                e(f"v_cvt_pk_bf16_f32 v{120+4*ch+j}, v{Hh+8*ch+2*j}, v{Hh+8*ch+2*j+1}")
            e(f"ds_write_b128 v3, v[{120+4*ch}:{123+4*ch}] offset:{HCH*ch}")
        for k in range(8):
            c = k >> 2
            e(f"v_pk_fma_f32 {vr(Z+2*k,2)}, {vr(Hh+2*k,2)}, v[14:15], {vr(X+2*k,2)} op_sel:[0,{c},0] op_sel_hi:[1,{c},1]")
            if k & 1: e(f"ds_write_b128 v4, {vr(Z+2*k-2,4)} offset:{8192*c + 16*((k>>1)&1)}")
        body_ = self.p.take()
        self.p.put(keep_ + spread(body_, [(0, c_) for c_ in (mid() if mid else [])]))
        nm = self.lab("nomodf")
        e(f"s_cmp_lg_u32 s{S_WV}, 0")
        e(f"s_cbranch_scc1 {nm}")
        e(f"s_lshr_b32 s{S_T0}, s{sB}, 16\ns_or_b32 s{S_T0}, s{S_T0}, s{sb}")
        e(f"s_lshr_b32 s{S_T1}, s{sB+1}, 16\ns_or_b32 s{S_T1}, s{S_T1}, s{sb+1}")
        e(f"v_mov_b32 v20, s{S_T0}\nv_mov_b32 v21, s{S_TAG}\nv_mov_b32 v22, s{gb}\nv_mov_b32 v23, s{S_TAG}")
        e(f"v_writelane_b32 v20, s{S_T1}, 1\nv_writelane_b32 v22, s{gb+1}, 1")
        e("v_lshlrev_b32 v19, 4, v1")
        e(f"s_lshl_b32 s{S_T0}, s{S_D0}, 4\ns_add_u32 s{S_T0}, s{S_T0}, {WS_MODF}")
        e("s_mov_b64 exec, 3")
        self.p.nc(f"buffer_store_dwordx4 v[20:23], v19, s[{S_WS}:{S_WS+3}], s{S_T0} offen sc1")
        e("s_mov_b64 exec, -1")
        self.label(nm)
    def conv(self, fillers=None, pre_start=None, pre_bar=None, post_bar=None):
        e = self.e
        ACC = 4
        FA = [40, 104]; FB = [72, 136]
        e(f"s_lshr_b32 s{S_T2}, s{S_WV}, 1")
        e(f"s_and_b32 s{S_T3}, s{S_WV}, 1")
        e("v_and_b32 v36, 15, v1\nv_lshrrev_b32 v37, 4, v1")
        e("v_lshlrev_b32 v38, 3, v37")
        e("v_sub_u32 v38, v38, v36")
        e("v_add_u32 v38, 2031, v38")
        e("v_lshrrev_b32 v38, 1, v38")
        e("v_and_b32 v39, 1, v1\nv_xor_b32 v39, 1, v39")
        e(f"v_mul_u32_u24 v39, {KODD}, v39")
        e("v_lshl_add_u32 v38, v38, 2, v39")
        e(f"s_mul_i32 s{S_T0}, s{S_T2}, {KCH}")
        e(f"s_lshl_b32 s{S_T1}, s{S_T3}, 8")
        e(f"s_sub_u32 s{S_T0}, s{S_T0}, s{S_T1}")
        e(f"s_add_u32 s{S_T0}, s{S_T0}, {L_K - 192 - 512}")
        for j in range(4):
            e(f"v_add_u32 v{168+j}, s{S_T0}, v38")
            if j < 3: e(f"s_sub_u32 s{S_T0}, s{S_T0}, 1024")
        e("v_lshlrev_b32 v38, 5, v36")
        e("v_lshl_add_u32 v38, v37, 4, v38")
        e(f"s_mul_i32 s{S_T0}, s{S_T2}, {HCH}")
        e(f"s_sub_u32 s{S_T0}, s{S_T0}, s{S_T1}")
        e(f"s_add_u32 s{S_T0}, s{S_T0}, {L_HI + 480 - 192}")
        e(f"v_add_u32 v172, s{S_T0}, v38")
        e("v_lshl_add_u32 v38, v36, 5, v38")
        e(f"s_lshl_b32 s{S_T0}, s{S_T2}, 13")
        e(f"s_lshl_b32 s{S_T1}, s{S_T3}, 12")
        e(f"s_add_u32 s{S_T0}, s{S_T0}, s{S_T1}")
        e(f"s_add_u32 s{S_T0}, s{S_T0}, {L_Z}")
        e(f"v_add_u32 v173, s{S_T0}, v38")
        if pre_start: pre_start()
        e("s_waitcnt lgkmcnt(0)")
        e("s_barrier")
        self.stamp(5)
        p1 = self.lab("cp1"); jn = self.lab("cj")
        e(f"s_cmp_lg_u32 s{S_T3}, 0")
        e(f"s_cbranch_scc1 {p1}")
        for par in range(2):
            for c in range(4):
                r = ACC + 4 * (4*par + c)
                e(f"ds_read_b128 v[{r}:{r+3}], v173 offset:{1024*c}")
            for r in range(16): e(f"v_mov_b32 v{ACC + 16*(1-par) + r}, 0")
            if par == 0:
                e(f"s_branch {jn}"); self.label(p1)
        self.label(jn)
        def loads(it):
            s = it & 1; L = []; o = 16 * (3 - it)
            tk = {}
            for k in range(8):
                tk[("B", k)] = self.tok(f"ds_read_b128 {vr(FB[s]+4*k,4)}, v172 offset:{512*k + 64*(3-it)}")
                b = 168 + (k >> 1); oo = o + (0 if k & 1 else 128)
                self.tok(f"ds_read2_b32 {vr(FA[s]+4*k,2)}, v{b} offset0:{oo} offset1:{oo+1}")
                tk[("A", k)] = self.tok(f"ds_read2_b32 {vr(FA[s]+4*k+2,2)}, v{b} offset0:{oo+2} offset1:{oo+3}")
            return tk
        pre = self.p.take()
        tks = [None] * 4
        tks[0] = loads(0)
        main = self.p.take()
        carry = []
        for it in range(4):
            nxt = []
            if it < 3:
                tks[it+1] = loads(it+1); nxt = self.p.take()
            s = it & 1
            order = sorted([(u, v) for u in range(8) for v in range(8 - u)], key=lambda t: (max(t), t[0]))
            seen = set(); k = 0
            for (u, v) in order:
                need = [t for t in (("A", u), ("B", v)) if t not in seen]
                if need:
                    self.wait(*[tks[it][t] for t in need]); seen |= set(need)
                cb = u + v
                e(f"v_mfma_f32_16x16x32_bf16 {vr(ACC+4*cb,4)}, {vr(FA[s]+4*u,4)}, {vr(FB[s]+4*v,4)}, {vr(ACC+4*cb,4)}")
                if nxt and (it > 0 or k >= 12):
                    self.p.put([nxt.pop(0)])
                k += 1
            self.p.put(nxt)
            seg = self.p.take()
            if it == 0: seg = main + seg; main = []
            carry = carry + (fillers.get(it, []) if fillers else [])
            seg, carry = merge(seg, carry, 8, pace=self.cfg["cpace"])
            if it == 3: seg += carry; carry = []
            main += seg
        self.p.put(pre + main)
        self.stamp(6)
        e(f"s_lshl_b32 s{S_T0}, s{S_WV}, 12")
        e(f"s_add_u32 s{S_T0}, s{S_T0}, {L_Z}")
        e(f"v_lshl_add_u32 v36, v1, 4, s{S_T0}")
        e(f"s_xor_b32 s{S_T1}, s{S_WV}, 1\ns_lshl_b32 s{S_T1}, s{S_T1}, 12\ns_add_u32 s{S_T1}, s{S_T1}, {L_Z}")
        e(f"v_lshl_add_u32 v37, v1, 4, s{S_T1}")
        if pre_bar: pre_bar()
        p1 = self.lab("ep1"); jn = self.lab("ej")
        e(f"s_cmp_lg_u32 s{S_T3}, 0")
        e(f"s_cbranch_scc1 {p1}")
        for par in range(2):
            e("s_nop 7")
            for c in range(4):
                r = ACC + 4 * (4*(1-par) + c)
                e(f"ds_write_b128 v36, {vr(r,4)} offset:{1024*c}")
            e("s_waitcnt lgkmcnt(0)")
            e("s_barrier")
            for c in range(4): e(f"ds_read_b128 {vr(40+4*c,4)}, v37 offset:{1024*c}")
            for c in range(4):
                e(f"s_waitcnt lgkmcnt({3-c})")
                r = ACC + 4 * (4*par + c)
                e(f"v_pk_add_f32 {vr(40+4*c,2)}, {vr(40+4*c,2)}, {vr(r,2)}")
                e(f"v_pk_add_f32 {vr(42+4*c,2)}, {vr(42+4*c,2)}, {vr(r+2,2)}")
            if par == 0:
                e(f"s_branch {jn}"); self.label(p1)
        self.label(jn)
        sB = S_M + 8
        e(f"s_cmp_eq_u32 s{S_T2}, 0")
        e(f"s_cselect_b32 s{S_T0}, s{sB}, s{sB+1}")
        e(f"v_mov_b32 v38, s{S_T0}\nv_mov_b32 v39, s{S_T0}")
        e("v_and_b32 v56, 15, v1\nv_lshrrev_b32 v57, 4, v1")
        e("v_lshrrev_b32 v58, 1, v56")
        e("v_and_b32 v59, 1, v57")
        e("v_lshl_add_u32 v58, v59, 3, v58")
        e("v_lshlrev_b32 v58, 15, v58")
        e("v_and_b32 v56, 1, v56")
        e("v_lshl_add_u32 v58, v56, 5, v58")
        e("v_lshrrev_b32 v57, 1, v57")
        e("v_lshl_add_u32 v58, v57, 4, v58")
        e(f"s_add_u32 s{S_T0}, s{S_D0}, s{S_T2}")
        e(f"s_lshl_b32 s{S_T0}, s{S_T0}, 6")
        e(f"s_lshl_b32 s{S_T1}, s{S_T3}, 20")
        e(f"s_add_u32 s{S_T0}, s{S_T0}, s{S_T1}")
        e(f"s_add_u32 s{S_T1}, s{S_T0}, {hx(WS_X1S)}")
        e(f"s_add_u32 s{S_T0}, s{S_T0}, {hx(WS_X1)}")
        if post_bar: post_bar()
        for pr in range(2):
            a = 40 + 8*pr
            d = 60 + 8*pr
            for h in range(4): e(f"v_pk_mul_f32 {vr(76+2*h,2)}, {vr(a+2*h,2)}, v[38:39]")
            for h in range(4): e(f"v_cvt_pk_bf16_f32 v{d+h}, v{76+2*h}, v{77+2*h}")
            for h in range(4): e(f"v_cvt_pk_bf16_f32 v{d+4+h}, v{a+2*h}, v{a+2*h+1}")
            e(f"v_permlane16_swap_b32 v{d}, v{d+2}\nv_permlane16_swap_b32 v{d+1}, v{d+3}")
            e(f"buffer_store_dwordx4 {vr(d,4)}, v58, s[{S_WS}:{S_WS+3}], s{S_T1} offen sc1")
            e(f"v_permlane16_swap_b32 v{d+4}, v{d+6}\nv_permlane16_swap_b32 v{d+5}, v{d+7}")
            e(f"buffer_store_dwordx4 {vr(d+4,4)}, v58, s[{S_WS}:{S_WS+3}], s{S_T0} offen sc1")
            if pr == 0:
                e(f"s_add_u32 s{S_T0}, s{S_T0}, {hx(16*32768)}\ns_add_u32 s{S_T1}, s{S_T1}, {hx(16*32768)}")
        self.stamp(7)
    def g1_map(self):
        e = self.e
        e(f"s_lshr_b32 s{S_G1}, s{S_XCD}, 1\ns_lshl_b32 s{S_G1}, s{S_G1}, 2")
        e(f"s_and_b32 s{S_T0}, s{S_IDX}, 3\ns_add_u32 s{S_G1}, s{S_G1}, s{S_T0}")
        e(f"s_and_b32 s{S_G2}, s{S_XCD}, 1\ns_mul_i32 s{S_G2}, s{S_G2}, 7")
        e(f"s_lshr_b32 s{S_T0}, s{S_IDX}, 2\ns_add_u32 s{S_G2}, s{S_G2}, s{S_T0}")
        e(f"s_lshl_b32 s{S_G2}, s{S_G2}, 7")
        e(f"s_lshl_b32 s{S_T0}, s{S_WV}, 5\ns_add_u32 s{S_G2}, s{S_G2}, s{S_T0}")
    def g1_epilogue(self, g, acc, stat):
        e = self.e
        save = self.p.take()
        T = 148
        rG, mG, rU, mU = stat, stat+1, stat+2, stat+3
        for t in range(2):
            for half in range(2):
                regs = [4*half + j for j in range(4)]
                gq = [T + j for j in range(4)]; uq = [T + 4 + j for j in range(4)]; q = [T + 8 + j for j in range(4)]
                if half: gq = [x + 12 for x in gq]; uq = [x + 12 for x in uq]; q = [x + 12 for x in q]
                for j, r in enumerate(regs): e(f"v_fma_f32 v{gq[j]}, v{mG}, v{self.U1+16*t+r}, v{self.U2+16*t+r}")
                for j, r in enumerate(regs): e(f"v_fmac_f32 v{gq[j]}, v{rG}, v{acc+16*t+r}")
                for j in range(4): e(f"v_fma_f32 v{q[j]}, -v{gq[j]}, v{gq[j]}, s{S_T3}")
                for j in range(4): e(f"v_mul_f32 v{q[j]}, v{gq[j]}, v{q[j]}")
                for j, r in enumerate(regs):
                    e(f"v_exp_f32 v{q[j]}, v{q[j]}")
                    e(f"v_fma_f32 v{uq[j]}, v{mU}, v{self.U1+16*t+8+r}, v{self.U2+16*t+8+r}")
                for j, r in enumerate(regs):
                    e(f"v_add_f32 v{q[j]}, 1.0, v{q[j]}")
                    e(f"v_fmac_f32 v{uq[j]}, v{rU}, v{acc+16*t+8+r}")
                for j in range(4):
                    e(f"v_rcp_f32 v{q[j]}, v{q[j]}")
                    e(f"v_mul_f32 v{uq[j]}, v{gq[j]}, v{uq[j]}")
                for j in range(4): e(f"v_mul_f32 v{uq[j]}, v{uq[j]}, v{q[j]}")
                e(f"v_cvt_pk_bf16_f32 v{172+2*half}, v{uq[0]}, v{uq[1]}")
                e(f"v_cvt_pk_bf16_f32 v{173+2*half}, v{uq[2]}, v{uq[3]}")
            e(f"s_add_u32 s101, s{S_T2}, {g*112*1024 + t*1024}")
            tk_ = self.tok(f"buffer_store_dwordx4 v[172:175], v147, s[{S_WS}:{S_WS+3}], s101 offen sc1")
        if hasattr(self, "htok"): self.htok[g] = tk_
        out = self.p.take(); self.p.put(save)
        return out
    def g2_map(self):
        e = self.e
        e(f"s_lshl_b32 s{S_G1}, s{S_XCD}, 1\ns_bfe_u32 s{S_T0}, s{S_IDX}, 0x10004\ns_add_u32 s{S_G1}, s{S_G1}, s{S_T0}")
        e(f"s_lshl_b32 s{S_G1}, s{S_G1}, 2")
        e(f"s_bfe_u32 s{S_T0}, s{S_IDX}, 0x10003")
        e(f"s_sub_u32 s{S_G2}, s{S_G1}, s{S_T0}\ns_add_u32 s{S_G2}, s{S_G2}, 3")
        e(f"s_add_u32 s{S_G1}, s{S_G1}, s{S_T0}")
        e(f"s_and_b32 s{S_G3}, s{S_IDX}, 7")
    XT = lambda self, g: (3 - g) * 32768
    S_HB = 81
    def x1s_issue(self, g):
        t = None
        for j in range(8):
            if j % 4 == 0:
                self.e(f"s_add_u32 m0, s{S_T1}, {self.XT(g) + j*1024}")
                self.e(f"s_add_u32 s13, s{S_T0}, {g*32768 + j*1024}")
            t = self.tok(f"buffer_load_dwordx4 v147, s[{S_WS}:{S_WS+3}], s13 offen offset:{(j%4)*1024} sc1 lds")
        return t
    def x1s_check(self, g, T, explicit=False):
        e = self.e
        for rnd in range(2):
            tk = [self.tok(f"ds_read_b128 {vr(T+4*j,4)}, v146 offset:{self.XT(g) % 65536 + (4*rnd+j)*1024}".replace("v146", "v146" if self.XT(g) < 65536 else "v143")) for j in range(4)]
            for j in range(4):
                if explicit: e(f"s_waitcnt lgkmcnt({3-j})")
                else: self.wait(tk[j])
                first = (rnd == 0 and j == 0)
                e(f"v_max3_u32 v{T+16}, v{T+4*j}, v{T+4*j+1}, {'0' if first else 'v%d' % (T+16)}")
                e(f"v_max3_u32 v{T+16}, v{T+4*j+2}, v{T+4*j+3}, v{T+16}")
        e(f"v_cmp_eq_u32 vcc, -1, v{T+16}")
    def x1s_guard(self, g, T, tok):
        e = self.e
        rt = self.lab("xr"); lp = self.lab("xl"); bk = self.lab("xb")
        self.wait(tok)
        self.x1s_check(g, T)
        e(f"s_cbranch_vccnz {rt}")
        self.label(bk)
        def rout():
            self.label(rt)
            e(f"s_mov_b32 s{S_SPIN}, {self.cfg['spin']}")
            self.label(lp)
            self.x1s_issue(g)
            e("s_waitcnt vmcnt(0) lgkmcnt(0)")
            self.x1s_check(g, T, explicit=True)
            e("s_nop 1")
            e(f"s_cbranch_vccz {bk}")
            self.spin_check(lp)
            e(f"s_branch {bk}")
        o, _ = self.capture(rout); self.ool += o
    def modf_issue(self):
        self.e(f"v_lshlrev_b32 v236, 5, v0\ns_mov_b32 s101, {WS_MODF}")
        self.tok(f"buffer_load_dwordx2 v[232:233], v236, s[{S_WS}:{S_WS+3}], s101 offen sc1")
        return self.tok(f"buffer_load_dwordx2 v[234:235], v236, s[{S_WS}:{S_WS+3}], s101 offen offset:16 sc1")
    def xfill(self):
        e = self.e
        e("v_mov_b32 v248, -1\nv_mov_b32 v249, -1\nv_mov_b32 v250, -1\nv_mov_b32 v251, -1")
        e("v_lshrrev_b32 v252, 3, v0\nv_lshlrev_b32 v252, 15, v252\nv_and_b32 v253, 7, v0\nv_lshl_add_u32 v252, v253, 4, v252")
        t = None
        for base in (WS_X1S, WS_X1S + 32*32768, WS_X1, WS_X1 + 32*32768):
            e(f"s_lshl_b32 s101, s{S_D0}, 6\ns_add_u32 s101, s101, {hx(base)}")
            t = self.tok(f"buffer_store_dwordx4 v[248:251], v252, s[{S_WS}:{S_WS+3}], s101 offen sc1") if not self.cfg.get('nofill') else None
        return t
    def gate_pub(self):
        e = self.e
        sk = self.lab("gp")
        e(f"s_cmp_lg_u32 s{S_WV}, 0\ns_cbranch_scc1 {sk}")
        e(f"s_lshl_b32 s101, s{S_D0}, 5\ns_add_u32 s101, s101, {WS_FL1}")
        e(f"v_mov_b32 v252, 0\nv_mov_b32 v253, s{S_TAG}")
        self.p.nc(f"buffer_store_dword v253, v252, s[{S_WS}:{S_WS+3}], s101 offen sc1")
        self.label(sk)
    S_FB = 3
    def hbase(self):
        e = self.e
        e(f"s_mul_i32 s{self.S_HB}, s{S_G1}, {4*112*1024}")
        e(f"s_lshl_b32 s101, s{S_G2}, 6")
        e(f"s_add_u32 s{self.S_HB}, s{self.S_HB}, s101")
        e(f"s_add_u32 s{self.S_HB}, s{self.S_HB}, {hx(WS_H)}")
        e(f"s_mul_i32 s{self.S_FB}, s{S_G1}, {4*56*64}")
        e(f"s_lshl_b32 s101, s{S_G2}, 1")
        e(f"s_add_u32 s{self.S_FB}, s{self.S_FB}, s101")
        e(f"s_add_u32 s{self.S_FB}, s{self.S_FB}, {WS_FL2}")
        e(f"s_cmp_ge_u32 s{S_IDX}, 28")
        e(f"s_cselect_b32 s{self.S_FB}, 0x7f000000, s{self.S_FB}")
    def hflag(self, g, vz, vt):
        self.wait(self.htok[g])
        self.e(f"s_add_u32 s101, s{self.S_FB}, {g*56*64}")
        self.e(f"buffer_store_dword v{vt}, v{vz}, s[{S_WS}:{S_WS+3}], s101 offen sc1")
    def capture(self, fn):
        keep = self.p.take(); r = fn(); out = self.p.take(); self.p.put(keep); return out, r
    def cap(self, fn): return self.capture(fn)[0]
    def guard(self, name, chk, reissue, cond="vccnz"):
        e = self.e
        rt = self.lab(name + "r"); lp = self.lab(name + "l"); bk = self.lab(name + "b")
        chk(False)
        e(f"s_cbranch_vccnz {rt}")
        self.label(bk)
        def rout():
            self.label(rt); e(f"s_mov_b32 s{S_SPIN}, {self.cfg['spin']}"); self.label(lp)
            reissue(); chk(True); e("s_nop 1")
            e(f"s_cbranch_vccz {bk}"); self.spin_check(lp); e(f"s_branch {bk}")
        self.ool += self.cap(rout)

    def p0_issue(self):
        e = self.e; T = self.T = {}
        e(f"s_lshl_b32 s{S_T0}, s2, 13\ns_lshl_b32 s{S_T1}, s{S_WV}, 11\ns_add_u32 s{S_T0}, s{S_T0}, s{S_T1}")
        e("v_lshlrev_b32 v9, 4, v1")
        self.tok(f"buffer_load_dwordx4 v[10:13], v9, s[{S_X}:{S_X+3}], s{S_T0} offen")
        T["xr"] = self.tok(f"buffer_load_dwordx4 v[14:17], v9, s[{S_X}:{S_X+3}], s{S_T0} offen offset:1024")
        e("v_lshrrev_b32 v4, 3, v1\nv_and_b32 v5, 7, v1\nv_lshlrev_b32 v5, 4, v5\nv_lshl_add_u32 v3, v4, 10, v5")
        e(f"s_lshl_b32 s{S_T0}, s{S_IDX}, 16\ns_lshl_b32 s{S_T2}, s{S_XCD}, 7\ns_add_u32 s{S_T0}, s{S_T0}, s{S_T2}")
        e(f"s_lshl_b32 s{S_T2}, s{S_WV}, 14\ns_add_u32 s{S_T0}, s{S_T0}, s{S_T2}")
        e(f"s_add_u32 m0, s{S_T1}, {L_XT}\ns_add_u32 s{S_T2}, s{S_T0}, 8192")
        self.tok(f"buffer_load_dwordx4 v3, s[{S_X}:{S_X+3}], s{S_T0} offen lds")
        e(f"s_add_u32 m0, s{S_T1}, {L_XT + 1024}")
        T["xt"] = self.tok(f"buffer_load_dwordx4 v3, s[{S_X}:{S_X+3}], s{S_T2} offen lds")
        e(f"s_lshl_b32 s{S_T2}, s{S_D0}, 8")
        e(f"v_lshl_add_u32 v8, v0, 1, s{S_T2}")
        for i in range(6): T["ssm"] = self.tok(f"global_load_ushort v{18+i}, v8, s[{P_ARE+2*i}:{P_ARE+2*i+1}]")
        skip = self.lab("nomod"); jn = self.lab("modj")
        e(f"s_cmp_ge_u32 s2, 192\ns_cbranch_scc1 {skip}")
        e(f"s_mul_i32 s{S_M}, s2, 1366\ns_lshr_b32 s{S_M}, s{S_M}, 16")
        e(f"s_mul_i32 s{S_T0}, s{S_M}, 48\ns_sub_u32 s{S_M+1}, s2, s{S_T0}")
        e(f"s_lshl_b32 s{S_T0}, s{S_M}, 8")
        e(f"v_lshl_add_u32 v3, v1, 2, s{S_T0}")
        T["c"] = self.tok(f"global_load_dword v24, v3, s[{P_C}:{P_C+1}]")
        e("v_mul_u32_u24 v3, 6144, v4\nv_add_u32 v3, v3, v5")
        e(f"s_mul_i32 s{S_T0}, s{S_M}, {128*6144}\ns_lshl_b32 s{S_T2}, s{S_M+1}, 7\ns_add_u32 s{S_T0}, s{S_T0}, s{S_T2}")
        e(f"s_mul_i32 s{S_T2}, s{S_WV}, {32*6144}\ns_add_u32 s{S_T0}, s{S_T0}, s{S_T2}")
        e(f"s_lshl_b32 s{S_T1}, s{S_WV}, 12")
        for j in range(4):
            e(f"s_add_u32 m0, s{S_T1}, {L_MOD + 1024*j}")
            if j: e(f"s_add_u32 s{S_T0}, s{S_T0}, {8*6144}")
            T["wm"] = self.tok(f"buffer_load_dwordx4 v3, s[{S_WM}:{S_WM+3}], s{S_T0} offen lds")
        e(f"s_branch {jn}")
        self.label(skip)
        for j in range(5): self.p.nc(f"global_load_dword v24, v9, s[{P_C}:{P_C+1}]")
        self.label(jn)

    def p0_stats(self):
        e = self.e
        e("v_mov_b32 v3, 0x3f803f80")
        self.wait(self.T["xr"])
        for i in range(4):
            c = lambda r: (f"v{r}" if i else "0")
            e(f"v_dot2_f32_bf16 v4, v{10+i}, v3, {c(4)}")
            e(f"v_dot2_f32_bf16 v5, v{10+i}, v{10+i}, {c(5)}")
            e(f"v_dot2_f32_bf16 v6, v{14+i}, v3, {c(6)}")
            e(f"v_dot2_f32_bf16 v7, v{14+i}, v{14+i}, {c(7)}")
        self.reduce16([4, 5, 6, 7])
        e("v_permlane16_swap_b32 v4, v5\nv_permlane16_swap_b32 v6, v7")
        e("v_add_f32 v4, v4, v5\nv_add_f32 v6, v6, v7")
        e("v_permlane32_swap_b32 v4, v6")
        e("v_add_f32 v4, v4, v6")
        e("v_mov_b32 v5, v4")
        e("v_permlane16_swap_b32 v4, v5")
        self.stat_finish(4, 5, 6, 7)
        e(f"v_mov_b32 v5, s{S_TAG}")
        e("v_lshrrev_b32 v6, 2, v1")
        e(f"s_lshl_b32 s{S_T0}, s2, 6\ns_lshl_b32 s{S_T1}, s{S_WV}, 4\ns_add_u32 s{S_T0}, s{S_T0}, s{S_T1}\ns_add_u32 s{S_T0}, s{S_T0}, {WS_ST1}")
        e("s_mov_b32 exec_lo, 1\ns_mov_b32 exec_hi, 1")
        e(f"buffer_store_dwordx2 v[4:5], v6, s[{S_WS}:{S_WS+3}], s{S_T0} offen sc1")
        e("s_mov_b64 exec, -1")

    def p0_xb(self):
        e = self.e
        e(f"s_lshl_b32 s{S_T1}, s{S_WV}, 5\ns_add_u32 s{S_T1}, s{S_T1}, {L_XT}")
        e("v_lshrrev_b32 v25, 2, v1\nv_lshlrev_b32 v25, 7, v25\nv_and_b32 v4, 3, v1\nv_lshl_add_u32 v25, v4, 3, v25")
        e(f"v_add_u32 v3, s{S_T1}, v25")
        e("v_bfe_u32 v4, v1, 1, 3\nv_lshlrev_b32 v4, 14, v4")
        e("v_lshrrev_b32 v5, 4, v1\nv_lshl_add_u32 v4, v5, 5, v4")
        e("v_and_b32 v5, 1, v1\nv_lshl_add_u32 v4, v5, 4, v4")
        e(f"s_lshl_b32 s{S_T0}, s{S_XCD}, 19\ns_lshl_b32 s{S_T1}, s{S_WV}, 17\ns_add_u32 s{S_T0}, s{S_T0}, s{S_T1}")
        e(f"s_lshl_b32 s{S_T1}, s{S_IDX}, 9\ns_add_u32 s{S_T0}, s{S_T0}, s{S_T1}\ns_add_u32 s{S_T0}, s{S_T0}, {hx(WS_XB)}")
        for i in range(4): e(f"v_mov_b32 v{39+4*i}, s{S_TAG}")
        self.wait(self.T["xt"])
        e("s_barrier")
        tk = [self.tok(f"ds_read_b64_tr_b16 v[{36+4*i}:{37+4*i}], v3 offset:{2048*i}") for i in range(4)]
        for i in range(4):
            self.wait(tk[i])
            e(f"v_mov_b32 v{38+4*i}, v{37+4*i}\nv_mov_b32 v{37+4*i}, s{S_TAG}")
            e(f"buffer_store_dwordx4 v[{36+4*i}:{39+4*i}], v4, s[{S_WS}:{S_WS+3}], s{S_T0} offen offset:{128*i}" + ("" if self.cfg.get('xbplain') else " sc1"))

    def p0_mod(self):
        e = self.e
        skip = self.lab("nomod2")
        self.wait(self.T["ssm"])
        e(f"s_cmp_ge_u32 s2, 192\ns_cbranch_scc1 {skip}")
        self.wait(self.T["c"])
        e("v_lshlrev_b32 v3, 16, v24\nv_and_b32 v4, 0xffff0000, v24")
        e(f"v_mul_f32 v5, {fl(-LOG2E)}, v3\nv_mul_f32 v6, {fl(-LOG2E)}, v4")
        e("v_exp_f32 v5, v5\nv_exp_f32 v6, v6")
        e("v_add_f32 v5, 1.0, v5\nv_add_f32 v6, 1.0, v6")
        e("v_rcp_f32 v5, v5\nv_rcp_f32 v6, v6")
        e("v_mul_f32 v3, v3, v5\nv_mul_f32 v4, v4, v6")
        e("v_cvt_pk_bf16_f32 v3, v3, v4")
        e(f"s_lshl_b32 s{S_T0}, s{S_WV}, 8\ns_add_u32 s{S_T0}, s{S_T0}, {L_MOD + 16384}")
        e(f"v_lshl_add_u32 v4, v1, 2, s{S_T0}")
        e("ds_write_b32 v4, v3")
        e("v_lshrrev_b32 v5, 4, v1")
        e(f"v_lshl_add_u32 v4, v5, 4, s{S_T0}")
        e("v_lshl_add_u32 v6, v5, 9, v25")
        e(f"s_lshl_b32 s{S_T1}, s{S_WV}, 5\ns_add_u32 s{S_T1}, s{S_T1}, {L_MOD}")
        e(f"v_add_u32 v6, s{S_T1}, v6")
        self.wait(self.T["wm"])
        e("s_waitcnt lgkmcnt(0)\ns_barrier")
        for ks in range(4):
            e(f"ds_read_b128 v[{52+8*ks}:{55+8*ks}], v4 offset:{64*ks}")
            e(f"ds_read_b64_tr_b16 v[{56+8*ks}:{57+8*ks}], v6 offset:{4096*ks}")
            e(f"ds_read_b64_tr_b16 v[{58+8*ks}:{59+8*ks}], v6 offset:{4096*ks+512}")
        e(f"s_mul_i32 s{S_T0}, s{S_M}, {3072*8}\ns_lshl_b32 s{S_T1}, s{S_M+1}, 9\ns_add_u32 s{S_T0}, s{S_T0}, s{S_T1}")
        e(f"s_lshl_b32 s{S_T1}, s{S_WV}, 7\ns_add_u32 s{S_T0}, s{S_T0}, s{S_T1}\ns_add_u32 s{S_T0}, s{S_T0}, {WS_MODP}")
        e("v_lshlrev_b32 v6, 3, v1")
        for ks in range(4):
            e(f"s_waitcnt lgkmcnt({9-3*ks})")
            e(f"v_mfma_f32_16x16x32_bf16 v[84:87], v[{52+8*ks}:{55+8*ks}], v[{56+8*ks}:{59+8*ks}], {'v[84:87]' if ks else '0'}")
        e("s_barrier")
        e(f"v_mov_b32 v85, s{S_TAG}")
        e("s_mov_b64 exec, 0xffff")
        self.p.nc(f"buffer_store_dwordx2 v[84:85], v6, s[{S_WS}:{S_WS+3}], s{S_T0} offen sc1")
        e("s_mov_b64 exec, -1")
        self.label(skip)

    def touch(self):
        e = self.e
        e(f"s_mul_i32 s{S_T0}, s2, {56*128}")
        e("v_min_u32 v3, 55, v1\nv_lshlrev_b32 v3, 7, v3")
        e(f"v_add_u32 v3, s{S_T0}, v3")
        e(f"s_cmp_eq_u32 s{S_WV}, 0\ns_cselect_b32 s{S_T2}, s{P_WG}, s{P_WU}\ns_cselect_b32 s{S_T3}, s{P_WG+1}, s{P_WU+1}")
        e(f"s_cmp_ge_u32 s{S_WV}, 2\ns_cselect_b32 s{S_T2}, s{P_WD}, s{S_T2}\ns_cselect_b32 s{S_T3}, s{P_WD+1}, s{S_T3}")
        e(f"global_load_dword v253, v3, s[{S_T2}:{S_T3}]")

    def w_setup(self):
        e = self.e
        e(f"s_bitcmp1_b32 s{S_WV}, 0\ns_cselect_b32 s8, s{P_WU}, s{P_WG}\ns_cselect_b32 s9, s{P_WU+1}, s{P_WG+1}")
        e(f"s_cmp_ge_u32 s{S_IDX}, 28\ns_cselect_b32 s10, 0, {hx(0 if self.cfg.get('now') else 1835008)}\ns_mov_b32 s11, 0x20000")
        e("v_lshrrev_b32 v241, 4, v1\nv_mul_u32_u24 v240, 3584, v241")
        e(f"s_and_b32 s13, s{S_WV}, 1\nv_lshl_add_u32 v241, v241, 1, s13")
        e("v_bfe_u32 v242, v1, 1, 3\nv_xor_b32 v241, v241, v242\nv_lshl_add_u32 v240, v241, 5, v240")
        e("v_and_b32 v241, 1, v1\nv_lshl_add_u32 v240, v241, 4, v240")
        e(f"s_lshr_b32 s14, s{S_WV}, 1\ns_mul_i32 s15, s14, {8*3584}")
        e(f"s_and_b32 s101, s{S_G2}, 0xffffff80\ns_lshl_b32 s101, s101, 1\ns_add_u32 s15, s15, s101")
        e(f"v_add_u32 v240, s15, v240\nv_add_u32 v247, {4*3584 - 1024}, v240")
        e("s_lshl_b32 s12, s13, 12\ns_lshl_b32 s14, s14, 11\ns_add_u32 s12, s12, s14")
        e("v_bfe_u32 v241, v1, 4, 1\nv_bfe_u32 v242, v1, 2, 2")
        e("v_lshl_add_u32 v243, v242, 1, v241")
        e(f"s_lshl_b32 s13, s{S_WV}, 1\nv_xor_b32 v243, s13, v243\nv_lshlrev_b32 v243, 5, v243")
        e("v_lshl_add_u32 v243, v241, 12, v243\nv_lshl_add_u32 v243, v242, 8, v243")
        e("v_lshrrev_b32 v241, 5, v1\nv_lshl_add_u32 v243, v241, 11, v243")
        e("v_and_b32 v241, 1, v1\nv_lshl_add_u32 v243, v241, 4, v243")
        e("v_bfe_u32 v241, v1, 1, 1\nv_lshl_add_u32 v241, v241, 3, v243")
        e("v_xor_b32 v242, 32, v241")
        e("v_add_u32 v243, 0x10000, v241\nv_add_u32 v244, 0x10000, v242\nv_add_u32 v245, 0x20000, v241\nv_add_u32 v246, 0x20000, v242")
        self.wt = {}
    def w_issue(self, ks):
        e = self.e
        if self.cfg.get('noch'):
            self.wt[ks] = None; e("s_nop 0\ns_nop 0\ns_nop 0\ns_nop 0"); return
        e(f"s_add_u32 m0, s12, {wslot(ks)}\ns_mov_b32 s14, {ks*16*3584}")
        self.tok("buffer_load_dwordx4 v240, s[8:11], s14 offen lds")
        self.wt[ks] = self.tok("buffer_load_dwordx4 v247, s[8:11], s14 offen offset:1024 lds")
    def w_read(self, ks):
        b = wslot(ks); t_ = None
        for t in range(2):
            for i in range(2):
                o = b + 1024*i
                t_ = self.tok(f"ds_read_b64_tr_b16 {ar((t*32+ks)*4+2*i,2)}, v{241 + 2*(o >> 16) + t} offset:{o & 0xffff}")
        return t_
    def w_issue_l(self, r):
        for ks in r: self.w_issue(ks)
    def w_chunks(self, r):
        out = []
        for ks in r:
            l = self.cap(lambda: self.w_issue(ks)); out += [l[:3], l[3:]]
        return out
    def w_read_l(self, r):
        t = None
        for ks in r: t = self.w_read(ks)
        return t

    U1 = 176; U2 = 208
    def modf_check(self, tok):
        e = self.e
        self.wait(tok)
        def chk(ex):
            e(f"v_xor_b32 v233, s{S_TAG}, v233\nv_xor_b32 v235, s{S_TAG}, v235\nv_or_b32 v233, v233, v235")
            e("v_cmp_ne_u32 vcc, 0, v233")
        self.guard("mf", chk, lambda: (self.modf_issue(), e("s_waitcnt vmcnt(0)")))
    def gate_issue(self):
        self.e(f"v_lshlrev_b32 v141, 6, v0\ns_mov_b32 s101, {WS_FL1}")
        return self.tok(f"buffer_load_dword v140, v141, s[{S_WS}:{S_WS+3}], s101 offen sc1")
    def gate_check(self, tok):
        self.wait(tok)
        self.guard("gt", lambda ex: self.e(f"v_cmp_ne_u32 vcc, s{S_TAG}, v140"), lambda: (self.gate_issue(), self.e("s_waitcnt vmcnt(0)")))
    def shadow1(self):
        e = self.e; c = self.cfg
        e("s_mov_b32 s101, 0x05040100\nv_perm_b32 v5, v234, v232, s101")
        e("s_mov_b32 s101, 0x07060302\nv_perm_b32 v7, v234, v232, s101")
        e(f"v_lshlrev_b32 v3, 2, v0\nv_add_u32 v3, {L_SS}, v3")
        e("ds_write2st64_b32 v3, v5, v7 offset0:0 offset1:4")
        e("v_bfe_u32 v2, v1, 4, 1\nv_lshlrev_b32 v2, 10, v2")
        e("v_lshrrev_b32 v4, 5, v1\nv_lshl_add_u32 v2, v4, 4, v2")
        e(f"v_add_u32 v2, {L_SS}, v2")
        self.w_issue_l(range(26, 29))
        self.wait(self.wt[21])
        e("s_waitcnt lgkmcnt(0)\ns_barrier")
        self.stamp(8)
        R = 8; tk = {}
        def umf(k0, k1, wtok={}):
            for ks in range(k0, min(k0 + R, k1)): tk[ks] = self.tok(f"ds_read_b128 {vr(100+4*(ks%R),4)}, v2 offset:{32*ks}")
            for ks in range(k0, k1):
                self.wait(tk[ks], wtok.get(ks))
                for t in range(2):
                    acc = vr(self.U1 + 16*t, 16)
                    e(f"v_mfma_f32_32x32x16_bf16 {acc}, {ar((t*32+ks)*4,4)}, {vr(100+4*(ks%R),4)}, {acc if ks else '0'}")
                if ks + R < k1: tk[ks+R] = self.tok(f"ds_read_b128 {vr(100+4*(ks%R),4)}, v2 offset:{32*(ks+R)}")
        def setup():
            e(f"s_lshl_b32 s{S_T1}, s{S_WV}, 13")
            e("v_lshlrev_b32 v147, 4, v1")
            e(f"v_add_u32 v146, s{S_T1}, v147\nv_add_u32 v143, 0x10000, v146")
            e(f"s_lshl_b32 s{S_T0}, s{S_G1}, 17\ns_add_u32 s{S_T0}, s{S_T0}, s{S_T1}\ns_add_u32 s{S_T0}, s{S_T0}, {hx(WS_X1S)}")
            e("v_lshrrev_b32 v144, 5, v1\nv_lshlrev_b32 v144, 9, v144")
            e("v_bfe_u32 v145, v1, 2, 2\nv_lshl_add_u32 v144, v145, 6, v144")
            e("v_bfe_u32 v145, v1, 4, 1\nv_lshl_add_u32 v144, v145, 5, v144")
            e("v_and_b32 v145, 3, v1\nv_lshl_add_u32 v144, v145, 3, v144")
            e("v_add_u32 v142, 0x10000, v144")
            e("v_and_b32 v145, 31, v1\nv_lshlrev_b32 v145, 3, v145")
        hold = {}
        cap = self.cap
        f = cap(lambda: hold.__setitem__("g", self.gate_issue())) + cap(lambda: (self.wait(self.w_read_l(range(13, 22)), self.wt[25]), e("s_barrier")))
        f += cap(lambda: self.w_issue_l(range(29, 32))) + cap(setup) + cap(lambda: hold.__setitem__("d", self.w_read_l(range(22, 26))))
        m, left = merge(cap(lambda: umf(0, 13)), f, 24, pace=2); self.p.put(m + left)
        ga = c["ga"]
        umf(13, ga)
        self.gate_check(hold["g"])
        self.stamp(9)
        f = cap(lambda: hold.__setitem__("x", self.x1s_issue(0)))
        self.wait(hold["d"])
        m, left = merge(cap(lambda: umf(ga, 26)), f, 24, pace=2); self.p.put(m + left)
        self.wait(self.wt[31])
        e("s_barrier")
        r = self.w_read_l(range(26, 32)); self.wait(r)
        umf(26, 32)
        for r in range(32): e(f"v_mov_b32 v{self.U2+r}, v{self.U1+r}")
        for r in range(32): e(f"v_permlane16_swap_b32 v{self.U1+r}, v{self.U2+r}")
        for r in range(32): e(f"v_mul_f32 v{self.U2+r}, {fl(GAM if (r & 15) < 8 else 1/GAM)}, v{self.U2+r}")
        self.stamp(10)
        self.x1s_guard(0, 148, hold["x"])
        e("s_waitcnt lgkmcnt(0)\ns_barrier")
        self.stamp(12)

    def stats2_job(self):
        e = self.e
        e(f"s_lshl_b32 s{S_T2}, s{S_XCD}, 2\ns_add_u32 s{S_T2}, s{S_T2}, s{S_IDX}\ns_sub_u32 s{S_T2}, s{S_T2}, 28")
        e(f"s_lshl_b32 s{S_T1}, s{S_WV}, 13")
        e(f"s_lshl_b32 s{S_T0}, s{S_T2}, 16\ns_add_u32 s{S_T0}, s{S_T0}, s{S_T1}\ns_add_u32 s{S_T0}, s{S_T0}, {hx(WS_X1)}")
        e("v_lshlrev_b32 v147, 4, v1\nv_lshlrev_b32 v146, 7, v1")
        e("v_lshrrev_b32 v144, 5, v1\nv_lshlrev_b32 v144, 9, v144")
        e("v_bfe_u32 v145, v1, 2, 2\nv_lshl_add_u32 v144, v145, 6, v144")
        e("v_bfe_u32 v145, v1, 4, 1\nv_lshl_add_u32 v144, v145, 5, v144")
        e("v_and_b32 v145, 3, v1\nv_lshl_add_u32 v144, v145, 3, v144")
        e(f"s_lshl_b32 s{S_T1}, s{S_WV}, 14\nv_add_u32 v144, s{S_T1}, v144")
        e("v_mov_b32 v5, 0x3f803f80")
        e("s_waitcnt vmcnt(0)\ns_barrier")
        self.gate_issue(); e("s_waitcnt vmcnt(0)")
        self.guard("g2", lambda ex: e(f"v_cmp_ne_u32 vcc, s{S_TAG}, v140"), lambda: (self.gate_issue(), e("s_waitcnt vmcnt(0)")))
        e(f"s_mov_b32 s{S_SPIN}, {self.cfg['spin']}")
        lp = self.lab("pj"); go = self.lab("pg"); ok = self.lab("pk")
        self.label(lp)
        e(f"s_add_u32 s101, s{S_T0}, 32768")
        e(f"buffer_load_dword v6, v146, s[{S_WS}:{S_WS+3}], s{S_T0} offen sc1")
        e(f"buffer_load_dword v7, v146, s[{S_WS}:{S_WS+3}], s101 offen offset:64 sc1")
        e("s_waitcnt vmcnt(0)\nv_max_u32 v6, v6, v7\nv_cmp_eq_u32 vcc, -1, v6\ns_nop 1")
        e(f"s_cbranch_vccz {go}")
        self.spin_check(lp)
        e(f"s_mov_b32 s{S_SPIN}, 1")
        self.label(go)
        for b in range(2):
            for j in range(8):
                e(f"s_add_u32 m0, s{S_T1}, {b*8192 + j*1024}\ns_add_u32 s101, s{S_T0}, {b*32768 + j*1024}")
                e(f"buffer_load_dwordx4 v147, s[{S_WS}:{S_WS+3}], s101 offen sc1 lds")
        for b in range(2):
            e(f"s_waitcnt vmcnt({8*(1-b)})")
            for j in range(16): e(f"ds_read_b64_tr_b16 {vr(40+2*j,2)}, v144 offset:{b*8192 + (j>>1)*1024 + (j&1)*256}")
            for j in range(32):
                if j % 8 == 0: e(f"s_waitcnt lgkmcnt({12 - j//2})")
                e(f"v_dot2_f32_bf16 v{8+2*b}, v{40+j}, v5, {'v%d' % (8+2*b) if j else '0'}")
                e(f"v_dot2_f32_bf16 v{9+2*b}, v{40+j}, v{40+j}, {'v%d' % (9+2*b) if j else '0'}")
        e("s_nop 2\nv_add_f32 v6, v9, v11\nv_cmp_u_f32 vcc, v6, v6\ns_nop 1")
        e(f"s_cbranch_vccz {ok}")
        self.spin_check(lp)
        self.label(ok)
        e("v_permlane32_swap_b32 v8, v10\nv_permlane32_swap_b32 v9, v11")
        e("v_add_f32 v8, v8, v10\nv_add_f32 v9, v9, v11")
        e(f"s_lshl_b32 s101, s{S_WV}, 9\ns_add_u32 s101, s101, {L_SS}")
        e("v_lshlrev_b32 v12, 3, v1\nv_add_u32 v13, s101, v12")
        e("ds_write_b64 v13, v[8:9]")
        e(f"v_add_u32 v13, {L_SS}, v12")
        e("s_waitcnt lgkmcnt(0)\ns_barrier")
        sk = self.lab("s2w")
        e(f"s_cmp_lg_u32 s{S_WV}, 0\ns_cbranch_scc1 {sk}")
        for w in range(4): e(f"ds_read_b64 v[{14+2*w}:{15+2*w}], v13 offset:{512*w}")
        e("s_waitcnt lgkmcnt(0)")
        e("v_pk_add_f32 v[14:15], v[14:15], v[16:17]\nv_pk_add_f32 v[18:19], v[18:19], v[20:21]\nv_pk_add_f32 v[14:15], v[14:15], v[18:19]")
        self.stat_finish(14, 15, 16, 17)
        e(f"v_mov_b32 v15, s{S_TAG}")
        e(f"s_lshl_b32 s101, s{S_T2}, 9\ns_add_u32 s101, s101, {WS_ST2}")
        e(f"buffer_store_dwordx2 v[14:15], v12, s[{S_WS}:{S_WS+3}], s101 offen sc1")
        self.label(sk)
        e("s_barrier")

    def wd_setup(self):
        e = self.e
        e("v_lshrrev_b32 v240, 3, v1")
        e("v_bfe_u32 v241, v1, 4, 1\nv_lshlrev_b32 v241, 2, v241")
        e("v_and_b32 v242, 7, v1\nv_xor_b32 v241, v241, v242")
        e("v_lshlrev_b32 v240, 10, v240\nv_lshl_add_u32 v240, v241, 4, v240")
        e(f"v_add_u32 v241, {8192 - 1024}, v240")
        e(f"s_mul_i32 s{S_LDT}, s{S_WV}, {448*1024}")
        e(f"s_and_b32 s101, s{S_IDX}, 7\ns_lshl_b32 s101, s101, 7\ns_add_u32 s{S_LDT}, s{S_LDT}, s101")
        e(f"s_mul_i32 s{S_M+8}, s{S_WV}, 6144\ns_add_u32 s{S_M+8}, s{S_M+8}, {L_SP}")
        e(f"s_lshl_b32 s{S_M+9}, s{S_WV}, 13")
        e("v_lshrrev_b32 v242, 5, v1\nv_lshlrev_b32 v242, 10, v242")
        e("v_bfe_u32 v243, v1, 2, 2\nv_lshl_add_u32 v242, v243, 7, v242")
        e("v_bfe_u32 v243, v1, 3, 1\nv_lshl_add_u32 v242, v243, 6, v242")
        e("v_and_b32 v243, 1, v1\nv_lshl_add_u32 v242, v243, 5, v242")
        e("v_bfe_u32 v243, v1, 1, 1\nv_lshl_add_u32 v242, v243, 3, v242")
        e("v_bfe_u32 v243, v1, 4, 1\nv_lshl_add_u32 v242, v243, 4, v242")
    def wd_loc(self, ks):
        sl = ks if ks < 19 else ks - 19
        if sl < 3: return 0, 2048*sl
        q, r = divmod(sl - 3, 4)
        return 1, (3 - q)*32768 + 2048*r
    def wd_issue(self, ks):
        e = self.e
        r, o = self.wd_loc(ks)
        e(f"s_add_u32 m0, s{S_M+8+r}, {o}\ns_add_u32 s15, s{S_LDT}, {ks*16384}")
        self.tok(f"buffer_load_dwordx4 v240, s[{S_WD}:{S_WD+3}], s15 offen lds")
        self.wdt[ks] = self.tok(f"buffer_load_dwordx4 v241, s[{S_WD}:{S_WD+3}], s15 offen offset:1024 lds")
    def wd_chunks(self, r):
        out = []
        for ks in r:
            l = self.cap(lambda: self.wd_issue(ks)); out += [l[:3], l[3:]]
        return out
    def wd_read(self, ks):
        r, o = self.wd_loc(ks); t_ = None
        for t in range(2):
            for i in range(2):
                oo = o + 512*i
                reg = 230 if r == 0 else (232 if oo < 65536 else 234)
                t_ = self.tok(f"ds_read_b64_tr_b16 {ar((ks*2+t)*4+2*i,2)}, v{reg+t} offset:{oo & 0xffff}")
        return t_

    def gemm1f(self):
        e = self.e; c = self.cfg; cap = self.cap
        e(f"s_mov_b32 s{S_T2}, s{self.S_HB}\ns_mov_b32 s{S_T3}, {fl(-GC)}")
        ACC = [4, 36, 68]; BR = 100; R = 7
        seq = [(g, ks) for g in range(4) for ks in range(32)]
        def bread(n):
            g, ks = seq[n]; b = BR + 4*(n % R); base = self.XT(g); ad = 144 if base < 65536 else 142
            o = base % 65536 + ks*1024
            self.tok(f"ds_read_b64_tr_b16 {vr(b,2)}, v{ad} offset:{o}")
            return self.tok(f"ds_read_b64_tr_b16 {vr(b+2,2)}, v{ad} offset:{o+256}")
        PF = R - 1
        tk = {}
        for n in range(PF): tk[n] = bread(n)
        ST = [128, 132, 136, 248]
        def st_issue():
            e(f"s_lshl_b32 s101, s{S_G1}, 10\ns_add_u32 s101, s101, {WS_ST2}")
            t = None
            for g in range(4):
                t = self.tok(f"buffer_load_dwordx2 {vr(ST[g],2)}, v145, s[{S_WS}:{S_WS+3}], s101 offen offset:{256*g} sc1")
            return t
        def st_chk(ex):
            e(f"v_xor_b32 v140, s{S_TAG}, v{ST[0]+1}")
            for g in range(1, 4): e(f"v_xor_b32 v{ST[g]+2}, s{S_TAG}, v{ST[g]+1}\nv_or_b32 v140, v140, v{ST[g]+2}")
            e("v_cmp_ne_u32 vcc, 0, v140")
        def st_guard(tok):
            self.wait(tok)
            self.guard("st", st_chk, lambda: (st_issue(), e("s_waitcnt vmcnt(0)")))
            for g in range(4):
                b = ST[g]
                e(f"v_lshlrev_b32 v{b+2}, 16, v{b}\nv_rcp_f32 v{b+2}, v{b+2}")
                e(f"v_and_b32 v{b+3}, 0xffff0000, v{b}")
                e(f"v_mul_f32 v{b+3}, v{b+3}, v{b+2}")
                e(f"v_mul_f32 v{b}, {fl(GAM)}, v{b+2}\nv_mul_f32 v{b+1}, {fl(-GAM)}, v{b+3}")
                e(f"v_mul_f32 v{b+2}, {fl(1/GAM)}, v{b+2}\nv_mul_f32 v{b+3}, {fl(-1/GAM)}, v{b+3}")
        def steps(g, k0, k1):
            for ks in range(k0, k1):
                n = g*32 + ks
                self.wait(tk[n])
                for t in range(2):
                    acc = vr(ACC[g % 3] + 16*t, 16)
                    e(f"v_mfma_f32_32x32x16_bf16 {acc}, {ar((t*32+ks)*4,4)}, {vr(BR+4*(n%R),4)}, {acc if ks else '0'}")
                    if t == 0 and n + PF < 128: tk[n+PF] = bread(n+PF)
        def seg(g, k0, k1, fill, flush=True):
            m = cap(lambda: steps(g, k0, k1))
            m, left = merge(m, fill, 24, pace=c["gpace"])
            self.p.put(m)
            if flush: self.p.put(left); return []
            return left
        xt = {}; hold = {}; self.wdt = {}; self.htok = {}
        xi = lambda g: cap(lambda: xt.__setitem__(g, self.x1s_issue(g)))
        seg(0, 0, c["x1k"], xi(1) + xi(2) + cap(lambda: (e(f"v_mov_b32 v252, 0\nv_mov_b32 v253, s{S_TAG}"), self.wd_setup())))
        seg(0, c["x1k"], 25, cap(lambda: self.x1s_guard(1, 148, xt[1])))
        e("s_barrier")
        pend = seg(0, 25, 32, xi(3), flush=False)
        pend += cap(lambda: self.x1s_guard(2, 148, xt[2])) + sum(self.wd_chunks(range(3)), [])
        pend = seg(1, 0, c["sti"], pend)
        pend = cap(lambda: hold.__setitem__("t", st_issue())) + cap(lambda: self.x1s_guard(3, 148, xt[3]))
        seg(1, c["sti"], c["stk"], pend)
        e("s_barrier")
        self.stamp(13)
        ep0 = cap(lambda: st_guard(hold["t"])) + weave(self.g1_epilogue(0, ACC[0], ST[0]), self.wd_chunks(range(3, 7)), 20)
        pend = seg(1, c["stk"], 32, ep0, flush=False)
        pend = seg(2, 0, 2, pend, flush=False)
        e("s_barrier")
        ep1 = weave(self.g1_epilogue(1, ACC[1], ST[1]), self.wd_chunks(range(7, 11)), 20) + cap(lambda: self.hflag(0, 252, 253))
        pend = seg(2, 2, 32, pend + ep1, flush=False)
        if len(pend) > len(ep1):
            self.p.put(pend[:len(pend) - len(ep1)]); pend = pend[len(pend) - len(ep1):]
        pend = seg(3, 0, 2, pend, flush=False)
        e("s_barrier")
        ep2 = weave(self.g1_epilogue(2, ACC[2], ST[2]), self.wd_chunks(range(11, 15)), 20) + cap(lambda: self.hflag(1, 252, 253))
        pend = seg(3, 2, 32, pend + ep2, flush=False)
        self.stamp(14)
        self.p.put(pend + self.g1_epilogue(3, ACC[0], ST[3]))
        self.stamp(15)

    def gemm2f(self):
        e = self.e; c = self.cfg; cap = self.cap
        e(f"v_add_u32 v230, s{S_M+8}, v242\nv_xor_b32 v231, 64, v230")
        e(f"v_add_u32 v232, s{S_M+9}, v242\nv_xor_b32 v233, 64, v232\nv_add_u32 v234, 0x10000, v232\nv_add_u32 v235, 0x10000, v233")
        e("v_lshlrev_b32 v244, 4, v1")
        e("v_min_u32 v246, 13, v1\nv_lshlrev_b32 v246, 6, v246")
        e(f"s_mul_i32 s{S_M+2}, s{S_WV}, {14*64}\ns_add_u32 s{S_M+2}, s{S_M+2}, {WS_FL2}")
        e(f"s_mul_i32 s{S_M+3}, s{S_G2}, {56*64}\ns_add_u32 s{S_M+3}, s{S_M+3}, s{S_M+2}")
        e(f"s_mul_i32 s101, s{S_G1}, {56*64}\ns_add_u32 s{S_M+2}, s{S_M+2}, s101")
        def fl_issue(nt): return self.tok(f"buffer_load_dword v{247-2*nt}, v246, s[{S_WS}:{S_WS+3}], s{S_M+2+nt} offen sc1")
        f0 = fl_issue(0)
        e(f"s_mul_i32 s{S_M+4}, s{S_G1}, {112*1024}\ns_mul_i32 s{S_M+5}, s{S_G2}, {112*1024}")
        e(f"s_mul_i32 s{S_M+6}, s{S_WV}, {28*1024}\ns_add_u32 s{S_M+6}, s{S_M+6}, {hx(WS_H)}")
        e(f"s_add_u32 s{S_M+4}, s{S_M+4}, s{S_M+6}\ns_add_u32 s{S_M+5}, s{S_M+5}, s{S_M+6}")
        e(f"v_mov_b32 v228, 0\nv_mov_b32 v229, s{S_TAG}")
        rd = {}
        for ks in range(15):
            self.wait(self.wdt[ks]); rd[ks] = self.wd_read(ks)
        e("s_barrier")
        HB = 68
        def hl(nt, ks):
            e(f"s_add_u32 s101, s{S_M+4+nt}, {ks*1024}")
            return self.tok(f"buffer_load_dwordx4 {vr(HB+4*ks,4)}, v244, s[{S_WS}:{S_WS+3}], s101 offen sc1")
        self.wait(f0)
        self.guard("f0", lambda ex: e(f"v_cmp_ne_u32 vcc, s{S_TAG}, v247"), lambda: (fl_issue(0), e("s_waitcnt vmcnt(0)")))
        self.stamp(16)
        self.hflag(2, 228, 229)
        ht = {}
        order = [("h", ks) for ks in range(15)]
        for ks in range(15, 28): order += [("w", ks), ("h", ks)]
        def iss(it):
            if it[0] == "h": ht[(0, it[1])] = hl(0, it[1])
            else: self.wd_issue(it[1])
        NPRE = c["npre"]
        self.wait(rd[14])
        for it in order[:NPRE]: iss(it)
        self.hflag(3, 228, 229)
        e(f"s_bitcmp1_b32 s{S_WV}, 1\ns_cselect_b32 s{S_T2}, s{S_G2}, s{S_G1}")
        e(f"s_and_b32 s{S_T3}, s{S_WV}, 1\ns_lshl_b32 s{S_T3}, s{S_T3}, 5")
        e(f"s_lshl_b32 s{S_M}, s{S_G3}, 6\ns_add_u32 s{S_T3}, s{S_T3}, s{S_M}")
        e(f"s_lshl_b32 s{S_M}, s{S_T2}, 15\ns_lshl_b32 s{S_M+1}, s{S_T3}, 6\ns_add_u32 s{S_M}, s{S_M}, s{S_M+1}")
        e(f"s_add_u32 s{S_M}, s{S_M}, {hx(WS_X1)}")
        e(f"s_lshl_b32 s{S_M+1}, s{S_WV}, 11\ns_add_u32 s{S_M+1}, s{S_M+1}, {L_XR2}")
        def mm(nt, ks):
            for t in range(2):
                acc = vr(4 + 32*nt + 16*t, 16)
                e(f"v_mfma_f32_32x32x16_bf16 {acc}, {ar((ks*2+t)*4,4)}, {vr(HB+4*ks,4)}, {acc if ks else '0'}")
        rest = order[NPRE:]
        KC = c["kc"]; f1 = None
        def rdw(ks):
            if 15 <= ks < 28 and ks not in rd:
                self.wait(self.wdt[ks]); rd[ks] = self.wd_read(ks)
        for ks in range(KC):
            for _ in range(2):
                if rest: iss(rest.pop(0))
            if not rest and f1 is None: f1 = fl_issue(1)
            rdw(ks + 1)
            self.wait(ht[(0, ks)], rd[ks]); mm(0, ks)
        assert not rest and f1 is not None
        slow = self.lab("g2slow"); jn = self.lab("g2j")
        self.wait(f1)
        e(f"v_cmp_ne_u32 vcc, s{S_TAG}, v245\ns_cbranch_vccnz {slow}")
        pendw = [ks for ks in range(15, 28) if ks not in rd]
        nx = 0
        for ks in range(KC, 28):
            for _ in range(c["nb"]):
                if nx < ks: ht[(1, nx)] = hl(1, nx); nx += 1
            rdw(ks + 1)
            self.wait(ht[(0, ks)], rd[ks]); mm(0, ks)
        while nx < 28: ht[(1, nx)] = hl(1, nx); nx += 1
        self.label(jn)
        def rout():
            lp = self.lab("g2l"); ok = self.lab("g2ok")
            self.label(slow)
            e("s_waitcnt vmcnt(0)")
            for ks in pendw: self.wd_read(ks)
            fl_issue(1)
            e("s_waitcnt lgkmcnt(0)")
            for ks in range(KC, 28): mm(0, ks)
            e(f"s_mov_b32 s{S_SPIN}, {self.cfg['spin']}")
            self.label(lp)
            e(f"s_waitcnt vmcnt(0)\nv_cmp_ne_u32 vcc, s{S_TAG}, v245\ns_nop 1\ns_cbranch_vccz {ok}")
            fl_issue(1)
            self.spin_check(lp)
            e("s_waitcnt vmcnt(0)")
            self.label(ok)
            for ks in range(28): hl(1, ks)
            e(f"s_branch {jn}")
        self.ool += cap(rout)
        self.stamp(19)
        def extras():
            e(f"s_mov_b32 m0, s{S_M+1}\ns_nop 0")
            self.tok(f"buffer_load_dwordx4 v244, s[{S_WS}:{S_WS+3}], s{S_M} offen sc1 lds")
            self.xr = self.tok(f"buffer_load_dwordx4 v244, s[{S_WS}:{S_WS+3}], s{S_M} offen offset:1024 sc1 lds")
            e("v_lshrrev_b32 v245, 5, v1\nv_lshlrev_b32 v245, 8, v245")
            e(f"s_lshl_b32 s{S_M+2}, s{S_T3}, 4\ns_add_u32 s{S_M+2}, s{S_M+2}, {WS_MODF + 8}")
            for j in range(16): self.gbt = self.tok(f"buffer_load_dword v{208+j}, v245, s[{S_WS}:{S_WS+3}], s{S_M+2} offen offset:{16*j} sc1")
        def wr(T):
            for j in range(4): e(f"ds_write_b128 v{246 + (T >> 1)}, {vr(4+16*T+4*j,4)} offset:{(T & 1)*32768 + 1024*j}")
        def addrs():
            e(f"v_add_u32 v246, s{S_M+9}, v244\nv_add_u32 v247, 0x10000, v246")
            e(f"s_lshl_b32 s{S_T0}, s{S_WV}, 15\nv_add_u32 v236, s{S_T0}, v244")
            e("v_lshrrev_b32 v248, 5, v1\nv_lshlrev_b32 v248, 10, v248")
            e("v_bfe_u32 v249, v1, 2, 2\nv_lshl_add_u32 v248, v249, 6, v248")
            e("v_bfe_u32 v249, v1, 4, 1\nv_lshl_add_u32 v248, v249, 5, v248")
            e("v_and_b32 v249, 3, v1\nv_lshl_add_u32 v248, v249, 3, v248")
            e(f"v_add_u32 v248, s{S_M+1}, v248")
            e("v_and_b32 v249, 31, v1\nv_lshlrev_b32 v249, 10, v249")
            e("v_lshrrev_b32 v250, 5, v1\nv_lshl_add_u32 v249, v250, 5, v249")
            e(f"s_lshl_b32 s{S_T0}, s{S_T2}, 15\ns_lshl_b32 s{S_T1}, s{S_T3}, 1\ns_add_u32 s{S_T0}, s{S_T0}, s{S_T1}")
        def resid():
            self.wait(self.xr)
            tk = [self.tok(f"ds_read_b64_tr_b16 {vr(224+2*j,2)}, v248 offset:{256*j}") for j in range(4)]
            self.wait(tk[3])
            for j in range(8): e(f"v_lshlrev_b32 v{184+2*j}, 16, v{224+j}\nv_and_b32 v{185+2*j}, 0xffff0000, v{224+j}")
        def nt1():
            for ks in range(28):
                self.wait(ht[(1, ks)]); mm(1, ks)
        fill = cap(extras) + cap(addrs) + cap(lambda: (wr(0), wr(1))) + cap(resid)
        m, left = merge(cap(nt1), fill, 24, pace=1); self.p.put(m + left)
        self.stamp(17)
        wr(2); wr(3)
        e("s_waitcnt lgkmcnt(0)\ns_barrier")
        rt = {}
        for w in range(4):
            for j in range(4): rt[(w, j)] = self.tok(f"ds_read_b128 {vr(68+16*w+4*j,4)}, v236 offset:{8192*w + 1024*j}")
        self.wait(rt[(1, 3)])
        for j in range(8): e(f"v_pk_add_f32 {vr(68+2*j,2)}, {vr(68+2*j,2)}, {vr(84+2*j,2)}")
        self.wait(rt[(3, 3)], self.gbt)
        for j in range(8): e(f"v_pk_add_f32 {vr(100+2*j,2)}, {vr(100+2*j,2)}, {vr(116+2*j,2)}")
        for h in range(2):
            for j in range(4*h, 4*h+4): e(f"v_pk_add_f32 {vr(68+2*j,2)}, {vr(68+2*j,2)}, {vr(100+2*j,2)}")
            for j in range(4*h, 4*h+4): e(f"v_pk_fma_f32 {vr(68+2*j,2)}, {vr(68+2*j,2)}, {vr(208+2*j,2)}, {vr(184+2*j,2)}")
            for j in range(4*h, 4*h+4): e(f"v_cvt_pk_bf16_f32 v{24+j}, v{68+2*j}, v{69+2*j}")
            e(f"buffer_store_dwordx4 {vr(24+4*h,4)}, v249, s[{S_OUT}:{S_OUT+3}], s{S_T0} offen offset:{16*h}")
        self.stamp(18)

    def bump_epoch(self):
        e = self.e
        sk = self.lab("ep")
        e("s_cmp_lg_u32 s2, 0")
        e(f"s_cbranch_scc1 {sk}")
        e(f"s_add_u32 s{S_T0}, s{S_E}, 1")
        e(f"v_mov_b32 v3, s{S_T0}\nv_mov_b32 v4, 0")
        e("s_mov_b64 exec, 1")
        e(f"buffer_store_dword v3, v4, s[{S_WS}:{S_WS+3}], 0 offen sc1")
        e("s_mov_b64 exec, -1")
        self.label(sk)
    def finish(self):
        self.stamp_flush()
        self.label(f"{self.cfg['uid']}_end")
        self.e("s_endpgm")
        ins = resolve(self.p.take()) + self.ool
        ins, n = pad_hazards(ins)
        return render(ins)
def kernel_text(name, body, vgpr=512, accum=256):
    return f""".text
.globl {name}
.p2align 8
.type {name},@function
{name}:
{body}
.section .rodata,"a"
.p2align 6
.amdhsa_kernel {name}
  .amdhsa_next_free_vgpr {vgpr}
  .amdhsa_next_free_sgpr 102
  .amdhsa_accum_offset {accum}
  .amdhsa_group_segment_fixed_size 0
  .amdhsa_kernarg_size 144
  .amdhsa_user_sgpr_count 2
  .amdhsa_user_sgpr_kernarg_segment_ptr 1
  .amdhsa_system_sgpr_workgroup_id_x 1
.end_amdhsa_kernel
"""

def build(stamps=False, over={}):
    hdr = open("adaLN_cond__ssm_conv_s4__glu_gated_geglu__prompt.s.ref").read().split("; Override launch")[0]
    cfg = dict(spin=200000, stamps=stamps, uid="F", x1k=19, sti=8, stk=20, kc=22, nb=4, npre=16, ga=18, cpace=4, gpace=2, nb1=4, touch=1)
    cfg.update(over)
    g = G(cfg); e = g.e
    g.prologue()
    g.p0_issue()
    g.g1_map(); g.w_setup(); g.hbase()
    g.tag_ready(); g.stamp(1)
    g.kgen_pre()
    g.p0_stats(); g.stamp(2); g.p0_xb(); g.stamp(23); g.p0_mod(); g.stamp(22)
    if cfg['touch']: g.touch()
    g.kgen_tab(g.w_chunks(range(0, 5)))
    nb1 = cfg["nb1"]
    g.kgen_post(post_b2=lambda: g.w_issue_l(range(5, 5 + nb1)))
    g.stamp(3)
    g.hbuild(after_first=lambda: None, mid=lambda: g.w_chunks(range(5 + nb1, 13)))
    hold = {}
    cap = g.cap
    f0, hold["fill"] = g.capture(g.xfill)
    f1 = cap(lambda: (g.wait(g.w_read_l(range(0, 9)), g.wt[12]), e("s_barrier")))
    f2 = cap(lambda: g.w_issue_l(range(13, 15))) + cap(lambda: hold.__setitem__("r", g.w_read_l(range(9, 13)))) + cap(lambda: g.w_issue_l(range(15, 22)))
    f3 = cap(lambda: (g.wait(hold["r"]), e("s_barrier"), g.w_issue_l(range(22, 26))))
    f4, hold["modf"] = g.capture(g.modf_issue)
    g.conv(fillers={0: f1 + f0 + f2 + f4 + f3}, pre_start=lambda: g.wait(g.wt[8]),
           pre_bar=lambda: g.wait(hold["fill"]), post_bar=g.gate_pub)
    g.modf_check(hold["modf"])
    e(f"s_cmp_ge_u32 s{S_IDX}, 28\ns_cbranch_scc1 F_alt")
    g.shadow1()
    g.gemm1f()
    g.label("F_g2")
    def alt():
        g.label("F_alt")
        g.stats2_job(); g.stamp(11)
        g.wd_setup()
        keep = dict(g.wdt)
        for ks in range(15): g.wd_issue(ks)
        g.wdt = keep
        e("s_waitcnt vmcnt(0)\ns_branch F_g2")
    g.ool += g.cap(alt)
    g.g2_map(); g.gemm2f(); g.bump_epoch()
    launch = f"; @launch grid=(256,1,1) block=(256,1,1) lds={LDS_BYTES}\n"
    return hdr + launch + '.amdgcn_target "amdgcn-amd-amdhsa--gfx950"\n' + kernel_text(KN, g.finish())

if __name__ == "__main__":
    over = {}
    for a in sys.argv[1:]:
        if "=" in a:
            k, v = a.split("="); over[k] = int(v)
    print(build(stamps="stamps" in sys.argv[1:], over=over))
```

```python
import sys, struct, math
from asmlib import *
KN = "adaLN_cond__ssm_conv_s4__glu_gated_geglu__prompt_kernel"
WS_ST1 = 0x1000; WS_MODP = 0x8000; WS_MODF = 0x20000; WS_ST2 = 0x24000
WS_FL1 = 0x28000; WS_FL2 = 0x40000; WS_XB = 0xC00000; WS_DBG = 0x1000000; WS_X1 = 0x100000; WS_X1S = 0x300000; WS_H = 0x500000; WS_SIZE = 0x1200000
L_TAB = 0; TABW = 17408; TPITCH = 272
L_K = 69632; KCH = 8320; KODD = 4164
L_HI = 86272; HCH = 4608
L_Z = 95488
L_MOD = 111872
L_SP = 131072
L_XT = 155648
L_SS = L_XT
L_XR2 = L_XT
LDS_BYTES = 163840
_POOL = [L_SP, L_SP + 8192, L_SP + 16384, L_MOD, L_MOD + 8192] + [L_TAB + 8192*i for i in range(8)]
def wslot(ks):
    if ks < 26: return _POOL[ks % 13]
    if ks < 29: return L_K + 8192*(ks-26)
    return L_SP + 8192*(ks-29)
S_WS = 4; S_WG = 8; S_WU = 12
P_X, P_ARE, P_AIM, P_BRE, P_BIM, P_CRE, P_CIM, P_LDT, P_DSK, P_BX, P_WG, P_WU, P_WD, P_C, P_WM, P_OUT, P_DBG, P_WS = [16 + 2 * i for i in range(18)]
S_X = 52; S_WM = 56; S_WD = 60; S_OUT = 64
S_TAG = 68; S_E = 69; S_WV = 70; S_D0 = 71; S_LDT = 72; S_DSK = 73
S_T0 = 74; S_T1 = 75; S_T2 = 76; S_T3 = 77; S_SPIN = 78; S_IDX = 79; S_XCD = 80
S_M = 82
S_EX = 94
S_ST = 96
S_G1 = 98; S_G2 = 99; S_G3 = 100
SENT = 0xFFFFFFFF
def f2u(x): return struct.unpack("<I", struct.pack("<f", x))[0]
def hx(x): return "0x%08x" % (x & 0xFFFFFFFF)
def fl(x): return hx(f2u(x))
LOG2E = 1.4426950408889634
GAM = (2 * 0.7978845608028654 * LOG2E * 0.044715) ** (1.0 / 3)
GC = 2 * 0.7978845608028654 * LOG2E / GAM
def vr(b, n): return f"v[{b}:{b+n-1}]" if n > 1 else f"v{b}"
def ar(b, n): return f"a[{b}:{b+n-1}]" if n > 1 else f"a{b}"
def sr(b, n): return f"s[{b}:{b+n-1}]" if n > 1 else f"s{b}"
class G:
    def __init__(self, cfg):
        self.cfg = cfg; self.p = Prog(); self.nlab = 0; self.nstamp = 0; self.ool = []
    def lab(self, base):
        self.nlab += 1; return f"L{self.cfg['uid']}_{base}_{self.nlab}"
    def e(self, t): self.p.e(t)
    def tok(self, t): return self.p.tok(t)
    def wait(self, *t): self.p.wait(*t)
    def label(self, l): self.p.label(l)
    def stamp(self, i):
        if not self.cfg.get("stamps"): return
        e = self.e
        e(f"s_memtime s[{S_ST}:{S_ST+1}]")
        e("s_waitcnt lgkmcnt(0)")
        e(f"v_writelane_b32 v255, s{S_ST}, {i}")
    def stamp_flush(self):
        if not self.cfg.get("stamps"): return
        e = self.e
        e(f"s_memrealtime s[{S_ST}:{S_ST+1}]")
        e("s_waitcnt lgkmcnt(0)")
        e(f"v_writelane_b32 v255, s{S_ST}, 63")
        e(f"s_lshl_b32 s{S_T0}, s2, 10")
        e(f"s_add_u32 s{S_T0}, s{S_T0}, {WS_DBG + self.cfg.get('dbgoff', 0)}")
        e("v_lshlrev_b32 v254, 2, v0")
        e(f"buffer_store_dword v255, v254, s[{S_WS}:{S_WS+3}], s{S_T0} offen")
        if self.cfg.get("dbgout"):
            sk = self.lab("dbg")
            e(f"s_cmp_lg_u32 s2, {self.cfg['dbgout']}\ns_cbranch_scc1 {sk}\ns_cmp_lg_u32 s{S_WV}, 0\ns_cbranch_scc1 {sk}")
            e(f"v_readlane_b32 s{S_T1}, v255, 0\nv_readlane_b32 s{S_T2}, v255, 62\nv_readlane_b32 s{S_T3}, v255, 63\nv_mov_b32 v4, 0")
            for i, st in enumerate([1, 2, 23, 22, 21, 3, 4, 5, 6, 7, 12, 14, 16, 19, 18]):
                e(f"v_readlane_b32 s{S_T0}, v255, {st}\ns_sub_u32 s{S_T0}, s{S_T0}, s{S_T1}\nv_mov_b32 v3, s{S_T0}")
                e(f"global_store_dword v4, v3, s[{P_DBG}:{P_DBG+1}] offset:{4*i}")
            e(f"s_sub_u32 s{S_T0}, s{S_T3}, s{S_T2}\nv_mov_b32 v3, s{S_T0}")
            e(f"global_store_dword v4, v3, s[{P_DBG}:{P_DBG+1}] offset:60")
            self.label(sk)
    def srd(self, s, ptr, size):
        self.e(f"s_mov_b32 s{s}, s{ptr}\ns_mov_b32 s{s+1}, s{ptr+1}\ns_mov_b32 s{s+2}, {hx(size)}\ns_mov_b32 s{s+3}, 0x20000")
    def prologue(self):
        e = self.e
        e("s_cmp_ge_u32 s2, 256")
        e(f"s_cbranch_scc1 {self.cfg['uid']}_end")
        e("s_load_dwordx16 s[16:31], s[0:1], 0")
        e("s_load_dwordx16 s[32:47], s[0:1], 64")
        e("s_load_dwordx4 s[48:51], s[0:1], 128")
        if self.cfg.get("stamps"):
            e("v_mov_b32 v255, 0")
            e(f"s_memrealtime s[{S_ST}:{S_ST+1}]")
        if self.cfg.get("hold"): e("s_memrealtime s[34:35]" if False else "s_nop 0")
        e("v_and_b32 v1, 63, v0")
        e("v_lshrrev_b32 v2, 6, v0")
        e(f"s_and_b32 s{S_XCD}, s2, 7")
        e(f"v_readfirstlane_b32 s{S_WV}, v2")
        e(f"s_lshr_b32 s{S_IDX}, s2, 3")
        e(f"s_lshl_b32 s{S_D0}, s{S_XCD}, 5")
        e(f"s_add_u32 s{S_D0}, s{S_D0}, s{S_IDX}")
        e(f"s_lshl_b32 s{S_D0}, s{S_D0}, 1")
        e("s_waitcnt lgkmcnt(0)")
        if self.cfg.get("stamps"):
            e(f"v_writelane_b32 v255, s{S_ST}, 62")
        if self.cfg.get("hold"): e("s_memrealtime s[34:35]")
        self.stamp(0)
        e(f"s_load_dword s{S_E}, s[{P_WS}:{P_WS+1}], 0")
        e(f"s_lshl_b32 s{S_T0}, s{S_D0}, 1")
        e(f"s_load_dword s{S_LDT}, s[{P_LDT}:{P_LDT+1}], s{S_T0}")
        e(f"s_load_dword s{S_DSK}, s[{P_DSK}:{P_DSK+1}], s{S_T0}")
        self.srd(S_WS, P_WS, WS_SIZE)
        self.srd(S_X, P_X, 2097152)
        self.srd(S_WM, P_WM, 3145728)
        self.srd(S_WD, P_WD, 1835008)
        self.srd(S_OUT, P_OUT, 2097152)
    def tag_ready(self):
        e = self.e
        e("s_waitcnt lgkmcnt(0)")
        e(f"s_mul_i32 s{S_TAG}, s{S_E}, 0x9E3779B1")
        e(f"s_add_u32 s{S_TAG}, s{S_TAG}, 0x7F4A7C15")
    def reduce16(self, regs):
        for ctl in ["quad_perm:[1,0,3,2]", "quad_perm:[2,3,0,1]", "row_half_mirror", "row_mirror"]:
            for r in regs:
                self.e(f"v_add_f32_dpp v{r}, v{r}, v{r} {ctl} row_mask:0xf bank_mask:0xf")
    def stat_finish(self, vs, vq, t0, t1):
        e = self.e
        e(f"v_mul_f32 v{vs}, {fl(1/512)}, v{vs}")
        e(f"v_mul_f32 v{t0}, v{vs}, v{vs}")
        e(f"v_mul_f32 v{vq}, {fl(1/512)}, v{vq}")
        e(f"v_sub_f32 v{vq}, v{vq}, v{t0}")
        e(f"v_max_f32 v{vq}, 0, v{vq}")
        e(f"v_cvt_pk_bf16_f32 v{t0}, v{vq}, v{vq}")
        e(f"v_and_b32 v{t0}, 0xffff0000, v{t0}")
        e(f"v_add_f32 v{t0}, {fl(1e-5)}, v{t0}")
        e(f"v_cvt_pk_bf16_f32 v{t0}, v{t0}, v{t0}")
        e(f"v_and_b32 v{t0}, 0xffff0000, v{t0}")
        e(f"v_sqrt_f32 v{t0}, v{t0}")
        e(f"v_cvt_pk_bf16_f32 v{vs}, v{t0}, v{vs}")
    def cmul_list(self, jobs):
        e = self.e; i = 0
        f1 = lambda d, a, b: f"v_pk_mul_f32 {vr(d,2)}, {vr(a,2)}, {vr(b,2)} op_sel:[0,0] op_sel_hi:[0,1]"
        f2 = lambda d, a, b: f"v_pk_fma_f32 {vr(d,2)}, {vr(a,2)}, {vr(b,2)}, {vr(d,2)} op_sel:[1,1,0] op_sel_hi:[1,0,1] neg_lo:[0,1,0]"
        while i < len(jobs):
            j = jobs[i]
            if i + 1 < len(jobs) and j[0] not in jobs[i+1][1:] and jobs[i+1][0] not in j:
                k = jobs[i+1]
                e(f1(*j)); e(f1(*k)); e(f2(*j)); e(f2(*k)); i += 2
            else:
                e(f1(*j)); e(f2(*j)); i += 1
    def kgen_pre(self):
        e = self.e
        e("v_mov_b32 v36, 0\nv_mov_b32 v37, 0\nv_mov_b32 v38, 0\nv_mov_b32 v39, 0")
        e("v_lshrrev_b32 v3, 5, v0")
        e(f"v_mul_u32_u24 v3, {HCH}, v3")
        e("v_and_b32 v4, 31, v0")
        e("v_lshl_add_u32 v3, v4, 4, v3")
        e(f"v_add_u32 v3, {L_HI}, v3")
        e("v_bfe_u32 v4, v0, 2, 2")
        e(f"v_mul_u32_u24 v4, 4160, v4")
        e("v_and_b32 v5, 3, v0")
        e("v_lshl_add_u32 v4, v5, 4, v4")
        e(f"v_add_u32 v4, {L_K + 4096}, v4")
        e("v_cmp_gt_u32 vcc, 64, v0")
        e("v_cndmask_b32 v3, v4, v3, vcc")
        e("v_cmp_gt_u32 vcc, 80, v0")
        e(f"s_and_saveexec_b64 s[{S_EX}:{S_EX+1}], vcc")
        zl = self.lab("z")
        e(f"s_cbranch_execz {zl}")
        e("ds_write_b128 v3, v[36:39]")
        self.label(zl)
        e(f"s_mov_b64 exec, s[{S_EX}:{S_EX+1}]")
        e(f"s_lshr_b32 s{S_T0}, s{S_WV}, 1")
        e(f"s_lshl_b32 s{S_T0}, s{S_T0}, 4")
        e(f"s_lshr_b32 s{S_T1}, s{S_LDT}, s{S_T0}")
        e(f"s_lshl_b32 s{S_T1}, s{S_T1}, 16")
        e(f"v_mov_b32 v3, {fl(LOG2E)}")
        e(f"v_mul_f32 v3, s{S_T1}, v3")
        e("v_exp_f32 v3, v3")
        e("v_cvt_pk_bf16_f32 v3, v3, v3")
        e("v_and_b32 v35, 0xffff0000, v3")
    def kgen_tab(self, chunks=()):
        e = self.e
        keep = self.p.take()
        for i in range(6): e(f"v_lshlrev_b32 v{26+i}, 16, v{18+i}")
        e("v_mul_f32 v26, v26, v35\nv_mul_f32 v27, v27, v35\nv_mul_f32 v28, v28, v35\nv_mul_f32 v29, v29, v35")
        e(f"v_mul_f32 v26, {fl(LOG2E)}, v26")
        e("v_mul_f32 v27, 0.15915494, v27")
        S = lambda j: 40 + 2 * j
        Gt = lambda T: 74 + 2 * (T - 1)
        Pn = lambda n: 88 + 2 * n
        S32, S64, S128 = 138, 140, 142
        def direct(dst, t, a, b, c):
            if t == 1:
                e(f"v_exp_f32 v{a}, v26\nv_fract_f32 v{b}, v27")
            else:
                e(f"v_mul_f32 v{a}, {fl(float(t))}, v26\nv_mul_f32 v{b}, {fl(float(t))}, v27")
                e(f"v_exp_f32 v{a}, v{a}\nv_fract_f32 v{b}, v{b}")
            e(f"v_cos_f32 v{c}, v{b}\nv_sin_f32 v{b}, v{b}\ns_nop 0")
            e(f"v_mul_f32 v{dst}, v{a}, v{c}\nv_mul_f32 v{dst+1}, v{a}, v{b}")
        e(f"s_mul_i32 s{S_T0}, s{S_WV}, {TABW}")
        e(f"v_lshl_add_u32 v34, v1, 2, s{S_T0}")
        st = {"n": 0}
        def pair(ent, jobs, srcs, neg=False):
            self.cmul_list(jobs)
            pk = 128 + 2*(st["n"] & 3); st["n"] += 1
            grp = ent >> 2; ad = 136 + (grp & 1)
            if (ent & 3) == 0 or st.get(ad) != grp:
                e(f"v_add_u32 v{ad}, {L_TAB + grp*4*TPITCH}, v34"); st[ad] = grp
            for i in range(2):
                if srcs[i] is None: e(f"v_mov_b32 v{pk+i}, 0x3f80")
                else: e(f"v_cvt_pk_bf16_f32 v{pk+i}, v{srcs[i]}, {'-' if neg else ''}v{srcs[i]+1}")
            o = 68*(ent & 3)
            e(f"ds_write2_b32 v{ad}, v{pk}, v{pk+1} offset0:{o} offset1:{o+68}")
        direct(S(1), 1, 120, 121, 122)
        pair(0, [], [None, S(1)])
        direct(S(16), 16, 123, 124, 125)
        pair(2, [(S(2), S(1), S(1)), (Pn(0), 30, 28), (S(3), S(2), S(1))], [S(2), S(3)])
        direct(Gt(1), 256, 120, 121, 122)
        pair(48, [(Pn(1), Pn(0), S(16)), (S32, S(16), S(16))], [Pn(0), Pn(1)], True)
        pair(4, [(S(4), S(2), S(2)), (S(5), S(3), S(2))], [S(4), S(5)])
        pair(6, [(S(6), S(4), S(2)), (S(7), S(4), S(3))], [S(6), S(7)])
        pair(50, [(Pn(2), Pn(0), S32), (Pn(3), Pn(1), S32), (S64, S32, S32)], [Pn(2), Pn(3)], True)
        pair(8, [(S(8), S(4), S(4)), (S(9), S(5), S(4))], [S(8), S(9)])
        pair(10, [(S(10), S(8), S(2)), (S(11), S(8), S(3))], [S(10), S(11)])
        pair(52, [(Pn(4), Pn(0), S64), (Pn(5), Pn(1), S64)], [Pn(4), Pn(5)], True)
        pair(54, [(Pn(6), Pn(2), S64), (Pn(7), Pn(3), S64), (S128, S64, S64)], [Pn(6), Pn(7)], True)
        pair(12, [(S(12), S(8), S(4)), (S(13), S(8), S(5))], [S(12), S(13)])
        pair(14, [(S(14), S(8), S(6)), (S(15), S(8), S(7))], [S(14), S(15)])
        aux = [[(Gt(2), Gt(1), Gt(1))], [(Gt(3), Gt(2), Gt(1))], [(Gt(4), Gt(2), Gt(2))], []]
        for i in range(4):
            pair(56 + 2*i, [(Pn(8+2*i), Pn(2*i), S128), (Pn(9+2*i), Pn(2*i+1), S128)] + aux[i], [Pn(8+2*i), Pn(9+2*i)], True)
        ents = {0: [(1, 0), (1, 2), (1, 4), (1, 6), (1, 8), (4, 0), (4, 8), (4, 16)],
                1: [(1, 8), (1, 10), (1, 12), (1, 14), (1, 16), (5, 0), (5, 8), (5, 16)],
                2: [(2, 0), (2, 4), (2, 8), (2, 12), (2, 16), (6, 0), (6, 8), (6, 16)],
                3: [(3, 0), (3, 4), (3, 8), (3, 12), (3, 16), (7, 0), (7, 8), (7, 16)]}
        extra = {(0, 0): (Gt(5), Gt(4), Gt(1)), (2, 0): (Gt(6), Gt(4), Gt(2)), (3, 0): (Gt(7), Gt(4), Gt(3))}
        tb = 0
        for q in range(4):
            for h in range(4):
                two = ents[q][2*h:2*h+2]; base = 88 + 4*(tb & 3); tb += 1
                jobs = []; srcs = []
                for i, (T, j) in enumerate(two):
                    if j == 0: srcs.append(Gt(T))
                    else: jobs.append((base + 2*i, Gt(T), S(j))); srcs.append(base + 2*i)
                if (q, h) in extra: jobs.append(extra[(q, h)])
                pair(16 + 16*(h >> 1) + 4*q + 2*(h & 1), jobs, srcs)
        body = self.p.take()
        self.p.put(keep + spread(body, [(0, c) for c in chunks]))

    def kgen_post(self, post_b2=None):
        e = self.e
        e(f"s_lshr_b32 s{S_T2}, s{S_WV}, 1\ns_mul_i32 s{S_T0}, s{S_T2}, {2*TABW}")
        e(f"v_and_b32 v6, 15, v1\nv_mul_u32_u24 v3, {TPITCH}, v6")
        e("v_lshrrev_b32 v7, 4, v1\nv_lshl_add_u32 v3, v7, 4, v3")
        e(f"v_add_u32 v3, s{S_T0}, v3")
        e(f"s_and_b32 s{S_T1}, s{S_WV}, 1\ns_mul_i32 s{S_T1}, s{S_T1}, {16*TPITCH}\nv_add_u32 v4, s{S_T1}, v3")
        e(f"s_mul_i32 s{S_T2}, s{S_T2}, {KCH}\ns_add_u32 s{S_T2}, s{S_T2}, {L_K}")
        e(f"v_lshlrev_b32 v6, 5, v6\nv_sub_u32 v6, s{S_T2}, v6")
        e("v_lshlrev_b32 v9, 9, v7\nv_sub_u32 v9, v6, v9")
        e("s_waitcnt lgkmcnt(0)\ns_barrier")
        self.stamp(21)
        F = 40; toks = {}
        for ks in range(8):
            o = L_TAB + (ks >> 2)*TABW + (ks & 3)*64; r = F + 12*ks
            self.tok(f"ds_read_b128 {vr(r+8,4)}, v3 offset:{o + 48*TPITCH}")
            toks[(ks, 0)] = self.tok(f"ds_read_b128 {vr(r,4)}, v4 offset:{o}")
            toks[(ks, 1)] = self.tok(f"ds_read_b128 {vr(r+4,4)}, v3 offset:{o + 32*TPITCH}")
        A0 = 136; A2 = 140
        for ks in range(8):
            r = F + 12*ks
            for b, acc in ((0, A0), (1, A2)):
                self.wait(toks[(ks, b)])
                e(f"v_mfma_f32_16x16x32_bf16 {vr(acc,4)}, {vr(r+4*b,4)}, {vr(r+8,4)}, {vr(acc,4) if ks else '0'}")
        e("s_barrier")
        if post_b2: post_b2()
        h1 = self.lab("kh1"); jn = self.lab("kj")
        e(f"s_bitcmp1_b32 s{S_WV}, 0\ns_cbranch_scc1 {h1}")
        def cv(d, lst):
            for i, (a, b) in enumerate(lst): e(f"v_cvt_pk_bf16_f32 v{d+i}, v{a}, v{b}")
        O = KODD - 4
        e("v_lshlrev_b32 v8, 3, v7\nv_sub_u32 v8, v6, v8")
        f0, f1, f2 = A2+1, A2+2, A2+3
        cv(52, [(f2, f2), (f2, f2), (f1, f1), (f1, f1), (f1, f1), (f1, f0), (f0, f0), (f0, f0)])
        e(f"ds_write_b128 v9, v[52:55] offset:{2*(2032-1024)}")
        cv(60, [(f2, f2), (f2, f2), (f2, f1), (f1, f1), (f1, f1), (f1, f1), (f0, f0), (f0, f0)])
        e(f"ds_write_b128 v9, v[56:59] offset:{2*(2032-1024)+16}")
        cv(48, [(A0+3, A0+2), (A0+1, A0), (A0+2, A0+1)])
        e(f"ds_write_b128 v9, v[60:63] offset:{2*(2032-1024) + O}")
        e(f"ds_write_b128 v9, v[64:67] offset:{2*(2032-1024) + O + 16}")
        e(f"ds_write_b64 v8, v[48:49] offset:{2*2044}")
        e(f"ds_write_b16 v8, v48 offset:{2*2044 + O + 2}")
        e(f"ds_write_b32 v8, v50 offset:{2*2044 + O + 4}")
        e(f"ds_write_b16_d16_hi v8, v49 offset:{2*2044 + O + 8}")
        e(f"s_branch {jn}")
        self.label(h1)
        e("v_lshlrev_b32 v8, 4, v7\nv_sub_u32 v8, v6, v8")
        E_ = lambda j: A0 + j if j < 4 else A2
        C = lambda lst: [(E_(a), E_(b)) for a, b in lst]
        cv(52, C([(4, 4), (3, 3), (3, 2), (2, 2), (2, 2), (1, 1), (1, 0), (0, 0)]))
        e("s_mov_b32 exec_lo, 0")
        e(f"ds_write_b128 v9, v[52:55] offset:{2*2032}\nds_write_b128 v9, v[56:59] offset:{2*2032+16}")
        e("s_mov_b32 exec_lo, -1")
        cv(60, C([(4, 4), (4, 3), (3, 3), (2, 2), (2, 2), (2, 1), (1, 1), (0, 0)]))
        e("s_mov_b32 exec_lo, 0")
        e(f"ds_write_b128 v9, v[60:63] offset:{2*2032 + O}\nds_write_b128 v9, v[64:67] offset:{2*2032 + O + 16}")
        e("s_mov_b32 exec_lo, -1")
        cv(40, C([(4, 3), (2, 2), (2, 1), (0, 0), (4, 4), (3, 2), (2, 2), (1, 0)]))
        e("s_mov_b32 exec_hi, 0")
        e(f"ds_write_b128 v8, v[40:43] offset:{2*(2040-256)}\nds_write_b128 v8, v[44:47] offset:{2*(2040-256) + O}")
        e(f"ds_write_b16 v8, v43 offset:{2*(2040-256) + O + 16}")
        e("s_mov_b32 exec_hi, -1")
        self.label(jn)

    def spin_check(self, retry_label, out_label=None):
        e = self.e
        e(f"s_sub_u32 s{S_SPIN}, s{S_SPIN}, 1")
        e(f"s_cmp_lg_u32 s{S_SPIN}, 0")
        e(f"s_cbranch_scc1 {retry_label}")
    def hbuild(self, after_first=None, mid=None):
        e = self.e
        e("v_lshlrev_b32 v3, 6, v0")
        e("v_and_b32 v4, 3, v1")
        e(f"v_mul_u32_u24 v4, {3072*8}, v4")
        e("v_lshrrev_b32 v5, 3, v1")
        e("v_min_u32 v5, 5, v5")
        e("v_lshl_add_u32 v4, v5, 12, v4")
        e("v_bfe_u32 v6, v1, 2, 1")
        e("v_lshl_add_u32 v4, v6, 3, v4")
        e(f"s_lshl_b32 s{S_T0}, s{S_D0}, 3")
        e(f"s_add_u32 s{S_T0}, s{S_T0}, {WS_MODP}")
        e(f"s_mov_b32 s{S_T1}, {WS_ST1}")
        e(f"s_lshl_b32 s{S_T2}, s{S_D0}, 13\ns_add_u32 s{S_T2}, s{S_T2}, {hx(WS_XB)}")
        e(f"s_mov_b32 s{S_SPIN}, {self.cfg['spin']}")
        rt = self.lab("h0"); ok = self.lab("h0ok"); ck = self.lab("h0ck")
        def pl():
            self.tok(f"buffer_load_dwordx2 v[8:9], v4, s[{S_WS}:{S_WS+3}], s{S_T0} offen sc1")
            for i in range(4):
                t_ = self.tok(f"buffer_load_dwordx4 v[{40+4*i}:{43+4*i}], v3, s[{S_WS}:{S_WS+3}], s{S_T1} offen offset:{16*i} sc1")
            for i in range(4):
                t_ = self.tok(f"buffer_load_dwordx4 v[{20+4*i}:{23+4*i}], v3, s[{S_WS}:{S_WS+3}], s{S_T2} offen offset:{16*i} sc1")
            return t_
        if after_first:
            t_ = pl(); after_first(); self.wait(t_)
            e(f"s_branch {ck}")
            keep = self.p.take()
            self.label(rt); pl(); e("s_waitcnt vmcnt(0)"); e(f"s_branch {ck}")
            self.ool += self.p.take(); self.p.put(keep[:-1])
            self.label(ck)
        else:
            self.label(rt); pl(); e("s_waitcnt vmcnt(0)")
        e(f"v_mov_b32 v10, s{S_TAG}")
        for i in range(8):
            e(f"v_min3_u32 v11, v{41+2*i}, v{21+2*i}, {'v11' if i else 'v9'}")
            e(f"v_max3_u32 v12, v{41+2*i}, v{21+2*i}, {'v12' if i else 'v9'}")
        e("v_xor_b32 v11, v11, v10\nv_xor_b32 v12, v12, v10\nv_or_b32 v7, v11, v12")
        e("v_cmp_ne_u32 vcc, 0, v7")
        e(f"s_cbranch_vccz {ok}")
        self.spin_check(rt)
        self.label(ok)
        self.stamp(4)
        keep_ = self.p.take()
        e("v_add_f32_dpp v8, v8, v8 quad_perm:[1,0,3,2] row_mask:0xf bank_mask:0xf")
        for i in range(4): e(f"v_lshlrev_b32 v{64+i}, 16, v{40+2*i}")
        e("v_add_f32_dpp v8, v8, v8 quad_perm:[2,3,0,1] row_mask:0xf bank_mask:0xf")
        for i in range(4, 8): e(f"v_lshlrev_b32 v{64+i}, 16, v{40+2*i}")
        e("v_cvt_pk_bf16_f32 v8, v8, v8\nv_rcp_f32 v64, v64\nv_and_b32 v8, 0xffff0000, v8\nv_rcp_f32 v65, v65")
        e("v_add_f32 v9, 1.0, v8\nv_rcp_f32 v66, v66")
        e("v_cvt_pk_bf16_f32 v9, v9, v9\nv_rcp_f32 v67, v67\nv_and_b32 v9, 0xffff0000, v9")
        X = 72; Hh = 88; Z = 104
        for i in range(8):
            if i < 6:
                src = 9 if i in (1, 4) else 8
                e(f"v_readlane_b32 s{S_M+2*i}, v{src}, {8*i}")
                e(f"v_readlane_b32 s{S_M+2*i+1}, v{src}, {8*i+4}")
            if i >= 4: e(f"v_rcp_f32 v{64+i}, v{64+i}")
            e(f"v_and_b32 v{56+i}, 0xffff0000, v{40+2*i}")
            k_ = i >> 1; src_ = 20 + 4*k_ + 2*(i & 1); dst_ = X + 8*(k_ & 1) + 4*(k_ >> 1) + 2*(i & 1)
            e(f"v_lshlrev_b32 v{dst_}, 16, v{src_}")
            e(f"v_and_b32 v{dst_+1}, 0xffff0000, v{src_}")
        sa, sA, ga, sb, sB, gb = [S_M + 2*i for i in range(6)]
        e(f"v_mov_b32 v16, s{ga}\nv_mov_b32 v17, s{ga+1}")
        for k in range(8):
            e(f"v_pk_add_f32 {vr(Hh+2*k,2)}, {vr(X+2*k,2)}, {vr(56+2*(k&3),2)} neg_lo:[0,1] neg_hi:[0,1]")
        e(f"v_mul_f32 v10, s{sA}, v16\nv_mul_f32 v11, s{sA+1}, v17")
        e(f"v_mul_f32 v12, s{sa}, v16\nv_mul_f32 v13, s{sa+1}, v17")
        e(f"s_lshl_b32 s{S_T0}, s{S_DSK}, 16\ns_and_b32 s{S_T1}, s{S_DSK}, 0xffff0000")
        e(f"v_mov_b32 v14, s{S_T0}\nv_mov_b32 v15, s{S_T1}")
        for k in range(8):
            e(f"v_pk_mul_f32 {vr(Hh+2*k,2)}, {vr(Hh+2*k,2)}, {vr(64+2*(k&3),2)}")
        for k in range(8):
            c = k >> 2
            e(f"v_pk_fma_f32 {vr(Hh+2*k,2)}, {vr(Hh+2*k,2)}, v[10:11], v[12:13] op_sel:[0,{c},{c}] op_sel_hi:[1,{c},{c}]")
        e(f"v_lshlrev_b32 v3, 4, v0\nv_add_u32 v3, {L_HI + 512}, v3")
        e(f"v_lshlrev_b32 v4, 5, v0\nv_add_u32 v4, {L_Z}, v4")
        for ch in range(2):
            for j in range(4):
                e(f"v_cvt_pk_bf16_f32 v{120+4*ch+j}, v{Hh+8*ch+2*j}, v{Hh+8*ch+2*j+1}")
            e(f"ds_write_b128 v3, v[{120+4*ch}:{123+4*ch}] offset:{HCH*ch}")
        for k in range(8):
            c = k >> 2
            e(f"v_pk_fma_f32 {vr(Z+2*k,2)}, {vr(Hh+2*k,2)}, v[14:15], {vr(X+2*k,2)} op_sel:[0,{c},0] op_sel_hi:[1,{c},1]")
            if k & 1: e(f"ds_write_b128 v4, {vr(Z+2*k-2,4)} offset:{8192*c + 16*((k>>1)&1)}")
        body_ = self.p.take()
        self.p.put(keep_ + spread(body_, [(0, c_) for c_ in (mid() if mid else [])]))
        nm = self.lab("nomodf")
        e(f"s_cmp_lg_u32 s{S_WV}, 0")
        e(f"s_cbranch_scc1 {nm}")
        e(f"s_lshr_b32 s{S_T0}, s{sB}, 16\ns_or_b32 s{S_T0}, s{S_T0}, s{sb}")
        e(f"s_lshr_b32 s{S_T1}, s{sB+1}, 16\ns_or_b32 s{S_T1}, s{S_T1}, s{sb+1}")
        e(f"v_mov_b32 v20, s{S_T0}\nv_mov_b32 v21, s{S_TAG}\nv_mov_b32 v22, s{gb}\nv_mov_b32 v23, s{S_TAG}")
        e(f"v_writelane_b32 v20, s{S_T1}, 1\nv_writelane_b32 v22, s{gb+1}, 1")
        e("v_lshlrev_b32 v19, 4, v1")
        e(f"s_lshl_b32 s{S_T0}, s{S_D0}, 4\ns_add_u32 s{S_T0}, s{S_T0}, {WS_MODF}")
        e("s_mov_b64 exec, 3")
        self.p.nc(f"buffer_store_dwordx4 v[20:23], v19, s[{S_WS}:{S_WS+3}], s{S_T0} offen sc1")
        e("s_mov_b64 exec, -1")
        self.label(nm)
    def conv(self, fillers=None, pre_start=None, pre_bar=None, post_bar=None):
        e = self.e
        ACC = 4
        FA = [40, 104]; FB = [72, 136]
        e(f"s_lshr_b32 s{S_T2}, s{S_WV}, 1")
        e(f"s_and_b32 s{S_T3}, s{S_WV}, 1")
        e("v_and_b32 v36, 15, v1\nv_lshrrev_b32 v37, 4, v1")
        e("v_lshlrev_b32 v38, 3, v37")
        e("v_sub_u32 v38, v38, v36")
        e("v_add_u32 v38, 2031, v38")
        e("v_lshrrev_b32 v38, 1, v38")
        e("v_and_b32 v39, 1, v1\nv_xor_b32 v39, 1, v39")
        e(f"v_mul_u32_u24 v39, {KODD}, v39")
        e("v_lshl_add_u32 v38, v38, 2, v39")
        e(f"s_mul_i32 s{S_T0}, s{S_T2}, {KCH}")
        e(f"s_lshl_b32 s{S_T1}, s{S_T3}, 8")
        e(f"s_sub_u32 s{S_T0}, s{S_T0}, s{S_T1}")
        e(f"s_add_u32 s{S_T0}, s{S_T0}, {L_K - 192 - 512}")
        for j in range(4):
            e(f"v_add_u32 v{168+j}, s{S_T0}, v38")
            if j < 3: e(f"s_sub_u32 s{S_T0}, s{S_T0}, 1024")
        e("v_lshlrev_b32 v38, 5, v36")
        e("v_lshl_add_u32 v38, v37, 4, v38")
        e(f"s_mul_i32 s{S_T0}, s{S_T2}, {HCH}")
        e(f"s_sub_u32 s{S_T0}, s{S_T0}, s{S_T1}")
        e(f"s_add_u32 s{S_T0}, s{S_T0}, {L_HI + 480 - 192}")
        e(f"v_add_u32 v172, s{S_T0}, v38")
        e("v_lshl_add_u32 v38, v36, 5, v38")
        e(f"s_lshl_b32 s{S_T0}, s{S_T2}, 13")
        e(f"s_lshl_b32 s{S_T1}, s{S_T3}, 12")
        e(f"s_add_u32 s{S_T0}, s{S_T0}, s{S_T1}")
        e(f"s_add_u32 s{S_T0}, s{S_T0}, {L_Z}")
        e(f"v_add_u32 v173, s{S_T0}, v38")
        if pre_start: pre_start()
        e("s_waitcnt lgkmcnt(0)")
        e("s_barrier")
        self.stamp(5)
        p1 = self.lab("cp1"); jn = self.lab("cj")
        e(f"s_cmp_lg_u32 s{S_T3}, 0")
        e(f"s_cbranch_scc1 {p1}")
        for par in range(2):
            for c in range(4):
                r = ACC + 4 * (4*par + c)
                e(f"ds_read_b128 v[{r}:{r+3}], v173 offset:{1024*c}")
            for r in range(16): e(f"v_mov_b32 v{ACC + 16*(1-par) + r}, 0")
            if par == 0:
                e(f"s_branch {jn}"); self.label(p1)
        self.label(jn)
        def loads(it):
            s = it & 1; L = []; o = 16 * (3 - it)
            tk = {}
            for k in range(8):
                tk[("B", k)] = self.tok(f"ds_read_b128 {vr(FB[s]+4*k,4)}, v172 offset:{512*k + 64*(3-it)}")
                b = 168 + (k >> 1); oo = o + (0 if k & 1 else 128)
                self.tok(f"ds_read2_b32 {vr(FA[s]+4*k,2)}, v{b} offset0:{oo} offset1:{oo+1}")
                tk[("A", k)] = self.tok(f"ds_read2_b32 {vr(FA[s]+4*k+2,2)}, v{b} offset0:{oo+2} offset1:{oo+3}")
            return tk
        pre = self.p.take()
        tks = [None] * 4
        tks[0] = loads(0)
        main = self.p.take()
        carry = []
        for it in range(4):
            nxt = []
            if it < 3:
                tks[it+1] = loads(it+1); nxt = self.p.take()
            s = it & 1
            order = sorted([(u, v) for u in range(8) for v in range(8 - u)], key=lambda t: (max(t), t[0]))
            seen = set(); k = 0
            for (u, v) in order:
                need = [t for t in (("A", u), ("B", v)) if t not in seen]
                if need:
                    self.wait(*[tks[it][t] for t in need]); seen |= set(need)
                cb = u + v
                e(f"v_mfma_f32_16x16x32_bf16 {vr(ACC+4*cb,4)}, {vr(FA[s]+4*u,4)}, {vr(FB[s]+4*v,4)}, {vr(ACC+4*cb,4)}")
                if nxt and (it > 0 or k >= 12):
                    self.p.put([nxt.pop(0)])
                k += 1
            self.p.put(nxt)
            seg = self.p.take()
            if it == 0: seg = main + seg; main = []
            carry = carry + (fillers.get(it, []) if fillers else [])
            seg, carry = merge(seg, carry, 8, pace=self.cfg["cpace"])
            if it == 3: seg += carry; carry = []
            main += seg
        self.p.put(pre + main)
        self.stamp(6)
        e(f"s_lshl_b32 s{S_T0}, s{S_WV}, 12")
        e(f"s_add_u32 s{S_T0}, s{S_T0}, {L_Z}")
        e(f"v_lshl_add_u32 v36, v1, 4, s{S_T0}")
        e(f"s_xor_b32 s{S_T1}, s{S_WV}, 1\ns_lshl_b32 s{S_T1}, s{S_T1}, 12\ns_add_u32 s{S_T1}, s{S_T1}, {L_Z}")
        e(f"v_lshl_add_u32 v37, v1, 4, s{S_T1}")
        if pre_bar: pre_bar()
        p1 = self.lab("ep1"); jn = self.lab("ej")
        e(f"s_cmp_lg_u32 s{S_T3}, 0")
        e(f"s_cbranch_scc1 {p1}")
        for par in range(2):
            e("s_nop 7")
            for c in range(4):
                r = ACC + 4 * (4*(1-par) + c)
                e(f"ds_write_b128 v36, {vr(r,4)} offset:{1024*c}")
            e("s_waitcnt lgkmcnt(0)")
            e("s_barrier")
            for c in range(4): e(f"ds_read_b128 {vr(40+4*c,4)}, v37 offset:{1024*c}")
            for c in range(4):
                e(f"s_waitcnt lgkmcnt({3-c})")
                r = ACC + 4 * (4*par + c)
                e(f"v_pk_add_f32 {vr(40+4*c,2)}, {vr(40+4*c,2)}, {vr(r,2)}")
                e(f"v_pk_add_f32 {vr(42+4*c,2)}, {vr(42+4*c,2)}, {vr(r+2,2)}")
            if par == 0:
                e(f"s_branch {jn}"); self.label(p1)
        self.label(jn)
        sB = S_M + 8
        e(f"s_cmp_eq_u32 s{S_T2}, 0")
        e(f"s_cselect_b32 s{S_T0}, s{sB}, s{sB+1}")
        e(f"v_mov_b32 v38, s{S_T0}\nv_mov_b32 v39, s{S_T0}")
        e("v_and_b32 v56, 15, v1\nv_lshrrev_b32 v57, 4, v1")
        e("v_lshrrev_b32 v58, 1, v56")
        e("v_and_b32 v59, 1, v57")
        e("v_lshl_add_u32 v58, v59, 3, v58")
        e("v_lshlrev_b32 v58, 15, v58")
        e("v_and_b32 v56, 1, v56")
        e("v_lshl_add_u32 v58, v56, 5, v58")
        e("v_lshrrev_b32 v57, 1, v57")
        e("v_lshl_add_u32 v58, v57, 4, v58")
        e(f"s_add_u32 s{S_T0}, s{S_D0}, s{S_T2}")
        e(f"s_lshl_b32 s{S_T0}, s{S_T0}, 6")
        e(f"s_lshl_b32 s{S_T1}, s{S_T3}, 20")
        e(f"s_add_u32 s{S_T0}, s{S_T0}, s{S_T1}")
        e(f"s_add_u32 s{S_T1}, s{S_T0}, {hx(WS_X1S)}")
        e(f"s_add_u32 s{S_T0}, s{S_T0}, {hx(WS_X1)}")
        if post_bar: post_bar()
        for pr in range(2):
            a = 40 + 8*pr
            d = 60 + 8*pr
            for h in range(4): e(f"v_pk_mul_f32 {vr(76+2*h,2)}, {vr(a+2*h,2)}, v[38:39]")
            for h in range(4): e(f"v_cvt_pk_bf16_f32 v{d+h}, v{76+2*h}, v{77+2*h}")
            for h in range(4): e(f"v_cvt_pk_bf16_f32 v{d+4+h}, v{a+2*h}, v{a+2*h+1}")
            e(f"v_permlane16_swap_b32 v{d}, v{d+2}\nv_permlane16_swap_b32 v{d+1}, v{d+3}")
            e(f"buffer_store_dwordx4 {vr(d,4)}, v58, s[{S_WS}:{S_WS+3}], s{S_T1} offen sc1")
            e(f"v_permlane16_swap_b32 v{d+4}, v{d+6}\nv_permlane16_swap_b32 v{d+5}, v{d+7}")
            e(f"buffer_store_dwordx4 {vr(d+4,4)}, v58, s[{S_WS}:{S_WS+3}], s{S_T0} offen sc1")
            if pr == 0:
                e(f"s_add_u32 s{S_T0}, s{S_T0}, {hx(16*32768)}\ns_add_u32 s{S_T1}, s{S_T1}, {hx(16*32768)}")
        self.stamp(7)
    def g1_map(self):
        e = self.e
        e(f"s_lshr_b32 s{S_G1}, s{S_XCD}, 1\ns_lshl_b32 s{S_G1}, s{S_G1}, 2")
        e(f"s_and_b32 s{S_T0}, s{S_IDX}, 3\ns_add_u32 s{S_G1}, s{S_G1}, s{S_T0}")
        e(f"s_and_b32 s{S_G2}, s{S_XCD}, 1\ns_mul_i32 s{S_G2}, s{S_G2}, 7")
        e(f"s_lshr_b32 s{S_T0}, s{S_IDX}, 2\ns_add_u32 s{S_G2}, s{S_G2}, s{S_T0}")
        e(f"s_lshl_b32 s{S_G2}, s{S_G2}, 7")
        e(f"s_lshl_b32 s{S_T0}, s{S_WV}, 5\ns_add_u32 s{S_G2}, s{S_G2}, s{S_T0}")
    def g1_epilogue(self, g, acc, stat):
        e = self.e
        save = self.p.take()
        T = 148
        rG, mG, rU, mU = stat, stat+1, stat+2, stat+3
        for t in range(2):
            for half in range(2):
                regs = [4*half + j for j in range(4)]
                gq = [T + j for j in range(4)]; uq = [T + 4 + j for j in range(4)]; q = [T + 8 + j for j in range(4)]
                if half: gq = [x + 12 for x in gq]; uq = [x + 12 for x in uq]; q = [x + 12 for x in q]
                for j, r in enumerate(regs): e(f"v_fma_f32 v{gq[j]}, v{mG}, v{self.U1+16*t+r}, v{self.U2+16*t+r}")
                for j, r in enumerate(regs): e(f"v_fmac_f32 v{gq[j]}, v{rG}, v{acc+16*t+r}")
                for j in range(4): e(f"v_fma_f32 v{q[j]}, -v{gq[j]}, v{gq[j]}, s{S_T3}")
                for j in range(4): e(f"v_mul_f32 v{q[j]}, v{gq[j]}, v{q[j]}")
                for j, r in enumerate(regs):
                    e(f"v_exp_f32 v{q[j]}, v{q[j]}")
                    e(f"v_fma_f32 v{uq[j]}, v{mU}, v{self.U1+16*t+8+r}, v{self.U2+16*t+8+r}")
                for j, r in enumerate(regs):
                    e(f"v_add_f32 v{q[j]}, 1.0, v{q[j]}")
                    e(f"v_fmac_f32 v{uq[j]}, v{rU}, v{acc+16*t+8+r}")
                for j in range(4):
                    e(f"v_rcp_f32 v{q[j]}, v{q[j]}")
                    e(f"v_mul_f32 v{uq[j]}, v{gq[j]}, v{uq[j]}")
                for j in range(4): e(f"v_mul_f32 v{uq[j]}, v{uq[j]}, v{q[j]}")
                e(f"v_cvt_pk_bf16_f32 v{172+2*half}, v{uq[0]}, v{uq[1]}")
                e(f"v_cvt_pk_bf16_f32 v{173+2*half}, v{uq[2]}, v{uq[3]}")
            e(f"s_add_u32 s101, s{S_T2}, {g*112*1024 + t*1024}")
            tk_ = self.tok(f"buffer_store_dwordx4 v[172:175], v147, s[{S_WS}:{S_WS+3}], s101 offen sc1")
        if hasattr(self, "htok"): self.htok[g] = tk_
        out = self.p.take(); self.p.put(save)
        return out
    def g2_map(self):
        e = self.e
        e(f"s_lshl_b32 s{S_G1}, s{S_XCD}, 1\ns_bfe_u32 s{S_T0}, s{S_IDX}, 0x10004\ns_add_u32 s{S_G1}, s{S_G1}, s{S_T0}")
        e(f"s_lshl_b32 s{S_G1}, s{S_G1}, 2")
        e(f"s_bfe_u32 s{S_T0}, s{S_IDX}, 0x10003")
        e(f"s_sub_u32 s{S_G2}, s{S_G1}, s{S_T0}\ns_add_u32 s{S_G2}, s{S_G2}, 3")
        e(f"s_add_u32 s{S_G1}, s{S_G1}, s{S_T0}")
        e(f"s_and_b32 s{S_G3}, s{S_IDX}, 7")
    XT = lambda self, g: (3 - g) * 32768
    S_HB = 81
    def x1s_issue(self, g):
        t = None
        for j in range(8):
            if j % 4 == 0:
                self.e(f"s_add_u32 m0, s{S_T1}, {self.XT(g) + j*1024}")
                self.e(f"s_add_u32 s13, s{S_T0}, {g*32768 + j*1024}")
            t = self.tok(f"buffer_load_dwordx4 v147, s[{S_WS}:{S_WS+3}], s13 offen offset:{(j%4)*1024} sc1 lds")
        return t
    def x1s_check(self, g, T, explicit=False):
        e = self.e
        for rnd in range(2):
            tk = [self.tok(f"ds_read_b128 {vr(T+4*j,4)}, v146 offset:{self.XT(g) % 65536 + (4*rnd+j)*1024}".replace("v146", "v146" if self.XT(g) < 65536 else "v143")) for j in range(4)]
            for j in range(4):
                if explicit: e(f"s_waitcnt lgkmcnt({3-j})")
                else: self.wait(tk[j])
                first = (rnd == 0 and j == 0)
                e(f"v_max3_u32 v{T+16}, v{T+4*j}, v{T+4*j+1}, {'0' if first else 'v%d' % (T+16)}")
                e(f"v_max3_u32 v{T+16}, v{T+4*j+2}, v{T+4*j+3}, v{T+16}")
        e(f"v_cmp_eq_u32 vcc, -1, v{T+16}")
    def x1s_guard(self, g, T, tok):
        e = self.e
        rt = self.lab("xr"); lp = self.lab("xl"); bk = self.lab("xb")
        self.wait(tok)
        self.x1s_check(g, T)
        e(f"s_cbranch_vccnz {rt}")
        self.label(bk)
        def rout():
            self.label(rt)
            e(f"s_mov_b32 s{S_SPIN}, {self.cfg['spin']}")
            self.label(lp)
            self.x1s_issue(g)
            e("s_waitcnt vmcnt(0) lgkmcnt(0)")
            self.x1s_check(g, T, explicit=True)
            e("s_nop 1")
            e(f"s_cbranch_vccz {bk}")
            self.spin_check(lp)
            e(f"s_branch {bk}")
        o, _ = self.capture(rout); self.ool += o
    def modf_issue(self):
        self.e(f"v_lshlrev_b32 v236, 5, v0\ns_mov_b32 s101, {WS_MODF}")
        self.tok(f"buffer_load_dwordx2 v[232:233], v236, s[{S_WS}:{S_WS+3}], s101 offen sc1")
        return self.tok(f"buffer_load_dwordx2 v[234:235], v236, s[{S_WS}:{S_WS+3}], s101 offen offset:16 sc1")
    def xfill(self):
        e = self.e
        e("v_mov_b32 v248, -1\nv_mov_b32 v249, -1\nv_mov_b32 v250, -1\nv_mov_b32 v251, -1")
        e("v_lshrrev_b32 v252, 3, v0\nv_lshlrev_b32 v252, 15, v252\nv_and_b32 v253, 7, v0\nv_lshl_add_u32 v252, v253, 4, v252")
        t = None
        for base in (WS_X1S, WS_X1S + 32*32768, WS_X1, WS_X1 + 32*32768):
            e(f"s_lshl_b32 s101, s{S_D0}, 6\ns_add_u32 s101, s101, {hx(base)}")
            t = self.tok(f"buffer_store_dwordx4 v[248:251], v252, s[{S_WS}:{S_WS+3}], s101 offen sc1") if not self.cfg.get('nofill') else None
        return t
    def gate_pub(self):
        e = self.e
        sk = self.lab("gp")
        e(f"s_cmp_lg_u32 s{S_WV}, 0\ns_cbranch_scc1 {sk}")
        e(f"s_lshl_b32 s101, s{S_D0}, 5\ns_add_u32 s101, s101, {WS_FL1}")
        e(f"v_mov_b32 v252, 0\nv_mov_b32 v253, s{S_TAG}")
        self.p.nc(f"buffer_store_dword v253, v252, s[{S_WS}:{S_WS+3}], s101 offen sc1")
        self.label(sk)
    S_FB = 3
    def hbase(self):
        e = self.e
        e(f"s_mul_i32 s{self.S_HB}, s{S_G1}, {4*112*1024}")
        e(f"s_lshl_b32 s101, s{S_G2}, 6")
        e(f"s_add_u32 s{self.S_HB}, s{self.S_HB}, s101")
        e(f"s_add_u32 s{self.S_HB}, s{self.S_HB}, {hx(WS_H)}")
        e(f"s_mul_i32 s{self.S_FB}, s{S_G1}, {4*56*64}")
        e(f"s_lshl_b32 s101, s{S_G2}, 1")
        e(f"s_add_u32 s{self.S_FB}, s{self.S_FB}, s101")
        e(f"s_add_u32 s{self.S_FB}, s{self.S_FB}, {WS_FL2}")
        e(f"s_cmp_ge_u32 s{S_IDX}, 28")
        e(f"s_cselect_b32 s{self.S_FB}, 0x7f000000, s{self.S_FB}")
    def hflag(self, g, vz, vt):
        self.wait(self.htok[g])
        self.e(f"s_add_u32 s101, s{self.S_FB}, {g*56*64}")
        self.e(f"buffer_store_dword v{vt}, v{vz}, s[{S_WS}:{S_WS+3}], s101 offen sc1")
    def capture(self, fn):
        keep = self.p.take(); r = fn(); out = self.p.take(); self.p.put(keep); return out, r
    def cap(self, fn): return self.capture(fn)[0]
    def guard(self, name, chk, reissue, cond="vccnz"):
        e = self.e
        rt = self.lab(name + "r"); lp = self.lab(name + "l"); bk = self.lab(name + "b")
        chk(False)
        e(f"s_cbranch_vccnz {rt}")
        self.label(bk)
        def rout():
            self.label(rt); e(f"s_mov_b32 s{S_SPIN}, {self.cfg['spin']}"); self.label(lp)
            reissue(); chk(True); e("s_nop 1")
            e(f"s_cbranch_vccz {bk}"); self.spin_check(lp); e(f"s_branch {bk}")
        self.ool += self.cap(rout)

    def p0_issue(self):
        e = self.e; T = self.T = {}
        e(f"s_lshl_b32 s{S_T0}, s2, 13\ns_lshl_b32 s{S_T1}, s{S_WV}, 11\ns_add_u32 s{S_T0}, s{S_T0}, s{S_T1}")
        e("v_lshlrev_b32 v9, 4, v1")
        self.tok(f"buffer_load_dwordx4 v[10:13], v9, s[{S_X}:{S_X+3}], s{S_T0} offen")
        T["xr"] = self.tok(f"buffer_load_dwordx4 v[14:17], v9, s[{S_X}:{S_X+3}], s{S_T0} offen offset:1024")
        e("v_lshrrev_b32 v4, 3, v1\nv_and_b32 v5, 7, v1\nv_lshlrev_b32 v5, 4, v5\nv_lshl_add_u32 v3, v4, 10, v5")
        e(f"s_lshl_b32 s{S_T0}, s{S_IDX}, 16\ns_lshl_b32 s{S_T2}, s{S_XCD}, 7\ns_add_u32 s{S_T0}, s{S_T0}, s{S_T2}")
        e(f"s_lshl_b32 s{S_T2}, s{S_WV}, 14\ns_add_u32 s{S_T0}, s{S_T0}, s{S_T2}")
        e(f"s_add_u32 m0, s{S_T1}, {L_XT}\ns_add_u32 s{S_T2}, s{S_T0}, 8192")
        self.tok(f"buffer_load_dwordx4 v3, s[{S_X}:{S_X+3}], s{S_T0} offen lds")
        e(f"s_add_u32 m0, s{S_T1}, {L_XT + 1024}")
        T["xt"] = self.tok(f"buffer_load_dwordx4 v3, s[{S_X}:{S_X+3}], s{S_T2} offen lds")
        e(f"s_lshl_b32 s{S_T2}, s{S_D0}, 8")
        e(f"v_lshl_add_u32 v8, v0, 1, s{S_T2}")
        for i in range(6): T["ssm"] = self.tok(f"global_load_ushort v{18+i}, v8, s[{P_ARE+2*i}:{P_ARE+2*i+1}]")
        skip = self.lab("nomod"); jn = self.lab("modj")
        e(f"s_cmp_ge_u32 s2, 192\ns_cbranch_scc1 {skip}")
        e(f"s_mul_i32 s{S_M}, s2, 1366\ns_lshr_b32 s{S_M}, s{S_M}, 16")
        e(f"s_mul_i32 s{S_T0}, s{S_M}, 48\ns_sub_u32 s{S_M+1}, s2, s{S_T0}")
        e(f"s_lshl_b32 s{S_T0}, s{S_M}, 8")
        e(f"v_lshl_add_u32 v3, v1, 2, s{S_T0}")
        T["c"] = self.tok(f"global_load_dword v24, v3, s[{P_C}:{P_C+1}]")
        e("v_mul_u32_u24 v3, 6144, v4\nv_add_u32 v3, v3, v5")
        e(f"s_mul_i32 s{S_T0}, s{S_M}, {128*6144}\ns_lshl_b32 s{S_T2}, s{S_M+1}, 7\ns_add_u32 s{S_T0}, s{S_T0}, s{S_T2}")
        e(f"s_mul_i32 s{S_T2}, s{S_WV}, {32*6144}\ns_add_u32 s{S_T0}, s{S_T0}, s{S_T2}")
        e(f"s_lshl_b32 s{S_T1}, s{S_WV}, 12")
        for j in range(4):
            e(f"s_add_u32 m0, s{S_T1}, {L_MOD + 1024*j}")
            if j: e(f"s_add_u32 s{S_T0}, s{S_T0}, {8*6144}")
            T["wm"] = self.tok(f"buffer_load_dwordx4 v3, s[{S_WM}:{S_WM+3}], s{S_T0} offen lds")
        e(f"s_branch {jn}")
        self.label(skip)
        for j in range(5): self.p.nc(f"global_load_dword v24, v9, s[{P_C}:{P_C+1}]")
        self.label(jn)

    def p0_stats(self):
        e = self.e
        e("v_mov_b32 v3, 0x3f803f80")
        self.wait(self.T["xr"])
        for i in range(4):
            c = lambda r: (f"v{r}" if i else "0")
            e(f"v_dot2_f32_bf16 v4, v{10+i}, v3, {c(4)}")
            e(f"v_dot2_f32_bf16 v5, v{10+i}, v{10+i}, {c(5)}")
            e(f"v_dot2_f32_bf16 v6, v{14+i}, v3, {c(6)}")
            e(f"v_dot2_f32_bf16 v7, v{14+i}, v{14+i}, {c(7)}")
        self.reduce16([4, 5, 6, 7])
        e("v_permlane16_swap_b32 v4, v5\nv_permlane16_swap_b32 v6, v7")
        e("v_add_f32 v4, v4, v5\nv_add_f32 v6, v6, v7")
        e("v_permlane32_swap_b32 v4, v6")
        e("v_add_f32 v4, v4, v6")
        e("v_mov_b32 v5, v4")
        e("v_permlane16_swap_b32 v4, v5")
        self.stat_finish(4, 5, 6, 7)
        e(f"v_mov_b32 v5, s{S_TAG}")
        e("v_lshrrev_b32 v6, 2, v1")
        e(f"s_lshl_b32 s{S_T0}, s2, 6\ns_lshl_b32 s{S_T1}, s{S_WV}, 4\ns_add_u32 s{S_T0}, s{S_T0}, s{S_T1}\ns_add_u32 s{S_T0}, s{S_T0}, {WS_ST1}")
        e("s_mov_b32 exec_lo, 1\ns_mov_b32 exec_hi, 1")
        e(f"buffer_store_dwordx2 v[4:5], v6, s[{S_WS}:{S_WS+3}], s{S_T0} offen sc1")
        e("s_mov_b64 exec, -1")

    def p0_xb(self):
        e = self.e
        e(f"s_lshl_b32 s{S_T1}, s{S_WV}, 5\ns_add_u32 s{S_T1}, s{S_T1}, {L_XT}")
        e("v_lshrrev_b32 v25, 2, v1\nv_lshlrev_b32 v25, 7, v25\nv_and_b32 v4, 3, v1\nv_lshl_add_u32 v25, v4, 3, v25")
        e(f"v_add_u32 v3, s{S_T1}, v25")
        e("v_bfe_u32 v4, v1, 1, 3\nv_lshlrev_b32 v4, 14, v4")
        e("v_lshrrev_b32 v5, 4, v1\nv_lshl_add_u32 v4, v5, 5, v4")
        e("v_and_b32 v5, 1, v1\nv_lshl_add_u32 v4, v5, 4, v4")
        e(f"s_lshl_b32 s{S_T0}, s{S_XCD}, 19\ns_lshl_b32 s{S_T1}, s{S_WV}, 17\ns_add_u32 s{S_T0}, s{S_T0}, s{S_T1}")
        e(f"s_lshl_b32 s{S_T1}, s{S_IDX}, 9\ns_add_u32 s{S_T0}, s{S_T0}, s{S_T1}\ns_add_u32 s{S_T0}, s{S_T0}, {hx(WS_XB)}")
        for i in range(4): e(f"v_mov_b32 v{39+4*i}, s{S_TAG}")
        self.wait(self.T["xt"])
        e("s_barrier")
        tk = [self.tok(f"ds_read_b64_tr_b16 v[{36+4*i}:{37+4*i}], v3 offset:{2048*i}") for i in range(4)]
        for i in range(4):
            self.wait(tk[i])
            e(f"v_mov_b32 v{38+4*i}, v{37+4*i}\nv_mov_b32 v{37+4*i}, s{S_TAG}")
            e(f"buffer_store_dwordx4 v[{36+4*i}:{39+4*i}], v4, s[{S_WS}:{S_WS+3}], s{S_T0} offen offset:{128*i}" + ("" if self.cfg.get('xbplain') else " sc1"))

    def p0_mod(self):
        e = self.e
        skip = self.lab("nomod2")
        self.wait(self.T["ssm"])
        e(f"s_cmp_ge_u32 s2, 192\ns_cbranch_scc1 {skip}")
        self.wait(self.T["c"])
        e("v_lshlrev_b32 v3, 16, v24\nv_and_b32 v4, 0xffff0000, v24")
        e(f"v_mul_f32 v5, {fl(-LOG2E)}, v3\nv_mul_f32 v6, {fl(-LOG2E)}, v4")
        e("v_exp_f32 v5, v5\nv_exp_f32 v6, v6")
        e("v_add_f32 v5, 1.0, v5\nv_add_f32 v6, 1.0, v6")
        e("v_rcp_f32 v5, v5\nv_rcp_f32 v6, v6")
        e("v_mul_f32 v3, v3, v5\nv_mul_f32 v4, v4, v6")
        e("v_cvt_pk_bf16_f32 v3, v3, v4")
        e(f"s_lshl_b32 s{S_T0}, s{S_WV}, 8\ns_add_u32 s{S_T0}, s{S_T0}, {L_MOD + 16384}")
        e(f"v_lshl_add_u32 v4, v1, 2, s{S_T0}")
        e("ds_write_b32 v4, v3")
        e("v_lshrrev_b32 v5, 4, v1")
        e(f"v_lshl_add_u32 v4, v5, 4, s{S_T0}")
        e("v_lshl_add_u32 v6, v5, 9, v25")
        e(f"s_lshl_b32 s{S_T1}, s{S_WV}, 5\ns_add_u32 s{S_T1}, s{S_T1}, {L_MOD}")
        e(f"v_add_u32 v6, s{S_T1}, v6")
        self.wait(self.T["wm"])
        e("s_waitcnt lgkmcnt(0)\ns_barrier")
        for ks in range(4):
            e(f"ds_read_b128 v[{52+8*ks}:{55+8*ks}], v4 offset:{64*ks}")
            e(f"ds_read_b64_tr_b16 v[{56+8*ks}:{57+8*ks}], v6 offset:{4096*ks}")
            e(f"ds_read_b64_tr_b16 v[{58+8*ks}:{59+8*ks}], v6 offset:{4096*ks+512}")
        e(f"s_mul_i32 s{S_T0}, s{S_M}, {3072*8}\ns_lshl_b32 s{S_T1}, s{S_M+1}, 9\ns_add_u32 s{S_T0}, s{S_T0}, s{S_T1}")
        e(f"s_lshl_b32 s{S_T1}, s{S_WV}, 7\ns_add_u32 s{S_T0}, s{S_T0}, s{S_T1}\ns_add_u32 s{S_T0}, s{S_T0}, {WS_MODP}")
        e("v_lshlrev_b32 v6, 3, v1")
        for ks in range(4):
            e(f"s_waitcnt lgkmcnt({9-3*ks})")
            e(f"v_mfma_f32_16x16x32_bf16 v[84:87], v[{52+8*ks}:{55+8*ks}], v[{56+8*ks}:{59+8*ks}], {'v[84:87]' if ks else '0'}")
        e("s_barrier")
        e(f"v_mov_b32 v85, s{S_TAG}")
        e("s_mov_b64 exec, 0xffff")
        self.p.nc(f"buffer_store_dwordx2 v[84:85], v6, s[{S_WS}:{S_WS+3}], s{S_T0} offen sc1")
        e("s_mov_b64 exec, -1")
        self.label(skip)

    def touch(self):
        e = self.e
        e(f"s_mul_i32 s{S_T0}, s2, {56*128}")
        e("v_min_u32 v3, 55, v1\nv_lshlrev_b32 v3, 7, v3")
        e(f"v_add_u32 v3, s{S_T0}, v3")
        e(f"s_cmp_eq_u32 s{S_WV}, 0\ns_cselect_b32 s{S_T2}, s{P_WG}, s{P_WU}\ns_cselect_b32 s{S_T3}, s{P_WG+1}, s{P_WU+1}")
        e(f"s_cmp_ge_u32 s{S_WV}, 2\ns_cselect_b32 s{S_T2}, s{P_WD}, s{S_T2}\ns_cselect_b32 s{S_T3}, s{P_WD+1}, s{S_T3}")
        e(f"global_load_dword v253, v3, s[{S_T2}:{S_T3}]")

    def w_setup(self):
        e = self.e
        e(f"s_bitcmp1_b32 s{S_WV}, 0\ns_cselect_b32 s8, s{P_WU}, s{P_WG}\ns_cselect_b32 s9, s{P_WU+1}, s{P_WG+1}")
        e(f"s_cmp_ge_u32 s{S_IDX}, 28\ns_cselect_b32 s10, 0, {hx(0 if self.cfg.get('now') else 1835008)}\ns_mov_b32 s11, 0x20000")
        e("v_lshrrev_b32 v241, 4, v1\nv_mul_u32_u24 v240, 3584, v241")
        e(f"s_and_b32 s13, s{S_WV}, 1\nv_lshl_add_u32 v241, v241, 1, s13")
        e("v_bfe_u32 v242, v1, 1, 3\nv_xor_b32 v241, v241, v242\nv_lshl_add_u32 v240, v241, 5, v240")
        e("v_and_b32 v241, 1, v1\nv_lshl_add_u32 v240, v241, 4, v240")
        e(f"s_lshr_b32 s14, s{S_WV}, 1\ns_mul_i32 s15, s14, {8*3584}")
        e(f"s_and_b32 s101, s{S_G2}, 0xffffff80\ns_lshl_b32 s101, s101, 1\ns_add_u32 s15, s15, s101")
        e(f"v_add_u32 v240, s15, v240\nv_add_u32 v247, {4*3584 - 1024}, v240")
        e("s_lshl_b32 s12, s13, 12\ns_lshl_b32 s14, s14, 11\ns_add_u32 s12, s12, s14")
        e("v_bfe_u32 v241, v1, 4, 1\nv_bfe_u32 v242, v1, 2, 2")
        e("v_lshl_add_u32 v243, v242, 1, v241")
        e(f"s_lshl_b32 s13, s{S_WV}, 1\nv_xor_b32 v243, s13, v243\nv_lshlrev_b32 v243, 5, v243")
        e("v_lshl_add_u32 v243, v241, 12, v243\nv_lshl_add_u32 v243, v242, 8, v243")
        e("v_lshrrev_b32 v241, 5, v1\nv_lshl_add_u32 v243, v241, 11, v243")
        e("v_and_b32 v241, 1, v1\nv_lshl_add_u32 v243, v241, 4, v243")
        e("v_bfe_u32 v241, v1, 1, 1\nv_lshl_add_u32 v241, v241, 3, v243")
        e("v_xor_b32 v242, 32, v241")
        e("v_add_u32 v243, 0x10000, v241\nv_add_u32 v244, 0x10000, v242\nv_add_u32 v245, 0x20000, v241\nv_add_u32 v246, 0x20000, v242")
        self.wt = {}
    def w_issue(self, ks):
        e = self.e
        if self.cfg.get('noch'):
            self.wt[ks] = None; e("s_nop 0\ns_nop 0\ns_nop 0\ns_nop 0"); return
        e(f"s_add_u32 m0, s12, {wslot(ks)}\ns_mov_b32 s14, {ks*16*3584}")
        self.tok("buffer_load_dwordx4 v240, s[8:11], s14 offen lds")
        self.wt[ks] = self.tok("buffer_load_dwordx4 v247, s[8:11], s14 offen offset:1024 lds")
    def w_read(self, ks):
        b = wslot(ks); t_ = None
        for t in range(2):
            for i in range(2):
                o = b + 1024*i
                t_ = self.tok(f"ds_read_b64_tr_b16 {ar((t*32+ks)*4+2*i,2)}, v{241 + 2*(o >> 16) + t} offset:{o & 0xffff}")
        return t_
    def w_issue_l(self, r):
        for ks in r: self.w_issue(ks)
    def w_chunks(self, r):
        out = []
        for ks in r:
            l = self.cap(lambda: self.w_issue(ks)); out += [l[:3], l[3:]]
        return out
    def w_read_l(self, r):
        t = None
        for ks in r: t = self.w_read(ks)
        return t

    U1 = 176; U2 = 208
    def modf_check(self, tok):
        e = self.e
        self.wait(tok)
        def chk(ex):
            e(f"v_xor_b32 v233, s{S_TAG}, v233\nv_xor_b32 v235, s{S_TAG}, v235\nv_or_b32 v233, v233, v235")
            e("v_cmp_ne_u32 vcc, 0, v233")
        self.guard("mf", chk, lambda: (self.modf_issue(), e("s_waitcnt vmcnt(0)")))
    def gate_issue(self):
        self.e(f"v_lshlrev_b32 v141, 6, v0\ns_mov_b32 s101, {WS_FL1}")
        return self.tok(f"buffer_load_dword v140, v141, s[{S_WS}:{S_WS+3}], s101 offen sc1")
    def gate_check(self, tok):
        self.wait(tok)
        self.guard("gt", lambda ex: self.e(f"v_cmp_ne_u32 vcc, s{S_TAG}, v140"), lambda: (self.gate_issue(), self.e("s_waitcnt vmcnt(0)")))
    def shadow1(self):
        e = self.e; c = self.cfg
        e("s_mov_b32 s101, 0x05040100\nv_perm_b32 v5, v234, v232, s101")
        e("s_mov_b32 s101, 0x07060302\nv_perm_b32 v7, v234, v232, s101")
        e(f"v_lshlrev_b32 v3, 2, v0\nv_add_u32 v3, {L_SS}, v3")
        e("ds_write2st64_b32 v3, v5, v7 offset0:0 offset1:4")
        e("v_bfe_u32 v2, v1, 4, 1\nv_lshlrev_b32 v2, 10, v2")
        e("v_lshrrev_b32 v4, 5, v1\nv_lshl_add_u32 v2, v4, 4, v2")
        e(f"v_add_u32 v2, {L_SS}, v2")
        self.w_issue_l(range(26, 29))
        self.wait(self.wt[21])
        e("s_waitcnt lgkmcnt(0)\ns_barrier")
        self.stamp(8)
        R = 8; tk = {}
        def umf(k0, k1, wtok={}):
            for ks in range(k0, min(k0 + R, k1)): tk[ks] = self.tok(f"ds_read_b128 {vr(100+4*(ks%R),4)}, v2 offset:{32*ks}")
            for ks in range(k0, k1):
                self.wait(tk[ks], wtok.get(ks))
                for t in range(2):
                    acc = vr(self.U1 + 16*t, 16)
                    e(f"v_mfma_f32_32x32x16_bf16 {acc}, {ar((t*32+ks)*4,4)}, {vr(100+4*(ks%R),4)}, {acc if ks else '0'}")
                if ks + R < k1: tk[ks+R] = self.tok(f"ds_read_b128 {vr(100+4*(ks%R),4)}, v2 offset:{32*(ks+R)}")
        def setup():
            e(f"s_lshl_b32 s{S_T1}, s{S_WV}, 13")
            e("v_lshlrev_b32 v147, 4, v1")
            e(f"v_add_u32 v146, s{S_T1}, v147\nv_add_u32 v143, 0x10000, v146")
            e(f"s_lshl_b32 s{S_T0}, s{S_G1}, 17\ns_add_u32 s{S_T0}, s{S_T0}, s{S_T1}\ns_add_u32 s{S_T0}, s{S_T0}, {hx(WS_X1S)}")
            e("v_lshrrev_b32 v144, 5, v1\nv_lshlrev_b32 v144, 9, v144")
            e("v_bfe_u32 v145, v1, 2, 2\nv_lshl_add_u32 v144, v145, 6, v144")
            e("v_bfe_u32 v145, v1, 4, 1\nv_lshl_add_u32 v144, v145, 5, v144")
            e("v_and_b32 v145, 3, v1\nv_lshl_add_u32 v144, v145, 3, v144")
            e("v_add_u32 v142, 0x10000, v144")
            e("v_and_b32 v145, 31, v1\nv_lshlrev_b32 v145, 3, v145")
        hold = {}
        cap = self.cap
        f = cap(lambda: hold.__setitem__("g", self.gate_issue())) + cap(lambda: (self.wait(self.w_read_l(range(13, 22)), self.wt[25]), e("s_barrier")))
        f += cap(lambda: self.w_issue_l(range(29, 32))) + cap(setup) + cap(lambda: hold.__setitem__("d", self.w_read_l(range(22, 26))))
        m, left = merge(cap(lambda: umf(0, 13)), f, 24, pace=2); self.p.put(m + left)
        ga = c["ga"]
        umf(13, ga)
        self.gate_check(hold["g"])
        self.stamp(9)
        f = cap(lambda: hold.__setitem__("x", self.x1s_issue(0)))
        self.wait(hold["d"])
        m, left = merge(cap(lambda: umf(ga, 26)), f, 24, pace=2); self.p.put(m + left)
        self.wait(self.wt[31])
        e("s_barrier")
        r = self.w_read_l(range(26, 32)); self.wait(r)
        umf(26, 32)
        for r in range(32): e(f"v_mov_b32 v{self.U2+r}, v{self.U1+r}")
        for r in range(32): e(f"v_permlane16_swap_b32 v{self.U1+r}, v{self.U2+r}")
        for r in range(32): e(f"v_mul_f32 v{self.U2+r}, {fl(GAM if (r & 15) < 8 else 1/GAM)}, v{self.U2+r}")
        self.stamp(10)
        self.x1s_guard(0, 148, hold["x"])
        e("s_waitcnt lgkmcnt(0)\ns_barrier")
        self.stamp(12)

    def stats2_job(self):
        e = self.e
        e(f"s_lshl_b32 s{S_T2}, s{S_XCD}, 2\ns_add_u32 s{S_T2}, s{S_T2}, s{S_IDX}\ns_sub_u32 s{S_T2}, s{S_T2}, 28")
        e(f"s_lshl_b32 s{S_T1}, s{S_WV}, 13")
        e(f"s_lshl_b32 s{S_T0}, s{S_T2}, 16\ns_add_u32 s{S_T0}, s{S_T0}, s{S_T1}\ns_add_u32 s{S_T0}, s{S_T0}, {hx(WS_X1)}")
        e("v_lshlrev_b32 v147, 4, v1\nv_lshlrev_b32 v146, 7, v1")
        e("v_lshrrev_b32 v144, 5, v1\nv_lshlrev_b32 v144, 9, v144")
        e("v_bfe_u32 v145, v1, 2, 2\nv_lshl_add_u32 v144, v145, 6, v144")
        e("v_bfe_u32 v145, v1, 4, 1\nv_lshl_add_u32 v144, v145, 5, v144")
        e("v_and_b32 v145, 3, v1\nv_lshl_add_u32 v144, v145, 3, v144")
        e(f"s_lshl_b32 s{S_T1}, s{S_WV}, 14\nv_add_u32 v144, s{S_T1}, v144")
        e("v_mov_b32 v5, 0x3f803f80")
        e("s_waitcnt vmcnt(0)\ns_barrier")
        self.gate_issue(); e("s_waitcnt vmcnt(0)")
        self.guard("g2", lambda ex: e(f"v_cmp_ne_u32 vcc, s{S_TAG}, v140"), lambda: (self.gate_issue(), e("s_waitcnt vmcnt(0)")))
        e(f"s_mov_b32 s{S_SPIN}, {self.cfg['spin']}")
        lp = self.lab("pj"); go = self.lab("pg"); ok = self.lab("pk")
        self.label(lp)
        e(f"s_add_u32 s101, s{S_T0}, 32768")
        e(f"buffer_load_dword v6, v146, s[{S_WS}:{S_WS+3}], s{S_T0} offen sc1")
        e(f"buffer_load_dword v7, v146, s[{S_WS}:{S_WS+3}], s101 offen offset:64 sc1")
        e("s_waitcnt vmcnt(0)\nv_max_u32 v6, v6, v7\nv_cmp_eq_u32 vcc, -1, v6\ns_nop 1")
        e(f"s_cbranch_vccz {go}")
        self.spin_check(lp)
        e(f"s_mov_b32 s{S_SPIN}, 1")
        self.label(go)
        for b in range(2):
            for j in range(8):
                e(f"s_add_u32 m0, s{S_T1}, {b*8192 + j*1024}\ns_add_u32 s101, s{S_T0}, {b*32768 + j*1024}")
                e(f"buffer_load_dwordx4 v147, s[{S_WS}:{S_WS+3}], s101 offen sc1 lds")
        for b in range(2):
            e(f"s_waitcnt vmcnt({8*(1-b)})")
            for j in range(16): e(f"ds_read_b64_tr_b16 {vr(40+2*j,2)}, v144 offset:{b*8192 + (j>>1)*1024 + (j&1)*256}")
            for j in range(32):
                if j % 8 == 0: e(f"s_waitcnt lgkmcnt({12 - j//2})")
                e(f"v_dot2_f32_bf16 v{8+2*b}, v{40+j}, v5, {'v%d' % (8+2*b) if j else '0'}")
                e(f"v_dot2_f32_bf16 v{9+2*b}, v{40+j}, v{40+j}, {'v%d' % (9+2*b) if j else '0'}")
        e("s_nop 2\nv_add_f32 v6, v9, v11\nv_cmp_u_f32 vcc, v6, v6\ns_nop 1")
        e(f"s_cbranch_vccz {ok}")
        self.spin_check(lp)
        self.label(ok)
        e("v_permlane32_swap_b32 v8, v10\nv_permlane32_swap_b32 v9, v11")
        e("v_add_f32 v8, v8, v10\nv_add_f32 v9, v9, v11")
        e(f"s_lshl_b32 s101, s{S_WV}, 9\ns_add_u32 s101, s101, {L_SS}")
        e("v_lshlrev_b32 v12, 3, v1\nv_add_u32 v13, s101, v12")
        e("ds_write_b64 v13, v[8:9]")
        e(f"v_add_u32 v13, {L_SS}, v12")
        e("s_waitcnt lgkmcnt(0)\ns_barrier")
        sk = self.lab("s2w")
        e(f"s_cmp_lg_u32 s{S_WV}, 0\ns_cbranch_scc1 {sk}")
        for w in range(4): e(f"ds_read_b64 v[{14+2*w}:{15+2*w}], v13 offset:{512*w}")
        e("s_waitcnt lgkmcnt(0)")
        e("v_pk_add_f32 v[14:15], v[14:15], v[16:17]\nv_pk_add_f32 v[18:19], v[18:19], v[20:21]\nv_pk_add_f32 v[14:15], v[14:15], v[18:19]")
        self.stat_finish(14, 15, 16, 17)
        e(f"v_mov_b32 v15, s{S_TAG}")
        e(f"s_lshl_b32 s101, s{S_T2}, 9\ns_add_u32 s101, s101, {WS_ST2}")
        e(f"buffer_store_dwordx2 v[14:15], v12, s[{S_WS}:{S_WS+3}], s101 offen sc1")
        self.label(sk)
        e("s_barrier")

    def wd_setup(self):
        e = self.e
        e("v_lshrrev_b32 v240, 3, v1")
        e("v_bfe_u32 v241, v1, 4, 1\nv_lshlrev_b32 v241, 2, v241")
        e("v_and_b32 v242, 7, v1\nv_xor_b32 v241, v241, v242")
        e("v_lshlrev_b32 v240, 10, v240\nv_lshl_add_u32 v240, v241, 4, v240")
        e(f"v_add_u32 v241, {8192 - 1024}, v240")
        e(f"s_mul_i32 s{S_LDT}, s{S_WV}, {448*1024}")
        e(f"s_and_b32 s101, s{S_IDX}, 7\ns_lshl_b32 s101, s101, 7\ns_add_u32 s{S_LDT}, s{S_LDT}, s101")
        e(f"s_mul_i32 s{S_M+8}, s{S_WV}, 6144\ns_add_u32 s{S_M+8}, s{S_M+8}, {L_SP}")
        e(f"s_lshl_b32 s{S_M+9}, s{S_WV}, 13")
        e("v_lshrrev_b32 v242, 5, v1\nv_lshlrev_b32 v242, 10, v242")
        e("v_bfe_u32 v243, v1, 2, 2\nv_lshl_add_u32 v242, v243, 7, v242")
        e("v_bfe_u32 v243, v1, 3, 1\nv_lshl_add_u32 v242, v243, 6, v242")
        e("v_and_b32 v243, 1, v1\nv_lshl_add_u32 v242, v243, 5, v242")
        e("v_bfe_u32 v243, v1, 1, 1\nv_lshl_add_u32 v242, v243, 3, v242")
        e("v_bfe_u32 v243, v1, 4, 1\nv_lshl_add_u32 v242, v243, 4, v242")
    def wd_loc(self, ks):
        sl = ks if ks < 19 else ks - 19
        if sl < 3: return 0, 2048*sl
        q, r = divmod(sl - 3, 4)
        return 1, (3 - q)*32768 + 2048*r
    def wd_issue(self, ks):
        e = self.e
        r, o = self.wd_loc(ks)
        e(f"s_add_u32 m0, s{S_M+8+r}, {o}\ns_add_u32 s15, s{S_LDT}, {ks*16384}")
        self.tok(f"buffer_load_dwordx4 v240, s[{S_WD}:{S_WD+3}], s15 offen lds")
        self.wdt[ks] = self.tok(f"buffer_load_dwordx4 v241, s[{S_WD}:{S_WD+3}], s15 offen offset:1024 lds")
    def wd_chunks(self, r):
        out = []
        for ks in r:
            l = self.cap(lambda: self.wd_issue(ks)); out += [l[:3], l[3:]]
        return out
    def wd_read(self, ks):
        r, o = self.wd_loc(ks); t_ = None
        for t in range(2):
            for i in range(2):
                oo = o + 512*i
                reg = 230 if r == 0 else (232 if oo < 65536 else 234)
                t_ = self.tok(f"ds_read_b64_tr_b16 {ar((ks*2+t)*4+2*i,2)}, v{reg+t} offset:{oo & 0xffff}")
        return t_

    def gemm1f(self):
        e = self.e; c = self.cfg; cap = self.cap
        e(f"s_mov_b32 s{S_T2}, s{self.S_HB}\ns_mov_b32 s{S_T3}, {fl(-GC)}")
        ACC = [4, 36, 68]; BR = 100; R = 7
        seq = [(g, ks) for g in range(4) for ks in range(32)]
        def bread(n):
            g, ks = seq[n]; b = BR + 4*(n % R); base = self.XT(g); ad = 144 if base < 65536 else 142
            o = base % 65536 + ks*1024
            self.tok(f"ds_read_b64_tr_b16 {vr(b,2)}, v{ad} offset:{o}")
            return self.tok(f"ds_read_b64_tr_b16 {vr(b+2,2)}, v{ad} offset:{o+256}")
        PF = R - 1
        tk = {}
        for n in range(PF): tk[n] = bread(n)
        ST = [128, 132, 136, 248]
        def st_issue():
            e(f"s_lshl_b32 s101, s{S_G1}, 10\ns_add_u32 s101, s101, {WS_ST2}")
            t = None
            for g in range(4):
                t = self.tok(f"buffer_load_dwordx2 {vr(ST[g],2)}, v145, s[{S_WS}:{S_WS+3}], s101 offen offset:{256*g} sc1")
            return t
        def st_chk(ex):
            e(f"v_xor_b32 v140, s{S_TAG}, v{ST[0]+1}")
            for g in range(1, 4): e(f"v_xor_b32 v{ST[g]+2}, s{S_TAG}, v{ST[g]+1}\nv_or_b32 v140, v140, v{ST[g]+2}")
            e("v_cmp_ne_u32 vcc, 0, v140")
        def st_guard(tok):
            self.wait(tok)
            self.guard("st", st_chk, lambda: (st_issue(), e("s_waitcnt vmcnt(0)")))
            for g in range(4):
                b = ST[g]
                e(f"v_lshlrev_b32 v{b+2}, 16, v{b}\nv_rcp_f32 v{b+2}, v{b+2}")
                e(f"v_and_b32 v{b+3}, 0xffff0000, v{b}")
                e(f"v_mul_f32 v{b+3}, v{b+3}, v{b+2}")
                e(f"v_mul_f32 v{b}, {fl(GAM)}, v{b+2}\nv_mul_f32 v{b+1}, {fl(-GAM)}, v{b+3}")
                e(f"v_mul_f32 v{b+2}, {fl(1/GAM)}, v{b+2}\nv_mul_f32 v{b+3}, {fl(-1/GAM)}, v{b+3}")
        def steps(g, k0, k1):
            for ks in range(k0, k1):
                n = g*32 + ks
                self.wait(tk[n])
                for t in range(2):
                    acc = vr(ACC[g % 3] + 16*t, 16)
                    e(f"v_mfma_f32_32x32x16_bf16 {acc}, {ar((t*32+ks)*4,4)}, {vr(BR+4*(n%R),4)}, {acc if ks else '0'}")
                    if t == 0 and n + PF < 128: tk[n+PF] = bread(n+PF)
        def seg(g, k0, k1, fill, flush=True):
            m = cap(lambda: steps(g, k0, k1))
            m, left = merge(m, fill, 24, pace=c["gpace"])
            self.p.put(m)
            if flush: self.p.put(left); return []
            return left
        xt = {}; hold = {}; self.wdt = {}; self.htok = {}
        xi = lambda g: cap(lambda: xt.__setitem__(g, self.x1s_issue(g)))
        seg(0, 0, c["x1k"], xi(1) + xi(2) + cap(lambda: (e(f"v_mov_b32 v252, 0\nv_mov_b32 v253, s{S_TAG}"), self.wd_setup())))
        seg(0, c["x1k"], 25, cap(lambda: self.x1s_guard(1, 148, xt[1])))
        e("s_barrier")
        pend = seg(0, 25, 32, xi(3), flush=False)
        pend += cap(lambda: self.x1s_guard(2, 148, xt[2])) + sum(self.wd_chunks(range(3)), [])
        pend = seg(1, 0, c["sti"], pend)
        pend = cap(lambda: hold.__setitem__("t", st_issue())) + cap(lambda: self.x1s_guard(3, 148, xt[3]))
        seg(1, c["sti"], c["stk"], pend)
        e("s_barrier")
        self.stamp(13)
        ep0 = cap(lambda: st_guard(hold["t"])) + weave(self.g1_epilogue(0, ACC[0], ST[0]), self.wd_chunks(range(3, 7)), 20)
        pend = seg(1, c["stk"], 32, ep0, flush=False)
        pend = seg(2, 0, 2, pend, flush=False)
        e("s_barrier")
        ep1 = weave(self.g1_epilogue(1, ACC[1], ST[1]), self.wd_chunks(range(7, 11)), 20) + cap(lambda: self.hflag(0, 252, 253))
        pend = seg(2, 2, 32, pend + ep1, flush=False)
        if len(pend) > len(ep1):
            self.p.put(pend[:len(pend) - len(ep1)]); pend = pend[len(pend) - len(ep1):]
        pend = seg(3, 0, 2, pend, flush=False)
        e("s_barrier")
        ep2 = weave(self.g1_epilogue(2, ACC[2], ST[2]), self.wd_chunks(range(11, 15)), 20) + cap(lambda: self.hflag(1, 252, 253))
        pend = seg(3, 2, 32, pend + ep2, flush=False)
        self.stamp(14)
        self.p.put(pend + self.g1_epilogue(3, ACC[0], ST[3]))
        self.stamp(15)

    def gemm2f(self):
        e = self.e; c = self.cfg; cap = self.cap
        e(f"v_add_u32 v230, s{S_M+8}, v242\nv_xor_b32 v231, 64, v230")
        e(f"v_add_u32 v232, s{S_M+9}, v242\nv_xor_b32 v233, 64, v232\nv_add_u32 v234, 0x10000, v232\nv_add_u32 v235, 0x10000, v233")
        e("v_lshlrev_b32 v244, 4, v1")
        e("v_min_u32 v246, 13, v1\nv_lshlrev_b32 v246, 6, v246")
        e(f"s_mul_i32 s{S_M+2}, s{S_WV}, {14*64}\ns_add_u32 s{S_M+2}, s{S_M+2}, {WS_FL2}")
        e(f"s_mul_i32 s{S_M+3}, s{S_G2}, {56*64}\ns_add_u32 s{S_M+3}, s{S_M+3}, s{S_M+2}")
        e(f"s_mul_i32 s101, s{S_G1}, {56*64}\ns_add_u32 s{S_M+2}, s{S_M+2}, s101")
        def fl_issue(nt): return self.tok(f"buffer_load_dword v{247-2*nt}, v246, s[{S_WS}:{S_WS+3}], s{S_M+2+nt} offen sc1")
        f0 = fl_issue(0)
        e(f"s_mul_i32 s{S_M+4}, s{S_G1}, {112*1024}\ns_mul_i32 s{S_M+5}, s{S_G2}, {112*1024}")
        e(f"s_mul_i32 s{S_M+6}, s{S_WV}, {28*1024}\ns_add_u32 s{S_M+6}, s{S_M+6}, {hx(WS_H)}")
        e(f"s_add_u32 s{S_M+4}, s{S_M+4}, s{S_M+6}\ns_add_u32 s{S_M+5}, s{S_M+5}, s{S_M+6}")
        e(f"v_mov_b32 v228, 0\nv_mov_b32 v229, s{S_TAG}")
        rd = {}
        for ks in range(15):
            self.wait(self.wdt[ks]); rd[ks] = self.wd_read(ks)
        e("s_barrier")
        HB = 68
        def hl(nt, ks):
            e(f"s_add_u32 s101, s{S_M+4+nt}, {ks*1024}")
            return self.tok(f"buffer_load_dwordx4 {vr(HB+4*ks,4)}, v244, s[{S_WS}:{S_WS+3}], s101 offen sc1")
        self.wait(f0)
        self.guard("f0", lambda ex: e(f"v_cmp_ne_u32 vcc, s{S_TAG}, v247"), lambda: (fl_issue(0), e("s_waitcnt vmcnt(0)")))
        self.stamp(16)
        self.hflag(2, 228, 229)
        ht = {}
        order = [("h", ks) for ks in range(15)]
        for ks in range(15, 28): order += [("w", ks), ("h", ks)]
        def iss(it):
            if it[0] == "h": ht[(0, it[1])] = hl(0, it[1])
            else: self.wd_issue(it[1])
        NPRE = c["npre"]
        self.wait(rd[14])
        for it in order[:NPRE]: iss(it)
        self.hflag(3, 228, 229)
        e(f"s_bitcmp1_b32 s{S_WV}, 1\ns_cselect_b32 s{S_T2}, s{S_G2}, s{S_G1}")
        e(f"s_and_b32 s{S_T3}, s{S_WV}, 1\ns_lshl_b32 s{S_T3}, s{S_T3}, 5")
        e(f"s_lshl_b32 s{S_M}, s{S_G3}, 6\ns_add_u32 s{S_T3}, s{S_T3}, s{S_M}")
        e(f"s_lshl_b32 s{S_M}, s{S_T2}, 15\ns_lshl_b32 s{S_M+1}, s{S_T3}, 6\ns_add_u32 s{S_M}, s{S_M}, s{S_M+1}")
        e(f"s_add_u32 s{S_M}, s{S_M}, {hx(WS_X1)}")
        e(f"s_lshl_b32 s{S_M+1}, s{S_WV}, 11\ns_add_u32 s{S_M+1}, s{S_M+1}, {L_XR2}")
        def mm(nt, ks):
            for t in range(2):
                acc = vr(4 + 32*nt + 16*t, 16)
                e(f"v_mfma_f32_32x32x16_bf16 {acc}, {ar((ks*2+t)*4,4)}, {vr(HB+4*ks,4)}, {acc if ks else '0'}")
        rest = order[NPRE:]
        KC = c["kc"]; f1 = None
        def rdw(ks):
            if 15 <= ks < 28 and ks not in rd:
                self.wait(self.wdt[ks]); rd[ks] = self.wd_read(ks)
        for ks in range(KC):
            for _ in range(2):
                if rest: iss(rest.pop(0))
            if not rest and f1 is None: f1 = fl_issue(1)
            rdw(ks + 1)
            self.wait(ht[(0, ks)], rd[ks]); mm(0, ks)
        assert not rest and f1 is not None
        slow = self.lab("g2slow"); jn = self.lab("g2j")
        self.wait(f1)
        e(f"v_cmp_ne_u32 vcc, s{S_TAG}, v245\ns_cbranch_vccnz {slow}")
        pendw = [ks for ks in range(15, 28) if ks not in rd]
        nx = 0
        for ks in range(KC, 28):
            for _ in range(c["nb"]):
                if nx < ks: ht[(1, nx)] = hl(1, nx); nx += 1
            rdw(ks + 1)
            self.wait(ht[(0, ks)], rd[ks]); mm(0, ks)
        while nx < 28: ht[(1, nx)] = hl(1, nx); nx += 1
        self.label(jn)
        def rout():
            lp = self.lab("g2l"); ok = self.lab("g2ok")
            self.label(slow)
            e("s_waitcnt vmcnt(0)")
            for ks in pendw: self.wd_read(ks)
            fl_issue(1)
            e("s_waitcnt lgkmcnt(0)")
            for ks in range(KC, 28): mm(0, ks)
            e(f"s_mov_b32 s{S_SPIN}, {self.cfg['spin']}")
            self.label(lp)
            e(f"s_waitcnt vmcnt(0)\nv_cmp_ne_u32 vcc, s{S_TAG}, v245\ns_nop 1\ns_cbranch_vccz {ok}")
            fl_issue(1)
            self.spin_check(lp)
            e("s_waitcnt vmcnt(0)")
            self.label(ok)
            for ks in range(28): hl(1, ks)
            e(f"s_branch {jn}")
        self.ool += cap(rout)
        self.stamp(19)
        def extras():
            e(f"s_mov_b32 m0, s{S_M+1}\ns_nop 0")
            self.tok(f"buffer_load_dwordx4 v244, s[{S_WS}:{S_WS+3}], s{S_M} offen sc1 lds")
            self.xr = self.tok(f"buffer_load_dwordx4 v244, s[{S_WS}:{S_WS+3}], s{S_M} offen offset:1024 sc1 lds")
            e("v_lshrrev_b32 v245, 5, v1\nv_lshlrev_b32 v245, 8, v245")
            e(f"s_lshl_b32 s{S_M+2}, s{S_T3}, 4\ns_add_u32 s{S_M+2}, s{S_M+2}, {WS_MODF + 8}")
            for j in range(16): self.gbt = self.tok(f"buffer_load_dword v{208+j}, v245, s[{S_WS}:{S_WS+3}], s{S_M+2} offen offset:{16*j} sc1")
        def wr(T):
            for j in range(4): e(f"ds_write_b128 v{246 + (T >> 1)}, {vr(4+16*T+4*j,4)} offset:{(T & 1)*32768 + 1024*j}")
        def addrs():
            e(f"v_add_u32 v246, s{S_M+9}, v244\nv_add_u32 v247, 0x10000, v246")
            e(f"s_lshl_b32 s{S_T0}, s{S_WV}, 15\nv_add_u32 v236, s{S_T0}, v244")
            e("v_lshrrev_b32 v248, 5, v1\nv_lshlrev_b32 v248, 10, v248")
            e("v_bfe_u32 v249, v1, 2, 2\nv_lshl_add_u32 v248, v249, 6, v248")
            e("v_bfe_u32 v249, v1, 4, 1\nv_lshl_add_u32 v248, v249, 5, v248")
            e("v_and_b32 v249, 3, v1\nv_lshl_add_u32 v248, v249, 3, v248")
            e(f"v_add_u32 v248, s{S_M+1}, v248")
            e("v_and_b32 v249, 31, v1\nv_lshlrev_b32 v249, 10, v249")
            e("v_lshrrev_b32 v250, 5, v1\nv_lshl_add_u32 v249, v250, 5, v249")
            e(f"s_lshl_b32 s{S_T0}, s{S_T2}, 15\ns_lshl_b32 s{S_T1}, s{S_T3}, 1\ns_add_u32 s{S_T0}, s{S_T0}, s{S_T1}")
        def resid():
            self.wait(self.xr)
            tk = [self.tok(f"ds_read_b64_tr_b16 {vr(224+2*j,2)}, v248 offset:{256*j}") for j in range(4)]
            self.wait(tk[3])
            for j in range(8): e(f"v_lshlrev_b32 v{184+2*j}, 16, v{224+j}\nv_and_b32 v{185+2*j}, 0xffff0000, v{224+j}")
        def nt1():
            for ks in range(28):
                self.wait(ht[(1, ks)]); mm(1, ks)
        fill = cap(extras) + cap(addrs) + cap(lambda: (wr(0), wr(1))) + cap(resid)
        m, left = merge(cap(nt1), fill, 24, pace=1); self.p.put(m + left)
        self.stamp(17)
        wr(2); wr(3)
        e("s_waitcnt lgkmcnt(0)\ns_barrier")
        rt = {}
        for w in range(4):
            for j in range(4): rt[(w, j)] = self.tok(f"ds_read_b128 {vr(68+16*w+4*j,4)}, v236 offset:{8192*w + 1024*j}")
        self.wait(rt[(1, 3)])
        for j in range(8): e(f"v_pk_add_f32 {vr(68+2*j,2)}, {vr(68+2*j,2)}, {vr(84+2*j,2)}")
        self.wait(rt[(3, 3)], self.gbt)
        for j in range(8): e(f"v_pk_add_f32 {vr(100+2*j,2)}, {vr(100+2*j,2)}, {vr(116+2*j,2)}")
        for h in range(2):
            for j in range(4*h, 4*h+4): e(f"v_pk_add_f32 {vr(68+2*j,2)}, {vr(68+2*j,2)}, {vr(100+2*j,2)}")
            for j in range(4*h, 4*h+4): e(f"v_pk_fma_f32 {vr(68+2*j,2)}, {vr(68+2*j,2)}, {vr(208+2*j,2)}, {vr(184+2*j,2)}")
            for j in range(4*h, 4*h+4): e(f"v_cvt_pk_bf16_f32 v{24+j}, v{68+2*j}, v{69+2*j}")
            e(f"buffer_store_dwordx4 {vr(24+4*h,4)}, v249, s[{S_OUT}:{S_OUT+3}], s{S_T0} offen offset:{16*h}")
        self.stamp(18)

    def bump_epoch(self):
        e = self.e
        sk = self.lab("ep")
        e("s_cmp_lg_u32 s2, 0")
        e(f"s_cbranch_scc1 {sk}")
        e(f"s_add_u32 s{S_T0}, s{S_E}, 1")
        e(f"v_mov_b32 v3, s{S_T0}\nv_mov_b32 v4, 0")
        e("s_mov_b64 exec, 1")
        e(f"buffer_store_dword v3, v4, s[{S_WS}:{S_WS+3}], 0 offen sc1")
        e("s_mov_b64 exec, -1")
        self.label(sk)
    def finish(self):
        if self.cfg.get("hold"):
            self.label("F_hold")
            self.e(f"s_memrealtime s[{S_ST}:{S_ST+1}]\ns_waitcnt lgkmcnt(0)\ns_sub_u32 s{S_T0}, s{S_ST}, s34\ns_cmp_lt_u32 s{S_T0}, {self.cfg['hold']}\ns_cbranch_scc1 F_hold")
        self.stamp_flush()
        self.label(f"{self.cfg['uid']}_end")
        self.e("s_endpgm")
        ins = resolve(self.p.take()) + self.ool
        ins, n = pad_hazards(ins)
        return render(ins)
def kernel_text(name, body, vgpr=512, accum=256):
    return f""".text
.globl {name}
.p2align 8
.type {name},@function
{name}:
{body}
.section .rodata,"a"
.p2align 6
.amdhsa_kernel {name}
  .amdhsa_next_free_vgpr {vgpr}
  .amdhsa_next_free_sgpr 102
  .amdhsa_accum_offset {accum}
  .amdhsa_group_segment_fixed_size 0
  .amdhsa_kernarg_size 144
  .amdhsa_user_sgpr_count 2
  .amdhsa_user_sgpr_kernarg_segment_ptr 1
  .amdhsa_system_sgpr_workgroup_id_x 1
.end_amdhsa_kernel
"""

def build(stamps=False, over={}):
    hdr = open("adaLN_cond__ssm_conv_s4__glu_gated_geglu__prompt.s.ref").read().split("; Override launch")[0]
    cfg = dict(spin=200000, stamps=stamps, uid="F", x1k=19, sti=8, stk=20, kc=22, nb=4, npre=16, ga=18, cpace=4, gpace=2, nb1=4, touch=1)
    cfg.update(over)
    g = G(cfg); e = g.e
    g.prologue()
    g.p0_issue()
    g.g1_map(); g.w_setup(); g.hbase()
    g.tag_ready(); g.stamp(1)
    g.kgen_pre()
    g.p0_stats(); g.stamp(2); g.p0_xb(); g.stamp(23); g.p0_mod(); g.stamp(22)
    if cfg['touch']: g.touch()
    g.kgen_tab(g.w_chunks(range(0, 5)))
    nb1 = cfg["nb1"]
    g.kgen_post(post_b2=lambda: g.w_issue_l(range(5, 5 + nb1)))
    g.stamp(3)
    g.hbuild(after_first=lambda: None, mid=lambda: g.w_chunks(range(5 + nb1, 13)))
    hold = {}
    cap = g.cap
    f0, hold["fill"] = g.capture(g.xfill)
    f1 = cap(lambda: (g.wait(g.w_read_l(range(0, 9)), g.wt[12]), e("s_barrier")))
    f2 = cap(lambda: g.w_issue_l(range(13, 15))) + cap(lambda: hold.__setitem__("r", g.w_read_l(range(9, 13)))) + cap(lambda: g.w_issue_l(range(15, 22)))
    f3 = cap(lambda: (g.wait(hold["r"]), e("s_barrier"), g.w_issue_l(range(22, 26))))
    f4, hold["modf"] = g.capture(g.modf_issue)
    g.conv(fillers={0: f1 + f0 + f2 + f4 + f3}, pre_start=lambda: g.wait(g.wt[8]),
           pre_bar=lambda: g.wait(hold["fill"]), post_bar=g.gate_pub)
    g.modf_check(hold["modf"])
    e(f"s_cmp_ge_u32 s{S_IDX}, 28\ns_cbranch_scc1 F_alt")
    g.shadow1()
    g.gemm1f()
    g.label("F_g2")
    def alt():
        g.label("F_alt")
        g.stats2_job(); g.stamp(11)
        g.wd_setup()
        keep = dict(g.wdt)
        for ks in range(15): g.wd_issue(ks)
        g.wdt = keep
        e("s_waitcnt vmcnt(0)\ns_branch F_g2")
    g.ool += g.cap(alt)
    g.g2_map(); g.gemm2f(); g.bump_epoch()
    launch = f"; @launch grid=(256,1,1) block=(256,1,1) lds={LDS_BYTES}\n"
    return hdr + launch + '.amdgcn_target "amdgcn-amd-amdhsa--gfx950"\n' + kernel_text(KN, g.finish())

if __name__ == "__main__":
    over = {}
    for a in sys.argv[1:]:
        if "=" in a:
            k, v = a.split("="); over[k] = int(v)
    print(build(stamps="stamps" in sys.argv[1:], over=over))
```

```python
import re

TRANS = ("v_exp_f32", "v_log_f32", "v_rcp_f32", "v_rsq_f32", "v_sqrt_f32", "v_sin_f32", "v_cos_f32")

class Ins:
    __slots__ = ("text", "kind", "tok", "wait", "note")
    def __init__(self, text, kind=None, tok=None, wait=None):
        self.text = text; self.kind = kind; self.tok = tok; self.wait = wait

def _expand(op):
    op = op.strip()
    op = re.sub(r"^-", "", op)
    m = re.match(r"^abs\((.*)\)$", op)
    if m: op = m.group(1)
    op = op.strip("|")
    m = re.match(r"^([vas])(\d+)$", op)
    if m: return [(m.group(1), int(m.group(2)))]
    m = re.match(r"^([vas])\[(\d+):(\d+)\]$", op)
    if m: return [(m.group(1), i) for i in range(int(m.group(2)), int(m.group(3)) + 1)]
    if op == "vcc": return [("s", 106), ("s", 107)]
    if op == "vcc_lo": return [("s", 106)]
    if op == "vcc_hi": return [("s", 107)]
    if op == "m0": return [("s", 124)]
    if op == "exec": return [("s", 126), ("s", 127)]
    return []

def parse(text):
    t = text.split(";")[0].strip()
    parts = t.split(None, 1)
    mn = parts[0]
    ops = []
    if len(parts) > 1:
        depth = 0; cur = ""
        for ch in parts[1]:
            if ch in "[(": depth += 1
            if ch in "])": depth -= 1
            if ch == "," and depth == 0:
                ops.append(cur.strip()); cur = ""
            else: cur += ch
        ops.append(cur.strip())
        ops = [o.split()[0] if o and not o.startswith("hwreg") else o for o in ops]
    return mn, ops

def classify(text):
    mn, ops = parse(text)
    base = re.sub(r"_(e32|e64|dpp|sdwa)$", "", mn)
    d = dict(mn=base, kind="other", dst=set(), src=set(), srcc=set(), srcab=set(), passes=0, dpp=False, wide_store=set(), _ops=(mn, ops))
    E = lambda i: set(_expand(ops[i])) if i < len(ops) else set()
    allops = lambda a: set().union(*[E(i) for i in range(a, len(ops))]) if len(ops) > a else set()
    if base.startswith("v_mfma"):
        d["kind"] = "mfma"; d["dst"] = E(0); d["srcab"] = E(1) | E(2); d["srcc"] = E(3); d["src"] = d["srcab"] | d["srcc"]
        d["passes"] = 8 if "32x32" in base else 4
    elif base.startswith("v_"):
        d["kind"] = "valu"
        if base in TRANS: d["kind"] = "trans"
        d["dpp"] = mn.endswith("_dpp") or "row_" in text or "quad_perm" in text
        if base.startswith("v_cmp"):
            d["dst"] = E(0); d["src"] = allops(1)
        elif base in ("v_readlane_b32", "v_readfirstlane_b32"):
            d["dst"] = E(0); d["src"] = allops(1); d["kind"] = "readlane"
        elif base.startswith("v_permlane") and "swap" in base:
            d["dst"] = E(0) | E(1); d["src"] = E(0) | E(1); d["kind"] = "permlane"
        elif base in ("v_add_co_u32", "v_addc_co_u32", "v_sub_co_u32"):
            d["dst"] = E(0) | E(1); d["src"] = allops(2)
        else:
            d["dst"] = E(0); d["src"] = allops(1)
            if base in ("v_fmac_f32", "v_dot2c_f32_bf16", "v_writelane_b32") or d["dpp"] or "sdwa" in mn: d["src"] |= E(0)
            if base == "v_cndmask_b32" and len(ops) == 3: d["src"] |= {("s", 106), ("s", 107)}
    elif base.startswith("ds_"):
        d["kind"] = "ds"
        if "read" in base or "permute" in base or "swizzle" in base:
            d["dst"] = E(0); d["src"] = allops(1)
        else: d["src"] = allops(0)
        if "addtid" in base: d["ldsdma"] = True
    elif base.startswith("buffer_") or base.startswith("global_"):
        d["kind"] = "vmem"
        lds = " lds" in text or "_lds_" in base
        if base in ("buffer_inv", "buffer_wbl2"): pass
        elif "load" in base and not lds:
            d["dst"] = E(0); d["src"] = allops(1)
            if "d16" in base: d["src"] |= E(0)
        elif lds:
            d["src"] = allops(0) | {("s", 124)}; d["ldsdma"] = True
        else:
            d["src"] = allops(0)
            if base.endswith("x4") or base.endswith("x3"):
                d["wide_store"] = E(0) if base.startswith("buffer_") else E(1)
            if "atomic" in base and " sc0" in text: d["dst"] = E(0)
    elif base.startswith("s_"):
        d["kind"] = "salu"
        if base.startswith("s_load") or base.startswith("s_memtime") or base.startswith("s_memrealtime"):
            d["kind"] = "smem"; d["dst"] = E(0); d["src"] = allops(1)
        elif base.startswith("s_cmp") or base.startswith("s_cbranch") or base in ("s_branch", "s_barrier", "s_waitcnt", "s_nop", "s_endpgm", "s_setprio", "s_sleep") or base.startswith("s_bitcmp"):
            d["src"] = allops(0)
        else:
            d["dst"] = E(0); d["src"] = allops(1)
            if "saveexec" in base: d["dst"] |= {("s", 126), ("s", 127)}
        if base == "s_nop": d["nop"] = int(ops[0], 0) + 1
    return d

def need_states(p, c):
    n = 0
    pv = p["kind"] in ("valu", "trans", "readlane", "permlane")
    cv = c["kind"] in ("valu", "trans", "readlane", "permlane")
    vd = {r for r in p["dst"] if r[0] in "va"}
    sd = {r for r in p["dst"] if r[0] == "s"}
    if pv:
        if c["kind"] == "mfma" and vd & c["src"]: n = max(n, 2)
        if cv and c["dpp"] and vd & c["src"]: n = max(n, 2)
        if c["kind"] == "readlane" and vd & c["src"]: n = max(n, 1)
        if c["kind"] == "permlane" and vd & c["src"]: n = max(n, 2)
        if p["kind"] == "trans" and cv and vd & c["src"] and c["kind"] != "trans": n = max(n, 1)
        if p["kind"] == "trans" and c["kind"] == "trans" and vd & c["src"]: n = max(n, 1)
        if p["kind"] == "trans" and c["kind"] in ("ds", "vmem") and vd & c["src"]: n = max(n, 1)
        if sd:
            if cv and sd & c["src"]: n = max(n, 4 if c["kind"] == "readlane" else 2)
            if c["kind"] == "vmem" and sd & c["src"]: n = max(n, 5)
            if c["kind"] in ("salu", "smem") and sd & c["src"]: n = max(n, 1)
            if c["mn"] in ("s_cbranch_vccz", "s_cbranch_vccnz") and sd & {("s", 106), ("s", 107)}: n = max(n, 1)
    if p["mn"].startswith("v_dot2") and vd:
        if c["mn"] == p["mn"]:
            mn_, ops_ = c["_ops"]
            ab = set(_expand(ops_[1])) | set(_expand(ops_[2]))
            if vd & ab: n = max(n, 3)
        elif vd & (c["src"] | c["dst"]): n = max(n, 3)
    if p["kind"] == "mfma":
        P = p["passes"]
        big = {4: 8, 8: 12}[P]; mid = {4: 6, 8: 10}[P]; war = {4: 3, 8: 7}[P]
        if c["kind"] == "mfma":
            if vd & c["srcab"]: n = max(n, big)
            if vd & c["srcc"]:
                if not (c["srcc"] == p["dst"] and c["passes"] == P): n = max(n, mid)
            if vd & c["dst"] and not vd & c["srcc"]: n = max(n, mid)
        elif cv or c["kind"] in ("ds", "vmem"):
            if vd & (c["src"] | c["dst"]): n = max(n, big)
        if cv and p["srcc"] & c["dst"]: n = max(n, war)
    if p["kind"] == "vmem" and p["wide_store"]:
        if p["wide_store"] & c["dst"]: n = max(n, 2)
    if p["kind"] == "salu" and ("s", 124) in p["dst"] and c.get("ldsdma"): n = max(n, 1)
    return n

class Prog:
    def __init__(self):
        self.ins = []
        self.ntok = 0
    def e(self, text):
        for line in text.strip().split("\n"):
            line = line.strip()
            if line: self.ins.append(Ins(line))
    def tok(self, text):
        self.ntok += 1
        self.ins.append(Ins(text, tok=self.ntok))
        return self.ntok
    def wait(self, *toks):
        toks = [t for t in toks if t is not None]
        flat = []
        for t in toks:
            if isinstance(t, (list, tuple)): flat += list(t)
            else: flat.append(t)
        if flat: self.ins.append(Ins("WAIT", wait=flat))
    def wait_nt(self, tok):
        self.ins.append(Ins("WAIT", kind="nt", wait=[tok]))
    def nc(self, text): self.ins.append(Ins(text, kind="nc"))
    def label(self, name): self.ins.append(Ins(name + ":", kind="label"))
    def take(self):
        r = self.ins; self.ins = []; return r
    def put(self, lst): self.ins += lst

def resolve(ins):
    out = []
    vm = []
    lg = []
    smem_out = False
    seen = set()
    for i in ins:
        if i.tok: seen.add(i.tok)
        if i.wait is not None:
            for t in i.wait: assert t in seen, f"wait on token {t} before issue"
            nv = None; nl = None
            for t in i.wait:
                if t in vm:
                    k = len(vm) - 1 - vm.index(t)
                    nv = k if nv is None else min(nv, k)
                elif t in lg:
                    k = len(lg) - 1 - lg.index(t)
                    if smem_out: k = 0
                    nl = k if nl is None else min(nl, k)
            s = []
            if i.kind == "nt":
                if nv is not None: out.append(Ins(f"s_waitcnt vmcnt({min(nv, 63)})"))
                continue
            if nv is not None:
                nv = min(nv, 63); s.append(f"vmcnt({nv})"); vm = vm[len(vm) - nv:] if nv else []
            if nl is not None:
                nl = min(nl, 15); s.append(f"lgkmcnt({nl})"); lg = lg[len(lg) - nl:] if nl else []
                if nl == 0: smem_out = False
            if s: out.append(Ins("s_waitcnt " + " ".join(s)))
            continue
        if i.kind == "label":
            out.append(i); continue
        mn = i.text.split()[0]
        if i.kind == "nc":
            pass
        elif mn.startswith("buffer_") or mn.startswith("global_"):
            vm.append(i.tok)
        elif mn.startswith("ds_"):
            lg.append(i.tok)
        elif mn.startswith("s_load") or mn.startswith("s_memtime") or mn.startswith("s_memrealtime"):
            lg.append(i.tok); smem_out = True
        elif mn == "s_waitcnt":
            m = re.search(r"vmcnt\((\d+)\)", i.text)
            if m:
                n = int(m.group(1)); vm = vm[len(vm) - n:] if n and n <= len(vm) else ([] if n == 0 else vm)
            m = re.search(r"lgkmcnt\((\d+)\)", i.text)
            if m:
                n = int(m.group(1)); lg = lg[len(lg) - n:] if n and n <= len(lg) else ([] if n == 0 else lg)
                if n == 0: smem_out = False
        out.append(i)
    return out

def pad_hazards(ins, window=24):
    out = []; hist = []
    nins = 0
    for i in ins:
        if i.kind == "label" or i.text.startswith("."):
            out.append(i); continue
        c = classify(i.text)
        need = 0; dist = 0
        for p in reversed(hist):
            n = need_states(p, c)
            if n - dist > need: need = n - dist
            dist += p.get("nop", 1)
            if dist >= window: break
        while need > 0:
            k = min(need, 16)
            t = f"s_nop {k-1}"
            out.append(Ins(t)); hist.append(classify(t)); need -= k; nins += 1
        out.append(i); hist.append(c)
        if len(hist) > 64: hist = hist[-40:]
    return out, nins

def _isscalar(i):
    return i.kind != "label" and (i.wait is not None or i.text.startswith("s_"))
def _isv(i): return i.wait is None and i.kind != "label" and (i.text.startswith("buffer_") or i.text.startswith("global_"))
def _cost(i):
    if i.kind == "label": return 0
    if i.wait is not None: return 4
    mn = i.text.split()[0]
    if re.sub(r"_(e32|e64)$", "", mn) in TRANS: return 8
    if mn.startswith("ds_write_b128"): return 20
    if mn.startswith("buffer_store_dwordx4"): return 16
    if mn.startswith("buffer_") or mn.startswith("global_"): return 8
    return 4
def merge(main, fill, slots, pace=2, start=0):
    out = []; fi = 0
    n = len(main); k = 0; nm = 0; lastv = -99
    ism = lambda i: i.wait is None and i.kind != "label" and i.text.startswith("v_mfma")
    while k < n:
        i = main[k]; out.append(i); k += 1
        if not ism(i): continue
        nm += 1
        seg = []
        while k < n and not ism(main[k]):
            seg.append(main[k]); k += 1
        free = True
        if seg and seg[-1].wait is not None and not any(s.tok in seg[-1].wait for s in seg if s.tok) and not any(s.wait is None and s.text.startswith("s_barrier") for s in seg):
            out.append(seg.pop()); free = False
        elif seg and _isscalar(seg[0]):
            out.append(seg.pop(0)); free = False
        elif nm > start and fi < len(fill) and _isscalar(fill[fi]):
            out.append(fill[fi]); fi += 1; free = False
            while fi < len(fill) and fill[fi].kind == "label": out.append(fill[fi]); fi += 1
        tail = []
        while seg and (seg[-1].wait is not None or seg[-1].text.startswith("s_waitcnt") or seg[-1].text.startswith("s_barrier")):
            tail.insert(0, seg.pop())
        used = sum(_cost(s) for s in seg) + sum(_cost(s) for s in tail)
        out += seg
        hadv = any(s.wait is None and s.kind != "label" and s.text.startswith("v_") for s in seg)
        while nm > start and fi < len(fill) and (used + _cost(fill[fi]) <= slots + (4 if _isv(fill[fi]) else 0) or used == 0):
            f = fill[fi]
            if f.wait is None and f.kind != "label" and (f.text.startswith("ds_") or _isv(f)) and hadv: break
            if _isv(f):
                if nm - lastv < pace: break
                lastv = nm
            if f.wait is None and f.kind != "label" and f.text.startswith("v_"): hadv = True
            if _isscalar(f) and used + 8 > slots: break
            used += _cost(f); out.append(f); fi += 1
            while fi < len(fill) and fill[fi].kind == "label": out.append(fill[fi]); fi += 1
        out += tail
    return out, fill[fi:]

def spread(a, b):
    out = []; nb = len(b); bi = 0
    step = len(a) / (nb + 1) if nb else 0
    nxt = step
    for idx, ins in enumerate(a):
        while bi < nb and idx >= max(nxt, b[bi][0]):
            out += b[bi][1]; bi += 1; nxt = max(nxt + step, idx + step * 0.6)
            break
        out.append(ins)
    for c in b[bi:]: out += c[1]
    return out

def weave(a, b, every):
    out = []; bi = 0; cnt = 0
    for ins in a:
        if cnt >= every and bi < len(b) and ins.wait is None and ins.kind != "label" and ins.text.startswith("v_") and not ins.text.startswith("v_cmp"):
            out += b[bi]; bi += 1; cnt = 0
        out.append(ins); cnt += 1
    for c in b[bi:]: out += c
    return out

def check_labels(ins):
    for k, i in enumerate(ins):
        if i.kind == "label" and re.match(r"LF_(x|mf|gt|st|f0|lt|hc|g2|fa|ss)b_\d+:", i.text):
            assert ins[k-1].text.startswith("s_cbranch_vccnz"), (i.text, ins[k-1].text)

def render(ins):
    return "\n".join(("" if i.kind == "label" else "    ") + i.text for i in ins)
```

```python
import sys, struct, math
from asmlib import *
KN = "adaLN_cond__ssm_conv_s4__glu_gated_geglu__prompt_kernel"
WS_ST1 = 0x1000; WS_MODP = 0x8000; WS_MODF = 0x20000; WS_ST2 = 0x24000
WS_FL1 = 0x28000; WS_FL3 = 0x2C000; WS_FL2 = 0x40000; WS_U = 0x80000; WS_XB = 0xC00000; WS_DBG = 0x1000000; WS_X1 = 0x100000; WS_X1S = 0x300000; WS_H = 0x500000; WS_SIZE = 0x1200000
L_TAB = 0; TABW = 17408; TPITCH = 272
L_K = 69632; KCH = 8320; KODD = 4164
L_HI = 86272; HCH = 4608
L_Z = 95488
L_MOD = 111872
L_SP = 131072
L_XT = 155648
L_SS = L_XT
L_XR2 = L_XT
LDS_BYTES = 163840
_POOL = [L_SP, L_SP + 8192, L_SP + 16384, L_MOD, L_MOD + 8192] + [L_TAB + 8192*i for i in range(8)]
def wslot(ks):
    if ks < 26: return _POOL[ks % 13]
    if ks < 29: return L_SP + 8192*(ks-26)
    return L_TAB + 8192*(ks-29)
S_WS = 4; S_WG = 8; S_WU = 12
P_X, P_ARE, P_AIM, P_BRE, P_BIM, P_CRE, P_CIM, P_LDT, P_DSK, P_BX, P_WG, P_WU, P_WD, P_C, P_WM, P_OUT, P_DBG, P_WS = [16 + 2 * i for i in range(18)]
S_X = 52; S_WM = 56; S_WD = 60; S_OUT = 64
S_TAG = 68; S_E = 69; S_WV = 70; S_D0 = 71; S_LDT = 72; S_DSK = 73
S_T0 = 74; S_T1 = 75; S_T2 = 76; S_T3 = 77; S_SPIN = 78; S_IDX = 79; S_XCD = 80
S_M = 82
S_EX = 94
S_ST = 96
S45 = 45; S46 = 46
S_CH = 16; S_PAR = 17
S_G1 = 98; S_G2 = 99; S_G3 = 100
SENT = 0xFFFFFFFF
BA = [124, 125, 126, 127, 141, 142, 2, 3]
def f2u(x): return struct.unpack("<I", struct.pack("<f", x))[0]
def hx(x): return "0x%08x" % (x & 0xFFFFFFFF)
def fl(x): return hx(f2u(x))
LOG2E = 1.4426950408889634
GAM = (2 * 0.7978845608028654 * LOG2E * 0.044715) ** (1.0 / 3)
GC = 2 * 0.7978845608028654 * LOG2E / GAM
def vr(b, n): return f"v[{b}:{b+n-1}]" if n > 1 else f"v{b}"
def ar(b, n): return f"a[{b}:{b+n-1}]" if n > 1 else f"a{b}"
def sr(b, n): return f"s[{b}:{b+n-1}]" if n > 1 else f"s{b}"
class G:
    def __init__(self, cfg):
        self.cfg = cfg; self.p = Prog(); self.nlab = 0; self.nstamp = 0; self.ool = []
    def lab(self, base):
        self.nlab += 1; return f"L{self.cfg['uid']}_{base}_{self.nlab}"
    def e(self, t): self.p.e(t)
    def tok(self, t): return self.p.tok(t)
    def wait(self, *t): self.p.wait(*t)
    def label(self, l): self.p.label(l)
    def stamp(self, i):
        if not self.cfg.get("stamps"): return
        e = self.e
        e(f"s_memtime s[{S_ST}:{S_ST+1}]")
        e("s_waitcnt lgkmcnt(0)")
        e(f"v_writelane_b32 v255, s{S_ST}, {i}")
    def stamp_flush(self):
        if not self.cfg.get("stamps"): return
        e = self.e
        e(f"s_memrealtime s[{S_ST}:{S_ST+1}]")
        e("s_waitcnt lgkmcnt(0)")
        e(f"v_writelane_b32 v255, s{S_ST}, 63")
        e(f"s_lshl_b32 s{S_T0}, s2, 10")
        e(f"s_add_u32 s{S_T0}, s{S_T0}, {WS_DBG + self.cfg.get('dbgoff', 0)}")
        e("v_lshlrev_b32 v254, 2, v0")
        e(f"buffer_store_dword v255, v254, s[{S_WS}:{S_WS+3}], s{S_T0} offen")
        if self.cfg.get("dbgout"):
            sk = self.lab("dbg")
            e(f"s_cmp_lg_u32 s2, {self.cfg['dbgout']}\ns_cbranch_scc1 {sk}\ns_cmp_lg_u32 s{S_WV}, 0\ns_cbranch_scc1 {sk}")
            e(f"v_readlane_b32 s{S_T1}, v255, 0\nv_readlane_b32 s{S_T2}, v255, 62\nv_readlane_b32 s{S_T3}, v255, 63\nv_mov_b32 v4, 0")
            for i, st in enumerate([1, 2, 23, 22, 21, 3, 4, 5, 6, 7, 12, 14, 16, 19, 18]):
                e(f"v_readlane_b32 s{S_T0}, v255, {st}\ns_sub_u32 s{S_T0}, s{S_T0}, s{S_T1}\nv_mov_b32 v3, s{S_T0}")
                e(f"global_store_dword v4, v3, s[{P_DBG}:{P_DBG+1}] offset:{4*i}")
            e(f"s_sub_u32 s{S_T0}, s{S_T3}, s{S_T2}\nv_mov_b32 v3, s{S_T0}")
            e(f"global_store_dword v4, v3, s[{P_DBG}:{P_DBG+1}] offset:60")
            self.label(sk)
    def srd(self, s, ptr, size):
        self.e(f"s_mov_b32 s{s}, s{ptr}\ns_mov_b32 s{s+1}, s{ptr+1}\ns_mov_b32 s{s+2}, {hx(size)}\ns_mov_b32 s{s+3}, 0x20000")
    def prologue(self):
        e = self.e
        e("s_cmp_ge_u32 s2, 256")
        e(f"s_cbranch_scc1 {self.cfg['uid']}_end")
        e("s_load_dwordx16 s[16:31], s[0:1], 0")
        e("s_load_dwordx16 s[32:47], s[0:1], 64")
        e("s_load_dwordx4 s[48:51], s[0:1], 128")
        if self.cfg.get("stamps"):
            e("v_mov_b32 v255, 0")
            e(f"s_memrealtime s[{S_ST}:{S_ST+1}]")
        if self.cfg.get("hold"): e("s_memrealtime s[34:35]" if False else "s_nop 0")
        e("v_and_b32 v1, 63, v0")
        e("v_lshrrev_b32 v2, 6, v0")
        e(f"s_and_b32 s{S_XCD}, s2, 7")
        e(f"v_readfirstlane_b32 s{S_WV}, v2")
        e(f"s_lshr_b32 s{S_IDX}, s2, 3")
        e(f"s_lshl_b32 s{S_D0}, s{S_XCD}, 5")
        e(f"s_add_u32 s{S_D0}, s{S_D0}, s{S_IDX}")
        e(f"s_lshl_b32 s{S_D0}, s{S_D0}, 1")
        e(f"s_lshl_b32 s{S_T0}, s2, 13\ns_lshl_b32 s{S_T1}, s{S_WV}, 11\ns_add_u32 s{S_T0}, s{S_T0}, s{S_T1}")
        e("v_lshlrev_b32 v9, 4, v1")
        e("v_lshrrev_b32 v4, 3, v1\nv_and_b32 v5, 7, v1\nv_lshlrev_b32 v5, 4, v5\nv_lshl_add_u32 v3, v4, 10, v5")
        e(f"s_lshl_b32 s{S_T3}, s{S_IDX}, 16\ns_lshl_b32 s{S_T2}, s{S_XCD}, 7\ns_add_u32 s{S_T3}, s{S_T3}, s{S_T2}")
        e(f"s_lshl_b32 s{S_T2}, s{S_WV}, 14\ns_add_u32 s{S_T3}, s{S_T3}, s{S_T2}")
        e(f"s_add_u32 m0, s{S_T1}, {L_XT}")
        e(f"v_add_u32 v6, {8192 - 1024}, v3")
        e(f"s_lshl_b32 s{S_T2}, s{S_D0}, 8\nv_lshl_add_u32 v8, v0, 1, s{S_T2}")
        e(f"s_mul_i32 s{S_M}, s2, 1366\ns_lshr_b32 s{S_M}, s{S_M}, 16")
        e(f"s_mul_i32 s{S_M+2}, s{S_M}, 48\ns_sub_u32 s{S_M+1}, s2, s{S_M+2}")
        e(f"s_and_b32 s{S_M+2}, s{S_M}, 3\ns_lshl_b32 s{S_M+2}, s{S_M+2}, 8\nv_lshl_add_u32 v7, v1, 2, s{S_M+2}")
        e("v_mul_u32_u24 v33, 6144, v4\nv_add_u32 v33, v33, v5")
        e(f"s_mul_i32 s{S_M+2}, s{S_M}, {128*6144}\ns_lshl_b32 s{S_M+3}, s{S_M+1}, 7\ns_add_u32 s{S_M+2}, s{S_M+2}, s{S_M+3}")
        e(f"s_mul_i32 s{S_M+3}, s{S_WV}, {32*6144}\ns_add_u32 s{S_M+2}, s{S_M+2}, s{S_M+3}")
        e(f"s_mov_b32 s{S_X+2}, {hx(2097152)}\ns_mov_b32 s{S_X+3}, 0x20000\ns_mov_b32 s{S_WM+2}, {hx(3145728)}\ns_mov_b32 s{S_WM+3}, 0x20000")
        e("s_waitcnt lgkmcnt(0)")
        if self.cfg.get("stamps"):
            e(f"v_writelane_b32 v255, s{S_ST}, 62")
        if self.cfg.get("hold"): e("s_memrealtime s[34:35]")
        self.stamp(0)
    def srds_late(self):
        self.srd(S_WS, P_WS, WS_SIZE)
        self.srd(S_WD, P_WD, 1835008)
        self.srd(S_OUT, P_OUT, 2097152)
    def tag_ready(self):
        e = self.e
        e("s_waitcnt lgkmcnt(0)")
        e(f"s_mul_i32 s{S_TAG}, s{S_E}, 0x9E3779B1")
        e(f"s_add_u32 s{S_TAG}, s{S_TAG}, 0x7F4A7C15")
    def reduce16(self, regs):
        for ctl in ["quad_perm:[1,0,3,2]", "quad_perm:[2,3,0,1]", "row_half_mirror", "row_mirror"]:
            for r in regs:
                self.e(f"v_add_f32_dpp v{r}, v{r}, v{r} {ctl} row_mask:0xf bank_mask:0xf")
    def stat_finish(self, vs, vq, t0, t1):
        e = self.e
        e(f"v_mul_f32 v{vs}, {fl(1/512)}, v{vs}")
        e(f"v_mul_f32 v{t0}, v{vs}, v{vs}")
        e(f"v_mul_f32 v{vq}, {fl(1/512)}, v{vq}")
        e(f"v_sub_f32 v{vq}, v{vq}, v{t0}")
        e(f"v_max_f32 v{vq}, 0, v{vq}")
        e(f"v_cvt_pk_bf16_f32 v{t0}, v{vq}, v{vq}")
        e(f"v_and_b32 v{t0}, 0xffff0000, v{t0}")
        e(f"v_add_f32 v{t0}, {fl(1e-5)}, v{t0}")
        e(f"v_cvt_pk_bf16_f32 v{t0}, v{t0}, v{t0}")
        e(f"v_and_b32 v{t0}, 0xffff0000, v{t0}")
        e(f"v_sqrt_f32 v{t0}, v{t0}")
        e(f"v_cvt_pk_bf16_f32 v{vs}, v{t0}, v{vs}")
    def cmul_list(self, jobs):
        e = self.e; i = 0
        f1 = lambda d, a, b: f"v_pk_mul_f32 {vr(d,2)}, {vr(a,2)}, {vr(b,2)} op_sel:[0,0] op_sel_hi:[0,1]"
        f2 = lambda d, a, b: f"v_pk_fma_f32 {vr(d,2)}, {vr(a,2)}, {vr(b,2)}, {vr(d,2)} op_sel:[1,1,0] op_sel_hi:[1,0,1] neg_lo:[0,1,0]"
        while i < len(jobs):
            j = jobs[i]
            if i + 1 < len(jobs) and j[0] not in jobs[i+1][1:] and jobs[i+1][0] not in j:
                k = jobs[i+1]
                e(f1(*j)); e(f1(*k)); e(f2(*j)); e(f2(*k)); i += 2
            else:
                e(f1(*j)); e(f2(*j)); i += 1
    def kgen_pre(self):
        e = self.e
        e("v_mov_b32 v36, 0\nv_mov_b32 v37, 0\nv_mov_b32 v38, 0\nv_mov_b32 v39, 0")
        e("v_lshrrev_b32 v3, 5, v0")
        e(f"v_mul_u32_u24 v3, {HCH}, v3")
        e("v_and_b32 v4, 31, v0")
        e("v_lshl_add_u32 v3, v4, 4, v3")
        e(f"v_add_u32 v3, {L_HI}, v3")
        e("v_bfe_u32 v4, v0, 2, 2")
        e(f"v_mul_u32_u24 v4, 4160, v4")
        e("v_and_b32 v5, 3, v0")
        e("v_lshl_add_u32 v4, v5, 4, v4")
        e(f"v_add_u32 v4, {L_K + 4096}, v4")
        e("v_cmp_gt_u32 vcc, 64, v0")
        e("v_cndmask_b32 v3, v4, v3, vcc")
        e("v_cmp_gt_u32 vcc, 80, v0")
        e(f"s_and_saveexec_b64 s[{S_EX}:{S_EX+1}], vcc")
        zl = self.lab("z")
        e(f"s_cbranch_execz {zl}")
        e("ds_write_b128 v3, v[36:39]")
        self.label(zl)
        e(f"s_mov_b64 exec, s[{S_EX}:{S_EX+1}]")
        e(f"s_lshr_b32 s{S_T0}, s{S_WV}, 1")
        e(f"s_lshl_b32 s{S_T0}, s{S_T0}, 4")
        e(f"s_lshr_b32 s{S_T1}, s{S_LDT}, s{S_T0}")
        e(f"s_lshl_b32 s{S_T1}, s{S_T1}, 16")
        e(f"v_mov_b32 v3, {fl(LOG2E)}")
        e(f"v_mul_f32 v3, s{S_T1}, v3")
        e("v_exp_f32 v3, v3")
        e("v_cvt_pk_bf16_f32 v3, v3, v3")
        e("v_and_b32 v35, 0xffff0000, v3")
    def kgen_tab(self, chunks=()):
        e = self.e
        keep = self.p.take()
        for i in range(6): e(f"v_lshlrev_b32 v{26+i}, 16, v{18+i}")
        e("v_mul_f32 v26, v26, v35\nv_mul_f32 v27, v27, v35\nv_mul_f32 v28, v28, v35\nv_mul_f32 v29, v29, v35")
        e(f"v_mul_f32 v26, {fl(LOG2E)}, v26")
        e("v_mul_f32 v27, 0.15915494, v27")
        S = lambda j: 40 + 2 * j
        Gt = lambda T: 74 + 2 * (T - 1)
        Pn = lambda n: 88 + 2 * n
        S32, S64, S128 = 138, 140, 142
        def direct(dst, t, a, b, c):
            if t == 1:
                e(f"v_exp_f32 v{a}, v26\nv_fract_f32 v{b}, v27")
            else:
                e(f"v_mul_f32 v{a}, {fl(float(t))}, v26\nv_mul_f32 v{b}, {fl(float(t))}, v27")
                e(f"v_exp_f32 v{a}, v{a}\nv_fract_f32 v{b}, v{b}")
            e(f"v_cos_f32 v{c}, v{b}\nv_sin_f32 v{b}, v{b}\ns_nop 0")
            e(f"v_mul_f32 v{dst}, v{a}, v{c}\nv_mul_f32 v{dst+1}, v{a}, v{b}")
        e(f"s_mul_i32 s{S_T3}, s{S_WV}, {TABW}\ns_mov_b32 m0, s{S_T3}")
        st = {"n": 0, "q": []}
        NBAT = 8
        def flush():
            for ent_, r_ in st["q"]: e(f"ds_write_addtid_b32 v{r_} offset:{L_TAB + ent_*TPITCH}")
            st["q"] = []
        def pair(ent, jobs, srcs, neg=False):
            self.cmul_list(jobs)
            for i in range(2):
                pk = 128 + (st["n"] % NBAT); st["n"] += 1
                if srcs[i] is None: e(f"v_mov_b32 v{pk}, 0x3f80")
                else: e(f"v_cvt_pk_bf16_f32 v{pk}, v{srcs[i]}, {'-' if neg else ''}v{srcs[i]+1}")
                st["q"].append((ent + i, pk))
            if len(st["q"]) == NBAT: flush()
        direct(S(1), 1, 120, 121, 122)
        pair(0, [], [None, S(1)])
        direct(S(16), 16, 123, 124, 125)
        pair(2, [(S(2), S(1), S(1)), (Pn(0), 30, 28), (S(3), S(2), S(1))], [S(2), S(3)])
        direct(Gt(1), 256, 120, 121, 122)
        pair(48, [(Pn(1), Pn(0), S(16)), (S32, S(16), S(16))], [Pn(0), Pn(1)], True)
        pair(4, [(S(4), S(2), S(2)), (S(5), S(3), S(2))], [S(4), S(5)])
        pair(6, [(S(6), S(4), S(2)), (S(7), S(4), S(3))], [S(6), S(7)])
        pair(50, [(Pn(2), Pn(0), S32), (Pn(3), Pn(1), S32), (S64, S32, S32)], [Pn(2), Pn(3)], True)
        pair(8, [(S(8), S(4), S(4)), (S(9), S(5), S(4))], [S(8), S(9)])
        pair(10, [(S(10), S(8), S(2)), (S(11), S(8), S(3))], [S(10), S(11)])
        pair(52, [(Pn(4), Pn(0), S64), (Pn(5), Pn(1), S64)], [Pn(4), Pn(5)], True)
        pair(54, [(Pn(6), Pn(2), S64), (Pn(7), Pn(3), S64), (S128, S64, S64)], [Pn(6), Pn(7)], True)
        pair(12, [(S(12), S(8), S(4)), (S(13), S(8), S(5))], [S(12), S(13)])
        pair(14, [(S(14), S(8), S(6)), (S(15), S(8), S(7))], [S(14), S(15)])
        aux = [[(Gt(2), Gt(1), Gt(1))], [(Gt(3), Gt(2), Gt(1))], [(Gt(4), Gt(2), Gt(2))], []]
        for i in range(4):
            pair(56 + 2*i, [(Pn(8+2*i), Pn(2*i), S128), (Pn(9+2*i), Pn(2*i+1), S128)] + aux[i], [Pn(8+2*i), Pn(9+2*i)], True)
        ents = {0: [(1, 0), (1, 2), (1, 4), (1, 6), (1, 8), (4, 0), (4, 8), (4, 16)],
                1: [(1, 8), (1, 10), (1, 12), (1, 14), (1, 16), (5, 0), (5, 8), (5, 16)],
                2: [(2, 0), (2, 4), (2, 8), (2, 12), (2, 16), (6, 0), (6, 8), (6, 16)],
                3: [(3, 0), (3, 4), (3, 8), (3, 12), (3, 16), (7, 0), (7, 8), (7, 16)]}
        extra = {(0, 0): (Gt(5), Gt(4), Gt(1)), (2, 0): (Gt(6), Gt(4), Gt(2)), (3, 0): (Gt(7), Gt(4), Gt(3))}
        tb = 0
        for q in range(4):
            for h in range(4):
                two = ents[q][2*h:2*h+2]; base = 88 + 4*(tb & 3); tb += 1
                jobs = []; srcs = []
                for i, (T, j) in enumerate(two):
                    if j == 0: srcs.append(Gt(T))
                    else: jobs.append((base + 2*i, Gt(T), S(j))); srcs.append(base + 2*i)
                if (q, h) in extra: jobs.append(extra[(q, h)])
                pair(16 + 16*(h >> 1) + 4*q + 2*(h & 1), jobs, srcs)
        body = self.p.take()
        out = []; ci = 0; nb = 0
        for k_, ins in enumerate(body):
            out.append(ins)
            last = ins.text.startswith("ds_write_addtid") and (k_ + 1 == len(body) or not body[k_+1].text.startswith("ds_write_addtid"))
            if last:
                nb += 1
                if nb > self.cfg["wa0"] and ci < len(chunks):
                    out += chunks[ci] + chunks[ci+1] + [Ins(f"s_mov_b32 m0, s{S_T3}")]; ci += 2
        for c in chunks[ci:]: out += c
        self.p.put(keep + out)

    def kgen_post(self, post_b2=None):
        e = self.e
        e(f"s_lshr_b32 s{S_T2}, s{S_WV}, 1\ns_mul_i32 s{S_T0}, s{S_T2}, {2*TABW}")
        e(f"v_and_b32 v6, 15, v1\nv_mul_u32_u24 v3, {TPITCH}, v6")
        e("v_lshrrev_b32 v7, 4, v1\nv_lshl_add_u32 v3, v7, 4, v3")
        e(f"v_add_u32 v3, s{S_T0}, v3")
        e(f"s_and_b32 s{S_T1}, s{S_WV}, 1\ns_mul_i32 s{S_T1}, s{S_T1}, {16*TPITCH}\nv_add_u32 v4, s{S_T1}, v3")
        e(f"s_mul_i32 s{S_T2}, s{S_T2}, {KCH}\ns_add_u32 s{S_T2}, s{S_T2}, {L_K}")
        e(f"v_lshlrev_b32 v6, 5, v6\nv_sub_u32 v6, s{S_T2}, v6")
        e("v_lshlrev_b32 v9, 9, v7\nv_sub_u32 v9, v6, v9")
        e("s_waitcnt lgkmcnt(0)\ns_barrier")
        self.stamp(21)
        F = 40; toks = {}
        for ks in range(8):
            o = L_TAB + (ks >> 2)*TABW + (ks & 3)*64; r = F + 12*ks
            self.tok(f"ds_read_b128 {vr(r+8,4)}, v3 offset:{o + 48*TPITCH}")
            toks[(ks, 0)] = self.tok(f"ds_read_b128 {vr(r,4)}, v4 offset:{o}")
            toks[(ks, 1)] = self.tok(f"ds_read_b128 {vr(r+4,4)}, v3 offset:{o + 32*TPITCH}")
        A0 = 136; A2 = 140
        for ks in range(8):
            r = F + 12*ks
            for b, acc in ((0, A0), (1, A2)):
                self.wait(toks[(ks, b)])
                e(f"v_mfma_f32_16x16x32_bf16 {vr(acc,4)}, {vr(r+4*b,4)}, {vr(r+8,4)}, {vr(acc,4) if ks else '0'}")
        e("s_barrier")
        if post_b2: post_b2()
        h1 = self.lab("kh1"); jn = self.lab("kj")
        e(f"s_bitcmp1_b32 s{S_WV}, 0\ns_cbranch_scc1 {h1}")
        def cv(d, lst):
            for i, (a, b) in enumerate(lst): e(f"v_cvt_pk_bf16_f32 v{d+i}, v{a}, v{b}")
        O = KODD - 4
        e("v_lshlrev_b32 v8, 3, v7\nv_sub_u32 v8, v6, v8")
        f0, f1, f2 = A2+1, A2+2, A2+3
        cv(52, [(f2, f2), (f2, f2), (f1, f1), (f1, f1), (f1, f1), (f1, f0), (f0, f0), (f0, f0)])
        e(f"ds_write_b128 v9, v[52:55] offset:{2*(2032-1024)}")
        cv(60, [(f2, f2), (f2, f2), (f2, f1), (f1, f1), (f1, f1), (f1, f1), (f0, f0), (f0, f0)])
        e(f"ds_write_b128 v9, v[56:59] offset:{2*(2032-1024)+16}")
        cv(48, [(A0+3, A0+2), (A0+1, A0), (A0+2, A0+1)])
        e(f"ds_write_b128 v9, v[60:63] offset:{2*(2032-1024) + O}")
        e(f"ds_write_b128 v9, v[64:67] offset:{2*(2032-1024) + O + 16}")
        e(f"ds_write_b64 v8, v[48:49] offset:{2*2044}")
        e(f"ds_write_b16 v8, v48 offset:{2*2044 + O + 2}")
        e(f"ds_write_b32 v8, v50 offset:{2*2044 + O + 4}")
        e(f"ds_write_b16_d16_hi v8, v49 offset:{2*2044 + O + 8}")
        e(f"s_branch {jn}")
        self.label(h1)
        e("v_lshlrev_b32 v8, 4, v7\nv_sub_u32 v8, v6, v8")
        E_ = lambda j: A0 + j if j < 4 else A2
        C = lambda lst: [(E_(a), E_(b)) for a, b in lst]
        cv(52, C([(4, 4), (3, 3), (3, 2), (2, 2), (2, 2), (1, 1), (1, 0), (0, 0)]))
        e("s_mov_b32 exec_lo, 0")
        e(f"ds_write_b128 v9, v[52:55] offset:{2*2032}\nds_write_b128 v9, v[56:59] offset:{2*2032+16}")
        e("s_mov_b32 exec_lo, -1")
        cv(60, C([(4, 4), (4, 3), (3, 3), (2, 2), (2, 2), (2, 1), (1, 1), (0, 0)]))
        e("s_mov_b32 exec_lo, 0")
        e(f"ds_write_b128 v9, v[60:63] offset:{2*2032 + O}\nds_write_b128 v9, v[64:67] offset:{2*2032 + O + 16}")
        e("s_mov_b32 exec_lo, -1")
        cv(40, C([(4, 3), (2, 2), (2, 1), (0, 0), (4, 4), (3, 2), (2, 2), (1, 0)]))
        e("s_mov_b32 exec_hi, 0")
        e(f"ds_write_b128 v8, v[40:43] offset:{2*(2040-256)}\nds_write_b128 v8, v[44:47] offset:{2*(2040-256) + O}")
        e(f"ds_write_b16 v8, v43 offset:{2*(2040-256) + O + 16}")
        e("s_mov_b32 exec_hi, -1")
        self.label(jn)

    def spin_check(self, retry_label, out_label=None):
        e = self.e
        e(f"s_sub_u32 s{S_SPIN}, s{S_SPIN}, 1")
        e(f"s_cmp_lg_u32 s{S_SPIN}, 0")
        e(f"s_cbranch_scc1 {retry_label}")
    def hbuild(self, after_first=None, mid=None):
        e = self.e
        e(f"s_lshl_b32 s{S_T0}, s{S_WV}, 12\nv_lshl_add_u32 v3, v1, 4, s{S_T0}")
        e("v_and_b32 v4, 3, v1")
        e(f"v_mul_u32_u24 v4, {3072*8}, v4")
        e("v_lshrrev_b32 v5, 3, v1")
        e("v_min_u32 v5, 5, v5")
        e("v_lshl_add_u32 v4, v5, 12, v4")
        e("v_bfe_u32 v6, v1, 2, 1")
        e("v_lshl_add_u32 v4, v6, 3, v4")
        e(f"s_lshl_b32 s{S_T0}, s{S_D0}, 3")
        e(f"s_add_u32 s{S_T0}, s{S_T0}, {WS_MODP}")
        e(f"s_mov_b32 s{S_T1}, {WS_ST1}")
        e(f"s_lshl_b32 s{S_T2}, s{S_D0}, 13\ns_add_u32 s{S_T2}, s{S_T2}, {hx(WS_XB)}")
        e(f"s_mov_b32 s{S_SPIN}, {self.cfg['spin']}")
        rt = self.lab("h0"); ok = self.lab("h0ok"); ck = self.lab("h0ck")
        def pl():
            self.tok(f"buffer_load_dwordx2 v[8:9], v4, s[{S_WS}:{S_WS+3}], s{S_T0} offen sc1")
            for i in range(4):
                t_ = self.tok(f"buffer_load_dwordx4 v[{40+4*i}:{43+4*i}], v3, s[{S_WS}:{S_WS+3}], s{S_T1} offen offset:{1024*i} sc1")
            for i in range(4):
                t_ = self.tok(f"buffer_load_dwordx4 v[{20+4*i}:{23+4*i}], v3, s[{S_WS}:{S_WS+3}], s{S_T2} offen offset:{1024*i} sc1")
            return t_
        if after_first:
            t_ = pl(); self.stamp(26); after_first(); self.wait(t_); self.stamp(25)
            e(f"s_branch {ck}")
            keep = self.p.take()
            self.label(rt); pl(); e("s_waitcnt vmcnt(0)"); e(f"s_branch {ck}")
            self.ool += self.p.take(); self.p.put(keep[:-1])
            self.label(ck)
        else:
            self.label(rt); pl(); e("s_waitcnt vmcnt(0)")
        e(f"v_mov_b32 v10, s{S_TAG}")
        if True: e("v_cmp_gt_u32 vcc, 24, v1\nv_cndmask_b32 v9, v10, v9, vcc")
        for i in range(8):
            e(f"v_min3_u32 v11, v{41+2*i}, v{21+2*i}, {'v11' if i else 'v9'}")
            e(f"v_max3_u32 v12, v{41+2*i}, v{21+2*i}, {'v12' if i else 'v9'}")
        e("v_xor_b32 v11, v11, v10\nv_xor_b32 v12, v12, v10\nv_or_b32 v7, v11, v12")
        e("v_cmp_ne_u32 vcc, 0, v7")
        e(f"s_cbranch_vccz {ok}")
        self.spin_check(rt)
        self.label(ok)
        self.stamp(4)
        if self.cfg.get("stamps"): e(f"s_sub_u32 s{S_ST}, {self.cfg['spin']+1}, s{S_SPIN}\nv_writelane_b32 v255, s{S_ST}, 50")
        e(f"s_mov_b32 s{S_EX}, s{S_T0}\nv_mov_b32 v237, v4")
        keep_ = self.p.take()
        e("v_add_f32_dpp v8, v8, v8 quad_perm:[1,0,3,2] row_mask:0xf bank_mask:0xf")
        for i in range(4): e(f"v_lshlrev_b32 v{64+i}, 16, v{40+2*i}")
        e("v_add_f32_dpp v8, v8, v8 quad_perm:[2,3,0,1] row_mask:0xf bank_mask:0xf")
        for i in range(4, 8): e(f"v_lshlrev_b32 v{64+i}, 16, v{40+2*i}")
        e("v_cvt_pk_bf16_f32 v8, v8, v8\nv_rcp_f32 v64, v64\nv_and_b32 v8, 0xffff0000, v8\nv_rcp_f32 v65, v65")
        e("v_add_f32 v9, 1.0, v8\nv_rcp_f32 v66, v66")
        e("v_cvt_pk_bf16_f32 v9, v9, v9\nv_rcp_f32 v67, v67\nv_and_b32 v9, 0xffff0000, v9")
        X = 72; Hh = 88; Z = 104
        for i in range(8):
            if i < 3:
                src = 9 if i in (1, 4) else 8
                e(f"v_readlane_b32 s{S_M+2*i}, v{src}, {8*i}")
                e(f"v_readlane_b32 s{S_M+2*i+1}, v{src}, {8*i+4}")
            if i >= 4: e(f"v_rcp_f32 v{64+i}, v{64+i}")
            e(f"v_and_b32 v{56+i}, 0xffff0000, v{40+2*i}")
            k_ = i >> 1; src_ = 20 + 4*k_ + 2*(i & 1); dst_ = X + 8*(k_ & 1) + 4*(k_ >> 1) + 2*(i & 1)
            e(f"v_lshlrev_b32 v{dst_}, 16, v{src_}")
            e(f"v_and_b32 v{dst_+1}, 0xffff0000, v{src_}")
        sa, sA, ga, sb, sB, gb = [S_M + 2*i for i in range(6)]
        e(f"v_mov_b32 v16, s{ga}\nv_mov_b32 v17, s{ga+1}")
        for k in range(8):
            e(f"v_pk_add_f32 {vr(Hh+2*k,2)}, {vr(X+2*k,2)}, {vr(56+2*(k&3),2)} neg_lo:[0,1] neg_hi:[0,1]")
        e(f"v_mul_f32 v10, s{sA}, v16\nv_mul_f32 v11, s{sA+1}, v17")
        e(f"v_mul_f32 v12, s{sa}, v16\nv_mul_f32 v13, s{sa+1}, v17")
        e(f"s_lshl_b32 s{S_T0}, s{S_DSK}, 16\ns_and_b32 s{S_T1}, s{S_DSK}, 0xffff0000")
        e(f"v_mov_b32 v14, s{S_T0}\nv_mov_b32 v15, s{S_T1}")
        for k in range(8):
            e(f"v_pk_mul_f32 {vr(Hh+2*k,2)}, {vr(Hh+2*k,2)}, {vr(64+2*(k&3),2)}")
        for k in range(8):
            c = k >> 2
            e(f"v_pk_fma_f32 {vr(Hh+2*k,2)}, {vr(Hh+2*k,2)}, v[10:11], v[12:13] op_sel:[0,{c},{c}] op_sel_hi:[1,{c},{c}]")
        for ch in range(2):
            for j in range(4):
                e(f"v_cvt_pk_bf16_f32 v{120+4*ch+j}, v{Hh+8*ch+2*j}, v{Hh+8*ch+2*j+1}")
            e(f"ds_write_b128 v183, v[{120+4*ch}:{123+4*ch}] offset:{HCH*ch}")
        for k in range(8):
            c = k >> 2
            e(f"v_pk_fma_f32 {vr(Z+2*k,2)}, {vr(Hh+2*k,2)}, v[14:15], {vr(X+2*k,2)} op_sel:[0,{c},0] op_sel_hi:[1,{c},1]")
            if k & 1: e(f"ds_write_b128 v184, {vr(Z+2*k-2,4)} offset:{8192*c + 16*((k>>1)&1)}")
        body_ = self.p.take()
        self.p.put(keep_ + spread(body_, [(0, c_) for c_ in (mid() if mid else [])]))
    def late_issue(self): return self.tok(f"buffer_load_dwordx2 v[238:239], v237, s[{S_WS}:{S_WS+3}], s{S_EX} offen sc1")
    def late_fin(self, tl):
        e = self.e
        self.wait(tl)
        self.guard("lt", lambda ex: e(f"v_cmp_ne_u32 vcc, s{S_TAG}, v239"), lambda: (self.late_issue(), e("s_waitcnt vmcnt(0)")))
        e("v_add_f32_dpp v238, v238, v238 quad_perm:[1,0,3,2] row_mask:0xf bank_mask:0xf")
        e("s_nop 1")
        e("v_add_f32_dpp v238, v238, v238 quad_perm:[2,3,0,1] row_mask:0xf bank_mask:0xf")
        e("v_cvt_pk_bf16_f32 v238, v238, v238\nv_and_b32 v238, 0xffff0000, v238\nv_add_f32 v239, 1.0, v238")
        e("v_cvt_pk_bf16_f32 v239, v239, v239\nv_and_b32 v239, 0xffff0000, v239\ns_nop 0")
        for i in (4, 5):
            src = 239 if i == 4 else 238
            e(f"v_readlane_b32 s{S_M+2*i}, v{src}, {8*i}\nv_readlane_b32 s{S_M+2*i+1}, v{src}, {8*i+4}")
    def modf_pub(self):
        e = self.e
        sa, sA, ga, sb, sB, gb = [S_M + 2*i for i in range(6)]
        nm = self.lab("nomodf")
        e(f"s_cmp_lg_u32 s{S_WV}, 0")
        e(f"s_cbranch_scc1 {nm}")
        e(f"v_mov_b32 v20, 0\nv_mov_b32 v21, s{S_TAG}\nv_mov_b32 v22, s{gb}\nv_mov_b32 v23, s{S_TAG}")
        e(f"v_writelane_b32 v22, s{gb+1}, 1")
        e("v_lshlrev_b32 v19, 4, v1")
        e(f"s_lshl_b32 s{S_T0}, s{S_D0}, 4\ns_add_u32 s{S_T0}, s{S_T0}, {WS_MODF}")
        e("s_mov_b64 exec, 3")
        self.p.nc(f"buffer_store_dwordx4 v[20:23], v19, s[{S_WS}:{S_WS+3}], s{S_T0} offen sc1")
        e("s_mov_b64 exec, -1")
        self.label(nm)
    def conv_setup(self):
        e = self.e
        e(f"s_lshr_b32 s{S_CH}, s{S_WV}, 1")
        e(f"s_and_b32 s{S_PAR}, s{S_WV}, 1")
        e("v_and_b32 v176, 15, v1\nv_lshrrev_b32 v177, 4, v1")
        e("v_lshlrev_b32 v178, 3, v177")
        e("v_sub_u32 v178, v178, v176")
        e("v_add_u32 v178, 2031, v178")
        e("v_lshrrev_b32 v178, 1, v178")
        e("v_and_b32 v179, 1, v1\nv_xor_b32 v179, 1, v179")
        e(f"v_mul_u32_u24 v179, {KODD}, v179")
        e("v_lshl_add_u32 v178, v178, 2, v179")
        e(f"s_mul_i32 s{S_T0}, s{S_CH}, {KCH}")
        e(f"s_lshl_b32 s{S_T1}, s{S_PAR}, 8")
        e(f"s_sub_u32 s{S_T0}, s{S_T0}, s{S_T1}")
        e(f"s_add_u32 s{S_T0}, s{S_T0}, {L_K - 192 - 512}")
        for j in range(4):
            e(f"v_add_u32 v{168+j}, s{S_T0}, v178")
            if j < 3: e(f"s_sub_u32 s{S_T0}, s{S_T0}, 1024")
        e("v_lshlrev_b32 v178, 5, v176")
        e("v_lshl_add_u32 v178, v177, 4, v178")
        e(f"s_mul_i32 s{S_T0}, s{S_CH}, {HCH}")
        e(f"s_sub_u32 s{S_T0}, s{S_T0}, s{S_T1}")
        e(f"s_add_u32 s{S_T0}, s{S_T0}, {L_HI + 480 - 192}")
        e(f"v_add_u32 v172, s{S_T0}, v178")
        e("v_lshl_add_u32 v178, v176, 5, v178")
        e(f"s_lshl_b32 s{S_T0}, s{S_CH}, 13")
        e(f"s_lshl_b32 s{S_T1}, s{S_PAR}, 12")
        e(f"s_add_u32 s{S_T0}, s{S_T0}, s{S_T1}")
        e(f"s_add_u32 s{S_T0}, s{S_T0}, {L_Z}")
        e(f"v_add_u32 v173, s{S_T0}, v178")
        e(f"s_lshl_b32 s{S_T0}, s{S_WV}, 12\ns_add_u32 s{S_T0}, s{S_T0}, {L_Z}\nv_lshl_add_u32 v180, v1, 4, s{S_T0}")
        e(f"s_xor_b32 s{S_T1}, s{S_WV}, 1\ns_lshl_b32 s{S_T1}, s{S_T1}, 12\ns_add_u32 s{S_T1}, s{S_T1}, {L_Z}\nv_lshl_add_u32 v181, v1, 4, s{S_T1}")
        e("v_and_b32 v176, 15, v1\nv_lshrrev_b32 v177, 4, v1")
        e("v_lshrrev_b32 v182, 1, v176\nv_and_b32 v179, 1, v177\nv_lshl_add_u32 v182, v179, 3, v182\nv_lshlrev_b32 v182, 15, v182")
        e("v_and_b32 v176, 1, v176\nv_lshl_add_u32 v182, v176, 5, v182\nv_lshrrev_b32 v177, 1, v177\nv_lshl_add_u32 v182, v177, 4, v182")
        e(f"s_add_u32 s27, s{S_D0}, s{S_CH}\ns_lshl_b32 s27, s27, 6\ns_lshl_b32 s28, s{S_PAR}, 20\ns_add_u32 s27, s27, s28")
        e(f"s_add_u32 s28, s27, {hx(WS_X1S)}\ns_add_u32 s27, s27, {hx(WS_X1)}\ns_add_u32 s29, s27, {hx(16*32768)}\ns_add_u32 s30, s28, {hx(16*32768)}")
        e(f"v_lshlrev_b32 v183, 4, v0\nv_add_u32 v183, {L_HI + 512}, v183\nv_lshlrev_b32 v184, 5, v0\nv_add_u32 v184, {L_Z}, v184")
        e("v_mov_b32 v248, -1\nv_mov_b32 v249, -1\nv_mov_b32 v250, -1\nv_mov_b32 v251, -1")
        e("v_lshrrev_b32 v252, 3, v0\nv_lshlrev_b32 v252, 15, v252\nv_and_b32 v176, 7, v0\nv_lshl_add_u32 v252, v176, 4, v252")
        e(f"s_lshl_b32 s31, s{S_D0}, 6\nv_lshlrev_b32 v236, 4, v0\nv_mov_b32 v199, 0")
        e(f"s_lshl_b32 s32, s{S_D0}, 5\ns_cmp_lg_u32 s{S_WV}, 0\ns_cselect_b32 s32, 0x7f000000, s32")
    def conv(self, fillers=None, pre_start=None, pre_bar=None, post_bar=None):
        e = self.e
        ACC = 4
        FA = [40, 104]; FB = [72, 136]
        if pre_start: pre_start()
        e("s_waitcnt lgkmcnt(0)")
        e("s_barrier")
        self.stamp(5)
        p1 = self.lab("cp1"); jn = self.lab("cj")
        e(f"s_cmp_lg_u32 s{S_PAR}, 0")
        e(f"s_cbranch_scc1 {p1}")
        for par in range(2):
            for c in range(4):
                r = ACC + 4 * (4*par + c)
                e(f"ds_read_b128 v[{r}:{r+3}], v173 offset:{1024*c}")
            for r in range(16): e(f"v_mov_b32 v{ACC + 16*(1-par) + r}, 0")
            if par == 0:
                e(f"s_branch {jn}"); self.label(p1)
        self.label(jn)
        def loads(it):
            s = it & 1; L = []; o = 16 * (3 - it)
            tk = {}
            for k in range(8):
                tk[("B", k)] = self.tok(f"ds_read_b128 {vr(FB[s]+4*k,4)}, v172 offset:{512*k + 64*(3-it)}")
                b = 168 + (k >> 1); oo = o + (0 if k & 1 else 128)
                self.tok(f"ds_read2_b32 {vr(FA[s]+4*k,2)}, v{b} offset0:{oo} offset1:{oo+1}")
                tk[("A", k)] = self.tok(f"ds_read2_b32 {vr(FA[s]+4*k+2,2)}, v{b} offset0:{oo+2} offset1:{oo+3}")
            return tk
        pre = self.p.take()
        tks = [None] * 4
        tks[0] = loads(0)
        main = self.p.take()
        carry = []
        for it in range(4):
            nxt = []
            if it < 3:
                tks[it+1] = loads(it+1); nxt = self.p.take()
            s = it & 1
            order = sorted([(u, v) for u in range(8) for v in range(8 - u)], key=lambda t: (max(t), t[0]))
            seen = set(); k = 0
            for (u, v) in order:
                need = [t for t in (("A", u), ("B", v)) if t not in seen]
                if need:
                    self.wait(*[tks[it][t] for t in need]); seen |= set(need)
                cb = u + v
                e(f"v_mfma_f32_16x16x32_bf16 {vr(ACC+4*cb,4)}, {vr(FA[s]+4*u,4)}, {vr(FB[s]+4*v,4)}, {vr(ACC+4*cb,4)}")
                if nxt and ((it > 0 and (k % 3 != 2 or len(nxt) >= 35 - k)) or (it == 0 and k >= 10)):
                    self.p.put([nxt.pop(0)])
                k += 1
            self.p.put(nxt)
            seg = self.p.take()
            if it == 0: seg = main + seg; main = []
            carry = carry + (fillers.get(it, []) if fillers else [])
            seg, carry = merge(seg, carry, 8, pace=self.cfg["cpace"])
            if it in self.cfg.get('cflush', ()): seg += carry; carry = []
            main += seg
        self.p.put(pre + main)
        self.conv_left = carry
        self.stamp(6)
        if pre_bar: pre_bar()
        p1 = self.lab("ep1"); jn = self.lab("ej")
        e(f"s_cmp_lg_u32 s{S_PAR}, 0")
        e(f"s_cbranch_scc1 {p1}")
        for par in range(2):
            e("s_nop 7")
            for c in range(4):
                r = ACC + 4 * (4*(1-par) + c)
                e(f"ds_write_b128 v180, {vr(r,4)} offset:{1024*c}")
            e("s_waitcnt lgkmcnt(0)")
            e("s_barrier")
            for c in range(4): e(f"ds_read_b128 {vr(40+4*c,4)}, v181 offset:{1024*c}")
            for c in range(4):
                e(f"s_waitcnt lgkmcnt({3-c})")
                r = ACC + 4 * (4*par + c)
                e(f"v_pk_add_f32 {vr(40+4*c,2)}, {vr(40+4*c,2)}, {vr(r,2)}")
                e(f"v_pk_add_f32 {vr(42+4*c,2)}, {vr(42+4*c,2)}, {vr(r+2,2)}")
            if par == 0:
                e(f"s_branch {jn}"); self.label(p1)
        self.label(jn)
        sB = S_M + 8
        e(f"s_cmp_eq_u32 s{S_CH}, 0")
        e(f"s_cselect_b32 s{S_T0}, s{sB}, s{sB+1}")
        e(f"v_mov_b32 v38, s{S_T0}\nv_mov_b32 v39, s{S_T0}")
        if post_bar: post_bar()
        for pr in range(2):
            a = 40 + 8*pr
            d = 60 + 8*pr
            for h in range(4): e(f"v_pk_mul_f32 {vr(76+2*h,2)}, {vr(a+2*h,2)}, v[38:39]")
            for h in range(4): e(f"v_cvt_pk_bf16_f32 v{d+h}, v{76+2*h}, v{77+2*h}")
            for h in range(4): e(f"v_cvt_pk_bf16_f32 v{d+4+h}, v{a+2*h}, v{a+2*h+1}")
            e(f"v_permlane16_swap_b32 v{d}, v{d+2}\nv_permlane16_swap_b32 v{d+1}, v{d+3}")
            e(f"buffer_store_dwordx4 {vr(d,4)}, v182, s[{S_WS}:{S_WS+3}], s{28 + 2*pr} offen sc1")
            e(f"v_permlane16_swap_b32 v{d+4}, v{d+6}\nv_permlane16_swap_b32 v{d+5}, v{d+7}")
            self.x1st = self.tok(f"buffer_store_dwordx4 {vr(d+4,4)}, v182, s[{S_WS}:{S_WS+3}], s{27 + 2*pr} offen sc1")
        self.stamp(7)
    def g1_map(self):
        e = self.e
        if self.cfg["map8"]:
            e(f"s_lshr_b32 s{S_T0}, s{S_XCD}, 1\ns_mul_i32 s{S_T0}, s{S_T0}, 28\ns_add_u32 s{S_T0}, s{S_T0}, s{S_IDX}")
            e(f"s_and_b32 s{S_G1}, s{S_XCD}, 1\ns_lshl_b32 s{S_G1}, s{S_G1}, 3\ns_and_b32 s{S_G2}, s{S_T0}, 7\ns_add_u32 s{S_G1}, s{S_G1}, s{S_G2}")
            e(f"s_lshr_b32 s{S_G2}, s{S_T0}, 3")
        else:
            e(f"s_lshr_b32 s{S_G1}, s{S_XCD}, 1\ns_lshl_b32 s{S_G1}, s{S_G1}, 2")
            e(f"s_and_b32 s{S_T0}, s{S_IDX}, 3\ns_add_u32 s{S_G1}, s{S_G1}, s{S_T0}")
            e(f"s_and_b32 s{S_G2}, s{S_XCD}, 1\ns_mul_i32 s{S_G2}, s{S_G2}, 7")
            e(f"s_lshr_b32 s{S_T0}, s{S_IDX}, 2\ns_add_u32 s{S_G2}, s{S_G2}, s{S_T0}")
        e(f"s_lshl_b32 s15, s{S_XCD}, 2\ns_add_u32 s15, s15, s{S_IDX}\ns_sub_u32 s15, s15, 28")
        e(f"s_lshr_b32 s14, s15, 1\ns_and_b32 s13, s15, 1\ns_cmp_ge_u32 s{S_IDX}, 28")
        e(f"s_cselect_b32 s{S_G2}, s14, s{S_G2}\ns_cselect_b32 s{S_G1}, 0, s{S_G1}\ns_cselect_b32 s{S_G3}, s13, 0\ns_cselect_b32 s15, s15, 0")
        e(f"s_cmp_ge_u32 s15, 28\ns_cselect_b32 s10, 0, {hx(1835008)}\ns_mov_b32 s11, 0x20000")
        e(f"s_lshl_b32 s{S_G2}, s{S_G2}, 7")
        e(f"s_lshl_b32 s{S_T0}, s{S_WV}, 5\ns_add_u32 s{S_G2}, s{S_G2}, s{S_T0}")
    AX = 176
    BX = 184
    def g1_fold(self, g, acc):
        for t in range(2):
            self.e(f"v_mfma_f32_32x32x16_bf16 {vr(acc+16*t,16)}, {vr(self.AX+4*t,4)}, {vr(self.BX+4*g,4)}, {vr(acc+16*t,16)}")
    def g1_epilogue(self, g, acc, stat, split=False):
        e = self.e
        save = self.p.take()
        T = 148
        rG, kD = stat, stat+1
        for t in range(2):
            for half in range(2):
                regs = [4*half + j for j in range(4)]
                gq = [T + 8*half + j for j in range(4)]; q = [T + 8*half + 4 + j for j in range(4)]
                for j, r in enumerate(regs): e(f"v_mul_f32 v{gq[j]}, v{rG}, v{acc+16*t+r}")
                for j in range(4): e(f"v_fma_f32 v{q[j]}, -v{gq[j]}, v{gq[j]}, s{S_T3}")
                for j in range(4): e(f"v_mul_f32 v{q[j]}, v{gq[j]}, v{q[j]}")
                for j, r in enumerate(regs):
                    e(f"v_exp_f32 v{q[j]}, v{q[j]}")
                    e(f"v_mul_f32 v{gq[j]}, v{gq[j]}, v{acc+16*t+8+r}")
                for j in range(4): e(f"v_fma_f32 v{q[j]}, v{q[j]}, v{kD}, v{kD}")
                for j in range(4): e(f"v_rcp_f32 v{q[j]}, v{q[j]}")
                for j in range(4): e(f"v_mul_f32 v{gq[j]}, v{gq[j]}, v{q[j]}")
                e(f"v_cvt_pk_bf16_f32 v{172+2*half}, v{gq[0]}, v{gq[1]}")
                e(f"v_cvt_pk_bf16_f32 v{173+2*half}, v{gq[2]}, v{gq[3]}")
            e(f"s_add_u32 s101, s{S_T2}, {g*112*1024 + t*1024}")
            tk_ = self.tok(f"buffer_store_dwordx4 v[172:175], v147, s[{S_WS}:{S_WS+3}], s101 offen sc1")
        self.htok[g] = tk_
        out = self.p.take(); self.p.put(save)
        if split: return out[:len(out)//2], out[len(out)//2:]
        return out
    def g2_map(self):
        e = self.e
        e(f"s_lshl_b32 s{S_G1}, s{S_XCD}, 1\ns_bfe_u32 s44, s{S_IDX}, 0x10004\ns_add_u32 s{S_G1}, s{S_G1}, s44")
        e(f"s_lshl_b32 s{S_G1}, s{S_G1}, 2")
        e(f"s_bfe_u32 s44, s{S_IDX}, 0x10003")
        e(f"s_sub_u32 s{S_G2}, s{S_G1}, s44\ns_add_u32 s{S_G2}, s{S_G2}, 3")
        e(f"s_add_u32 s{S_G1}, s{S_G1}, s44")
        e(f"s_and_b32 s{S_G3}, s{S_IDX}, 7")
    XT = lambda self, g: (3 - g) * 32768
    S_HB = 81
    def x1s_issue(self, g):
        t = None
        for j in range(8):
            if j % 4 == 0:
                self.e(f"s_add_u32 m0, s{S_T1}, {self.XT(g) + j*1024}")
                self.e(f"s_add_u32 s13, s{S_T0}, {g*32768 + j*1024}")
            t = self.tok(f"buffer_load_dwordx4 v147, s[{S_WS}:{S_WS+3}], s13 offen offset:{(j%4)*1024} sc1 lds")
        return t
    def x1s_check(self, g, T, explicit=False):
        e = self.e
        ad = 146 if self.XT(g) < 65536 else 143
        tk = [self.tok(f"ds_read_b32 v{T+j}, v{ad} offset:{self.XT(g) % 65536 + j*1024}") for j in range(8)]
        if explicit: e("s_waitcnt lgkmcnt(0)")
        else: self.wait(tk[7])
        e(f"v_max3_u32 v{T}, v{T}, v{T+1}, v{T+2}\nv_max3_u32 v{T+3}, v{T+3}, v{T+4}, v{T+5}\nv_max3_u32 v{T}, v{T}, v{T+6}, v{T+7}\nv_max_u32 v{T}, v{T}, v{T+3}")
        e(f"v_cmp_eq_u32 vcc, -1, v{T}")
    def x1s_guard(self, g, T, tok):
        e = self.e
        rt = self.lab("xr"); lp = self.lab("xl"); bk = self.lab("xb")
        self.wait(tok)
        self.x1s_check(g, T)
        e(f"s_cbranch_vccnz {rt}")
        self.label(bk)
        def rout():
            self.label(rt)
            e(f"s_mov_b32 s{S_SPIN}, {self.cfg['spin']}")
            if self.cfg.get("stamps"): e(f"v_writelane_b32 v255, 1, {46 + g}")
            self.label(lp)
            self.x1s_issue(g)
            e("s_waitcnt vmcnt(0) lgkmcnt(0)")
            self.x1s_check(g, T, explicit=True)
            e("s_nop 1")
            e(f"s_cbranch_vccz {bk}")
            self.spin_check(lp)
            e(f"s_branch {bk}")
        o, _ = self.capture(rout); self.ool += o
    def modf_issue(self):
        t = None
        for v in range(2):
            for kq in range(4):
                self.e(f"s_mov_b32 s47, {WS_MODP + (kq*3072 + (3+v)*512)*8}")
                t = self.tok(f"buffer_load_dwordx4 {vr(200 + 16*v + 4*kq, 4)}, v236, s[{S_WS}:{S_WS+3}], s47 offen sc1")
        return t
    def xfill(self):
        e = self.e; t = None
        for base in (WS_X1S, WS_X1S + 32*32768, WS_X1, WS_X1 + 32*32768):
            e(f"s_add_u32 s101, s31, {hx(base)}")
            t = self.tok(f"buffer_store_dwordx4 v[248:251], v252, s[{S_WS}:{S_WS+3}], s101 offen sc1")
        return t
    def hfill(self):
        e = self.e
        e("v_mov_b32 v248, -1\nv_mov_b32 v249, -1\nv_mov_b32 v250, -1\nv_mov_b32 v251, -1")
        for g in (2, 3):
            e(f"s_add_u32 s101, s{self.S_HB}, {g*112*1024}")
            self.tok(f"buffer_store_dwordx4 v[248:251], v147, s[{S_WS}:{S_WS+3}], s101 offen sc1")
            self.tok(f"buffer_store_dwordx4 v[248:251], v147, s[{S_WS}:{S_WS+3}], s101 offen offset:1024 sc1")
    S_HF = 35
    def gate_pub(self, base=WS_FL1):
        self.e(f"s_add_u32 s101, s32, {base}")
        self.e(f"buffer_store_dword v253, v199, s[{S_WS}:{S_WS+3}], s101 offen sc1")
    S_FB = 3
    def hbase(self):
        e = self.e
        e(f"s_mul_i32 s{self.S_HB}, s{S_G1}, {4*112*1024}")
        e(f"s_lshl_b32 s101, s{S_G2}, 6")
        e(f"s_add_u32 s{self.S_HB}, s{self.S_HB}, s101")
        e(f"s_add_u32 s{self.S_HB}, s{self.S_HB}, {hx(WS_H)}")
        e(f"s_mul_i32 s{self.S_FB}, s{S_G1}, {4*56*64}")
        e(f"s_lshl_b32 s101, s{S_G2}, 1")
        e(f"s_add_u32 s{self.S_FB}, s{self.S_FB}, s101")
        e(f"s_add_u32 s{self.S_FB}, s{self.S_FB}, {WS_FL2}")
        e(f"s_cmp_ge_u32 s{S_IDX}, 28")
        e(f"s_cselect_b32 s{self.S_FB}, 0x7f000000, s{self.S_FB}")
    def hflag(self, g, vz, vt):
        self.wait(self.htok[g])
        self.e(f"s_add_u32 s101, s{self.S_FB}, {g*56*64}")
        self.e(f"buffer_store_dword v{vt}, v{vz}, s[{S_WS}:{S_WS+3}], s101 offen sc1")
    def capture(self, fn):
        keep = self.p.take(); r = fn(); out = self.p.take(); self.p.put(keep); return out, r
    def cap(self, fn): return self.capture(fn)[0]
    def guard(self, name, chk, reissue, cond="vccnz"):
        e = self.e
        rt = self.lab(name + "r"); lp = self.lab(name + "l"); bk = self.lab(name + "b")
        chk(False)
        e(f"s_cbranch_vccnz {rt}")
        self.label(bk)
        def rout():
            self.label(rt); e(f"s_mov_b32 s{S_SPIN}, {self.cfg['spin']}")
            if self.cfg.get("stamps"): e(f"v_writelane_b32 v255, 1, {52 + ['mf', 'gt', 'st', 'f0', 'lt', 'g2', 'fa', 'hc', 'rs'].index(name)}")
            self.label(lp)
            reissue(); chk(True); e("s_nop 1")
            e(f"s_cbranch_vccz {bk}"); self.spin_check(lp); e(f"s_branch {bk}")
        self.ool += self.cap(rout)

    def p0_issue(self):
        e = self.e; T = self.T = {}
        e(f"s_mov_b32 s{S_X}, s{P_X}\ns_mov_b32 s{S_X+1}, s{P_X+1}")
        self.tok(f"buffer_load_dwordx4 v[10:13], v9, s[{S_X}:{S_X+3}], s{S_T0} offen")
        T["xr"] = self.tok(f"buffer_load_dwordx4 v[14:17], v9, s[{S_X}:{S_X+3}], s{S_T0} offen offset:1024")
        self.tok(f"buffer_load_dwordx4 v3, s[{S_X}:{S_X+3}], s{S_T3} offen lds")
        T["xt"] = self.tok(f"buffer_load_dwordx4 v6, s[{S_X}:{S_X+3}], s{S_T3} offen offset:1024 lds")
        for i in range(6): T["ssm"] = self.tok(f"global_load_ushort v{18+i}, v8, s[{P_ARE+2*i}:{P_ARE+2*i+1}]")
        e(f"s_load_dword s{S_E}, s[{P_WS}:{P_WS+1}], 0")
        e(f"s_lshl_b32 s{S_T0}, s{S_D0}, 1")
        e(f"s_load_dword s{S_LDT}, s[{P_LDT}:{P_LDT+1}], s{S_T0}")
        e(f"s_load_dword s{S_DSK}, s[{P_DSK}:{P_DSK+1}], s{S_T0}")
        e(f"s_mov_b32 s{S_WM}, s{P_WM}\ns_mov_b32 s{S_WM+1}, s{P_WM+1}")
        e(f"s_cmp_ge_u32 s{S_M+1}, {24 if self.cfg['split'] else 99}\ns_cselect_b32 s{S_M+4}, 1, 0\ns_cmp_ge_u32 s2, 192\ns_cselect_b32 s{S_M+4}, 2, s{S_M+4}")
        T["c"] = self.tok(f"global_load_dword v186, v7, s[{P_C}:{P_C+1}]")
        self.wm_issue(0)
        e(f"s_bitcmp1_b32 s{S_WV}, 0\ns_cselect_b32 s8, s{P_WU}, s{P_WG}\ns_cselect_b32 s9, s{P_WU+1}, s{P_WG+1}")
        if self.cfg["touch"] == 4: self.touch_w()
    def wm_issue(self, which):
        e = self.e
        sk = self.lab("wm")
        e(f"s_cmp_lg_u32 s{S_M+4}, {which}\ns_cbranch_scc1 {sk}")
        e(f"s_lshl_b32 s{S_T1}, s{S_WV}, 12")
        for j in range(4):
            e(f"s_add_u32 m0, s{S_T1}, {L_MOD + 1024*j}")
            e(f"s_add_u32 s101, s{S_M+2}, {j*8*6144}")
            self.T["wm%d" % which] = self.tok(f"buffer_load_dwordx4 v33, s[{S_WM}:{S_WM+3}], s101 offen lds")
        jn = self.lab("wmj")
        self.label(jn)
        def alt():
            self.label(sk)
            for j in range(4): e(f"global_load_dword v32, v9, s[{P_C}:{P_C+1}]")
            e(f"s_branch {jn}")
        self.ool += self.cap(alt)

    def p0_stats(self):
        e = self.e
        e("v_mov_b32 v3, 0x3f803f80")
        self.wait(self.T["xr"])
        for i in range(4):
            c = lambda r: (f"v{r}" if i else "0")
            e(f"v_dot2_f32_bf16 v4, v{10+i}, v3, {c(4)}")
            e(f"v_dot2_f32_bf16 v5, v{10+i}, v{10+i}, {c(5)}")
            e(f"v_dot2_f32_bf16 v6, v{14+i}, v3, {c(6)}")
            e(f"v_dot2_f32_bf16 v7, v{14+i}, v{14+i}, {c(7)}")
        self.reduce16([4, 5, 6, 7])
        e("v_permlane16_swap_b32 v4, v5\nv_permlane16_swap_b32 v6, v7")
        e("v_add_f32 v4, v4, v5\nv_add_f32 v6, v6, v7")
        e("v_permlane32_swap_b32 v4, v6")
        e("v_add_f32 v4, v4, v6")
        e("v_mov_b32 v5, v4")
        e("v_permlane16_swap_b32 v4, v5")
        self.stat_finish(4, 5, 6, 7)
        e(f"v_mov_b32 v5, s{S_TAG}")
        e("v_lshrrev_b32 v6, 2, v1")
        e(f"s_lshr_b32 s{S_T0}, s2, 6\ns_lshl_b32 s{S_T0}, s{S_T0}, 2\ns_add_u32 s{S_T0}, s{S_T0}, s{S_WV}\ns_lshl_b32 s{S_T0}, s{S_T0}, 10")
        e(f"s_and_b32 s{S_T1}, s2, 63\ns_lshl_b32 s{S_T1}, s{S_T1}, 4\ns_add_u32 s{S_T0}, s{S_T0}, s{S_T1}\ns_add_u32 s{S_T0}, s{S_T0}, {WS_ST1}")
        e("s_mov_b32 exec_lo, 1\ns_mov_b32 exec_hi, 1")
        e(f"buffer_store_dwordx2 v[4:5], v6, s[{S_WS}:{S_WS+3}], s{S_T0} offen sc1")
        e("s_mov_b64 exec, -1")

    def p0_xb(self):
        e = self.e
        e("v_lshrrev_b32 v187, 2, v1\nv_lshlrev_b32 v187, 7, v187\nv_and_b32 v4, 3, v1\nv_lshl_add_u32 v187, v4, 3, v187")
        e("v_lshrrev_b32 v5, 4, v1\nv_lshlrev_b32 v3, 11, v5")
        e("v_bfe_u32 v4, v1, 1, 1\nv_lshl_add_u32 v3, v4, 10, v3")
        e("v_bfe_u32 v4, v1, 2, 2\nv_lshl_add_u32 v3, v4, 7, v3")
        e("v_and_b32 v4, 1, v1\nv_lshl_add_u32 v3, v4, 3, v3")
        e(f"s_lshl_b32 s{S_T1}, s{S_WV}, 5\ns_add_u32 s{S_T1}, s{S_T1}, {L_XT}\nv_add_u32 v188, s{S_T1}, v3")
        e("v_lshlrev_b32 v4, 10, v4\nv_lshl_add_u32 v4, v5, 5, v4")
        e("v_bfe_u32 v5, v1, 3, 1\nv_lshl_add_u32 v4, v5, 4, v4")
        e("v_bfe_u32 v5, v1, 1, 2\nv_lshl_add_u32 v189, v5, 14, v4")
        e(f"s_lshl_b32 s{S_T0}, s{S_XCD}, 19\ns_lshl_b32 s{S_T1}, s{S_WV}, 17\ns_add_u32 s{S_T0}, s{S_T0}, s{S_T1}")
        e(f"s_lshr_b32 s{S_T1}, s{S_IDX}, 3\ns_lshl_b32 s{S_T1}, s{S_T1}, 12\ns_add_u32 s{S_T0}, s{S_T0}, s{S_T1}")
        e(f"s_and_b32 s{S_T1}, s{S_IDX}, 7\ns_lshl_b32 s{S_T1}, s{S_T1}, 7\ns_add_u32 s{S_T0}, s{S_T0}, s{S_T1}\ns_add_u32 s46, s{S_T0}, {hx(WS_XB)}")
        e(f"s_add_u32 s47, s46, 0x10000")
    def p0_xb2(self):
        e = self.e
        for i in range(4): e(f"v_mov_b32 v{39+4*i}, s{S_TAG}")
        self.wait(self.T["xt"])
        e("s_barrier")
        tk = [self.tok(f"ds_read_b64_tr_b16 v[{36+4*k}:{37+4*k}], v188 offset:{512*(k&1) + 16*(k>>1)}") for k in range(4)]
        for k in range(4):
            self.wait(tk[k])
            e(f"v_mov_b32 v{38+4*k}, v{37+4*k}\nv_mov_b32 v{37+4*k}, s{S_TAG}")
            e(f"buffer_store_dwordx4 v[{36+4*k}:{39+4*k}], v189, s[{S_WS}:{S_WS+3}], s{46 + (k>>1)} offen offset:{2048*(k&1)} sc1")

    def p0_mod(self, which, nyoung, base=52):
        e = self.e
        skip = self.lab("nomod2")
        e(f"s_cmp_lg_u32 s{S_M+4}, {which}\ns_cbranch_scc1 {skip}")
        e("v_lshlrev_b32 v56, 16, v186\nv_and_b32 v57, 0xffff0000, v186")
        e(f"v_mul_f32 v58, {fl(-LOG2E)}, v56\nv_mul_f32 v59, {fl(-LOG2E)}, v57")
        e("v_exp_f32 v58, v58\nv_exp_f32 v59, v59")
        e("v_add_f32 v58, 1.0, v58\nv_add_f32 v59, 1.0, v59")
        e("v_rcp_f32 v58, v58\nv_rcp_f32 v59, v59")
        e("v_mul_f32 v56, v56, v58\nv_mul_f32 v57, v57, v59")
        e("v_cvt_pk_bf16_f32 v56, v56, v57")
        e(f"s_lshl_b32 s44, s{S_WV}, 8\ns_add_u32 s44, s44, {L_MOD + 16384}")
        e(f"v_lshl_add_u32 v57, v1, 2, s44")
        e("ds_write_b32 v57, v56")
        e("v_lshrrev_b32 v58, 4, v1")
        e(f"v_lshl_add_u32 v57, v58, 4, s44")
        e("v_lshl_add_u32 v59, v58, 9, v187")
        e(f"s_lshl_b32 s45, s{S_WV}, 5\ns_add_u32 s45, s45, {L_MOD}")
        e(f"v_add_u32 v59, s45, v59")
        self.p.wait_nt(self.T["wm%d" % which])
        e("s_waitcnt lgkmcnt(0)\ns_barrier")
        for ks in range(4):
            e(f"ds_read_b128 v[{60+8*ks}:{63+8*ks}], v57 offset:{64*ks}")
            e(f"ds_read_b64_tr_b16 v[{64+8*ks}:{65+8*ks}], v59 offset:{4096*ks}")
            e(f"ds_read_b64_tr_b16 v[{66+8*ks}:{67+8*ks}], v59 offset:{4096*ks+512}")
        e(f"s_mul_i32 s44, s{S_M}, {3072*8}\ns_lshl_b32 s45, s{S_M+1}, 9\ns_add_u32 s44, s44, s45")
        e(f"s_lshl_b32 s45, s{S_WV}, 7\ns_add_u32 s44, s44, s45\ns_add_u32 s44, s44, {WS_MODP}")
        e("v_lshlrev_b32 v59, 3, v1")
        for ks in range(4):
            e(f"s_waitcnt lgkmcnt({9-3*ks})")
            e(f"v_mfma_f32_16x16x32_bf16 v[92:95], v[{60+8*ks}:{63+8*ks}], v[{64+8*ks}:{67+8*ks}], {'v[92:95]' if ks else '0'}")
        e("s_barrier")
        e(f"v_mov_b32 v93, s{S_TAG}")
        e("s_mov_b64 exec, 0xffff")
        self.p.nc(f"buffer_store_dwordx2 v[92:93], v59, s[{S_WS}:{S_WS+3}], s44 offen sc1")
        e("s_mov_b64 exec, -1")
        self.label(skip)

    def touch_w(self):
        e = self.e
        e(f"s_lshr_b32 s{S_T0}, s{S_WV}, 1\ns_lshl_b32 s{S_T1}, s2, 1\ns_add_u32 s{S_T0}, s{S_T0}, s{S_T1}\ns_mul_i32 s{S_T0}, s{S_T0}, {28*128}")
        e(f"v_min_u32 v3, 27, v1\nv_lshlrev_b32 v3, 7, v3\nv_add_u32 v3, s{S_T0}, v3")
        e("global_load_dword v198, v3, s[8:9]")
    def touch_wd(self, mode):
        e = self.e
        if mode == 1:
            e(f"s_sub_u32 s{S_T0}, s2, 192\ns_lshl_b32 s{S_T0}, s{S_T0}, 2\ns_add_u32 s{S_T0}, s{S_T0}, s{S_WV}\ns_mul_i32 s{S_T0}, s{S_T0}, {56*128}")
            e(f"s_cmp_lt_u32 s2, 192\ns_cselect_b32 s{S_T0}, 0x7f000000, s{S_T0}")
            e("v_min_u32 v197, 55, v1\nv_lshlrev_b32 v197, 7, v197")
        else:
            e(f"s_lshl_b32 s{S_T0}, s2, 2\ns_add_u32 s{S_T0}, s{S_T0}, s{S_WV}\ns_mul_i32 s{S_T0}, s{S_T0}, {14*128}")
            e("v_min_u32 v197, 13, v1\nv_lshlrev_b32 v197, 7, v197")
        e(f"buffer_load_dword v198, v197, s[{S_WD}:{S_WD+3}], s{S_T0} offen")

    def touch_wdx(self):
        e = self.e
        e(f"s_lshl_b32 s47, s{S_IDX}, 2\ns_add_u32 s47, s47, s{S_WV}\ns_mul_i32 s47, s47, {112*128}")
        e("v_min_u32 v138, 55, v1\nv_lshlrev_b32 v138, 7, v138")
        e(f"buffer_load_dword v139, v138, s[{S_WD}:{S_WD+3}], s47 offen")
        e(f"s_add_u32 s47, s47, {56*128}")
        e(f"buffer_load_dword v139, v138, s[{S_WD}:{S_WD+3}], s47 offen")

    def w_setup(self):
        e = self.e
        e("v_lshrrev_b32 v241, 4, v1\nv_mul_u32_u24 v240, 3584, v241")
        e(f"s_and_b32 s13, s{S_WV}, 1\nv_lshl_add_u32 v241, v241, 1, s13")
        e("v_bfe_u32 v242, v1, 1, 3\nv_xor_b32 v241, v241, v242\nv_lshl_add_u32 v240, v241, 5, v240")
        e("v_and_b32 v241, 1, v1\nv_lshl_add_u32 v240, v241, 4, v240")
        e(f"s_lshr_b32 s14, s{S_WV}, 1\ns_mul_i32 s15, s14, {8*3584}")
        e(f"s_and_b32 s101, s{S_G2}, 0xffffff80\ns_lshl_b32 s101, s101, 1\ns_add_u32 s15, s15, s101")
        e(f"v_add_u32 v240, s15, v240\nv_add_u32 v247, {4*3584 - 1024}, v240")
        e("s_lshl_b32 s12, s13, 12\ns_lshl_b32 s14, s14, 11\ns_add_u32 s12, s12, s14")
        e("v_bfe_u32 v241, v1, 4, 1\nv_bfe_u32 v242, v1, 2, 2")
        e("v_lshl_add_u32 v243, v242, 1, v241")
        e(f"s_lshl_b32 s13, s{S_WV}, 1\nv_xor_b32 v243, s13, v243\nv_lshlrev_b32 v243, 5, v243")
        e("v_lshl_add_u32 v243, v241, 12, v243\nv_lshl_add_u32 v243, v242, 8, v243")
        e("v_lshrrev_b32 v241, 5, v1\nv_lshl_add_u32 v243, v241, 11, v243")
        e("v_and_b32 v241, 1, v1\nv_lshl_add_u32 v243, v241, 4, v243")
        e("v_bfe_u32 v241, v1, 1, 1\nv_lshl_add_u32 v241, v241, 3, v243")
        e("v_xor_b32 v242, 32, v241")
        e("v_add_u32 v243, 0x10000, v241\nv_add_u32 v244, 0x10000, v242\nv_add_u32 v245, 0x20000, v241\nv_add_u32 v246, 0x20000, v242")
        self.wt = {}
    def w_rot(self):
        e = self.e
        e(f"s_and_b32 s26, s{S_G1}, {7 if self.cfg['rot'] else 0}\ns_mul_i32 s101, s{S_G3}, {16*16*3584}")
        for j in range(8): e(f"s_add_u32 s{18+j}, s26, {j}\ns_and_b32 s{18+j}, s{18+j}, 7\ns_mul_i32 s{18+j}, s{18+j}, {16*3584}\ns_add_u32 s{18+j}, s{18+j}, s101")
    def w_issue(self, ks):
        e = self.e
        if self.cfg.get('noch'):
            self.wt[ks] = None; e("s_nop 0\ns_nop 0\ns_nop 0\ns_nop 0"); return
        e(f"s_add_u32 m0, s12, {wslot(ks)}\ns_add_u32 s14, s{18 + (ks & 7)}, {(ks >> 3)*8*16*3584}")
        self.tok("buffer_load_dwordx4 v240, s[8:11], s14 offen lds")
        self.wt[ks] = self.tok("buffer_load_dwordx4 v247, s[8:11], s14 offen offset:1024 lds")
    def w_read(self, ks):
        b = wslot(ks); t_ = None
        for t in range(2):
            for i in range(2):
                o = b + 1024*i
                t_ = self.tok(f"ds_read_b64_tr_b16 {ar((t*32+ks)*4+2*i,2)}, v{241 + 2*(o >> 16) + t} offset:{o & 0xffff}")
        return t_
    def w_issue_l(self, r):
        for ks in r: self.w_issue(ks)
    def w_chunks(self, r):
        out = []
        for ks in r:
            l = self.cap(lambda: self.w_issue(ks)); out += [l[:3], l[3:]]
        return out
    def w_read_l(self, r):
        t = None
        for ks in r: t = self.w_read(ks)
        return t

    U1 = 176; U2 = 208
    def modf_chk_only(self):
        e = self.e
        def chk(ex):
            for i in range(8):
                e(f"v_min3_u32 v232, v{201+4*i}, v{203+4*i}, {'v232' if i else 'v201'}\nv_max3_u32 v233, v{201+4*i}, v{203+4*i}, {'v233' if i else 'v201'}")
            e(f"v_xor_b32 v232, s{S_TAG}, v232\nv_xor_b32 v233, s{S_TAG}, v233\nv_or_b32 v232, v232, v233\nv_cmp_ne_u32 vcc, 0, v232")
        self.guard("mf", chk, lambda: (self.modf_issue(), e("s_waitcnt vmcnt(0)")))
    def gate_issue(self, base=WS_FL1):
        self.e(f"v_lshlrev_b32 v235, 6, v0\ns_mov_b32 s101, {base}")
        return self.tok(f"buffer_load_dword v234, v235, s[{S_WS}:{S_WS+3}], s101 offen sc1")
    def gate_check(self, tok):
        self.wait(tok)
        self.guard("gt", lambda ex: self.e(f"v_cmp_ne_u32 vcc, s{S_TAG}, v234"), lambda: (self.gate_issue(), self.e("s_waitcnt vmcnt(0)")))
    def u_addr(self, v, t):
        e = self.e
        e(f"v_bfe_u32 v{v}, v1, 4, 1\nv_mul_u32_u24 v{v}, {1792*16}, v{v}")
        e(f"v_bfe_u32 v{t}, v1, 2, 1\nv_lshl_add_u32 v{v}, v{t}, 7, v{v}")
        e(f"v_bfe_u32 v{t}, v1, 3, 1\nv_lshl_add_u32 v{v}, v{t}, 6, v{v}")
        e(f"v_and_b32 v{t}, 3, v1\nv_lshl_add_u32 v{v}, v{t}, 4, v{v}")
    def u_job(self):
        e = self.e
        self.modf_chk_only()
        for v in range(2):
            for c_ in (0, 2):
                b_ = 200 + 16*v + c_
                e(f"v_add_f32 v{b_}, v{b_}, v{b_+4}\nv_add_f32 v{b_+8}, v{b_+8}, v{b_+12}\nv_add_f32 v{b_}, v{b_}, v{b_+8}")
        e("v_cvt_pk_bf16_f32 v7, v200, v202\nv_cvt_pk_bf16_f32 v5, v216, v218")
        e("v_lshlrev_b32 v8, 16, v5\nv_and_b32 v9, 0xffff0000, v5\nv_add_f32 v8, 1.0, v8\nv_add_f32 v9, 1.0, v9\nv_cvt_pk_bf16_f32 v5, v8, v9")
        e(f"v_lshlrev_b32 v3, 2, v0\nv_add_u32 v3, {L_SS}, v3")
        e("ds_write2st64_b32 v3, v5, v7 offset0:0 offset1:4")
        e("v_and_b32 v2, 1, v1\nv_lshlrev_b32 v2, 10, v2\nv_lshrrev_b32 v4, 5, v1\nv_lshl_add_u32 v2, v4, 4, v2")
        e(f"s_lshl_b32 s101, s{S_G3}, 9\ns_add_u32 s101, s101, {L_SS}\nv_add_u32 v2, s101, v2")
        e("s_waitcnt vmcnt(4) lgkmcnt(0)\ns_barrier")
        for ks in range(self.cfg["nrec"], 16): self.w_read(ks)
        for ks in range(16): e(f"ds_read_b128 {vr(100+4*ks,4)}, v2 offset:{32*ks}")
        self.u_addr(40, 41)
        e(f"s_mul_i32 s101, s{S_G3}, {2*1792*16}\ns_lshl_b32 s44, s{S_G2}, 4\ns_add_u32 s101, s101, s44\ns_add_u32 s101, s101, {WS_U}")
        e("s_cmp_eq_u32 s10, 0\ns_cselect_b32 s101, 0x7f000000, s101")
        e("s_waitcnt lgkmcnt(0)")
        for ks in range(16):
            for t in range(2):
                acc = vr(4 + 16*t, 16)
                e(f"v_mfma_f32_32x32x16_bf16 {acc}, {vr(100+4*ks,4)}, {ar((t*32+ks)*4,4)}, {acc if ks else '0'}")
        for t in range(2):
            e(f"v_mov_b32 v{44+4*t}, v{4+16*t}\nv_mov_b32 v{45+4*t}, s{S_TAG}\nv_mov_b32 v{46+4*t}, v{5+16*t}\nv_mov_b32 v{47+4*t}, s{S_TAG}")
        e("s_mov_b32 exec_hi, 0")
        for t in range(2): e(f"buffer_store_dwordx4 {vr(44+4*t,4)}, v40, s[{S_WS}:{S_WS+3}], s101 offen offset:{256*t} sc1")
        e("s_mov_b32 exec_hi, -1")

    def shadow1(self):
        e = self.e; c = self.cfg; cap = self.cap
        nr = c["nrec"]; n1 = 13 + nr
        assert nr == 8
        self.w_read_l(range(nr, 13))
        e(f"s_lshl_b32 s{S_T1}, s{S_WV}, 13")
        e(f"s_lshl_b32 s33, s{S_G1}, 10\ns_add_u32 s33, s33, {WS_ST2}")
        e("v_lshlrev_b32 v147, 4, v1")
        e(f"v_add_u32 v146, s{S_T1}, v147\nv_add_u32 v143, 0x10000, v146")
        e(f"s_lshl_b32 s{S_T0}, s{S_G1}, 17\ns_add_u32 s{S_T0}, s{S_T0}, s{S_T1}\ns_add_u32 s{S_T0}, s{S_T0}, {hx(WS_X1S)}")
        self.wait(self.wt[n1-1])
        e("s_waitcnt lgkmcnt(0)\ns_barrier")
        self.stamp(8)
        r = self.w_read_l(range(13, n1))
        self.w_issue_l(range(n1, 26))
        tg = self.gtok or self.gate_issue()
        e("v_lshrrev_b32 v144, 5, v1\nv_lshlrev_b32 v144, 9, v144")
        e("v_bfe_u32 v145, v1, 2, 2\nv_lshl_add_u32 v144, v145, 6, v144")
        e("v_bfe_u32 v145, v1, 4, 1\nv_lshl_add_u32 v144, v145, 5, v144")
        e("v_and_b32 v145, 3, v1\nv_lshl_add_u32 v144, v145, 3, v144")
        e("v_add_u32 v144, 0x10000, v144")
        for j in range(8): e(f"s_add_u32 s101, s26, {j}\ns_and_b32 s101, s101, 7\nv_lshl_add_u32 v{BA[j]}, s101, 10, v144")
        e("v_and_b32 v145, 31, v1\nv_lshlrev_b32 v145, 3, v145")
        for r_ in range(4): e(f"v_mov_b32 v{self.BX+4*r_+2}, 0\nv_mov_b32 v{self.BX+4*r_+3}, 0")
        e(f"v_mov_b32 v{self.AX+2}, 0\nv_mov_b32 v{self.AX+3}, 0\nv_mov_b32 v{self.AX+6}, 0\nv_mov_b32 v{self.AX+7}, 0\nv_mov_b32 v252, 0")
        self.u_addr(138, 139)
        e(f"s_lshl_b32 s35, s{S_G2}, 4\ns_add_u32 s35, s35, {WS_U}\ns_add_u32 s34, s35, {2*1792*16}")
        self.wd_setup_s()
        self.wait(r)
        e("s_barrier")
        self.w_issue_l(range(26, 26 + c["wx"]))
        self.gate_check(tg)
        self.stamp(27)
        self.xt = {}
        self.xt[0] = self.x1s_issue(0)
        self.xt[1] = self.x1s_issue(1)
        self.w_issue_l(range(26 + c["wx"], 32))
        self.g2_setup()
        self.stamp(9)
        self.x1s_guard(0, 148, self.xt[0])
        e("s_waitcnt lgkmcnt(0)\ns_barrier")
        self.stamp(12)

    def stats2_job(self):
        e = self.e
        e(f"s_lshl_b32 s{S_T2}, s{S_XCD}, 2\ns_add_u32 s{S_T2}, s{S_T2}, s{S_IDX}\ns_sub_u32 s{S_T2}, s{S_T2}, 28")
        e(f"s_lshl_b32 s{S_T1}, s{S_WV}, 13")
        e(f"s_lshl_b32 s{S_T0}, s{S_T2}, 16\ns_add_u32 s{S_T0}, s{S_T0}, s{S_T1}\ns_add_u32 s{S_T0}, s{S_T0}, {hx(WS_X1)}")
        e("v_lshlrev_b32 v147, 4, v1\nv_lshlrev_b32 v146, 7, v1")
        e("v_lshrrev_b32 v144, 5, v1\nv_lshlrev_b32 v144, 9, v144")
        e("v_bfe_u32 v145, v1, 2, 2\nv_lshl_add_u32 v144, v145, 6, v144")
        e("v_bfe_u32 v145, v1, 4, 1\nv_lshl_add_u32 v144, v145, 5, v144")
        e("v_and_b32 v145, 3, v1\nv_lshl_add_u32 v144, v145, 3, v144")
        e(f"s_lshl_b32 s{S_T1}, s{S_WV}, 14\nv_add_u32 v144, s{S_T1}, v144")
        e("v_mov_b32 v5, 0x3f803f80")
        e("s_waitcnt vmcnt(0)\ns_barrier")
        self.gate_issue(); e("s_waitcnt vmcnt(0)")
        self.guard("g2", lambda ex: e(f"v_cmp_ne_u32 vcc, s{S_TAG}, v234"), lambda: (self.gate_issue(), e("s_waitcnt vmcnt(0)")))
        e(f"s_mov_b32 s{S_SPIN}, {self.cfg['spin']}")
        lp = self.lab("pj"); go = self.lab("pg"); ok = self.lab("pk")
        self.label(lp)
        e(f"s_add_u32 s101, s{S_T0}, 32768")
        e(f"buffer_load_dword v6, v146, s[{S_WS}:{S_WS+3}], s{S_T0} offen sc1")
        e(f"buffer_load_dword v7, v146, s[{S_WS}:{S_WS+3}], s101 offen offset:64 sc1")
        e("s_waitcnt vmcnt(0)\nv_max_u32 v6, v6, v7\nv_cmp_eq_u32 vcc, -1, v6\ns_nop 1")
        e(f"s_cbranch_vccz {go}")
        self.spin_check(lp)
        e(f"s_mov_b32 s{S_SPIN}, 1")
        self.label(go)
        for b in range(2):
            for j in range(8):
                e(f"s_add_u32 m0, s{S_T1}, {b*8192 + j*1024}\ns_add_u32 s101, s{S_T0}, {b*32768 + j*1024}")
                e(f"buffer_load_dwordx4 v147, s[{S_WS}:{S_WS+3}], s101 offen sc1 lds")
        for b in range(2):
            e(f"s_waitcnt vmcnt({8*(1-b)})")
            for j in range(16): e(f"ds_read_b64_tr_b16 {vr(40+2*j,2)}, v144 offset:{b*8192 + (j>>1)*1024 + (j&1)*256}")
            for j in range(32):
                if j % 8 == 0: e(f"s_waitcnt lgkmcnt({12 - j//2})")
                e(f"v_dot2_f32_bf16 v{8+2*b}, v{40+j}, v5, {'v%d' % (8+2*b) if j else '0'}")
                e(f"v_dot2_f32_bf16 v{9+2*b}, v{40+j}, v{40+j}, {'v%d' % (9+2*b) if j else '0'}")
        e("s_nop 2\nv_add_f32 v6, v9, v11\nv_cmp_u_f32 vcc, v6, v6\ns_nop 1")
        e(f"s_cbranch_vccz {ok}")
        self.spin_check(lp)
        self.label(ok)
        e("v_permlane32_swap_b32 v8, v10\nv_permlane32_swap_b32 v9, v11")
        e("v_add_f32 v8, v8, v10\nv_add_f32 v9, v9, v11")
        e(f"s_lshl_b32 s101, s{S_WV}, 9\ns_add_u32 s101, s101, {L_SS}")
        e("v_lshlrev_b32 v12, 3, v1\nv_add_u32 v13, s101, v12")
        e("ds_write_b64 v13, v[8:9]")
        e(f"v_add_u32 v13, {L_SS}, v12")
        e("s_waitcnt lgkmcnt(0)\ns_barrier")
        sk = self.lab("s2w")
        e(f"s_cmp_lg_u32 s{S_WV}, 0\ns_cbranch_scc1 {sk}")
        for w in range(4): e(f"ds_read_b64 v[{14+2*w}:{15+2*w}], v13 offset:{512*w}")
        e("s_waitcnt lgkmcnt(0)")
        e("v_pk_add_f32 v[14:15], v[14:15], v[16:17]\nv_pk_add_f32 v[18:19], v[18:19], v[20:21]\nv_pk_add_f32 v[14:15], v[14:15], v[18:19]")
        self.stat_finish(14, 15, 16, 17)
        e(f"v_mov_b32 v15, s{S_TAG}")
        e(f"s_lshl_b32 s101, s{S_T2}, 9\ns_add_u32 s101, s101, {WS_ST2}")
        e(f"buffer_store_dwordx2 v[14:15], v12, s[{S_WS}:{S_WS+3}], s101 offen sc1")
        self.label(sk)
        e("s_barrier")

    def wd_setup_s(self):
        e = self.e
        e(f"s_mul_i32 s{S_LDT}, s{S_WV}, {448*1024}")
        e(f"s_and_b32 s101, s{S_IDX}, 7\ns_lshl_b32 s101, s101, 7\ns_add_u32 s{S_LDT}, s{S_LDT}, s101")
        e(f"s_lshr_b32 s36, s{S_IDX}, 3\ns_lshl_b32 s36, s36, 1\ns_add_u32 s36, s36, s{S_IDX}\ns_and_b32 s36, s36, {7 if self.cfg['rot2'] else 0}")
        e("s_cmp_eq_u32 s36, 7\ns_cselect_b32 s36, 0, s36\ns_lshl_b32 s36, s36, 10")
        for j in range(1, 7): e(f"s_add_u32 s{36+j}, s{35+j}, 1024\ns_cmp_eq_u32 s{36+j}, 7168\ns_cselect_b32 s{36+j}, 0, s{36+j}")
        for b_ in range(1, 4): e(f"s_add_u32 s{27+b_}, s{S_LDT}, {b_*7*16384}")
        e(f"s_mul_i32 s{S_M+8}, s{S_WV}, 6144\ns_add_u32 s{S_M+8}, s{S_M+8}, {L_SP}")
        e(f"s_lshl_b32 s{S_M+9}, s{S_WV}, 13")
    def wd_setup_v(self):
        e = self.e
        e("v_lshrrev_b32 v240, 3, v1")
        e("v_bfe_u32 v241, v1, 4, 1\nv_lshlrev_b32 v241, 2, v241")
        e("v_and_b32 v242, 7, v1\nv_xor_b32 v241, v241, v242")
        e("v_lshlrev_b32 v240, 10, v240\nv_lshl_add_u32 v240, v241, 4, v240")
        e(f"v_add_u32 v241, {8192 - 1024}, v240")
        e("v_lshrrev_b32 v242, 5, v1\nv_lshlrev_b32 v242, 10, v242")
        e("v_bfe_u32 v243, v1, 2, 2\nv_lshl_add_u32 v242, v243, 7, v242")
        e("v_bfe_u32 v243, v1, 3, 1\nv_lshl_add_u32 v242, v243, 6, v242")
        e("v_and_b32 v243, 1, v1\nv_lshl_add_u32 v242, v243, 5, v242")
        e("v_bfe_u32 v243, v1, 1, 1\nv_lshl_add_u32 v242, v243, 3, v242")
        e("v_bfe_u32 v243, v1, 4, 1\nv_lshl_add_u32 v242, v243, 4, v242")
        e(f"v_add_u32 v244, s{S_M+9}, v242\nv_xor_b32 v245, 64, v244\nv_add_u32 v246, 0x10000, v244\nv_add_u32 v247, 0x10000, v245")
        e(f"v_add_u32 v242, s{S_M+8}, v242\nv_xor_b32 v243, 64, v242")
    def wd_setup(self):
        self.wd_setup_s(); self.wd_setup_v()
    def wd_loc(self, ks):
        sl = ks % 15
        if sl < 3: return 0, 2048*sl
        q, r = divmod(sl - 3, 4)
        return 1, (3 - q)*32768 + 2048*r
    def wd_issue(self, ks):
        e = self.e
        r, o = self.wd_loc(ks)
        e(f"s_add_u32 m0, s{S_M+8+r}, {o}\ns_lshl4_add_u32 s15, s{36 + ks % 7}, s{S_LDT if ks < 7 else 27 + ks // 7}")
        self.tok(f"buffer_load_dwordx4 v240, s[{S_WD}:{S_WD+3}], s15 offen lds")
        self.wdt[ks] = self.tok(f"buffer_load_dwordx4 v241, s[{S_WD}:{S_WD+3}], s15 offen offset:1024 lds")
    def wd_chunks(self, r):
        out = []
        for ks in r:
            l = self.cap(lambda: self.wd_issue(ks)); out += [l[:3], l[3:]]
        return out
    def wd_read(self, ks):
        r, o = self.wd_loc(ks); t_ = None
        for t in range(2):
            for i in range(2):
                oo = o + 512*i
                reg = 242 if r == 0 else (244 if oo < 65536 else 246)
                t_ = self.tok(f"ds_read_b64_tr_b16 {ar((t*32+ks)*4+2*i,2)}, v{reg+t} offset:{oo & 0xffff}")
        return t_

    def gemm1f(self):
        e = self.e; c = self.cfg; cap = self.cap
        e(f"s_mov_b32 s{S_T2}, s{self.S_HB}\ns_mov_b32 s{S_T3}, {fl(-GC)}")
        ACC = [4, 36, 68]; BR = 100; R = 6
        seq = [(0, k) for k in range(16)] + [(1, k) for k in range(16)] + [(0, k) for k in range(16, 32)] + [(1, k) for k in range(16, 32)] + [(g, k) for g in (2, 3) for k in range(32)]
        def bread(n):
            g, ks = seq[n]; b = BR + 4*(n % R); base = self.XT(g); ad = BA[ks & 7]
            o = base % 65536 + (ks >> 3)*8192
            self.tok(f"ds_read_b64_tr_b16 {vr(b,2)}, v{ad} offset:{o}")
            t_ = self.tok(f"ds_read_b64_tr_b16 {vr(b+2,2)}, v{ad} offset:{o+256}")
            if g == 1 and ks >= 24: e(f"v_add_u32 v{ad}, 0xffff0000, v{ad}")
            return t_
        PF = R - 1
        tk = {}
        for n in range(PF): tk[n] = bread(n)
        ST = [128, 130, 132, 134]
        def st_issue():
            t = None
            for g in range(4):
                t = self.tok(f"buffer_load_dwordx2 {vr(ST[g],2)}, v145, s[{S_WS}:{S_WS+3}], s33 offen offset:{256*g} sc1")
            return t
        def st_chk(ex):
            e(f"v_min3_u32 v136, v{ST[0]+1}, v{ST[1]+1}, v{ST[2]+1}\nv_max3_u32 v137, v{ST[0]+1}, v{ST[1]+1}, v{ST[2]+1}")
            e(f"v_min_u32 v136, v136, v{ST[3]+1}\nv_max_u32 v137, v137, v{ST[3]+1}")
            e(f"v_xor_b32 v136, s{S_TAG}, v136\nv_xor_b32 v137, s{S_TAG}, v137\nv_or_b32 v136, v136, v137")
            e("v_cmp_ne_u32 vcc, 0, v136")
        def st_guard(tok):
            self.wait(tok)
            self.guard("st", st_chk, lambda: (st_issue(), e("s_waitcnt vmcnt(0)")))
            e("s_mov_b32 s44, 0x03020302\ns_mov_b32 s47, 0x01000100")
            for g in range(4):
                b = ST[g]; x = self.BX + 4*g
                e(f"v_lshlrev_b32 v{b+1}, 16, v{b}\nv_rcp_f32 v136, v{b+1}")
                e(f"v_perm_b32 v{x}, v{b}, v{b}, s44\nv_perm_b32 v{x+1}, v{b}, v{b}, s47")
                e(f"v_mul_f32 v{b}, {fl(GAM)}, v136\nv_xor_b32 v{x}, 0x80008000, v{x}\nv_mul_f32 v{b+1}, {fl(GAM)}, v{b+1}")
        UR = 200
        def u_issue():
            t_ = None
            for t in range(2):
                for h in range(2):
                    t_ = self.tok(f"buffer_load_dwordx4 {vr(UR+8*t+4*h,4)}, v138, s[{S_WS}:{S_WS+3}], s{35-h} offen offset:{256*t} sc1")
            return t_
        def u_chk(ex):
            for i in range(4): e(f"v_min3_u32 v136, v{UR+4*i+1}, v{UR+4*i+3}, {'v136' if i else 'v%d' % (UR+1)}\nv_max3_u32 v137, v{UR+4*i+1}, v{UR+4*i+3}, {'v137' if i else 'v%d' % (UR+1)}")
            e(f"v_xor_b32 v136, s{S_TAG}, v136\nv_xor_b32 v137, s{S_TAG}, v137\nv_or_b32 v136, v136, v137\nv_cmp_ne_u32 vcc, 0, v136")
        def u_guard(tok):
            self.wait(tok)
            self.guard("mf", u_chk, lambda: (u_issue(), e("s_waitcnt vmcnt(0)")))
            e("v_cmp_gt_u32 vcc, 32, v1")
            for t in range(2):
                for k in range(2):
                    u = UR + 8*t + 2*k; d = self.AX + 4*t + k
                    e(f"v_add_f32 v{u}, v{u}, v{u+4}\nv_cvt_pk_bf16_f32 v136, v{u}, v{u}\nv_and_b32 v136, 0xffff0000, v136\nv_sub_f32 v136, v{u}, v136")
                    e(f"v_cvt_pk_bf16_f32 v136, v{u}, v136\nv_cndmask_b32 v{d}, 0, v136, vcc")
        STN = [8, 16, 24, 32, 40, 48, 56, 64, 80, 96, 104, 112, 120]
        def steps(n0, n1):
            for n in range(n0, n1):
                g, ks = seq[n]
                if n in STN: self.stamp(30 + STN.index(n))
                self.wait(tk[n])
                for t in range(2):
                    acc = vr(ACC[g % 3] + 16*t, 16)
                    e(f"v_mfma_f32_32x32x16_bf16 {acc}, {ar((t*32+ks)*4,4)}, {vr(BR+4*(n%R),4)}, {acc if ks else '0'}")
                    if t == 0 and n + PF < 128: tk[n+PF] = bread(n+PF)
                    if g == 3 and t == 1 and ks in extra: extra[ks]()
                if ks == 31 and g: self.g1_fold(g, ACC[g % 3])
        extra = {}
        def seg(n0, n1, fill, flush=True, pace=None):
            m = cap(lambda: steps(n0, n1))
            m, left = merge(m, fill, 24, pace=pace or c["gpace"])
            self.p.put(m)
            if flush:
                if left: sys.stderr.write(f"flush {len(left)} at {n1}\n")
                self.p.put(left); return []
            return left
        xt = self.xt; hold = {}; self.wdt = {}; self.htok = {}
        xi = lambda g: cap(lambda: xt.__setitem__(g, self.x1s_issue(g)))
        bar = lambda: cap(lambda: e("s_barrier"))
        wdc = lambda r: sum(self.wd_chunks(r), [])
        seg(0, c["b1"] - 6, [])
        seg(c["b1"] - 6, c["b1"], cap(lambda: self.x1s_guard(1, 148, xt[1])))
        e("s_barrier")
        seg(c["b1"], c["b2"], cap(lambda: self.wait(self.w_read_l(range(21, 26)), self.wt[31])))
        e("s_barrier")
        seg(c["b2"], c["b3"], cap(lambda: hold.__setitem__("r", self.w_read_l(range(26, 32)))) + xi(2)[:6] + cap(lambda: self.wait(hold["r"])))
        e("s_barrier")
        xs = xi(2)[6:] + xi(3); wv_ = cap(self.wd_setup_v); xs2 = []
        for ins in xs:
            xs2.append(ins)
            if ins.text.startswith("buffer_"): xs2 += wv_[:2]; wv_ = wv_[2:]
        seg(c["b3"], c["sti"], xs2 + wv_)
        f = cap(lambda: (hold.__setitem__("u", u_issue()), hold.__setitem__("t", st_issue())))
        seg(c["sti"], c["stk"], f + wdc(range(3)), pace=1)
        self.stamp(13)
        f = cap(lambda: (u_guard(hold["u"]), st_guard(hold["t"])))
        pend = seg(c["stk"], 48, f + cap(self.hfill), flush=False)
        f = cap(lambda: (self.g1_fold(0, ACC[0]), self.x1s_guard(2, 148, xt[2]), self.x1s_guard(3, 148, xt[3])))
        seg(48, c["b4"], pend + f)
        e("s_barrier")
        pend = seg(c["b4"], 64, wdc(range(3, 7)) + self.g1_epilogue(0, ACC[0], ST[0]), flush=False)
        ep1 = self.g1_epilogue(1, ACC[1], ST[1]) + cap(lambda: self.hflag(0, 252, 253))
        pend = seg(64, 66, pend + ep1, flush=False)
        e("s_barrier")
        assert not any("lds" in i.text for i in pend if i.wait is None)
        n_ep1 = len(ep1)
        pend = seg(66, 96, wdc(range(7, 11)) + pend, flush=False)
        if len(pend) > n_ep1:
            self.p.put(pend[:len(pend) - n_ep1]); pend = pend[len(pend) - n_ep1:]
        ep2 = self.g1_epilogue(2, ACC[2], ST[2])
        pend = seg(96, 98, pend + ep2, flush=False); ep2 = []
        e("s_barrier")
        assert not any("lds" in i.text for i in pend if i.wait is None)
        self.rd = {}
        plan = {}
        for j in range(4): plan.setdefault(2 + j, []).append(("i", 11 + j))
        nrc = c["nrc"]
        for j in range(nrc):
            plan.setdefault(c["rc0"] + j*c["rcs"], []).append(("r", j))
            plan.setdefault(c["rc0"] + j*c["rcs"] + 2, []).append(("i", 15 + j))
        def mk(items):
            def f():
                for kind, k_ in items:
                    if kind == "f": hold["f0"] = self.fl_issue(0, 140, 144)
                    elif kind == "g":
                        self.wait(hold["f0"])
                        self.guard("f0", lambda ex: e(f"v_cmp_ne_u32 vcc, s{S_TAG}, v144"), lambda: (self.fl_issue(0, 140, 144), e("s_waitcnt vmcnt(0)")))
                    elif kind == "p": self.hflag(1, 252, 253)
                    elif kind == "r":
                        self.wait(self.wdt[k_]); self.rd[k_] = self.wd_read(k_)
                    else:
                        if k_ >= 15: self.wait(self.rd[k_ - 15])
                        self.wd_issue(k_)
            return f
        plan.setdefault(c["f0k"], []).append(("f", 0))
        plan.setdefault(c["p1k"], []).append(("p", 1))
        self.ht = {}
        for ks_, items in plan.items():
            assert ks_ < 32 and all(k_ < ks_ for kind, k_ in items if kind == "r")
            extra[ks_] = mk(items)
        pend = seg(98, 128, pend + ep2, flush=False)
        sys.stderr.write(f"tail leftover {len(pend)}\n")
        self.stamp(14)
        self.p.put(pend)
        e3 = self.g1_epilogue(3, ACC[0], ST[3])
        k_ = c["g0at"]
        self.p.put(e3[:k_])
        slow = self.lab("ts"); jn = self.lab("tj"); lp = self.lab("tl"); ok = self.lab("to")
        self.wait(hold["f0"])
        e(f"v_cmp_ne_u32 vcc, s{S_TAG}, v144\ns_cbranch_vccnz {slow}")
        hch = [cap(lambda: self.hl(0, ks, 147)) for ks in range(c["nh"])]
        self.p.put(weave(e3[k_:], hch, c["hw"]))
        self.label(jn)
        def rout():
            self.label(slow)
            if c.get("stamps"): e("v_writelane_b32 v255, 1, 55")
            self.p.put([Ins(i.text) for i in e3[k_:]])
            e(f"s_mov_b32 s{S_SPIN}, {c['spin']}")
            self.label(lp)
            self.fl_issue(0, 140, 144)
            e(f"s_waitcnt vmcnt(0)\nv_cmp_ne_u32 vcc, s{S_TAG}, v144\ns_nop 1\ns_cbranch_vccz {ok}")
            self.spin_check(lp)
            self.label(ok)
            for ch in hch: self.p.put([Ins(i.text) for i in ch])
            e(f"s_waitcnt vmcnt(0)\ns_branch {jn}")
        self.ool += cap(rout)
        self.stamp(15)

    HB = 68
    def HR(self, ks): return 68 + 4*ks if ks < 14 else (200 + 4*(ks-14) if ks < 24 else 124 + 4*(ks-24))
    def g2_setup(self):
        e = self.e
        self.g2_map()
        e(f"s_mul_i32 s{S_M+2}, s{S_WV}, {14*64}\ns_add_u32 s{S_M+2}, s{S_M+2}, {WS_FL2}")
        e(f"s_mul_i32 s{S_M+3}, s{S_G2}, {56*64}\ns_add_u32 s{S_M+3}, s{S_M+3}, s{S_M+2}")
        e(f"s_mul_i32 s44, s{S_G1}, {56*64}\ns_add_u32 s{S_M+2}, s{S_M+2}, s44")
        e(f"s_mul_i32 s{S_M+4}, s{S_G1}, {112*1024}\ns_mul_i32 s{S_M+5}, s{S_G2}, {112*1024}")
        e(f"s_mul_i32 s{S_M+6}, s{S_WV}, {28*1024}\ns_add_u32 s{S_M+6}, s{S_M+6}, {hx(WS_H)}")
        e(f"s_add_u32 s{S_M+4}, s{S_M+4}, s{S_M+6}\ns_add_u32 s{S_M+5}, s{S_M+5}, s{S_M+6}")
        for b_ in range(4): e(f"s_add_u32 s{18+b_}, s{S_M+4}, {b_*7168}\ns_add_u32 s{22+b_}, s{S_M+5}, {b_*7168}")
        e(f"s_lshr_b32 s45, s{S_WV}, 1\ns_sub_u32 s44, s{S_G2}, s{S_G1}\ns_mul_i32 s45, s45, s44\ns_add_u32 s45, s45, s{S_G1}")
        e(f"s_and_b32 s46, s{S_WV}, 1\ns_lshl_b32 s46, s46, 5\ns_lshl_b32 s44, s{S_G3}, 6\ns_add_u32 s46, s46, s44")
        e(f"s_lshl_b32 s{S_M}, s45, 15\ns_lshl_b32 s{S_M+1}, s46, 6\ns_add_u32 s{S_M}, s{S_M}, s{S_M+1}\ns_add_u32 s{S_M}, s{S_M}, {hx(WS_X1)}")
        e(f"s_lshl_b32 s{S_M+1}, s{S_WV}, 11\ns_add_u32 s{S_M+1}, s{S_M+1}, {L_XR2}")
        e("v_min_u32 v140, 13, v1\nv_lshlrev_b32 v140, 6, v140")
    def fl_issue(self, nt, va, vd): return self.tok(f"buffer_load_dword v{vd}, v{va}, s[{S_WS}:{S_WS+3}], s{S_M+2+nt} offen sc1")
    def hl(self, nt, ks, va):
        self.e(f"s_add_u32 s47, s{36 + ks % 7}, s{18 + 4*nt + ks // 7}")
        self.ht[(nt, ks)] = self.tok(f"buffer_load_dwordx4 {vr(self.HR(ks),4)}, v{va}, s[{S_WS}:{S_WS+3}], s47 offen sc1")
    def gemm2f(self):
        e = self.e; c = self.cfg; cap = self.cap
        HB = self.HB; NH = c["nh"]; nrc = c["nrc"]; rd = self.rd; ht = self.ht
        e(f"v_mov_b32 v182, v147\nv_min_u32 v183, 27, v1\nv_lshlrev_b32 v183, 10, v183")
        e("s_barrier")
        for ks in range(nrc, 15):
            self.wait(self.wdt[ks]); rd[ks] = self.wd_read(ks)
        self.stamp(16)
        order = []
        for ks in range(28):
            if ks >= 15 + nrc: order.append(("w", ks))
            if (0, ks) not in ht: order.append(("h", ks))
        NH = min([k for kind, k in order] + [27])
        def iss(it):
            if it[0] == "h": self.hl(0, it[1], 182)
            else:
                self.wait(rd[it[1] - 15]); self.wd_issue(it[1])
        def mm(nt, ks):
            for t in range(2):
                acc = vr(4 + 32*nt + 16*t, 16)
                e(f"v_mfma_f32_32x32x16_bf16 {acc}, {ar((t*32+ks)*4,4)}, {vr(self.HR(ks),4)}, {acc if ks else '0'}")
        probe = lambda: self.tok(f"buffer_load_dword v184, v183, s[{S_WS}:{S_WS+3}], s{S_M+5} offen sc1")
        rest = list(order)
        KC = c["kc"]; f1 = None
        def rdw(ks):
            if 15 <= ks < 28 and ks not in rd:
                self.wait(self.wdt[ks]); rd[ks] = self.wd_read(ks)
        for ks in range(KC):
            for _ in range(2):
                if rest: iss(rest.pop(0))
            if ks == c["kf"]: f1 = probe()
            rdw(ks + 1)
            self.wait(ht[(0, ks)], rd[ks]); mm(0, ks)
        assert not rest and f1 is not None
        slow = self.lab("g2slow"); jn = self.lab("g2j")
        self.wait(f1)
        e(f"v_cmp_eq_u32 vcc, -1, v184\ns_cbranch_vccnz {slow}")
        pendw = [ks for ks in range(15, 28) if ks not in rd]
        nx = 0
        for ks in range(KC, 28):
            for _ in range(c["nb"]):
                if nx < ks: self.hl(1, nx, 182); nx += 1
            rdw(ks + 1)
            self.wait(ht[(0, ks)], rd[ks]); mm(0, ks)
        while nx < 28: self.hl(1, nx, 182); nx += 1
        self.label(jn)
        keep = dict(ht)
        def rout():
            lp = self.lab("g2l"); ok = self.lab("g2ok")
            self.label(slow)
            e("s_waitcnt vmcnt(0)")
            for ks in pendw: self.wd_read(ks)
            probe()
            e("s_waitcnt lgkmcnt(0)")
            for ks in range(KC, 28): mm(0, ks)
            e(f"s_mov_b32 s{S_SPIN}, {self.cfg['spin']}")
            self.label(lp)
            e(f"s_waitcnt vmcnt(0)\nv_cmp_eq_u32 vcc, -1, v184\ns_nop 1\ns_cbranch_vccz {ok}")
            probe()
            self.spin_check(lp)
            e("s_waitcnt vmcnt(0)")
            self.label(ok)
            if c.get("stamps"): e("v_writelane_b32 v255, 1, 51")
            for ks in range(28): self.hl(1, ks, 182)
            e(f"s_branch {jn}")
        self.ool += cap(rout)
        ht.update(keep)
        self.stamp(19)
        def extras():
            e(f"s_mov_b32 m0, s{S_M+1}\ns_nop 0")
            self.tok(f"buffer_load_dwordx4 v182, s[{S_WS}:{S_WS+3}], s{S_M} offen sc1 lds")
            self.xr = self.tok(f"buffer_load_dwordx4 v182, s[{S_WS}:{S_WS+3}], s{S_M} offen offset:1024 sc1 lds")
            e("v_lshrrev_b32 v185, 5, v1\nv_lshlrev_b32 v185, 8, v185")
            e(f"s_lshl_b32 s{S_M+2}, s{S46}, 4\ns_add_u32 s{S_M+2}, s{S_M+2}, {WS_MODF + 8}")
            for j in range(16): self.gbt = self.tok(f"buffer_load_dword v{140+j}, v185, s[{S_WS}:{S_WS+3}], s{S_M+2} offen offset:{16*j} sc1")
        def wr(T):
            for j in range(4): e(f"ds_write_b128 v{186 + (T >> 1)}, {vr(4+16*T+4*j,4)} offset:{(T & 1)*32768 + 1024*j}")
        def addrs():
            e(f"v_add_u32 v186, s{S_M+9}, v182\nv_add_u32 v187, 0x10000, v186")
            e(f"s_lshl_b32 s{S_T0}, s{S_WV}, 15\nv_add_u32 v188, s{S_T0}, v182")
            e("v_lshrrev_b32 v248, 5, v1\nv_lshlrev_b32 v248, 10, v248")
            e("v_bfe_u32 v249, v1, 2, 2\nv_lshl_add_u32 v248, v249, 6, v248")
            e("v_bfe_u32 v249, v1, 4, 1\nv_lshl_add_u32 v248, v249, 5, v248")
            e("v_and_b32 v249, 3, v1\nv_lshl_add_u32 v248, v249, 3, v248")
            e(f"v_add_u32 v248, s{S_M+1}, v248")
            e("v_and_b32 v249, 31, v1\nv_lshlrev_b32 v249, 10, v249")
            e("v_lshrrev_b32 v250, 5, v1\nv_lshl_add_u32 v249, v250, 5, v249")
            e(f"s_lshl_b32 s{S_T0}, s{S45}, 15\ns_lshl_b32 s{S_T1}, s{S46}, 1\ns_add_u32 s{S_T0}, s{S_T0}, s{S_T1}")
        def resid():
            self.wait(self.xr)
            tk = [self.tok(f"ds_read_b64_tr_b16 {vr(172+2*j,2)}, v248 offset:{256*j}") for j in range(4)]
            self.wait(tk[3])
            def rchk(ex):
                e("v_pk_max_u16 v190, v172, v173")
                for j in range(2, 8): e(f"v_pk_max_u16 v190, v190, v{172+j}")
                e("v_lshrrev_b32 v191, 16, v190\nv_and_b32 v190, 0xffff, v190\nv_max_u32 v190, v190, v191\nv_cmp_eq_u32 vcc, 0xffff, v190")
            def rre():
                e(f"s_mov_b32 m0, s{S_M+1}\ns_nop 0")
                e(f"buffer_load_dwordx4 v182, s[{S_WS}:{S_WS+3}], s{S_M} offen sc1 lds\nbuffer_load_dwordx4 v182, s[{S_WS}:{S_WS+3}], s{S_M} offen offset:1024 sc1 lds\ns_waitcnt vmcnt(0)")
                for j in range(4): e(f"ds_read_b64_tr_b16 {vr(172+2*j,2)}, v248 offset:{256*j}")
                e("s_waitcnt lgkmcnt(0)")
            self.guard("rs", rchk, rre)
            for j in range(8): e(f"v_lshlrev_b32 v{156+2*j}, 16, v{172+j}\nv_and_b32 v{157+2*j}, 0xffff0000, v{172+j}")
        def nt1():
            for ks in range(28):
                if ks % 7 == 0:
                    def hchk(ex, k0=ks):
                        for j in range(7):
                            b_ = self.HR(k0 + j)
                            e(f"v_max3_u32 v189, v{b_}, v{b_+1}, {'v189' if j else '0'}\nv_max3_u32 v189, v{b_+2}, v{b_+3}, v189")
                        e("v_cmp_eq_u32 vcc, -1, v189")
                    def reis(k0=ks):
                        keep_ = dict(ht)
                        for j in range(7): self.hl(1, k0 + j, 182)
                        ht.update(keep_); e("s_waitcnt vmcnt(0)")
                    self.wait(ht[(1, ks + 6)])
                    self.guard("hc", hchk, reis)
                mm(1, ks)
        fill = cap(extras) + cap(addrs) + cap(lambda: (wr(0), wr(1))) + cap(resid)
        m, left = merge(cap(nt1), fill, 24, pace=1); self.p.put(m + left)
        self.stamp(17)
        wr(2); wr(3)
        e("s_waitcnt lgkmcnt(0)\ns_barrier")
        rt = {}
        for w in range(4):
            for j in range(4): rt[(w, j)] = self.tok(f"ds_read_b128 {vr(68+16*w+4*j,4)}, v188 offset:{8192*w + 1024*j}")
        self.wait(rt[(1, 3)])
        for j in range(8): e(f"v_pk_add_f32 {vr(68+2*j,2)}, {vr(68+2*j,2)}, {vr(84+2*j,2)}")
        self.wait(rt[(3, 3)], self.gbt)
        for j in range(8): e(f"v_pk_add_f32 {vr(100+2*j,2)}, {vr(100+2*j,2)}, {vr(116+2*j,2)}")
        for h in range(2):
            for j in range(4*h, 4*h+4): e(f"v_pk_add_f32 {vr(68+2*j,2)}, {vr(68+2*j,2)}, {vr(100+2*j,2)}")
            for j in range(4*h, 4*h+4): e(f"v_pk_fma_f32 {vr(68+2*j,2)}, {vr(68+2*j,2)}, {vr(140+2*j,2)}, {vr(156+2*j,2)}")
            for j in range(4*h, 4*h+4): e(f"v_cvt_pk_bf16_f32 v{24+j}, v{68+2*j}, v{69+2*j}")
            e(f"buffer_store_dwordx4 {vr(24+4*h,4)}, v249, s[{S_OUT}:{S_OUT+3}], s{S_T0} offen offset:{16*h}")
        self.stamp(18)

    def bump_epoch(self):
        e = self.e
        sk = self.lab("ep")
        e("s_cmp_lg_u32 s2, 0")
        e(f"s_cbranch_scc1 {sk}")
        e(f"s_add_u32 s{S_T0}, s{S_E}, 1")
        e(f"v_mov_b32 v3, s{S_T0}\nv_mov_b32 v4, 0")
        e("s_mov_b64 exec, 1")
        e(f"buffer_store_dword v3, v4, s[{S_WS}:{S_WS+3}], 0 offen sc1")
        e("s_mov_b64 exec, -1")
        self.label(sk)
    def finish(self):
        if self.cfg.get("hold"):
            self.label("F_hold")
            self.e(f"s_memrealtime s[{S_ST}:{S_ST+1}]\ns_waitcnt lgkmcnt(0)\ns_sub_u32 s{S_T0}, s{S_ST}, s34\ns_cmp_lt_u32 s{S_T0}, {self.cfg['hold']}\ns_cbranch_scc1 F_hold")
        self.stamp_flush()
        self.label(f"{self.cfg['uid']}_end")
        self.e("s_endpgm")
        ins = resolve(self.p.take()) + self.ool
        ins, n = pad_hazards(ins)
        check_labels(ins)
        return render(ins)
def kernel_text(name, body, vgpr=512, accum=256):
    return f""".text
.globl {name}
.p2align 8
.type {name},@function
{name}:
{body}
.section .rodata,"a"
.p2align 6
.amdhsa_kernel {name}
  .amdhsa_next_free_vgpr {vgpr}
  .amdhsa_next_free_sgpr 102
  .amdhsa_accum_offset {accum}
  .amdhsa_group_segment_fixed_size 0
  .amdhsa_kernarg_size 144
  .amdhsa_user_sgpr_count 2
  .amdhsa_user_sgpr_kernarg_segment_ptr 1
  .amdhsa_system_sgpr_workgroup_id_x 1
.end_amdhsa_kernel
"""

def build(stamps=False, over={}):
    hdr = open("adaLN_cond__ssm_conv_s4__glu_gated_geglu__prompt.s.ref").read().split("; Override launch")[0]
    cfg = dict(spin=200000, stamps=stamps, uid="F", b1=10, b2=17, b3=23, sti=35, stk=42, b4=54, wx=6, kc=22, kf=18, nb=4, nh=12, hw=11, nrc=11, rc0=3, rcs=2, f0k=29, p1k=16, g0at=12, twx=0, npre=16, ga=24, cpace=4, gpace=2, nb1=0, twd=2, touch=2, fpos=1, wa0=4, map8=1, rot=1, rot2=1, split=0, nbp=0, nb2=8, nrec=8, wpre=12, itb=1)
    cfg.update(over)
    g = G(cfg); e = g.e
    g.prologue()
    g.p0_issue()
    g.srds_late()
    g.g1_map(); g.w_setup(); g.hbase()
    g.w_rot(); g.conv_setup(); g.p0_xb()
    g.tag_ready(); g.stamp(1)
    g.kgen_pre()
    e(f"v_mov_b32 v253, s{S_TAG}")
    g.p0_stats(); g.stamp(2)
    g.p0_xb2(); g.stamp(23)
    g.wm_issue(1)
    hold = {}
    if cfg['touch'] == 2: g.touch_w()
    if cfg['twd'] == 1: g.touch_wd(1)
    g.wait(g.T["c"]); g.stamp(20)
    g.kgen_tab([])
    g.stamp(24)
    g.p0_mod(0, 5); g.stamp(22)
    if cfg['touch'] == 1: g.touch_w()
    nb1 = cfg["nb1"]
    if cfg['fpos'] == 1: hold['fill'] = g.xfill()
    g.kgen_post()
    g.w_issue_l(range(0, nb1))
    g.stamp(3)
    def fillch():
        if cfg['fpos'] == 1: return []
        f0, hold["fill"] = g.capture(g.xfill)
        return [f0[2*i:2*i+2] for i in range(4)]
    g.hbuild(after_first=lambda: (g.p0_mod(1, 0, base=60), g.w_issue_l(range(nb1, cfg['nbp']))), mid=lambda: fillch() + g.w_chunks(range(cfg['nbp'], cfg['nb2'])))
    sk = g.lab("hm")
    e(f"s_cmp_lt_u32 s{S_IDX}, 28\ns_cbranch_scc1 {sk}")
    for i in g.cap(g.modf_issue):
        if i.text.startswith("buffer_"): g.p.nc(i.text)
        else: g.p.put([i])
    g.label(sk)
    if cfg['touch'] == 3: g.touch_w()
    if cfg['twd'] == 2: g.touch_wd(2)
    cap = g.cap
    nb2 = cfg["nb2"]; nr = cfg["nrec"]
    fa = cap(lambda: g.w_issue_l(range(nb2, 13)))
    fb = [] if not nr else cap(lambda: (g.wait(g.wt[nr-1]), e("s_barrier"), hold.__setitem__("r", g.w_read_l(range(0, nr)))))
    if cfg['fpos'] == 1:
        fa = cap(g.gate_pub) + fa
        fc = cap(lambda: (g.wait(hold["r"]), e("s_barrier"), g.w_issue_l(range(13, 13 + nr))))
    else:
        fc = cap(lambda: (g.wait(hold["r"], hold["fill"]), e("s_barrier"), g.gate_pub(), g.w_issue_l(range(13, 13 + nr))))
    f6, g.gtok = g.capture(g.gate_issue) if cfg['fpos'] == 1 else ([], None)
    f5, hold["late"] = g.capture(g.late_issue)
    g.cfg["cflush"] = (3,)
    g.conv(fillers={0: fa, cfg["itb"]: fb + f5 + fc + cap(lambda: g.late_fin(hold["late"])) + f6}, pre_bar=lambda: g.wait(g.wt[12]))
    assert not any(i.text.startswith("s_barrier") for i in g.conv_left if i.wait is None), len(g.conv_left)
    sys.stderr.write(f"conv left {len(g.conv_left)}\n")
    g.p.put(g.conv_left)
    e(f"s_cmp_ge_u32 s{S_IDX}, 28\ns_cbranch_scc1 F_alt")
    g.modf_pub()
    g.shadow1()
    g.gemm1f()
    g.label("F_g2")
    def alt():
        g.label("F_alt")
        g.u_job(); g.modf_pub(); g.stamp(10)
        g.stats2_job(); g.stamp(11)
        g.wd_setup(); g.g2_setup()
        keep = dict(g.wdt); keep2 = dict(g.ht)
        for ks in range(15): g.wd_issue(ks)
        e("s_waitcnt vmcnt(0)")
        for ks in range(cfg["nrc"]): g.wd_read(ks)
        e("s_waitcnt lgkmcnt(0)")
        for ks in range(15, 15 + cfg["nrc"]): g.wd_issue(ks)
        g.fl_issue(0, 140, 144); e("s_waitcnt vmcnt(0)")
        g.guard("fa", lambda ex: e(f"v_cmp_ne_u32 vcc, s{S_TAG}, v144"), lambda: (g.fl_issue(0, 140, 144), e("s_waitcnt vmcnt(0)")))
        for (nt_, ks) in list(keep2): g.hl(0, ks, 147)
        g.wdt = keep; g.ht.update(keep2)
        e("s_waitcnt vmcnt(0)\ns_branch F_g2")
    g.ool += g.cap(alt)
    g.gemm2f(); g.bump_epoch()
    launch = f"; @launch grid=(256,1,1) block=(256,1,1) lds={LDS_BYTES}\n"
    return hdr + launch + '.amdgcn_target "amdgcn-amd-amdhsa--gfx950"\n' + kernel_text(KN, g.finish())

if __name__ == "__main__":
    over = {}
    for a in sys.argv[1:]:
        if "=" in a:
            k, v = a.split("="); over[k] = int(v)
    print(build(stamps="stamps" in sys.argv[1:], over=over))
```

```python
import re

TRANS = ("v_exp_f32", "v_log_f32", "v_rcp_f32", "v_rsq_f32", "v_sqrt_f32", "v_sin_f32", "v_cos_f32")

class Ins:
    __slots__ = ("text", "kind", "tok", "wait", "note")
    def __init__(self, text, kind=None, tok=None, wait=None):
        self.text = text; self.kind = kind; self.tok = tok; self.wait = wait

def _expand(op):
    op = op.strip()
    op = re.sub(r"^-", "", op)
    m = re.match(r"^abs\((.*)\)$", op)
    if m: op = m.group(1)
    op = op.strip("|")
    m = re.match(r"^([vas])(\d+)$", op)
    if m: return [(m.group(1), int(m.group(2)))]
    m = re.match(r"^([vas])\[(\d+):(\d+)\]$", op)
    if m: return [(m.group(1), i) for i in range(int(m.group(2)), int(m.group(3)) + 1)]
    if op == "vcc": return [("s", 106), ("s", 107)]
    if op == "vcc_lo": return [("s", 106)]
    if op == "vcc_hi": return [("s", 107)]
    if op == "m0": return [("s", 124)]
    if op == "exec": return [("s", 126), ("s", 127)]
    return []

def parse(text):
    t = text.split(";")[0].strip()
    parts = t.split(None, 1)
    mn = parts[0]
    ops = []
    if len(parts) > 1:
        depth = 0; cur = ""
        for ch in parts[1]:
            if ch in "[(": depth += 1
            if ch in "])": depth -= 1
            if ch == "," and depth == 0:
                ops.append(cur.strip()); cur = ""
            else: cur += ch
        ops.append(cur.strip())
        ops = [o.split()[0] if o and not o.startswith("hwreg") else o for o in ops]
    return mn, ops

def classify(text):
    mn, ops = parse(text)
    base = re.sub(r"_(e32|e64|dpp|sdwa)$", "", mn)
    d = dict(mn=base, kind="other", dst=set(), src=set(), srcc=set(), srcab=set(), passes=0, dpp=False, wide_store=set(), _ops=(mn, ops))
    E = lambda i: set(_expand(ops[i])) if i < len(ops) else set()
    allops = lambda a: set().union(*[E(i) for i in range(a, len(ops))]) if len(ops) > a else set()
    if base.startswith("v_mfma"):
        d["kind"] = "mfma"; d["dst"] = E(0); d["srcab"] = E(1) | E(2); d["srcc"] = E(3); d["src"] = d["srcab"] | d["srcc"]
        d["passes"] = 8 if "32x32" in base else 4
    elif base.startswith("v_"):
        d["kind"] = "valu"
        if base in TRANS: d["kind"] = "trans"
        d["dpp"] = mn.endswith("_dpp") or "row_" in text or "quad_perm" in text
        if base.startswith("v_cmp"):
            d["dst"] = E(0); d["src"] = allops(1)
        elif base in ("v_readlane_b32", "v_readfirstlane_b32"):
            d["dst"] = E(0); d["src"] = allops(1); d["kind"] = "readlane"
        elif base.startswith("v_permlane") and "swap" in base:
            d["dst"] = E(0) | E(1); d["src"] = E(0) | E(1); d["kind"] = "permlane"
        elif base in ("v_add_co_u32", "v_addc_co_u32", "v_sub_co_u32"):
            d["dst"] = E(0) | E(1); d["src"] = allops(2)
        else:
            d["dst"] = E(0); d["src"] = allops(1)
            if base in ("v_fmac_f32", "v_dot2c_f32_bf16", "v_writelane_b32") or d["dpp"] or "sdwa" in mn: d["src"] |= E(0)
            if base == "v_cndmask_b32" and len(ops) == 3: d["src"] |= {("s", 106), ("s", 107)}
    elif base.startswith("ds_"):
        d["kind"] = "ds"
        if "read" in base or "permute" in base or "swizzle" in base:
            d["dst"] = E(0); d["src"] = allops(1)
        else: d["src"] = allops(0)
        if "addtid" in base: d["ldsdma"] = True
    elif base.startswith("buffer_") or base.startswith("global_"):
        d["kind"] = "vmem"
        lds = " lds" in text or "_lds_" in base
        if base in ("buffer_inv", "buffer_wbl2"): pass
        elif "load" in base and not lds:
            d["dst"] = E(0); d["src"] = allops(1)
            if "d16" in base: d["src"] |= E(0)
        elif lds:
            d["src"] = allops(0) | {("s", 124)}; d["ldsdma"] = True
        else:
            d["src"] = allops(0)
            if base.endswith("x4") or base.endswith("x3"):
                d["wide_store"] = E(0) if base.startswith("buffer_") else E(1)
            if "atomic" in base and " sc0" in text: d["dst"] = E(0)
    elif base.startswith("s_"):
        d["kind"] = "salu"
        if base.startswith("s_load") or base.startswith("s_memtime") or base.startswith("s_memrealtime"):
            d["kind"] = "smem"; d["dst"] = E(0); d["src"] = allops(1)
        elif base.startswith("s_cmp") or base.startswith("s_cbranch") or base in ("s_branch", "s_barrier", "s_waitcnt", "s_nop", "s_endpgm", "s_setprio", "s_sleep") or base.startswith("s_bitcmp"):
            d["src"] = allops(0)
        else:
            d["dst"] = E(0); d["src"] = allops(1)
            if "saveexec" in base: d["dst"] |= {("s", 126), ("s", 127)}
        if base == "s_nop": d["nop"] = int(ops[0], 0) + 1
    return d

def need_states(p, c):
    n = 0
    pv = p["kind"] in ("valu", "trans", "readlane", "permlane")
    cv = c["kind"] in ("valu", "trans", "readlane", "permlane")
    vd = {r for r in p["dst"] if r[0] in "va"}
    sd = {r for r in p["dst"] if r[0] == "s"}
    if pv:
        if c["kind"] == "mfma" and vd & c["src"]: n = max(n, 2)
        if cv and c["dpp"] and vd & c["src"]: n = max(n, 2)
        if c["kind"] == "readlane" and vd & c["src"]: n = max(n, 1)
        if c["kind"] == "permlane" and vd & c["src"]: n = max(n, 2)
        if p["kind"] == "trans" and cv and vd & c["src"] and c["kind"] != "trans": n = max(n, 1)
        if p["kind"] == "trans" and c["kind"] == "trans" and vd & c["src"]: n = max(n, 1)
        if p["kind"] == "trans" and c["kind"] in ("ds", "vmem") and vd & c["src"]: n = max(n, 1)
        if sd:
            if cv and sd & c["src"]: n = max(n, 4 if c["kind"] == "readlane" else 2)
            if c["kind"] == "vmem" and sd & c["src"]: n = max(n, 5)
            if c["kind"] in ("salu", "smem") and sd & c["src"]: n = max(n, 1)
            if c["mn"] in ("s_cbranch_vccz", "s_cbranch_vccnz") and sd & {("s", 106), ("s", 107)}: n = max(n, 1)
    if p["mn"].startswith("v_dot2") and vd:
        if c["mn"] == p["mn"]:
            mn_, ops_ = c["_ops"]
            ab = set(_expand(ops_[1])) | set(_expand(ops_[2]))
            if vd & ab: n = max(n, 3)
        elif vd & (c["src"] | c["dst"]): n = max(n, 3)
    if p["kind"] == "mfma":
        P = p["passes"]
        big = {4: 8, 8: 12}[P]; mid = {4: 6, 8: 10}[P]; war = {4: 3, 8: 7}[P]
        if c["kind"] == "mfma":
            if vd & c["srcab"]: n = max(n, big)
            if vd & c["srcc"]:
                if not (c["srcc"] == p["dst"] and c["passes"] == P): n = max(n, mid)
            if vd & c["dst"] and not vd & c["srcc"]: n = max(n, mid)
        elif cv or c["kind"] in ("ds", "vmem"):
            if vd & (c["src"] | c["dst"]): n = max(n, big)
        if cv and p["srcc"] & c["dst"]: n = max(n, war)
    if p["kind"] == "vmem" and p["wide_store"]:
        if p["wide_store"] & c["dst"]: n = max(n, 2)
    if p["kind"] == "salu" and ("s", 124) in p["dst"] and c.get("ldsdma"): n = max(n, 1)
    return n

class Prog:
    def __init__(self):
        self.ins = []
        self.ntok = 0
    def e(self, text):
        for line in text.strip().split("\n"):
            line = line.strip()
            if line: self.ins.append(Ins(line))
    def tok(self, text):
        self.ntok += 1
        self.ins.append(Ins(text, tok=self.ntok))
        return self.ntok
    def wait(self, *toks):
        toks = [t for t in toks if t is not None]
        flat = []
        for t in toks:
            if isinstance(t, (list, tuple)): flat += list(t)
            else: flat.append(t)
        if flat: self.ins.append(Ins("WAIT", wait=flat))
    def wait_nt(self, tok):
        self.ins.append(Ins("WAIT", kind="nt", wait=[tok]))
    def nc(self, text): self.ins.append(Ins(text, kind="nc"))
    def label(self, name): self.ins.append(Ins(name + ":", kind="label"))
    def take(self):
        r = self.ins; self.ins = []; return r
    def put(self, lst): self.ins += lst

def resolve(ins):
    out = []
    vm = []
    lg = []
    smem_out = False
    seen = set()
    for i in ins:
        if i.tok: seen.add(i.tok)
        if i.wait is not None:
            for t in i.wait: assert t in seen, f"wait on token {t} before issue"
            nv = None; nl = None
            for t in i.wait:
                if t in vm:
                    k = len(vm) - 1 - vm.index(t)
                    nv = k if nv is None else min(nv, k)
                elif t in lg:
                    k = len(lg) - 1 - lg.index(t)
                    if smem_out: k = 0
                    nl = k if nl is None else min(nl, k)
            s = []
            if i.kind == "nt":
                if nv is not None: out.append(Ins(f"s_waitcnt vmcnt({min(nv, 63)})"))
                continue
            if nv is not None:
                nv = min(nv, 63); s.append(f"vmcnt({nv})"); vm = vm[len(vm) - nv:] if nv else []
            if nl is not None:
                nl = min(nl, 15); s.append(f"lgkmcnt({nl})"); lg = lg[len(lg) - nl:] if nl else []
                if nl == 0: smem_out = False
            if s: out.append(Ins("s_waitcnt " + " ".join(s)))
            continue
        if i.kind == "label":
            out.append(i); continue
        mn = i.text.split()[0]
        if i.kind == "nc":
            pass
        elif mn.startswith("buffer_") or mn.startswith("global_"):
            vm.append(i.tok)
        elif mn.startswith("ds_"):
            lg.append(i.tok)
        elif mn.startswith("s_load") or mn.startswith("s_memtime") or mn.startswith("s_memrealtime"):
            lg.append(i.tok); smem_out = True
        elif mn == "s_waitcnt":
            m = re.search(r"vmcnt\((\d+)\)", i.text)
            if m:
                n = int(m.group(1)); vm = vm[len(vm) - n:] if n and n <= len(vm) else ([] if n == 0 else vm)
            m = re.search(r"lgkmcnt\((\d+)\)", i.text)
            if m:
                n = int(m.group(1)); lg = lg[len(lg) - n:] if n and n <= len(lg) else ([] if n == 0 else lg)
                if n == 0: smem_out = False
        out.append(i)
    return out

def pad_hazards(ins, window=24):
    out = []; hist = []
    nins = 0
    for i in ins:
        if i.kind == "label" or i.text.startswith(".") or i.text.startswith("WARM"):
            out.append(i); continue
        c = classify(i.text)
        need = 0; dist = 0
        for p in reversed(hist):
            n = need_states(p, c)
            if n - dist > need: need = n - dist
            dist += p.get("nop", 1)
            if dist >= window: break
        while need > 0:
            k = min(need, 16)
            t = f"s_nop {k-1}"
            out.append(Ins(t)); hist.append(classify(t)); need -= k; nins += 1
        out.append(i); hist.append(c)
        if len(hist) > 64: hist = hist[-40:]
    return out, nins

def _isscalar(i):
    return i.kind != "label" and (i.wait is not None or i.text.startswith("s_"))
def _isv(i): return i.wait is None and i.kind != "label" and (i.text.startswith("buffer_") or i.text.startswith("global_"))
def _cost(i):
    if i.kind == "label": return 0
    if i.wait is not None: return 4
    mn = i.text.split()[0]
    if re.sub(r"_(e32|e64)$", "", mn) in TRANS: return 8
    if mn.startswith("ds_write_b128"): return 20
    if mn.startswith("buffer_store_dwordx4"): return 16
    if mn.startswith("buffer_") or mn.startswith("global_"): return 8
    return 4
def merge(main, fill, slots, pace=2, start=0, side=None):
    out = []; fi = 0
    n = len(main); k = 0; nm = 0; lastv = -99
    ism = lambda i: i.wait is None and i.kind != "label" and i.text.startswith("v_mfma")
    while k < n:
        i = main[k]; out.append(i); k += 1
        if not ism(i): continue
        nm += 1
        seg = []
        while k < n and not ism(main[k]):
            seg.append(main[k]); k += 1
        free = True
        if seg and seg[-1].wait is not None and not any(s.tok in seg[-1].wait for s in seg if s.tok) and not any(s.wait is None and s.text.startswith("s_barrier") for s in seg):
            out.append(seg.pop()); free = False
        elif seg and _isscalar(seg[0]):
            out.append(seg.pop(0)); free = False
        elif len(seg) > 2 and seg[0].text.startswith("ds_read") and seg[1].text.startswith("ds_read") and seg[2].wait is None and seg[2].kind != "label" and seg[2].text.startswith("s_add"):
            out.append(seg.pop(2)); free = False
        elif side and nm - lastv >= pace and _isscalar(side[0]): pass
        elif nm > start and fi < len(fill) and _isscalar(fill[fi]):
            out.append(fill[fi]); fi += 1; free = False
            while fi < len(fill) and fill[fi].kind == "label": out.append(fill[fi]); fi += 1
        tail = []
        while seg and (seg[-1].wait is not None or seg[-1].text.startswith("s_waitcnt") or seg[-1].text.startswith("s_barrier")):
            tail.insert(0, seg.pop())
        used = sum(_cost(s) for s in seg) + sum(_cost(s) for s in tail)
        out += seg
        if side and nm - lastv >= pace:
            k2 = 0
            while k2 < len(side) and not _isv(side[k2]): k2 += 1
            part = side[:k2+1]; del side[:k2+1]
            if free and part and _isscalar(part[0]):
                pos = len(out) - len(seg); out.insert(pos, part.pop(0))
            out += part; used += sum(_cost(s) for s in part); lastv = nm
        hadv = any(s.wait is None and s.kind != "label" and s.text.startswith("v_") for s in seg)
        while nm > start and fi < len(fill) and (used + _cost(fill[fi]) <= slots + (4 if _isv(fill[fi]) else 0) or used == 0):
            f = fill[fi]
            if f.wait is None and f.kind != "label" and (f.text.startswith("ds_") or _isv(f)) and hadv: break
            if _isv(f):
                if nm - lastv < pace: break
                lastv = nm
            if f.wait is None and f.kind != "label" and f.text.startswith("v_"): hadv = True
            if _isscalar(f) and used + 8 > slots: break
            used += _cost(f); out.append(f); fi += 1
            while fi < len(fill) and fill[fi].kind == "label": out.append(fill[fi]); fi += 1
        out += tail
    return out, fill[fi:]

def spread(a, b):
    out = []; nb = len(b); bi = 0
    step = len(a) / (nb + 1) if nb else 0
    nxt = step
    for idx, ins in enumerate(a):
        while bi < nb and idx >= max(nxt, b[bi][0]):
            out += b[bi][1]; bi += 1; nxt = max(nxt + step, idx + step * 0.6)
            break
        out.append(ins)
    for c in b[bi:]: out += c[1]
    return out

def weave(a, b, every):
    out = []; bi = 0; cnt = 0
    for ins in a:
        if cnt >= every and bi < len(b) and ins.wait is None and ins.kind != "label" and ins.text.startswith("v_") and not ins.text.startswith("v_cmp"):
            out += b[bi]; bi += 1; cnt = 0
        out.append(ins); cnt += 1
    for c in b[bi:]: out += c
    return out

def check_labels(ins):
    for k, i in enumerate(ins):
        if i.kind == "label" and re.match(r"LF_(x|mf|gt|st|f0|lt|hc|g2|fa|ss)b_\d+:", i.text):
            assert ins[k-1].text.startswith("s_cbranch_vccnz"), (i.text, ins[k-1].text)

def render(ins):
    return "\n".join(("" if i.kind == "label" else "    ") + i.text for i in ins)


import subprocess, tempfile, os
def sizes_of(ins):
    body = "\n".join(i.text for i in ins if not i.text.startswith("WARM"))
    src = '.amdgcn_target "amdgcn-amd-amdhsa--gfx950"\n.text\n' + body + "\n"
    d = tempfile.mkdtemp()
    open(d + "/a.s", "w").write(src)
    subprocess.run(["clang", "-x", "assembler", "-target", "amdgcn-amd-amdhsa", "-mcpu=gfx950", "-c", d + "/a.s", "-o", d + "/a.o"], check=True)
    out = subprocess.run(["llvm-objdump", "-d", "--mcpu=gfx950", d + "/a.o"], capture_output=True, text=True).stdout
    sz = []
    for l in out.splitlines():
        m = re.search(r"// [0-9A-F]+: ((?:[0-9A-F]{8} ?)+)", l)
        if m: sz.append(4 * len(m.group(1).split()))
    return sz

def add_warm(ins, nw=4, line=128):
    sz = sizes_of([i for i in ins])
    def call(k):
        r = [Ins("s_mov_b64 exec, 0")]
        for w in range(nw - 1): r += [Ins(f"s_cmp_eq_u32 s70, {w}"), Ins(f"s_cbranch_scc1 WS{k}_{w}")]
        r += [Ins(f"s_branch WS{k}_{nw-1}"), Ins(f"WB{k}:", kind="label"), Ins("s_mov_b64 exec, -1")]
        return r, 4 + 8 * (nw - 1) + 4 + 4
    out = []; off = 0; si = 0; reg = -1; stubs = {}
    seq = []
    for i in ins:
        if i.text.startswith("WARM") or i.kind == "label": seq.append((i, 0))
        else: seq.append((i, sz[si])); si += 1
    assert si == len(sz), (si, len(sz))
    have = -1; insave = False; k = 0; n = len(seq)
    def ok_after(prev, nxt):
        if prev is None: return True
        t = prev.text
        if "exec" in t.split(",")[0] or insave: return False
        if nxt is not None and nxt.kind == "label": return False
        if t.startswith("s_branch") or t.startswith("s_endpgm"): return False
        return True
    prev = None
    while k < n:
        i, s_ = seq[k]
        if i.text.startswith("WARMCALL"):
            c, b = call(int(i.text.split()[1])); out += c; off += b; prev = c[-1]; k += 1; continue
        if i.text.startswith("WARMREG"):
            reg = int(i.text.split()[1]); k += 1; continue
        if reg >= 0 and i.kind != "label" and off // line != have:
            rem = line - off % line; o2 = 0; better = False
            for j in range(k, min(n, k + 40)):
                if seq[j][0].text.startswith("WARM"): break
                o2 += seq[j][1]
                if o2 + 4 > rem: break
                nx = seq[j+1][0] if j + 1 < n else None
                if seq[j][0].text.startswith("v_mfma") and nx is not None and nx.kind != "label" and not nx.text.startswith("s_"): better = True; break
            free = prev is not None and prev.text.startswith("v_mfma") and not i.text.startswith("s_")
            if ok_after(prev, i) and (free or not better):
                st = Ins("STUB"); stubs.setdefault(reg, []).append(st)
                lab = Ins("STUBLAB", kind="label"); st.note = lab
                out += [lab, st]; off += 4; have = (off - 4) // line; prev = st
        if "saveexec" in i.text: insave = True
        elif i.text.startswith("s_mov_b64 exec"): insave = False
        out.append(i); off += s_
        if i.kind != "label": prev = i
        k += 1
    for r, l in stubs.items():
        per = -(-len(l) // nw)
        for j, st in enumerate(l):
            w, p = divmod(j, per)
            st.note.text = f"WS{r}_{w}:" if p == 0 else f"WT{r}_{j}:"
            last = (p == per - 1) or j == len(l) - 1
            st.text = f"s_cbranch_execz WB{r}" if last else f"s_cbranch_execz WT{r}_{j+1}"
        for w in range(nw):
            assert w * per < len(l), "region too small"
    return out, {r: len(l) for r, l in stubs.items()}
```

```python
import sys, struct, math
from asmlib import *
KN = "adaLN_cond__ssm_conv_s4__glu_gated_geglu__prompt_kernel"
WS_ST1 = 0x1000; WS_MODP = 0x8000; WS_MODF = 0x20000; WS_ST2 = 0x24000
WS_FL1 = 0x28000; WS_FL3 = 0x2C000; WS_FL2 = 0x40000; WS_U = 0x80000; WS_XB = 0xC00000; WS_DBG = 0x1000000; WS_X1 = 0x100000; WS_X1S = 0x300000; WS_H = 0x500000; WS_SIZE = 0x1200000
L_TAB = 0; TABW = 17408; TPITCH = 272
L_K = 69632; KCH = 8320; KODD = 4164
L_HI = 86272; HCH = 4608
L_Z = 95488
L_MOD = 111872
L_SP = 131072
L_XT = 155648
L_SS = L_XT
L_XR2 = L_XT
LDS_BYTES = 163840
_POOL = [L_SP, L_SP + 8192, L_SP + 16384, L_MOD, L_MOD + 8192] + [L_TAB + 8192*i for i in range(8)]
def wslot(ks):
    if ks < 26: return _POOL[ks % 13]
    if ks < 29: return L_SP + 8192*(ks-26)
    return L_TAB + 8192*(ks-29)
S_WS = 4; S_WG = 8; S_WU = 12
P_X, P_ARE, P_AIM, P_BRE, P_BIM, P_CRE, P_CIM, P_LDT, P_DSK, P_BX, P_WG, P_WU, P_WD, P_C, P_WM, P_OUT, P_DBG, P_WS = [16 + 2 * i for i in range(18)]
S_X = 52; S_WM = 56; S_WD = 60; S_OUT = 64
S_TAG = 68; S_E = 69; S_WV = 70; S_D0 = 71; S_LDT = 72; S_DSK = 73
S_T0 = 74; S_T1 = 75; S_T2 = 76; S_T3 = 77; S_SPIN = 78; S_IDX = 79; S_XCD = 80
S_M = 82
S_EX = 94
S_ST = 96
S45 = 45; S46 = 46
S_CH = 16; S_PAR = 17
S_G1 = 98; S_G2 = 99; S_G3 = 100
SENT = 0xFFFFFFFF
BA = [124, 125, 126, 127, 141, 142, 2, 3]
def f2u(x): return struct.unpack("<I", struct.pack("<f", x))[0]
def hx(x): return "0x%08x" % (x & 0xFFFFFFFF)
def fl(x): return hx(f2u(x))
LOG2E = 1.4426950408889634
GAM = (2 * 0.7978845608028654 * LOG2E * 0.044715) ** (1.0 / 3)
GC = 2 * 0.7978845608028654 * LOG2E / GAM
def vr(b, n): return f"v[{b}:{b+n-1}]" if n > 1 else f"v{b}"
def ar(b, n): return f"a[{b}:{b+n-1}]" if n > 1 else f"a{b}"
def sr(b, n): return f"s[{b}:{b+n-1}]" if n > 1 else f"s{b}"
class G:
    def __init__(self, cfg):
        self.cfg = cfg; self.p = Prog(); self.nlab = 0; self.nstamp = 0; self.ool = []
    def lab(self, base):
        self.nlab += 1; return f"L{self.cfg['uid']}_{base}_{self.nlab}"
    def e(self, t): self.p.e(t)
    def tok(self, t): return self.p.tok(t)
    def wait(self, *t): self.p.wait(*t)
    def label(self, l): self.p.label(l)
    def stamp(self, i):
        if not self.cfg.get("stamps"): return
        e = self.e
        e(f"s_memtime s[{S_ST}:{S_ST+1}]")
        e("s_waitcnt lgkmcnt(0)")
        e(f"v_writelane_b32 v255, s{S_ST}, {i}")
    def stamp_flush(self):
        if not self.cfg.get("stamps"): return
        e = self.e
        e(f"s_memrealtime s[{S_ST}:{S_ST+1}]")
        e("s_waitcnt lgkmcnt(0)")
        e(f"v_writelane_b32 v255, s{S_ST}, 63")
        e(f"s_lshl_b32 s{S_T0}, s2, 10")
        e(f"s_add_u32 s{S_T0}, s{S_T0}, {WS_DBG + self.cfg.get('dbgoff', 0)}")
        e("v_lshlrev_b32 v254, 2, v0")
        e(f"buffer_store_dword v255, v254, s[{S_WS}:{S_WS+3}], s{S_T0} offen")
        if self.cfg.get("dbgout"):
            sk = self.lab("dbg")
            e(f"s_cmp_lg_u32 s2, {self.cfg['dbgout']}\ns_cbranch_scc1 {sk}\ns_cmp_lg_u32 s{S_WV}, 0\ns_cbranch_scc1 {sk}")
            e(f"v_readlane_b32 s{S_T1}, v255, 0\nv_readlane_b32 s{S_T2}, v255, 62\nv_readlane_b32 s{S_T3}, v255, 63\nv_mov_b32 v4, 0")
            for i, st in enumerate([1, 2, 23, 22, 21, 3, 4, 5, 6, 7, 12, 14, 16, 19, 18]):
                e(f"v_readlane_b32 s{S_T0}, v255, {st}\ns_sub_u32 s{S_T0}, s{S_T0}, s{S_T1}\nv_mov_b32 v3, s{S_T0}")
                e(f"global_store_dword v4, v3, s[{P_DBG}:{P_DBG+1}] offset:{4*i}")
            e(f"s_sub_u32 s{S_T0}, s{S_T3}, s{S_T2}\nv_mov_b32 v3, s{S_T0}")
            e(f"global_store_dword v4, v3, s[{P_DBG}:{P_DBG+1}] offset:60")
            self.label(sk)
    def srd(self, s, ptr, size):
        self.e(f"s_mov_b32 s{s}, s{ptr}\ns_mov_b32 s{s+1}, s{ptr+1}\ns_mov_b32 s{s+2}, {hx(size)}\ns_mov_b32 s{s+3}, 0x20000")
    def prologue(self):
        e = self.e
        e("s_cmp_ge_u32 s2, 256")
        e(f"s_cbranch_scc1 {self.cfg['uid']}_end")
        e("s_load_dwordx16 s[16:31], s[0:1], 0")
        e("s_load_dwordx16 s[32:47], s[0:1], 64")
        e("s_load_dwordx4 s[48:51], s[0:1], 128")
        if self.cfg.get("stamps"):
            e("v_mov_b32 v255, 0")
            e(f"s_memrealtime s[{S_ST}:{S_ST+1}]")
        if self.cfg.get("hold"): e("s_memrealtime s[34:35]" if False else "s_nop 0")
        e("v_and_b32 v1, 63, v0")
        e("v_lshrrev_b32 v2, 6, v0")
        e(f"s_and_b32 s{S_XCD}, s2, 7")
        e(f"v_readfirstlane_b32 s{S_WV}, v2")
        e(f"s_lshr_b32 s{S_IDX}, s2, 3")
        e(f"s_lshl_b32 s{S_D0}, s{S_XCD}, 5")
        e(f"s_add_u32 s{S_D0}, s{S_D0}, s{S_IDX}")
        e(f"s_lshl_b32 s{S_D0}, s{S_D0}, 1")
        e(f"s_lshl_b32 s{S_T0}, s2, 13\ns_lshl_b32 s{S_T1}, s{S_WV}, 11\ns_add_u32 s{S_T0}, s{S_T0}, s{S_T1}")
        e("v_lshlrev_b32 v9, 4, v1")
        e("v_lshrrev_b32 v4, 3, v1\nv_and_b32 v5, 7, v1\nv_lshlrev_b32 v5, 4, v5\nv_lshl_add_u32 v3, v4, 10, v5")
        e(f"s_lshl_b32 s{S_T3}, s{S_IDX}, 16\ns_lshl_b32 s{S_T2}, s{S_XCD}, 7\ns_add_u32 s{S_T3}, s{S_T3}, s{S_T2}")
        e(f"s_lshl_b32 s{S_T2}, s{S_WV}, 14\ns_add_u32 s{S_T3}, s{S_T3}, s{S_T2}")
        e(f"s_add_u32 m0, s{S_T1}, {L_XT}")
        e(f"v_add_u32 v6, {8192 - 1024}, v3")
        e(f"s_lshl_b32 s{S_T2}, s{S_D0}, 8\nv_lshl_add_u32 v8, v0, 1, s{S_T2}")
        e(f"s_mul_i32 s{S_M}, s2, 1366\ns_lshr_b32 s{S_M}, s{S_M}, 16")
        e(f"s_mul_i32 s{S_M+2}, s{S_M}, 48\ns_sub_u32 s{S_M+1}, s2, s{S_M+2}")
        e(f"s_and_b32 s{S_M+2}, s{S_M}, 3\ns_lshl_b32 s{S_M+2}, s{S_M+2}, 8\nv_lshl_add_u32 v7, v1, 2, s{S_M+2}")
        e("v_mul_u32_u24 v33, 6144, v4\nv_add_u32 v33, v33, v5")
        e(f"s_mul_i32 s{S_M+2}, s{S_M}, {128*6144}\ns_lshl_b32 s{S_M+3}, s{S_M+1}, 7\ns_add_u32 s{S_M+2}, s{S_M+2}, s{S_M+3}")
        e(f"s_mul_i32 s{S_M+3}, s{S_WV}, {32*6144}\ns_add_u32 s{S_M+2}, s{S_M+2}, s{S_M+3}")
        e(f"s_mov_b32 s{S_X+2}, {hx(2097152)}\ns_mov_b32 s{S_X+3}, 0x20000\ns_mov_b32 s{S_WM+2}, {hx(3145728)}\ns_mov_b32 s{S_WM+3}, 0x20000")
        e("s_waitcnt lgkmcnt(0)")
        if self.cfg.get("stamps"):
            e(f"v_writelane_b32 v255, s{S_ST}, 62")
        if self.cfg.get("hold"): e("s_memrealtime s[34:35]")
        self.stamp(0)
    def srds_late(self):
        self.srd(S_WS, P_WS, WS_SIZE)
        self.srd(S_WD, P_WD, 1835008)
        self.srd(S_OUT, P_OUT, 2097152)
    def tag_ready(self):
        e = self.e
        e("s_waitcnt lgkmcnt(0)")
        e(f"s_mul_i32 s{S_TAG}, s{S_E}, 0x9E3779B1")
        e(f"s_add_u32 s{S_TAG}, s{S_TAG}, 0x7F4A7C15")
    def reduce16(self, regs):
        for ctl in ["quad_perm:[1,0,3,2]", "quad_perm:[2,3,0,1]", "row_half_mirror", "row_mirror"]:
            for r in regs:
                self.e(f"v_add_f32_dpp v{r}, v{r}, v{r} {ctl} row_mask:0xf bank_mask:0xf")
    def stat_finish(self, vs, vq, t0, t1):
        e = self.e
        e(f"v_mul_f32 v{vs}, {fl(1/512)}, v{vs}")
        e(f"v_mul_f32 v{t0}, v{vs}, v{vs}")
        e(f"v_mul_f32 v{vq}, {fl(1/512)}, v{vq}")
        e(f"v_sub_f32 v{vq}, v{vq}, v{t0}")
        e(f"v_max_f32 v{vq}, 0, v{vq}")
        e(f"v_cvt_pk_bf16_f32 v{t0}, v{vq}, v{vq}")
        e(f"v_and_b32 v{t0}, 0xffff0000, v{t0}")
        e(f"v_add_f32 v{t0}, {fl(1e-5)}, v{t0}")
        e(f"v_cvt_pk_bf16_f32 v{t0}, v{t0}, v{t0}")
        e(f"v_and_b32 v{t0}, 0xffff0000, v{t0}")
        e(f"v_sqrt_f32 v{t0}, v{t0}")
        e(f"v_cvt_pk_bf16_f32 v{vs}, v{t0}, v{vs}")
    def cmul_list(self, jobs):
        e = self.e; i = 0
        f1 = lambda d, a, b: f"v_pk_mul_f32 {vr(d,2)}, {vr(a,2)}, {vr(b,2)} op_sel:[0,0] op_sel_hi:[0,1]"
        f2 = lambda d, a, b: f"v_pk_fma_f32 {vr(d,2)}, {vr(a,2)}, {vr(b,2)}, {vr(d,2)} op_sel:[1,1,0] op_sel_hi:[1,0,1] neg_lo:[0,1,0]"
        while i < len(jobs):
            j = jobs[i]
            if i + 1 < len(jobs) and j[0] not in jobs[i+1][1:] and jobs[i+1][0] not in j:
                k = jobs[i+1]
                e(f1(*j)); e(f1(*k)); e(f2(*j)); e(f2(*k)); i += 2
            else:
                e(f1(*j)); e(f2(*j)); i += 1
    def kgen_pre(self):
        e = self.e
        e("v_mov_b32 v36, 0\nv_mov_b32 v37, 0\nv_mov_b32 v38, 0\nv_mov_b32 v39, 0")
        e("v_lshrrev_b32 v3, 5, v0")
        e(f"v_mul_u32_u24 v3, {HCH}, v3")
        e("v_and_b32 v4, 31, v0")
        e("v_lshl_add_u32 v3, v4, 4, v3")
        e(f"v_add_u32 v3, {L_HI}, v3")
        e("v_bfe_u32 v4, v0, 2, 2")
        e(f"v_mul_u32_u24 v4, 4160, v4")
        e("v_and_b32 v5, 3, v0")
        e("v_lshl_add_u32 v4, v5, 4, v4")
        e(f"v_add_u32 v4, {L_K + 4096}, v4")
        e("v_cmp_gt_u32 vcc, 64, v0")
        e("v_cndmask_b32 v3, v4, v3, vcc")
        e("v_cmp_gt_u32 vcc, 80, v0")
        e(f"s_and_saveexec_b64 s[{S_EX}:{S_EX+1}], vcc")
        zl = self.lab("z")
        e(f"s_cbranch_execz {zl}")
        e("ds_write_b128 v3, v[36:39]")
        self.label(zl)
        e(f"s_mov_b64 exec, s[{S_EX}:{S_EX+1}]")
        e(f"s_lshr_b32 s{S_T0}, s{S_WV}, 1")
        e(f"s_lshl_b32 s{S_T0}, s{S_T0}, 4")
        e(f"s_lshr_b32 s{S_T1}, s{S_LDT}, s{S_T0}")
        e(f"s_lshl_b32 s{S_T1}, s{S_T1}, 16")
        e(f"v_mov_b32 v3, {fl(LOG2E)}")
        e(f"v_mul_f32 v3, s{S_T1}, v3")
        e("v_exp_f32 v3, v3")
        e("v_cvt_pk_bf16_f32 v3, v3, v3")
        e("v_and_b32 v35, 0xffff0000, v3")
    def kgen_tab(self, chunks=()):
        e = self.e
        keep = self.p.take()
        for i in range(6): e(f"v_lshlrev_b32 v{26+i}, 16, v{18+i}")
        e("v_mul_f32 v26, v26, v35\nv_mul_f32 v27, v27, v35\nv_mul_f32 v28, v28, v35\nv_mul_f32 v29, v29, v35")
        e(f"v_mul_f32 v26, {fl(LOG2E)}, v26")
        e("v_mul_f32 v27, 0.15915494, v27")
        S = lambda j: 40 + 2 * j
        Gt = lambda T: 74 + 2 * (T - 1)
        Pn = lambda n: 88 + 2 * n
        S32, S64, S128 = 138, 140, 142
        def direct(dst, t, a, b, c):
            if t == 1:
                e(f"v_exp_f32 v{a}, v26\nv_fract_f32 v{b}, v27")
            else:
                e(f"v_mul_f32 v{a}, {fl(float(t))}, v26\nv_mul_f32 v{b}, {fl(float(t))}, v27")
                e(f"v_exp_f32 v{a}, v{a}\nv_fract_f32 v{b}, v{b}")
            e(f"v_cos_f32 v{c}, v{b}\nv_sin_f32 v{b}, v{b}\ns_nop 0")
            e(f"v_mul_f32 v{dst}, v{a}, v{c}\nv_mul_f32 v{dst+1}, v{a}, v{b}")
        e(f"s_mul_i32 s{S_T3}, s{S_WV}, {TABW}\ns_mov_b32 m0, s{S_T3}")
        st = {"n": 0, "q": []}
        NBAT = 8
        def flush():
            for ent_, r_ in st["q"]: e(f"ds_write_addtid_b32 v{r_} offset:{L_TAB + ent_*TPITCH}")
            st["q"] = []
        def pair(ent, jobs, srcs, neg=False):
            self.cmul_list(jobs)
            for i in range(2):
                pk = 128 + (st["n"] % NBAT); st["n"] += 1
                if srcs[i] is None: e(f"v_mov_b32 v{pk}, 0x3f80")
                else: e(f"v_cvt_pk_bf16_f32 v{pk}, v{srcs[i]}, {'-' if neg else ''}v{srcs[i]+1}")
                st["q"].append((ent + i, pk))
            if len(st["q"]) == NBAT: flush()
        direct(S(1), 1, 120, 121, 122)
        pair(0, [], [None, S(1)])
        direct(S(16), 16, 123, 124, 125)
        pair(2, [(S(2), S(1), S(1)), (Pn(0), 30, 28), (S(3), S(2), S(1))], [S(2), S(3)])
        direct(Gt(1), 256, 120, 121, 122)
        pair(48, [(Pn(1), Pn(0), S(16)), (S32, S(16), S(16))], [Pn(0), Pn(1)], True)
        pair(4, [(S(4), S(2), S(2)), (S(5), S(3), S(2))], [S(4), S(5)])
        pair(6, [(S(6), S(4), S(2)), (S(7), S(4), S(3))], [S(6), S(7)])
        pair(50, [(Pn(2), Pn(0), S32), (Pn(3), Pn(1), S32), (S64, S32, S32)], [Pn(2), Pn(3)], True)
        pair(8, [(S(8), S(4), S(4)), (S(9), S(5), S(4))], [S(8), S(9)])
        pair(10, [(S(10), S(8), S(2)), (S(11), S(8), S(3))], [S(10), S(11)])
        pair(52, [(Pn(4), Pn(0), S64), (Pn(5), Pn(1), S64)], [Pn(4), Pn(5)], True)
        pair(54, [(Pn(6), Pn(2), S64), (Pn(7), Pn(3), S64), (S128, S64, S64)], [Pn(6), Pn(7)], True)
        pair(12, [(S(12), S(8), S(4)), (S(13), S(8), S(5))], [S(12), S(13)])
        pair(14, [(S(14), S(8), S(6)), (S(15), S(8), S(7))], [S(14), S(15)])
        aux = [[(Gt(2), Gt(1), Gt(1))], [(Gt(3), Gt(2), Gt(1))], [(Gt(4), Gt(2), Gt(2))], []]
        for i in range(4):
            pair(56 + 2*i, [(Pn(8+2*i), Pn(2*i), S128), (Pn(9+2*i), Pn(2*i+1), S128)] + aux[i], [Pn(8+2*i), Pn(9+2*i)], True)
        ents = {0: [(1, 0), (1, 2), (1, 4), (1, 6), (1, 8), (4, 0), (4, 8), (4, 16)],
                1: [(1, 8), (1, 10), (1, 12), (1, 14), (1, 16), (5, 0), (5, 8), (5, 16)],
                2: [(2, 0), (2, 4), (2, 8), (2, 12), (2, 16), (6, 0), (6, 8), (6, 16)],
                3: [(3, 0), (3, 4), (3, 8), (3, 12), (3, 16), (7, 0), (7, 8), (7, 16)]}
        extra = {(0, 0): (Gt(5), Gt(4), Gt(1)), (2, 0): (Gt(6), Gt(4), Gt(2)), (3, 0): (Gt(7), Gt(4), Gt(3))}
        tb = 0
        for q in range(4):
            for h in range(4):
                two = ents[q][2*h:2*h+2]; base = 88 + 4*(tb & 3); tb += 1
                jobs = []; srcs = []
                for i, (T, j) in enumerate(two):
                    if j == 0: srcs.append(Gt(T))
                    else: jobs.append((base + 2*i, Gt(T), S(j))); srcs.append(base + 2*i)
                if (q, h) in extra: jobs.append(extra[(q, h)])
                pair(16 + 16*(h >> 1) + 4*q + 2*(h & 1), jobs, srcs)
        body = self.p.take()
        out = []; ci = 0; nb = 0
        for k_, ins in enumerate(body):
            out.append(ins)
            last = ins.text.startswith("ds_write_addtid") and (k_ + 1 == len(body) or not body[k_+1].text.startswith("ds_write_addtid"))
            if last:
                nb += 1
                if nb > self.cfg["wa0"] and ci < len(chunks):
                    out += chunks[ci] + chunks[ci+1] + [Ins(f"s_mov_b32 m0, s{S_T3}")]; ci += 2
        for c in chunks[ci:]: out += c
        self.p.put(keep + out)

    def kgen_post(self, post_b2=None):
        e = self.e
        e(f"s_lshr_b32 s{S_T2}, s{S_WV}, 1\ns_mul_i32 s{S_T0}, s{S_T2}, {2*TABW}")
        e(f"v_and_b32 v6, 15, v1\nv_mul_u32_u24 v3, {TPITCH}, v6")
        e("v_lshrrev_b32 v7, 4, v1\nv_lshl_add_u32 v3, v7, 4, v3")
        e(f"v_add_u32 v3, s{S_T0}, v3")
        e(f"s_and_b32 s{S_T1}, s{S_WV}, 1\ns_mul_i32 s{S_T1}, s{S_T1}, {16*TPITCH}\nv_add_u32 v4, s{S_T1}, v3")
        e(f"s_mul_i32 s{S_T2}, s{S_T2}, {KCH}\ns_add_u32 s{S_T2}, s{S_T2}, {L_K}")
        e(f"v_lshlrev_b32 v6, 5, v6\nv_sub_u32 v6, s{S_T2}, v6")
        e("v_lshlrev_b32 v9, 9, v7\nv_sub_u32 v9, v6, v9")
        e("s_waitcnt lgkmcnt(0)\ns_barrier")
        self.stamp(21)
        F = 40; toks = {}
        for ks in range(8):
            o = L_TAB + (ks >> 2)*TABW + (ks & 3)*64; r = F + 12*ks
            self.tok(f"ds_read_b128 {vr(r+8,4)}, v3 offset:{o + 48*TPITCH}")
            toks[(ks, 0)] = self.tok(f"ds_read_b128 {vr(r,4)}, v4 offset:{o}")
            toks[(ks, 1)] = self.tok(f"ds_read_b128 {vr(r+4,4)}, v3 offset:{o + 32*TPITCH}")
        A0 = 136; A2 = 140
        for ks in range(8):
            r = F + 12*ks
            for b, acc in ((0, A0), (1, A2)):
                self.wait(toks[(ks, b)])
                e(f"v_mfma_f32_16x16x32_bf16 {vr(acc,4)}, {vr(r+4*b,4)}, {vr(r+8,4)}, {vr(acc,4) if ks else '0'}")
        e("s_barrier")
        if post_b2: post_b2()
        h1 = self.lab("kh1"); jn = self.lab("kj")
        e(f"s_bitcmp1_b32 s{S_WV}, 0\ns_cbranch_scc1 {h1}")
        def cv(d, lst):
            for i, (a, b) in enumerate(lst): e(f"v_cvt_pk_bf16_f32 v{d+i}, v{a}, v{b}")
        O = KODD - 4
        e("v_lshlrev_b32 v8, 3, v7\nv_sub_u32 v8, v6, v8")
        f0, f1, f2 = A2+1, A2+2, A2+3
        cv(52, [(f2, f2), (f2, f2), (f1, f1), (f1, f1), (f1, f1), (f1, f0), (f0, f0), (f0, f0)])
        e(f"ds_write_b128 v9, v[52:55] offset:{2*(2032-1024)}")
        cv(60, [(f2, f2), (f2, f2), (f2, f1), (f1, f1), (f1, f1), (f1, f1), (f0, f0), (f0, f0)])
        e(f"ds_write_b128 v9, v[56:59] offset:{2*(2032-1024)+16}")
        cv(48, [(A0+3, A0+2), (A0+1, A0), (A0+2, A0+1)])
        e(f"ds_write_b128 v9, v[60:63] offset:{2*(2032-1024) + O}")
        e(f"ds_write_b128 v9, v[64:67] offset:{2*(2032-1024) + O + 16}")
        e(f"ds_write_b64 v8, v[48:49] offset:{2*2044}")
        e(f"ds_write_b16 v8, v48 offset:{2*2044 + O + 2}")
        e(f"ds_write_b32 v8, v50 offset:{2*2044 + O + 4}")
        e(f"ds_write_b16_d16_hi v8, v49 offset:{2*2044 + O + 8}")
        e(f"s_branch {jn}")
        self.label(h1)
        e("v_lshlrev_b32 v8, 4, v7\nv_sub_u32 v8, v6, v8")
        E_ = lambda j: A0 + j if j < 4 else A2
        C = lambda lst: [(E_(a), E_(b)) for a, b in lst]
        cv(52, C([(4, 4), (3, 3), (3, 2), (2, 2), (2, 2), (1, 1), (1, 0), (0, 0)]))
        e("s_mov_b32 exec_lo, 0")
        e(f"ds_write_b128 v9, v[52:55] offset:{2*2032}\nds_write_b128 v9, v[56:59] offset:{2*2032+16}")
        e("s_mov_b32 exec_lo, -1")
        cv(60, C([(4, 4), (4, 3), (3, 3), (2, 2), (2, 2), (2, 1), (1, 1), (0, 0)]))
        e("s_mov_b32 exec_lo, 0")
        e(f"ds_write_b128 v9, v[60:63] offset:{2*2032 + O}\nds_write_b128 v9, v[64:67] offset:{2*2032 + O + 16}")
        e("s_mov_b32 exec_lo, -1")
        cv(40, C([(4, 3), (2, 2), (2, 1), (0, 0), (4, 4), (3, 2), (2, 2), (1, 0)]))
        e("s_mov_b32 exec_hi, 0")
        e(f"ds_write_b128 v8, v[40:43] offset:{2*(2040-256)}\nds_write_b128 v8, v[44:47] offset:{2*(2040-256) + O}")
        e(f"ds_write_b16 v8, v43 offset:{2*(2040-256) + O + 16}")
        e("s_mov_b32 exec_hi, -1")
        self.label(jn)

    def spin_check(self, retry_label, out_label=None):
        e = self.e
        e(f"s_sub_u32 s{S_SPIN}, s{S_SPIN}, 1")
        e(f"s_cmp_lg_u32 s{S_SPIN}, 0")
        e(f"s_cbranch_scc1 {retry_label}")
    def hbuild(self, after_first=None, mid=None):
        e = self.e
        e(f"s_lshl_b32 s{S_T0}, s{S_WV}, 12\nv_lshl_add_u32 v3, v1, 4, s{S_T0}")
        e("v_and_b32 v4, 3, v1")
        e(f"v_mul_u32_u24 v4, {3072*8}, v4")
        e("v_lshrrev_b32 v5, 3, v1")
        e("v_min_u32 v5, 5, v5")
        e("v_lshl_add_u32 v4, v5, 12, v4")
        e("v_bfe_u32 v6, v1, 2, 1")
        e("v_lshl_add_u32 v4, v6, 3, v4")
        e(f"s_lshl_b32 s{S_T0}, s{S_D0}, 3")
        e(f"s_add_u32 s{S_T0}, s{S_T0}, {WS_MODP}")
        e(f"s_mov_b32 s{S_T1}, {WS_ST1}")
        e(f"s_lshl_b32 s{S_T2}, s{S_D0}, 13\ns_add_u32 s{S_T2}, s{S_T2}, {hx(WS_XB)}")
        e(f"s_mov_b32 s{S_SPIN}, {self.cfg['spin']}")
        rt = self.lab("h0"); ok = self.lab("h0ok"); ck = self.lab("h0ck")
        def pl():
            self.tok(f"buffer_load_dwordx2 v[8:9], v4, s[{S_WS}:{S_WS+3}], s{S_T0} offen sc1")
            for i in range(4):
                t_ = self.tok(f"buffer_load_dwordx4 v[{40+4*i}:{43+4*i}], v3, s[{S_WS}:{S_WS+3}], s{S_T1} offen offset:{1024*i} sc1")
            for i in range(4):
                t_ = self.tok(f"buffer_load_dwordx4 v[{20+4*i}:{23+4*i}], v3, s[{S_WS}:{S_WS+3}], s{S_T2} offen offset:{1024*i} sc1")
            return t_
        if after_first:
            t_ = pl(); self.stamp(26); after_first(); self.wait(t_); self.stamp(25)
            e(f"s_branch {ck}")
            keep = self.p.take()
            self.label(rt); pl(); e("s_waitcnt vmcnt(0)"); e(f"s_branch {ck}")
            self.ool += self.p.take(); self.p.put(keep[:-1])
            self.label(ck)
        else:
            self.label(rt); pl(); e("s_waitcnt vmcnt(0)")
        e(f"v_mov_b32 v10, s{S_TAG}")
        if True: e("v_cmp_gt_u32 vcc, 24, v1\nv_cndmask_b32 v9, v10, v9, vcc")
        for i in range(8):
            e(f"v_min3_u32 v11, v{41+2*i}, v{21+2*i}, {'v11' if i else 'v9'}")
            e(f"v_max3_u32 v12, v{41+2*i}, v{21+2*i}, {'v12' if i else 'v9'}")
        e("v_xor_b32 v11, v11, v10\nv_xor_b32 v12, v12, v10\nv_or_b32 v7, v11, v12")
        e("v_cmp_ne_u32 vcc, 0, v7")
        e(f"s_cbranch_vccz {ok}")
        self.spin_check(rt)
        self.label(ok)
        self.stamp(4)
        if self.cfg.get("stamps"): e(f"s_sub_u32 s{S_ST}, {self.cfg['spin']+1}, s{S_SPIN}\nv_writelane_b32 v255, s{S_ST}, 50")
        e(f"s_mov_b32 s{S_EX}, s{S_T0}\nv_mov_b32 v237, v4")
        keep_ = self.p.take()
        e("v_add_f32_dpp v8, v8, v8 quad_perm:[1,0,3,2] row_mask:0xf bank_mask:0xf")
        for i in range(4): e(f"v_lshlrev_b32 v{64+i}, 16, v{40+2*i}")
        e("v_add_f32_dpp v8, v8, v8 quad_perm:[2,3,0,1] row_mask:0xf bank_mask:0xf")
        for i in range(4, 8): e(f"v_lshlrev_b32 v{64+i}, 16, v{40+2*i}")
        e("v_cvt_pk_bf16_f32 v8, v8, v8\nv_rcp_f32 v64, v64\nv_and_b32 v8, 0xffff0000, v8\nv_rcp_f32 v65, v65")
        e("v_add_f32 v9, 1.0, v8\nv_rcp_f32 v66, v66")
        e("v_cvt_pk_bf16_f32 v9, v9, v9\nv_rcp_f32 v67, v67\nv_and_b32 v9, 0xffff0000, v9")
        X = 72; Hh = 88; Z = 104
        for i in range(8):
            if i < 3:
                src = 9 if i in (1, 4) else 8
                e(f"v_readlane_b32 s{S_M+2*i}, v{src}, {8*i}")
                e(f"v_readlane_b32 s{S_M+2*i+1}, v{src}, {8*i+4}")
            if i >= 4: e(f"v_rcp_f32 v{64+i}, v{64+i}")
            e(f"v_and_b32 v{56+i}, 0xffff0000, v{40+2*i}")
            k_ = i >> 1; src_ = 20 + 4*k_ + 2*(i & 1); dst_ = X + 8*(k_ & 1) + 4*(k_ >> 1) + 2*(i & 1)
            e(f"v_lshlrev_b32 v{dst_}, 16, v{src_}")
            e(f"v_and_b32 v{dst_+1}, 0xffff0000, v{src_}")
        sa, sA, ga, sb, sB, gb = [S_M + 2*i for i in range(6)]
        e(f"v_mov_b32 v16, s{ga}\nv_mov_b32 v17, s{ga+1}")
        for k in range(8):
            e(f"v_pk_add_f32 {vr(Hh+2*k,2)}, {vr(X+2*k,2)}, {vr(56+2*(k&3),2)} neg_lo:[0,1] neg_hi:[0,1]")
        e(f"v_mul_f32 v10, s{sA}, v16\nv_mul_f32 v11, s{sA+1}, v17")
        e(f"v_mul_f32 v12, s{sa}, v16\nv_mul_f32 v13, s{sa+1}, v17")
        e(f"s_lshl_b32 s{S_T0}, s{S_DSK}, 16\ns_and_b32 s{S_T1}, s{S_DSK}, 0xffff0000")
        e(f"v_mov_b32 v14, s{S_T0}\nv_mov_b32 v15, s{S_T1}")
        for k in range(8):
            e(f"v_pk_mul_f32 {vr(Hh+2*k,2)}, {vr(Hh+2*k,2)}, {vr(64+2*(k&3),2)}")
        for k in range(8):
            c = k >> 2
            e(f"v_pk_fma_f32 {vr(Hh+2*k,2)}, {vr(Hh+2*k,2)}, v[10:11], v[12:13] op_sel:[0,{c},{c}] op_sel_hi:[1,{c},{c}]")
        for ch in range(2):
            for j in range(4):
                e(f"v_cvt_pk_bf16_f32 v{120+4*ch+j}, v{Hh+8*ch+2*j}, v{Hh+8*ch+2*j+1}")
            e(f"ds_write_b128 v183, v[{120+4*ch}:{123+4*ch}] offset:{HCH*ch}")
        for k in range(8):
            c = k >> 2
            e(f"v_pk_fma_f32 {vr(Z+2*k,2)}, {vr(Hh+2*k,2)}, v[14:15], {vr(X+2*k,2)} op_sel:[0,{c},0] op_sel_hi:[1,{c},1]")
            if k & 1: e(f"ds_write_b128 v184, {vr(Z+2*k-2,4)} offset:{8192*c + 16*((k>>1)&1)}")
        body_ = self.p.take()
        self.p.put(keep_ + spread(body_, [(0, c_) for c_ in (mid() if mid else [])]))
    def late_issue(self): return self.tok(f"buffer_load_dwordx2 v[238:239], v237, s[{S_WS}:{S_WS+3}], s{S_EX} offen sc1")
    def late_fin(self, tl):
        e = self.e
        self.wait(tl)
        self.guard("lt", lambda ex: e(f"v_cmp_ne_u32 vcc, s{S_TAG}, v239"), lambda: (self.late_issue(), e("s_waitcnt vmcnt(0)")))
        e("v_add_f32_dpp v238, v238, v238 quad_perm:[1,0,3,2] row_mask:0xf bank_mask:0xf")
        e("s_nop 1")
        e("v_add_f32_dpp v238, v238, v238 quad_perm:[2,3,0,1] row_mask:0xf bank_mask:0xf")
        e("v_cvt_pk_bf16_f32 v238, v238, v238\nv_and_b32 v238, 0xffff0000, v238\nv_add_f32 v239, 1.0, v238")
        e("v_cvt_pk_bf16_f32 v239, v239, v239\nv_and_b32 v239, 0xffff0000, v239\ns_nop 0")
        for i in (4, 5):
            src = 239 if i == 4 else 238
            e(f"v_readlane_b32 s{S_M+2*i}, v{src}, {8*i}\nv_readlane_b32 s{S_M+2*i+1}, v{src}, {8*i+4}")
    def modf_pub(self):
        e = self.e
        sa, sA, ga, sb, sB, gb = [S_M + 2*i for i in range(6)]
        nm = self.lab("nomodf")
        e(f"s_cmp_lg_u32 s{S_WV}, 0")
        e(f"s_cbranch_scc1 {nm}")
        e(f"v_mov_b32 v20, 0\nv_mov_b32 v21, s{S_TAG}\nv_mov_b32 v22, s{gb}\nv_mov_b32 v23, s{S_TAG}")
        e(f"v_writelane_b32 v22, s{gb+1}, 1")
        e("v_lshlrev_b32 v19, 4, v1")
        e(f"s_lshl_b32 s{S_T0}, s{S_D0}, 4\ns_add_u32 s{S_T0}, s{S_T0}, {WS_MODF}")
        e("s_mov_b64 exec, 3")
        self.p.nc(f"buffer_store_dwordx4 v[20:23], v19, s[{S_WS}:{S_WS+3}], s{S_T0} offen sc1")
        e("s_mov_b64 exec, -1")
        self.label(nm)
    def conv_setup(self):
        e = self.e
        e(f"s_lshr_b32 s{S_CH}, s{S_WV}, 1")
        e(f"s_and_b32 s{S_PAR}, s{S_WV}, 1")
        e("v_and_b32 v176, 15, v1\nv_lshrrev_b32 v177, 4, v1")
        e("v_lshlrev_b32 v178, 3, v177")
        e("v_sub_u32 v178, v178, v176")
        e("v_add_u32 v178, 2031, v178")
        e("v_lshrrev_b32 v178, 1, v178")
        e("v_and_b32 v179, 1, v1\nv_xor_b32 v179, 1, v179")
        e(f"v_mul_u32_u24 v179, {KODD}, v179")
        e("v_lshl_add_u32 v178, v178, 2, v179")
        e(f"s_mul_i32 s{S_T0}, s{S_CH}, {KCH}")
        e(f"s_lshl_b32 s{S_T1}, s{S_PAR}, 8")
        e(f"s_sub_u32 s{S_T0}, s{S_T0}, s{S_T1}")
        e(f"s_add_u32 s{S_T0}, s{S_T0}, {L_K - 192 - 512}")
        for j in range(4):
            e(f"v_add_u32 v{168+j}, s{S_T0}, v178")
            if j < 3: e(f"s_sub_u32 s{S_T0}, s{S_T0}, 1024")
        e("v_lshlrev_b32 v178, 5, v176")
        e("v_lshl_add_u32 v178, v177, 4, v178")
        e(f"s_mul_i32 s{S_T0}, s{S_CH}, {HCH}")
        e(f"s_sub_u32 s{S_T0}, s{S_T0}, s{S_T1}")
        e(f"s_add_u32 s{S_T0}, s{S_T0}, {L_HI + 480 - 192}")
        e(f"v_add_u32 v172, s{S_T0}, v178")
        e("v_lshl_add_u32 v178, v176, 5, v178")
        e(f"s_lshl_b32 s{S_T0}, s{S_CH}, 13")
        e(f"s_lshl_b32 s{S_T1}, s{S_PAR}, 12")
        e(f"s_add_u32 s{S_T0}, s{S_T0}, s{S_T1}")
        e(f"s_add_u32 s{S_T0}, s{S_T0}, {L_Z}")
        e(f"v_add_u32 v173, s{S_T0}, v178")
        e(f"s_lshl_b32 s{S_T0}, s{S_WV}, 12\ns_add_u32 s{S_T0}, s{S_T0}, {L_Z}\nv_lshl_add_u32 v180, v1, 4, s{S_T0}")
        e(f"s_xor_b32 s{S_T1}, s{S_WV}, 1\ns_lshl_b32 s{S_T1}, s{S_T1}, 12\ns_add_u32 s{S_T1}, s{S_T1}, {L_Z}\nv_lshl_add_u32 v181, v1, 4, s{S_T1}")
        e("v_and_b32 v176, 15, v1\nv_lshrrev_b32 v177, 4, v1")
        e("v_lshrrev_b32 v182, 1, v176\nv_and_b32 v179, 1, v177\nv_lshl_add_u32 v182, v179, 3, v182\nv_lshlrev_b32 v182, 15, v182")
        e("v_and_b32 v176, 1, v176\nv_lshl_add_u32 v182, v176, 5, v182\nv_lshrrev_b32 v177, 1, v177\nv_lshl_add_u32 v182, v177, 4, v182")
        e(f"s_add_u32 s27, s{S_D0}, s{S_CH}\ns_lshl_b32 s27, s27, 6\ns_lshl_b32 s28, s{S_PAR}, 20\ns_add_u32 s27, s27, s28")
        e(f"s_add_u32 s28, s27, {hx(WS_X1S)}\ns_add_u32 s27, s27, {hx(WS_X1)}\ns_add_u32 s29, s27, {hx(16*32768)}\ns_add_u32 s30, s28, {hx(16*32768)}")
        e(f"v_lshlrev_b32 v183, 4, v0\nv_add_u32 v183, {L_HI + 512}, v183\nv_lshlrev_b32 v184, 5, v0\nv_add_u32 v184, {L_Z}, v184")
        e("v_mov_b32 v248, -1\nv_mov_b32 v249, -1\nv_mov_b32 v250, -1\nv_mov_b32 v251, -1")
        e("v_lshrrev_b32 v252, 3, v0\nv_lshlrev_b32 v252, 15, v252\nv_and_b32 v176, 7, v0\nv_lshl_add_u32 v252, v176, 4, v252")
        e(f"s_lshl_b32 s31, s{S_D0}, 6\nv_lshlrev_b32 v236, 4, v0\nv_mov_b32 v199, 0")
        e(f"s_lshl_b32 s32, s{S_D0}, 5\ns_cmp_lg_u32 s{S_WV}, 0\ns_cselect_b32 s32, 0x7f000000, s32")
    def conv(self, fillers=None, pre_start=None, pre_bar=None, post_bar=None):
        e = self.e
        ACC = 4
        FA = [40, 104]; FB = [72, 136]
        if pre_start: pre_start()
        e("s_waitcnt lgkmcnt(0)")
        e("s_barrier")
        self.stamp(5)
        p1 = self.lab("cp1"); jn = self.lab("cj")
        e(f"s_cmp_lg_u32 s{S_PAR}, 0")
        e(f"s_cbranch_scc1 {p1}")
        for par in range(2):
            for c in range(4):
                r = ACC + 4 * (4*par + c)
                e(f"ds_read_b128 v[{r}:{r+3}], v173 offset:{1024*c}")
            for r in range(16): e(f"v_mov_b32 v{ACC + 16*(1-par) + r}, 0")
            if par == 0:
                e(f"s_branch {jn}"); self.label(p1)
        self.label(jn)
        def loads(it):
            s = it & 1; L = []; o = 16 * (3 - it)
            tk = {}
            for k in range(8):
                tk[("B", k)] = self.tok(f"ds_read_b128 {vr(FB[s]+4*k,4)}, v172 offset:{512*k + 64*(3-it)}")
                b = 168 + (k >> 1); oo = o + (0 if k & 1 else 128)
                self.tok(f"ds_read2_b32 {vr(FA[s]+4*k,2)}, v{b} offset0:{oo} offset1:{oo+1}")
                tk[("A", k)] = self.tok(f"ds_read2_b32 {vr(FA[s]+4*k+2,2)}, v{b} offset0:{oo+2} offset1:{oo+3}")
            return tk
        pre = self.p.take()
        tks = [None] * 4
        tks[0] = loads(0)
        main = self.p.take()
        carry = []
        for it in range(4):
            nxt = []
            if it < 3:
                tks[it+1] = loads(it+1); nxt = self.p.take()
            s = it & 1
            order = sorted([(u, v) for u in range(8) for v in range(8 - u)], key=lambda t: (max(t), t[0]))
            seen = set(); k = 0
            for (u, v) in order:
                need = [t for t in (("A", u), ("B", v)) if t not in seen]
                if need:
                    self.wait(*[tks[it][t] for t in need]); seen |= set(need)
                cb = u + v
                e(f"v_mfma_f32_16x16x32_bf16 {vr(ACC+4*cb,4)}, {vr(FA[s]+4*u,4)}, {vr(FB[s]+4*v,4)}, {vr(ACC+4*cb,4)}")
                if nxt and ((it > 0 and (k % 3 != 2 or len(nxt) >= 35 - k)) or (it == 0 and k >= 10)):
                    self.p.put([nxt.pop(0)])
                k += 1
            self.p.put(nxt)
            seg = self.p.take()
            if it == 0: seg = main + seg; main = []
            carry = carry + (fillers.get(it, []) if fillers else [])
            seg, carry = merge(seg, carry, 8, pace=self.cfg["cpace"])
            if it in self.cfg.get('cflush', ()): seg += carry; carry = []
            main += seg
        self.p.put(pre + main)
        self.conv_left = carry
        self.stamp(6)
        if pre_bar: pre_bar()
        p1 = self.lab("ep1"); jn = self.lab("ej")
        e(f"s_cmp_lg_u32 s{S_PAR}, 0")
        e(f"s_cbranch_scc1 {p1}")
        for par in range(2):
            e("s_nop 7")
            for c in range(4):
                r = ACC + 4 * (4*(1-par) + c)
                e(f"ds_write_b128 v180, {vr(r,4)} offset:{1024*c}")
            e("s_waitcnt lgkmcnt(0)")
            e("s_barrier")
            for c in range(4): e(f"ds_read_b128 {vr(40+4*c,4)}, v181 offset:{1024*c}")
            for c in range(4):
                e(f"s_waitcnt lgkmcnt({3-c})")
                r = ACC + 4 * (4*par + c)
                e(f"v_pk_add_f32 {vr(40+4*c,2)}, {vr(40+4*c,2)}, {vr(r,2)}")
                e(f"v_pk_add_f32 {vr(42+4*c,2)}, {vr(42+4*c,2)}, {vr(r+2,2)}")
            if par == 0:
                e(f"s_branch {jn}"); self.label(p1)
        self.label(jn)
        sB = S_M + 8
        e(f"s_cmp_eq_u32 s{S_CH}, 0")
        e(f"s_cselect_b32 s{S_T0}, s{sB}, s{sB+1}")
        e(f"v_mov_b32 v38, s{S_T0}\nv_mov_b32 v39, s{S_T0}")
        if post_bar: post_bar()
        for pr in range(2):
            a = 40 + 8*pr
            d = 60 + 8*pr
            for h in range(4): e(f"v_pk_mul_f32 {vr(76+2*h,2)}, {vr(a+2*h,2)}, v[38:39]")
            for h in range(4): e(f"v_cvt_pk_bf16_f32 v{d+h}, v{76+2*h}, v{77+2*h}")
            for h in range(4): e(f"v_cvt_pk_bf16_f32 v{d+4+h}, v{a+2*h}, v{a+2*h+1}")
            e(f"v_permlane16_swap_b32 v{d}, v{d+2}\nv_permlane16_swap_b32 v{d+1}, v{d+3}")
            e(f"buffer_store_dwordx4 {vr(d,4)}, v182, s[{S_WS}:{S_WS+3}], s{28 + 2*pr} offen sc1")
            e(f"v_permlane16_swap_b32 v{d+4}, v{d+6}\nv_permlane16_swap_b32 v{d+5}, v{d+7}")
            self.x1st = self.tok(f"buffer_store_dwordx4 {vr(d+4,4)}, v182, s[{S_WS}:{S_WS+3}], s{27 + 2*pr} offen sc1")
        self.stamp(7)
    def g1_map(self):
        e = self.e
        if self.cfg["map8"]:
            e(f"s_lshr_b32 s{S_T0}, s{S_XCD}, 1\ns_mul_i32 s{S_T0}, s{S_T0}, 28\ns_add_u32 s{S_T0}, s{S_T0}, s{S_IDX}")
            e(f"s_and_b32 s{S_G1}, s{S_XCD}, 1\ns_lshl_b32 s{S_G1}, s{S_G1}, 3\ns_and_b32 s{S_G2}, s{S_T0}, 7\ns_add_u32 s{S_G1}, s{S_G1}, s{S_G2}")
            e(f"s_lshr_b32 s{S_G2}, s{S_T0}, 3")
        else:
            e(f"s_lshr_b32 s{S_G1}, s{S_XCD}, 1\ns_lshl_b32 s{S_G1}, s{S_G1}, 2")
            e(f"s_and_b32 s{S_T0}, s{S_IDX}, 3\ns_add_u32 s{S_G1}, s{S_G1}, s{S_T0}")
            e(f"s_and_b32 s{S_G2}, s{S_XCD}, 1\ns_mul_i32 s{S_G2}, s{S_G2}, 7")
            e(f"s_lshr_b32 s{S_T0}, s{S_IDX}, 2\ns_add_u32 s{S_G2}, s{S_G2}, s{S_T0}")
        e(f"s_lshl_b32 s15, s{S_XCD}, 2\ns_add_u32 s15, s15, s{S_IDX}\ns_sub_u32 s15, s15, 28")
        e(f"s_lshr_b32 s14, s15, 1\ns_and_b32 s13, s15, 1\ns_cmp_ge_u32 s{S_IDX}, 28")
        e(f"s_cselect_b32 s{S_G2}, s14, s{S_G2}\ns_cselect_b32 s{S_G1}, 0, s{S_G1}\ns_cselect_b32 s{S_G3}, s13, 0\ns_cselect_b32 s15, s15, 0")
        e(f"s_cmp_ge_u32 s15, 28\ns_cselect_b32 s10, 0, {hx(1835008)}\ns_mov_b32 s11, 0x20000")
        e(f"s_lshl_b32 s{S_G2}, s{S_G2}, 7")
        e(f"s_lshl_b32 s{S_T0}, s{S_WV}, 5\ns_add_u32 s{S_G2}, s{S_G2}, s{S_T0}")
    AX = 176
    BX = 184
    def g1_fold(self, g, acc):
        for t in range(2):
            self.e(f"v_mfma_f32_32x32x16_bf16 {vr(acc+16*t,16)}, {vr(self.AX+4*t,4)}, {vr(self.BX+4*g,4)}, {vr(acc+16*t,16)}")
    def g1_epilogue(self, g, acc, stat, split=False):
        e = self.e
        save = self.p.take()
        T = 148
        rG, kD = stat, stat+1
        for t in range(2):
            for half in range(2):
                regs = [4*half + j for j in range(4)]
                gq = [T + 8*half + j for j in range(4)]; q = [T + 8*half + 4 + j for j in range(4)]
                for j, r in enumerate(regs): e(f"v_mul_f32 v{gq[j]}, v{rG}, v{acc+16*t+r}")
                for j in range(4): e(f"v_fma_f32 v{q[j]}, -v{gq[j]}, v{gq[j]}, s{S_T3}")
                for j in range(4): e(f"v_mul_f32 v{q[j]}, v{gq[j]}, v{q[j]}")
                for j, r in enumerate(regs):
                    e(f"v_exp_f32 v{q[j]}, v{q[j]}")
                    e(f"v_mul_f32 v{gq[j]}, v{gq[j]}, v{acc+16*t+8+r}")
                for j in range(4): e(f"v_fma_f32 v{q[j]}, v{q[j]}, v{kD}, v{kD}")
                for j in range(4): e(f"v_rcp_f32 v{q[j]}, v{q[j]}")
                for j in range(4): e(f"v_mul_f32 v{gq[j]}, v{gq[j]}, v{q[j]}")
                e(f"v_cvt_pk_bf16_f32 v{172+2*half}, v{gq[0]}, v{gq[1]}")
                e(f"v_cvt_pk_bf16_f32 v{173+2*half}, v{gq[2]}, v{gq[3]}")
            e(f"s_add_u32 s101, s{S_T2}, {g*112*1024 + t*1024}")
            tk_ = self.tok(f"buffer_store_dwordx4 v[172:175], v147, s[{S_WS}:{S_WS+3}], s101 offen sc1")
        self.htok[g] = tk_
        out = self.p.take(); self.p.put(save)
        if split: return out[:len(out)//2], out[len(out)//2:]
        return out
    def g2_map(self):
        e = self.e
        e(f"s_lshl_b32 s{S_G1}, s{S_XCD}, 1\ns_bfe_u32 s44, s{S_IDX}, 0x10004\ns_add_u32 s{S_G1}, s{S_G1}, s44")
        e(f"s_lshl_b32 s{S_G1}, s{S_G1}, 2")
        e(f"s_bfe_u32 s44, s{S_IDX}, 0x10003")
        e(f"s_sub_u32 s{S_G2}, s{S_G1}, s44\ns_add_u32 s{S_G2}, s{S_G2}, 3")
        e(f"s_add_u32 s{S_G1}, s{S_G1}, s44")
        e(f"s_and_b32 s{S_G3}, s{S_IDX}, 7")
    XT = lambda self, g: (3 - g) * 32768
    S_HB = 81
    def x1s_issue(self, g):
        t = None
        for j in range(8):
            if j % 4 == 0:
                self.e(f"s_add_u32 m0, s{S_T1}, {self.XT(g) + j*1024}")
                self.e(f"s_add_u32 s13, s{S_T0}, {g*32768 + j*1024}")
            t = self.tok(f"buffer_load_dwordx4 v147, s[{S_WS}:{S_WS+3}], s13 offen offset:{(j%4)*1024} sc1 lds")
        return t
    def x1s_check(self, g, T, explicit=False):
        e = self.e
        ad = 146 if self.XT(g) < 65536 else 143
        tk = [self.tok(f"ds_read_b32 v{T+j}, v{ad} offset:{self.XT(g) % 65536 + j*1024}") for j in range(8)]
        if explicit: e("s_waitcnt lgkmcnt(0)")
        else: self.wait(tk[7])
        e(f"v_max3_u32 v{T}, v{T}, v{T+1}, v{T+2}\nv_max3_u32 v{T+3}, v{T+3}, v{T+4}, v{T+5}\nv_max3_u32 v{T}, v{T}, v{T+6}, v{T+7}\nv_max_u32 v{T}, v{T}, v{T+3}")
        e(f"v_cmp_eq_u32 vcc, -1, v{T}")
    def x1s_guard(self, g, T, tok):
        e = self.e
        rt = self.lab("xr"); lp = self.lab("xl"); bk = self.lab("xb")
        self.wait(tok)
        self.x1s_check(g, T)
        e(f"s_cbranch_vccnz {rt}")
        self.label(bk)
        def rout():
            self.label(rt)
            e(f"s_mov_b32 s{S_SPIN}, {self.cfg['spin']}")
            if self.cfg.get("stamps"): e(f"v_writelane_b32 v255, 1, {46 + g}")
            self.label(lp)
            self.x1s_issue(g)
            e("s_waitcnt vmcnt(0) lgkmcnt(0)")
            self.x1s_check(g, T, explicit=True)
            e("s_nop 1")
            e(f"s_cbranch_vccz {bk}")
            self.spin_check(lp)
            e(f"s_branch {bk}")
        o, _ = self.capture(rout); self.ool += o
    def modf_issue(self):
        t = None
        for v in range(2):
            for kq in range(4):
                self.e(f"s_mov_b32 s47, {WS_MODP + (kq*3072 + (3+v)*512)*8}")
                t = self.tok(f"buffer_load_dwordx4 {vr(200 + 16*v + 4*kq, 4)}, v236, s[{S_WS}:{S_WS+3}], s47 offen sc1")
        return t
    def xfill(self):
        e = self.e; t = None
        for base in (WS_X1S, WS_X1S + 32*32768, WS_X1, WS_X1 + 32*32768):
            e(f"s_add_u32 s101, s31, {hx(base)}")
            t = self.tok(f"buffer_store_dwordx4 v[248:251], v252, s[{S_WS}:{S_WS+3}], s101 offen sc1")
        return t
    def hfill(self):
        e = self.e
        e("v_mov_b32 v248, -1\nv_mov_b32 v249, -1\nv_mov_b32 v250, -1\nv_mov_b32 v251, -1")
        for g in (2, 3):
            e(f"s_add_u32 s101, s{self.S_HB}, {g*112*1024}")
            self.tok(f"buffer_store_dwordx4 v[248:251], v147, s[{S_WS}:{S_WS+3}], s101 offen sc1")
            self.tok(f"buffer_store_dwordx4 v[248:251], v147, s[{S_WS}:{S_WS+3}], s101 offen offset:1024 sc1")
    S_HF = 35
    def gate_pub(self, base=WS_FL1):
        self.e(f"s_add_u32 s101, s32, {base}")
        self.e(f"buffer_store_dword v253, v199, s[{S_WS}:{S_WS+3}], s101 offen sc1")
    S_FB = 3
    def hbase(self):
        e = self.e
        e(f"s_mul_i32 s{self.S_HB}, s{S_G1}, {4*112*1024}")
        e(f"s_lshl_b32 s101, s{S_G2}, 6")
        e(f"s_add_u32 s{self.S_HB}, s{self.S_HB}, s101")
        e(f"s_add_u32 s{self.S_HB}, s{self.S_HB}, {hx(WS_H)}")
        e(f"s_mul_i32 s{self.S_FB}, s{S_G1}, {4*56*64}")
        e(f"s_lshl_b32 s101, s{S_G2}, 1")
        e(f"s_add_u32 s{self.S_FB}, s{self.S_FB}, s101")
        e(f"s_add_u32 s{self.S_FB}, s{self.S_FB}, {WS_FL2}")
        e(f"s_cmp_ge_u32 s{S_IDX}, 28")
        e(f"s_cselect_b32 s{self.S_FB}, 0x7f000000, s{self.S_FB}")
    def hflag(self, g, vz, vt):
        self.wait(self.htok[g])
        self.e(f"s_add_u32 s101, s{self.S_FB}, {g*56*64}")
        self.e(f"buffer_store_dword v{vt}, v{vz}, s[{S_WS}:{S_WS+3}], s101 offen sc1")
    def capture(self, fn):
        keep = self.p.take(); r = fn(); out = self.p.take(); self.p.put(keep); return out, r
    def cap(self, fn): return self.capture(fn)[0]
    def guard(self, name, chk, reissue, cond="vccnz"):
        e = self.e
        rt = self.lab(name + "r"); lp = self.lab(name + "l"); bk = self.lab(name + "b")
        chk(False)
        e(f"s_cbranch_vccnz {rt}")
        self.label(bk)
        def rout():
            self.label(rt); e(f"s_mov_b32 s{S_SPIN}, {self.cfg['spin']}")
            if self.cfg.get("stamps"): e(f"v_writelane_b32 v255, 1, {52 + ['mf', 'gt', 'st', 'f0', 'lt', 'g2', 'fa', 'hc', 'rs'].index(name)}")
            self.label(lp)
            reissue(); chk(True); e("s_nop 1")
            e(f"s_cbranch_vccz {bk}"); self.spin_check(lp); e(f"s_branch {bk}")
        self.ool += self.cap(rout)

    def p0_issue(self):
        e = self.e; T = self.T = {}
        e(f"s_mov_b32 s{S_X}, s{P_X}\ns_mov_b32 s{S_X+1}, s{P_X+1}")
        self.tok(f"buffer_load_dwordx4 v[10:13], v9, s[{S_X}:{S_X+3}], s{S_T0} offen")
        T["xr"] = self.tok(f"buffer_load_dwordx4 v[14:17], v9, s[{S_X}:{S_X+3}], s{S_T0} offen offset:1024")
        self.tok(f"buffer_load_dwordx4 v3, s[{S_X}:{S_X+3}], s{S_T3} offen lds")
        T["xt"] = self.tok(f"buffer_load_dwordx4 v6, s[{S_X}:{S_X+3}], s{S_T3} offen offset:1024 lds")
        for i in range(6): T["ssm"] = self.tok(f"global_load_ushort v{18+i}, v8, s[{P_ARE+2*i}:{P_ARE+2*i+1}]")
        e(f"s_load_dword s{S_E}, s[{P_WS}:{P_WS+1}], 0")
        e(f"s_lshl_b32 s{S_T0}, s{S_D0}, 1")
        e(f"s_load_dword s{S_LDT}, s[{P_LDT}:{P_LDT+1}], s{S_T0}")
        e(f"s_load_dword s{S_DSK}, s[{P_DSK}:{P_DSK+1}], s{S_T0}")
        e(f"s_mov_b32 s{S_WM}, s{P_WM}\ns_mov_b32 s{S_WM+1}, s{P_WM+1}")
        e(f"s_cmp_ge_u32 s{S_M+1}, {24 if self.cfg['split'] else 99}\ns_cselect_b32 s{S_M+4}, 1, 0\ns_cmp_ge_u32 s2, 192\ns_cselect_b32 s{S_M+4}, 2, s{S_M+4}")
        T["c"] = self.tok(f"global_load_dword v186, v7, s[{P_C}:{P_C+1}]")
        self.wm_issue(0)
        e(f"s_bitcmp1_b32 s{S_WV}, 0\ns_cselect_b32 s8, s{P_WU}, s{P_WG}\ns_cselect_b32 s9, s{P_WU+1}, s{P_WG+1}")
        if self.cfg["touch"] == 4: self.touch_w()
    def wm_issue(self, which):
        e = self.e
        sk = self.lab("wm")
        e(f"s_cmp_lg_u32 s{S_M+4}, {which}\ns_cbranch_scc1 {sk}")
        e(f"s_lshl_b32 s{S_T1}, s{S_WV}, 12")
        for j in range(4):
            e(f"s_add_u32 m0, s{S_T1}, {L_MOD + 1024*j}")
            e(f"s_add_u32 s101, s{S_M+2}, {j*8*6144}")
            self.T["wm%d" % which] = self.tok(f"buffer_load_dwordx4 v33, s[{S_WM}:{S_WM+3}], s101 offen lds")
        jn = self.lab("wmj")
        self.label(jn)
        def alt():
            self.label(sk)
            for j in range(4): e(f"global_load_dword v32, v9, s[{P_C}:{P_C+1}]")
            e(f"s_branch {jn}")
        self.ool += self.cap(alt)

    def p0_stats(self):
        e = self.e
        e("v_mov_b32 v3, 0x3f803f80")
        self.wait(self.T["xr"])
        for i in range(4):
            c = lambda r: (f"v{r}" if i else "0")
            e(f"v_dot2_f32_bf16 v4, v{10+i}, v3, {c(4)}")
            e(f"v_dot2_f32_bf16 v5, v{10+i}, v{10+i}, {c(5)}")
            e(f"v_dot2_f32_bf16 v6, v{14+i}, v3, {c(6)}")
            e(f"v_dot2_f32_bf16 v7, v{14+i}, v{14+i}, {c(7)}")
        self.reduce16([4, 5, 6, 7])
        e("v_permlane16_swap_b32 v4, v5\nv_permlane16_swap_b32 v6, v7")
        e("v_add_f32 v4, v4, v5\nv_add_f32 v6, v6, v7")
        e("v_permlane32_swap_b32 v4, v6")
        e("v_add_f32 v4, v4, v6")
        e("v_mov_b32 v5, v4")
        e("v_permlane16_swap_b32 v4, v5")
        self.stat_finish(4, 5, 6, 7)
        e(f"v_mov_b32 v5, s{S_TAG}")
        e("v_lshrrev_b32 v6, 2, v1")
        e(f"s_lshr_b32 s{S_T0}, s2, 6\ns_lshl_b32 s{S_T0}, s{S_T0}, 2\ns_add_u32 s{S_T0}, s{S_T0}, s{S_WV}\ns_lshl_b32 s{S_T0}, s{S_T0}, 10")
        e(f"s_and_b32 s{S_T1}, s2, 63\ns_lshl_b32 s{S_T1}, s{S_T1}, 4\ns_add_u32 s{S_T0}, s{S_T0}, s{S_T1}\ns_add_u32 s{S_T0}, s{S_T0}, {WS_ST1}")
        e("s_mov_b32 exec_lo, 1\ns_mov_b32 exec_hi, 1")
        e(f"buffer_store_dwordx2 v[4:5], v6, s[{S_WS}:{S_WS+3}], s{S_T0} offen sc1")
        e("s_mov_b64 exec, -1")

    def p0_xb(self):
        e = self.e
        e("v_lshrrev_b32 v187, 2, v1\nv_lshlrev_b32 v187, 7, v187\nv_and_b32 v4, 3, v1\nv_lshl_add_u32 v187, v4, 3, v187")
        e("v_lshrrev_b32 v5, 4, v1\nv_lshlrev_b32 v3, 11, v5")
        e("v_bfe_u32 v4, v1, 1, 1\nv_lshl_add_u32 v3, v4, 10, v3")
        e("v_bfe_u32 v4, v1, 2, 2\nv_lshl_add_u32 v3, v4, 7, v3")
        e("v_and_b32 v4, 1, v1\nv_lshl_add_u32 v3, v4, 3, v3")
        e(f"s_lshl_b32 s{S_T1}, s{S_WV}, 5\ns_add_u32 s{S_T1}, s{S_T1}, {L_XT}\nv_add_u32 v188, s{S_T1}, v3")
        e("v_lshlrev_b32 v4, 10, v4\nv_lshl_add_u32 v4, v5, 5, v4")
        e("v_bfe_u32 v5, v1, 3, 1\nv_lshl_add_u32 v4, v5, 4, v4")
        e("v_bfe_u32 v5, v1, 1, 2\nv_lshl_add_u32 v189, v5, 14, v4")
        e(f"s_lshl_b32 s{S_T0}, s{S_XCD}, 19\ns_lshl_b32 s{S_T1}, s{S_WV}, 17\ns_add_u32 s{S_T0}, s{S_T0}, s{S_T1}")
        e(f"s_lshr_b32 s{S_T1}, s{S_IDX}, 3\ns_lshl_b32 s{S_T1}, s{S_T1}, 12\ns_add_u32 s{S_T0}, s{S_T0}, s{S_T1}")
        e(f"s_and_b32 s{S_T1}, s{S_IDX}, 7\ns_lshl_b32 s{S_T1}, s{S_T1}, 7\ns_add_u32 s{S_T0}, s{S_T0}, s{S_T1}\ns_add_u32 s46, s{S_T0}, {hx(WS_XB)}")
        e(f"s_add_u32 s47, s46, 0x10000")
    def p0_xb2(self):
        e = self.e
        for i in range(4): e(f"v_mov_b32 v{39+4*i}, s{S_TAG}")
        self.wait(self.T["xt"])
        e("s_barrier")
        tk = [self.tok(f"ds_read_b64_tr_b16 v[{36+4*k}:{37+4*k}], v188 offset:{512*(k&1) + 16*(k>>1)}") for k in range(4)]
        for k in range(4):
            self.wait(tk[k])
            e(f"v_mov_b32 v{38+4*k}, v{37+4*k}\nv_mov_b32 v{37+4*k}, s{S_TAG}")
            e(f"buffer_store_dwordx4 v[{36+4*k}:{39+4*k}], v189, s[{S_WS}:{S_WS+3}], s{46 + (k>>1)} offen offset:{2048*(k&1)} sc1")

    def p0_mod(self, which, nyoung, base=52):
        e = self.e
        skip = self.lab("nomod2")
        e(f"s_cmp_lg_u32 s{S_M+4}, {which}\ns_cbranch_scc1 {skip}")
        e("v_lshlrev_b32 v56, 16, v186\nv_and_b32 v57, 0xffff0000, v186")
        e(f"v_mul_f32 v58, {fl(-LOG2E)}, v56\nv_mul_f32 v59, {fl(-LOG2E)}, v57")
        e("v_exp_f32 v58, v58\nv_exp_f32 v59, v59")
        e("v_add_f32 v58, 1.0, v58\nv_add_f32 v59, 1.0, v59")
        e("v_rcp_f32 v58, v58\nv_rcp_f32 v59, v59")
        e("v_mul_f32 v56, v56, v58\nv_mul_f32 v57, v57, v59")
        e("v_cvt_pk_bf16_f32 v56, v56, v57")
        e(f"s_lshl_b32 s44, s{S_WV}, 8\ns_add_u32 s44, s44, {L_MOD + 16384}")
        e(f"v_lshl_add_u32 v57, v1, 2, s44")
        e("ds_write_b32 v57, v56")
        e("v_lshrrev_b32 v58, 4, v1")
        e(f"v_lshl_add_u32 v57, v58, 4, s44")
        e("v_lshl_add_u32 v59, v58, 9, v187")
        e(f"s_lshl_b32 s45, s{S_WV}, 5\ns_add_u32 s45, s45, {L_MOD}")
        e(f"v_add_u32 v59, s45, v59")
        self.p.wait_nt(self.T["wm%d" % which])
        e("s_waitcnt lgkmcnt(0)\ns_barrier")
        for ks in range(4):
            e(f"ds_read_b128 v[{60+8*ks}:{63+8*ks}], v57 offset:{64*ks}")
            e(f"ds_read_b64_tr_b16 v[{64+8*ks}:{65+8*ks}], v59 offset:{4096*ks}")
            e(f"ds_read_b64_tr_b16 v[{66+8*ks}:{67+8*ks}], v59 offset:{4096*ks+512}")
        e(f"s_mul_i32 s44, s{S_M}, {3072*8}\ns_lshl_b32 s45, s{S_M+1}, 9\ns_add_u32 s44, s44, s45")
        e(f"s_lshl_b32 s45, s{S_WV}, 7\ns_add_u32 s44, s44, s45\ns_add_u32 s44, s44, {WS_MODP}")
        e("v_lshlrev_b32 v59, 3, v1")
        for ks in range(4):
            e(f"s_waitcnt lgkmcnt({9-3*ks})")
            e(f"v_mfma_f32_16x16x32_bf16 v[92:95], v[{60+8*ks}:{63+8*ks}], v[{64+8*ks}:{67+8*ks}], {'v[92:95]' if ks else '0'}")
        e("s_barrier")
        e(f"v_mov_b32 v93, s{S_TAG}")
        e("s_mov_b64 exec, 0xffff")
        self.p.nc(f"buffer_store_dwordx2 v[92:93], v59, s[{S_WS}:{S_WS+3}], s44 offen sc1")
        e("s_mov_b64 exec, -1")
        self.label(skip)

    def touch_w(self):
        e = self.e
        e(f"s_lshr_b32 s{S_T0}, s{S_WV}, 1\ns_lshl_b32 s{S_T1}, s2, 1\ns_add_u32 s{S_T0}, s{S_T0}, s{S_T1}\ns_mul_i32 s{S_T0}, s{S_T0}, {28*128}")
        e(f"v_min_u32 v3, 27, v1\nv_lshlrev_b32 v3, 7, v3\nv_add_u32 v3, s{S_T0}, v3")
        e("global_load_dword v198, v3, s[8:9]")
    def touch_wd(self, mode):
        e = self.e
        if mode == 1:
            e(f"s_sub_u32 s{S_T0}, s2, 192\ns_lshl_b32 s{S_T0}, s{S_T0}, 2\ns_add_u32 s{S_T0}, s{S_T0}, s{S_WV}\ns_mul_i32 s{S_T0}, s{S_T0}, {56*128}")
            e(f"s_cmp_lt_u32 s2, 192\ns_cselect_b32 s{S_T0}, 0x7f000000, s{S_T0}")
            e("v_min_u32 v197, 55, v1\nv_lshlrev_b32 v197, 7, v197")
        else:
            e(f"s_lshl_b32 s{S_T0}, s2, 2\ns_add_u32 s{S_T0}, s{S_T0}, s{S_WV}\ns_mul_i32 s{S_T0}, s{S_T0}, {14*128}")
            e("v_min_u32 v197, 13, v1\nv_lshlrev_b32 v197, 7, v197")
        e(f"buffer_load_dword v198, v197, s[{S_WD}:{S_WD+3}], s{S_T0} offen")

    def touch_wdx(self):
        e = self.e
        e(f"s_lshl_b32 s47, s{S_IDX}, 2\ns_add_u32 s47, s47, s{S_WV}\ns_mul_i32 s47, s47, {112*128}")
        e("v_min_u32 v138, 55, v1\nv_lshlrev_b32 v138, 7, v138")
        e(f"buffer_load_dword v139, v138, s[{S_WD}:{S_WD+3}], s47 offen")
        e(f"s_add_u32 s47, s47, {56*128}")
        e(f"buffer_load_dword v139, v138, s[{S_WD}:{S_WD+3}], s47 offen")

    def w_setup(self):
        e = self.e
        e("v_lshrrev_b32 v241, 4, v1\nv_mul_u32_u24 v240, 3584, v241")
        e(f"s_and_b32 s13, s{S_WV}, 1\nv_lshl_add_u32 v241, v241, 1, s13")
        e("v_bfe_u32 v242, v1, 1, 3\nv_xor_b32 v241, v241, v242\nv_lshl_add_u32 v240, v241, 5, v240")
        e("v_and_b32 v241, 1, v1\nv_lshl_add_u32 v240, v241, 4, v240")
        e(f"s_lshr_b32 s14, s{S_WV}, 1\ns_mul_i32 s15, s14, {8*3584}")
        e(f"s_and_b32 s101, s{S_G2}, 0xffffff80\ns_lshl_b32 s101, s101, 1\ns_add_u32 s15, s15, s101")
        e(f"v_add_u32 v240, s15, v240\nv_add_u32 v247, {4*3584 - 1024}, v240")
        e("s_lshl_b32 s12, s13, 12\ns_lshl_b32 s14, s14, 11\ns_add_u32 s12, s12, s14")
        e("v_bfe_u32 v241, v1, 4, 1\nv_bfe_u32 v242, v1, 2, 2")
        e("v_lshl_add_u32 v243, v242, 1, v241")
        e(f"s_lshl_b32 s13, s{S_WV}, 1\nv_xor_b32 v243, s13, v243\nv_lshlrev_b32 v243, 5, v243")
        e("v_lshl_add_u32 v243, v241, 12, v243\nv_lshl_add_u32 v243, v242, 8, v243")
        e("v_lshrrev_b32 v241, 5, v1\nv_lshl_add_u32 v243, v241, 11, v243")
        e("v_and_b32 v241, 1, v1\nv_lshl_add_u32 v243, v241, 4, v243")
        e("v_bfe_u32 v241, v1, 1, 1\nv_lshl_add_u32 v241, v241, 3, v243")
        e("v_xor_b32 v242, 32, v241")
        e("v_add_u32 v243, 0x10000, v241\nv_add_u32 v244, 0x10000, v242\nv_add_u32 v245, 0x20000, v241\nv_add_u32 v246, 0x20000, v242")
        self.wt = {}
    def w_rot(self):
        e = self.e
        e(f"s_and_b32 s26, s{S_G1}, {7 if self.cfg['rot'] else 0}\ns_mul_i32 s101, s{S_G3}, {16*16*3584}")
        for j in range(8): e(f"s_add_u32 s{18+j}, s26, {j}\ns_and_b32 s{18+j}, s{18+j}, 7\ns_mul_i32 s{18+j}, s{18+j}, {16*3584}\ns_add_u32 s{18+j}, s{18+j}, s101")
    def w_issue(self, ks):
        e = self.e
        if self.cfg.get('noch'):
            self.wt[ks] = None; e("s_nop 0\ns_nop 0\ns_nop 0\ns_nop 0"); return
        e(f"s_add_u32 m0, s12, {wslot(ks)}\ns_add_u32 s14, s{18 + (ks & 7)}, {(ks >> 3)*8*16*3584}")
        self.tok("buffer_load_dwordx4 v240, s[8:11], s14 offen lds")
        self.wt[ks] = self.tok("buffer_load_dwordx4 v247, s[8:11], s14 offen offset:1024 lds")
    def w_read(self, ks):
        b = wslot(ks); t_ = None
        for t in range(2):
            for i in range(2):
                o = b + 1024*i
                t_ = self.tok(f"ds_read_b64_tr_b16 {ar((t*32+ks)*4+2*i,2)}, v{241 + 2*(o >> 16) + t} offset:{o & 0xffff}")
        return t_
    def w_issue_l(self, r):
        for ks in r: self.w_issue(ks)
    def w_chunks(self, r):
        out = []
        for ks in r:
            l = self.cap(lambda: self.w_issue(ks)); out += [l[:3], l[3:]]
        return out
    def w_read_l(self, r):
        t = None
        for ks in r: t = self.w_read(ks)
        return t

    U1 = 176; U2 = 208
    def modf_chk_only(self):
        e = self.e
        def chk(ex):
            for i in range(8):
                e(f"v_min3_u32 v232, v{201+4*i}, v{203+4*i}, {'v232' if i else 'v201'}\nv_max3_u32 v233, v{201+4*i}, v{203+4*i}, {'v233' if i else 'v201'}")
            e(f"v_xor_b32 v232, s{S_TAG}, v232\nv_xor_b32 v233, s{S_TAG}, v233\nv_or_b32 v232, v232, v233\nv_cmp_ne_u32 vcc, 0, v232")
        self.guard("mf", chk, lambda: (self.modf_issue(), e("s_waitcnt vmcnt(0)")))
    def gate_issue(self, base=WS_FL1):
        self.e(f"v_lshlrev_b32 v235, 6, v0\ns_mov_b32 s101, {base}")
        return self.tok(f"buffer_load_dword v234, v235, s[{S_WS}:{S_WS+3}], s101 offen sc1")
    def gate_check(self, tok):
        self.wait(tok)
        self.guard("gt", lambda ex: self.e(f"v_cmp_ne_u32 vcc, s{S_TAG}, v234"), lambda: (self.gate_issue(), self.e("s_waitcnt vmcnt(0)")))
    def u_addr(self, v, t):
        e = self.e
        e(f"v_bfe_u32 v{v}, v1, 4, 1\nv_mul_u32_u24 v{v}, {1792*16}, v{v}")
        e(f"v_bfe_u32 v{t}, v1, 2, 1\nv_lshl_add_u32 v{v}, v{t}, 7, v{v}")
        e(f"v_bfe_u32 v{t}, v1, 3, 1\nv_lshl_add_u32 v{v}, v{t}, 6, v{v}")
        e(f"v_and_b32 v{t}, 3, v1\nv_lshl_add_u32 v{v}, v{t}, 4, v{v}")
    def u_job(self):
        e = self.e
        self.modf_chk_only()
        for v in range(2):
            for c_ in (0, 2):
                b_ = 200 + 16*v + c_
                e(f"v_add_f32 v{b_}, v{b_}, v{b_+4}\nv_add_f32 v{b_+8}, v{b_+8}, v{b_+12}\nv_add_f32 v{b_}, v{b_}, v{b_+8}")
        e("v_cvt_pk_bf16_f32 v7, v200, v202\nv_cvt_pk_bf16_f32 v5, v216, v218")
        e("v_lshlrev_b32 v8, 16, v5\nv_and_b32 v9, 0xffff0000, v5\nv_add_f32 v8, 1.0, v8\nv_add_f32 v9, 1.0, v9\nv_cvt_pk_bf16_f32 v5, v8, v9")
        e(f"v_lshlrev_b32 v3, 2, v0\nv_add_u32 v3, {L_SS}, v3")
        e("ds_write2st64_b32 v3, v5, v7 offset0:0 offset1:4")
        e("v_and_b32 v2, 1, v1\nv_lshlrev_b32 v2, 10, v2\nv_lshrrev_b32 v4, 5, v1\nv_lshl_add_u32 v2, v4, 4, v2")
        e(f"s_lshl_b32 s101, s{S_G3}, 9\ns_add_u32 s101, s101, {L_SS}\nv_add_u32 v2, s101, v2")
        e("s_waitcnt vmcnt(4) lgkmcnt(0)\ns_barrier")
        for ks in range(self.cfg["nrec"], 16): self.w_read(ks)
        for ks in range(16): e(f"ds_read_b128 {vr(100+4*ks,4)}, v2 offset:{32*ks}")
        self.u_addr(40, 41)
        e(f"s_mul_i32 s101, s{S_G3}, {2*1792*16}\ns_lshl_b32 s44, s{S_G2}, 4\ns_add_u32 s101, s101, s44\ns_add_u32 s101, s101, {WS_U}")
        e("s_cmp_eq_u32 s10, 0\ns_cselect_b32 s101, 0x7f000000, s101")
        e("s_waitcnt lgkmcnt(0)")
        for ks in range(16):
            for t in range(2):
                acc = vr(4 + 16*t, 16)
                e(f"v_mfma_f32_32x32x16_bf16 {acc}, {vr(100+4*ks,4)}, {ar((t*32+ks)*4,4)}, {acc if ks else '0'}")
        for t in range(2):
            e(f"v_mov_b32 v{44+4*t}, v{4+16*t}\nv_mov_b32 v{45+4*t}, s{S_TAG}\nv_mov_b32 v{46+4*t}, v{5+16*t}\nv_mov_b32 v{47+4*t}, s{S_TAG}")
        e("s_mov_b32 exec_hi, 0")
        for t in range(2): e(f"buffer_store_dwordx4 {vr(44+4*t,4)}, v40, s[{S_WS}:{S_WS+3}], s101 offen offset:{256*t} sc1")
        e("s_mov_b32 exec_hi, -1")

    def shadow1(self):
        e = self.e; c = self.cfg; cap = self.cap
        nr = c["nrec"]; n1 = 13 + nr
        assert nr == 8
        self.w_read_l(range(nr, 13))
        e(f"s_lshl_b32 s{S_T1}, s{S_WV}, 13")
        e(f"s_lshl_b32 s33, s{S_G1}, 10\ns_add_u32 s33, s33, {WS_ST2}")
        e("v_lshlrev_b32 v147, 4, v1")
        e(f"v_add_u32 v146, s{S_T1}, v147\nv_add_u32 v143, 0x10000, v146")
        e(f"s_lshl_b32 s{S_T0}, s{S_G1}, 17\ns_add_u32 s{S_T0}, s{S_T0}, s{S_T1}\ns_add_u32 s{S_T0}, s{S_T0}, {hx(WS_X1S)}")
        self.wait(self.wt[n1-1])
        e("s_waitcnt lgkmcnt(0)\ns_barrier")
        self.stamp(8)
        r = self.w_read_l(range(13, n1))
        self.w_issue_l(range(n1, 26))
        tg = self.gtok or self.gate_issue()
        e("v_lshrrev_b32 v144, 5, v1\nv_lshlrev_b32 v144, 9, v144")
        e("v_bfe_u32 v145, v1, 2, 2\nv_lshl_add_u32 v144, v145, 6, v144")
        e("v_bfe_u32 v145, v1, 4, 1\nv_lshl_add_u32 v144, v145, 5, v144")
        e("v_and_b32 v145, 3, v1\nv_lshl_add_u32 v144, v145, 3, v144")
        e("v_add_u32 v144, 0x10000, v144")
        for j in range(8): e(f"s_add_u32 s101, s26, {j}\ns_and_b32 s101, s101, 7\nv_lshl_add_u32 v{BA[j]}, s101, 10, v144")
        e("v_and_b32 v145, 31, v1\nv_lshlrev_b32 v145, 3, v145")
        for r_ in range(4): e(f"v_mov_b32 v{self.BX+4*r_+2}, 0\nv_mov_b32 v{self.BX+4*r_+3}, 0")
        e(f"v_mov_b32 v{self.AX+2}, 0\nv_mov_b32 v{self.AX+3}, 0\nv_mov_b32 v{self.AX+6}, 0\nv_mov_b32 v{self.AX+7}, 0\nv_mov_b32 v252, 0")
        self.u_addr(138, 139)
        e(f"s_lshl_b32 s35, s{S_G2}, 4\ns_add_u32 s35, s35, {WS_U}\ns_add_u32 s34, s35, {2*1792*16}")
        self.wd_setup_s()
        self.wait(r)
        e("s_barrier")
        self.w_issue_l(range(26, 26 + c["wx"]))
        self.gate_check(tg)
        self.stamp(27)
        self.xt = {}
        self.xt[0] = self.x1s_issue(0)
        self.xt[1] = self.x1s_issue(1)
        self.w_issue_l(range(26 + c["wx"], 32))
        self.g2_setup()
        e('WARMCALL 3')
        self.stamp(9)
        self.x1s_guard(0, 148, self.xt[0])
        e("s_waitcnt lgkmcnt(0)\ns_barrier")
        self.stamp(12)

    def stats2_job(self):
        e = self.e
        e(f"s_lshl_b32 s{S_T2}, s{S_XCD}, 2\ns_add_u32 s{S_T2}, s{S_T2}, s{S_IDX}\ns_sub_u32 s{S_T2}, s{S_T2}, 28")
        e(f"s_lshl_b32 s{S_T1}, s{S_WV}, 13")
        e(f"s_lshl_b32 s{S_T0}, s{S_T2}, 16\ns_add_u32 s{S_T0}, s{S_T0}, s{S_T1}\ns_add_u32 s{S_T0}, s{S_T0}, {hx(WS_X1)}")
        e("v_lshlrev_b32 v147, 4, v1\nv_lshlrev_b32 v146, 7, v1")
        e("v_lshrrev_b32 v144, 5, v1\nv_lshlrev_b32 v144, 9, v144")
        e("v_bfe_u32 v145, v1, 2, 2\nv_lshl_add_u32 v144, v145, 6, v144")
        e("v_bfe_u32 v145, v1, 4, 1\nv_lshl_add_u32 v144, v145, 5, v144")
        e("v_and_b32 v145, 3, v1\nv_lshl_add_u32 v144, v145, 3, v144")
        e(f"s_lshl_b32 s{S_T1}, s{S_WV}, 14\nv_add_u32 v144, s{S_T1}, v144")
        e("v_mov_b32 v5, 0x3f803f80")
        e("s_waitcnt vmcnt(0)\ns_barrier")
        self.gate_issue(); e("s_waitcnt vmcnt(0)")
        self.guard("g2", lambda ex: e(f"v_cmp_ne_u32 vcc, s{S_TAG}, v234"), lambda: (self.gate_issue(), e("s_waitcnt vmcnt(0)")))
        e(f"s_mov_b32 s{S_SPIN}, {self.cfg['spin']}")
        lp = self.lab("pj"); go = self.lab("pg"); ok = self.lab("pk")
        self.label(lp)
        e(f"s_add_u32 s101, s{S_T0}, 32768")
        e(f"buffer_load_dword v6, v146, s[{S_WS}:{S_WS+3}], s{S_T0} offen sc1")
        e(f"buffer_load_dword v7, v146, s[{S_WS}:{S_WS+3}], s101 offen offset:64 sc1")
        e("s_waitcnt vmcnt(0)\nv_max_u32 v6, v6, v7\nv_cmp_eq_u32 vcc, -1, v6\ns_nop 1")
        e(f"s_cbranch_vccz {go}")
        self.spin_check(lp)
        e(f"s_mov_b32 s{S_SPIN}, 1")
        self.label(go)
        for b in range(2):
            for j in range(8):
                e(f"s_add_u32 m0, s{S_T1}, {b*8192 + j*1024}\ns_add_u32 s101, s{S_T0}, {b*32768 + j*1024}")
                e(f"buffer_load_dwordx4 v147, s[{S_WS}:{S_WS+3}], s101 offen sc1 lds")
        for b in range(2):
            e(f"s_waitcnt vmcnt({8*(1-b)})")
            for j in range(16): e(f"ds_read_b64_tr_b16 {vr(40+2*j,2)}, v144 offset:{b*8192 + (j>>1)*1024 + (j&1)*256}")
            for j in range(32):
                if j % 8 == 0: e(f"s_waitcnt lgkmcnt({12 - j//2})")
                e(f"v_dot2_f32_bf16 v{8+2*b}, v{40+j}, v5, {'v%d' % (8+2*b) if j else '0'}")
                e(f"v_dot2_f32_bf16 v{9+2*b}, v{40+j}, v{40+j}, {'v%d' % (9+2*b) if j else '0'}")
        e("s_nop 2\nv_add_f32 v6, v9, v11\nv_cmp_u_f32 vcc, v6, v6\ns_nop 1")
        e(f"s_cbranch_vccz {ok}")
        self.spin_check(lp)
        self.label(ok)
        e("v_permlane32_swap_b32 v8, v10\nv_permlane32_swap_b32 v9, v11")
        e("v_add_f32 v8, v8, v10\nv_add_f32 v9, v9, v11")
        e(f"s_lshl_b32 s101, s{S_WV}, 9\ns_add_u32 s101, s101, {L_SS}")
        e("v_lshlrev_b32 v12, 3, v1\nv_add_u32 v13, s101, v12")
        e("ds_write_b64 v13, v[8:9]")
        e(f"v_add_u32 v13, {L_SS}, v12")
        e("s_waitcnt lgkmcnt(0)\ns_barrier")
        sk = self.lab("s2w")
        e(f"s_cmp_lg_u32 s{S_WV}, 0\ns_cbranch_scc1 {sk}")
        for w in range(4): e(f"ds_read_b64 v[{14+2*w}:{15+2*w}], v13 offset:{512*w}")
        e("s_waitcnt lgkmcnt(0)")
        e("v_pk_add_f32 v[14:15], v[14:15], v[16:17]\nv_pk_add_f32 v[18:19], v[18:19], v[20:21]\nv_pk_add_f32 v[14:15], v[14:15], v[18:19]")
        self.stat_finish(14, 15, 16, 17)
        e(f"v_mov_b32 v15, s{S_TAG}")
        e(f"s_lshl_b32 s101, s{S_T2}, 9\ns_add_u32 s101, s101, {WS_ST2}")
        e(f"buffer_store_dwordx2 v[14:15], v12, s[{S_WS}:{S_WS+3}], s101 offen sc1")
        self.label(sk)
        e("s_barrier")

    def wd_setup_s(self):
        e = self.e
        e(f"s_mul_i32 s{S_LDT}, s{S_WV}, {448*1024}")
        e(f"s_and_b32 s101, s{S_IDX}, 7\ns_lshl_b32 s101, s101, 7\ns_add_u32 s{S_LDT}, s{S_LDT}, s101")
        e(f"s_lshr_b32 s36, s{S_IDX}, 3\ns_lshl_b32 s36, s36, 1\ns_add_u32 s36, s36, s{S_IDX}\ns_and_b32 s36, s36, {7 if self.cfg['rot2'] else 0}")
        e("s_cmp_eq_u32 s36, 7\ns_cselect_b32 s36, 0, s36\ns_lshl_b32 s36, s36, 10")
        for j in range(1, 7): e(f"s_add_u32 s{36+j}, s{35+j}, 1024\ns_cmp_eq_u32 s{36+j}, 7168\ns_cselect_b32 s{36+j}, 0, s{36+j}")
        for b_ in range(1, 4): e(f"s_add_u32 s{27+b_}, s{S_LDT}, {b_*7*16384}")
        e(f"s_mul_i32 s{S_M+8}, s{S_WV}, 6144\ns_add_u32 s{S_M+8}, s{S_M+8}, {L_SP}")
        e(f"s_lshl_b32 s{S_M+9}, s{S_WV}, 13")
    def wd_setup_v(self):
        e = self.e
        e("v_lshrrev_b32 v240, 3, v1")
        e("v_bfe_u32 v241, v1, 4, 1\nv_lshlrev_b32 v241, 2, v241")
        e("v_and_b32 v242, 7, v1\nv_xor_b32 v241, v241, v242")
        e("v_lshlrev_b32 v240, 10, v240\nv_lshl_add_u32 v240, v241, 4, v240")
        e(f"v_add_u32 v241, {8192 - 1024}, v240")
        e("v_lshrrev_b32 v242, 5, v1\nv_lshlrev_b32 v242, 10, v242")
        e("v_bfe_u32 v243, v1, 2, 2\nv_lshl_add_u32 v242, v243, 7, v242")
        e("v_bfe_u32 v243, v1, 3, 1\nv_lshl_add_u32 v242, v243, 6, v242")
        e("v_and_b32 v243, 1, v1\nv_lshl_add_u32 v242, v243, 5, v242")
        e("v_bfe_u32 v243, v1, 1, 1\nv_lshl_add_u32 v242, v243, 3, v242")
        e("v_bfe_u32 v243, v1, 4, 1\nv_lshl_add_u32 v242, v243, 4, v242")
        e(f"v_add_u32 v244, s{S_M+9}, v242\nv_xor_b32 v245, 64, v244\nv_add_u32 v246, 0x10000, v244\nv_add_u32 v247, 0x10000, v245")
        e(f"v_add_u32 v242, s{S_M+8}, v242\nv_xor_b32 v243, 64, v242")
    def wd_setup(self):
        self.wd_setup_s(); self.wd_setup_v()
    def wd_loc(self, ks):
        sl = ks % 15
        if sl < 3: return 0, 2048*sl
        q, r = divmod(sl - 3, 4)
        return 1, (3 - q)*32768 + 2048*r
    def wd_issue(self, ks):
        e = self.e
        r, o = self.wd_loc(ks)
        e(f"s_add_u32 m0, s{S_M+8+r}, {o}\ns_lshl4_add_u32 s15, s{36 + ks % 7}, s{S_LDT if ks < 7 else 27 + ks // 7}")
        self.tok(f"buffer_load_dwordx4 v240, s[{S_WD}:{S_WD+3}], s15 offen lds")
        self.wdt[ks] = self.tok(f"buffer_load_dwordx4 v241, s[{S_WD}:{S_WD+3}], s15 offen offset:1024 lds")
    def wd_chunks(self, r):
        out = []
        for ks in r:
            l = self.cap(lambda: self.wd_issue(ks)); out += [l[:3], l[3:]]
        return out
    def wd_read(self, ks):
        r, o = self.wd_loc(ks); t_ = None
        for t in range(2):
            for i in range(2):
                oo = o + 512*i
                reg = 242 if r == 0 else (244 if oo < 65536 else 246)
                t_ = self.tok(f"ds_read_b64_tr_b16 {ar((t*32+ks)*4+2*i,2)}, v{reg+t} offset:{oo & 0xffff}")
        return t_

    def gemm1f(self):
        e = self.e; c = self.cfg; cap = self.cap
        e(f"s_mov_b32 s{S_T2}, s{self.S_HB}\ns_mov_b32 s{S_T3}, {fl(-GC)}")
        ACC = [4, 36, 68]; BR = 100; R = 6
        seq = [(0, k) for k in range(16)] + [(1, k) for k in range(16)] + [(0, k) for k in range(16, 32)] + [(1, k) for k in range(16, 32)] + [(g, k) for g in (2, 3) for k in range(32)]
        def bread(n):
            g, ks = seq[n]; b = BR + 4*(n % R); base = self.XT(g); ad = BA[ks & 7]
            o = base % 65536 + (ks >> 3)*8192
            self.tok(f"ds_read_b64_tr_b16 {vr(b,2)}, v{ad} offset:{o}")
            t_ = self.tok(f"ds_read_b64_tr_b16 {vr(b+2,2)}, v{ad} offset:{o+256}")
            if g == 1 and ks >= 24: e(f"v_add_u32 v{ad}, 0xffff0000, v{ad}")
            return t_
        PF = R - 1
        tk = {}
        for n in range(PF): tk[n] = bread(n)
        ST = [128, 130, 132, 134]
        def st_issue():
            t = None
            for g in range(4):
                t = self.tok(f"buffer_load_dwordx2 {vr(ST[g],2)}, v145, s[{S_WS}:{S_WS+3}], s33 offen offset:{256*g} sc1")
            return t
        def st_chk(ex):
            e(f"v_min3_u32 v136, v{ST[0]+1}, v{ST[1]+1}, v{ST[2]+1}\nv_max3_u32 v137, v{ST[0]+1}, v{ST[1]+1}, v{ST[2]+1}")
            e(f"v_min_u32 v136, v136, v{ST[3]+1}\nv_max_u32 v137, v137, v{ST[3]+1}")
            e(f"v_xor_b32 v136, s{S_TAG}, v136\nv_xor_b32 v137, s{S_TAG}, v137\nv_or_b32 v136, v136, v137")
            e("v_cmp_ne_u32 vcc, 0, v136")
        def st_guard(tok):
            self.wait(tok)
            self.guard("st", st_chk, lambda: (st_issue(), e("s_waitcnt vmcnt(0)")))
            e("s_mov_b32 s44, 0x03020302\ns_mov_b32 s47, 0x01000100")
            for g in range(4):
                b = ST[g]; x = self.BX + 4*g
                e(f"v_lshlrev_b32 v{b+1}, 16, v{b}\nv_rcp_f32 v136, v{b+1}")
                e(f"v_perm_b32 v{x}, v{b}, v{b}, s44\nv_perm_b32 v{x+1}, v{b}, v{b}, s47")
                e(f"v_mul_f32 v{b}, {fl(GAM)}, v136\nv_xor_b32 v{x}, 0x80008000, v{x}\nv_mul_f32 v{b+1}, {fl(GAM)}, v{b+1}")
        UR = 200
        def u_issue():
            t_ = None
            for t in range(2):
                for h in range(2):
                    t_ = self.tok(f"buffer_load_dwordx4 {vr(UR+8*t+4*h,4)}, v138, s[{S_WS}:{S_WS+3}], s{35-h} offen offset:{256*t} sc1")
            return t_
        def u_chk(ex):
            for i in range(4): e(f"v_min3_u32 v136, v{UR+4*i+1}, v{UR+4*i+3}, {'v136' if i else 'v%d' % (UR+1)}\nv_max3_u32 v137, v{UR+4*i+1}, v{UR+4*i+3}, {'v137' if i else 'v%d' % (UR+1)}")
            e(f"v_xor_b32 v136, s{S_TAG}, v136\nv_xor_b32 v137, s{S_TAG}, v137\nv_or_b32 v136, v136, v137\nv_cmp_ne_u32 vcc, 0, v136")
        def u_guard(tok):
            self.wait(tok)
            self.guard("mf", u_chk, lambda: (u_issue(), e("s_waitcnt vmcnt(0)")))
            e("v_cmp_gt_u32 vcc, 32, v1")
            for t in range(2):
                for k in range(2):
                    u = UR + 8*t + 2*k; d = self.AX + 4*t + k
                    e(f"v_add_f32 v{u}, v{u}, v{u+4}\nv_cvt_pk_bf16_f32 v136, v{u}, v{u}\nv_and_b32 v136, 0xffff0000, v136\nv_sub_f32 v136, v{u}, v136")
                    e(f"v_cvt_pk_bf16_f32 v136, v{u}, v136\nv_cndmask_b32 v{d}, 0, v136, vcc")
        STN = [8, 16, 24, 32, 40, 48, 56, 64, 80, 96, 104, 112, 120]
        def steps(n0, n1):
            for n in range(n0, n1):
                g, ks = seq[n]
                if n in STN: self.stamp(30 + STN.index(n))
                self.wait(tk[n])
                for t in range(2):
                    acc = vr(ACC[g % 3] + 16*t, 16)
                    e(f"v_mfma_f32_32x32x16_bf16 {acc}, {ar((t*32+ks)*4,4)}, {vr(BR+4*(n%R),4)}, {acc if ks else '0'}")
                    if t == 0 and n + PF < 128: tk[n+PF] = bread(n+PF)
                    if g == 3 and t == 1 and ks in extra: extra[ks]()
                if ks == 31 and g: self.g1_fold(g, ACC[g % 3])
        extra = {}
        def seg(n0, n1, fill, flush=True, pace=None):
            m = cap(lambda: steps(n0, n1))
            m, left = merge(m, fill, 24, pace=pace or c["gpace"])
            self.p.put(m)
            if flush:
                if left: sys.stderr.write(f"flush {len(left)} at {n1}\n")
                self.p.put(left); return []
            return left
        xt = self.xt; hold = {}; self.wdt = {}; self.htok = {}
        xi = lambda g: cap(lambda: xt.__setitem__(g, self.x1s_issue(g)))
        bar = lambda: cap(lambda: e("s_barrier"))
        wdc = lambda r: sum(self.wd_chunks(r), [])
        seg(0, c["b1"] - 6, [])
        seg(c["b1"] - 6, c["b1"], cap(lambda: self.x1s_guard(1, 148, xt[1])))
        e("s_barrier")
        seg(c["b1"], c["b2"], cap(lambda: self.wait(self.w_read_l(range(21, 26)), self.wt[31])))
        e("s_barrier")
        seg(c["b2"], c["b3"], cap(lambda: hold.__setitem__("r", self.w_read_l(range(26, 32)))) + xi(2)[:6] + cap(lambda: self.wait(hold["r"])))
        e("s_barrier")
        xs = xi(2)[6:] + xi(3); wv_ = cap(self.wd_setup_v); xs2 = []
        for ins in xs:
            xs2.append(ins)
            if ins.text.startswith("buffer_"): xs2 += wv_[:2]; wv_ = wv_[2:]
        seg(c["b3"], c["sti"], xs2 + wv_)
        f = cap(lambda: (hold.__setitem__("u", u_issue()), hold.__setitem__("t", st_issue())))
        seg(c["sti"], c["stk"], f + wdc(range(3)), pace=1)
        self.stamp(13)
        f = cap(lambda: (u_guard(hold["u"]), st_guard(hold["t"])))
        pend = seg(c["stk"], 48, f + cap(self.hfill), flush=False)
        f = cap(lambda: (self.g1_fold(0, ACC[0]), self.x1s_guard(2, 148, xt[2]), self.x1s_guard(3, 148, xt[3])))
        seg(48, c["b4"], pend + f)
        e("s_barrier")
        pend = seg(c["b4"], 64, wdc(range(3, 7)) + self.g1_epilogue(0, ACC[0], ST[0]), flush=False)
        ep1 = self.g1_epilogue(1, ACC[1], ST[1]) + cap(lambda: self.hflag(0, 252, 253))
        e('WARMREG 3')
        pend = seg(64, 66, pend + ep1, flush=False)
        e("s_barrier")
        assert not any("lds" in i.text for i in pend if i.wait is None)
        n_ep1 = len(ep1)
        pend = seg(66, 96, wdc(range(7, 11)) + pend, flush=False)
        if len(pend) > n_ep1:
            self.p.put(pend[:len(pend) - n_ep1]); pend = pend[len(pend) - n_ep1:]
        ep2 = self.g1_epilogue(2, ACC[2], ST[2])
        pend = seg(96, 98, pend + ep2, flush=False); ep2 = []
        e("s_barrier")
        assert not any("lds" in i.text for i in pend if i.wait is None)
        self.rd = {}
        plan = {}
        for j in range(4): plan.setdefault(2 + j, []).append(("i", 11 + j))
        nrc = c["nrc"]
        for j in range(nrc):
            plan.setdefault(c["rc0"] + j*c["rcs"], []).append(("r", j))
            plan.setdefault(c["rc0"] + j*c["rcs"] + 2, []).append(("i", 15 + j))
        def mk(items):
            def f():
                for kind, k_ in items:
                    if kind == "f": hold["f0"] = self.fl_issue(0, 140, 144)
                    elif kind == "g":
                        self.wait(hold["f0"])
                        self.guard("f0", lambda ex: e(f"v_cmp_ne_u32 vcc, s{S_TAG}, v144"), lambda: (self.fl_issue(0, 140, 144), e("s_waitcnt vmcnt(0)")))
                    elif kind == "p": self.hflag(1, 252, 253)
                    elif kind == "r":
                        self.wait(self.wdt[k_]); self.rd[k_] = self.wd_read(k_)
                    else:
                        if k_ >= 15: self.wait(self.rd[k_ - 15])
                        self.wd_issue(k_)
            return f
        plan.setdefault(c["f0k"], []).append(("f", 0))
        plan.setdefault(c["p1k"], []).append(("p", 1))
        self.ht = {}
        for ks_, items in plan.items():
            assert ks_ < 32 and all(k_ < ks_ for kind, k_ in items if kind == "r")
            extra[ks_] = mk(items)
        pend = seg(98, 128, pend + ep2, flush=False)
        sys.stderr.write(f"tail leftover {len(pend)}\n")
        self.stamp(14)
        self.p.put(pend)
        e3 = self.g1_epilogue(3, ACC[0], ST[3])
        k_ = c["g0at"]
        self.p.put(e3[:k_])
        slow = self.lab("ts"); jn = self.lab("tj"); lp = self.lab("tl"); ok = self.lab("to")
        self.wait(hold["f0"])
        e(f"v_cmp_ne_u32 vcc, s{S_TAG}, v144\ns_cbranch_vccnz {slow}")
        hch = [cap(lambda: self.hl(0, ks, 147)) for ks in range(c["nh"])]
        self.p.put(weave(e3[k_:], hch, c["hw"]))
        self.label(jn)
        def rout():
            self.label(slow)
            if c.get("stamps"): e("v_writelane_b32 v255, 1, 55")
            self.p.put([Ins(i.text) for i in e3[k_:]])
            e(f"s_mov_b32 s{S_SPIN}, {c['spin']}")
            self.label(lp)
            self.fl_issue(0, 140, 144)
            e(f"s_waitcnt vmcnt(0)\nv_cmp_ne_u32 vcc, s{S_TAG}, v144\ns_nop 1\ns_cbranch_vccz {ok}")
            self.spin_check(lp)
            self.label(ok)
            for ch in hch: self.p.put([Ins(i.text) for i in ch])
            e(f"s_waitcnt vmcnt(0)\ns_branch {jn}")
        self.ool += cap(rout)
        self.stamp(15)

    HB = 68
    def HR(self, ks): return 68 + 4*ks if ks < 14 else (200 + 4*(ks-14) if ks < 24 else 124 + 4*(ks-24))
    def g2_setup(self):
        e = self.e
        self.g2_map()
        e(f"s_mul_i32 s{S_M+2}, s{S_WV}, {14*64}\ns_add_u32 s{S_M+2}, s{S_M+2}, {WS_FL2}")
        e(f"s_mul_i32 s{S_M+3}, s{S_G2}, {56*64}\ns_add_u32 s{S_M+3}, s{S_M+3}, s{S_M+2}")
        e(f"s_mul_i32 s44, s{S_G1}, {56*64}\ns_add_u32 s{S_M+2}, s{S_M+2}, s44")
        e(f"s_mul_i32 s{S_M+4}, s{S_G1}, {112*1024}\ns_mul_i32 s{S_M+5}, s{S_G2}, {112*1024}")
        e(f"s_mul_i32 s{S_M+6}, s{S_WV}, {28*1024}\ns_add_u32 s{S_M+6}, s{S_M+6}, {hx(WS_H)}")
        e(f"s_add_u32 s{S_M+4}, s{S_M+4}, s{S_M+6}\ns_add_u32 s{S_M+5}, s{S_M+5}, s{S_M+6}")
        for b_ in range(4): e(f"s_add_u32 s{18+b_}, s{S_M+4}, {b_*7168}\ns_add_u32 s{22+b_}, s{S_M+5}, {b_*7168}")
        e(f"s_lshr_b32 s45, s{S_WV}, 1\ns_sub_u32 s44, s{S_G2}, s{S_G1}\ns_mul_i32 s45, s45, s44\ns_add_u32 s45, s45, s{S_G1}")
        e(f"s_and_b32 s46, s{S_WV}, 1\ns_lshl_b32 s46, s46, 5\ns_lshl_b32 s44, s{S_G3}, 6\ns_add_u32 s46, s46, s44")
        e(f"s_lshl_b32 s{S_M}, s45, 15\ns_lshl_b32 s{S_M+1}, s46, 6\ns_add_u32 s{S_M}, s{S_M}, s{S_M+1}\ns_add_u32 s{S_M}, s{S_M}, {hx(WS_X1)}")
        e(f"s_lshl_b32 s{S_M+1}, s{S_WV}, 11\ns_add_u32 s{S_M+1}, s{S_M+1}, {L_XR2}")
        e("v_min_u32 v140, 13, v1\nv_lshlrev_b32 v140, 6, v140")
    def fl_issue(self, nt, va, vd): return self.tok(f"buffer_load_dword v{vd}, v{va}, s[{S_WS}:{S_WS+3}], s{S_M+2+nt} offen sc1")
    def hl(self, nt, ks, va):
        self.e(f"s_add_u32 s47, s{36 + ks % 7}, s{18 + 4*nt + ks // 7}")
        self.ht[(nt, ks)] = self.tok(f"buffer_load_dwordx4 {vr(self.HR(ks),4)}, v{va}, s[{S_WS}:{S_WS+3}], s47 offen sc1")
    def gemm2f(self):
        e = self.e; c = self.cfg; cap = self.cap
        HB = self.HB; NH = c["nh"]; nrc = c["nrc"]; rd = self.rd; ht = self.ht
        e(f"v_mov_b32 v182, v147\nv_min_u32 v183, 27, v1\nv_lshlrev_b32 v183, 10, v183")
        e("s_barrier")
        for ks in range(nrc, 15):
            self.wait(self.wdt[ks]); rd[ks] = self.wd_read(ks)
        self.stamp(16)
        order = []
        for ks in range(28):
            if ks >= 15 + nrc: order.append(("w", ks))
            if (0, ks) not in ht: order.append(("h", ks))
        NH = min([k for kind, k in order] + [27])
        def iss(it):
            if it[0] == "h": self.hl(0, it[1], 182)
            else:
                self.wait(rd[it[1] - 15]); self.wd_issue(it[1])
        def mm(nt, ks):
            for t in range(2):
                acc = vr(4 + 32*nt + 16*t, 16)
                e(f"v_mfma_f32_32x32x16_bf16 {acc}, {ar((t*32+ks)*4,4)}, {vr(self.HR(ks),4)}, {acc if ks else '0'}")
        probe = lambda: self.tok(f"buffer_load_dword v184, v183, s[{S_WS}:{S_WS+3}], s{S_M+5} offen sc1")
        rest = list(order)
        KC = c["kc"]; f1 = None
        def rdw(ks):
            if 15 <= ks < 28 and ks not in rd:
                self.wait(self.wdt[ks]); rd[ks] = self.wd_read(ks)
        for ks in range(KC):
            for _ in range(2):
                if rest: iss(rest.pop(0))
            if ks == c["kf"]: f1 = probe()
            rdw(ks + 1)
            self.wait(ht[(0, ks)], rd[ks]); mm(0, ks)
        assert not rest and f1 is not None
        slow = self.lab("g2slow"); jn = self.lab("g2j")
        self.wait(f1)
        e(f"v_cmp_eq_u32 vcc, -1, v184\ns_cbranch_vccnz {slow}")
        pendw = [ks for ks in range(15, 28) if ks not in rd]
        nx = 0
        for ks in range(KC, 28):
            for _ in range(c["nb"]):
                if nx < ks: self.hl(1, nx, 182); nx += 1
            rdw(ks + 1)
            self.wait(ht[(0, ks)], rd[ks]); mm(0, ks)
        while nx < 28: self.hl(1, nx, 182); nx += 1
        self.label(jn)
        keep = dict(ht)
        def rout():
            lp = self.lab("g2l"); ok = self.lab("g2ok")
            self.label(slow)
            e("s_waitcnt vmcnt(0)")
            for ks in pendw: self.wd_read(ks)
            probe()
            e("s_waitcnt lgkmcnt(0)")
            for ks in range(KC, 28): mm(0, ks)
            e(f"s_mov_b32 s{S_SPIN}, {self.cfg['spin']}")
            self.label(lp)
            e(f"s_waitcnt vmcnt(0)\nv_cmp_eq_u32 vcc, -1, v184\ns_nop 1\ns_cbranch_vccz {ok}")
            probe()
            self.spin_check(lp)
            e("s_waitcnt vmcnt(0)")
            self.label(ok)
            if c.get("stamps"): e("v_writelane_b32 v255, 1, 51")
            for ks in range(28): self.hl(1, ks, 182)
            e(f"s_branch {jn}")
        self.ool += cap(rout)
        ht.update(keep)
        self.stamp(19)
        def extras():
            e(f"s_mov_b32 m0, s{S_M+1}\ns_nop 0")
            self.tok(f"buffer_load_dwordx4 v182, s[{S_WS}:{S_WS+3}], s{S_M} offen sc1 lds")
            self.xr = self.tok(f"buffer_load_dwordx4 v182, s[{S_WS}:{S_WS+3}], s{S_M} offen offset:1024 sc1 lds")
            e("v_lshrrev_b32 v185, 5, v1\nv_lshlrev_b32 v185, 8, v185")
            e(f"s_lshl_b32 s{S_M+2}, s{S46}, 4\ns_add_u32 s{S_M+2}, s{S_M+2}, {WS_MODF + 8}")
            for j in range(16): self.gbt = self.tok(f"buffer_load_dword v{140+j}, v185, s[{S_WS}:{S_WS+3}], s{S_M+2} offen offset:{16*j} sc1")
        def wr(T):
            for j in range(4): e(f"ds_write_b128 v{186 + (T >> 1)}, {vr(4+16*T+4*j,4)} offset:{(T & 1)*32768 + 1024*j}")
        def addrs():
            e(f"v_add_u32 v186, s{S_M+9}, v182\nv_add_u32 v187, 0x10000, v186")
            e(f"s_lshl_b32 s{S_T0}, s{S_WV}, 15\nv_add_u32 v188, s{S_T0}, v182")
            e("v_lshrrev_b32 v248, 5, v1\nv_lshlrev_b32 v248, 10, v248")
            e("v_bfe_u32 v249, v1, 2, 2\nv_lshl_add_u32 v248, v249, 6, v248")
            e("v_bfe_u32 v249, v1, 4, 1\nv_lshl_add_u32 v248, v249, 5, v248")
            e("v_and_b32 v249, 3, v1\nv_lshl_add_u32 v248, v249, 3, v248")
            e(f"v_add_u32 v248, s{S_M+1}, v248")
            e("v_and_b32 v249, 31, v1\nv_lshlrev_b32 v249, 10, v249")
            e("v_lshrrev_b32 v250, 5, v1\nv_lshl_add_u32 v249, v250, 5, v249")
            e(f"s_lshl_b32 s{S_T0}, s{S45}, 15\ns_lshl_b32 s{S_T1}, s{S46}, 1\ns_add_u32 s{S_T0}, s{S_T0}, s{S_T1}")
        def resid():
            self.wait(self.xr)
            tk = [self.tok(f"ds_read_b64_tr_b16 {vr(172+2*j,2)}, v248 offset:{256*j}") for j in range(4)]
            self.wait(tk[3])
            def rchk(ex):
                e("v_pk_max_u16 v190, v172, v173")
                for j in range(2, 8): e(f"v_pk_max_u16 v190, v190, v{172+j}")
                e("v_lshrrev_b32 v191, 16, v190\nv_and_b32 v190, 0xffff, v190\nv_max_u32 v190, v190, v191\nv_cmp_eq_u32 vcc, 0xffff, v190")
            def rre():
                e(f"s_mov_b32 m0, s{S_M+1}\ns_nop 0")
                e(f"buffer_load_dwordx4 v182, s[{S_WS}:{S_WS+3}], s{S_M} offen sc1 lds\nbuffer_load_dwordx4 v182, s[{S_WS}:{S_WS+3}], s{S_M} offen offset:1024 sc1 lds\ns_waitcnt vmcnt(0)")
                for j in range(4): e(f"ds_read_b64_tr_b16 {vr(172+2*j,2)}, v248 offset:{256*j}")
                e("s_waitcnt lgkmcnt(0)")
            self.guard("rs", rchk, rre)
            for j in range(8): e(f"v_lshlrev_b32 v{156+2*j}, 16, v{172+j}\nv_and_b32 v{157+2*j}, 0xffff0000, v{172+j}")
        def nt1():
            for ks in range(28):
                if ks % 7 == 0:
                    def hchk(ex, k0=ks):
                        for j in range(7):
                            b_ = self.HR(k0 + j)
                            e(f"v_max3_u32 v189, v{b_}, v{b_+1}, {'v189' if j else '0'}\nv_max3_u32 v189, v{b_+2}, v{b_+3}, v189")
                        e("v_cmp_eq_u32 vcc, -1, v189")
                    def reis(k0=ks):
                        keep_ = dict(ht)
                        for j in range(7): self.hl(1, k0 + j, 182)
                        ht.update(keep_); e("s_waitcnt vmcnt(0)")
                    self.wait(ht[(1, ks + 6)])
                    self.guard("hc", hchk, reis)
                mm(1, ks)
        fill = cap(extras) + cap(addrs) + cap(lambda: (wr(0), wr(1))) + cap(resid)
        m, left = merge(cap(nt1), fill, 24, pace=1); self.p.put(m + left)
        self.stamp(17)
        wr(2); wr(3)
        e("s_waitcnt lgkmcnt(0)\ns_barrier")
        rt = {}
        for w in range(4):
            for j in range(4): rt[(w, j)] = self.tok(f"ds_read_b128 {vr(68+16*w+4*j,4)}, v188 offset:{8192*w + 1024*j}")
        self.wait(rt[(1, 3)])
        for j in range(8): e(f"v_pk_add_f32 {vr(68+2*j,2)}, {vr(68+2*j,2)}, {vr(84+2*j,2)}")
        self.wait(rt[(3, 3)], self.gbt)
        for j in range(8): e(f"v_pk_add_f32 {vr(100+2*j,2)}, {vr(100+2*j,2)}, {vr(116+2*j,2)}")
        for h in range(2):
            for j in range(4*h, 4*h+4): e(f"v_pk_add_f32 {vr(68+2*j,2)}, {vr(68+2*j,2)}, {vr(100+2*j,2)}")
            for j in range(4*h, 4*h+4): e(f"v_pk_fma_f32 {vr(68+2*j,2)}, {vr(68+2*j,2)}, {vr(140+2*j,2)}, {vr(156+2*j,2)}")
            for j in range(4*h, 4*h+4): e(f"v_cvt_pk_bf16_f32 v{24+j}, v{68+2*j}, v{69+2*j}")
            e(f"buffer_store_dwordx4 {vr(24+4*h,4)}, v249, s[{S_OUT}:{S_OUT+3}], s{S_T0} offen offset:{16*h}")
        self.stamp(18)

    def bump_epoch(self):
        e = self.e
        sk = self.lab("ep")
        e("s_cmp_lg_u32 s2, 0")
        e(f"s_cbranch_scc1 {sk}")
        e(f"s_add_u32 s{S_T0}, s{S_E}, 1")
        e(f"v_mov_b32 v3, s{S_T0}\nv_mov_b32 v4, 0")
        e("s_mov_b64 exec, 1")
        e(f"buffer_store_dword v3, v4, s[{S_WS}:{S_WS+3}], 0 offen sc1")
        e("s_mov_b64 exec, -1")
        self.label(sk)
    def finish(self):
        if self.cfg.get("hold"):
            self.label("F_hold")
            self.e(f"s_memrealtime s[{S_ST}:{S_ST+1}]\ns_waitcnt lgkmcnt(0)\ns_sub_u32 s{S_T0}, s{S_ST}, s34\ns_cmp_lt_u32 s{S_T0}, {self.cfg['hold']}\ns_cbranch_scc1 F_hold")
        self.stamp_flush()
        self.e('WARMREG -1')
        self.label(f"{self.cfg['uid']}_end")
        self.e("s_endpgm")
        ins = resolve(self.p.take()) + self.ool
        ins, n = pad_hazards(ins)
        check_labels(ins)
        if self.cfg.get('warm'):
            ins, info = add_warm(ins); sys.stderr.write(f'stubs {info}\n')
        else: ins = [i for i in ins if not i.text.startswith('WARM')]
        return render(ins)
def kernel_text(name, body, vgpr=512, accum=256):
    return f""".text
.globl {name}
.p2align 8
.type {name},@function
{name}:
{body}
.section .rodata,"a"
.p2align 6
.amdhsa_kernel {name}
  .amdhsa_next_free_vgpr {vgpr}
  .amdhsa_next_free_sgpr 102
  .amdhsa_accum_offset {accum}
  .amdhsa_group_segment_fixed_size 0
  .amdhsa_kernarg_size 144
  .amdhsa_user_sgpr_count 2
  .amdhsa_user_sgpr_kernarg_segment_ptr 1
  .amdhsa_system_sgpr_workgroup_id_x 1
.end_amdhsa_kernel
"""

def build(stamps=False, over={}):
    hdr = open("adaLN_cond__ssm_conv_s4__glu_gated_geglu__prompt.s.ref").read().split("; Override launch")[0]
    cfg = dict(spin=200000, stamps=stamps, uid="F", b1=10, b2=17, b3=23, sti=35, stk=42, b4=54, wx=6, kc=22, kf=18, nb=4, nh=12, hw=11, nrc=11, rc0=3, rcs=2, f0k=29, p1k=16, g0at=12, twx=0, npre=16, ga=24, cpace=4, gpace=2, nb1=0, twd=2, touch=2, fpos=1, wa0=4, map8=1, rot=1, rot2=1, split=0, nbp=0, nb2=8, nrec=8, wpre=12, itb=1)
    cfg.update(over)
    g = G(cfg); e = g.e
    g.prologue()
    g.p0_issue()
    W = cfg.get('warm', 0)
    e('WARMCALL 0\nWARMREG 0')
    g.srds_late()
    g.g1_map(); g.w_setup(); g.hbase()
    g.w_rot(); g.conv_setup(); g.p0_xb()
    g.tag_ready(); g.stamp(1)
    g.kgen_pre()
    e(f"v_mov_b32 v253, s{S_TAG}")
    if W == 2: e('WARMCALL 1')
    g.p0_stats(); g.stamp(2)
    g.p0_xb2(); g.stamp(23)
    g.wm_issue(1)
    hold = {}
    if cfg['touch'] == 2: g.touch_w()
    if cfg['twd'] == 1: g.touch_wd(1)
    g.wait(g.T["c"]); g.stamp(20)
    g.kgen_tab([])
    g.stamp(24)
    g.p0_mod(0, 5); g.stamp(22)
    if cfg['touch'] == 1: g.touch_w()
    nb1 = cfg["nb1"]
    if cfg['fpos'] == 1: hold['fill'] = g.xfill()
    if W == 2: e('WARMREG 1')
    g.kgen_post()
    g.w_issue_l(range(0, nb1))
    g.stamp(3)
    def fillch():
        if cfg['fpos'] == 1: return []
        f0, hold["fill"] = g.capture(g.xfill)
        return [f0[2*i:2*i+2] for i in range(4)]
    g.hbuild(after_first=lambda: (e('WARMCALL 2'), g.p0_mod(1, 0, base=60), g.w_issue_l(range(nb1, cfg['nbp']))), mid=lambda: fillch() + g.w_chunks(range(cfg['nbp'], cfg['nb2'])))
    sk = g.lab("hm")
    e(f"s_cmp_lt_u32 s{S_IDX}, 28\ns_cbranch_scc1 {sk}")
    for i in g.cap(g.modf_issue):
        if i.text.startswith("buffer_"): g.p.nc(i.text)
        else: g.p.put([i])
    g.label(sk)
    if cfg['touch'] == 3: g.touch_w()
    if cfg['twd'] == 2: g.touch_wd(2)
    cap = g.cap
    nb2 = cfg["nb2"]; nr = cfg["nrec"]
    fa = cap(lambda: g.w_issue_l(range(nb2, 13)))
    fb = [] if not nr else cap(lambda: (g.wait(g.wt[nr-1]), e("s_barrier"), hold.__setitem__("r", g.w_read_l(range(0, nr)))))
    if cfg['fpos'] == 1:
        fa = cap(g.gate_pub) + fa
        fc = cap(lambda: (g.wait(hold["r"]), e("s_barrier"), g.w_issue_l(range(13, 13 + nr))))
    else:
        fc = cap(lambda: (g.wait(hold["r"], hold["fill"]), e("s_barrier"), g.gate_pub(), g.w_issue_l(range(13, 13 + nr))))
    f6, g.gtok = g.capture(g.gate_issue) if cfg['fpos'] == 1 else ([], None)
    f5, hold["late"] = g.capture(g.late_issue)
    g.cfg["cflush"] = (3,)
    g.conv(fillers={0: fa, cfg["itb"]: fb + f5 + fc + cap(lambda: g.late_fin(hold["late"])) + f6}, pre_bar=lambda: g.wait(g.wt[12]))
    assert not any(i.text.startswith("s_barrier") for i in g.conv_left if i.wait is None), len(g.conv_left)
    sys.stderr.write(f"conv left {len(g.conv_left)}\n")
    g.p.put(g.conv_left)
    e(f"s_cmp_ge_u32 s{S_IDX}, 28\ns_cbranch_scc1 F_alt")
    g.modf_pub()
    e('WARMREG 2')
    g.shadow1()
    g.gemm1f()
    g.label("F_g2")
    def alt():
        g.label("F_alt")
        g.u_job(); g.modf_pub(); g.stamp(10)
        g.stats2_job(); g.stamp(11)
        g.wd_setup(); g.g2_setup()
        keep = dict(g.wdt); keep2 = dict(g.ht)
        for ks in range(15): g.wd_issue(ks)
        e("s_waitcnt vmcnt(0)")
        for ks in range(cfg["nrc"]): g.wd_read(ks)
        e("s_waitcnt lgkmcnt(0)")
        for ks in range(15, 15 + cfg["nrc"]): g.wd_issue(ks)
        g.fl_issue(0, 140, 144); e("s_waitcnt vmcnt(0)")
        g.guard("fa", lambda ex: e(f"v_cmp_ne_u32 vcc, s{S_TAG}, v144"), lambda: (g.fl_issue(0, 140, 144), e("s_waitcnt vmcnt(0)")))
        for (nt_, ks) in list(keep2): g.hl(0, ks, 147)
        g.wdt = keep; g.ht.update(keep2)
        e("s_waitcnt vmcnt(0)\ns_branch F_g2")
    g.ool += g.cap(alt)
    g.gemm2f(); g.bump_epoch()
    launch = f"; @launch grid=(256,1,1) block=(256,1,1) lds={LDS_BYTES}\n"
    return hdr + launch + '.amdgcn_target "amdgcn-amd-amdhsa--gfx950"\n' + kernel_text(KN, g.finish())

if __name__ == "__main__":
    over = {}
    for a in sys.argv[1:]:
        if "=" in a:
            k, v = a.split("="); over[k] = int(v)
    print(build(stamps="stamps" in sys.argv[1:], over=over))
```

```python
import sys, struct, math
from asmlib import *
KN = "adaLN_cond__ssm_conv_s4__glu_gated_geglu__prompt_kernel"
WS_ST1 = 0x1000; WS_MODP = 0x8000; WS_MODF = 0x20000; WS_ST2 = 0x24000
WS_FL1 = 0x28000; WS_FL3 = 0x2C000; WS_FL2 = 0x40000; WS_U = 0x80000; WS_XB = 0xC00000; WS_DBG = 0x1000000; WS_X1 = 0x100000; WS_X1S = 0x300000; WS_H = 0x500000; WS_SIZE = 0x1200000
L_TAB = 0; TABW = 17408; TPITCH = 272
L_K = 69632; KCH = 8320; KODD = 4164
L_HI = 86272; HCH = 4608
L_Z = 95488
L_MOD = 111872
L_SP = 131072
L_XT = 155648
L_SS = L_XT
L_XR2 = L_XT
LDS_BYTES = 163840
_POOL = [L_SP, L_SP + 8192, L_SP + 16384, L_MOD, L_MOD + 8192] + [L_TAB + 8192*i for i in range(8)]
def wslot(ks):
    if ks < 26: return _POOL[ks % 13]
    if ks < 29: return L_SP + 8192*(ks-26)
    return L_TAB + 8192*(ks-29)
S_WS = 4; S_WG = 8; S_WU = 12
P_X, P_ARE, P_AIM, P_BRE, P_BIM, P_CRE, P_CIM, P_LDT, P_DSK, P_BX, P_WG, P_WU, P_WD, P_C, P_WM, P_OUT, P_DBG, P_WS = [16 + 2 * i for i in range(18)]
S_X = 52; S_WM = 56; S_WD = 60; S_OUT = 64
S_TAG = 68; S_E = 69; S_WV = 70; S_D0 = 71; S_LDT = 72; S_DSK = 73
S_T0 = 74; S_T1 = 75; S_T2 = 76; S_T3 = 77; S_SPIN = 78; S_IDX = 79; S_XCD = 80
S_M = 82
S_EX = 94
S_ST = 96
S45 = 45; S46 = 46
S_CH = 16; S_PAR = 17
S_G1 = 98; S_G2 = 99; S_G3 = 100
SENT = 0xFFFFFFFF
BA = [124, 125, 126, 127, 141, 142, 2, 3]
def f2u(x): return struct.unpack("<I", struct.pack("<f", x))[0]
def hx(x): return "0x%08x" % (x & 0xFFFFFFFF)
def fl(x): return hx(f2u(x))
LOG2E = 1.4426950408889634
GAM = (2 * 0.7978845608028654 * LOG2E * 0.044715) ** (1.0 / 3)
GC = 2 * 0.7978845608028654 * LOG2E / GAM
def vr(b, n): return f"v[{b}:{b+n-1}]" if n > 1 else f"v{b}"
def ar(b, n): return f"a[{b}:{b+n-1}]" if n > 1 else f"a{b}"
def sr(b, n): return f"s[{b}:{b+n-1}]" if n > 1 else f"s{b}"
class G:
    def __init__(self, cfg):
        self.cfg = cfg; self.p = Prog(); self.nlab = 0; self.nstamp = 0; self.ool = []
    def lab(self, base):
        self.nlab += 1; return f"L{self.cfg['uid']}_{base}_{self.nlab}"
    def e(self, t): self.p.e(t)
    def tok(self, t): return self.p.tok(t)
    def wait(self, *t): self.p.wait(*t)
    def label(self, l): self.p.label(l)
    def stamp(self, i):
        if not self.cfg.get("stamps"): return
        e = self.e
        e(f"s_memtime s[{S_ST}:{S_ST+1}]")
        e("s_waitcnt lgkmcnt(0)")
        e(f"v_writelane_b32 v255, s{S_ST}, {i}")
    def stamp_flush(self):
        if not self.cfg.get("stamps"): return
        e = self.e
        e(f"s_memrealtime s[{S_ST}:{S_ST+1}]")
        e("s_waitcnt lgkmcnt(0)")
        e(f"v_writelane_b32 v255, s{S_ST}, 63")
        e(f"s_lshl_b32 s{S_T0}, s2, 10")
        e(f"s_add_u32 s{S_T0}, s{S_T0}, {WS_DBG + self.cfg.get('dbgoff', 0)}")
        e("v_lshlrev_b32 v254, 2, v0")
        e(f"buffer_store_dword v255, v254, s[{S_WS}:{S_WS+3}], s{S_T0} offen")
        if self.cfg.get("dbgout"):
            sk = self.lab("dbg")
            e(f"s_cmp_lg_u32 s2, {self.cfg['dbgout']}\ns_cbranch_scc1 {sk}\ns_cmp_lg_u32 s{S_WV}, 0\ns_cbranch_scc1 {sk}")
            e(f"v_readlane_b32 s{S_T1}, v255, 0\nv_readlane_b32 s{S_T2}, v255, 62\nv_readlane_b32 s{S_T3}, v255, 63\nv_mov_b32 v4, 0")
            for i, st in enumerate([1, 2, 23, 22, 21, 3, 4, 5, 6, 7, 12, 14, 16, 19, 18]):
                e(f"v_readlane_b32 s{S_T0}, v255, {st}\ns_sub_u32 s{S_T0}, s{S_T0}, s{S_T1}\nv_mov_b32 v3, s{S_T0}")
                e(f"global_store_dword v4, v3, s[{P_DBG}:{P_DBG+1}] offset:{4*i}")
            e(f"s_sub_u32 s{S_T0}, s{S_T3}, s{S_T2}\nv_mov_b32 v3, s{S_T0}")
            e(f"global_store_dword v4, v3, s[{P_DBG}:{P_DBG+1}] offset:60")
            self.label(sk)
    def srd(self, s, ptr, size):
        self.e(f"s_mov_b32 s{s}, s{ptr}\ns_mov_b32 s{s+1}, s{ptr+1}\ns_mov_b32 s{s+2}, {hx(size)}\ns_mov_b32 s{s+3}, 0x20000")
    def prologue(self):
        e = self.e
        e("s_cmp_ge_u32 s2, 256")
        e(f"s_cbranch_scc1 {self.cfg['uid']}_end")
        e("s_load_dwordx16 s[16:31], s[0:1], 0")
        e("s_load_dwordx16 s[32:47], s[0:1], 64")
        e("s_load_dwordx4 s[48:51], s[0:1], 128")
        if self.cfg.get("stamps"):
            e("v_mov_b32 v255, 0")
            e(f"s_memrealtime s[{S_ST}:{S_ST+1}]")
        if self.cfg.get("hold"): e("s_memrealtime s[34:35]" if False else "s_nop 0")
        if self.cfg.get("cpf"):
            n = self.cfg["cpf"]
            e("s_getpc_b64 s[4:5]\ns_and_b32 s4, s4, 0xffffff00")
            e(f"s_lshr_b32 s6, s2, 3\ns_mul_i32 s6, s6, {n*128}\nv_min_u32 v254, {n-1}, v0\nv_lshlrev_b32 v254, 7, v254\nv_add_u32 v254, s6, v254")
            e("s_mov_b64 exec, " + hx((1 << n) - 1) if False else "s_nop 0")
            e("global_load_dword v196, v254, s[4:5]")
        e("v_and_b32 v1, 63, v0")
        e("v_lshrrev_b32 v2, 6, v0")
        e(f"s_and_b32 s{S_XCD}, s2, 7")
        e(f"v_readfirstlane_b32 s{S_WV}, v2")
        e(f"s_lshr_b32 s{S_IDX}, s2, 3")
        e(f"s_lshl_b32 s{S_D0}, s{S_XCD}, 5")
        e(f"s_add_u32 s{S_D0}, s{S_D0}, s{S_IDX}")
        e(f"s_lshl_b32 s{S_D0}, s{S_D0}, 1")
        e(f"s_lshl_b32 s{S_T0}, s2, 13\ns_lshl_b32 s{S_T1}, s{S_WV}, 11\ns_add_u32 s{S_T0}, s{S_T0}, s{S_T1}")
        e("v_lshlrev_b32 v9, 4, v1")
        e("v_lshrrev_b32 v4, 3, v1\nv_and_b32 v5, 7, v1\nv_lshlrev_b32 v5, 4, v5\nv_lshl_add_u32 v3, v4, 10, v5")
        e(f"s_lshl_b32 s{S_T3}, s{S_IDX}, 16\ns_lshl_b32 s{S_T2}, s{S_XCD}, 7\ns_add_u32 s{S_T3}, s{S_T3}, s{S_T2}")
        e(f"s_lshl_b32 s{S_T2}, s{S_WV}, 14\ns_add_u32 s{S_T3}, s{S_T3}, s{S_T2}")
        e(f"s_add_u32 m0, s{S_T1}, {L_XT}")
        e(f"v_add_u32 v6, {8192 - 1024}, v3")
        e(f"s_lshl_b32 s{S_T2}, s{S_D0}, 8\nv_lshl_add_u32 v8, v0, 1, s{S_T2}")
        e(f"s_mul_i32 s{S_M}, s2, 1366\ns_lshr_b32 s{S_M}, s{S_M}, 16")
        e(f"s_mul_i32 s{S_M+2}, s{S_M}, 48\ns_sub_u32 s{S_M+1}, s2, s{S_M+2}")
        e(f"s_and_b32 s{S_M+2}, s{S_M}, 3\ns_lshl_b32 s{S_M+2}, s{S_M+2}, 8\nv_lshl_add_u32 v7, v1, 2, s{S_M+2}")
        e("v_mul_u32_u24 v33, 6144, v4\nv_add_u32 v33, v33, v5")
        e(f"s_mul_i32 s{S_M+2}, s{S_M}, {128*6144}\ns_lshl_b32 s{S_M+3}, s{S_M+1}, 7\ns_add_u32 s{S_M+2}, s{S_M+2}, s{S_M+3}")
        e(f"s_mul_i32 s{S_M+3}, s{S_WV}, {32*6144}\ns_add_u32 s{S_M+2}, s{S_M+2}, s{S_M+3}")
        e(f"s_mov_b32 s{S_X+2}, {hx(2097152)}\ns_mov_b32 s{S_X+3}, 0x20000\ns_mov_b32 s{S_WM+2}, {hx(3145728)}\ns_mov_b32 s{S_WM+3}, 0x20000")
        e("s_waitcnt lgkmcnt(0)")
        if self.cfg.get("stamps"):
            e(f"v_writelane_b32 v255, s{S_ST}, 62")
        if self.cfg.get("hold"): e("s_memrealtime s[34:35]")
        self.stamp(0)
    def srds_late(self):
        self.srd(S_WS, P_WS, WS_SIZE)
        self.srd(S_WD, P_WD, 1835008)
        self.srd(S_OUT, P_OUT, 2097152)
    def tag_ready(self):
        e = self.e
        e("s_waitcnt lgkmcnt(0)")
        e(f"s_mul_i32 s{S_TAG}, s{S_E}, 0x9E3779B1")
        e(f"s_add_u32 s{S_TAG}, s{S_TAG}, 0x7F4A7C15")
    def reduce16(self, regs):
        for ctl in ["quad_perm:[1,0,3,2]", "quad_perm:[2,3,0,1]", "row_half_mirror", "row_mirror"]:
            for r in regs:
                self.e(f"v_add_f32_dpp v{r}, v{r}, v{r} {ctl} row_mask:0xf bank_mask:0xf")
    def stat_finish(self, vs, vq, t0, t1):
        e = self.e
        e(f"v_mul_f32 v{vs}, {fl(1/512)}, v{vs}")
        e(f"v_mul_f32 v{t0}, v{vs}, v{vs}")
        e(f"v_mul_f32 v{vq}, {fl(1/512)}, v{vq}")
        e(f"v_sub_f32 v{vq}, v{vq}, v{t0}")
        e(f"v_max_f32 v{vq}, 0, v{vq}")
        e(f"v_cvt_pk_bf16_f32 v{t0}, v{vq}, v{vq}")
        e(f"v_and_b32 v{t0}, 0xffff0000, v{t0}")
        e(f"v_add_f32 v{t0}, {fl(1e-5)}, v{t0}")
        e(f"v_cvt_pk_bf16_f32 v{t0}, v{t0}, v{t0}")
        e(f"v_and_b32 v{t0}, 0xffff0000, v{t0}")
        e(f"v_sqrt_f32 v{t0}, v{t0}")
        e(f"v_cvt_pk_bf16_f32 v{vs}, v{t0}, v{vs}")
    def cmul_list(self, jobs):
        e = self.e; i = 0
        f1 = lambda d, a, b: f"v_pk_mul_f32 {vr(d,2)}, {vr(a,2)}, {vr(b,2)} op_sel:[0,0] op_sel_hi:[0,1]"
        f2 = lambda d, a, b: f"v_pk_fma_f32 {vr(d,2)}, {vr(a,2)}, {vr(b,2)}, {vr(d,2)} op_sel:[1,1,0] op_sel_hi:[1,0,1] neg_lo:[0,1,0]"
        while i < len(jobs):
            j = jobs[i]
            if i + 1 < len(jobs) and j[0] not in jobs[i+1][1:] and jobs[i+1][0] not in j:
                k = jobs[i+1]
                e(f1(*j)); e(f1(*k)); e(f2(*j)); e(f2(*k)); i += 2
            else:
                e(f1(*j)); e(f2(*j)); i += 1
    def kgen_pre(self):
        e = self.e
        e("v_mov_b32 v36, 0\nv_mov_b32 v37, 0\nv_mov_b32 v38, 0\nv_mov_b32 v39, 0")
        e("v_lshrrev_b32 v3, 5, v0")
        e(f"v_mul_u32_u24 v3, {HCH}, v3")
        e("v_and_b32 v4, 31, v0")
        e("v_lshl_add_u32 v3, v4, 4, v3")
        e(f"v_add_u32 v3, {L_HI}, v3")
        e("v_bfe_u32 v4, v0, 2, 2")
        e(f"v_mul_u32_u24 v4, 4160, v4")
        e("v_and_b32 v5, 3, v0")
        e("v_lshl_add_u32 v4, v5, 4, v4")
        e(f"v_add_u32 v4, {L_K + 4096}, v4")
        e("v_cmp_gt_u32 vcc, 64, v0")
        e("v_cndmask_b32 v3, v4, v3, vcc")
        e("v_cmp_gt_u32 vcc, 80, v0")
        e(f"s_and_saveexec_b64 s[{S_EX}:{S_EX+1}], vcc")
        zl = self.lab("z")
        e(f"s_cbranch_execz {zl}")
        e("ds_write_b128 v3, v[36:39]")
        self.label(zl)
        e(f"s_mov_b64 exec, s[{S_EX}:{S_EX+1}]")
        e(f"s_lshr_b32 s{S_T0}, s{S_WV}, 1")
        e(f"s_lshl_b32 s{S_T0}, s{S_T0}, 4")
        e(f"s_lshr_b32 s{S_T1}, s{S_LDT}, s{S_T0}")
        e(f"s_lshl_b32 s{S_T1}, s{S_T1}, 16")
        e(f"v_mov_b32 v3, {fl(LOG2E)}")
        e(f"v_mul_f32 v3, s{S_T1}, v3")
        e("v_exp_f32 v3, v3")
        e("v_cvt_pk_bf16_f32 v3, v3, v3")
        e("v_and_b32 v35, 0xffff0000, v3")
    def kgen_tab(self, chunks=()):
        e = self.e
        keep = self.p.take()
        for i in range(6): e(f"v_lshlrev_b32 v{26+i}, 16, v{18+i}")
        e("v_mul_f32 v26, v26, v35\nv_mul_f32 v27, v27, v35\nv_mul_f32 v28, v28, v35\nv_mul_f32 v29, v29, v35")
        e(f"v_mul_f32 v26, {fl(LOG2E)}, v26")
        e("v_mul_f32 v27, 0.15915494, v27")
        S = lambda j: 40 + 2 * j
        Gt = lambda T: 74 + 2 * (T - 1)
        Pn = lambda n: 88 + 2 * n
        S32, S64, S128 = 138, 140, 142
        def direct(dst, t, a, b, c):
            if t == 1:
                e(f"v_exp_f32 v{a}, v26\nv_fract_f32 v{b}, v27")
            else:
                e(f"v_mul_f32 v{a}, {fl(float(t))}, v26\nv_mul_f32 v{b}, {fl(float(t))}, v27")
                e(f"v_exp_f32 v{a}, v{a}\nv_fract_f32 v{b}, v{b}")
            e(f"v_cos_f32 v{c}, v{b}\nv_sin_f32 v{b}, v{b}\ns_nop 0")
            e(f"v_mul_f32 v{dst}, v{a}, v{c}\nv_mul_f32 v{dst+1}, v{a}, v{b}")
        e(f"s_mul_i32 s{S_T3}, s{S_WV}, {TABW}\ns_mov_b32 m0, s{S_T3}")
        st = {"n": 0, "q": []}
        NBAT = 8
        def flush():
            for ent_, r_ in st["q"]: e(f"ds_write_addtid_b32 v{r_} offset:{L_TAB + ent_*TPITCH}")
            st["q"] = []
        def pair(ent, jobs, srcs, neg=False):
            self.cmul_list(jobs)
            for i in range(2):
                pk = 128 + (st["n"] % NBAT); st["n"] += 1
                if srcs[i] is None: e(f"v_mov_b32 v{pk}, 0x3f80")
                else: e(f"v_cvt_pk_bf16_f32 v{pk}, v{srcs[i]}, {'-' if neg else ''}v{srcs[i]+1}")
                st["q"].append((ent + i, pk))
            if len(st["q"]) == NBAT: flush()
        direct(S(1), 1, 120, 121, 122)
        pair(0, [], [None, S(1)])
        direct(S(16), 16, 123, 124, 125)
        pair(2, [(S(2), S(1), S(1)), (Pn(0), 30, 28), (S(3), S(2), S(1))], [S(2), S(3)])
        direct(Gt(1), 256, 120, 121, 122)
        pair(48, [(Pn(1), Pn(0), S(16)), (S32, S(16), S(16))], [Pn(0), Pn(1)], True)
        pair(4, [(S(4), S(2), S(2)), (S(5), S(3), S(2))], [S(4), S(5)])
        pair(6, [(S(6), S(4), S(2)), (S(7), S(4), S(3))], [S(6), S(7)])
        pair(50, [(Pn(2), Pn(0), S32), (Pn(3), Pn(1), S32), (S64, S32, S32)], [Pn(2), Pn(3)], True)
        pair(8, [(S(8), S(4), S(4)), (S(9), S(5), S(4))], [S(8), S(9)])
        pair(10, [(S(10), S(8), S(2)), (S(11), S(8), S(3))], [S(10), S(11)])
        pair(52, [(Pn(4), Pn(0), S64), (Pn(5), Pn(1), S64)], [Pn(4), Pn(5)], True)
        pair(54, [(Pn(6), Pn(2), S64), (Pn(7), Pn(3), S64), (S128, S64, S64)], [Pn(6), Pn(7)], True)
        pair(12, [(S(12), S(8), S(4)), (S(13), S(8), S(5))], [S(12), S(13)])
        pair(14, [(S(14), S(8), S(6)), (S(15), S(8), S(7))], [S(14), S(15)])
        aux = [[(Gt(2), Gt(1), Gt(1))], [(Gt(3), Gt(2), Gt(1))], [(Gt(4), Gt(2), Gt(2))], []]
        for i in range(4):
            pair(56 + 2*i, [(Pn(8+2*i), Pn(2*i), S128), (Pn(9+2*i), Pn(2*i+1), S128)] + aux[i], [Pn(8+2*i), Pn(9+2*i)], True)
        ents = {0: [(1, 0), (1, 2), (1, 4), (1, 6), (1, 8), (4, 0), (4, 8), (4, 16)],
                1: [(1, 8), (1, 10), (1, 12), (1, 14), (1, 16), (5, 0), (5, 8), (5, 16)],
                2: [(2, 0), (2, 4), (2, 8), (2, 12), (2, 16), (6, 0), (6, 8), (6, 16)],
                3: [(3, 0), (3, 4), (3, 8), (3, 12), (3, 16), (7, 0), (7, 8), (7, 16)]}
        extra = {(0, 0): (Gt(5), Gt(4), Gt(1)), (2, 0): (Gt(6), Gt(4), Gt(2)), (3, 0): (Gt(7), Gt(4), Gt(3))}
        tb = 0
        for q in range(4):
            for h in range(4):
                two = ents[q][2*h:2*h+2]; base = 88 + 4*(tb & 3); tb += 1
                jobs = []; srcs = []
                for i, (T, j) in enumerate(two):
                    if j == 0: srcs.append(Gt(T))
                    else: jobs.append((base + 2*i, Gt(T), S(j))); srcs.append(base + 2*i)
                if (q, h) in extra: jobs.append(extra[(q, h)])
                pair(16 + 16*(h >> 1) + 4*q + 2*(h & 1), jobs, srcs)
        body = self.p.take()
        out = []; ci = 0; nb = 0
        for k_, ins in enumerate(body):
            out.append(ins)
            last = ins.text.startswith("ds_write_addtid") and (k_ + 1 == len(body) or not body[k_+1].text.startswith("ds_write_addtid"))
            if last:
                nb += 1
                if nb > self.cfg["wa0"] and ci < len(chunks):
                    out += chunks[ci] + chunks[ci+1] + [Ins(f"s_mov_b32 m0, s{S_T3}")]; ci += 2
        for c in chunks[ci:]: out += c
        self.p.put(keep + out)

    def kgen_post(self, post_b2=None):
        e = self.e
        e(f"s_lshr_b32 s{S_T2}, s{S_WV}, 1\ns_mul_i32 s{S_T0}, s{S_T2}, {2*TABW}")
        e(f"v_and_b32 v6, 15, v1\nv_mul_u32_u24 v3, {TPITCH}, v6")
        e("v_lshrrev_b32 v7, 4, v1\nv_lshl_add_u32 v3, v7, 4, v3")
        e(f"v_add_u32 v3, s{S_T0}, v3")
        e(f"s_and_b32 s{S_T1}, s{S_WV}, 1\ns_mul_i32 s{S_T1}, s{S_T1}, {16*TPITCH}\nv_add_u32 v4, s{S_T1}, v3")
        e(f"s_mul_i32 s{S_T2}, s{S_T2}, {KCH}\ns_add_u32 s{S_T2}, s{S_T2}, {L_K}")
        e(f"v_lshlrev_b32 v6, 5, v6\nv_sub_u32 v6, s{S_T2}, v6")
        e("v_lshlrev_b32 v9, 9, v7\nv_sub_u32 v9, v6, v9")
        e("s_waitcnt lgkmcnt(0)\ns_barrier")
        self.stamp(21)
        F = 40; toks = {}
        for ks in range(8):
            o = L_TAB + (ks >> 2)*TABW + (ks & 3)*64; r = F + 12*ks
            self.tok(f"ds_read_b128 {vr(r+8,4)}, v3 offset:{o + 48*TPITCH}")
            toks[(ks, 0)] = self.tok(f"ds_read_b128 {vr(r,4)}, v4 offset:{o}")
            toks[(ks, 1)] = self.tok(f"ds_read_b128 {vr(r+4,4)}, v3 offset:{o + 32*TPITCH}")
        A0 = 136; A2 = 140
        for ks in range(8):
            r = F + 12*ks
            for b, acc in ((0, A0), (1, A2)):
                self.wait(toks[(ks, b)])
                e(f"v_mfma_f32_16x16x32_bf16 {vr(acc,4)}, {vr(r+4*b,4)}, {vr(r+8,4)}, {vr(acc,4) if ks else '0'}")
        e("s_barrier")
        if post_b2: post_b2()
        h1 = self.lab("kh1"); jn = self.lab("kj")
        e(f"s_bitcmp1_b32 s{S_WV}, 0\ns_cbranch_scc1 {h1}")
        def cv(d, lst):
            for i, (a, b) in enumerate(lst): e(f"v_cvt_pk_bf16_f32 v{d+i}, v{a}, v{b}")
        O = KODD - 4
        e("v_lshlrev_b32 v8, 3, v7\nv_sub_u32 v8, v6, v8")
        f0, f1, f2 = A2+1, A2+2, A2+3
        cv(52, [(f2, f2), (f2, f2), (f1, f1), (f1, f1), (f1, f1), (f1, f0), (f0, f0), (f0, f0)])
        e(f"ds_write_b128 v9, v[52:55] offset:{2*(2032-1024)}")
        cv(60, [(f2, f2), (f2, f2), (f2, f1), (f1, f1), (f1, f1), (f1, f1), (f0, f0), (f0, f0)])
        e(f"ds_write_b128 v9, v[56:59] offset:{2*(2032-1024)+16}")
        cv(48, [(A0+3, A0+2), (A0+1, A0), (A0+2, A0+1)])
        e(f"ds_write_b128 v9, v[60:63] offset:{2*(2032-1024) + O}")
        e(f"ds_write_b128 v9, v[64:67] offset:{2*(2032-1024) + O + 16}")
        e(f"ds_write_b64 v8, v[48:49] offset:{2*2044}")
        e(f"ds_write_b16 v8, v48 offset:{2*2044 + O + 2}")
        e(f"ds_write_b32 v8, v50 offset:{2*2044 + O + 4}")
        e(f"ds_write_b16_d16_hi v8, v49 offset:{2*2044 + O + 8}")
        e(f"s_branch {jn}")
        self.label(h1)
        e("v_lshlrev_b32 v8, 4, v7\nv_sub_u32 v8, v6, v8")
        E_ = lambda j: A0 + j if j < 4 else A2
        C = lambda lst: [(E_(a), E_(b)) for a, b in lst]
        cv(52, C([(4, 4), (3, 3), (3, 2), (2, 2), (2, 2), (1, 1), (1, 0), (0, 0)]))
        e("s_mov_b32 exec_lo, 0")
        e(f"ds_write_b128 v9, v[52:55] offset:{2*2032}\nds_write_b128 v9, v[56:59] offset:{2*2032+16}")
        e("s_mov_b32 exec_lo, -1")
        cv(60, C([(4, 4), (4, 3), (3, 3), (2, 2), (2, 2), (2, 1), (1, 1), (0, 0)]))
        e("s_mov_b32 exec_lo, 0")
        e(f"ds_write_b128 v9, v[60:63] offset:{2*2032 + O}\nds_write_b128 v9, v[64:67] offset:{2*2032 + O + 16}")
        e("s_mov_b32 exec_lo, -1")
        cv(40, C([(4, 3), (2, 2), (2, 1), (0, 0), (4, 4), (3, 2), (2, 2), (1, 0)]))
        e("s_mov_b32 exec_hi, 0")
        e(f"ds_write_b128 v8, v[40:43] offset:{2*(2040-256)}\nds_write_b128 v8, v[44:47] offset:{2*(2040-256) + O}")
        e(f"ds_write_b16 v8, v43 offset:{2*(2040-256) + O + 16}")
        e("s_mov_b32 exec_hi, -1")
        self.label(jn)

    def spin_check(self, retry_label, out_label=None):
        e = self.e
        e(f"s_sub_u32 s{S_SPIN}, s{S_SPIN}, 1")
        e(f"s_cmp_lg_u32 s{S_SPIN}, 0")
        e(f"s_cbranch_scc1 {retry_label}")
    def hbuild(self, after_first=None, mid=None):
        e = self.e
        e(f"s_lshl_b32 s{S_T0}, s{S_WV}, 12\nv_lshl_add_u32 v3, v1, 4, s{S_T0}")
        e("v_and_b32 v4, 3, v1")
        e(f"v_mul_u32_u24 v4, {3072*8}, v4")
        e("v_lshrrev_b32 v5, 3, v1")
        e("v_min_u32 v5, 5, v5")
        e("v_lshl_add_u32 v4, v5, 12, v4")
        e("v_bfe_u32 v6, v1, 2, 1")
        e("v_lshl_add_u32 v4, v6, 3, v4")
        e(f"s_lshl_b32 s{S_T0}, s{S_D0}, 3")
        e(f"s_add_u32 s{S_T0}, s{S_T0}, {WS_MODP}")
        e(f"s_mov_b32 s{S_T1}, {WS_ST1}")
        e(f"s_lshl_b32 s{S_T2}, s{S_D0}, 13\ns_add_u32 s{S_T2}, s{S_T2}, {hx(WS_XB)}")
        e(f"s_mov_b32 s{S_SPIN}, {self.cfg['spin']}")
        rt = self.lab("h0"); ok = self.lab("h0ok"); ck = self.lab("h0ck")
        def pl():
            self.tok(f"buffer_load_dwordx2 v[8:9], v4, s[{S_WS}:{S_WS+3}], s{S_T0} offen sc1")
            for i in range(4):
                t_ = self.tok(f"buffer_load_dwordx4 v[{40+4*i}:{43+4*i}], v3, s[{S_WS}:{S_WS+3}], s{S_T1} offen offset:{1024*i} sc1")
            for i in range(4):
                t_ = self.tok(f"buffer_load_dwordx4 v[{20+4*i}:{23+4*i}], v3, s[{S_WS}:{S_WS+3}], s{S_T2} offen offset:{1024*i} sc1")
            return t_
        if after_first:
            t_ = pl(); self.stamp(26); after_first(); self.wait(t_); self.stamp(25)
            e(f"s_branch {ck}")
            keep = self.p.take()
            self.label(rt); pl(); e("s_waitcnt vmcnt(0)"); e(f"s_branch {ck}")
            self.ool += self.p.take(); self.p.put(keep[:-1])
            self.label(ck)
        else:
            self.label(rt); pl(); e("s_waitcnt vmcnt(0)")
        e(f"v_mov_b32 v10, s{S_TAG}")
        if True: e("v_cmp_gt_u32 vcc, 24, v1\nv_cndmask_b32 v9, v10, v9, vcc")
        for i in range(8):
            e(f"v_min3_u32 v11, v{41+2*i}, v{21+2*i}, {'v11' if i else 'v9'}")
            e(f"v_max3_u32 v12, v{41+2*i}, v{21+2*i}, {'v12' if i else 'v9'}")
        e("v_xor_b32 v11, v11, v10\nv_xor_b32 v12, v12, v10\nv_or_b32 v7, v11, v12")
        e("v_cmp_ne_u32 vcc, 0, v7")
        e(f"s_cbranch_vccz {ok}")
        self.spin_check(rt)
        self.label(ok)
        self.stamp(4)
        if self.cfg.get("stamps"): e(f"s_sub_u32 s{S_ST}, {self.cfg['spin']+1}, s{S_SPIN}\nv_writelane_b32 v255, s{S_ST}, 50")
        e(f"s_mov_b32 s{S_EX}, s{S_T0}\nv_mov_b32 v237, v4")
        keep_ = self.p.take()
        e("v_add_f32_dpp v8, v8, v8 quad_perm:[1,0,3,2] row_mask:0xf bank_mask:0xf")
        for i in range(4): e(f"v_lshlrev_b32 v{64+i}, 16, v{40+2*i}")
        e("v_add_f32_dpp v8, v8, v8 quad_perm:[2,3,0,1] row_mask:0xf bank_mask:0xf")
        for i in range(4, 8): e(f"v_lshlrev_b32 v{64+i}, 16, v{40+2*i}")
        e("v_cvt_pk_bf16_f32 v8, v8, v8\nv_rcp_f32 v64, v64\nv_and_b32 v8, 0xffff0000, v8\nv_rcp_f32 v65, v65")
        e("v_add_f32 v9, 1.0, v8\nv_rcp_f32 v66, v66")
        e("v_cvt_pk_bf16_f32 v9, v9, v9\nv_rcp_f32 v67, v67\nv_and_b32 v9, 0xffff0000, v9")
        X = 72; Hh = 88; Z = 104
        for i in range(8):
            if i < 3:
                src = 9 if i in (1, 4) else 8
                e(f"v_readlane_b32 s{S_M+2*i}, v{src}, {8*i}")
                e(f"v_readlane_b32 s{S_M+2*i+1}, v{src}, {8*i+4}")
            if i >= 4: e(f"v_rcp_f32 v{64+i}, v{64+i}")
            e(f"v_and_b32 v{56+i}, 0xffff0000, v{40+2*i}")
            k_ = i >> 1; src_ = 20 + 4*k_ + 2*(i & 1); dst_ = X + 8*(k_ & 1) + 4*(k_ >> 1) + 2*(i & 1)
            e(f"v_lshlrev_b32 v{dst_}, 16, v{src_}")
            e(f"v_and_b32 v{dst_+1}, 0xffff0000, v{src_}")
        sa, sA, ga, sb, sB, gb = [S_M + 2*i for i in range(6)]
        e(f"v_mov_b32 v16, s{ga}\nv_mov_b32 v17, s{ga+1}")
        for k in range(8):
            e(f"v_pk_add_f32 {vr(Hh+2*k,2)}, {vr(X+2*k,2)}, {vr(56+2*(k&3),2)} neg_lo:[0,1] neg_hi:[0,1]")
        e(f"v_mul_f32 v10, s{sA}, v16\nv_mul_f32 v11, s{sA+1}, v17")
        e(f"v_mul_f32 v12, s{sa}, v16\nv_mul_f32 v13, s{sa+1}, v17")
        e(f"s_lshl_b32 s{S_T0}, s{S_DSK}, 16\ns_and_b32 s{S_T1}, s{S_DSK}, 0xffff0000")
        e(f"v_mov_b32 v14, s{S_T0}\nv_mov_b32 v15, s{S_T1}")
        for k in range(8):
            e(f"v_pk_mul_f32 {vr(Hh+2*k,2)}, {vr(Hh+2*k,2)}, {vr(64+2*(k&3),2)}")
        for k in range(8):
            c = k >> 2
            e(f"v_pk_fma_f32 {vr(Hh+2*k,2)}, {vr(Hh+2*k,2)}, v[10:11], v[12:13] op_sel:[0,{c},{c}] op_sel_hi:[1,{c},{c}]")
        for ch in range(2):
            for j in range(4):
                e(f"v_cvt_pk_bf16_f32 v{120+4*ch+j}, v{Hh+8*ch+2*j}, v{Hh+8*ch+2*j+1}")
            e(f"ds_write_b128 v183, v[{120+4*ch}:{123+4*ch}] offset:{HCH*ch}")
        for k in range(8):
            c = k >> 2
            e(f"v_pk_fma_f32 {vr(Z+2*k,2)}, {vr(Hh+2*k,2)}, v[14:15], {vr(X+2*k,2)} op_sel:[0,{c},0] op_sel_hi:[1,{c},1]")
            if k & 1: e(f"ds_write_b128 v184, {vr(Z+2*k-2,4)} offset:{8192*c + 16*((k>>1)&1)}")
        body_ = self.p.take()
        self.p.put(keep_ + spread(body_, [(0, c_) for c_ in (mid() if mid else [])]))
    def late_issue(self): return self.tok(f"buffer_load_dwordx2 v[238:239], v237, s[{S_WS}:{S_WS+3}], s{S_EX} offen sc1")
    def late_fin(self, tl):
        e = self.e
        self.wait(tl)
        self.guard("lt", lambda ex: e(f"v_cmp_ne_u32 vcc, s{S_TAG}, v239"), lambda: (self.late_issue(), e("s_waitcnt vmcnt(0)")))
        e("v_add_f32_dpp v238, v238, v238 quad_perm:[1,0,3,2] row_mask:0xf bank_mask:0xf")
        e("s_nop 1")
        e("v_add_f32_dpp v238, v238, v238 quad_perm:[2,3,0,1] row_mask:0xf bank_mask:0xf")
        e("v_cvt_pk_bf16_f32 v238, v238, v238\nv_and_b32 v238, 0xffff0000, v238\nv_add_f32 v239, 1.0, v238")
        e("v_cvt_pk_bf16_f32 v239, v239, v239\nv_and_b32 v239, 0xffff0000, v239\ns_nop 0")
        for i in (4, 5):
            src = 239 if i == 4 else 238
            e(f"v_readlane_b32 s{S_M+2*i}, v{src}, {8*i}\nv_readlane_b32 s{S_M+2*i+1}, v{src}, {8*i+4}")
    def modf_pub(self):
        e = self.e
        sa, sA, ga, sb, sB, gb = [S_M + 2*i for i in range(6)]
        nm = self.lab("nomodf")
        e(f"s_cmp_lg_u32 s{S_WV}, 0")
        e(f"s_cbranch_scc1 {nm}")
        e(f"v_mov_b32 v20, 0\nv_mov_b32 v21, s{S_TAG}\nv_mov_b32 v22, s{gb}\nv_mov_b32 v23, s{S_TAG}")
        e(f"v_writelane_b32 v22, s{gb+1}, 1")
        e("v_lshlrev_b32 v19, 4, v1")
        e(f"s_lshl_b32 s{S_T0}, s{S_D0}, 4\ns_add_u32 s{S_T0}, s{S_T0}, {WS_MODF}")
        e("s_mov_b64 exec, 3")
        self.p.nc(f"buffer_store_dwordx4 v[20:23], v19, s[{S_WS}:{S_WS+3}], s{S_T0} offen sc1")
        e("s_mov_b64 exec, -1")
        self.label(nm)
    def conv_setup(self):
        e = self.e
        e(f"s_lshr_b32 s{S_CH}, s{S_WV}, 1")
        e(f"s_and_b32 s{S_PAR}, s{S_WV}, 1")
        e("v_and_b32 v176, 15, v1\nv_lshrrev_b32 v177, 4, v1")
        e("v_lshlrev_b32 v178, 3, v177")
        e("v_sub_u32 v178, v178, v176")
        e("v_add_u32 v178, 2031, v178")
        e("v_lshrrev_b32 v178, 1, v178")
        e("v_and_b32 v179, 1, v1\nv_xor_b32 v179, 1, v179")
        e(f"v_mul_u32_u24 v179, {KODD}, v179")
        e("v_lshl_add_u32 v178, v178, 2, v179")
        e(f"s_mul_i32 s{S_T0}, s{S_CH}, {KCH}")
        e(f"s_lshl_b32 s{S_T1}, s{S_PAR}, 8")
        e(f"s_sub_u32 s{S_T0}, s{S_T0}, s{S_T1}")
        e(f"s_add_u32 s{S_T0}, s{S_T0}, {L_K - 192 - 512}")
        for j in range(4):
            e(f"v_add_u32 v{168+j}, s{S_T0}, v178")
            if j < 3: e(f"s_sub_u32 s{S_T0}, s{S_T0}, 1024")
        e("v_lshlrev_b32 v178, 5, v176")
        e("v_lshl_add_u32 v178, v177, 4, v178")
        e(f"s_mul_i32 s{S_T0}, s{S_CH}, {HCH}")
        e(f"s_sub_u32 s{S_T0}, s{S_T0}, s{S_T1}")
        e(f"s_add_u32 s{S_T0}, s{S_T0}, {L_HI + 480 - 192}")
        e(f"v_add_u32 v172, s{S_T0}, v178")
        e("v_lshl_add_u32 v178, v176, 5, v178")
        e(f"s_lshl_b32 s{S_T0}, s{S_CH}, 13")
        e(f"s_lshl_b32 s{S_T1}, s{S_PAR}, 12")
        e(f"s_add_u32 s{S_T0}, s{S_T0}, s{S_T1}")
        e(f"s_add_u32 s{S_T0}, s{S_T0}, {L_Z}")
        e(f"v_add_u32 v173, s{S_T0}, v178")
        e(f"s_lshl_b32 s{S_T0}, s{S_WV}, 12\ns_add_u32 s{S_T0}, s{S_T0}, {L_Z}\nv_lshl_add_u32 v180, v1, 4, s{S_T0}")
        e(f"s_xor_b32 s{S_T1}, s{S_WV}, 1\ns_lshl_b32 s{S_T1}, s{S_T1}, 12\ns_add_u32 s{S_T1}, s{S_T1}, {L_Z}\nv_lshl_add_u32 v181, v1, 4, s{S_T1}")
        e("v_and_b32 v176, 15, v1\nv_lshrrev_b32 v177, 4, v1")
        e("v_lshrrev_b32 v182, 1, v176\nv_and_b32 v179, 1, v177\nv_lshl_add_u32 v182, v179, 3, v182\nv_lshlrev_b32 v182, 15, v182")
        e("v_and_b32 v176, 1, v176\nv_lshl_add_u32 v182, v176, 5, v182\nv_lshrrev_b32 v177, 1, v177\nv_lshl_add_u32 v182, v177, 4, v182")
        e(f"s_add_u32 s27, s{S_D0}, s{S_CH}\ns_lshl_b32 s27, s27, 6\ns_lshl_b32 s28, s{S_PAR}, 20\ns_add_u32 s27, s27, s28")
        e(f"s_add_u32 s28, s27, {hx(WS_X1S)}\ns_add_u32 s27, s27, {hx(WS_X1)}\ns_add_u32 s29, s27, {hx(16*32768)}\ns_add_u32 s30, s28, {hx(16*32768)}")
        e(f"v_lshlrev_b32 v183, 4, v0\nv_add_u32 v183, {L_HI + 512}, v183\nv_lshlrev_b32 v184, 5, v0\nv_add_u32 v184, {L_Z}, v184")
        e("v_mov_b32 v248, -1\nv_mov_b32 v249, -1\nv_mov_b32 v250, -1\nv_mov_b32 v251, -1")
        e("v_lshrrev_b32 v252, 3, v0\nv_lshlrev_b32 v252, 15, v252\nv_and_b32 v176, 7, v0\nv_lshl_add_u32 v252, v176, 4, v252")
        e(f"s_lshl_b32 s31, s{S_D0}, 6\nv_lshlrev_b32 v236, 4, v0\nv_mov_b32 v199, 0")
        e(f"s_lshl_b32 s32, s{S_D0}, 5\ns_cmp_lg_u32 s{S_WV}, 0\ns_cselect_b32 s32, 0x7f000000, s32")
    def conv(self, fillers=None, pre_start=None, pre_bar=None, post_bar=None):
        e = self.e
        ACC = 4
        FA = [40, 104]; FB = [72, 136]
        if pre_start: pre_start()
        e("s_waitcnt lgkmcnt(0)")
        e("s_barrier")
        self.stamp(5)
        p1 = self.lab("cp1"); jn = self.lab("cj")
        e(f"s_cmp_lg_u32 s{S_PAR}, 0")
        e(f"s_cbranch_scc1 {p1}")
        for par in range(2):
            for c in range(4):
                r = ACC + 4 * (4*par + c)
                e(f"ds_read_b128 v[{r}:{r+3}], v173 offset:{1024*c}")
            for r in range(16): e(f"v_mov_b32 v{ACC + 16*(1-par) + r}, 0")
            if par == 0:
                e(f"s_branch {jn}"); self.label(p1)
        self.label(jn)
        def loads(it):
            s = it & 1; L = []; o = 16 * (3 - it)
            tk = {}
            for k in range(8):
                tk[("B", k)] = self.tok(f"ds_read_b128 {vr(FB[s]+4*k,4)}, v172 offset:{512*k + 64*(3-it)}")
                b = 168 + (k >> 1); oo = o + (0 if k & 1 else 128)
                self.tok(f"ds_read2_b32 {vr(FA[s]+4*k,2)}, v{b} offset0:{oo} offset1:{oo+1}")
                tk[("A", k)] = self.tok(f"ds_read2_b32 {vr(FA[s]+4*k+2,2)}, v{b} offset0:{oo+2} offset1:{oo+3}")
            return tk
        pre = self.p.take()
        tks = [None] * 4
        tks[0] = loads(0)
        main = self.p.take()
        carry = []
        for it in range(4):
            nxt = []
            if it < 3:
                tks[it+1] = loads(it+1); nxt = self.p.take()
            s = it & 1
            order = sorted([(u, v) for u in range(8) for v in range(8 - u)], key=lambda t: (max(t), t[0]))
            seen = set(); k = 0
            for (u, v) in order:
                need = [t for t in (("A", u), ("B", v)) if t not in seen]
                if need:
                    self.wait(*[tks[it][t] for t in need]); seen |= set(need)
                cb = u + v
                e(f"v_mfma_f32_16x16x32_bf16 {vr(ACC+4*cb,4)}, {vr(FA[s]+4*u,4)}, {vr(FB[s]+4*v,4)}, {vr(ACC+4*cb,4)}")
                if nxt and ((it > 0 and (k % 3 != 2 or len(nxt) >= 35 - k)) or (it == 0 and k >= 10)):
                    self.p.put([nxt.pop(0)])
                k += 1
            self.p.put(nxt)
            seg = self.p.take()
            if it == 0: seg = main + seg; main = []
            carry = carry + (fillers.get(it, []) if fillers else [])
            seg, carry = merge(seg, carry, 8, pace=self.cfg["cpace"])
            if it in self.cfg.get('cflush', ()): seg += carry; carry = []
            main += seg
        self.p.put(pre + main)
        self.conv_left = carry
        self.stamp(6)
        if pre_bar: pre_bar()
        p1 = self.lab("ep1"); jn = self.lab("ej")
        e(f"s_cmp_lg_u32 s{S_PAR}, 0")
        e(f"s_cbranch_scc1 {p1}")
        for par in range(2):
            e("s_nop 7")
            for c in range(4):
                r = ACC + 4 * (4*(1-par) + c)
                e(f"ds_write_b128 v180, {vr(r,4)} offset:{1024*c}")
            e("s_waitcnt lgkmcnt(0)")
            e("s_barrier")
            for c in range(4): e(f"ds_read_b128 {vr(40+4*c,4)}, v181 offset:{1024*c}")
            for c in range(4):
                e(f"s_waitcnt lgkmcnt({3-c})")
                r = ACC + 4 * (4*par + c)
                e(f"v_pk_add_f32 {vr(40+4*c,2)}, {vr(40+4*c,2)}, {vr(r,2)}")
                e(f"v_pk_add_f32 {vr(42+4*c,2)}, {vr(42+4*c,2)}, {vr(r+2,2)}")
            if par == 0:
                e(f"s_branch {jn}"); self.label(p1)
        self.label(jn)
        sB = S_M + 8
        e(f"s_cmp_eq_u32 s{S_CH}, 0")
        e(f"s_cselect_b32 s{S_T0}, s{sB}, s{sB+1}")
        e(f"v_mov_b32 v38, s{S_T0}\nv_mov_b32 v39, s{S_T0}")
        if post_bar: post_bar()
        for pr in range(2):
            a = 40 + 8*pr
            d = 60 + 8*pr
            for h in range(4): e(f"v_pk_mul_f32 {vr(76+2*h,2)}, {vr(a+2*h,2)}, v[38:39]")
            for h in range(4): e(f"v_cvt_pk_bf16_f32 v{d+h}, v{76+2*h}, v{77+2*h}")
            for h in range(4): e(f"v_cvt_pk_bf16_f32 v{d+4+h}, v{a+2*h}, v{a+2*h+1}")
            e(f"v_permlane16_swap_b32 v{d}, v{d+2}\nv_permlane16_swap_b32 v{d+1}, v{d+3}")
            e(f"buffer_store_dwordx4 {vr(d,4)}, v182, s[{S_WS}:{S_WS+3}], s{28 + 2*pr} offen sc1")
            e(f"v_permlane16_swap_b32 v{d+4}, v{d+6}\nv_permlane16_swap_b32 v{d+5}, v{d+7}")
            self.x1st = self.tok(f"buffer_store_dwordx4 {vr(d+4,4)}, v182, s[{S_WS}:{S_WS+3}], s{27 + 2*pr} offen sc1")
        self.stamp(7)
    def g1_map(self):
        e = self.e
        if self.cfg["map8"]:
            e(f"s_lshr_b32 s{S_T0}, s{S_XCD}, 1\ns_mul_i32 s{S_T0}, s{S_T0}, 28\ns_add_u32 s{S_T0}, s{S_T0}, s{S_IDX}")
            e(f"s_and_b32 s{S_G1}, s{S_XCD}, 1\ns_lshl_b32 s{S_G1}, s{S_G1}, 3\ns_and_b32 s{S_G2}, s{S_T0}, 7\ns_add_u32 s{S_G1}, s{S_G1}, s{S_G2}")
            e(f"s_lshr_b32 s{S_G2}, s{S_T0}, 3")
        else:
            e(f"s_lshr_b32 s{S_G1}, s{S_XCD}, 1\ns_lshl_b32 s{S_G1}, s{S_G1}, 2")
            e(f"s_and_b32 s{S_T0}, s{S_IDX}, 3\ns_add_u32 s{S_G1}, s{S_G1}, s{S_T0}")
            e(f"s_and_b32 s{S_G2}, s{S_XCD}, 1\ns_mul_i32 s{S_G2}, s{S_G2}, 7")
            e(f"s_lshr_b32 s{S_T0}, s{S_IDX}, 2\ns_add_u32 s{S_G2}, s{S_G2}, s{S_T0}")
        e(f"s_lshl_b32 s15, s{S_XCD}, 2\ns_add_u32 s15, s15, s{S_IDX}\ns_sub_u32 s15, s15, 28")
        e(f"s_lshr_b32 s14, s15, 1\ns_and_b32 s13, s15, 1\ns_cmp_ge_u32 s{S_IDX}, 28")
        e(f"s_cselect_b32 s{S_G2}, s14, s{S_G2}\ns_cselect_b32 s{S_G1}, 0, s{S_G1}\ns_cselect_b32 s{S_G3}, s13, 0\ns_cselect_b32 s15, s15, 0")
        e(f"s_cmp_ge_u32 s15, 28\ns_cselect_b32 s10, 0, {hx(1835008)}\ns_mov_b32 s11, 0x20000")
        e(f"s_lshl_b32 s{S_G2}, s{S_G2}, 7")
        e(f"s_lshl_b32 s{S_T0}, s{S_WV}, 5\ns_add_u32 s{S_G2}, s{S_G2}, s{S_T0}")
    AX = 176
    BX = 184
    def g1_fold(self, g, acc):
        for t in range(2):
            self.e(f"v_mfma_f32_32x32x16_bf16 {vr(acc+16*t,16)}, {vr(self.AX+4*t,4)}, {vr(self.BX+4*g,4)}, {vr(acc+16*t,16)}")
    def g1_epilogue(self, g, acc, stat, split=False):
        e = self.e
        save = self.p.take()
        T = 148
        rG, kD = stat, stat+1
        for t in range(2):
            for half in range(2):
                regs = [4*half + j for j in range(4)]
                gq = [T + 8*half + j for j in range(4)]; q = [T + 8*half + 4 + j for j in range(4)]
                for j, r in enumerate(regs): e(f"v_mul_f32 v{gq[j]}, v{rG}, v{acc+16*t+r}")
                for j in range(4): e(f"v_fma_f32 v{q[j]}, -v{gq[j]}, v{gq[j]}, s{S_T3}")
                for j in range(4): e(f"v_mul_f32 v{q[j]}, v{gq[j]}, v{q[j]}")
                for j, r in enumerate(regs):
                    e(f"v_exp_f32 v{q[j]}, v{q[j]}")
                    e(f"v_mul_f32 v{gq[j]}, v{gq[j]}, v{acc+16*t+8+r}")
                for j in range(4): e(f"v_fma_f32 v{q[j]}, v{q[j]}, v{kD}, v{kD}")
                for j in range(4): e(f"v_rcp_f32 v{q[j]}, v{q[j]}")
                for j in range(4): e(f"v_mul_f32 v{gq[j]}, v{gq[j]}, v{q[j]}")
                e(f"v_cvt_pk_bf16_f32 v{172+2*half}, v{gq[0]}, v{gq[1]}")
                e(f"v_cvt_pk_bf16_f32 v{173+2*half}, v{gq[2]}, v{gq[3]}")
            e(f"s_add_u32 s101, s{S_T2}, {g*112*1024 + t*1024}")
            tk_ = self.tok(f"buffer_store_dwordx4 v[172:175], v147, s[{S_WS}:{S_WS+3}], s101 offen sc1")
        self.htok[g] = tk_
        out = self.p.take(); self.p.put(save)
        if split: return out[:len(out)//2], out[len(out)//2:]
        return out
    def g2_map(self):
        e = self.e
        e(f"s_lshl_b32 s{S_G1}, s{S_XCD}, 1\ns_bfe_u32 s44, s{S_IDX}, 0x10004\ns_add_u32 s{S_G1}, s{S_G1}, s44")
        e(f"s_lshl_b32 s{S_G1}, s{S_G1}, 2")
        e(f"s_bfe_u32 s44, s{S_IDX}, 0x10003")
        e(f"s_sub_u32 s{S_G2}, s{S_G1}, s44\ns_add_u32 s{S_G2}, s{S_G2}, 3")
        e(f"s_add_u32 s{S_G1}, s{S_G1}, s44")
        e(f"s_and_b32 s{S_G3}, s{S_IDX}, 7")
    XT = lambda self, g: (3 - g) * 32768
    S_HB = 81
    def x1s_issue(self, g):
        t = None
        for j in range(8):
            if j % 4 == 0:
                self.e(f"s_add_u32 m0, s{S_T1}, {self.XT(g) + j*1024}")
                self.e(f"s_add_u32 s13, s{S_T0}, {g*32768 + j*1024}")
            t = self.tok(f"buffer_load_dwordx4 v147, s[{S_WS}:{S_WS+3}], s13 offen offset:{(j%4)*1024} sc1 lds")
        return t
    def x1s_check(self, g, T, explicit=False):
        e = self.e
        ad = 146 if self.XT(g) < 65536 else 143
        tk = [self.tok(f"ds_read_b32 v{T+j}, v{ad} offset:{self.XT(g) % 65536 + j*1024}") for j in range(8)]
        if explicit: e("s_waitcnt lgkmcnt(0)")
        else: self.wait(tk[7])
        e(f"v_max3_u32 v{T}, v{T}, v{T+1}, v{T+2}\nv_max3_u32 v{T+3}, v{T+3}, v{T+4}, v{T+5}\nv_max3_u32 v{T}, v{T}, v{T+6}, v{T+7}\nv_max_u32 v{T}, v{T}, v{T+3}")
        e(f"v_cmp_eq_u32 vcc, -1, v{T}")
    def x1s_guard(self, g, T, tok):
        e = self.e
        rt = self.lab("xr"); lp = self.lab("xl"); bk = self.lab("xb")
        self.wait(tok)
        self.x1s_check(g, T)
        e(f"s_cbranch_vccnz {rt}")
        self.label(bk)
        def rout():
            self.label(rt)
            e(f"s_mov_b32 s{S_SPIN}, {self.cfg['spin']}")
            if self.cfg.get("stamps"): e(f"v_writelane_b32 v255, 1, {46 + g}")
            self.label(lp)
            self.x1s_issue(g)
            e("s_waitcnt vmcnt(0) lgkmcnt(0)")
            self.x1s_check(g, T, explicit=True)
            e("s_nop 1")
            e(f"s_cbranch_vccz {bk}")
            self.spin_check(lp)
            e(f"s_branch {bk}")
        o, _ = self.capture(rout); self.ool += o
    def modf_issue(self):
        t = None
        for v in range(2):
            for kq in range(4):
                self.e(f"s_mov_b32 s47, {WS_MODP + (kq*3072 + (3+v)*512)*8}")
                t = self.tok(f"buffer_load_dwordx4 {vr(200 + 16*v + 4*kq, 4)}, v236, s[{S_WS}:{S_WS+3}], s47 offen sc1")
        return t
    def xfill(self):
        e = self.e; t = None
        for base in (WS_X1S, WS_X1S + 32*32768, WS_X1, WS_X1 + 32*32768):
            e(f"s_add_u32 s101, s31, {hx(base)}")
            t = self.tok(f"buffer_store_dwordx4 v[248:251], v252, s[{S_WS}:{S_WS+3}], s101 offen sc1")
        return t
    def hfill(self):
        e = self.e
        e("v_mov_b32 v248, -1\nv_mov_b32 v249, -1\nv_mov_b32 v250, -1\nv_mov_b32 v251, -1")
        for g in (2, 3):
            e(f"s_add_u32 s101, s{self.S_HB}, {g*112*1024}")
            self.tok(f"buffer_store_dwordx4 v[248:251], v147, s[{S_WS}:{S_WS+3}], s101 offen sc1")
            self.tok(f"buffer_store_dwordx4 v[248:251], v147, s[{S_WS}:{S_WS+3}], s101 offen offset:1024 sc1")
    S_HF = 35
    def gate_pub(self, base=WS_FL1):
        self.e(f"s_add_u32 s101, s32, {base}")
        self.e(f"buffer_store_dword v253, v199, s[{S_WS}:{S_WS+3}], s101 offen sc1")
    S_FB = 3
    def hbase(self):
        e = self.e
        e(f"s_mul_i32 s{self.S_HB}, s{S_G1}, {4*112*1024}")
        e(f"s_lshl_b32 s101, s{S_G2}, 6")
        e(f"s_add_u32 s{self.S_HB}, s{self.S_HB}, s101")
        e(f"s_add_u32 s{self.S_HB}, s{self.S_HB}, {hx(WS_H)}")
        e(f"s_mul_i32 s{self.S_FB}, s{S_G1}, {4*56*64}")
        e(f"s_lshl_b32 s101, s{S_G2}, 1")
        e(f"s_add_u32 s{self.S_FB}, s{self.S_FB}, s101")
        e(f"s_add_u32 s{self.S_FB}, s{self.S_FB}, {WS_FL2}")
        e(f"s_cmp_ge_u32 s{S_IDX}, 28")
        e(f"s_cselect_b32 s{self.S_FB}, 0x7f000000, s{self.S_FB}")
    def hflag(self, g, vz, vt):
        self.wait(self.htok[g])
        self.e(f"s_add_u32 s101, s{self.S_FB}, {g*56*64}")
        self.e(f"buffer_store_dword v{vt}, v{vz}, s[{S_WS}:{S_WS+3}], s101 offen sc1")
    def capture(self, fn):
        keep = self.p.take(); r = fn(); out = self.p.take(); self.p.put(keep); return out, r
    def cap(self, fn): return self.capture(fn)[0]
    def guard(self, name, chk, reissue, cond="vccnz"):
        e = self.e
        rt = self.lab(name + "r"); lp = self.lab(name + "l"); bk = self.lab(name + "b")
        chk(False)
        e(f"s_cbranch_vccnz {rt}")
        self.label(bk)
        def rout():
            self.label(rt); e(f"s_mov_b32 s{S_SPIN}, {self.cfg['spin']}")
            if self.cfg.get("stamps"): e(f"v_writelane_b32 v255, 1, {52 + ['mf', 'gt', 'st', 'f0', 'lt', 'g2', 'fa', 'hc', 'rs'].index(name)}")
            self.label(lp)
            reissue(); chk(True); e("s_nop 1")
            e(f"s_cbranch_vccz {bk}"); self.spin_check(lp); e(f"s_branch {bk}")
        self.ool += self.cap(rout)

    def p0_issue(self):
        e = self.e; T = self.T = {}
        e(f"s_mov_b32 s{S_X}, s{P_X}\ns_mov_b32 s{S_X+1}, s{P_X+1}")
        self.tok(f"buffer_load_dwordx4 v[10:13], v9, s[{S_X}:{S_X+3}], s{S_T0} offen")
        T["xr"] = self.tok(f"buffer_load_dwordx4 v[14:17], v9, s[{S_X}:{S_X+3}], s{S_T0} offen offset:1024")
        self.tok(f"buffer_load_dwordx4 v3, s[{S_X}:{S_X+3}], s{S_T3} offen lds")
        T["xt"] = self.tok(f"buffer_load_dwordx4 v6, s[{S_X}:{S_X+3}], s{S_T3} offen offset:1024 lds")
        for i in range(6): T["ssm"] = self.tok(f"global_load_ushort v{18+i}, v8, s[{P_ARE+2*i}:{P_ARE+2*i+1}]")
        e(f"s_load_dword s{S_E}, s[{P_WS}:{P_WS+1}], 0")
        e(f"s_lshl_b32 s{S_T0}, s{S_D0}, 1")
        e(f"s_load_dword s{S_LDT}, s[{P_LDT}:{P_LDT+1}], s{S_T0}")
        e(f"s_load_dword s{S_DSK}, s[{P_DSK}:{P_DSK+1}], s{S_T0}")
        e(f"s_mov_b32 s{S_WM}, s{P_WM}\ns_mov_b32 s{S_WM+1}, s{P_WM+1}")
        e(f"s_cmp_ge_u32 s{S_M+1}, {24 if self.cfg['split'] else 99}\ns_cselect_b32 s{S_M+4}, 1, 0\ns_cmp_ge_u32 s2, 192\ns_cselect_b32 s{S_M+4}, 2, s{S_M+4}")
        T["c"] = self.tok(f"global_load_dword v186, v7, s[{P_C}:{P_C+1}]")
        self.wm_issue(0)
        e(f"s_bitcmp1_b32 s{S_WV}, 0\ns_cselect_b32 s8, s{P_WU}, s{P_WG}\ns_cselect_b32 s9, s{P_WU+1}, s{P_WG+1}")
        if self.cfg["touch"] == 4: self.touch_w()
    def wm_issue(self, which):
        e = self.e
        sk = self.lab("wm")
        e(f"s_cmp_lg_u32 s{S_M+4}, {which}\ns_cbranch_scc1 {sk}")
        e(f"s_lshl_b32 s{S_T1}, s{S_WV}, 12")
        for j in range(4):
            e(f"s_add_u32 m0, s{S_T1}, {L_MOD + 1024*j}")
            e(f"s_add_u32 s101, s{S_M+2}, {j*8*6144}")
            self.T["wm%d" % which] = self.tok(f"buffer_load_dwordx4 v33, s[{S_WM}:{S_WM+3}], s101 offen lds")
        jn = self.lab("wmj")
        self.label(jn)
        def alt():
            self.label(sk)
            for j in range(4): e(f"global_load_dword v32, v9, s[{P_C}:{P_C+1}]")
            e(f"s_branch {jn}")
        self.ool += self.cap(alt)

    def p0_stats(self):
        e = self.e
        e("v_mov_b32 v3, 0x3f803f80")
        self.wait(self.T["xr"])
        for i in range(4):
            c = lambda r: (f"v{r}" if i else "0")
            e(f"v_dot2_f32_bf16 v4, v{10+i}, v3, {c(4)}")
            e(f"v_dot2_f32_bf16 v5, v{10+i}, v{10+i}, {c(5)}")
            e(f"v_dot2_f32_bf16 v6, v{14+i}, v3, {c(6)}")
            e(f"v_dot2_f32_bf16 v7, v{14+i}, v{14+i}, {c(7)}")
        self.reduce16([4, 5, 6, 7])
        e("v_permlane16_swap_b32 v4, v5\nv_permlane16_swap_b32 v6, v7")
        e("v_add_f32 v4, v4, v5\nv_add_f32 v6, v6, v7")
        e("v_permlane32_swap_b32 v4, v6")
        e("v_add_f32 v4, v4, v6")
        e("v_mov_b32 v5, v4")
        e("v_permlane16_swap_b32 v4, v5")
        self.stat_finish(4, 5, 6, 7)
        e(f"v_mov_b32 v5, s{S_TAG}")
        e("v_lshrrev_b32 v6, 2, v1")
        e(f"s_lshr_b32 s{S_T0}, s2, 6\ns_lshl_b32 s{S_T0}, s{S_T0}, 2\ns_add_u32 s{S_T0}, s{S_T0}, s{S_WV}\ns_lshl_b32 s{S_T0}, s{S_T0}, 10")
        e(f"s_and_b32 s{S_T1}, s2, 63\ns_lshl_b32 s{S_T1}, s{S_T1}, 4\ns_add_u32 s{S_T0}, s{S_T0}, s{S_T1}\ns_add_u32 s{S_T0}, s{S_T0}, {WS_ST1}")
        e("s_mov_b32 exec_lo, 1\ns_mov_b32 exec_hi, 1")
        e(f"buffer_store_dwordx2 v[4:5], v6, s[{S_WS}:{S_WS+3}], s{S_T0} offen sc1")
        e("s_mov_b64 exec, -1")

    def p0_xb(self):
        e = self.e
        e("v_lshrrev_b32 v187, 2, v1\nv_lshlrev_b32 v187, 7, v187\nv_and_b32 v4, 3, v1\nv_lshl_add_u32 v187, v4, 3, v187")
        e("v_lshrrev_b32 v5, 4, v1\nv_lshlrev_b32 v3, 11, v5")
        e("v_bfe_u32 v4, v1, 1, 1\nv_lshl_add_u32 v3, v4, 10, v3")
        e("v_bfe_u32 v4, v1, 2, 2\nv_lshl_add_u32 v3, v4, 7, v3")
        e("v_and_b32 v4, 1, v1\nv_lshl_add_u32 v3, v4, 3, v3")
        e(f"s_lshl_b32 s{S_T1}, s{S_WV}, 5\ns_add_u32 s{S_T1}, s{S_T1}, {L_XT}\nv_add_u32 v188, s{S_T1}, v3")
        e("v_lshlrev_b32 v4, 10, v4\nv_lshl_add_u32 v4, v5, 5, v4")
        e("v_bfe_u32 v5, v1, 3, 1\nv_lshl_add_u32 v4, v5, 4, v4")
        e("v_bfe_u32 v5, v1, 1, 2\nv_lshl_add_u32 v189, v5, 14, v4")
        e(f"s_lshl_b32 s{S_T0}, s{S_XCD}, 19\ns_lshl_b32 s{S_T1}, s{S_WV}, 17\ns_add_u32 s{S_T0}, s{S_T0}, s{S_T1}")
        e(f"s_lshr_b32 s{S_T1}, s{S_IDX}, 3\ns_lshl_b32 s{S_T1}, s{S_T1}, 12\ns_add_u32 s{S_T0}, s{S_T0}, s{S_T1}")
        e(f"s_and_b32 s{S_T1}, s{S_IDX}, 7\ns_lshl_b32 s{S_T1}, s{S_T1}, 7\ns_add_u32 s{S_T0}, s{S_T0}, s{S_T1}\ns_add_u32 s46, s{S_T0}, {hx(WS_XB)}")
        e(f"s_add_u32 s47, s46, 0x10000")
    def p0_xb2(self):
        e = self.e
        for i in range(4): e(f"v_mov_b32 v{39+4*i}, s{S_TAG}")
        self.wait(self.T["xt"])
        e("s_barrier")
        tk = [self.tok(f"ds_read_b64_tr_b16 v[{36+4*k}:{37+4*k}], v188 offset:{512*(k&1) + 16*(k>>1)}") for k in range(4)]
        for k in range(4):
            self.wait(tk[k])
            e(f"v_mov_b32 v{38+4*k}, v{37+4*k}\nv_mov_b32 v{37+4*k}, s{S_TAG}")
            e(f"buffer_store_dwordx4 v[{36+4*k}:{39+4*k}], v189, s[{S_WS}:{S_WS+3}], s{46 + (k>>1)} offen offset:{2048*(k&1)} sc1")

    def p0_mod(self, which, nyoung, base=52):
        e = self.e
        skip = self.lab("nomod2")
        e(f"s_cmp_lg_u32 s{S_M+4}, {which}\ns_cbranch_scc1 {skip}")
        e("v_lshlrev_b32 v56, 16, v186\nv_and_b32 v57, 0xffff0000, v186")
        e(f"v_mul_f32 v58, {fl(-LOG2E)}, v56\nv_mul_f32 v59, {fl(-LOG2E)}, v57")
        e("v_exp_f32 v58, v58\nv_exp_f32 v59, v59")
        e("v_add_f32 v58, 1.0, v58\nv_add_f32 v59, 1.0, v59")
        e("v_rcp_f32 v58, v58\nv_rcp_f32 v59, v59")
        e("v_mul_f32 v56, v56, v58\nv_mul_f32 v57, v57, v59")
        e("v_cvt_pk_bf16_f32 v56, v56, v57")
        e(f"s_lshl_b32 s44, s{S_WV}, 8\ns_add_u32 s44, s44, {L_MOD + 16384}")
        e(f"v_lshl_add_u32 v57, v1, 2, s44")
        e("ds_write_b32 v57, v56")
        e("v_lshrrev_b32 v58, 4, v1")
        e(f"v_lshl_add_u32 v57, v58, 4, s44")
        e("v_lshl_add_u32 v59, v58, 9, v187")
        e(f"s_lshl_b32 s45, s{S_WV}, 5\ns_add_u32 s45, s45, {L_MOD}")
        e(f"v_add_u32 v59, s45, v59")
        self.p.wait_nt(self.T["wm%d" % which])
        e("s_waitcnt lgkmcnt(0)\ns_barrier")
        for ks in range(4):
            e(f"ds_read_b128 v[{60+8*ks}:{63+8*ks}], v57 offset:{64*ks}")
            e(f"ds_read_b64_tr_b16 v[{64+8*ks}:{65+8*ks}], v59 offset:{4096*ks}")
            e(f"ds_read_b64_tr_b16 v[{66+8*ks}:{67+8*ks}], v59 offset:{4096*ks+512}")
        e(f"s_mul_i32 s44, s{S_M}, {3072*8}\ns_lshl_b32 s45, s{S_M+1}, 9\ns_add_u32 s44, s44, s45")
        e(f"s_lshl_b32 s45, s{S_WV}, 7\ns_add_u32 s44, s44, s45\ns_add_u32 s44, s44, {WS_MODP}")
        e("v_lshlrev_b32 v59, 3, v1")
        for ks in range(4):
            e(f"s_waitcnt lgkmcnt({9-3*ks})")
            e(f"v_mfma_f32_16x16x32_bf16 v[92:95], v[{60+8*ks}:{63+8*ks}], v[{64+8*ks}:{67+8*ks}], {'v[92:95]' if ks else '0'}")
        e("s_barrier")
        e(f"v_mov_b32 v93, s{S_TAG}")
        e("s_mov_b64 exec, 0xffff")
        self.p.nc(f"buffer_store_dwordx2 v[92:93], v59, s[{S_WS}:{S_WS+3}], s44 offen sc1")
        e("s_mov_b64 exec, -1")
        self.label(skip)

    def touch_w(self):
        e = self.e
        e(f"s_lshr_b32 s{S_T0}, s{S_WV}, 1\ns_lshl_b32 s{S_T1}, s2, 1\ns_add_u32 s{S_T0}, s{S_T0}, s{S_T1}\ns_mul_i32 s{S_T0}, s{S_T0}, {28*128}")
        e(f"v_min_u32 v3, 27, v1\nv_lshlrev_b32 v3, 7, v3\nv_add_u32 v3, s{S_T0}, v3")
        e("global_load_dword v198, v3, s[8:9]")
    def touch_wd(self, mode):
        e = self.e
        if mode == 1:
            e(f"s_sub_u32 s{S_T0}, s2, 192\ns_lshl_b32 s{S_T0}, s{S_T0}, 2\ns_add_u32 s{S_T0}, s{S_T0}, s{S_WV}\ns_mul_i32 s{S_T0}, s{S_T0}, {56*128}")
            e(f"s_cmp_lt_u32 s2, 192\ns_cselect_b32 s{S_T0}, 0x7f000000, s{S_T0}")
            e("v_min_u32 v197, 55, v1\nv_lshlrev_b32 v197, 7, v197")
        else:
            e(f"s_lshl_b32 s{S_T0}, s2, 2\ns_add_u32 s{S_T0}, s{S_T0}, s{S_WV}\ns_mul_i32 s{S_T0}, s{S_T0}, {14*128}")
            e("v_min_u32 v197, 13, v1\nv_lshlrev_b32 v197, 7, v197")
        e(f"buffer_load_dword v198, v197, s[{S_WD}:{S_WD+3}], s{S_T0} offen")

    def touch_wdx(self):
        e = self.e
        e(f"s_lshl_b32 s47, s{S_IDX}, 2\ns_add_u32 s47, s47, s{S_WV}\ns_mul_i32 s47, s47, {112*128}")
        e("v_min_u32 v138, 55, v1\nv_lshlrev_b32 v138, 7, v138")
        e(f"buffer_load_dword v139, v138, s[{S_WD}:{S_WD+3}], s47 offen")
        e(f"s_add_u32 s47, s47, {56*128}")
        e(f"buffer_load_dword v139, v138, s[{S_WD}:{S_WD+3}], s47 offen")

    def w_setup(self):
        e = self.e
        e("v_lshrrev_b32 v241, 4, v1\nv_mul_u32_u24 v240, 3584, v241")
        e(f"s_and_b32 s13, s{S_WV}, 1\nv_lshl_add_u32 v241, v241, 1, s13")
        e("v_bfe_u32 v242, v1, 1, 3\nv_xor_b32 v241, v241, v242\nv_lshl_add_u32 v240, v241, 5, v240")
        e("v_and_b32 v241, 1, v1\nv_lshl_add_u32 v240, v241, 4, v240")
        e(f"s_lshr_b32 s14, s{S_WV}, 1\ns_mul_i32 s15, s14, {8*3584}")
        e(f"s_and_b32 s101, s{S_G2}, 0xffffff80\ns_lshl_b32 s101, s101, 1\ns_add_u32 s15, s15, s101")
        e(f"v_add_u32 v240, s15, v240\nv_add_u32 v247, {4*3584 - 1024}, v240")
        e("s_lshl_b32 s12, s13, 12\ns_lshl_b32 s14, s14, 11\ns_add_u32 s12, s12, s14")
        e("v_bfe_u32 v241, v1, 4, 1\nv_bfe_u32 v242, v1, 2, 2")
        e("v_lshl_add_u32 v243, v242, 1, v241")
        e(f"s_lshl_b32 s13, s{S_WV}, 1\nv_xor_b32 v243, s13, v243\nv_lshlrev_b32 v243, 5, v243")
        e("v_lshl_add_u32 v243, v241, 12, v243\nv_lshl_add_u32 v243, v242, 8, v243")
        e("v_lshrrev_b32 v241, 5, v1\nv_lshl_add_u32 v243, v241, 11, v243")
        e("v_and_b32 v241, 1, v1\nv_lshl_add_u32 v243, v241, 4, v243")
        e("v_bfe_u32 v241, v1, 1, 1\nv_lshl_add_u32 v241, v241, 3, v243")
        e("v_xor_b32 v242, 32, v241")
        e("v_add_u32 v243, 0x10000, v241\nv_add_u32 v244, 0x10000, v242\nv_add_u32 v245, 0x20000, v241\nv_add_u32 v246, 0x20000, v242")
        self.wt = {}
    def w_rot(self):
        e = self.e
        e(f"s_and_b32 s26, s{S_G1}, {7 if self.cfg['rot'] else 0}\ns_mul_i32 s101, s{S_G3}, {16*16*3584}")
        for j in range(8): e(f"s_add_u32 s{18+j}, s26, {j}\ns_and_b32 s{18+j}, s{18+j}, 7\ns_mul_i32 s{18+j}, s{18+j}, {16*3584}\ns_add_u32 s{18+j}, s{18+j}, s101")
    def w_issue(self, ks):
        e = self.e
        if self.cfg.get('noch'):
            self.wt[ks] = None; e("s_nop 0\ns_nop 0\ns_nop 0\ns_nop 0"); return
        e(f"s_add_u32 m0, s12, {wslot(ks)}\ns_add_u32 s14, s{18 + (ks & 7)}, {(ks >> 3)*8*16*3584}")
        self.tok("buffer_load_dwordx4 v240, s[8:11], s14 offen lds")
        self.wt[ks] = self.tok("buffer_load_dwordx4 v247, s[8:11], s14 offen offset:1024 lds")
    def w_read(self, ks):
        b = wslot(ks); t_ = None
        for t in range(2):
            for i in range(2):
                o = b + 1024*i
                t_ = self.tok(f"ds_read_b64_tr_b16 {ar((t*32+ks)*4+2*i,2)}, v{241 + 2*(o >> 16) + t} offset:{o & 0xffff}")
        return t_
    def w_issue_l(self, r):
        for ks in r: self.w_issue(ks)
    def w_chunks(self, r):
        out = []
        for ks in r:
            l = self.cap(lambda: self.w_issue(ks)); out += [l[:3], l[3:]]
        return out
    def w_read_l(self, r):
        t = None
        for ks in r: t = self.w_read(ks)
        return t

    U1 = 176; U2 = 208
    def modf_chk_only(self):
        e = self.e
        def chk(ex):
            for i in range(8):
                e(f"v_min3_u32 v232, v{201+4*i}, v{203+4*i}, {'v232' if i else 'v201'}\nv_max3_u32 v233, v{201+4*i}, v{203+4*i}, {'v233' if i else 'v201'}")
            e(f"v_xor_b32 v232, s{S_TAG}, v232\nv_xor_b32 v233, s{S_TAG}, v233\nv_or_b32 v232, v232, v233\nv_cmp_ne_u32 vcc, 0, v232")
        self.guard("mf", chk, lambda: (self.modf_issue(), e("s_waitcnt vmcnt(0)")))
    def gate_issue(self, base=WS_FL1):
        self.e(f"v_lshlrev_b32 v235, 6, v0\ns_mov_b32 s101, {base}")
        return self.tok(f"buffer_load_dword v234, v235, s[{S_WS}:{S_WS+3}], s101 offen sc1")
    def gate_check(self, tok):
        self.wait(tok)
        self.guard("gt", lambda ex: self.e(f"v_cmp_ne_u32 vcc, s{S_TAG}, v234"), lambda: (self.gate_issue(), self.e("s_waitcnt vmcnt(0)")))
    def u_addr(self, v, t):
        e = self.e
        e(f"v_bfe_u32 v{v}, v1, 4, 1\nv_mul_u32_u24 v{v}, {1792*16}, v{v}")
        e(f"v_bfe_u32 v{t}, v1, 2, 1\nv_lshl_add_u32 v{v}, v{t}, 7, v{v}")
        e(f"v_bfe_u32 v{t}, v1, 3, 1\nv_lshl_add_u32 v{v}, v{t}, 6, v{v}")
        e(f"v_and_b32 v{t}, 3, v1\nv_lshl_add_u32 v{v}, v{t}, 4, v{v}")
    def u_job(self):
        e = self.e
        self.modf_chk_only()
        for v in range(2):
            for c_ in (0, 2):
                b_ = 200 + 16*v + c_
                e(f"v_add_f32 v{b_}, v{b_}, v{b_+4}\nv_add_f32 v{b_+8}, v{b_+8}, v{b_+12}\nv_add_f32 v{b_}, v{b_}, v{b_+8}")
        e("v_cvt_pk_bf16_f32 v7, v200, v202\nv_cvt_pk_bf16_f32 v5, v216, v218")
        e("v_lshlrev_b32 v8, 16, v5\nv_and_b32 v9, 0xffff0000, v5\nv_add_f32 v8, 1.0, v8\nv_add_f32 v9, 1.0, v9\nv_cvt_pk_bf16_f32 v5, v8, v9")
        e(f"v_lshlrev_b32 v3, 2, v0\nv_add_u32 v3, {L_SS}, v3")
        e("ds_write2st64_b32 v3, v5, v7 offset0:0 offset1:4")
        e("v_and_b32 v2, 1, v1\nv_lshlrev_b32 v2, 10, v2\nv_lshrrev_b32 v4, 5, v1\nv_lshl_add_u32 v2, v4, 4, v2")
        e(f"s_lshl_b32 s101, s{S_G3}, 9\ns_add_u32 s101, s101, {L_SS}\nv_add_u32 v2, s101, v2")
        e("s_waitcnt vmcnt(4) lgkmcnt(0)\ns_barrier")
        for ks in range(self.cfg["nrec"], 16): self.w_read(ks)
        for ks in range(16): e(f"ds_read_b128 {vr(100+4*ks,4)}, v2 offset:{32*ks}")
        self.u_addr(40, 41)
        e(f"s_mul_i32 s101, s{S_G3}, {2*1792*16}\ns_lshl_b32 s44, s{S_G2}, 4\ns_add_u32 s101, s101, s44\ns_add_u32 s101, s101, {WS_U}")
        e("s_cmp_eq_u32 s10, 0\ns_cselect_b32 s101, 0x7f000000, s101")
        e("s_waitcnt lgkmcnt(0)")
        for ks in range(16):
            for t in range(2):
                acc = vr(4 + 16*t, 16)
                e(f"v_mfma_f32_32x32x16_bf16 {acc}, {vr(100+4*ks,4)}, {ar((t*32+ks)*4,4)}, {acc if ks else '0'}")
        for t in range(2):
            e(f"v_mov_b32 v{44+4*t}, v{4+16*t}\nv_mov_b32 v{45+4*t}, s{S_TAG}\nv_mov_b32 v{46+4*t}, v{5+16*t}\nv_mov_b32 v{47+4*t}, s{S_TAG}")
        e("s_mov_b32 exec_hi, 0")
        for t in range(2): e(f"buffer_store_dwordx4 {vr(44+4*t,4)}, v40, s[{S_WS}:{S_WS+3}], s101 offen offset:{256*t} sc1")
        e("s_mov_b32 exec_hi, -1")

    def shadow1(self):
        e = self.e; c = self.cfg; cap = self.cap
        nr = c["nrec"]; n1 = 13 + nr
        assert nr == 8
        self.w_read_l(range(nr, 13))
        e(f"s_lshl_b32 s{S_T1}, s{S_WV}, 13")
        e(f"s_lshl_b32 s33, s{S_G1}, 10\ns_add_u32 s33, s33, {WS_ST2}")
        e("v_lshlrev_b32 v147, 4, v1")
        e(f"v_add_u32 v146, s{S_T1}, v147\nv_add_u32 v143, 0x10000, v146")
        e(f"s_lshl_b32 s{S_T0}, s{S_G1}, 17\ns_add_u32 s{S_T0}, s{S_T0}, s{S_T1}\ns_add_u32 s{S_T0}, s{S_T0}, {hx(WS_X1S)}")
        self.wait(self.wt[n1-1])
        e("s_waitcnt lgkmcnt(0)\ns_barrier")
        self.stamp(8)
        r = self.w_read_l(range(13, n1))
        self.w_issue_l(range(n1, 26))
        tg = self.gtok or self.gate_issue()
        e("v_lshrrev_b32 v144, 5, v1\nv_lshlrev_b32 v144, 9, v144")
        e("v_bfe_u32 v145, v1, 2, 2\nv_lshl_add_u32 v144, v145, 6, v144")
        e("v_bfe_u32 v145, v1, 4, 1\nv_lshl_add_u32 v144, v145, 5, v144")
        e("v_and_b32 v145, 3, v1\nv_lshl_add_u32 v144, v145, 3, v144")
        e("v_add_u32 v144, 0x10000, v144")
        for j in range(8): e(f"s_add_u32 s101, s26, {j}\ns_and_b32 s101, s101, 7\nv_lshl_add_u32 v{BA[j]}, s101, 10, v144")
        e("v_and_b32 v145, 31, v1\nv_lshlrev_b32 v145, 3, v145")
        for r_ in range(4): e(f"v_mov_b32 v{self.BX+4*r_+2}, 0\nv_mov_b32 v{self.BX+4*r_+3}, 0")
        e(f"v_mov_b32 v{self.AX+2}, 0\nv_mov_b32 v{self.AX+3}, 0\nv_mov_b32 v{self.AX+6}, 0\nv_mov_b32 v{self.AX+7}, 0\nv_mov_b32 v252, 0")
        self.u_addr(138, 139)
        e(f"s_lshl_b32 s35, s{S_G2}, 4\ns_add_u32 s35, s35, {WS_U}\ns_add_u32 s34, s35, {2*1792*16}")
        self.wd_setup_s()
        self.wait(r)
        e("s_barrier")
        self.w_issue_l(range(26, 26 + c["wx"]))
        self.gate_check(tg)
        self.stamp(27)
        self.xt = {}
        self.xt[0] = self.x1s_issue(0)
        self.xt[1] = self.x1s_issue(1)
        self.w_issue_l(range(26 + c["wx"], 32))
        self.g2_setup()
        e('WARMCALL 3')
        self.stamp(9)
        self.x1s_guard(0, 148, self.xt[0])
        e("s_waitcnt lgkmcnt(0)\ns_barrier")
        self.stamp(12)

    def stats2_job(self):
        e = self.e
        e(f"s_lshl_b32 s{S_T2}, s{S_XCD}, 2\ns_add_u32 s{S_T2}, s{S_T2}, s{S_IDX}\ns_sub_u32 s{S_T2}, s{S_T2}, 28")
        e(f"s_lshl_b32 s{S_T1}, s{S_WV}, 13")
        e(f"s_lshl_b32 s{S_T0}, s{S_T2}, 16\ns_add_u32 s{S_T0}, s{S_T0}, s{S_T1}\ns_add_u32 s{S_T0}, s{S_T0}, {hx(WS_X1)}")
        e("v_lshlrev_b32 v147, 4, v1\nv_lshlrev_b32 v146, 7, v1")
        e("v_lshrrev_b32 v144, 5, v1\nv_lshlrev_b32 v144, 9, v144")
        e("v_bfe_u32 v145, v1, 2, 2\nv_lshl_add_u32 v144, v145, 6, v144")
        e("v_bfe_u32 v145, v1, 4, 1\nv_lshl_add_u32 v144, v145, 5, v144")
        e("v_and_b32 v145, 3, v1\nv_lshl_add_u32 v144, v145, 3, v144")
        e(f"s_lshl_b32 s{S_T1}, s{S_WV}, 14\nv_add_u32 v144, s{S_T1}, v144")
        e("v_mov_b32 v5, 0x3f803f80")
        e("s_waitcnt vmcnt(0)\ns_barrier")
        self.gate_issue(); e("s_waitcnt vmcnt(0)")
        self.guard("g2", lambda ex: e(f"v_cmp_ne_u32 vcc, s{S_TAG}, v234"), lambda: (self.gate_issue(), e("s_waitcnt vmcnt(0)")))
        e(f"s_mov_b32 s{S_SPIN}, {self.cfg['spin']}")
        lp = self.lab("pj"); go = self.lab("pg"); ok = self.lab("pk")
        self.label(lp)
        e(f"s_add_u32 s101, s{S_T0}, 32768")
        e(f"buffer_load_dword v6, v146, s[{S_WS}:{S_WS+3}], s{S_T0} offen sc1")
        e(f"buffer_load_dword v7, v146, s[{S_WS}:{S_WS+3}], s101 offen offset:64 sc1")
        e("s_waitcnt vmcnt(0)\nv_max_u32 v6, v6, v7\nv_cmp_eq_u32 vcc, -1, v6\ns_nop 1")
        e(f"s_cbranch_vccz {go}")
        self.spin_check(lp)
        e(f"s_mov_b32 s{S_SPIN}, 1")
        self.label(go)
        for b in range(2):
            for j in range(8):
                e(f"s_add_u32 m0, s{S_T1}, {b*8192 + j*1024}\ns_add_u32 s101, s{S_T0}, {b*32768 + j*1024}")
                e(f"buffer_load_dwordx4 v147, s[{S_WS}:{S_WS+3}], s101 offen sc1 lds")
        for b in range(2):
            e(f"s_waitcnt vmcnt({8*(1-b)})")
            for j in range(16): e(f"ds_read_b64_tr_b16 {vr(40+2*j,2)}, v144 offset:{b*8192 + (j>>1)*1024 + (j&1)*256}")
            for j in range(32):
                if j % 8 == 0: e(f"s_waitcnt lgkmcnt({12 - j//2})")
                e(f"v_dot2_f32_bf16 v{8+2*b}, v{40+j}, v5, {'v%d' % (8+2*b) if j else '0'}")
                e(f"v_dot2_f32_bf16 v{9+2*b}, v{40+j}, v{40+j}, {'v%d' % (9+2*b) if j else '0'}")
        e("s_nop 2\nv_add_f32 v6, v9, v11\nv_cmp_u_f32 vcc, v6, v6\ns_nop 1")
        e(f"s_cbranch_vccz {ok}")
        self.spin_check(lp)
        self.label(ok)
        e("v_permlane32_swap_b32 v8, v10\nv_permlane32_swap_b32 v9, v11")
        e("v_add_f32 v8, v8, v10\nv_add_f32 v9, v9, v11")
        e(f"s_lshl_b32 s101, s{S_WV}, 9\ns_add_u32 s101, s101, {L_SS}")
        e("v_lshlrev_b32 v12, 3, v1\nv_add_u32 v13, s101, v12")
        e("ds_write_b64 v13, v[8:9]")
        e(f"v_add_u32 v13, {L_SS}, v12")
        e("s_waitcnt lgkmcnt(0)\ns_barrier")
        sk = self.lab("s2w")
        e(f"s_cmp_lg_u32 s{S_WV}, 0\ns_cbranch_scc1 {sk}")
        for w in range(4): e(f"ds_read_b64 v[{14+2*w}:{15+2*w}], v13 offset:{512*w}")
        e("s_waitcnt lgkmcnt(0)")
        e("v_pk_add_f32 v[14:15], v[14:15], v[16:17]\nv_pk_add_f32 v[18:19], v[18:19], v[20:21]\nv_pk_add_f32 v[14:15], v[14:15], v[18:19]")
        self.stat_finish(14, 15, 16, 17)
        e(f"v_mov_b32 v15, s{S_TAG}")
        e(f"s_lshl_b32 s101, s{S_T2}, 9\ns_add_u32 s101, s101, {WS_ST2}")
        e(f"buffer_store_dwordx2 v[14:15], v12, s[{S_WS}:{S_WS+3}], s101 offen sc1")
        self.label(sk)
        e("s_barrier")

    def wd_setup_s(self):
        e = self.e
        e(f"s_mul_i32 s{S_LDT}, s{S_WV}, {448*1024}")
        e(f"s_and_b32 s101, s{S_IDX}, 7\ns_lshl_b32 s101, s101, 7\ns_add_u32 s{S_LDT}, s{S_LDT}, s101")
        e(f"s_lshr_b32 s36, s{S_IDX}, 3\ns_lshl_b32 s36, s36, 1\ns_add_u32 s36, s36, s{S_IDX}\ns_and_b32 s36, s36, {7 if self.cfg['rot2'] else 0}")
        e("s_cmp_eq_u32 s36, 7\ns_cselect_b32 s36, 0, s36\ns_lshl_b32 s36, s36, 10")
        for j in range(1, 7): e(f"s_add_u32 s{36+j}, s{35+j}, 1024\ns_cmp_eq_u32 s{36+j}, 7168\ns_cselect_b32 s{36+j}, 0, s{36+j}")
        for b_ in range(1, 4): e(f"s_add_u32 s{27+b_}, s{S_LDT}, {b_*7*16384}")
        e(f"s_mul_i32 s{S_M+8}, s{S_WV}, 6144\ns_add_u32 s{S_M+8}, s{S_M+8}, {L_SP}")
        e(f"s_lshl_b32 s{S_M+9}, s{S_WV}, 13")
    def wd_setup_v(self):
        e = self.e
        e("v_lshrrev_b32 v240, 3, v1")
        e("v_bfe_u32 v241, v1, 4, 1\nv_lshlrev_b32 v241, 2, v241")
        e("v_and_b32 v242, 7, v1\nv_xor_b32 v241, v241, v242")
        e("v_lshlrev_b32 v240, 10, v240\nv_lshl_add_u32 v240, v241, 4, v240")
        e(f"v_add_u32 v241, {8192 - 1024}, v240")
        e("v_lshrrev_b32 v242, 5, v1\nv_lshlrev_b32 v242, 10, v242")
        e("v_bfe_u32 v243, v1, 2, 2\nv_lshl_add_u32 v242, v243, 7, v242")
        e("v_bfe_u32 v243, v1, 3, 1\nv_lshl_add_u32 v242, v243, 6, v242")
        e("v_and_b32 v243, 1, v1\nv_lshl_add_u32 v242, v243, 5, v242")
        e("v_bfe_u32 v243, v1, 1, 1\nv_lshl_add_u32 v242, v243, 3, v242")
        e("v_bfe_u32 v243, v1, 4, 1\nv_lshl_add_u32 v242, v243, 4, v242")
        e(f"v_add_u32 v244, s{S_M+9}, v242\nv_xor_b32 v245, 64, v244\nv_add_u32 v246, 0x10000, v244\nv_add_u32 v247, 0x10000, v245")
        e(f"v_add_u32 v242, s{S_M+8}, v242\nv_xor_b32 v243, 64, v242")
    def wd_setup(self):
        self.wd_setup_s(); self.wd_setup_v()
    def wd_loc(self, ks):
        sl = ks % 15
        if sl < 3: return 0, 2048*sl
        q, r = divmod(sl - 3, 4)
        return 1, (3 - q)*32768 + 2048*r
    def wd_issue(self, ks):
        e = self.e
        r, o = self.wd_loc(ks)
        e(f"s_add_u32 m0, s{S_M+8+r}, {o}\ns_lshl4_add_u32 s15, s{36 + ks % 7}, s{S_LDT if ks < 7 else 27 + ks // 7}")
        self.tok(f"buffer_load_dwordx4 v240, s[{S_WD}:{S_WD+3}], s15 offen lds")
        self.wdt[ks] = self.tok(f"buffer_load_dwordx4 v241, s[{S_WD}:{S_WD+3}], s15 offen offset:1024 lds")
    def wd_chunks(self, r):
        out = []
        for ks in r:
            l = self.cap(lambda: self.wd_issue(ks)); out += [l[:3], l[3:]]
        return out
    def wd_read(self, ks):
        r, o = self.wd_loc(ks); t_ = None
        for t in range(2):
            for i in range(2):
                oo = o + 512*i
                reg = 242 if r == 0 else (244 if oo < 65536 else 246)
                t_ = self.tok(f"ds_read_b64_tr_b16 {ar((t*32+ks)*4+2*i,2)}, v{reg+t} offset:{oo & 0xffff}")
        return t_

    def gemm1f(self):
        e = self.e; c = self.cfg; cap = self.cap
        e(f"s_mov_b32 s{S_T2}, s{self.S_HB}\ns_mov_b32 s{S_T3}, {fl(-GC)}")
        ACC = [4, 36, 68]; BR = 100; R = 6
        seq = [(0, k) for k in range(16)] + [(1, k) for k in range(16)] + [(0, k) for k in range(16, 32)] + [(1, k) for k in range(16, 32)] + [(g, k) for g in (2, 3) for k in range(32)]
        def bread(n):
            g, ks = seq[n]; b = BR + 4*(n % R); base = self.XT(g); ad = BA[ks & 7]
            o = base % 65536 + (ks >> 3)*8192
            self.tok(f"ds_read_b64_tr_b16 {vr(b,2)}, v{ad} offset:{o}")
            t_ = self.tok(f"ds_read_b64_tr_b16 {vr(b+2,2)}, v{ad} offset:{o+256}")
            if g == 1 and ks >= 24: e(f"v_add_u32 v{ad}, 0xffff0000, v{ad}")
            return t_
        PF = R - 1
        tk = {}
        for n in range(PF): tk[n] = bread(n)
        ST = [128, 130, 132, 134]
        def st_issue():
            t = None
            for g in range(4):
                t = self.tok(f"buffer_load_dwordx2 {vr(ST[g],2)}, v145, s[{S_WS}:{S_WS+3}], s33 offen offset:{256*g} sc1")
            return t
        def st_chk(ex):
            e(f"v_min3_u32 v136, v{ST[0]+1}, v{ST[1]+1}, v{ST[2]+1}\nv_max3_u32 v137, v{ST[0]+1}, v{ST[1]+1}, v{ST[2]+1}")
            e(f"v_min_u32 v136, v136, v{ST[3]+1}\nv_max_u32 v137, v137, v{ST[3]+1}")
            e(f"v_xor_b32 v136, s{S_TAG}, v136\nv_xor_b32 v137, s{S_TAG}, v137\nv_or_b32 v136, v136, v137")
            e("v_cmp_ne_u32 vcc, 0, v136")
        def st_guard(tok):
            self.wait(tok)
            self.guard("st", st_chk, lambda: (st_issue(), e("s_waitcnt vmcnt(0)")))
            e("s_mov_b32 s44, 0x03020302\ns_mov_b32 s47, 0x01000100")
            for g in range(4):
                b = ST[g]; x = self.BX + 4*g
                e(f"v_lshlrev_b32 v{b+1}, 16, v{b}\nv_rcp_f32 v136, v{b+1}")
                e(f"v_perm_b32 v{x}, v{b}, v{b}, s44\nv_perm_b32 v{x+1}, v{b}, v{b}, s47")
                e(f"v_mul_f32 v{b}, {fl(GAM)}, v136\nv_xor_b32 v{x}, 0x80008000, v{x}\nv_mul_f32 v{b+1}, {fl(GAM)}, v{b+1}")
        UR = 200
        def u_issue():
            t_ = None
            for t in range(2):
                for h in range(2):
                    t_ = self.tok(f"buffer_load_dwordx4 {vr(UR+8*t+4*h,4)}, v138, s[{S_WS}:{S_WS+3}], s{35-h} offen offset:{256*t} sc1")
            return t_
        def u_chk(ex):
            for i in range(4): e(f"v_min3_u32 v136, v{UR+4*i+1}, v{UR+4*i+3}, {'v136' if i else 'v%d' % (UR+1)}\nv_max3_u32 v137, v{UR+4*i+1}, v{UR+4*i+3}, {'v137' if i else 'v%d' % (UR+1)}")
            e(f"v_xor_b32 v136, s{S_TAG}, v136\nv_xor_b32 v137, s{S_TAG}, v137\nv_or_b32 v136, v136, v137\nv_cmp_ne_u32 vcc, 0, v136")
        def u_guard(tok):
            self.wait(tok)
            self.guard("mf", u_chk, lambda: (u_issue(), e("s_waitcnt vmcnt(0)")))
            e("v_cmp_gt_u32 vcc, 32, v1")
            for t in range(2):
                for k in range(2):
                    u = UR + 8*t + 2*k; d = self.AX + 4*t + k
                    e(f"v_add_f32 v{u}, v{u}, v{u+4}\nv_cvt_pk_bf16_f32 v136, v{u}, v{u}\nv_and_b32 v136, 0xffff0000, v136\nv_sub_f32 v136, v{u}, v136")
                    e(f"v_cvt_pk_bf16_f32 v136, v{u}, v136\nv_cndmask_b32 v{d}, 0, v136, vcc")
        STN = [8, 16, 24, 32, 40, 48, 56, 64, 80, 96, 104, 112, 120]
        def steps(n0, n1):
            for n in range(n0, n1):
                g, ks = seq[n]
                if n in STN: self.stamp(30 + STN.index(n))
                self.wait(tk[n])
                for t in range(2):
                    acc = vr(ACC[g % 3] + 16*t, 16)
                    e(f"v_mfma_f32_32x32x16_bf16 {acc}, {ar((t*32+ks)*4,4)}, {vr(BR+4*(n%R),4)}, {acc if ks else '0'}")
                    if t == 0 and n + PF < 128: tk[n+PF] = bread(n+PF)
                    if g == 3 and t == 1 and ks in extra: extra[ks]()
                if ks == 31 and g: self.g1_fold(g, ACC[g % 3])
        extra = {}
        def seg(n0, n1, fill, flush=True, pace=None):
            m = cap(lambda: steps(n0, n1))
            m, left = merge(m, fill, 24, pace=pace or c["gpace"])
            self.p.put(m)
            if flush:
                if left: sys.stderr.write(f"flush {len(left)} at {n1}\n")
                self.p.put(left); return []
            return left
        xt = self.xt; hold = {}; self.wdt = {}; self.htok = {}
        xi = lambda g: cap(lambda: xt.__setitem__(g, self.x1s_issue(g)))
        bar = lambda: cap(lambda: e("s_barrier"))
        wdc = lambda r: sum(self.wd_chunks(r), [])
        seg(0, c["b1"] - 6, [])
        seg(c["b1"] - 6, c["b1"], cap(lambda: self.x1s_guard(1, 148, xt[1])))
        e("s_barrier")
        seg(c["b1"], c["b2"], cap(lambda: self.wait(self.w_read_l(range(21, 26)), self.wt[31])))
        e("s_barrier")
        seg(c["b2"], c["b3"], cap(lambda: hold.__setitem__("r", self.w_read_l(range(26, 32)))) + xi(2)[:6] + cap(lambda: self.wait(hold["r"])))
        e("s_barrier")
        xs = xi(2)[6:] + xi(3); wv_ = cap(self.wd_setup_v); xs2 = []
        for ins in xs:
            xs2.append(ins)
            if ins.text.startswith("buffer_"): xs2 += wv_[:2]; wv_ = wv_[2:]
        seg(c["b3"], c["sti"], xs2 + wv_)
        f = cap(lambda: (hold.__setitem__("u", u_issue()), hold.__setitem__("t", st_issue())))
        seg(c["sti"], c["stk"], f + wdc(range(3)), pace=1)
        self.stamp(13)
        f = cap(lambda: (u_guard(hold["u"]), st_guard(hold["t"])))
        pend = seg(c["stk"], 48, f + cap(self.hfill), flush=False)
        f = cap(lambda: (self.g1_fold(0, ACC[0]), self.x1s_guard(2, 148, xt[2]), self.x1s_guard(3, 148, xt[3])))
        seg(48, c["b4"], pend + f)
        e("s_barrier")
        pend = seg(c["b4"], 64, wdc(range(3, 7)) + self.g1_epilogue(0, ACC[0], ST[0]), flush=False)
        ep1 = self.g1_epilogue(1, ACC[1], ST[1]) + cap(lambda: self.hflag(0, 252, 253))
        e('WARMREG 3')
        pend = seg(64, 66, pend + ep1, flush=False)
        e("s_barrier")
        assert not any("lds" in i.text for i in pend if i.wait is None)
        n_ep1 = len(ep1)
        pend = seg(66, 96, wdc(range(7, 11)) + pend, flush=False)
        if len(pend) > n_ep1:
            self.p.put(pend[:len(pend) - n_ep1]); pend = pend[len(pend) - n_ep1:]
        ep2 = self.g1_epilogue(2, ACC[2], ST[2])
        pend = seg(96, 98, pend + ep2, flush=False); ep2 = []
        e("s_barrier")
        assert not any("lds" in i.text for i in pend if i.wait is None)
        self.rd = {}
        plan = {}
        for j in range(4): plan.setdefault(2 + j, []).append(("i", 11 + j))
        nrc = c["nrc"]
        for j in range(nrc):
            plan.setdefault(c["rc0"] + j*c["rcs"], []).append(("r", j))
            plan.setdefault(c["rc0"] + j*c["rcs"] + 2, []).append(("i", 15 + j))
        def mk(items):
            def f():
                for kind, k_ in items:
                    if kind == "f": hold["f0"] = self.fl_issue(0, 140, 144)
                    elif kind == "g":
                        self.wait(hold["f0"])
                        self.guard("f0", lambda ex: e(f"v_cmp_ne_u32 vcc, s{S_TAG}, v144"), lambda: (self.fl_issue(0, 140, 144), e("s_waitcnt vmcnt(0)")))
                    elif kind == "p": self.hflag(1, 252, 253)
                    elif kind == "r":
                        self.wait(self.wdt[k_]); self.rd[k_] = self.wd_read(k_)
                    else:
                        if k_ >= 15: self.wait(self.rd[k_ - 15])
                        self.wd_issue(k_)
            return f
        plan.setdefault(c["f0k"], []).append(("f", 0))
        plan.setdefault(c["p1k"], []).append(("p", 1))
        self.ht = {}
        for ks_, items in plan.items():
            assert ks_ < 32 and all(k_ < ks_ for kind, k_ in items if kind == "r")
            extra[ks_] = mk(items)
        pend = seg(98, 128, pend + ep2, flush=False)
        sys.stderr.write(f"tail leftover {len(pend)}\n")
        self.stamp(14)
        self.p.put(pend)
        e3 = self.g1_epilogue(3, ACC[0], ST[3])
        k_ = c["g0at"]
        self.p.put(e3[:k_])
        slow = self.lab("ts"); jn = self.lab("tj"); lp = self.lab("tl"); ok = self.lab("to")
        self.wait(hold["f0"])
        e(f"v_cmp_ne_u32 vcc, s{S_TAG}, v144\ns_cbranch_vccnz {slow}")
        hch = [cap(lambda: self.hl(0, ks, 147)) for ks in range(c["nh"])]
        self.p.put(weave(e3[k_:], hch, c["hw"]))
        self.label(jn)
        def rout():
            self.label(slow)
            if c.get("stamps"): e("v_writelane_b32 v255, 1, 55")
            self.p.put([Ins(i.text) for i in e3[k_:]])
            e(f"s_mov_b32 s{S_SPIN}, {c['spin']}")
            self.label(lp)
            self.fl_issue(0, 140, 144)
            e(f"s_waitcnt vmcnt(0)\nv_cmp_ne_u32 vcc, s{S_TAG}, v144\ns_nop 1\ns_cbranch_vccz {ok}")
            self.spin_check(lp)
            self.label(ok)
            for ch in hch: self.p.put([Ins(i.text) for i in ch])
            e(f"s_waitcnt vmcnt(0)\ns_branch {jn}")
        self.ool += cap(rout)
        self.stamp(15)

    HB = 68
    def HR(self, ks): return 68 + 4*ks if ks < 14 else (200 + 4*(ks-14) if ks < 24 else 124 + 4*(ks-24))
    def g2_setup(self):
        e = self.e
        self.g2_map()
        e(f"s_mul_i32 s{S_M+2}, s{S_WV}, {14*64}\ns_add_u32 s{S_M+2}, s{S_M+2}, {WS_FL2}")
        e(f"s_mul_i32 s{S_M+3}, s{S_G2}, {56*64}\ns_add_u32 s{S_M+3}, s{S_M+3}, s{S_M+2}")
        e(f"s_mul_i32 s44, s{S_G1}, {56*64}\ns_add_u32 s{S_M+2}, s{S_M+2}, s44")
        e(f"s_mul_i32 s{S_M+4}, s{S_G1}, {112*1024}\ns_mul_i32 s{S_M+5}, s{S_G2}, {112*1024}")
        e(f"s_mul_i32 s{S_M+6}, s{S_WV}, {28*1024}\ns_add_u32 s{S_M+6}, s{S_M+6}, {hx(WS_H)}")
        e(f"s_add_u32 s{S_M+4}, s{S_M+4}, s{S_M+6}\ns_add_u32 s{S_M+5}, s{S_M+5}, s{S_M+6}")
        for b_ in range(4): e(f"s_add_u32 s{18+b_}, s{S_M+4}, {b_*7168}\ns_add_u32 s{22+b_}, s{S_M+5}, {b_*7168}")
        e(f"s_lshr_b32 s45, s{S_WV}, 1\ns_sub_u32 s44, s{S_G2}, s{S_G1}\ns_mul_i32 s45, s45, s44\ns_add_u32 s45, s45, s{S_G1}")
        e(f"s_and_b32 s46, s{S_WV}, 1\ns_lshl_b32 s46, s46, 5\ns_lshl_b32 s44, s{S_G3}, 6\ns_add_u32 s46, s46, s44")
        e(f"s_lshl_b32 s{S_M}, s45, 15\ns_lshl_b32 s{S_M+1}, s46, 6\ns_add_u32 s{S_M}, s{S_M}, s{S_M+1}\ns_add_u32 s{S_M}, s{S_M}, {hx(WS_X1)}")
        e(f"s_lshl_b32 s{S_M+1}, s{S_WV}, 11\ns_add_u32 s{S_M+1}, s{S_M+1}, {L_XR2}")
        e("v_min_u32 v140, 13, v1\nv_lshlrev_b32 v140, 6, v140")
    def fl_issue(self, nt, va, vd): return self.tok(f"buffer_load_dword v{vd}, v{va}, s[{S_WS}:{S_WS+3}], s{S_M+2+nt} offen sc1")
    def hl(self, nt, ks, va):
        self.e(f"s_add_u32 s47, s{36 + ks % 7}, s{18 + 4*nt + ks // 7}")
        self.ht[(nt, ks)] = self.tok(f"buffer_load_dwordx4 {vr(self.HR(ks),4)}, v{va}, s[{S_WS}:{S_WS+3}], s47 offen sc1")
    def gemm2f(self):
        e = self.e; c = self.cfg; cap = self.cap
        HB = self.HB; NH = c["nh"]; nrc = c["nrc"]; rd = self.rd; ht = self.ht
        e(f"v_mov_b32 v182, v147\nv_min_u32 v183, 27, v1\nv_lshlrev_b32 v183, 10, v183")
        e("s_barrier")
        for ks in range(nrc, 15):
            self.wait(self.wdt[ks]); rd[ks] = self.wd_read(ks)
        self.stamp(16)
        order = []
        for ks in range(28):
            if ks >= 15 + nrc: order.append(("w", ks))
            if (0, ks) not in ht: order.append(("h", ks))
        NH = min([k for kind, k in order] + [27])
        def iss(it):
            if it[0] == "h": self.hl(0, it[1], 182)
            else:
                self.wait(rd[it[1] - 15]); self.wd_issue(it[1])
        def mm(nt, ks):
            for t in range(2):
                acc = vr(4 + 32*nt + 16*t, 16)
                e(f"v_mfma_f32_32x32x16_bf16 {acc}, {ar((t*32+ks)*4,4)}, {vr(self.HR(ks),4)}, {acc if ks else '0'}")
        probe = lambda: self.tok(f"buffer_load_dword v184, v183, s[{S_WS}:{S_WS+3}], s{S_M+5} offen sc1")
        rest = list(order)
        KC = c["kc"]; f1 = None
        def rdw(ks):
            if 15 <= ks < 28 and ks not in rd:
                self.wait(self.wdt[ks]); rd[ks] = self.wd_read(ks)
        for ks in range(KC):
            for _ in range(2):
                if rest: iss(rest.pop(0))
            if ks == c["kf"]: f1 = probe()
            rdw(ks + 1)
            self.wait(ht[(0, ks)], rd[ks]); mm(0, ks)
        assert not rest and f1 is not None
        slow = self.lab("g2slow"); jn = self.lab("g2j")
        self.wait(f1)
        e(f"v_cmp_eq_u32 vcc, -1, v184\ns_cbranch_vccnz {slow}")
        pendw = [ks for ks in range(15, 28) if ks not in rd]
        nx = 0
        for ks in range(KC, 28):
            for _ in range(c["nb"]):
                if nx < ks: self.hl(1, nx, 182); nx += 1
            rdw(ks + 1)
            self.wait(ht[(0, ks)], rd[ks]); mm(0, ks)
        while nx < 28: self.hl(1, nx, 182); nx += 1
        self.label(jn)
        keep = dict(ht)
        def rout():
            lp = self.lab("g2l"); ok = self.lab("g2ok")
            self.label(slow)
            e("s_waitcnt vmcnt(0)")
            for ks in pendw: self.wd_read(ks)
            probe()
            e("s_waitcnt lgkmcnt(0)")
            for ks in range(KC, 28): mm(0, ks)
            e(f"s_mov_b32 s{S_SPIN}, {self.cfg['spin']}")
            self.label(lp)
            e(f"s_waitcnt vmcnt(0)\nv_cmp_eq_u32 vcc, -1, v184\ns_nop 1\ns_cbranch_vccz {ok}")
            probe()
            self.spin_check(lp)
            e("s_waitcnt vmcnt(0)")
            self.label(ok)
            if c.get("stamps"): e("v_writelane_b32 v255, 1, 51")
            for ks in range(28): self.hl(1, ks, 182)
            e(f"s_branch {jn}")
        self.ool += cap(rout)
        ht.update(keep)
        self.stamp(19)
        def extras():
            e(f"s_mov_b32 m0, s{S_M+1}\ns_nop 0")
            self.tok(f"buffer_load_dwordx4 v182, s[{S_WS}:{S_WS+3}], s{S_M} offen sc1 lds")
            self.xr = self.tok(f"buffer_load_dwordx4 v182, s[{S_WS}:{S_WS+3}], s{S_M} offen offset:1024 sc1 lds")
            e("v_lshrrev_b32 v185, 5, v1\nv_lshlrev_b32 v185, 8, v185")
            e(f"s_lshl_b32 s{S_M+2}, s{S46}, 4\ns_add_u32 s{S_M+2}, s{S_M+2}, {WS_MODF + 8}")
            for j in range(16): self.gbt = self.tok(f"buffer_load_dword v{140+j}, v185, s[{S_WS}:{S_WS+3}], s{S_M+2} offen offset:{16*j} sc1")
        def wr(T):
            for j in range(4): e(f"ds_write_b128 v{186 + (T >> 1)}, {vr(4+16*T+4*j,4)} offset:{(T & 1)*32768 + 1024*j}")
        def addrs():
            e(f"v_add_u32 v186, s{S_M+9}, v182\nv_add_u32 v187, 0x10000, v186")
            e(f"s_lshl_b32 s{S_T0}, s{S_WV}, 15\nv_add_u32 v188, s{S_T0}, v182")
            e("v_lshrrev_b32 v248, 5, v1\nv_lshlrev_b32 v248, 10, v248")
            e("v_bfe_u32 v249, v1, 2, 2\nv_lshl_add_u32 v248, v249, 6, v248")
            e("v_bfe_u32 v249, v1, 4, 1\nv_lshl_add_u32 v248, v249, 5, v248")
            e("v_and_b32 v249, 3, v1\nv_lshl_add_u32 v248, v249, 3, v248")
            e(f"v_add_u32 v248, s{S_M+1}, v248")
            e("v_and_b32 v249, 31, v1\nv_lshlrev_b32 v249, 10, v249")
            e("v_lshrrev_b32 v250, 5, v1\nv_lshl_add_u32 v249, v250, 5, v249")
            e(f"s_lshl_b32 s{S_T0}, s{S45}, 15\ns_lshl_b32 s{S_T1}, s{S46}, 1\ns_add_u32 s{S_T0}, s{S_T0}, s{S_T1}")
        def resid():
            self.wait(self.xr)
            tk = [self.tok(f"ds_read_b64_tr_b16 {vr(172+2*j,2)}, v248 offset:{256*j}") for j in range(4)]
            self.wait(tk[3])
            def rchk(ex):
                e("v_pk_max_u16 v190, v172, v173")
                for j in range(2, 8): e(f"v_pk_max_u16 v190, v190, v{172+j}")
                e("v_lshrrev_b32 v191, 16, v190\nv_and_b32 v190, 0xffff, v190\nv_max_u32 v190, v190, v191\nv_cmp_eq_u32 vcc, 0xffff, v190")
            def rre():
                e(f"s_mov_b32 m0, s{S_M+1}\ns_nop 0")
                e(f"buffer_load_dwordx4 v182, s[{S_WS}:{S_WS+3}], s{S_M} offen sc1 lds\nbuffer_load_dwordx4 v182, s[{S_WS}:{S_WS+3}], s{S_M} offen offset:1024 sc1 lds\ns_waitcnt vmcnt(0)")
                for j in range(4): e(f"ds_read_b64_tr_b16 {vr(172+2*j,2)}, v248 offset:{256*j}")
                e("s_waitcnt lgkmcnt(0)")
            self.guard("rs", rchk, rre)
            for j in range(8): e(f"v_lshlrev_b32 v{156+2*j}, 16, v{172+j}\nv_and_b32 v{157+2*j}, 0xffff0000, v{172+j}")
        def nt1():
            for ks in range(28):
                if ks % 7 == 0:
                    def hchk(ex, k0=ks):
                        for j in range(7):
                            b_ = self.HR(k0 + j)
                            e(f"v_max3_u32 v189, v{b_}, v{b_+1}, {'v189' if j else '0'}\nv_max3_u32 v189, v{b_+2}, v{b_+3}, v189")
                        e("v_cmp_eq_u32 vcc, -1, v189")
                    def reis(k0=ks):
                        keep_ = dict(ht)
                        for j in range(7): self.hl(1, k0 + j, 182)
                        ht.update(keep_); e("s_waitcnt vmcnt(0)")
                    self.wait(ht[(1, ks + 6)])
                    self.guard("hc", hchk, reis)
                mm(1, ks)
        fill = cap(extras) + cap(addrs) + cap(lambda: (wr(0), wr(1))) + cap(resid)
        m, left = merge(cap(nt1), fill, 24, pace=1); self.p.put(m + left)
        self.stamp(17)
        wr(2); wr(3)
        e("s_waitcnt lgkmcnt(0)\ns_barrier")
        rt = {}
        for w in range(4):
            for j in range(4): rt[(w, j)] = self.tok(f"ds_read_b128 {vr(68+16*w+4*j,4)}, v188 offset:{8192*w + 1024*j}")
        self.wait(rt[(1, 3)])
        for j in range(8): e(f"v_pk_add_f32 {vr(68+2*j,2)}, {vr(68+2*j,2)}, {vr(84+2*j,2)}")
        self.wait(rt[(3, 3)], self.gbt)
        for j in range(8): e(f"v_pk_add_f32 {vr(100+2*j,2)}, {vr(100+2*j,2)}, {vr(116+2*j,2)}")
        for h in range(2):
            for j in range(4*h, 4*h+4): e(f"v_pk_add_f32 {vr(68+2*j,2)}, {vr(68+2*j,2)}, {vr(100+2*j,2)}")
            for j in range(4*h, 4*h+4): e(f"v_pk_fma_f32 {vr(68+2*j,2)}, {vr(68+2*j,2)}, {vr(140+2*j,2)}, {vr(156+2*j,2)}")
            for j in range(4*h, 4*h+4): e(f"v_cvt_pk_bf16_f32 v{24+j}, v{68+2*j}, v{69+2*j}")
            e(f"buffer_store_dwordx4 {vr(24+4*h,4)}, v249, s[{S_OUT}:{S_OUT+3}], s{S_T0} offen offset:{16*h}")
        self.stamp(18)

    def bump_epoch(self):
        e = self.e
        sk = self.lab("ep")
        e("s_cmp_lg_u32 s2, 0")
        e(f"s_cbranch_scc1 {sk}")
        e(f"s_add_u32 s{S_T0}, s{S_E}, 1")
        e(f"v_mov_b32 v3, s{S_T0}\nv_mov_b32 v4, 0")
        e("s_mov_b64 exec, 1")
        e(f"buffer_store_dword v3, v4, s[{S_WS}:{S_WS+3}], 0 offen sc1")
        e("s_mov_b64 exec, -1")
        self.label(sk)
    def finish(self):
        if self.cfg.get("hold"):
            self.label("F_hold")
            self.e(f"s_memrealtime s[{S_ST}:{S_ST+1}]\ns_waitcnt lgkmcnt(0)\ns_sub_u32 s{S_T0}, s{S_ST}, s34\ns_cmp_lt_u32 s{S_T0}, {self.cfg['hold']}\ns_cbranch_scc1 F_hold")
        self.stamp_flush()
        self.e('WARMREG -1')
        self.label(f"{self.cfg['uid']}_end")
        self.e("s_endpgm")
        ins = resolve(self.p.take()) + self.ool
        ins, n = pad_hazards(ins)
        check_labels(ins)
        if self.cfg.get('warm'):
            ins, info = add_warm(ins); sys.stderr.write(f'stubs {info}\n')
        else: ins = [i for i in ins if not i.text.startswith('WARM')]
        return render(ins)
def kernel_text(name, body, vgpr=512, accum=256):
    return f""".text
.globl {name}
.p2align 8
.type {name},@function
{name}:
{body}
.section .rodata,"a"
.p2align 6
.amdhsa_kernel {name}
  .amdhsa_next_free_vgpr {vgpr}
  .amdhsa_next_free_sgpr 102
  .amdhsa_accum_offset {accum}
  .amdhsa_group_segment_fixed_size 0
  .amdhsa_kernarg_size 144
  .amdhsa_user_sgpr_count 2
  .amdhsa_user_sgpr_kernarg_segment_ptr 1
  .amdhsa_system_sgpr_workgroup_id_x 1
.end_amdhsa_kernel
"""

def build(stamps=False, over={}):
    hdr = open("adaLN_cond__ssm_conv_s4__glu_gated_geglu__prompt.s.ref").read().split("; Override launch")[0]
    cfg = dict(spin=200000, stamps=stamps, uid="F", b1=10, b2=17, b3=23, sti=35, stk=42, b4=54, wx=6, kc=22, kf=18, nb=4, nh=12, hw=11, nrc=11, rc0=3, rcs=2, f0k=29, p1k=16, g0at=12, twx=0, npre=16, ga=24, cpace=4, gpace=2, nb1=0, twd=2, touch=2, fpos=1, wa0=4, map8=1, rot=1, rot2=1, split=0, nbp=0, nb2=8, nrec=8, wpre=12, itb=1)
    cfg.update(over)
    g = G(cfg); e = g.e
    g.prologue()
    g.p0_issue()
    W = cfg.get('warm', 0)
    e('WARMCALL 0\nWARMREG 0')
    g.srds_late()
    g.g1_map(); g.w_setup(); g.hbase()
    g.w_rot(); g.conv_setup(); g.p0_xb()
    g.tag_ready(); g.stamp(1)
    g.kgen_pre()
    e(f"v_mov_b32 v253, s{S_TAG}")
    if W == 2: e('WARMCALL 1')
    g.p0_stats(); g.stamp(2)
    g.p0_xb2(); g.stamp(23)
    g.wm_issue(1)
    hold = {}
    if cfg['touch'] == 2: g.touch_w()
    if cfg['twd'] == 1: g.touch_wd(1)
    g.wait(g.T["c"]); g.stamp(20)
    g.kgen_tab([])
    g.stamp(24)
    g.p0_mod(0, 5); g.stamp(22)
    if cfg['touch'] == 1: g.touch_w()
    nb1 = cfg["nb1"]
    if cfg['fpos'] == 1: hold['fill'] = g.xfill()
    if W == 2: e('WARMREG 1')
    g.kgen_post()
    g.w_issue_l(range(0, nb1))
    g.stamp(3)
    def fillch():
        if cfg['fpos'] == 1: return []
        f0, hold["fill"] = g.capture(g.xfill)
        return [f0[2*i:2*i+2] for i in range(4)]
    g.hbuild(after_first=lambda: (e('WARMCALL 2'), g.p0_mod(1, 0, base=60), g.w_issue_l(range(nb1, cfg['nbp']))), mid=lambda: fillch() + g.w_chunks(range(cfg['nbp'], cfg['nb2'])))
    sk = g.lab("hm")
    e(f"s_cmp_lt_u32 s{S_IDX}, 28\ns_cbranch_scc1 {sk}")
    for i in g.cap(g.modf_issue):
        if i.text.startswith("buffer_"): g.p.nc(i.text)
        else: g.p.put([i])
    g.label(sk)
    if cfg['touch'] == 3: g.touch_w()
    if cfg['twd'] == 2: g.touch_wd(2)
    cap = g.cap
    nb2 = cfg["nb2"]; nr = cfg["nrec"]
    fa = cap(lambda: g.w_issue_l(range(nb2, 13)))
    fb = [] if not nr else cap(lambda: (g.wait(g.wt[nr-1]), e("s_barrier"), hold.__setitem__("r", g.w_read_l(range(0, nr)))))
    if cfg['fpos'] == 1:
        fa = cap(g.gate_pub) + fa
        fc = cap(lambda: (g.wait(hold["r"]), e("s_barrier"), g.w_issue_l(range(13, 13 + nr))))
    else:
        fc = cap(lambda: (g.wait(hold["r"], hold["fill"]), e("s_barrier"), g.gate_pub(), g.w_issue_l(range(13, 13 + nr))))
    f6, g.gtok = g.capture(g.gate_issue) if cfg['fpos'] == 1 else ([], None)
    f5, hold["late"] = g.capture(g.late_issue)
    g.cfg["cflush"] = (3,)
    g.conv(fillers={0: fa, cfg["itb"]: fb + f5 + fc + cap(lambda: g.late_fin(hold["late"])) + f6}, pre_bar=lambda: g.wait(g.wt[12]))
    assert not any(i.text.startswith("s_barrier") for i in g.conv_left if i.wait is None), len(g.conv_left)
    sys.stderr.write(f"conv left {len(g.conv_left)}\n")
    g.p.put(g.conv_left)
    e(f"s_cmp_ge_u32 s{S_IDX}, 28\ns_cbranch_scc1 F_alt")
    g.modf_pub()
    e('WARMREG 2')
    g.shadow1()
    g.gemm1f()
    g.label("F_g2")
    def alt():
        g.label("F_alt")
        g.u_job(); g.modf_pub(); g.stamp(10)
        g.stats2_job(); g.stamp(11)
        g.wd_setup(); g.g2_setup()
        keep = dict(g.wdt); keep2 = dict(g.ht)
        for ks in range(15): g.wd_issue(ks)
        e("s_waitcnt vmcnt(0)")
        for ks in range(cfg["nrc"]): g.wd_read(ks)
        e("s_waitcnt lgkmcnt(0)")
        for ks in range(15, 15 + cfg["nrc"]): g.wd_issue(ks)
        g.fl_issue(0, 140, 144); e("s_waitcnt vmcnt(0)")
        g.guard("fa", lambda ex: e(f"v_cmp_ne_u32 vcc, s{S_TAG}, v144"), lambda: (g.fl_issue(0, 140, 144), e("s_waitcnt vmcnt(0)")))
        for (nt_, ks) in list(keep2): g.hl(0, ks, 147)
        g.wdt = keep; g.ht.update(keep2)
        e("s_waitcnt vmcnt(0)\ns_branch F_g2")
    g.ool += g.cap(alt)
    g.gemm2f(); g.bump_epoch()
    launch = f"; @launch grid=(256,1,1) block=(256,1,1) lds={LDS_BYTES}\n"
    return hdr + launch + '.amdgcn_target "amdgcn-amd-amdhsa--gfx950"\n' + kernel_text(KN, g.finish())

if __name__ == "__main__":
    over = {}
    for a in sys.argv[1:]:
        if "=" in a:
            k, v = a.split("="); over[k] = int(v)
    print(build(stamps="stamps" in sys.argv[1:], over=over))
```

```python
import sys, struct, math
from asmlib import *
KN = "adaLN_cond__ssm_conv_s4__glu_gated_geglu__prompt_kernel"
WS_ST1 = 0x1000; WS_MODP = 0x8000; WS_MODF = 0x20000; WS_ST2 = 0x24000
WS_FL1 = 0x28000; WS_FL3 = 0x2C000; WS_FL2 = 0x40000; WS_U = 0x80000; WS_XB = 0xC00000; WS_DBG = 0x1000000; WS_X1 = 0x100000; WS_X1S = 0x300000; WS_H = 0x500000; WS_SIZE = 0x1200000
L_TAB = 0; TABW = 17408; TPITCH = 272
L_K = 69632; KCH = 8320; KODD = 4164
L_HI = 86272; HCH = 4608
L_Z = 95488
L_MOD = 111872
L_SP = 131072
L_XT = 155648
L_SS = L_XT
L_XR2 = L_XT
LDS_BYTES = 163840
_POOL = [L_SP, L_SP + 8192, L_SP + 16384, L_MOD, L_MOD + 8192] + [L_TAB + 8192*i for i in range(8)]
def wslot(ks):
    if ks < 26: return _POOL[ks % 13]
    if ks < 29: return L_SP + 8192*(ks-26)
    return L_TAB + 8192*(ks-29)
S_WS = 4; S_WG = 8; S_WU = 12
P_X, P_ARE, P_AIM, P_BRE, P_BIM, P_CRE, P_CIM, P_LDT, P_DSK, P_BX, P_WG, P_WU, P_WD, P_C, P_WM, P_OUT, P_DBG, P_WS = [16 + 2 * i for i in range(18)]
S_X = 52; S_WM = 56; S_WD = 60; S_OUT = 64
S_TAG = 68; S_E = 69; S_WV = 70; S_D0 = 71; S_LDT = 72; S_DSK = 73
S_T0 = 74; S_T1 = 75; S_T2 = 76; S_T3 = 77; S_SPIN = 78; S_IDX = 79; S_XCD = 80
S_M = 82
S_EX = 94
S_ST = 96
S45 = 45; S46 = 46
S_CH = 16; S_PAR = 17
S_G1 = 98; S_G2 = 99; S_G3 = 100
SENT = 0xFFFFFFFF
BA = [124, 125, 126, 127, 141, 142, 2, 3]
def f2u(x): return struct.unpack("<I", struct.pack("<f", x))[0]
def hx(x): return "0x%08x" % (x & 0xFFFFFFFF)
def fl(x): return hx(f2u(x))
LOG2E = 1.4426950408889634
GAM = (2 * 0.7978845608028654 * LOG2E * 0.044715) ** (1.0 / 3)
GC = 2 * 0.7978845608028654 * LOG2E / GAM
def vr(b, n): return f"v[{b}:{b+n-1}]" if n > 1 else f"v{b}"
def ar(b, n): return f"a[{b}:{b+n-1}]" if n > 1 else f"a{b}"
def sr(b, n): return f"s[{b}:{b+n-1}]" if n > 1 else f"s{b}"
class G:
    def __init__(self, cfg):
        self.cfg = cfg; self.p = Prog(); self.nlab = 0; self.nstamp = 0; self.ool = []
    def lab(self, base):
        self.nlab += 1; return f"L{self.cfg['uid']}_{base}_{self.nlab}"
    def e(self, t): self.p.e(t)
    def tok(self, t): return self.p.tok(t)
    def wait(self, *t): self.p.wait(*t)
    def label(self, l): self.p.label(l)
    def stamp(self, i):
        if not self.cfg.get("stamps"): return
        e = self.e
        e(f"s_memtime s[{S_ST}:{S_ST+1}]")
        e("s_waitcnt lgkmcnt(0)")
        e(f"v_writelane_b32 v255, s{S_ST}, {i}")
    def stamp_flush(self):
        if not self.cfg.get("stamps"): return
        e = self.e
        e(f"s_memrealtime s[{S_ST}:{S_ST+1}]")
        e("s_waitcnt lgkmcnt(0)")
        e(f"v_writelane_b32 v255, s{S_ST}, 63")
        e(f"s_lshl_b32 s{S_T0}, s2, 10")
        e(f"s_add_u32 s{S_T0}, s{S_T0}, {WS_DBG + self.cfg.get('dbgoff', 0)}")
        e("v_lshlrev_b32 v254, 2, v0")
        e(f"buffer_store_dword v255, v254, s[{S_WS}:{S_WS+3}], s{S_T0} offen")
        if self.cfg.get("dbgout"):
            sk = self.lab("dbg")
            e(f"s_cmp_lg_u32 s2, {self.cfg['dbgout']}\ns_cbranch_scc1 {sk}\ns_cmp_lg_u32 s{S_WV}, 0\ns_cbranch_scc1 {sk}")
            e(f"v_readlane_b32 s{S_T1}, v255, 0\nv_readlane_b32 s{S_T2}, v255, 62\nv_readlane_b32 s{S_T3}, v255, 63\nv_mov_b32 v4, 0")
            for i, st in enumerate([1, 2, 23, 22, 21, 3, 4, 5, 6, 7, 12, 14, 16, 19, 18]):
                e(f"v_readlane_b32 s{S_T0}, v255, {st}\ns_sub_u32 s{S_T0}, s{S_T0}, s{S_T1}\nv_mov_b32 v3, s{S_T0}")
                e(f"global_store_dword v4, v3, s[{P_DBG}:{P_DBG+1}] offset:{4*i}")
            e(f"s_sub_u32 s{S_T0}, s{S_T3}, s{S_T2}\nv_mov_b32 v3, s{S_T0}")
            e(f"global_store_dword v4, v3, s[{P_DBG}:{P_DBG+1}] offset:60")
            self.label(sk)
    def srd(self, s, ptr, size):
        self.e(f"s_mov_b32 s{s}, s{ptr}\ns_mov_b32 s{s+1}, s{ptr+1}\ns_mov_b32 s{s+2}, {hx(size)}\ns_mov_b32 s{s+3}, 0x20000")
    def prologue(self):
        e = self.e
        e("s_cmp_ge_u32 s2, 256")
        e(f"s_cbranch_scc1 {self.cfg['uid']}_end")
        e("s_load_dwordx16 s[16:31], s[0:1], 0")
        e("s_load_dwordx16 s[32:47], s[0:1], 64")
        e("s_load_dwordx4 s[48:51], s[0:1], 128")
        if self.cfg.get("stamps"):
            e("v_mov_b32 v255, 0")
            e(f"s_memrealtime s[{S_ST}:{S_ST+1}]")
        if self.cfg.get("hold"): e("s_memrealtime s[34:35]" if False else "s_nop 0")
        if self.cfg.get("cpf"):
            n = self.cfg["cpf"]
            e("s_getpc_b64 s[4:5]\ns_and_b32 s4, s4, 0xffffff00")
            e(f"s_lshr_b32 s6, s2, 3\ns_mul_i32 s6, s6, {n*128}\nv_min_u32 v254, {n-1}, v0\nv_lshlrev_b32 v254, 7, v254\nv_add_u32 v254, s6, v254")
            e("global_load_dword v196, v254, s[4:5]")
        e("v_and_b32 v1, 63, v0")
        e("v_lshrrev_b32 v2, 6, v0")
        e(f"s_and_b32 s{S_XCD}, s2, 7")
        e(f"v_readfirstlane_b32 s{S_WV}, v2")
        e(f"s_lshr_b32 s{S_IDX}, s2, 3")
        e(f"s_lshl_b32 s{S_D0}, s{S_XCD}, 5")
        e(f"s_add_u32 s{S_D0}, s{S_D0}, s{S_IDX}")
        e(f"s_lshl_b32 s{S_D0}, s{S_D0}, 1")
        e(f"s_lshl_b32 s{S_T0}, s2, 13\ns_lshl_b32 s{S_T1}, s{S_WV}, 11\ns_add_u32 s{S_T0}, s{S_T0}, s{S_T1}")
        e("v_lshlrev_b32 v9, 4, v1")
        e("v_lshrrev_b32 v4, 3, v1\nv_and_b32 v5, 7, v1\nv_lshlrev_b32 v5, 4, v5\nv_lshl_add_u32 v3, v4, 10, v5")
        e(f"s_lshl_b32 s{S_T3}, s{S_IDX}, 16\ns_lshl_b32 s{S_T2}, s{S_XCD}, 7\ns_add_u32 s{S_T3}, s{S_T3}, s{S_T2}")
        e(f"s_lshl_b32 s{S_T2}, s{S_WV}, 14\ns_add_u32 s{S_T3}, s{S_T3}, s{S_T2}")
        e(f"s_add_u32 m0, s{S_T1}, {L_XT}")
        e(f"v_add_u32 v6, {8192 - 1024}, v3")
        e(f"s_lshl_b32 s{S_T2}, s{S_D0}, 8\nv_lshl_add_u32 v8, v0, 1, s{S_T2}")
        e(f"s_mul_i32 s{S_M}, s2, 1366\ns_lshr_b32 s{S_M}, s{S_M}, 16")
        e(f"s_mul_i32 s{S_M+2}, s{S_M}, 48\ns_sub_u32 s{S_M+1}, s2, s{S_M+2}")
        e(f"s_and_b32 s{S_M+2}, s{S_M}, 3\ns_lshl_b32 s{S_M+2}, s{S_M+2}, 8\nv_lshl_add_u32 v7, v1, 2, s{S_M+2}")
        e("v_mul_u32_u24 v33, 6144, v4\nv_add_u32 v33, v33, v5")
        e(f"s_mul_i32 s{S_M+2}, s{S_M}, {128*6144}\ns_lshl_b32 s{S_M+3}, s{S_M+1}, 7\ns_add_u32 s{S_M+2}, s{S_M+2}, s{S_M+3}")
        e(f"s_mul_i32 s{S_M+3}, s{S_WV}, {32*6144}\ns_add_u32 s{S_M+2}, s{S_M+2}, s{S_M+3}")
        e(f"s_mov_b32 s{S_X+2}, {hx(2097152)}\ns_mov_b32 s{S_X+3}, 0x20000\ns_mov_b32 s{S_WM+2}, {hx(3145728)}\ns_mov_b32 s{S_WM+3}, 0x20000")
        e("s_waitcnt lgkmcnt(0)")
        if self.cfg.get("stamps"):
            e(f"v_writelane_b32 v255, s{S_ST}, 62")
        if self.cfg.get("hold"): e("s_memrealtime s[34:35]")
        self.stamp(0)
    def srds_late(self):
        self.srd(S_WS, P_WS, WS_SIZE)
        self.srd(S_WD, P_WD, 1835008)
        self.srd(S_OUT, P_OUT, 2097152)
    def tag_ready(self):
        e = self.e
        e("s_waitcnt lgkmcnt(0)")
        e(f"s_mul_i32 s{S_TAG}, s{S_E}, 0x9E3779B1")
        e(f"s_add_u32 s{S_TAG}, s{S_TAG}, 0x7F4A7C15")
    def reduce16(self, regs):
        for ctl in ["quad_perm:[1,0,3,2]", "quad_perm:[2,3,0,1]", "row_half_mirror", "row_mirror"]:
            for r in regs:
                self.e(f"v_add_f32_dpp v{r}, v{r}, v{r} {ctl} row_mask:0xf bank_mask:0xf")
    def stat_finish(self, vs, vq, t0, t1):
        e = self.e
        e(f"v_mul_f32 v{vs}, {fl(1/512)}, v{vs}")
        e(f"v_mul_f32 v{t0}, v{vs}, v{vs}")
        e(f"v_mul_f32 v{vq}, {fl(1/512)}, v{vq}")
        e(f"v_sub_f32 v{vq}, v{vq}, v{t0}")
        e(f"v_max_f32 v{vq}, 0, v{vq}")
        e(f"v_cvt_pk_bf16_f32 v{t0}, v{vq}, v{vq}")
        e(f"v_and_b32 v{t0}, 0xffff0000, v{t0}")
        e(f"v_add_f32 v{t0}, {fl(1e-5)}, v{t0}")
        e(f"v_cvt_pk_bf16_f32 v{t0}, v{t0}, v{t0}")
        e(f"v_and_b32 v{t0}, 0xffff0000, v{t0}")
        e(f"v_sqrt_f32 v{t0}, v{t0}")
        e(f"v_cvt_pk_bf16_f32 v{vs}, v{t0}, v{vs}")
    def cmul_list(self, jobs):
        e = self.e; i = 0
        f1 = lambda d, a, b: f"v_pk_mul_f32 {vr(d,2)}, {vr(a,2)}, {vr(b,2)} op_sel:[0,0] op_sel_hi:[0,1]"
        f2 = lambda d, a, b: f"v_pk_fma_f32 {vr(d,2)}, {vr(a,2)}, {vr(b,2)}, {vr(d,2)} op_sel:[1,1,0] op_sel_hi:[1,0,1] neg_lo:[0,1,0]"
        while i < len(jobs):
            j = jobs[i]
            if i + 1 < len(jobs) and j[0] not in jobs[i+1][1:] and jobs[i+1][0] not in j:
                k = jobs[i+1]
                e(f1(*j)); e(f1(*k)); e(f2(*j)); e(f2(*k)); i += 2
            else:
                e(f1(*j)); e(f2(*j)); i += 1
    def kgen_pre(self):
        e = self.e
        e("v_mov_b32 v36, 0\nv_mov_b32 v37, 0\nv_mov_b32 v38, 0\nv_mov_b32 v39, 0")
        e("v_lshrrev_b32 v3, 5, v0")
        e(f"v_mul_u32_u24 v3, {HCH}, v3")
        e("v_and_b32 v4, 31, v0")
        e("v_lshl_add_u32 v3, v4, 4, v3")
        e(f"v_add_u32 v3, {L_HI}, v3")
        e("v_bfe_u32 v4, v0, 2, 2")
        e(f"v_mul_u32_u24 v4, 4160, v4")
        e("v_and_b32 v5, 3, v0")
        e("v_lshl_add_u32 v4, v5, 4, v4")
        e(f"v_add_u32 v4, {L_K + 4096}, v4")
        e("v_cmp_gt_u32 vcc, 64, v0")
        e("v_cndmask_b32 v3, v4, v3, vcc")
        e("v_cmp_gt_u32 vcc, 80, v0")
        e(f"s_and_saveexec_b64 s[{S_EX}:{S_EX+1}], vcc")
        zl = self.lab("z")
        e(f"s_cbranch_execz {zl}")
        e("ds_write_b128 v3, v[36:39]")
        self.label(zl)
        e(f"s_mov_b64 exec, s[{S_EX}:{S_EX+1}]")
        e(f"s_lshr_b32 s{S_T0}, s{S_WV}, 1")
        e(f"s_lshl_b32 s{S_T0}, s{S_T0}, 4")
        e(f"s_lshr_b32 s{S_T1}, s{S_LDT}, s{S_T0}")
        e(f"s_lshl_b32 s{S_T1}, s{S_T1}, 16")
        e(f"v_mov_b32 v3, {fl(LOG2E)}")
        e(f"v_mul_f32 v3, s{S_T1}, v3")
        e("v_exp_f32 v3, v3")
        e("v_cvt_pk_bf16_f32 v3, v3, v3")
        e("v_and_b32 v35, 0xffff0000, v3")
    def kgen_tab(self, chunks=()):
        e = self.e
        keep = self.p.take()
        for i in range(6): e(f"v_lshlrev_b32 v{26+i}, 16, v{18+i}")
        e("v_mul_f32 v26, v26, v35\nv_mul_f32 v27, v27, v35\nv_mul_f32 v28, v28, v35\nv_mul_f32 v29, v29, v35")
        e(f"v_mul_f32 v26, {fl(LOG2E)}, v26")
        e("v_mul_f32 v27, 0.15915494, v27")
        S = lambda j: 40 + 2 * j
        Gt = lambda T: 74 + 2 * (T - 1)
        Pn = lambda n: 88 + 2 * n
        S32, S64, S128 = 138, 140, 142
        def direct(dst, t, a, b, c):
            if t == 1:
                e(f"v_exp_f32 v{a}, v26\nv_fract_f32 v{b}, v27")
            else:
                e(f"v_mul_f32 v{a}, {fl(float(t))}, v26\nv_mul_f32 v{b}, {fl(float(t))}, v27")
                e(f"v_exp_f32 v{a}, v{a}\nv_fract_f32 v{b}, v{b}")
            e(f"v_cos_f32 v{c}, v{b}\nv_sin_f32 v{b}, v{b}\ns_nop 0")
            e(f"v_mul_f32 v{dst}, v{a}, v{c}\nv_mul_f32 v{dst+1}, v{a}, v{b}")
        e(f"s_mul_i32 s{S_T3}, s{S_WV}, {TABW}\ns_mov_b32 m0, s{S_T3}")
        st = {"n": 0, "q": []}
        NBAT = 8
        def flush():
            for ent_, r_ in st["q"]: e(f"ds_write_addtid_b32 v{r_} offset:{L_TAB + ent_*TPITCH}")
            st["q"] = []
        def pair(ent, jobs, srcs, neg=False):
            self.cmul_list(jobs)
            for i in range(2):
                pk = 128 + (st["n"] % NBAT); st["n"] += 1
                if srcs[i] is None: e(f"v_mov_b32 v{pk}, 0x3f80")
                else: e(f"v_cvt_pk_bf16_f32 v{pk}, v{srcs[i]}, {'-' if neg else ''}v{srcs[i]+1}")
                st["q"].append((ent + i, pk))
            if len(st["q"]) == NBAT: flush()
        direct(S(1), 1, 120, 121, 122)
        pair(0, [], [None, S(1)])
        direct(S(16), 16, 123, 124, 125)
        pair(2, [(S(2), S(1), S(1)), (Pn(0), 30, 28), (S(3), S(2), S(1))], [S(2), S(3)])
        direct(Gt(1), 256, 120, 121, 122)
        pair(48, [(Pn(1), Pn(0), S(16)), (S32, S(16), S(16))], [Pn(0), Pn(1)], True)
        pair(4, [(S(4), S(2), S(2)), (S(5), S(3), S(2))], [S(4), S(5)])
        pair(6, [(S(6), S(4), S(2)), (S(7), S(4), S(3))], [S(6), S(7)])
        pair(50, [(Pn(2), Pn(0), S32), (Pn(3), Pn(1), S32), (S64, S32, S32)], [Pn(2), Pn(3)], True)
        pair(8, [(S(8), S(4), S(4)), (S(9), S(5), S(4))], [S(8), S(9)])
        pair(10, [(S(10), S(8), S(2)), (S(11), S(8), S(3))], [S(10), S(11)])
        pair(52, [(Pn(4), Pn(0), S64), (Pn(5), Pn(1), S64)], [Pn(4), Pn(5)], True)
        pair(54, [(Pn(6), Pn(2), S64), (Pn(7), Pn(3), S64), (S128, S64, S64)], [Pn(6), Pn(7)], True)
        pair(12, [(S(12), S(8), S(4)), (S(13), S(8), S(5))], [S(12), S(13)])
        pair(14, [(S(14), S(8), S(6)), (S(15), S(8), S(7))], [S(14), S(15)])
        aux = [[(Gt(2), Gt(1), Gt(1))], [(Gt(3), Gt(2), Gt(1))], [(Gt(4), Gt(2), Gt(2))], []]
        for i in range(4):
            pair(56 + 2*i, [(Pn(8+2*i), Pn(2*i), S128), (Pn(9+2*i), Pn(2*i+1), S128)] + aux[i], [Pn(8+2*i), Pn(9+2*i)], True)
        ents = {0: [(1, 0), (1, 2), (1, 4), (1, 6), (1, 8), (4, 0), (4, 8), (4, 16)],
                1: [(1, 8), (1, 10), (1, 12), (1, 14), (1, 16), (5, 0), (5, 8), (5, 16)],
                2: [(2, 0), (2, 4), (2, 8), (2, 12), (2, 16), (6, 0), (6, 8), (6, 16)],
                3: [(3, 0), (3, 4), (3, 8), (3, 12), (3, 16), (7, 0), (7, 8), (7, 16)]}
        extra = {(0, 0): (Gt(5), Gt(4), Gt(1)), (2, 0): (Gt(6), Gt(4), Gt(2)), (3, 0): (Gt(7), Gt(4), Gt(3))}
        tb = 0
        for q in range(4):
            for h in range(4):
                two = ents[q][2*h:2*h+2]; base = 88 + 4*(tb & 3); tb += 1
                jobs = []; srcs = []
                for i, (T, j) in enumerate(two):
                    if j == 0: srcs.append(Gt(T))
                    else: jobs.append((base + 2*i, Gt(T), S(j))); srcs.append(base + 2*i)
                if (q, h) in extra: jobs.append(extra[(q, h)])
                pair(16 + 16*(h >> 1) + 4*q + 2*(h & 1), jobs, srcs)
        body = self.p.take()
        out = []; ci = 0; nb = 0
        for k_, ins in enumerate(body):
            out.append(ins)
            last = ins.text.startswith("ds_write_addtid") and (k_ + 1 == len(body) or not body[k_+1].text.startswith("ds_write_addtid"))
            if last:
                nb += 1
                if nb > self.cfg["wa0"] and ci < len(chunks):
                    out += chunks[ci] + chunks[ci+1] + [Ins(f"s_mov_b32 m0, s{S_T3}")]; ci += 2
        for c in chunks[ci:]: out += c
        self.p.put(keep + out)

    def kgen_post(self, post_b2=None):
        e = self.e
        e(f"s_lshr_b32 s{S_T2}, s{S_WV}, 1\ns_mul_i32 s{S_T0}, s{S_T2}, {2*TABW}")
        e(f"v_and_b32 v6, 15, v1\nv_mul_u32_u24 v3, {TPITCH}, v6")
        e("v_lshrrev_b32 v7, 4, v1\nv_lshl_add_u32 v3, v7, 4, v3")
        e(f"v_add_u32 v3, s{S_T0}, v3")
        e(f"s_and_b32 s{S_T1}, s{S_WV}, 1\ns_mul_i32 s{S_T1}, s{S_T1}, {16*TPITCH}\nv_add_u32 v4, s{S_T1}, v3")
        e(f"s_mul_i32 s{S_T2}, s{S_T2}, {KCH}\ns_add_u32 s{S_T2}, s{S_T2}, {L_K}")
        e(f"v_lshlrev_b32 v6, 5, v6\nv_sub_u32 v6, s{S_T2}, v6")
        e("v_lshlrev_b32 v9, 9, v7\nv_sub_u32 v9, v6, v9")
        e("s_waitcnt lgkmcnt(0)\ns_barrier")
        self.stamp(21)
        F = 40; toks = {}
        for ks in range(8):
            o = L_TAB + (ks >> 2)*TABW + (ks & 3)*64; r = F + 12*ks
            self.tok(f"ds_read_b128 {vr(r+8,4)}, v3 offset:{o + 48*TPITCH}")
            toks[(ks, 0)] = self.tok(f"ds_read_b128 {vr(r,4)}, v4 offset:{o}")
            toks[(ks, 1)] = self.tok(f"ds_read_b128 {vr(r+4,4)}, v3 offset:{o + 32*TPITCH}")
        A0 = 136; A2 = 140
        for ks in range(8):
            r = F + 12*ks
            for b, acc in ((0, A0), (1, A2)):
                self.wait(toks[(ks, b)])
                e(f"v_mfma_f32_16x16x32_bf16 {vr(acc,4)}, {vr(r+4*b,4)}, {vr(r+8,4)}, {vr(acc,4) if ks else '0'}")
        e("s_barrier")
        if post_b2: post_b2()
        h1 = self.lab("kh1"); jn = self.lab("kj")
        e(f"s_bitcmp1_b32 s{S_WV}, 0\ns_cbranch_scc1 {h1}")
        def cv(d, lst):
            for i, (a, b) in enumerate(lst): e(f"v_cvt_pk_bf16_f32 v{d+i}, v{a}, v{b}")
        O = KODD - 4
        e("v_lshlrev_b32 v8, 3, v7\nv_sub_u32 v8, v6, v8")
        f0, f1, f2 = A2+1, A2+2, A2+3
        cv(52, [(f2, f2), (f2, f2), (f1, f1), (f1, f1), (f1, f1), (f1, f0), (f0, f0), (f0, f0)])
        e(f"ds_write_b128 v9, v[52:55] offset:{2*(2032-1024)}")
        cv(60, [(f2, f2), (f2, f2), (f2, f1), (f1, f1), (f1, f1), (f1, f1), (f0, f0), (f0, f0)])
        e(f"ds_write_b128 v9, v[56:59] offset:{2*(2032-1024)+16}")
        cv(48, [(A0+3, A0+2), (A0+1, A0), (A0+2, A0+1)])
        e(f"ds_write_b128 v9, v[60:63] offset:{2*(2032-1024) + O}")
        e(f"ds_write_b128 v9, v[64:67] offset:{2*(2032-1024) + O + 16}")
        e(f"ds_write_b64 v8, v[48:49] offset:{2*2044}")
        e(f"ds_write_b16 v8, v48 offset:{2*2044 + O + 2}")
        e(f"ds_write_b32 v8, v50 offset:{2*2044 + O + 4}")
        e(f"ds_write_b16_d16_hi v8, v49 offset:{2*2044 + O + 8}")
        e(f"s_branch {jn}")
        self.label(h1)
        e("v_lshlrev_b32 v8, 4, v7\nv_sub_u32 v8, v6, v8")
        E_ = lambda j: A0 + j if j < 4 else A2
        C = lambda lst: [(E_(a), E_(b)) for a, b in lst]
        cv(52, C([(4, 4), (3, 3), (3, 2), (2, 2), (2, 2), (1, 1), (1, 0), (0, 0)]))
        e("s_mov_b32 exec_lo, 0")
        e(f"ds_write_b128 v9, v[52:55] offset:{2*2032}\nds_write_b128 v9, v[56:59] offset:{2*2032+16}")
        e("s_mov_b32 exec_lo, -1")
        cv(60, C([(4, 4), (4, 3), (3, 3), (2, 2), (2, 2), (2, 1), (1, 1), (0, 0)]))
        e("s_mov_b32 exec_lo, 0")
        e(f"ds_write_b128 v9, v[60:63] offset:{2*2032 + O}\nds_write_b128 v9, v[64:67] offset:{2*2032 + O + 16}")
        e("s_mov_b32 exec_lo, -1")
        cv(40, C([(4, 3), (2, 2), (2, 1), (0, 0), (4, 4), (3, 2), (2, 2), (1, 0)]))
        e("s_mov_b32 exec_hi, 0")
        e(f"ds_write_b128 v8, v[40:43] offset:{2*(2040-256)}\nds_write_b128 v8, v[44:47] offset:{2*(2040-256) + O}")
        e(f"ds_write_b16 v8, v43 offset:{2*(2040-256) + O + 16}")
        e("s_mov_b32 exec_hi, -1")
        self.label(jn)

    def spin_check(self, retry_label, out_label=None):
        e = self.e
        e(f"s_sub_u32 s{S_SPIN}, s{S_SPIN}, 1")
        e(f"s_cmp_lg_u32 s{S_SPIN}, 0")
        e(f"s_cbranch_scc1 {retry_label}")
    def hbuild(self, after_first=None, mid=None):
        e = self.e
        e(f"s_lshl_b32 s{S_T0}, s{S_WV}, 12\nv_lshl_add_u32 v3, v1, 4, s{S_T0}")
        e("v_and_b32 v4, 3, v1")
        e(f"v_mul_u32_u24 v4, {3072*8}, v4")
        e("v_lshrrev_b32 v5, 3, v1")
        e("v_min_u32 v5, 5, v5")
        e("v_lshl_add_u32 v4, v5, 12, v4")
        e("v_bfe_u32 v6, v1, 2, 1")
        e("v_lshl_add_u32 v4, v6, 3, v4")
        e(f"s_lshl_b32 s{S_T0}, s{S_D0}, 3")
        e(f"s_add_u32 s{S_T0}, s{S_T0}, {WS_MODP}")
        e(f"s_mov_b32 s{S_T1}, {WS_ST1}")
        e(f"s_lshl_b32 s{S_T2}, s{S_D0}, 13\ns_add_u32 s{S_T2}, s{S_T2}, {hx(WS_XB)}")
        e(f"s_mov_b32 s{S_SPIN}, {self.cfg['spin']}")
        rt = self.lab("h0"); ok = self.lab("h0ok"); ck = self.lab("h0ck")
        def pl():
            self.tok(f"buffer_load_dwordx2 v[8:9], v4, s[{S_WS}:{S_WS+3}], s{S_T0} offen sc1")
            for i in range(4):
                t_ = self.tok(f"buffer_load_dwordx4 v[{40+4*i}:{43+4*i}], v3, s[{S_WS}:{S_WS+3}], s{S_T1} offen offset:{1024*i} sc1")
            for i in range(4):
                t_ = self.tok(f"buffer_load_dwordx4 v[{20+4*i}:{23+4*i}], v3, s[{S_WS}:{S_WS+3}], s{S_T2} offen offset:{1024*i} sc1")
            return t_
        if after_first:
            t_ = pl(); self.stamp(26); after_first(); self.wait(t_); self.stamp(25)
            e(f"s_branch {ck}")
            keep = self.p.take()
            self.label(rt); pl(); e("s_waitcnt vmcnt(0)"); e(f"s_branch {ck}")
            self.ool += self.p.take(); self.p.put(keep[:-1])
            self.label(ck)
        else:
            self.label(rt); pl(); e("s_waitcnt vmcnt(0)")
        e(f"v_mov_b32 v10, s{S_TAG}")
        if True: e("v_cmp_gt_u32 vcc, 24, v1\nv_cndmask_b32 v9, v10, v9, vcc")
        for i in range(8):
            e(f"v_min3_u32 v11, v{41+2*i}, v{21+2*i}, {'v11' if i else 'v9'}")
            e(f"v_max3_u32 v12, v{41+2*i}, v{21+2*i}, {'v12' if i else 'v9'}")
        e("v_xor_b32 v11, v11, v10\nv_xor_b32 v12, v12, v10\nv_or_b32 v7, v11, v12")
        e("v_cmp_ne_u32 vcc, 0, v7")
        e(f"s_cbranch_vccz {ok}")
        self.spin_check(rt)
        self.label(ok)
        self.stamp(4)
        if self.cfg.get("stamps"): e(f"s_sub_u32 s{S_ST}, {self.cfg['spin']+1}, s{S_SPIN}\nv_writelane_b32 v255, s{S_ST}, 50")
        e(f"s_mov_b32 s{S_EX}, s{S_T0}\nv_mov_b32 v237, v4")
        keep_ = self.p.take()
        e("v_add_f32_dpp v8, v8, v8 quad_perm:[1,0,3,2] row_mask:0xf bank_mask:0xf")
        for i in range(4): e(f"v_lshlrev_b32 v{64+i}, 16, v{40+2*i}")
        e("v_add_f32_dpp v8, v8, v8 quad_perm:[2,3,0,1] row_mask:0xf bank_mask:0xf")
        for i in range(4, 8): e(f"v_lshlrev_b32 v{64+i}, 16, v{40+2*i}")
        e("v_cvt_pk_bf16_f32 v8, v8, v8\nv_rcp_f32 v64, v64\nv_and_b32 v8, 0xffff0000, v8\nv_rcp_f32 v65, v65")
        e("v_add_f32 v9, 1.0, v8\nv_rcp_f32 v66, v66")
        e("v_cvt_pk_bf16_f32 v9, v9, v9\nv_rcp_f32 v67, v67\nv_and_b32 v9, 0xffff0000, v9")
        X = 72; Hh = 88; Z = 104
        for i in range(8):
            if i < 3:
                src = 9 if i in (1, 4) else 8
                e(f"v_readlane_b32 s{S_M+2*i}, v{src}, {8*i}")
                e(f"v_readlane_b32 s{S_M+2*i+1}, v{src}, {8*i+4}")
            if i >= 4: e(f"v_rcp_f32 v{64+i}, v{64+i}")
            e(f"v_and_b32 v{56+i}, 0xffff0000, v{40+2*i}")
            k_ = i >> 1; src_ = 20 + 4*k_ + 2*(i & 1); dst_ = X + 8*(k_ & 1) + 4*(k_ >> 1) + 2*(i & 1)
            e(f"v_lshlrev_b32 v{dst_}, 16, v{src_}")
            e(f"v_and_b32 v{dst_+1}, 0xffff0000, v{src_}")
        sa, sA, ga, sb, sB, gb = [S_M + 2*i for i in range(6)]
        e(f"v_mov_b32 v16, s{ga}\nv_mov_b32 v17, s{ga+1}")
        for k in range(8):
            e(f"v_pk_add_f32 {vr(Hh+2*k,2)}, {vr(X+2*k,2)}, {vr(56+2*(k&3),2)} neg_lo:[0,1] neg_hi:[0,1]")
        e(f"v_mul_f32 v10, s{sA}, v16\nv_mul_f32 v11, s{sA+1}, v17")
        e(f"v_mul_f32 v12, s{sa}, v16\nv_mul_f32 v13, s{sa+1}, v17")
        e(f"s_lshl_b32 s{S_T0}, s{S_DSK}, 16\ns_and_b32 s{S_T1}, s{S_DSK}, 0xffff0000")
        e(f"v_mov_b32 v14, s{S_T0}\nv_mov_b32 v15, s{S_T1}")
        for k in range(8):
            e(f"v_pk_mul_f32 {vr(Hh+2*k,2)}, {vr(Hh+2*k,2)}, {vr(64+2*(k&3),2)}")
        for k in range(8):
            c = k >> 2
            e(f"v_pk_fma_f32 {vr(Hh+2*k,2)}, {vr(Hh+2*k,2)}, v[10:11], v[12:13] op_sel:[0,{c},{c}] op_sel_hi:[1,{c},{c}]")
        for ch in range(2):
            for j in range(4):
                e(f"v_cvt_pk_bf16_f32 v{120+4*ch+j}, v{Hh+8*ch+2*j}, v{Hh+8*ch+2*j+1}")
            e(f"ds_write_b128 v183, v[{120+4*ch}:{123+4*ch}] offset:{HCH*ch}")
        for k in range(8):
            c = k >> 2
            e(f"v_pk_fma_f32 {vr(Z+2*k,2)}, {vr(Hh+2*k,2)}, v[14:15], {vr(X+2*k,2)} op_sel:[0,{c},0] op_sel_hi:[1,{c},1]")
            if k & 1: e(f"ds_write_b128 v184, {vr(Z+2*k-2,4)} offset:{8192*c + 16*((k>>1)&1)}")
        body_ = self.p.take()
        self.p.put(keep_ + spread(body_, [(0, c_) for c_ in (mid() if mid else [])]))
    def late_issue(self): return self.tok(f"buffer_load_dwordx2 v[238:239], v237, s[{S_WS}:{S_WS+3}], s{S_EX} offen sc1")
    def late_fin(self, tl):
        e = self.e
        self.wait(tl)
        self.guard("lt", lambda ex: e(f"v_cmp_ne_u32 vcc, s{S_TAG}, v239"), lambda: (self.late_issue(), e("s_waitcnt vmcnt(0)")))
        e("v_add_f32_dpp v238, v238, v238 quad_perm:[1,0,3,2] row_mask:0xf bank_mask:0xf")
        e("s_nop 1")
        e("v_add_f32_dpp v238, v238, v238 quad_perm:[2,3,0,1] row_mask:0xf bank_mask:0xf")
        e("v_cvt_pk_bf16_f32 v238, v238, v238\nv_and_b32 v238, 0xffff0000, v238\nv_add_f32 v239, 1.0, v238")
        e("v_cvt_pk_bf16_f32 v239, v239, v239\nv_and_b32 v239, 0xffff0000, v239\ns_nop 0")
        for i in (4, 5):
            src = 239 if i == 4 else 238
            e(f"v_readlane_b32 s{S_M+2*i}, v{src}, {8*i}\nv_readlane_b32 s{S_M+2*i+1}, v{src}, {8*i+4}")
    def modf_pub(self):
        e = self.e
        sa, sA, ga, sb, sB, gb = [S_M + 2*i for i in range(6)]
        nm = self.lab("nomodf")
        e(f"s_cmp_lg_u32 s{S_WV}, 0")
        e(f"s_cbranch_scc1 {nm}")
        e(f"v_mov_b32 v20, 0\nv_mov_b32 v21, s{S_TAG}\nv_mov_b32 v22, s{gb}\nv_mov_b32 v23, s{S_TAG}")
        e(f"v_writelane_b32 v22, s{gb+1}, 1")
        e("v_lshlrev_b32 v19, 4, v1")
        e(f"s_lshl_b32 s{S_T0}, s{S_D0}, 4\ns_add_u32 s{S_T0}, s{S_T0}, {WS_MODF}")
        e("s_mov_b64 exec, 3")
        self.p.nc(f"buffer_store_dwordx4 v[20:23], v19, s[{S_WS}:{S_WS+3}], s{S_T0} offen sc1")
        e("s_mov_b64 exec, -1")
        self.label(nm)
    def conv_setup(self):
        e = self.e
        e(f"s_lshr_b32 s{S_CH}, s{S_WV}, 1")
        e(f"s_and_b32 s{S_PAR}, s{S_WV}, 1")
        e("v_and_b32 v176, 15, v1\nv_lshrrev_b32 v177, 4, v1")
        e("v_lshlrev_b32 v178, 3, v177")
        e("v_sub_u32 v178, v178, v176")
        e("v_add_u32 v178, 2031, v178")
        e("v_lshrrev_b32 v178, 1, v178")
        e("v_and_b32 v179, 1, v1\nv_xor_b32 v179, 1, v179")
        e(f"v_mul_u32_u24 v179, {KODD}, v179")
        e("v_lshl_add_u32 v178, v178, 2, v179")
        e(f"s_mul_i32 s{S_T0}, s{S_CH}, {KCH}")
        e(f"s_lshl_b32 s{S_T1}, s{S_PAR}, 8")
        e(f"s_sub_u32 s{S_T0}, s{S_T0}, s{S_T1}")
        e(f"s_add_u32 s{S_T0}, s{S_T0}, {L_K - 192 - 512}")
        for j in range(4):
            e(f"v_add_u32 v{168+j}, s{S_T0}, v178")
            if j < 3: e(f"s_sub_u32 s{S_T0}, s{S_T0}, 1024")
        e("v_lshlrev_b32 v178, 5, v176")
        e("v_lshl_add_u32 v178, v177, 4, v178")
        e(f"s_mul_i32 s{S_T0}, s{S_CH}, {HCH}")
        e(f"s_sub_u32 s{S_T0}, s{S_T0}, s{S_T1}")
        e(f"s_add_u32 s{S_T0}, s{S_T0}, {L_HI + 480 - 192}")
        e(f"v_add_u32 v172, s{S_T0}, v178")
        e("v_lshl_add_u32 v178, v176, 5, v178")
        e(f"s_lshl_b32 s{S_T0}, s{S_CH}, 13")
        e(f"s_lshl_b32 s{S_T1}, s{S_PAR}, 12")
        e(f"s_add_u32 s{S_T0}, s{S_T0}, s{S_T1}")
        e(f"s_add_u32 s{S_T0}, s{S_T0}, {L_Z}")
        e(f"v_add_u32 v173, s{S_T0}, v178")
        e(f"s_lshl_b32 s{S_T0}, s{S_WV}, 12\ns_add_u32 s{S_T0}, s{S_T0}, {L_Z}\nv_lshl_add_u32 v180, v1, 4, s{S_T0}")
        e(f"s_xor_b32 s{S_T1}, s{S_WV}, 1\ns_lshl_b32 s{S_T1}, s{S_T1}, 12\ns_add_u32 s{S_T1}, s{S_T1}, {L_Z}\nv_lshl_add_u32 v181, v1, 4, s{S_T1}")
        e("v_and_b32 v176, 15, v1\nv_lshrrev_b32 v177, 4, v1")
        e("v_lshrrev_b32 v182, 1, v176\nv_and_b32 v179, 1, v177\nv_lshl_add_u32 v182, v179, 3, v182\nv_lshlrev_b32 v182, 15, v182")
        e("v_and_b32 v176, 1, v176\nv_lshl_add_u32 v182, v176, 5, v182\nv_lshrrev_b32 v177, 1, v177\nv_lshl_add_u32 v182, v177, 4, v182")
        e(f"s_add_u32 s27, s{S_D0}, s{S_CH}\ns_lshl_b32 s27, s27, 6\ns_lshl_b32 s28, s{S_PAR}, 20\ns_add_u32 s27, s27, s28")
        e(f"s_add_u32 s28, s27, {hx(WS_X1S)}\ns_add_u32 s27, s27, {hx(WS_X1)}\ns_add_u32 s29, s27, {hx(16*32768)}\ns_add_u32 s30, s28, {hx(16*32768)}")
        e(f"v_lshlrev_b32 v183, 4, v0\nv_add_u32 v183, {L_HI + 512}, v183\nv_lshlrev_b32 v184, 5, v0\nv_add_u32 v184, {L_Z}, v184")
        e("v_mov_b32 v248, -1\nv_mov_b32 v249, -1\nv_mov_b32 v250, -1\nv_mov_b32 v251, -1")
        e("v_lshrrev_b32 v252, 3, v0\nv_lshlrev_b32 v252, 15, v252\nv_and_b32 v176, 7, v0\nv_lshl_add_u32 v252, v176, 4, v252")
        e(f"s_lshl_b32 s31, s{S_D0}, 6\nv_lshlrev_b32 v236, 4, v0\nv_mov_b32 v199, 0")
        e(f"s_lshl_b32 s32, s{S_D0}, 5\ns_cmp_lg_u32 s{S_WV}, 0\ns_cselect_b32 s32, 0x7f000000, s32")
    def conv(self, fillers=None, pre_start=None, pre_bar=None, post_bar=None):
        e = self.e
        ACC = 4
        FA = [40, 104]; FB = [72, 136]
        if pre_start: pre_start()
        e("s_waitcnt lgkmcnt(0)")
        e("s_barrier")
        self.stamp(5)
        p1 = self.lab("cp1"); jn = self.lab("cj")
        e(f"s_cmp_lg_u32 s{S_PAR}, 0")
        e(f"s_cbranch_scc1 {p1}")
        for par in range(2):
            for c in range(4):
                r = ACC + 4 * (4*par + c)
                e(f"ds_read_b128 v[{r}:{r+3}], v173 offset:{1024*c}")
            for r in range(16): e(f"v_mov_b32 v{ACC + 16*(1-par) + r}, 0")
            if par == 0:
                e(f"s_branch {jn}"); self.label(p1)
        self.label(jn)
        def loads(it):
            s = it & 1; L = []; o = 16 * (3 - it)
            tk = {}
            for k in range(8):
                tk[("B", k)] = self.tok(f"ds_read_b128 {vr(FB[s]+4*k,4)}, v172 offset:{512*k + 64*(3-it)}")
                b = 168 + (k >> 1); oo = o + (0 if k & 1 else 128)
                self.tok(f"ds_read2_b32 {vr(FA[s]+4*k,2)}, v{b} offset0:{oo} offset1:{oo+1}")
                tk[("A", k)] = self.tok(f"ds_read2_b32 {vr(FA[s]+4*k+2,2)}, v{b} offset0:{oo+2} offset1:{oo+3}")
            return tk
        pre = self.p.take()
        tks = [None] * 4
        tks[0] = loads(0)
        main = self.p.take()
        carry = []
        for it in range(4):
            nxt = []
            if it < 3:
                tks[it+1] = loads(it+1); nxt = self.p.take()
            s = it & 1
            order = sorted([(u, v) for u in range(8) for v in range(8 - u)], key=lambda t: (max(t), t[0]))
            seen = set(); k = 0
            for (u, v) in order:
                need = [t for t in (("A", u), ("B", v)) if t not in seen]
                if need:
                    self.wait(*[tks[it][t] for t in need]); seen |= set(need)
                cb = u + v
                e(f"v_mfma_f32_16x16x32_bf16 {vr(ACC+4*cb,4)}, {vr(FA[s]+4*u,4)}, {vr(FB[s]+4*v,4)}, {vr(ACC+4*cb,4)}")
                if nxt and ((it > 0 and (k % 3 != 2 or len(nxt) >= 35 - k)) or (it == 0 and k >= 10)):
                    self.p.put([nxt.pop(0)])
                k += 1
            self.p.put(nxt)
            seg = self.p.take()
            if it == 0: seg = main + seg; main = []
            carry = carry + (fillers.get(it, []) if fillers else [])
            seg, carry = merge(seg, carry, 8, pace=self.cfg["cpace"])
            if it in self.cfg.get('cflush', ()): seg += carry; carry = []
            main += seg
        self.p.put(pre + main)
        self.conv_left = carry
        self.stamp(6)
        if pre_bar: pre_bar()
        p1 = self.lab("ep1"); jn = self.lab("ej")
        e(f"s_cmp_lg_u32 s{S_PAR}, 0")
        e(f"s_cbranch_scc1 {p1}")
        for par in range(2):
            e("s_nop 7")
            for c in range(4):
                r = ACC + 4 * (4*(1-par) + c)
                e(f"ds_write_b128 v180, {vr(r,4)} offset:{1024*c}")
            e("s_waitcnt lgkmcnt(0)")
            e("s_barrier")
            for c in range(4): e(f"ds_read_b128 {vr(40+4*c,4)}, v181 offset:{1024*c}")
            for c in range(4):
                e(f"s_waitcnt lgkmcnt({3-c})")
                r = ACC + 4 * (4*par + c)
                e(f"v_pk_add_f32 {vr(40+4*c,2)}, {vr(40+4*c,2)}, {vr(r,2)}")
                e(f"v_pk_add_f32 {vr(42+4*c,2)}, {vr(42+4*c,2)}, {vr(r+2,2)}")
            if par == 0:
                e(f"s_branch {jn}"); self.label(p1)
        self.label(jn)
        sB = S_M + 8
        e(f"s_cmp_eq_u32 s{S_CH}, 0")
        e(f"s_cselect_b32 s{S_T0}, s{sB}, s{sB+1}")
        e(f"v_mov_b32 v38, s{S_T0}\nv_mov_b32 v39, s{S_T0}")
        if post_bar: post_bar()
        for pr in range(2):
            a = 40 + 8*pr
            d = 60 + 8*pr
            for h in range(4): e(f"v_pk_mul_f32 {vr(76+2*h,2)}, {vr(a+2*h,2)}, v[38:39]")
            for h in range(4): e(f"v_cvt_pk_bf16_f32 v{d+h}, v{76+2*h}, v{77+2*h}")
            for h in range(4): e(f"v_cvt_pk_bf16_f32 v{d+4+h}, v{a+2*h}, v{a+2*h+1}")
            e(f"v_permlane16_swap_b32 v{d}, v{d+2}\nv_permlane16_swap_b32 v{d+1}, v{d+3}")
            e(f"buffer_store_dwordx4 {vr(d,4)}, v182, s[{S_WS}:{S_WS+3}], s{28 + 2*pr} offen sc1")
            e(f"v_permlane16_swap_b32 v{d+4}, v{d+6}\nv_permlane16_swap_b32 v{d+5}, v{d+7}")
            self.x1st = self.tok(f"buffer_store_dwordx4 {vr(d+4,4)}, v182, s[{S_WS}:{S_WS+3}], s{27 + 2*pr} offen sc1")
        self.stamp(7)
    def g1_map(self):
        e = self.e
        if self.cfg["map8"]:
            e(f"s_lshr_b32 s{S_T0}, s{S_XCD}, 1\ns_mul_i32 s{S_T0}, s{S_T0}, 28\ns_add_u32 s{S_T0}, s{S_T0}, s{S_IDX}")
            e(f"s_and_b32 s{S_G1}, s{S_XCD}, 1\ns_lshl_b32 s{S_G1}, s{S_G1}, 3\ns_and_b32 s{S_G2}, s{S_T0}, 7\ns_add_u32 s{S_G1}, s{S_G1}, s{S_G2}")
            e(f"s_lshr_b32 s{S_G2}, s{S_T0}, 3")
        else:
            e(f"s_lshr_b32 s{S_G1}, s{S_XCD}, 1\ns_lshl_b32 s{S_G1}, s{S_G1}, 2")
            e(f"s_and_b32 s{S_T0}, s{S_IDX}, 3\ns_add_u32 s{S_G1}, s{S_G1}, s{S_T0}")
            e(f"s_and_b32 s{S_G2}, s{S_XCD}, 1\ns_mul_i32 s{S_G2}, s{S_G2}, 7")
            e(f"s_lshr_b32 s{S_T0}, s{S_IDX}, 2\ns_add_u32 s{S_G2}, s{S_G2}, s{S_T0}")
        e(f"s_lshl_b32 s15, s{S_XCD}, 2\ns_add_u32 s15, s15, s{S_IDX}\ns_sub_u32 s15, s15, 28")
        e(f"s_lshr_b32 s14, s15, 1\ns_and_b32 s13, s15, 1\ns_cmp_ge_u32 s{S_IDX}, 28")
        e(f"s_cselect_b32 s{S_G2}, s14, s{S_G2}\ns_cselect_b32 s{S_G1}, 0, s{S_G1}\ns_cselect_b32 s{S_G3}, s13, 0\ns_cselect_b32 s15, s15, 0")
        e(f"s_cmp_ge_u32 s15, 28\ns_cselect_b32 s10, 0, {hx(1835008)}\ns_mov_b32 s11, 0x20000")
        e(f"s_lshl_b32 s{S_G2}, s{S_G2}, 7")
        e(f"s_lshl_b32 s{S_T0}, s{S_WV}, 5\ns_add_u32 s{S_G2}, s{S_G2}, s{S_T0}")
    AX = 176
    BX = 184
    def g1_fold(self, g, acc):
        for t in range(2):
            self.e(f"v_mfma_f32_32x32x16_bf16 {vr(acc+16*t,16)}, {vr(self.AX+4*t,4)}, {vr(self.BX+4*g,4)}, {vr(acc+16*t,16)}")
    def g1_epilogue(self, g, acc, stat, split=False):
        e = self.e
        save = self.p.take()
        T = 148
        rG, kD = stat, stat+1
        for t in range(2):
            for half in range(2):
                regs = [4*half + j for j in range(4)]
                gq = [T + 8*half + j for j in range(4)]; q = [T + 8*half + 4 + j for j in range(4)]
                for j, r in enumerate(regs): e(f"v_mul_f32 v{gq[j]}, v{rG}, v{acc+16*t+r}")
                for j in range(4): e(f"v_fma_f32 v{q[j]}, -v{gq[j]}, v{gq[j]}, s{S_T3}")
                for j in range(4): e(f"v_mul_f32 v{q[j]}, v{gq[j]}, v{q[j]}")
                for j, r in enumerate(regs):
                    e(f"v_exp_f32 v{q[j]}, v{q[j]}")
                    e(f"v_mul_f32 v{gq[j]}, v{gq[j]}, v{acc+16*t+8+r}")
                for j in range(4): e(f"v_fma_f32 v{q[j]}, v{q[j]}, v{kD}, v{kD}")
                for j in range(4): e(f"v_rcp_f32 v{q[j]}, v{q[j]}")
                for j in range(4): e(f"v_mul_f32 v{gq[j]}, v{gq[j]}, v{q[j]}")
                e(f"v_cvt_pk_bf16_f32 v{172+2*half}, v{gq[0]}, v{gq[1]}")
                e(f"v_cvt_pk_bf16_f32 v{173+2*half}, v{gq[2]}, v{gq[3]}")
            e(f"s_add_u32 s101, s{S_T2}, {g*112*1024 + t*1024}")
            tk_ = self.tok(f"buffer_store_dwordx4 v[172:175], v147, s[{S_WS}:{S_WS+3}], s101 offen sc1")
        self.htok[g] = tk_
        out = self.p.take(); self.p.put(save)
        if split: return out[:len(out)//2], out[len(out)//2:]
        return out
    def g2_map(self):
        e = self.e
        e(f"s_lshl_b32 s{S_G1}, s{S_XCD}, 1\ns_bfe_u32 s44, s{S_IDX}, 0x10004\ns_add_u32 s{S_G1}, s{S_G1}, s44")
        e(f"s_lshl_b32 s{S_G1}, s{S_G1}, 2")
        e(f"s_bfe_u32 s44, s{S_IDX}, 0x10003")
        e(f"s_sub_u32 s{S_G2}, s{S_G1}, s44\ns_add_u32 s{S_G2}, s{S_G2}, 3")
        e(f"s_add_u32 s{S_G1}, s{S_G1}, s44")
        e(f"s_and_b32 s{S_G3}, s{S_IDX}, 7")
    XT = lambda self, g: (3 - g) * 32768
    S_HB = 81
    def x1s_issue(self, g):
        t = None
        for j in range(8):
            if j % 4 == 0:
                self.e(f"s_add_u32 m0, s{S_T1}, {self.XT(g) + j*1024}")
                self.e(f"s_add_u32 s13, s{S_T0}, {g*32768 + j*1024}")
            t = self.tok(f"buffer_load_dwordx4 v147, s[{S_WS}:{S_WS+3}], s13 offen offset:{(j%4)*1024} sc1 lds")
        return t
    def x1s_check(self, g, T, explicit=False):
        e = self.e
        ad = 146 if self.XT(g) < 65536 else 143
        tk = [self.tok(f"ds_read_b32 v{T+j}, v{ad} offset:{self.XT(g) % 65536 + j*1024}") for j in range(8)]
        if explicit: e("s_waitcnt lgkmcnt(0)")
        else: self.wait(tk[7])
        e(f"v_max3_u32 v{T}, v{T}, v{T+1}, v{T+2}\nv_max3_u32 v{T+3}, v{T+3}, v{T+4}, v{T+5}\nv_max3_u32 v{T}, v{T}, v{T+6}, v{T+7}\nv_max_u32 v{T}, v{T}, v{T+3}")
        e(f"v_cmp_eq_u32 vcc, -1, v{T}")
    def x1s_guard(self, g, T, tok):
        e = self.e
        rt = self.lab("xr"); lp = self.lab("xl"); bk = self.lab("xb")
        self.wait(tok)
        self.x1s_check(g, T)
        e(f"s_cbranch_vccnz {rt}")
        self.label(bk)
        def rout():
            self.label(rt)
            e(f"s_mov_b32 s{S_SPIN}, {self.cfg['spin']}")
            if self.cfg.get("stamps"): e(f"v_writelane_b32 v255, 1, {46 + g}")
            self.label(lp)
            self.x1s_issue(g)
            e("s_waitcnt vmcnt(0) lgkmcnt(0)")
            self.x1s_check(g, T, explicit=True)
            e("s_nop 1")
            e(f"s_cbranch_vccz {bk}")
            self.spin_check(lp)
            e(f"s_branch {bk}")
        o, _ = self.capture(rout); self.ool += o
    def modf_issue(self):
        t = None
        for v in range(2):
            for kq in range(4):
                self.e(f"s_mov_b32 s47, {WS_MODP + (kq*3072 + (3+v)*512)*8}")
                t = self.tok(f"buffer_load_dwordx4 {vr(200 + 16*v + 4*kq, 4)}, v236, s[{S_WS}:{S_WS+3}], s47 offen sc1")
        return t
    def xfill(self):
        e = self.e; t = None
        for base in (WS_X1S, WS_X1S + 32*32768, WS_X1, WS_X1 + 32*32768):
            e(f"s_add_u32 s101, s31, {hx(base)}")
            t = self.tok(f"buffer_store_dwordx4 v[248:251], v252, s[{S_WS}:{S_WS+3}], s101 offen sc1")
        return t
    def hfill(self):
        e = self.e
        e("v_mov_b32 v248, -1\nv_mov_b32 v249, -1\nv_mov_b32 v250, -1\nv_mov_b32 v251, -1")
        for g in (2, 3):
            e(f"s_add_u32 s101, s{self.S_HB}, {g*112*1024}")
            self.tok(f"buffer_store_dwordx4 v[248:251], v147, s[{S_WS}:{S_WS+3}], s101 offen sc1")
            self.tok(f"buffer_store_dwordx4 v[248:251], v147, s[{S_WS}:{S_WS+3}], s101 offen offset:1024 sc1")
    S_HF = 35
    def gate_pub(self, base=WS_FL1):
        self.e(f"s_add_u32 s101, s32, {base}")
        self.e(f"buffer_store_dword v253, v199, s[{S_WS}:{S_WS+3}], s101 offen sc1")
    S_FB = 3
    def hbase(self):
        e = self.e
        e(f"s_mul_i32 s{self.S_HB}, s{S_G1}, {4*112*1024}")
        e(f"s_lshl_b32 s101, s{S_G2}, 6")
        e(f"s_add_u32 s{self.S_HB}, s{self.S_HB}, s101")
        e(f"s_add_u32 s{self.S_HB}, s{self.S_HB}, {hx(WS_H)}")
        e(f"s_mul_i32 s{self.S_FB}, s{S_G1}, {4*56*64}")
        e(f"s_lshl_b32 s101, s{S_G2}, 1")
        e(f"s_add_u32 s{self.S_FB}, s{self.S_FB}, s101")
        e(f"s_add_u32 s{self.S_FB}, s{self.S_FB}, {WS_FL2}")
        e(f"s_cmp_ge_u32 s{S_IDX}, 28")
        e(f"s_cselect_b32 s{self.S_FB}, 0x7f000000, s{self.S_FB}")
    def hflag(self, g, vz, vt):
        self.wait(self.htok[g])
        self.e(f"s_add_u32 s101, s{self.S_FB}, {g*56*64}")
        self.e(f"buffer_store_dword v{vt}, v{vz}, s[{S_WS}:{S_WS+3}], s101 offen sc1")
    def capture(self, fn):
        keep = self.p.take(); r = fn(); out = self.p.take(); self.p.put(keep); return out, r
    def cap(self, fn): return self.capture(fn)[0]
    def guard(self, name, chk, reissue, cond="vccnz"):
        e = self.e
        rt = self.lab(name + "r"); lp = self.lab(name + "l"); bk = self.lab(name + "b")
        chk(False)
        e(f"s_cbranch_vccnz {rt}")
        self.label(bk)
        def rout():
            self.label(rt); e(f"s_mov_b32 s{S_SPIN}, {self.cfg['spin']}")
            if self.cfg.get("stamps"): e(f"v_writelane_b32 v255, 1, {52 + ['mf', 'gt', 'st', 'f0', 'lt', 'g2', 'fa', 'hc', 'rs'].index(name)}")
            self.label(lp)
            reissue(); chk(True); e("s_nop 1")
            e(f"s_cbranch_vccz {bk}"); self.spin_check(lp); e(f"s_branch {bk}")
        self.ool += self.cap(rout)

    def p0_issue(self):
        e = self.e; T = self.T = {}
        e(f"s_mov_b32 s{S_X}, s{P_X}\ns_mov_b32 s{S_X+1}, s{P_X+1}")
        self.tok(f"buffer_load_dwordx4 v[10:13], v9, s[{S_X}:{S_X+3}], s{S_T0} offen")
        T["xr"] = self.tok(f"buffer_load_dwordx4 v[14:17], v9, s[{S_X}:{S_X+3}], s{S_T0} offen offset:1024")
        self.tok(f"buffer_load_dwordx4 v3, s[{S_X}:{S_X+3}], s{S_T3} offen lds")
        T["xt"] = self.tok(f"buffer_load_dwordx4 v6, s[{S_X}:{S_X+3}], s{S_T3} offen offset:1024 lds")
        for i in range(6): T["ssm"] = self.tok(f"global_load_ushort v{18+i}, v8, s[{P_ARE+2*i}:{P_ARE+2*i+1}]")
        e(f"s_load_dword s{S_E}, s[{P_WS}:{P_WS+1}], 0")
        e(f"s_lshl_b32 s{S_T0}, s{S_D0}, 1")
        e(f"s_load_dword s{S_LDT}, s[{P_LDT}:{P_LDT+1}], s{S_T0}")
        e(f"s_load_dword s{S_DSK}, s[{P_DSK}:{P_DSK+1}], s{S_T0}")
        e(f"s_mov_b32 s{S_WM}, s{P_WM}\ns_mov_b32 s{S_WM+1}, s{P_WM+1}")
        e(f"s_cmp_ge_u32 s{S_M+1}, {24 if self.cfg['split'] else 99}\ns_cselect_b32 s{S_M+4}, 1, 0\ns_cmp_ge_u32 s2, 192\ns_cselect_b32 s{S_M+4}, 2, s{S_M+4}")
        T["c"] = self.tok(f"global_load_dword v186, v7, s[{P_C}:{P_C+1}]")
        self.wm_issue(0)
        e(f"s_bitcmp1_b32 s{S_WV}, 0\ns_cselect_b32 s8, s{P_WU}, s{P_WG}\ns_cselect_b32 s9, s{P_WU+1}, s{P_WG+1}")
        if self.cfg["touch"] == 4: self.touch_w()
    def wm_issue(self, which):
        e = self.e
        sk = self.lab("wm")
        e(f"s_cmp_lg_u32 s{S_M+4}, {which}\ns_cbranch_scc1 {sk}")
        e(f"s_lshl_b32 s{S_T1}, s{S_WV}, 12")
        for j in range(4):
            e(f"s_add_u32 m0, s{S_T1}, {L_MOD + 1024*j}")
            e(f"s_add_u32 s101, s{S_M+2}, {j*8*6144}")
            self.T["wm%d" % which] = self.tok(f"buffer_load_dwordx4 v33, s[{S_WM}:{S_WM+3}], s101 offen lds")
        jn = self.lab("wmj")
        self.label(jn)
        def alt():
            self.label(sk)
            for j in range(4): e(f"global_load_dword v32, v9, s[{P_C}:{P_C+1}]")
            e(f"s_branch {jn}")
        self.ool += self.cap(alt)

    def p0_stats(self):
        e = self.e
        e("v_mov_b32 v3, 0x3f803f80")
        self.wait(self.T["xr"])
        for i in range(4):
            c = lambda r: (f"v{r}" if i else "0")
            e(f"v_dot2_f32_bf16 v4, v{10+i}, v3, {c(4)}")
            e(f"v_dot2_f32_bf16 v5, v{10+i}, v{10+i}, {c(5)}")
            e(f"v_dot2_f32_bf16 v6, v{14+i}, v3, {c(6)}")
            e(f"v_dot2_f32_bf16 v7, v{14+i}, v{14+i}, {c(7)}")
        self.reduce16([4, 5, 6, 7])
        e("v_permlane16_swap_b32 v4, v5\nv_permlane16_swap_b32 v6, v7")
        e("v_add_f32 v4, v4, v5\nv_add_f32 v6, v6, v7")
        e("v_permlane32_swap_b32 v4, v6")
        e("v_add_f32 v4, v4, v6")
        e("v_mov_b32 v5, v4")
        e("v_permlane16_swap_b32 v4, v5")
        self.stat_finish(4, 5, 6, 7)
        e(f"v_mov_b32 v5, s{S_TAG}")
        e("v_lshrrev_b32 v6, 2, v1")
        e(f"s_lshr_b32 s{S_T0}, s2, 6\ns_lshl_b32 s{S_T0}, s{S_T0}, 2\ns_add_u32 s{S_T0}, s{S_T0}, s{S_WV}\ns_lshl_b32 s{S_T0}, s{S_T0}, 10")
        e(f"s_and_b32 s{S_T1}, s2, 63\ns_lshl_b32 s{S_T1}, s{S_T1}, 4\ns_add_u32 s{S_T0}, s{S_T0}, s{S_T1}\ns_add_u32 s{S_T0}, s{S_T0}, {WS_ST1}")
        e("s_mov_b32 exec_lo, 1\ns_mov_b32 exec_hi, 1")
        e(f"buffer_store_dwordx2 v[4:5], v6, s[{S_WS}:{S_WS+3}], s{S_T0} offen sc1")
        e("s_mov_b64 exec, -1")

    def p0_xb(self):
        e = self.e
        e("v_lshrrev_b32 v187, 2, v1\nv_lshlrev_b32 v187, 7, v187\nv_and_b32 v4, 3, v1\nv_lshl_add_u32 v187, v4, 3, v187")
        e("v_lshrrev_b32 v5, 4, v1\nv_lshlrev_b32 v3, 11, v5")
        e("v_bfe_u32 v4, v1, 1, 1\nv_lshl_add_u32 v3, v4, 10, v3")
        e("v_bfe_u32 v4, v1, 2, 2\nv_lshl_add_u32 v3, v4, 7, v3")
        e("v_and_b32 v4, 1, v1\nv_lshl_add_u32 v3, v4, 3, v3")
        e(f"s_lshl_b32 s{S_T1}, s{S_WV}, 5\ns_add_u32 s{S_T1}, s{S_T1}, {L_XT}\nv_add_u32 v188, s{S_T1}, v3")
        e("v_lshlrev_b32 v4, 10, v4\nv_lshl_add_u32 v4, v5, 5, v4")
        e("v_bfe_u32 v5, v1, 3, 1\nv_lshl_add_u32 v4, v5, 4, v4")
        e("v_bfe_u32 v5, v1, 1, 2\nv_lshl_add_u32 v189, v5, 14, v4")
        e(f"s_lshl_b32 s{S_T0}, s{S_XCD}, 19\ns_lshl_b32 s{S_T1}, s{S_WV}, 17\ns_add_u32 s{S_T0}, s{S_T0}, s{S_T1}")
        e(f"s_lshr_b32 s{S_T1}, s{S_IDX}, 3\ns_lshl_b32 s{S_T1}, s{S_T1}, 12\ns_add_u32 s{S_T0}, s{S_T0}, s{S_T1}")
        e(f"s_and_b32 s{S_T1}, s{S_IDX}, 7\ns_lshl_b32 s{S_T1}, s{S_T1}, 7\ns_add_u32 s{S_T0}, s{S_T0}, s{S_T1}\ns_add_u32 s46, s{S_T0}, {hx(WS_XB)}")
        e(f"s_add_u32 s47, s46, 0x10000")
    def p0_xb2(self):
        e = self.e
        for i in range(4): e(f"v_mov_b32 v{39+4*i}, s{S_TAG}")
        self.wait(self.T["xt"])
        e("s_barrier")
        tk = [self.tok(f"ds_read_b64_tr_b16 v[{36+4*k}:{37+4*k}], v188 offset:{512*(k&1) + 16*(k>>1)}") for k in range(4)]
        for k in range(4):
            self.wait(tk[k])
            e(f"v_mov_b32 v{38+4*k}, v{37+4*k}\nv_mov_b32 v{37+4*k}, s{S_TAG}")
            e(f"buffer_store_dwordx4 v[{36+4*k}:{39+4*k}], v189, s[{S_WS}:{S_WS+3}], s{46 + (k>>1)} offen offset:{2048*(k&1)} sc1")

    def p0_mod(self, which, nyoung, base=52, tokname=None):
        e = self.e
        skip = self.lab("nomod2")
        e(f"s_cmp_lg_u32 s{S_M+4}, {which}\ns_cbranch_scc1 {skip}")
        e("v_lshlrev_b32 v56, 16, v186\nv_and_b32 v57, 0xffff0000, v186")
        e(f"v_mul_f32 v58, {fl(-LOG2E)}, v56\nv_mul_f32 v59, {fl(-LOG2E)}, v57")
        e("v_exp_f32 v58, v58\nv_exp_f32 v59, v59")
        e("v_add_f32 v58, 1.0, v58\nv_add_f32 v59, 1.0, v59")
        e("v_rcp_f32 v58, v58\nv_rcp_f32 v59, v59")
        e("v_mul_f32 v56, v56, v58\nv_mul_f32 v57, v57, v59")
        e("v_cvt_pk_bf16_f32 v56, v56, v57")
        e(f"s_lshl_b32 s44, s{S_WV}, 8\ns_add_u32 s44, s44, {L_MOD + 16384}")
        e(f"v_lshl_add_u32 v57, v1, 2, s44")
        e("ds_write_b32 v57, v56")
        e("v_lshrrev_b32 v58, 4, v1")
        e(f"v_lshl_add_u32 v57, v58, 4, s44")
        e("v_lshl_add_u32 v59, v58, 9, v187")
        e(f"s_lshl_b32 s45, s{S_WV}, 5\ns_add_u32 s45, s45, {L_MOD}")
        e(f"v_add_u32 v59, s45, v59")
        self.p.wait_nt(self.T[tokname or "wm%d" % which])
        e("s_waitcnt lgkmcnt(0)\ns_barrier")
        for ks in range(4):
            e(f"ds_read_b128 v[{60+8*ks}:{63+8*ks}], v57 offset:{64*ks}")
            e(f"ds_read_b64_tr_b16 v[{64+8*ks}:{65+8*ks}], v59 offset:{4096*ks}")
            e(f"ds_read_b64_tr_b16 v[{66+8*ks}:{67+8*ks}], v59 offset:{4096*ks+512}")
        e(f"s_mul_i32 s44, s{S_M}, {3072*8}\ns_lshl_b32 s45, s{S_M+1}, 9\ns_add_u32 s44, s44, s45")
        e(f"s_lshl_b32 s45, s{S_WV}, 7\ns_add_u32 s44, s44, s45\ns_add_u32 s44, s44, {WS_MODP}")
        e("v_lshlrev_b32 v59, 3, v1")
        for ks in range(4):
            e(f"s_waitcnt lgkmcnt({9-3*ks})")
            e(f"v_mfma_f32_16x16x32_bf16 v[92:95], v[{60+8*ks}:{63+8*ks}], v[{64+8*ks}:{67+8*ks}], {'v[92:95]' if ks else '0'}")
        e("s_barrier")
        e(f"v_mov_b32 v93, s{S_TAG}")
        e("s_mov_b64 exec, 0xffff")
        self.p.nc(f"buffer_store_dwordx2 v[92:93], v59, s[{S_WS}:{S_WS+3}], s44 offen sc1")
        e("s_mov_b64 exec, -1")
        self.label(skip)

    def touch_w(self):
        e = self.e
        e(f"s_lshr_b32 s{S_T0}, s{S_WV}, 1\ns_lshl_b32 s{S_T1}, s2, 1\ns_add_u32 s{S_T0}, s{S_T0}, s{S_T1}\ns_mul_i32 s{S_T0}, s{S_T0}, {28*128}")
        e(f"v_min_u32 v3, 27, v1\nv_lshlrev_b32 v3, 7, v3\nv_add_u32 v3, s{S_T0}, v3")
        e("global_load_dword v198, v3, s[8:9]")
    def touch_wd(self, mode):
        e = self.e
        if mode == 1:
            e(f"s_sub_u32 s{S_T0}, s2, 192\ns_lshl_b32 s{S_T0}, s{S_T0}, 2\ns_add_u32 s{S_T0}, s{S_T0}, s{S_WV}\ns_mul_i32 s{S_T0}, s{S_T0}, {56*128}")
            e(f"s_cmp_lt_u32 s2, 192\ns_cselect_b32 s{S_T0}, 0x7f000000, s{S_T0}")
            e("v_min_u32 v197, 55, v1\nv_lshlrev_b32 v197, 7, v197")
        else:
            e(f"s_lshl_b32 s{S_T0}, s2, 2\ns_add_u32 s{S_T0}, s{S_T0}, s{S_WV}\ns_mul_i32 s{S_T0}, s{S_T0}, {14*128}")
            e("v_min_u32 v197, 13, v1\nv_lshlrev_b32 v197, 7, v197")
        e(f"buffer_load_dword v198, v197, s[{S_WD}:{S_WD+3}], s{S_T0} offen")

    def touch_wdx(self):
        e = self.e
        e(f"s_lshl_b32 s47, s{S_IDX}, 2\ns_add_u32 s47, s47, s{S_WV}\ns_mul_i32 s47, s47, {112*128}")
        e("v_min_u32 v138, 55, v1\nv_lshlrev_b32 v138, 7, v138")
        e(f"buffer_load_dword v139, v138, s[{S_WD}:{S_WD+3}], s47 offen")
        e(f"s_add_u32 s47, s47, {56*128}")
        e(f"buffer_load_dword v139, v138, s[{S_WD}:{S_WD+3}], s47 offen")

    def w_setup(self):
        e = self.e
        e("v_lshrrev_b32 v241, 4, v1\nv_mul_u32_u24 v240, 3584, v241")
        e(f"s_and_b32 s13, s{S_WV}, 1\nv_lshl_add_u32 v241, v241, 1, s13")
        e("v_bfe_u32 v242, v1, 1, 3\nv_xor_b32 v241, v241, v242\nv_lshl_add_u32 v240, v241, 5, v240")
        e("v_and_b32 v241, 1, v1\nv_lshl_add_u32 v240, v241, 4, v240")
        e(f"s_lshr_b32 s14, s{S_WV}, 1\ns_mul_i32 s15, s14, {8*3584}")
        e(f"s_and_b32 s101, s{S_G2}, 0xffffff80\ns_lshl_b32 s101, s101, 1\ns_add_u32 s15, s15, s101")
        e(f"v_add_u32 v240, s15, v240\nv_add_u32 v247, {4*3584 - 1024}, v240")
        e("s_lshl_b32 s12, s13, 12\ns_lshl_b32 s14, s14, 11\ns_add_u32 s12, s12, s14")
        e("v_bfe_u32 v241, v1, 4, 1\nv_bfe_u32 v242, v1, 2, 2")
        e("v_lshl_add_u32 v243, v242, 1, v241")
        e(f"s_lshl_b32 s13, s{S_WV}, 1\nv_xor_b32 v243, s13, v243\nv_lshlrev_b32 v243, 5, v243")
        e("v_lshl_add_u32 v243, v241, 12, v243\nv_lshl_add_u32 v243, v242, 8, v243")
        e("v_lshrrev_b32 v241, 5, v1\nv_lshl_add_u32 v243, v241, 11, v243")
        e("v_and_b32 v241, 1, v1\nv_lshl_add_u32 v243, v241, 4, v243")
        e("v_bfe_u32 v241, v1, 1, 1\nv_lshl_add_u32 v241, v241, 3, v243")
        e("v_xor_b32 v242, 32, v241")
        e("v_add_u32 v243, 0x10000, v241\nv_add_u32 v244, 0x10000, v242\nv_add_u32 v245, 0x20000, v241\nv_add_u32 v246, 0x20000, v242")
        self.wt = {}
    def w_rot(self):
        e = self.e
        e(f"s_and_b32 s26, s{S_G1}, {7 if self.cfg['rot'] else 0}\ns_mul_i32 s101, s{S_G3}, {16*16*3584}")
        for j in range(8): e(f"s_add_u32 s{18+j}, s26, {j}\ns_and_b32 s{18+j}, s{18+j}, 7\ns_mul_i32 s{18+j}, s{18+j}, {16*3584}\ns_add_u32 s{18+j}, s{18+j}, s101")
    def w_issue(self, ks):
        e = self.e
        if self.cfg.get('noch'):
            self.wt[ks] = None; e("s_nop 0\ns_nop 0\ns_nop 0\ns_nop 0"); return
        e(f"s_add_u32 m0, s12, {wslot(ks)}\ns_add_u32 s14, s{18 + (ks & 7)}, {(ks >> 3)*8*16*3584}")
        self.tok("buffer_load_dwordx4 v240, s[8:11], s14 offen lds")
        self.wt[ks] = self.tok("buffer_load_dwordx4 v247, s[8:11], s14 offen offset:1024 lds")
    def w_read(self, ks):
        b = wslot(ks); t_ = None
        for t in range(2):
            for i in range(2):
                o = b + 1024*i
                t_ = self.tok(f"ds_read_b64_tr_b16 {ar((t*32+ks)*4+2*i,2)}, v{241 + 2*(o >> 16) + t} offset:{o & 0xffff}")
        return t_
    def w_issue_l(self, r):
        for ks in r: self.w_issue(ks)
    def w_chunks(self, r):
        out = []
        for ks in r:
            l = self.cap(lambda: self.w_issue(ks)); out += [l[:3], l[3:]]
        return out
    def w_read_l(self, r):
        t = None
        for ks in r: t = self.w_read(ks)
        return t

    U1 = 176; U2 = 208
    def modf_chk_only(self):
        e = self.e
        def chk(ex):
            for i in range(8):
                e(f"v_min3_u32 v232, v{201+4*i}, v{203+4*i}, {'v232' if i else 'v201'}\nv_max3_u32 v233, v{201+4*i}, v{203+4*i}, {'v233' if i else 'v201'}")
            e(f"v_xor_b32 v232, s{S_TAG}, v232\nv_xor_b32 v233, s{S_TAG}, v233\nv_or_b32 v232, v232, v233\nv_cmp_ne_u32 vcc, 0, v232")
        self.guard("mf", chk, lambda: (self.modf_issue(), e("s_waitcnt vmcnt(0)")))
    def gate_issue(self, base=WS_FL1):
        self.e(f"v_lshlrev_b32 v235, 6, v0\ns_mov_b32 s101, {base}")
        return self.tok(f"buffer_load_dword v234, v235, s[{S_WS}:{S_WS+3}], s101 offen sc1")
    def gate_check(self, tok):
        self.wait(tok)
        self.guard("gt", lambda ex: self.e(f"v_cmp_ne_u32 vcc, s{S_TAG}, v234"), lambda: (self.gate_issue(), self.e("s_waitcnt vmcnt(0)")))
    def u_addr(self, v, t):
        e = self.e
        e(f"v_bfe_u32 v{v}, v1, 4, 1\nv_mul_u32_u24 v{v}, {1792*16}, v{v}")
        e(f"v_bfe_u32 v{t}, v1, 2, 1\nv_lshl_add_u32 v{v}, v{t}, 7, v{v}")
        e(f"v_bfe_u32 v{t}, v1, 3, 1\nv_lshl_add_u32 v{v}, v{t}, 6, v{v}")
        e(f"v_and_b32 v{t}, 3, v1\nv_lshl_add_u32 v{v}, v{t}, 4, v{v}")
    def u_job(self):
        e = self.e
        self.modf_chk_only()
        for v in range(2):
            for c_ in (0, 2):
                b_ = 200 + 16*v + c_
                e(f"v_add_f32 v{b_}, v{b_}, v{b_+4}\nv_add_f32 v{b_+8}, v{b_+8}, v{b_+12}\nv_add_f32 v{b_}, v{b_}, v{b_+8}")
        e("v_cvt_pk_bf16_f32 v7, v200, v202\nv_cvt_pk_bf16_f32 v5, v216, v218")
        e("v_lshlrev_b32 v8, 16, v5\nv_and_b32 v9, 0xffff0000, v5\nv_add_f32 v8, 1.0, v8\nv_add_f32 v9, 1.0, v9\nv_cvt_pk_bf16_f32 v5, v8, v9")
        e(f"v_lshlrev_b32 v3, 2, v0\nv_add_u32 v3, {L_SS}, v3")
        e("ds_write2st64_b32 v3, v5, v7 offset0:0 offset1:4")
        e("v_and_b32 v2, 1, v1\nv_lshlrev_b32 v2, 10, v2\nv_lshrrev_b32 v4, 5, v1\nv_lshl_add_u32 v2, v4, 4, v2")
        e(f"s_lshl_b32 s101, s{S_G3}, 9\ns_add_u32 s101, s101, {L_SS}\nv_add_u32 v2, s101, v2")
        e("s_waitcnt vmcnt(4) lgkmcnt(0)\ns_barrier")
        for ks in range(self.cfg["nrec"], 16): self.w_read(ks)
        for ks in range(16): e(f"ds_read_b128 {vr(100+4*ks,4)}, v2 offset:{32*ks}")
        self.u_addr(40, 41)
        e(f"s_mul_i32 s101, s{S_G3}, {2*1792*16}\ns_lshl_b32 s44, s{S_G2}, 4\ns_add_u32 s101, s101, s44\ns_add_u32 s101, s101, {WS_U}")
        e("s_cmp_eq_u32 s10, 0\ns_cselect_b32 s101, 0x7f000000, s101")
        e("s_waitcnt lgkmcnt(0)")
        for ks in range(16):
            for t in range(2):
                acc = vr(4 + 16*t, 16)
                e(f"v_mfma_f32_32x32x16_bf16 {acc}, {vr(100+4*ks,4)}, {ar((t*32+ks)*4,4)}, {acc if ks else '0'}")
        for t in range(2):
            e(f"v_mov_b32 v{44+4*t}, v{4+16*t}\nv_mov_b32 v{45+4*t}, s{S_TAG}\nv_mov_b32 v{46+4*t}, v{5+16*t}\nv_mov_b32 v{47+4*t}, s{S_TAG}")
        e("s_mov_b32 exec_hi, 0")
        for t in range(2): e(f"buffer_store_dwordx4 {vr(44+4*t,4)}, v40, s[{S_WS}:{S_WS+3}], s101 offen offset:{256*t} sc1")
        e("s_mov_b32 exec_hi, -1")

    def shadow1(self):
        e = self.e; c = self.cfg; cap = self.cap
        nr = c["nrec"]; n1 = 13 + nr
        assert nr == 8
        self.w_read_l(range(nr, 13))
        e(f"s_lshl_b32 s{S_T1}, s{S_WV}, 13")
        e(f"s_lshl_b32 s33, s{S_G1}, 10\ns_add_u32 s33, s33, {WS_ST2}")
        e("v_lshlrev_b32 v147, 4, v1")
        e(f"v_add_u32 v146, s{S_T1}, v147\nv_add_u32 v143, 0x10000, v146")
        e(f"s_lshl_b32 s{S_T0}, s{S_G1}, 17\ns_add_u32 s{S_T0}, s{S_T0}, s{S_T1}\ns_add_u32 s{S_T0}, s{S_T0}, {hx(WS_X1S)}")
        self.wait(self.wt[n1-1])
        e("s_waitcnt lgkmcnt(0)\ns_barrier")
        self.stamp(8)
        r = self.w_read_l(range(13, n1))
        self.w_issue_l(range(n1, 26))
        tg = self.gtok or self.gate_issue()
        e("v_lshrrev_b32 v144, 5, v1\nv_lshlrev_b32 v144, 9, v144")
        e("v_bfe_u32 v145, v1, 2, 2\nv_lshl_add_u32 v144, v145, 6, v144")
        e("v_bfe_u32 v145, v1, 4, 1\nv_lshl_add_u32 v144, v145, 5, v144")
        e("v_and_b32 v145, 3, v1\nv_lshl_add_u32 v144, v145, 3, v144")
        e("v_add_u32 v144, 0x10000, v144")
        for j in range(8): e(f"s_add_u32 s101, s26, {j}\ns_and_b32 s101, s101, 7\nv_lshl_add_u32 v{BA[j]}, s101, 10, v144")
        e("v_and_b32 v145, 31, v1\nv_lshlrev_b32 v145, 3, v145")
        for r_ in range(4): e(f"v_mov_b32 v{self.BX+4*r_+2}, 0\nv_mov_b32 v{self.BX+4*r_+3}, 0")
        e(f"v_mov_b32 v{self.AX+2}, 0\nv_mov_b32 v{self.AX+3}, 0\nv_mov_b32 v{self.AX+6}, 0\nv_mov_b32 v{self.AX+7}, 0\nv_mov_b32 v252, 0")
        self.u_addr(138, 139)
        e(f"s_lshl_b32 s35, s{S_G2}, 4\ns_add_u32 s35, s35, {WS_U}\ns_add_u32 s34, s35, {2*1792*16}")
        self.wd_setup_s()
        self.wait(r)
        e("s_barrier")
        self.w_issue_l(range(26, 26 + c["wx"]))
        self.gate_check(tg)
        self.stamp(27)
        self.xt = {}
        self.xt[0] = self.x1s_issue(0)
        self.xt[1] = self.x1s_issue(1)
        self.w_issue_l(range(26 + c["wx"], 32))
        self.g2_setup()
        self.stamp(9)
        self.x1s_guard(0, 148, self.xt[0])
        e("s_waitcnt lgkmcnt(0)\ns_barrier")
        self.stamp(12)

    def stats2_job(self):
        e = self.e
        e(f"s_lshl_b32 s{S_T2}, s{S_XCD}, 2\ns_add_u32 s{S_T2}, s{S_T2}, s{S_IDX}\ns_sub_u32 s{S_T2}, s{S_T2}, 28")
        e(f"s_lshl_b32 s{S_T1}, s{S_WV}, 13")
        e(f"s_lshl_b32 s{S_T0}, s{S_T2}, 16\ns_add_u32 s{S_T0}, s{S_T0}, s{S_T1}\ns_add_u32 s{S_T0}, s{S_T0}, {hx(WS_X1)}")
        e("v_lshlrev_b32 v147, 4, v1\nv_lshlrev_b32 v146, 7, v1")
        e("v_lshrrev_b32 v144, 5, v1\nv_lshlrev_b32 v144, 9, v144")
        e("v_bfe_u32 v145, v1, 2, 2\nv_lshl_add_u32 v144, v145, 6, v144")
        e("v_bfe_u32 v145, v1, 4, 1\nv_lshl_add_u32 v144, v145, 5, v144")
        e("v_and_b32 v145, 3, v1\nv_lshl_add_u32 v144, v145, 3, v144")
        e(f"s_lshl_b32 s{S_T1}, s{S_WV}, 14\nv_add_u32 v144, s{S_T1}, v144")
        e("v_mov_b32 v5, 0x3f803f80")
        e("s_waitcnt vmcnt(0)\ns_barrier")
        self.gate_issue(); e("s_waitcnt vmcnt(0)")
        self.guard("g2", lambda ex: e(f"v_cmp_ne_u32 vcc, s{S_TAG}, v234"), lambda: (self.gate_issue(), e("s_waitcnt vmcnt(0)")))
        e(f"s_mov_b32 s{S_SPIN}, {self.cfg['spin']}")
        lp = self.lab("pj"); go = self.lab("pg"); ok = self.lab("pk")
        self.label(lp)
        e(f"s_add_u32 s101, s{S_T0}, 32768")
        e(f"buffer_load_dword v6, v146, s[{S_WS}:{S_WS+3}], s{S_T0} offen sc1")
        e(f"buffer_load_dword v7, v146, s[{S_WS}:{S_WS+3}], s101 offen offset:64 sc1")
        e("s_waitcnt vmcnt(0)\nv_max_u32 v6, v6, v7\nv_cmp_eq_u32 vcc, -1, v6\ns_nop 1")
        e(f"s_cbranch_vccz {go}")
        self.spin_check(lp)
        e(f"s_mov_b32 s{S_SPIN}, 1")
        self.label(go)
        for b in range(2):
            for j in range(8):
                e(f"s_add_u32 m0, s{S_T1}, {b*8192 + j*1024}\ns_add_u32 s101, s{S_T0}, {b*32768 + j*1024}")
                e(f"buffer_load_dwordx4 v147, s[{S_WS}:{S_WS+3}], s101 offen sc1 lds")
        for b in range(2):
            e(f"s_waitcnt vmcnt({8*(1-b)})")
            for j in range(16): e(f"ds_read_b64_tr_b16 {vr(40+2*j,2)}, v144 offset:{b*8192 + (j>>1)*1024 + (j&1)*256}")
            for j in range(32):
                if j % 8 == 0: e(f"s_waitcnt lgkmcnt({12 - j//2})")
                e(f"v_dot2_f32_bf16 v{8+2*b}, v{40+j}, v5, {'v%d' % (8+2*b) if j else '0'}")
                e(f"v_dot2_f32_bf16 v{9+2*b}, v{40+j}, v{40+j}, {'v%d' % (9+2*b) if j else '0'}")
        e("s_nop 2\nv_add_f32 v6, v9, v11\nv_cmp_u_f32 vcc, v6, v6\ns_nop 1")
        e(f"s_cbranch_vccz {ok}")
        self.spin_check(lp)
        self.label(ok)
        e("v_permlane32_swap_b32 v8, v10\nv_permlane32_swap_b32 v9, v11")
        e("v_add_f32 v8, v8, v10\nv_add_f32 v9, v9, v11")
        e(f"s_lshl_b32 s101, s{S_WV}, 9\ns_add_u32 s101, s101, {L_SS}")
        e("v_lshlrev_b32 v12, 3, v1\nv_add_u32 v13, s101, v12")
        e("ds_write_b64 v13, v[8:9]")
        e(f"v_add_u32 v13, {L_SS}, v12")
        e("s_waitcnt lgkmcnt(0)\ns_barrier")
        sk = self.lab("s2w")
        e(f"s_cmp_lg_u32 s{S_WV}, 0\ns_cbranch_scc1 {sk}")
        for w in range(4): e(f"ds_read_b64 v[{14+2*w}:{15+2*w}], v13 offset:{512*w}")
        e("s_waitcnt lgkmcnt(0)")
        e("v_pk_add_f32 v[14:15], v[14:15], v[16:17]\nv_pk_add_f32 v[18:19], v[18:19], v[20:21]\nv_pk_add_f32 v[14:15], v[14:15], v[18:19]")
        self.stat_finish(14, 15, 16, 17)
        e(f"v_mov_b32 v15, s{S_TAG}")
        e(f"s_lshl_b32 s101, s{S_T2}, 9\ns_add_u32 s101, s101, {WS_ST2}")
        e(f"buffer_store_dwordx2 v[14:15], v12, s[{S_WS}:{S_WS+3}], s101 offen sc1")
        self.label(sk)
        e("s_barrier")

    def wd_setup_s(self):
        e = self.e
        e(f"s_mul_i32 s{S_LDT}, s{S_WV}, {448*1024}")
        e(f"s_and_b32 s101, s{S_IDX}, 7\ns_lshl_b32 s101, s101, 7\ns_add_u32 s{S_LDT}, s{S_LDT}, s101")
        e(f"s_lshr_b32 s36, s{S_IDX}, 3\ns_lshl_b32 s36, s36, 1\ns_add_u32 s36, s36, s{S_IDX}\ns_and_b32 s36, s36, {7 if self.cfg['rot2'] else 0}")
        e("s_cmp_eq_u32 s36, 7\ns_cselect_b32 s36, 0, s36\ns_lshl_b32 s36, s36, 10")
        for j in range(1, 7): e(f"s_add_u32 s{36+j}, s{35+j}, 1024\ns_cmp_eq_u32 s{36+j}, 7168\ns_cselect_b32 s{36+j}, 0, s{36+j}")
        for b_ in range(1, 4): e(f"s_add_u32 s{27+b_}, s{S_LDT}, {b_*7*16384}")
        e(f"s_mul_i32 s{S_M+8}, s{S_WV}, 6144\ns_add_u32 s{S_M+8}, s{S_M+8}, {L_SP}")
        e(f"s_lshl_b32 s{S_M+9}, s{S_WV}, 13")
    def wd_setup_v(self):
        e = self.e
        e("v_lshrrev_b32 v240, 3, v1")
        e("v_bfe_u32 v241, v1, 4, 1\nv_lshlrev_b32 v241, 2, v241")
        e("v_and_b32 v242, 7, v1\nv_xor_b32 v241, v241, v242")
        e("v_lshlrev_b32 v240, 10, v240\nv_lshl_add_u32 v240, v241, 4, v240")
        e(f"v_add_u32 v241, {8192 - 1024}, v240")
        e("v_lshrrev_b32 v242, 5, v1\nv_lshlrev_b32 v242, 10, v242")
        e("v_bfe_u32 v243, v1, 2, 2\nv_lshl_add_u32 v242, v243, 7, v242")
        e("v_bfe_u32 v243, v1, 3, 1\nv_lshl_add_u32 v242, v243, 6, v242")
        e("v_and_b32 v243, 1, v1\nv_lshl_add_u32 v242, v243, 5, v242")
        e("v_bfe_u32 v243, v1, 1, 1\nv_lshl_add_u32 v242, v243, 3, v242")
        e("v_bfe_u32 v243, v1, 4, 1\nv_lshl_add_u32 v242, v243, 4, v242")
        e(f"v_add_u32 v244, s{S_M+9}, v242\nv_xor_b32 v245, 64, v244\nv_add_u32 v246, 0x10000, v244\nv_add_u32 v247, 0x10000, v245")
        e(f"v_add_u32 v242, s{S_M+8}, v242\nv_xor_b32 v243, 64, v242")
    def wd_setup(self):
        self.wd_setup_s(); self.wd_setup_v()
    def wd_loc(self, ks):
        sl = ks % 15
        if sl < 3: return 0, 2048*sl
        q, r = divmod(sl - 3, 4)
        return 1, (3 - q)*32768 + 2048*r
    def wd_issue(self, ks):
        e = self.e
        r, o = self.wd_loc(ks)
        e(f"s_add_u32 m0, s{S_M+8+r}, {o}\ns_lshl4_add_u32 s15, s{36 + ks % 7}, s{S_LDT if ks < 7 else 27 + ks // 7}")
        self.tok(f"buffer_load_dwordx4 v240, s[{S_WD}:{S_WD+3}], s15 offen lds")
        self.wdt[ks] = self.tok(f"buffer_load_dwordx4 v241, s[{S_WD}:{S_WD+3}], s15 offen offset:1024 lds")
    def wd_chunks(self, r):
        out = []
        for ks in r:
            l = self.cap(lambda: self.wd_issue(ks)); out += [l[:3], l[3:]]
        return out
    def wd_read(self, ks):
        r, o = self.wd_loc(ks); t_ = None
        for t in range(2):
            for i in range(2):
                oo = o + 512*i
                reg = 242 if r == 0 else (244 if oo < 65536 else 246)
                t_ = self.tok(f"ds_read_b64_tr_b16 {ar((t*32+ks)*4+2*i,2)}, v{reg+t} offset:{oo & 0xffff}")
        return t_

    def gemm1f(self):
        e = self.e; c = self.cfg; cap = self.cap
        e(f"s_mov_b32 s{S_T2}, s{self.S_HB}\ns_mov_b32 s{S_T3}, {fl(-GC)}")
        ACC = [4, 36, 68]; BR = 100; R = 6
        seq = [(0, k) for k in range(16)] + [(1, k) for k in range(16)] + [(0, k) for k in range(16, 32)] + [(1, k) for k in range(16, 32)] + [(g, k) for g in (2, 3) for k in range(32)]
        def bread(n):
            g, ks = seq[n]; b = BR + 4*(n % R); base = self.XT(g); ad = BA[ks & 7]
            o = base % 65536 + (ks >> 3)*8192
            self.tok(f"ds_read_b64_tr_b16 {vr(b,2)}, v{ad} offset:{o}")
            t_ = self.tok(f"ds_read_b64_tr_b16 {vr(b+2,2)}, v{ad} offset:{o+256}")
            if g == 1 and ks >= 24: e(f"v_add_u32 v{ad}, 0xffff0000, v{ad}")
            return t_
        PF = R - 1
        tk = {}
        for n in range(PF): tk[n] = bread(n)
        ST = [128, 130, 132, 134]
        def st_issue():
            t = None
            for g in range(4):
                t = self.tok(f"buffer_load_dwordx2 {vr(ST[g],2)}, v145, s[{S_WS}:{S_WS+3}], s33 offen offset:{256*g} sc1")
            return t
        def st_chk(ex):
            e(f"v_min3_u32 v136, v{ST[0]+1}, v{ST[1]+1}, v{ST[2]+1}\nv_max3_u32 v137, v{ST[0]+1}, v{ST[1]+1}, v{ST[2]+1}")
            e(f"v_min_u32 v136, v136, v{ST[3]+1}\nv_max_u32 v137, v137, v{ST[3]+1}")
            e(f"v_xor_b32 v136, s{S_TAG}, v136\nv_xor_b32 v137, s{S_TAG}, v137\nv_or_b32 v136, v136, v137")
            e("v_cmp_ne_u32 vcc, 0, v136")
        def st_guard(tok):
            self.wait(tok)
            self.guard("st", st_chk, lambda: (st_issue(), e("s_waitcnt vmcnt(0)")))
            e("s_mov_b32 s44, 0x03020302\ns_mov_b32 s47, 0x01000100")
            for g in range(4):
                b = ST[g]; x = self.BX + 4*g
                e(f"v_lshlrev_b32 v{b+1}, 16, v{b}\nv_rcp_f32 v136, v{b+1}")
                e(f"v_perm_b32 v{x}, v{b}, v{b}, s44\nv_perm_b32 v{x+1}, v{b}, v{b}, s47")
                e(f"v_mul_f32 v{b}, {fl(GAM)}, v136\nv_xor_b32 v{x}, 0x80008000, v{x}\nv_mul_f32 v{b+1}, {fl(GAM)}, v{b+1}")
        UR = 200
        def u_issue():
            t_ = None
            for t in range(2):
                for h in range(2):
                    t_ = self.tok(f"buffer_load_dwordx4 {vr(UR+8*t+4*h,4)}, v138, s[{S_WS}:{S_WS+3}], s{35-h} offen offset:{256*t} sc1")
            return t_
        def u_chk(ex):
            for i in range(4): e(f"v_min3_u32 v136, v{UR+4*i+1}, v{UR+4*i+3}, {'v136' if i else 'v%d' % (UR+1)}\nv_max3_u32 v137, v{UR+4*i+1}, v{UR+4*i+3}, {'v137' if i else 'v%d' % (UR+1)}")
            e(f"v_xor_b32 v136, s{S_TAG}, v136\nv_xor_b32 v137, s{S_TAG}, v137\nv_or_b32 v136, v136, v137\nv_cmp_ne_u32 vcc, 0, v136")
        def u_guard(tok):
            self.wait(tok)
            self.guard("mf", u_chk, lambda: (u_issue(), e("s_waitcnt vmcnt(0)")))
            e("v_cmp_gt_u32 vcc, 32, v1")
            for t in range(2):
                for k in range(2):
                    u = UR + 8*t + 2*k; d = self.AX + 4*t + k
                    e(f"v_add_f32 v{u}, v{u}, v{u+4}\nv_cvt_pk_bf16_f32 v136, v{u}, v{u}\nv_and_b32 v136, 0xffff0000, v136\nv_sub_f32 v136, v{u}, v136")
                    e(f"v_cvt_pk_bf16_f32 v136, v{u}, v136\nv_cndmask_b32 v{d}, 0, v136, vcc")
        STN = [8, 16, 24, 32, 40, 48, 56, 64, 80, 96, 104, 112, 120]
        def steps(n0, n1):
            for n in range(n0, n1):
                g, ks = seq[n]
                if n in STN: self.stamp(30 + STN.index(n))
                self.wait(tk[n])
                for t in range(2):
                    acc = vr(ACC[g % 3] + 16*t, 16)
                    e(f"v_mfma_f32_32x32x16_bf16 {acc}, {ar((t*32+ks)*4,4)}, {vr(BR+4*(n%R),4)}, {acc if ks else '0'}")
                    if t == 0 and n + PF < 128: tk[n+PF] = bread(n+PF)
                    if g == 3 and t == 1 and ks in extra: extra[ks]()
                if ks == 31 and g: self.g1_fold(g, ACC[g % 3])
        extra = {}
        def seg(n0, n1, fill, flush=True, pace=None):
            m = cap(lambda: steps(n0, n1))
            m, left = merge(m, fill, 24, pace=pace or c["gpace"])
            self.p.put(m)
            if flush:
                if left: sys.stderr.write(f"flush {len(left)} at {n1}\n")
                self.p.put(left); return []
            return left
        xt = self.xt; hold = {}; self.wdt = {}; self.htok = {}
        xi = lambda g: cap(lambda: xt.__setitem__(g, self.x1s_issue(g)))
        bar = lambda: cap(lambda: e("s_barrier"))
        wdc = lambda r: sum(self.wd_chunks(r), [])
        seg(0, c["b1"] - 6, [])
        seg(c["b1"] - 6, c["b1"], cap(lambda: self.x1s_guard(1, 148, xt[1])))
        e("s_barrier")
        seg(c["b1"], c["b2"], cap(lambda: self.wait(self.w_read_l(range(21, 26)), self.wt[31])))
        e("s_barrier")
        seg(c["b2"], c["b3"], cap(lambda: hold.__setitem__("r", self.w_read_l(range(26, 32)))) + xi(2)[:6] + cap(lambda: self.wait(hold["r"])))
        e("s_barrier")
        xs = xi(2)[6:] + xi(3); wv_ = cap(self.wd_setup_v); xs2 = []
        for ins in xs:
            xs2.append(ins)
            if ins.text.startswith("buffer_"): xs2 += wv_[:2]; wv_ = wv_[2:]
        seg(c["b3"], c["sti"], xs2 + wv_)
        f = cap(lambda: (hold.__setitem__("u", u_issue()), hold.__setitem__("t", st_issue())))
        seg(c["sti"], c["stk"], f + wdc(range(3)), pace=1)
        self.stamp(13)
        f = cap(lambda: (u_guard(hold["u"]), st_guard(hold["t"])))
        pend = seg(c["stk"], 48, f + cap(self.hfill), flush=False)
        f = cap(lambda: (self.g1_fold(0, ACC[0]), self.x1s_guard(2, 148, xt[2]), self.x1s_guard(3, 148, xt[3])))
        seg(48, c["b4"], pend + f)
        e("s_barrier")
        pend = seg(c["b4"], 64, wdc(range(3, 7)) + self.g1_epilogue(0, ACC[0], ST[0]), flush=False)
        ep1 = self.g1_epilogue(1, ACC[1], ST[1]) + cap(lambda: self.hflag(0, 252, 253))
        pend = seg(64, 66, pend + ep1, flush=False)
        e("s_barrier")
        assert not any("lds" in i.text for i in pend if i.wait is None)
        n_ep1 = len(ep1)
        pend = seg(66, 96, wdc(range(7, 11)) + pend, flush=False)
        if len(pend) > n_ep1:
            self.p.put(pend[:len(pend) - n_ep1]); pend = pend[len(pend) - n_ep1:]
        ep2 = self.g1_epilogue(2, ACC[2], ST[2])
        pend = seg(96, 98, pend + ep2, flush=False); ep2 = []
        e("s_barrier")
        assert not any("lds" in i.text for i in pend if i.wait is None)
        self.rd = {}
        plan = {}
        for j in range(4): plan.setdefault(2 + j, []).append(("i", 11 + j))
        nrc = c["nrc"]
        for j in range(nrc):
            plan.setdefault(c["rc0"] + j*c["rcs"], []).append(("r", j))
            plan.setdefault(c["rc0"] + j*c["rcs"] + 2, []).append(("i", 15 + j))
        def mk(items):
            def f():
                for kind, k_ in items:
                    if kind == "f": hold["f0"] = self.fl_issue(0, 140, 144)
                    elif kind == "g":
                        self.wait(hold["f0"])
                        self.guard("f0", lambda ex: e(f"v_cmp_ne_u32 vcc, s{S_TAG}, v144"), lambda: (self.fl_issue(0, 140, 144), e("s_waitcnt vmcnt(0)")))
                    elif kind == "p": self.hflag(1, 252, 253)
                    elif kind == "r":
                        self.wait(self.wdt[k_]); self.rd[k_] = self.wd_read(k_)
                    else:
                        if k_ >= 15: self.wait(self.rd[k_ - 15])
                        self.wd_issue(k_)
            return f
        plan.setdefault(c["f0k"], []).append(("f", 0))
        plan.setdefault(c["p1k"], []).append(("p", 1))
        self.ht = {}
        for ks_, items in plan.items():
            assert ks_ < 32 and all(k_ < ks_ for kind, k_ in items if kind == "r")
            extra[ks_] = mk(items)
        pend = seg(98, 128, pend + ep2, flush=False)
        sys.stderr.write(f"tail leftover {len(pend)}\n")
        self.stamp(14)
        self.p.put(pend)
        e3 = self.g1_epilogue(3, ACC[0], ST[3])
        k_ = c["g0at"]
        self.p.put(e3[:k_])
        slow = self.lab("ts"); jn = self.lab("tj"); lp = self.lab("tl"); ok = self.lab("to")
        self.wait(hold["f0"])
        e(f"v_cmp_ne_u32 vcc, s{S_TAG}, v144\ns_cbranch_vccnz {slow}")
        hch = [cap(lambda: self.hl(0, ks, 147)) for ks in range(c["nh"])]
        self.p.put(weave(e3[k_:], hch, c["hw"]))
        self.label(jn)
        def rout():
            self.label(slow)
            if c.get("stamps"): e("v_writelane_b32 v255, 1, 55")
            self.p.put([Ins(i.text) for i in e3[k_:]])
            e(f"s_mov_b32 s{S_SPIN}, {c['spin']}")
            self.label(lp)
            self.fl_issue(0, 140, 144)
            e(f"s_waitcnt vmcnt(0)\nv_cmp_ne_u32 vcc, s{S_TAG}, v144\ns_nop 1\ns_cbranch_vccz {ok}")
            self.spin_check(lp)
            self.label(ok)
            for ch in hch: self.p.put([Ins(i.text) for i in ch])
            e(f"s_waitcnt vmcnt(0)\ns_branch {jn}")
        self.ool += cap(rout)
        self.stamp(15)

    HB = 68
    def HR(self, ks): return 68 + 4*ks if ks < 14 else (200 + 4*(ks-14) if ks < 24 else 124 + 4*(ks-24))
    def g2_setup(self):
        e = self.e
        self.g2_map()
        e(f"s_mul_i32 s{S_M+2}, s{S_WV}, {14*64}\ns_add_u32 s{S_M+2}, s{S_M+2}, {WS_FL2}")
        e(f"s_mul_i32 s{S_M+3}, s{S_G2}, {56*64}\ns_add_u32 s{S_M+3}, s{S_M+3}, s{S_M+2}")
        e(f"s_mul_i32 s44, s{S_G1}, {56*64}\ns_add_u32 s{S_M+2}, s{S_M+2}, s44")
        e(f"s_mul_i32 s{S_M+4}, s{S_G1}, {112*1024}\ns_mul_i32 s{S_M+5}, s{S_G2}, {112*1024}")
        e(f"s_mul_i32 s{S_M+6}, s{S_WV}, {28*1024}\ns_add_u32 s{S_M+6}, s{S_M+6}, {hx(WS_H)}")
        e(f"s_add_u32 s{S_M+4}, s{S_M+4}, s{S_M+6}\ns_add_u32 s{S_M+5}, s{S_M+5}, s{S_M+6}")
        for b_ in range(4): e(f"s_add_u32 s{18+b_}, s{S_M+4}, {b_*7168}\ns_add_u32 s{22+b_}, s{S_M+5}, {b_*7168}")
        e(f"s_lshr_b32 s45, s{S_WV}, 1\ns_sub_u32 s44, s{S_G2}, s{S_G1}\ns_mul_i32 s45, s45, s44\ns_add_u32 s45, s45, s{S_G1}")
        e(f"s_and_b32 s46, s{S_WV}, 1\ns_lshl_b32 s46, s46, 5\ns_lshl_b32 s44, s{S_G3}, 6\ns_add_u32 s46, s46, s44")
        e(f"s_lshl_b32 s{S_M}, s45, 15\ns_lshl_b32 s{S_M+1}, s46, 6\ns_add_u32 s{S_M}, s{S_M}, s{S_M+1}\ns_add_u32 s{S_M}, s{S_M}, {hx(WS_X1)}")
        e(f"s_lshl_b32 s{S_M+1}, s{S_WV}, 11\ns_add_u32 s{S_M+1}, s{S_M+1}, {L_XR2}")
        e("v_min_u32 v140, 13, v1\nv_lshlrev_b32 v140, 6, v140")
    def fl_issue(self, nt, va, vd): return self.tok(f"buffer_load_dword v{vd}, v{va}, s[{S_WS}:{S_WS+3}], s{S_M+2+nt} offen sc1")
    def hl(self, nt, ks, va):
        self.e(f"s_add_u32 s47, s{36 + ks % 7}, s{18 + 4*nt + ks // 7}")
        self.ht[(nt, ks)] = self.tok(f"buffer_load_dwordx4 {vr(self.HR(ks),4)}, v{va}, s[{S_WS}:{S_WS+3}], s47 offen sc1")
    def gemm2f(self):
        e = self.e; c = self.cfg; cap = self.cap
        HB = self.HB; NH = c["nh"]; nrc = c["nrc"]; rd = self.rd; ht = self.ht
        e(f"v_mov_b32 v182, v147\nv_min_u32 v183, 27, v1\nv_lshlrev_b32 v183, 10, v183")
        e("s_barrier")
        for ks in range(nrc, 15):
            self.wait(self.wdt[ks]); rd[ks] = self.wd_read(ks)
        self.stamp(16)
        order = []
        for ks in range(28):
            if ks >= 15 + nrc: order.append(("w", ks))
            if (0, ks) not in ht: order.append(("h", ks))
        NH = min([k for kind, k in order] + [27])
        def iss(it):
            if it[0] == "h": self.hl(0, it[1], 182)
            else:
                self.wait(rd[it[1] - 15]); self.wd_issue(it[1])
        def mm(nt, ks):
            for t in range(2):
                acc = vr(4 + 32*nt + 16*t, 16)
                e(f"v_mfma_f32_32x32x16_bf16 {acc}, {ar((t*32+ks)*4,4)}, {vr(self.HR(ks),4)}, {acc if ks else '0'}")
        probe = lambda: self.tok(f"buffer_load_dword v184, v183, s[{S_WS}:{S_WS+3}], s{S_M+5} offen sc1")
        rest = list(order)
        KC = c["kc"]; f1 = None
        def rdw(ks):
            if 15 <= ks < 28 and ks not in rd:
                self.wait(self.wdt[ks]); rd[ks] = self.wd_read(ks)
        for ks in range(KC):
            for _ in range(2):
                if rest: iss(rest.pop(0))
            if ks == c["kf"]: f1 = probe()
            rdw(ks + 1)
            self.wait(ht[(0, ks)], rd[ks]); mm(0, ks)
        assert not rest and f1 is not None
        slow = self.lab("g2slow"); jn = self.lab("g2j")
        self.wait(f1)
        e(f"v_cmp_eq_u32 vcc, -1, v184\ns_cbranch_vccnz {slow}")
        pendw = [ks for ks in range(15, 28) if ks not in rd]
        nx = 0
        for ks in range(KC, 28):
            for _ in range(c["nb"]):
                if nx < ks: self.hl(1, nx, 182); nx += 1
            rdw(ks + 1)
            self.wait(ht[(0, ks)], rd[ks]); mm(0, ks)
        while nx < 28: self.hl(1, nx, 182); nx += 1
        self.label(jn)
        keep = dict(ht)
        def rout():
            lp = self.lab("g2l"); ok = self.lab("g2ok")
            self.label(slow)
            e("s_waitcnt vmcnt(0)")
            for ks in pendw: self.wd_read(ks)
            probe()
            e("s_waitcnt lgkmcnt(0)")
            for ks in range(KC, 28): mm(0, ks)
            e(f"s_mov_b32 s{S_SPIN}, {self.cfg['spin']}")
            self.label(lp)
            e(f"s_waitcnt vmcnt(0)\nv_cmp_eq_u32 vcc, -1, v184\ns_nop 1\ns_cbranch_vccz {ok}")
            probe()
            self.spin_check(lp)
            e("s_waitcnt vmcnt(0)")
            self.label(ok)
            if c.get("stamps"): e("v_writelane_b32 v255, 1, 51")
            for ks in range(28): self.hl(1, ks, 182)
            e(f"s_branch {jn}")
        self.ool += cap(rout)
        ht.update(keep)
        self.stamp(19)
        def extras():
            e(f"s_mov_b32 m0, s{S_M+1}\ns_nop 0")
            self.tok(f"buffer_load_dwordx4 v182, s[{S_WS}:{S_WS+3}], s{S_M} offen sc1 lds")
            self.xr = self.tok(f"buffer_load_dwordx4 v182, s[{S_WS}:{S_WS+3}], s{S_M} offen offset:1024 sc1 lds")
            e("v_lshrrev_b32 v185, 5, v1\nv_lshlrev_b32 v185, 8, v185")
            e(f"s_lshl_b32 s{S_M+2}, s{S46}, 4\ns_add_u32 s{S_M+2}, s{S_M+2}, {WS_MODF + 8}")
            for j in range(16): self.gbt = self.tok(f"buffer_load_dword v{140+j}, v185, s[{S_WS}:{S_WS+3}], s{S_M+2} offen offset:{16*j} sc1")
        def wr(T):
            for j in range(4): e(f"ds_write_b128 v{186 + (T >> 1)}, {vr(4+16*T+4*j,4)} offset:{(T & 1)*32768 + 1024*j}")
        def addrs():
            e(f"v_add_u32 v186, s{S_M+9}, v182\nv_add_u32 v187, 0x10000, v186")
            e(f"s_lshl_b32 s{S_T0}, s{S_WV}, 15\nv_add_u32 v188, s{S_T0}, v182")
            e("v_lshrrev_b32 v248, 5, v1\nv_lshlrev_b32 v248, 10, v248")
            e("v_bfe_u32 v249, v1, 2, 2\nv_lshl_add_u32 v248, v249, 6, v248")
            e("v_bfe_u32 v249, v1, 4, 1\nv_lshl_add_u32 v248, v249, 5, v248")
            e("v_and_b32 v249, 3, v1\nv_lshl_add_u32 v248, v249, 3, v248")
            e(f"v_add_u32 v248, s{S_M+1}, v248")
            e("v_and_b32 v249, 31, v1\nv_lshlrev_b32 v249, 10, v249")
            e("v_lshrrev_b32 v250, 5, v1\nv_lshl_add_u32 v249, v250, 5, v249")
            e(f"s_lshl_b32 s{S_T0}, s{S45}, 15\ns_lshl_b32 s{S_T1}, s{S46}, 1\ns_add_u32 s{S_T0}, s{S_T0}, s{S_T1}")
        def resid():
            self.wait(self.xr)
            tk = [self.tok(f"ds_read_b64_tr_b16 {vr(172+2*j,2)}, v248 offset:{256*j}") for j in range(4)]
            self.wait(tk[3])
            def rchk(ex):
                e("v_pk_max_u16 v190, v172, v173")
                for j in range(2, 8): e(f"v_pk_max_u16 v190, v190, v{172+j}")
                e("v_lshrrev_b32 v191, 16, v190\nv_and_b32 v190, 0xffff, v190\nv_max_u32 v190, v190, v191\nv_cmp_eq_u32 vcc, 0xffff, v190")
            def rre():
                e(f"s_mov_b32 m0, s{S_M+1}\ns_nop 0")
                e(f"buffer_load_dwordx4 v182, s[{S_WS}:{S_WS+3}], s{S_M} offen sc1 lds\nbuffer_load_dwordx4 v182, s[{S_WS}:{S_WS+3}], s{S_M} offen offset:1024 sc1 lds\ns_waitcnt vmcnt(0)")
                for j in range(4): e(f"ds_read_b64_tr_b16 {vr(172+2*j,2)}, v248 offset:{256*j}")
                e("s_waitcnt lgkmcnt(0)")
            self.guard("rs", rchk, rre)
            for j in range(8): e(f"v_lshlrev_b32 v{156+2*j}, 16, v{172+j}\nv_and_b32 v{157+2*j}, 0xffff0000, v{172+j}")
        def nt1():
            for ks in range(28):
                if ks % 7 == 0:
                    def hchk(ex, k0=ks):
                        for j in range(7):
                            b_ = self.HR(k0 + j)
                            e(f"v_max3_u32 v189, v{b_}, v{b_+1}, {'v189' if j else '0'}\nv_max3_u32 v189, v{b_+2}, v{b_+3}, v189")
                        e("v_cmp_eq_u32 vcc, -1, v189")
                    def reis(k0=ks):
                        keep_ = dict(ht)
                        for j in range(7): self.hl(1, k0 + j, 182)
                        ht.update(keep_); e("s_waitcnt vmcnt(0)")
                    self.wait(ht[(1, ks + 6)])
                    self.guard("hc", hchk, reis)
                mm(1, ks)
        fill = cap(extras) + cap(addrs) + cap(lambda: (wr(0), wr(1))) + cap(resid)
        m, left = merge(cap(nt1), fill, 24, pace=1); self.p.put(m + left)
        self.stamp(17)
        wr(2); wr(3)
        e("s_waitcnt lgkmcnt(0)\ns_barrier")
        rt = {}
        for w in range(4):
            for j in range(4): rt[(w, j)] = self.tok(f"ds_read_b128 {vr(68+16*w+4*j,4)}, v188 offset:{8192*w + 1024*j}")
        self.wait(rt[(1, 3)])
        for j in range(8): e(f"v_pk_add_f32 {vr(68+2*j,2)}, {vr(68+2*j,2)}, {vr(84+2*j,2)}")
        self.wait(rt[(3, 3)], self.gbt)
        for j in range(8): e(f"v_pk_add_f32 {vr(100+2*j,2)}, {vr(100+2*j,2)}, {vr(116+2*j,2)}")
        for h in range(2):
            for j in range(4*h, 4*h+4): e(f"v_pk_add_f32 {vr(68+2*j,2)}, {vr(68+2*j,2)}, {vr(100+2*j,2)}")
            for j in range(4*h, 4*h+4): e(f"v_pk_fma_f32 {vr(68+2*j,2)}, {vr(68+2*j,2)}, {vr(140+2*j,2)}, {vr(156+2*j,2)}")
            for j in range(4*h, 4*h+4): e(f"v_cvt_pk_bf16_f32 v{24+j}, v{68+2*j}, v{69+2*j}")
            e(f"buffer_store_dwordx4 {vr(24+4*h,4)}, v249, s[{S_OUT}:{S_OUT+3}], s{S_T0} offen offset:{16*h}")
        self.stamp(18)

    def bump_epoch(self):
        e = self.e
        sk = self.lab("ep")
        e("s_cmp_lg_u32 s2, 0")
        e(f"s_cbranch_scc1 {sk}")
        e(f"s_add_u32 s{S_T0}, s{S_E}, 1")
        e(f"v_mov_b32 v3, s{S_T0}\nv_mov_b32 v4, 0")
        e("s_mov_b64 exec, 1")
        e(f"buffer_store_dword v3, v4, s[{S_WS}:{S_WS+3}], 0 offen sc1")
        e("s_mov_b64 exec, -1")
        self.label(sk)
    def finish(self):
        if self.cfg.get("hold"):
            self.label("F_hold")
            self.e(f"s_memrealtime s[{S_ST}:{S_ST+1}]\ns_waitcnt lgkmcnt(0)\ns_sub_u32 s{S_T0}, s{S_ST}, s34\ns_cmp_lt_u32 s{S_T0}, {self.cfg['hold']}\ns_cbranch_scc1 F_hold")
        self.stamp_flush()
        self.label(f"{self.cfg['uid']}_end")
        self.e("s_endpgm")
        ins = resolve(self.p.take()) + self.ool
        ins, n = pad_hazards(ins)
        check_labels(ins)
        return render(ins)
def kernel_text(name, body, vgpr=512, accum=256):
    return f""".text
.globl {name}
.p2align 8
.type {name},@function
{name}:
{body}
.section .rodata,"a"
.p2align 6
.amdhsa_kernel {name}
  .amdhsa_next_free_vgpr {vgpr}
  .amdhsa_next_free_sgpr 102
  .amdhsa_accum_offset {accum}
  .amdhsa_group_segment_fixed_size 0
  .amdhsa_kernarg_size 144
  .amdhsa_user_sgpr_count 2
  .amdhsa_user_sgpr_kernarg_segment_ptr 1
  .amdhsa_system_sgpr_workgroup_id_x 1
.end_amdhsa_kernel
"""

def build(stamps=False, over={}):
    hdr = open("adaLN_cond__ssm_conv_s4__glu_gated_geglu__prompt.s.ref").read().split("; Override launch")[0]
    cfg = dict(spin=200000, stamps=stamps, uid="F", b1=10, b2=17, b3=23, sti=35, stk=42, b4=54, wx=6, kc=22, kf=18, nb=4, nh=0, hw=11, nrc=11, rc0=3, rcs=2, f0k=29, p1k=16, g0at=12, twx=0, npre=16, ga=24, cpace=4, gpace=2, nb1=0, twd=2, touch=2, fpos=1, wa0=4, map8=1, rot=1, rot2=1, split=0, nbp=0, nb2=6, adapt=0, vmhi=28, nrec=8, wpre=12, itb=1)
    cfg.update(over)
    g = G(cfg); e = g.e
    g.prologue()
    g.p0_issue()
    g.srds_late()
    g.g1_map(); g.w_setup(); g.hbase()
    g.w_rot(); g.conv_setup(); g.p0_xb()
    g.tag_ready(); g.stamp(1)
    g.kgen_pre()
    e(f"v_mov_b32 v253, s{S_TAG}")
    g.p0_stats(); g.stamp(2)
    g.p0_xb2(); g.stamp(23)
    g.wm_issue(1)
    hold = {}
    if cfg['touch'] == 2: g.touch_w()
    if cfg['twd'] == 1: g.touch_wd(1)
    g.wait(g.T["c"]); g.stamp(20)
    if cfg["adapt"]:
        ny = 1 + 4 + 4 + (1 if cfg['touch'] == 2 else 0) + (1 if cfg['twd'] == 1 else 0)
        e(f"s_getreg_b32 s13, hwreg(HW_REG_IB_STS, 0, 4)")
        if stamps: e("v_writelane_b32 v255, s13, 61")
        e(f"s_cmp_le_u32 s13, {ny}\ns_cselect_b32 s13, 3, 0\ns_add_u32 s15, s{S_M+4}, s13\ns_mov_b32 s{S_M+4}, s15")
        g.p0_mod(3, 5, tokname="wm0")
    g.kgen_tab([])
    g.stamp(24)
    g.p0_mod(0, 5); g.stamp(22)
    if cfg["adapt"]: e(f"s_cmp_ge_u32 s{S_M+4}, 3\ns_cselect_b32 s13, 3, 0\ns_sub_u32 s{S_M+4}, s{S_M+4}, s13")
    if cfg['touch'] == 1: g.touch_w()
    nb1 = cfg["nb1"]
    if cfg['fpos'] == 1: hold['fill'] = g.xfill()
    g.kgen_post()
    g.w_issue_l(range(0, nb1))
    g.stamp(3)
    def fillch():
        if cfg['fpos'] == 1: return []
        f0, hold["fill"] = g.capture(g.xfill)
        return [f0[2*i:2*i+2] for i in range(4)]
    g.hbuild(after_first=lambda: (g.p0_mod(1, 0, base=60), g.w_issue_l(range(nb1, cfg['nbp']))), mid=lambda: fillch() + g.w_chunks(range(cfg['nbp'], cfg['nb2'])))
    sk = g.lab("hm")
    e(f"s_cmp_lt_u32 s{S_IDX}, 28\ns_cbranch_scc1 {sk}")
    for i in g.cap(g.modf_issue):
        if i.text.startswith("buffer_"): g.p.nc(i.text)
        else: g.p.put([i])
    g.label(sk)
    if cfg['touch'] == 3: g.touch_w()
    if cfg['twd'] == 2: g.touch_wd(2)
    cap = g.cap
    nb2 = cfg["nb2"]; nr = cfg["nrec"]
    fa = cap(lambda: g.w_issue_l(range(nb2, 13)))
    fb = [] if not nr else cap(lambda: (g.wait(g.wt[nr-1]), e("s_barrier"), hold.__setitem__("r", g.w_read_l(range(0, nr)))))
    if cfg['fpos'] == 1:
        fa = cap(g.gate_pub) + fa
        fc = cap(lambda: (g.wait(hold["r"]), e("s_barrier"), g.w_issue_l(range(13, 13 + nr))))
    else:
        fc = cap(lambda: (g.wait(hold["r"], hold["fill"]), e("s_barrier"), g.gate_pub(), g.w_issue_l(range(13, 13 + nr))))
    f6, g.gtok = g.capture(g.gate_issue) if cfg['fpos'] == 1 else ([], None)
    f5, hold["late"] = g.capture(g.late_issue)
    g.cfg["cflush"] = (3,)
    g.conv(fillers={0: fa, cfg["itb"]: fb + f5 + fc + cap(lambda: g.late_fin(hold["late"])) + f6}, pre_bar=lambda: g.wait(g.wt[12]))
    assert not any(i.text.startswith("s_barrier") for i in g.conv_left if i.wait is None), len(g.conv_left)
    sys.stderr.write(f"conv left {len(g.conv_left)}\n")
    g.p.put(g.conv_left)
    e(f"s_cmp_ge_u32 s{S_IDX}, 28\ns_cbranch_scc1 F_alt")
    g.modf_pub()
    g.shadow1()
    g.gemm1f()
    g.label("F_g2")
    def alt():
        g.label("F_alt")
        g.u_job(); g.modf_pub(); g.stamp(10)
        g.stats2_job(); g.stamp(11)
        g.wd_setup(); g.g2_setup()
        keep = dict(g.wdt); keep2 = dict(g.ht)
        for ks in range(15): g.wd_issue(ks)
        e("s_waitcnt vmcnt(0)")
        for ks in range(cfg["nrc"]): g.wd_read(ks)
        e("s_waitcnt lgkmcnt(0)")
        for ks in range(15, 15 + cfg["nrc"]): g.wd_issue(ks)
        g.fl_issue(0, 140, 144); e("s_waitcnt vmcnt(0)")
        g.guard("fa", lambda ex: e(f"v_cmp_ne_u32 vcc, s{S_TAG}, v144"), lambda: (g.fl_issue(0, 140, 144), e("s_waitcnt vmcnt(0)")))
        for (nt_, ks) in list(keep2): g.hl(0, ks, 147)
        g.wdt = keep; g.ht.update(keep2)
        e("s_waitcnt vmcnt(0)\ns_branch F_g2")
    g.ool += g.cap(alt)
    g.gemm2f(); g.bump_epoch()
    launch = f"; @launch grid=(256,1,1) block=(256,1,1) lds={LDS_BYTES}\n"
    return hdr + launch + '.amdgcn_target "amdgcn-amd-amdhsa--gfx950"\n' + kernel_text(KN, g.finish())

if __name__ == "__main__":
    over = {}
    for a in sys.argv[1:]:
        if "=" in a:
            k, v = a.split("="); over[k] = int(v)
    print(build(stamps="stamps" in sys.argv[1:], over=over))
```

```python
import sys, struct, math
from asmlib import *
KN = "adaLN_cond__ssm_conv_s4__glu_gated_geglu__prompt_kernel"
WS_ST1 = 0x1000; WS_MODP = 0x8000; WS_MODF = 0x20000; WS_ST2 = 0x24000
WS_FL1 = 0x28000; WS_FL3 = 0x2C000; WS_FL2 = 0x40000; WS_U = 0x80000; WS_XB = 0xC00000; WS_DBG = 0x1000000; WS_X1 = 0x100000; WS_X1S = 0x300000; WS_H = 0x500000; WS_SIZE = 0x1200000
L_TAB = 0; TABW = 17408; TPITCH = 272
L_K = 69632; KCH = 8320; KODD = 4164
L_HI = 86272; HCH = 4608
L_Z = 95488
L_MOD = 111872
L_SP = 131072
L_XT = 155648
L_SS = L_XT
L_XR2 = L_XT
LDS_BYTES = 163840
_POOL = [L_SP, L_SP + 8192, L_SP + 16384, L_MOD, L_MOD + 8192] + [L_TAB + 8192*i for i in range(8)]
def wslot(ks):
    if ks < 26: return _POOL[ks % 13]
    if ks < 29: return L_SP + 8192*(ks-26)
    return L_TAB + 8192*(ks-29)
S_WS = 4; S_WG = 8; S_WU = 12
P_X, P_ARE, P_AIM, P_BRE, P_BIM, P_CRE, P_CIM, P_LDT, P_DSK, P_BX, P_WG, P_WU, P_WD, P_C, P_WM, P_OUT, P_DBG, P_WS = [16 + 2 * i for i in range(18)]
S_X = 52; S_WM = 56; S_WD = 60; S_OUT = 64
S_TAG = 68; S_E = 69; S_WV = 70; S_D0 = 71; S_LDT = 72; S_DSK = 73
S_T0 = 74; S_T1 = 75; S_T2 = 76; S_T3 = 77; S_SPIN = 78; S_IDX = 79; S_XCD = 80
S_M = 82
S_EX = 94
S_ST = 96
S45 = 45; S46 = 46
S_CH = 16; S_PAR = 17
S_G1 = 98; S_G2 = 99; S_G3 = 100
SENT = 0xFFFFFFFF
BA = [124, 125, 126, 127, 141, 142, 2, 3]
def f2u(x): return struct.unpack("<I", struct.pack("<f", x))[0]
def hx(x): return "0x%08x" % (x & 0xFFFFFFFF)
def fl(x): return hx(f2u(x))
LOG2E = 1.4426950408889634
GAM = (2 * 0.7978845608028654 * LOG2E * 0.044715) ** (1.0 / 3)
GC = 2 * 0.7978845608028654 * LOG2E / GAM
def vr(b, n): return f"v[{b}:{b+n-1}]" if n > 1 else f"v{b}"
def ar(b, n): return f"a[{b}:{b+n-1}]" if n > 1 else f"a{b}"
def sr(b, n): return f"s[{b}:{b+n-1}]" if n > 1 else f"s{b}"
class G:
    def __init__(self, cfg):
        self.cfg = cfg; self.p = Prog(); self.nlab = 0; self.nstamp = 0; self.ool = []
    def lab(self, base):
        self.nlab += 1; return f"L{self.cfg['uid']}_{base}_{self.nlab}"
    def e(self, t): self.p.e(t)
    def tok(self, t): return self.p.tok(t)
    def wait(self, *t): self.p.wait(*t)
    def label(self, l): self.p.label(l)
    def stamp(self, i):
        if not self.cfg.get("stamps"): return
        e = self.e
        e(f"s_memtime s[{S_ST}:{S_ST+1}]")
        e("s_waitcnt lgkmcnt(0)")
        e(f"v_writelane_b32 v255, s{S_ST}, {i}")
    def stamp_flush(self):
        if not self.cfg.get("stamps"): return
        e = self.e
        e(f"s_memrealtime s[{S_ST}:{S_ST+1}]")
        e("s_waitcnt lgkmcnt(0)")
        e(f"v_writelane_b32 v255, s{S_ST}, 63")
        e(f"s_lshl_b32 s{S_T0}, s2, 10")
        e(f"s_add_u32 s{S_T0}, s{S_T0}, {WS_DBG + self.cfg.get('dbgoff', 0)}")
        e("v_lshlrev_b32 v254, 2, v0")
        e(f"buffer_store_dword v255, v254, s[{S_WS}:{S_WS+3}], s{S_T0} offen")
        if self.cfg.get("dbgout"):
            sk = self.lab("dbg")
            e(f"s_cmp_lg_u32 s2, {self.cfg['dbgout']}\ns_cbranch_scc1 {sk}\ns_cmp_lg_u32 s{S_WV}, 0\ns_cbranch_scc1 {sk}")
            e(f"v_readlane_b32 s{S_T1}, v255, 0\nv_readlane_b32 s{S_T2}, v255, 62\nv_readlane_b32 s{S_T3}, v255, 63\nv_mov_b32 v4, 0")
            for i, st in enumerate([1, 2, 23, 22, 21, 3, 4, 5, 6, 7, 12, 14, 16, 19, 18]):
                e(f"v_readlane_b32 s{S_T0}, v255, {st}\ns_sub_u32 s{S_T0}, s{S_T0}, s{S_T1}\nv_mov_b32 v3, s{S_T0}")
                e(f"global_store_dword v4, v3, s[{P_DBG}:{P_DBG+1}] offset:{4*i}")
            e(f"s_sub_u32 s{S_T0}, s{S_T3}, s{S_T2}\nv_mov_b32 v3, s{S_T0}")
            e(f"global_store_dword v4, v3, s[{P_DBG}:{P_DBG+1}] offset:60")
            self.label(sk)
    def srd(self, s, ptr, size):
        self.e(f"s_mov_b32 s{s}, s{ptr}\ns_mov_b32 s{s+1}, s{ptr+1}\ns_mov_b32 s{s+2}, {hx(size)}\ns_mov_b32 s{s+3}, 0x20000")
    def prologue(self):
        e = self.e
        e("s_cmp_ge_u32 s2, 256")
        e(f"s_cbranch_scc1 {self.cfg['uid']}_end")
        e("s_load_dwordx16 s[16:31], s[0:1], 0")
        e("s_load_dwordx16 s[32:47], s[0:1], 64")
        e("s_load_dwordx4 s[48:51], s[0:1], 128")
        if self.cfg.get("stamps"):
            e("v_mov_b32 v255, 0")
            e(f"s_memrealtime s[{S_ST}:{S_ST+1}]")
        if self.cfg.get("hold"): e("s_memrealtime s[34:35]" if False else "s_nop 0")
        if self.cfg.get("cpf"):
            n = self.cfg["cpf"]
            e("s_getpc_b64 s[4:5]\ns_and_b32 s4, s4, 0xffffff00")
            e(f"s_lshr_b32 s6, s2, 3\ns_mul_i32 s6, s6, {n*128}\nv_min_u32 v254, {n-1}, v0\nv_lshlrev_b32 v254, 7, v254\nv_add_u32 v254, s6, v254")
            e("global_load_dword v196, v254, s[4:5]")
        e("v_and_b32 v1, 63, v0")
        e("v_lshrrev_b32 v2, 6, v0")
        e(f"s_and_b32 s{S_XCD}, s2, 7")
        e(f"v_readfirstlane_b32 s{S_WV}, v2")
        e(f"s_lshr_b32 s{S_IDX}, s2, 3")
        e(f"s_lshl_b32 s{S_D0}, s{S_XCD}, 5")
        e(f"s_add_u32 s{S_D0}, s{S_D0}, s{S_IDX}")
        e(f"s_lshl_b32 s{S_D0}, s{S_D0}, 1")
        e(f"s_lshl_b32 s{S_T0}, s2, 13\ns_lshl_b32 s{S_T1}, s{S_WV}, 11\ns_add_u32 s{S_T0}, s{S_T0}, s{S_T1}")
        e("v_lshlrev_b32 v9, 4, v1")
        e("v_lshrrev_b32 v4, 3, v1\nv_and_b32 v5, 7, v1\nv_lshlrev_b32 v5, 4, v5\nv_lshl_add_u32 v3, v4, 10, v5")
        e(f"s_lshl_b32 s{S_T3}, s{S_IDX}, 16\ns_lshl_b32 s{S_T2}, s{S_XCD}, 7\ns_add_u32 s{S_T3}, s{S_T3}, s{S_T2}")
        e(f"s_lshl_b32 s{S_T2}, s{S_WV}, 14\ns_add_u32 s{S_T3}, s{S_T3}, s{S_T2}")
        e(f"s_add_u32 m0, s{S_T1}, {L_XT}")
        e(f"v_add_u32 v6, {8192 - 1024}, v3")
        e(f"s_lshl_b32 s{S_T2}, s{S_D0}, 8\nv_lshl_add_u32 v8, v0, 1, s{S_T2}")
        e(f"s_mul_i32 s{S_M}, s2, 1366\ns_lshr_b32 s{S_M}, s{S_M}, 16")
        e(f"s_mul_i32 s{S_M+2}, s{S_M}, 48\ns_sub_u32 s{S_M+1}, s2, s{S_M+2}")
        e(f"s_and_b32 s{S_M+2}, s{S_M}, 3\ns_lshl_b32 s{S_M+2}, s{S_M+2}, 8\nv_lshl_add_u32 v7, v1, 2, s{S_M+2}")
        e("v_mul_u32_u24 v33, 6144, v4\nv_add_u32 v33, v33, v5")
        e(f"s_mul_i32 s{S_M+2}, s{S_M}, {128*6144}\ns_lshl_b32 s{S_M+3}, s{S_M+1}, 7\ns_add_u32 s{S_M+2}, s{S_M+2}, s{S_M+3}")
        e(f"s_mul_i32 s{S_M+3}, s{S_WV}, {32*6144}\ns_add_u32 s{S_M+2}, s{S_M+2}, s{S_M+3}")
        e(f"s_mov_b32 s{S_X+2}, {hx(2097152)}\ns_mov_b32 s{S_X+3}, 0x20000\ns_mov_b32 s{S_WM+2}, {hx(3145728)}\ns_mov_b32 s{S_WM+3}, 0x20000")
        e("s_waitcnt lgkmcnt(0)")
        if self.cfg.get("stamps"):
            e(f"v_writelane_b32 v255, s{S_ST}, 62")
        if self.cfg.get("hold"): e("s_memrealtime s[34:35]")
        self.stamp(0)
    def srds_late(self):
        self.srd(S_WS, P_WS, WS_SIZE)
        self.srd(S_WD, P_WD, 1835008)
        self.srd(S_OUT, P_OUT, 2097152)
    def tag_ready(self):
        e = self.e
        e("s_waitcnt lgkmcnt(0)")
        e(f"s_mul_i32 s{S_TAG}, s{S_E}, 0x9E3779B1")
        e(f"s_add_u32 s{S_TAG}, s{S_TAG}, 0x7F4A7C15")
    def reduce16(self, regs):
        for ctl in ["quad_perm:[1,0,3,2]", "quad_perm:[2,3,0,1]", "row_half_mirror", "row_mirror"]:
            for r in regs:
                self.e(f"v_add_f32_dpp v{r}, v{r}, v{r} {ctl} row_mask:0xf bank_mask:0xf")
    def stat_finish(self, vs, vq, t0, t1):
        e = self.e
        e(f"v_mul_f32 v{vs}, {fl(1/512)}, v{vs}")
        e(f"v_mul_f32 v{t0}, v{vs}, v{vs}")
        e(f"v_mul_f32 v{vq}, {fl(1/512)}, v{vq}")
        e(f"v_sub_f32 v{vq}, v{vq}, v{t0}")
        e(f"v_max_f32 v{vq}, 0, v{vq}")
        e(f"v_cvt_pk_bf16_f32 v{t0}, v{vq}, v{vq}")
        e(f"v_and_b32 v{t0}, 0xffff0000, v{t0}")
        e(f"v_add_f32 v{t0}, {fl(1e-5)}, v{t0}")
        e(f"v_cvt_pk_bf16_f32 v{t0}, v{t0}, v{t0}")
        e(f"v_and_b32 v{t0}, 0xffff0000, v{t0}")
        e(f"v_sqrt_f32 v{t0}, v{t0}")
        e(f"v_cvt_pk_bf16_f32 v{vs}, v{t0}, v{vs}")
    def cmul_list(self, jobs):
        e = self.e; i = 0
        f1 = lambda d, a, b: f"v_pk_mul_f32 {vr(d,2)}, {vr(a,2)}, {vr(b,2)} op_sel:[0,0] op_sel_hi:[0,1]"
        f2 = lambda d, a, b: f"v_pk_fma_f32 {vr(d,2)}, {vr(a,2)}, {vr(b,2)}, {vr(d,2)} op_sel:[1,1,0] op_sel_hi:[1,0,1] neg_lo:[0,1,0]"
        while i < len(jobs):
            j = jobs[i]
            if i + 1 < len(jobs) and j[0] not in jobs[i+1][1:] and jobs[i+1][0] not in j:
                k = jobs[i+1]
                e(f1(*j)); e(f1(*k)); e(f2(*j)); e(f2(*k)); i += 2
            else:
                e(f1(*j)); e(f2(*j)); i += 1
    def kgen_pre(self):
        e = self.e
        e("v_mov_b32 v36, 0\nv_mov_b32 v37, 0\nv_mov_b32 v38, 0\nv_mov_b32 v39, 0")
        e("v_lshrrev_b32 v3, 5, v0")
        e(f"v_mul_u32_u24 v3, {HCH}, v3")
        e("v_and_b32 v4, 31, v0")
        e("v_lshl_add_u32 v3, v4, 4, v3")
        e(f"v_add_u32 v3, {L_HI}, v3")
        e("v_bfe_u32 v4, v0, 2, 2")
        e(f"v_mul_u32_u24 v4, 4160, v4")
        e("v_and_b32 v5, 3, v0")
        e("v_lshl_add_u32 v4, v5, 4, v4")
        e(f"v_add_u32 v4, {L_K + 4096}, v4")
        e("v_cmp_gt_u32 vcc, 64, v0")
        e("v_cndmask_b32 v3, v4, v3, vcc")
        e("v_cmp_gt_u32 vcc, 80, v0")
        e(f"s_and_saveexec_b64 s[{S_EX}:{S_EX+1}], vcc")
        zl = self.lab("z")
        e(f"s_cbranch_execz {zl}")
        e("ds_write_b128 v3, v[36:39]")
        self.label(zl)
        e(f"s_mov_b64 exec, s[{S_EX}:{S_EX+1}]")
        e(f"s_lshr_b32 s{S_T0}, s{S_WV}, 1")
        e(f"s_lshl_b32 s{S_T0}, s{S_T0}, 4")
        e(f"s_lshr_b32 s{S_T1}, s{S_LDT}, s{S_T0}")
        e(f"s_lshl_b32 s{S_T1}, s{S_T1}, 16")
        e(f"v_mov_b32 v3, {fl(LOG2E)}")
        e(f"v_mul_f32 v3, s{S_T1}, v3")
        e("v_exp_f32 v3, v3")
        e("v_cvt_pk_bf16_f32 v3, v3, v3")
        e("v_and_b32 v35, 0xffff0000, v3")
    def kgen_tab(self, chunks=()):
        e = self.e
        keep = self.p.take()
        for i in range(6): e(f"v_lshlrev_b32 v{26+i}, 16, v{18+i}")
        e("v_mul_f32 v26, v26, v35\nv_mul_f32 v27, v27, v35\nv_mul_f32 v28, v28, v35\nv_mul_f32 v29, v29, v35")
        e(f"v_mul_f32 v26, {fl(LOG2E)}, v26")
        e("v_mul_f32 v27, 0.15915494, v27")
        S = lambda j: 40 + 2 * j
        Gt = lambda T: 74 + 2 * (T - 1)
        Pn = lambda n: 88 + 2 * n
        S32, S64, S128 = 138, 140, 142
        def direct(dst, t, a, b, c):
            if t == 1:
                e(f"v_exp_f32 v{a}, v26\nv_fract_f32 v{b}, v27")
            else:
                e(f"v_mul_f32 v{a}, {fl(float(t))}, v26\nv_mul_f32 v{b}, {fl(float(t))}, v27")
                e(f"v_exp_f32 v{a}, v{a}\nv_fract_f32 v{b}, v{b}")
            e(f"v_cos_f32 v{c}, v{b}\nv_sin_f32 v{b}, v{b}\ns_nop 0")
            e(f"v_mul_f32 v{dst}, v{a}, v{c}\nv_mul_f32 v{dst+1}, v{a}, v{b}")
        e(f"s_mul_i32 s{S_T3}, s{S_WV}, {TABW}\ns_mov_b32 m0, s{S_T3}")
        st = {"n": 0, "q": []}
        NBAT = 8
        def flush():
            for ent_, r_ in st["q"]: e(f"ds_write_addtid_b32 v{r_} offset:{L_TAB + ent_*TPITCH}")
            st["q"] = []
        def pair(ent, jobs, srcs, neg=False):
            self.cmul_list(jobs)
            for i in range(2):
                pk = 128 + (st["n"] % NBAT); st["n"] += 1
                if srcs[i] is None: e(f"v_mov_b32 v{pk}, 0x3f80")
                else: e(f"v_cvt_pk_bf16_f32 v{pk}, v{srcs[i]}, {'-' if neg else ''}v{srcs[i]+1}")
                st["q"].append((ent + i, pk))
            if len(st["q"]) == NBAT: flush()
        direct(S(1), 1, 120, 121, 122)
        pair(0, [], [None, S(1)])
        direct(S(16), 16, 123, 124, 125)
        pair(2, [(S(2), S(1), S(1)), (Pn(0), 30, 28), (S(3), S(2), S(1))], [S(2), S(3)])
        direct(Gt(1), 256, 120, 121, 122)
        pair(48, [(Pn(1), Pn(0), S(16)), (S32, S(16), S(16))], [Pn(0), Pn(1)], True)
        pair(4, [(S(4), S(2), S(2)), (S(5), S(3), S(2))], [S(4), S(5)])
        pair(6, [(S(6), S(4), S(2)), (S(7), S(4), S(3))], [S(6), S(7)])
        pair(50, [(Pn(2), Pn(0), S32), (Pn(3), Pn(1), S32), (S64, S32, S32)], [Pn(2), Pn(3)], True)
        pair(8, [(S(8), S(4), S(4)), (S(9), S(5), S(4))], [S(8), S(9)])
        pair(10, [(S(10), S(8), S(2)), (S(11), S(8), S(3))], [S(10), S(11)])
        pair(52, [(Pn(4), Pn(0), S64), (Pn(5), Pn(1), S64)], [Pn(4), Pn(5)], True)
        pair(54, [(Pn(6), Pn(2), S64), (Pn(7), Pn(3), S64), (S128, S64, S64)], [Pn(6), Pn(7)], True)
        pair(12, [(S(12), S(8), S(4)), (S(13), S(8), S(5))], [S(12), S(13)])
        pair(14, [(S(14), S(8), S(6)), (S(15), S(8), S(7))], [S(14), S(15)])
        aux = [[(Gt(2), Gt(1), Gt(1))], [(Gt(3), Gt(2), Gt(1))], [(Gt(4), Gt(2), Gt(2))], []]
        for i in range(4):
            pair(56 + 2*i, [(Pn(8+2*i), Pn(2*i), S128), (Pn(9+2*i), Pn(2*i+1), S128)] + aux[i], [Pn(8+2*i), Pn(9+2*i)], True)
        ents = {0: [(1, 0), (1, 2), (1, 4), (1, 6), (1, 8), (4, 0), (4, 8), (4, 16)],
                1: [(1, 8), (1, 10), (1, 12), (1, 14), (1, 16), (5, 0), (5, 8), (5, 16)],
                2: [(2, 0), (2, 4), (2, 8), (2, 12), (2, 16), (6, 0), (6, 8), (6, 16)],
                3: [(3, 0), (3, 4), (3, 8), (3, 12), (3, 16), (7, 0), (7, 8), (7, 16)]}
        extra = {(0, 0): (Gt(5), Gt(4), Gt(1)), (2, 0): (Gt(6), Gt(4), Gt(2)), (3, 0): (Gt(7), Gt(4), Gt(3))}
        tb = 0
        for q in range(4):
            for h in range(4):
                two = ents[q][2*h:2*h+2]; base = 88 + 4*(tb & 3); tb += 1
                jobs = []; srcs = []
                for i, (T, j) in enumerate(two):
                    if j == 0: srcs.append(Gt(T))
                    else: jobs.append((base + 2*i, Gt(T), S(j))); srcs.append(base + 2*i)
                if (q, h) in extra: jobs.append(extra[(q, h)])
                pair(16 + 16*(h >> 1) + 4*q + 2*(h & 1), jobs, srcs)
        body = self.p.take()
        out = []; ci = 0; nb = 0
        for k_, ins in enumerate(body):
            out.append(ins)
            last = ins.text.startswith("ds_write_addtid") and (k_ + 1 == len(body) or not body[k_+1].text.startswith("ds_write_addtid"))
            if last:
                nb += 1
                if nb > self.cfg["wa0"] and ci < len(chunks):
                    out += chunks[ci] + chunks[ci+1] + [Ins(f"s_mov_b32 m0, s{S_T3}")]; ci += 2
        for c in chunks[ci:]: out += c
        self.p.put(keep + out)

    def kgen_post(self, post_b2=None):
        e = self.e
        e(f"s_lshr_b32 s{S_T2}, s{S_WV}, 1\ns_mul_i32 s{S_T0}, s{S_T2}, {2*TABW}")
        e(f"v_and_b32 v6, 15, v1\nv_mul_u32_u24 v3, {TPITCH}, v6")
        e("v_lshrrev_b32 v7, 4, v1\nv_lshl_add_u32 v3, v7, 4, v3")
        e(f"v_add_u32 v3, s{S_T0}, v3")
        e(f"s_and_b32 s{S_T1}, s{S_WV}, 1\ns_mul_i32 s{S_T1}, s{S_T1}, {16*TPITCH}\nv_add_u32 v4, s{S_T1}, v3")
        e(f"s_mul_i32 s{S_T2}, s{S_T2}, {KCH}\ns_add_u32 s{S_T2}, s{S_T2}, {L_K}")
        e(f"v_lshlrev_b32 v6, 5, v6\nv_sub_u32 v6, s{S_T2}, v6")
        e("v_lshlrev_b32 v9, 9, v7\nv_sub_u32 v9, v6, v9")
        e("s_waitcnt lgkmcnt(0)\ns_barrier")
        self.stamp(21)
        F = 40; toks = {}
        for ks in range(8):
            o = L_TAB + (ks >> 2)*TABW + (ks & 3)*64; r = F + 12*ks
            self.tok(f"ds_read_b128 {vr(r+8,4)}, v3 offset:{o + 48*TPITCH}")
            toks[(ks, 0)] = self.tok(f"ds_read_b128 {vr(r,4)}, v4 offset:{o}")
            toks[(ks, 1)] = self.tok(f"ds_read_b128 {vr(r+4,4)}, v3 offset:{o + 32*TPITCH}")
        A0 = 136; A2 = 140
        for ks in range(8):
            r = F + 12*ks
            for b, acc in ((0, A0), (1, A2)):
                self.wait(toks[(ks, b)])
                e(f"v_mfma_f32_16x16x32_bf16 {vr(acc,4)}, {vr(r+4*b,4)}, {vr(r+8,4)}, {vr(acc,4) if ks else '0'}")
        e("s_barrier")
        if post_b2: post_b2()
        h1 = self.lab("kh1"); jn = self.lab("kj")
        e(f"s_bitcmp1_b32 s{S_WV}, 0\ns_cbranch_scc1 {h1}")
        def cv(d, lst):
            for i, (a, b) in enumerate(lst): e(f"v_cvt_pk_bf16_f32 v{d+i}, v{a}, v{b}")
        O = KODD - 4
        e("v_lshlrev_b32 v8, 3, v7\nv_sub_u32 v8, v6, v8")
        f0, f1, f2 = A2+1, A2+2, A2+3
        cv(52, [(f2, f2), (f2, f2), (f1, f1), (f1, f1), (f1, f1), (f1, f0), (f0, f0), (f0, f0)])
        e(f"ds_write_b128 v9, v[52:55] offset:{2*(2032-1024)}")
        cv(60, [(f2, f2), (f2, f2), (f2, f1), (f1, f1), (f1, f1), (f1, f1), (f0, f0), (f0, f0)])
        e(f"ds_write_b128 v9, v[56:59] offset:{2*(2032-1024)+16}")
        cv(48, [(A0+3, A0+2), (A0+1, A0), (A0+2, A0+1)])
        e(f"ds_write_b128 v9, v[60:63] offset:{2*(2032-1024) + O}")
        e(f"ds_write_b128 v9, v[64:67] offset:{2*(2032-1024) + O + 16}")
        e(f"ds_write_b64 v8, v[48:49] offset:{2*2044}")
        e(f"ds_write_b16 v8, v48 offset:{2*2044 + O + 2}")
        e(f"ds_write_b32 v8, v50 offset:{2*2044 + O + 4}")
        e(f"ds_write_b16_d16_hi v8, v49 offset:{2*2044 + O + 8}")
        e(f"s_branch {jn}")
        self.label(h1)
        e("v_lshlrev_b32 v8, 4, v7\nv_sub_u32 v8, v6, v8")
        E_ = lambda j: A0 + j if j < 4 else A2
        C = lambda lst: [(E_(a), E_(b)) for a, b in lst]
        cv(52, C([(4, 4), (3, 3), (3, 2), (2, 2), (2, 2), (1, 1), (1, 0), (0, 0)]))
        e("s_mov_b32 exec_lo, 0")
        e(f"ds_write_b128 v9, v[52:55] offset:{2*2032}\nds_write_b128 v9, v[56:59] offset:{2*2032+16}")
        e("s_mov_b32 exec_lo, -1")
        cv(60, C([(4, 4), (4, 3), (3, 3), (2, 2), (2, 2), (2, 1), (1, 1), (0, 0)]))
        e("s_mov_b32 exec_lo, 0")
        e(f"ds_write_b128 v9, v[60:63] offset:{2*2032 + O}\nds_write_b128 v9, v[64:67] offset:{2*2032 + O + 16}")
        e("s_mov_b32 exec_lo, -1")
        cv(40, C([(4, 3), (2, 2), (2, 1), (0, 0), (4, 4), (3, 2), (2, 2), (1, 0)]))
        e("s_mov_b32 exec_hi, 0")
        e(f"ds_write_b128 v8, v[40:43] offset:{2*(2040-256)}\nds_write_b128 v8, v[44:47] offset:{2*(2040-256) + O}")
        e(f"ds_write_b16 v8, v43 offset:{2*(2040-256) + O + 16}")
        e("s_mov_b32 exec_hi, -1")
        self.label(jn)

    def spin_check(self, retry_label, out_label=None):
        e = self.e
        e(f"s_sub_u32 s{S_SPIN}, s{S_SPIN}, 1")
        e(f"s_cmp_lg_u32 s{S_SPIN}, 0")
        e(f"s_cbranch_scc1 {retry_label}")
    def hbuild(self, after_first=None, mid=None):
        e = self.e
        e(f"s_lshl_b32 s{S_T0}, s{S_WV}, 12\nv_lshl_add_u32 v3, v1, 4, s{S_T0}")
        e("v_and_b32 v4, 3, v1")
        e(f"v_mul_u32_u24 v4, {3072*8}, v4")
        e("v_lshrrev_b32 v5, 3, v1")
        e("v_min_u32 v5, 5, v5")
        e("v_lshl_add_u32 v4, v5, 12, v4")
        e("v_bfe_u32 v6, v1, 2, 1")
        e("v_lshl_add_u32 v4, v6, 3, v4")
        e(f"s_lshl_b32 s{S_T0}, s{S_D0}, 3")
        e(f"s_add_u32 s{S_T0}, s{S_T0}, {WS_MODP}")
        e(f"s_mov_b32 s{S_T1}, {WS_ST1}")
        e(f"s_lshl_b32 s{S_T2}, s{S_D0}, 13\ns_add_u32 s{S_T2}, s{S_T2}, {hx(WS_XB)}")
        e(f"s_mov_b32 s{S_SPIN}, {self.cfg['spin']}")
        rt = self.lab("h0"); ok = self.lab("h0ok"); ck = self.lab("h0ck")
        def pl():
            self.tok(f"buffer_load_dwordx2 v[8:9], v4, s[{S_WS}:{S_WS+3}], s{S_T0} offen sc1")
            for i in range(4):
                t_ = self.tok(f"buffer_load_dwordx4 v[{40+4*i}:{43+4*i}], v3, s[{S_WS}:{S_WS+3}], s{S_T1} offen offset:{1024*i} sc1")
            for i in range(4):
                t_ = self.tok(f"buffer_load_dwordx4 v[{20+4*i}:{23+4*i}], v3, s[{S_WS}:{S_WS+3}], s{S_T2} offen offset:{1024*i} sc1")
            return t_
        if after_first:
            t_ = pl(); self.stamp(26); after_first(); self.wait(t_); self.stamp(25)
            e(f"s_branch {ck}")
            keep = self.p.take()
            self.label(rt); pl(); e("s_waitcnt vmcnt(0)"); e(f"s_branch {ck}")
            self.ool += self.p.take(); self.p.put(keep[:-1])
            self.label(ck)
        else:
            self.label(rt); pl(); e("s_waitcnt vmcnt(0)")
        e(f"v_mov_b32 v10, s{S_TAG}")
        if True: e("v_cmp_gt_u32 vcc, 24, v1\nv_cndmask_b32 v9, v10, v9, vcc")
        for i in range(8):
            e(f"v_min3_u32 v11, v{41+2*i}, v{21+2*i}, {'v11' if i else 'v9'}")
            e(f"v_max3_u32 v12, v{41+2*i}, v{21+2*i}, {'v12' if i else 'v9'}")
        e("v_xor_b32 v11, v11, v10\nv_xor_b32 v12, v12, v10\nv_or_b32 v7, v11, v12")
        e("v_cmp_ne_u32 vcc, 0, v7")
        e(f"s_cbranch_vccz {ok}")
        self.spin_check(rt)
        self.label(ok)
        self.stamp(4)
        if self.cfg.get("stamps"): e(f"s_sub_u32 s{S_ST}, {self.cfg['spin']+1}, s{S_SPIN}\nv_writelane_b32 v255, s{S_ST}, 50")
        e(f"s_mov_b32 s{S_EX}, s{S_T0}\nv_mov_b32 v237, v4")
        keep_ = self.p.take()
        e("v_add_f32_dpp v8, v8, v8 quad_perm:[1,0,3,2] row_mask:0xf bank_mask:0xf")
        for i in range(4): e(f"v_lshlrev_b32 v{64+i}, 16, v{40+2*i}")
        e("v_add_f32_dpp v8, v8, v8 quad_perm:[2,3,0,1] row_mask:0xf bank_mask:0xf")
        for i in range(4, 8): e(f"v_lshlrev_b32 v{64+i}, 16, v{40+2*i}")
        e("v_cvt_pk_bf16_f32 v8, v8, v8\nv_rcp_f32 v64, v64\nv_and_b32 v8, 0xffff0000, v8\nv_rcp_f32 v65, v65")
        e("v_add_f32 v9, 1.0, v8\nv_rcp_f32 v66, v66")
        e("v_cvt_pk_bf16_f32 v9, v9, v9\nv_rcp_f32 v67, v67\nv_and_b32 v9, 0xffff0000, v9")
        X = 72; Hh = 88; Z = 104
        for i in range(8):
            if i < 3:
                src = 9 if i in (1, 4) else 8
                e(f"v_readlane_b32 s{S_M+2*i}, v{src}, {8*i}")
                e(f"v_readlane_b32 s{S_M+2*i+1}, v{src}, {8*i+4}")
            if i >= 4: e(f"v_rcp_f32 v{64+i}, v{64+i}")
            e(f"v_and_b32 v{56+i}, 0xffff0000, v{40+2*i}")
            k_ = i >> 1; src_ = 20 + 4*k_ + 2*(i & 1); dst_ = X + 8*(k_ & 1) + 4*(k_ >> 1) + 2*(i & 1)
            e(f"v_lshlrev_b32 v{dst_}, 16, v{src_}")
            e(f"v_and_b32 v{dst_+1}, 0xffff0000, v{src_}")
        sa, sA, ga, sb, sB, gb = [S_M + 2*i for i in range(6)]
        e(f"v_mov_b32 v16, s{ga}\nv_mov_b32 v17, s{ga+1}")
        for k in range(8):
            e(f"v_pk_add_f32 {vr(Hh+2*k,2)}, {vr(X+2*k,2)}, {vr(56+2*(k&3),2)} neg_lo:[0,1] neg_hi:[0,1]")
        e(f"v_mul_f32 v10, s{sA}, v16\nv_mul_f32 v11, s{sA+1}, v17")
        e(f"v_mul_f32 v12, s{sa}, v16\nv_mul_f32 v13, s{sa+1}, v17")
        e(f"s_lshl_b32 s{S_T0}, s{S_DSK}, 16\ns_and_b32 s{S_T1}, s{S_DSK}, 0xffff0000")
        e(f"v_mov_b32 v14, s{S_T0}\nv_mov_b32 v15, s{S_T1}")
        for k in range(8):
            e(f"v_pk_mul_f32 {vr(Hh+2*k,2)}, {vr(Hh+2*k,2)}, {vr(64+2*(k&3),2)}")
        for k in range(8):
            c = k >> 2
            e(f"v_pk_fma_f32 {vr(Hh+2*k,2)}, {vr(Hh+2*k,2)}, v[10:11], v[12:13] op_sel:[0,{c},{c}] op_sel_hi:[1,{c},{c}]")
        for ch in range(2):
            for j in range(4):
                e(f"v_cvt_pk_bf16_f32 v{120+4*ch+j}, v{Hh+8*ch+2*j}, v{Hh+8*ch+2*j+1}")
            e(f"ds_write_b128 v183, v[{120+4*ch}:{123+4*ch}] offset:{HCH*ch}")
        for k in range(8):
            c = k >> 2
            e(f"v_pk_fma_f32 {vr(Z+2*k,2)}, {vr(Hh+2*k,2)}, v[14:15], {vr(X+2*k,2)} op_sel:[0,{c},0] op_sel_hi:[1,{c},1]")
            if k & 1: e(f"ds_write_b128 v184, {vr(Z+2*k-2,4)} offset:{8192*c + 16*((k>>1)&1)}")
        body_ = self.p.take()
        self.p.put(keep_ + spread(body_, [(0, c_) for c_ in (mid() if mid else [])]))
    def late_issue(self): return self.tok(f"buffer_load_dwordx2 v[238:239], v237, s[{S_WS}:{S_WS+3}], s{S_EX} offen sc1")
    def late_fin(self, tl):
        e = self.e
        self.wait(tl)
        self.guard("lt", lambda ex: e(f"v_cmp_ne_u32 vcc, s{S_TAG}, v239"), lambda: (self.late_issue(), e("s_waitcnt vmcnt(0)")))
        e("v_add_f32_dpp v238, v238, v238 quad_perm:[1,0,3,2] row_mask:0xf bank_mask:0xf")
        e("s_nop 1")
        e("v_add_f32_dpp v238, v238, v238 quad_perm:[2,3,0,1] row_mask:0xf bank_mask:0xf")
        e("v_cvt_pk_bf16_f32 v238, v238, v238\nv_and_b32 v238, 0xffff0000, v238\nv_add_f32 v239, 1.0, v238")
        e("v_cvt_pk_bf16_f32 v239, v239, v239\nv_and_b32 v239, 0xffff0000, v239\ns_nop 0")
        for i in (4, 5):
            src = 239 if i == 4 else 238
            e(f"v_readlane_b32 s{S_M+2*i}, v{src}, {8*i}\nv_readlane_b32 s{S_M+2*i+1}, v{src}, {8*i+4}")
    def modf_pub(self):
        e = self.e
        sa, sA, ga, sb, sB, gb = [S_M + 2*i for i in range(6)]
        nm = self.lab("nomodf")
        e(f"s_cmp_lg_u32 s{S_WV}, 0")
        e(f"s_cbranch_scc1 {nm}")
        e(f"v_mov_b32 v20, 0\nv_mov_b32 v21, s{S_TAG}\nv_mov_b32 v22, s{gb}\nv_mov_b32 v23, s{S_TAG}")
        e(f"v_writelane_b32 v22, s{gb+1}, 1")
        e("v_lshlrev_b32 v19, 4, v1")
        e(f"s_lshl_b32 s{S_T0}, s{S_D0}, 4\ns_add_u32 s{S_T0}, s{S_T0}, {WS_MODF}")
        e("s_mov_b64 exec, 3")
        self.p.nc(f"buffer_store_dwordx4 v[20:23], v19, s[{S_WS}:{S_WS+3}], s{S_T0} offen sc1")
        e("s_mov_b64 exec, -1")
        self.label(nm)
    def conv_setup(self):
        e = self.e
        e(f"s_lshr_b32 s{S_CH}, s{S_WV}, 1")
        e(f"s_and_b32 s{S_PAR}, s{S_WV}, 1")
        e("v_and_b32 v176, 15, v1\nv_lshrrev_b32 v177, 4, v1")
        e("v_lshlrev_b32 v178, 3, v177")
        e("v_sub_u32 v178, v178, v176")
        e("v_add_u32 v178, 2031, v178")
        e("v_lshrrev_b32 v178, 1, v178")
        e("v_and_b32 v179, 1, v1\nv_xor_b32 v179, 1, v179")
        e(f"v_mul_u32_u24 v179, {KODD}, v179")
        e("v_lshl_add_u32 v178, v178, 2, v179")
        e(f"s_mul_i32 s{S_T0}, s{S_CH}, {KCH}")
        e(f"s_lshl_b32 s{S_T1}, s{S_PAR}, 8")
        e(f"s_sub_u32 s{S_T0}, s{S_T0}, s{S_T1}")
        e(f"s_add_u32 s{S_T0}, s{S_T0}, {L_K - 192 - 512}")
        for j in range(4):
            e(f"v_add_u32 v{168+j}, s{S_T0}, v178")
            if j < 3: e(f"s_sub_u32 s{S_T0}, s{S_T0}, 1024")
        e("v_lshlrev_b32 v178, 5, v176")
        e("v_lshl_add_u32 v178, v177, 4, v178")
        e(f"s_mul_i32 s{S_T0}, s{S_CH}, {HCH}")
        e(f"s_sub_u32 s{S_T0}, s{S_T0}, s{S_T1}")
        e(f"s_add_u32 s{S_T0}, s{S_T0}, {L_HI + 480 - 192}")
        e(f"v_add_u32 v172, s{S_T0}, v178")
        e("v_lshl_add_u32 v178, v176, 5, v178")
        e(f"s_lshl_b32 s{S_T0}, s{S_CH}, 13")
        e(f"s_lshl_b32 s{S_T1}, s{S_PAR}, 12")
        e(f"s_add_u32 s{S_T0}, s{S_T0}, s{S_T1}")
        e(f"s_add_u32 s{S_T0}, s{S_T0}, {L_Z}")
        e(f"v_add_u32 v173, s{S_T0}, v178")
        e(f"s_lshl_b32 s{S_T0}, s{S_WV}, 12\ns_add_u32 s{S_T0}, s{S_T0}, {L_Z}\nv_lshl_add_u32 v180, v1, 4, s{S_T0}")
        e(f"s_xor_b32 s{S_T1}, s{S_WV}, 1\ns_lshl_b32 s{S_T1}, s{S_T1}, 12\ns_add_u32 s{S_T1}, s{S_T1}, {L_Z}\nv_lshl_add_u32 v181, v1, 4, s{S_T1}")
        e("v_and_b32 v176, 15, v1\nv_lshrrev_b32 v177, 4, v1")
        e("v_lshrrev_b32 v182, 1, v176\nv_and_b32 v179, 1, v177\nv_lshl_add_u32 v182, v179, 3, v182\nv_lshlrev_b32 v182, 15, v182")
        e("v_and_b32 v176, 1, v176\nv_lshl_add_u32 v182, v176, 5, v182\nv_lshrrev_b32 v177, 1, v177\nv_lshl_add_u32 v182, v177, 4, v182")
        e(f"s_add_u32 s27, s{S_D0}, s{S_CH}\ns_lshl_b32 s27, s27, 6\ns_lshl_b32 s28, s{S_PAR}, 20\ns_add_u32 s27, s27, s28")
        e(f"s_add_u32 s28, s27, {hx(WS_X1S)}\ns_add_u32 s27, s27, {hx(WS_X1)}\ns_add_u32 s29, s27, {hx(16*32768)}\ns_add_u32 s30, s28, {hx(16*32768)}")
        e(f"v_lshlrev_b32 v183, 4, v0\nv_add_u32 v183, {L_HI + 512}, v183\nv_lshlrev_b32 v184, 5, v0\nv_add_u32 v184, {L_Z}, v184")
        e("v_mov_b32 v248, -1\nv_mov_b32 v249, -1\nv_mov_b32 v250, -1\nv_mov_b32 v251, -1")
        e("v_lshrrev_b32 v252, 3, v0\nv_lshlrev_b32 v252, 15, v252\nv_and_b32 v176, 7, v0\nv_lshl_add_u32 v252, v176, 4, v252")
        e(f"s_lshl_b32 s31, s{S_D0}, 6\nv_lshlrev_b32 v236, 4, v0\nv_mov_b32 v199, 0")
        e(f"s_lshl_b32 s32, s{S_D0}, 5\ns_cmp_lg_u32 s{S_WV}, 0\ns_cselect_b32 s32, 0x7f000000, s32")
    def conv(self, fillers=None, pre_start=None, pre_bar=None, post_bar=None):
        e = self.e
        ACC = 4
        FA = [40, 104]; FB = [72, 136]
        if pre_start: pre_start()
        e("s_waitcnt lgkmcnt(0)")
        e("s_barrier")
        self.stamp(5)
        p1 = self.lab("cp1"); jn = self.lab("cj")
        e(f"s_cmp_lg_u32 s{S_PAR}, 0")
        e(f"s_cbranch_scc1 {p1}")
        for par in range(2):
            for c in range(4):
                r = ACC + 4 * (4*par + c)
                e(f"ds_read_b128 v[{r}:{r+3}], v173 offset:{1024*c}")
            for r in range(16): e(f"v_mov_b32 v{ACC + 16*(1-par) + r}, 0")
            if par == 0:
                e(f"s_branch {jn}"); self.label(p1)
        self.label(jn)
        def loads(it):
            s = it & 1; L = []; o = 16 * (3 - it)
            tk = {}
            for k in range(8):
                tk[("B", k)] = self.tok(f"ds_read_b128 {vr(FB[s]+4*k,4)}, v172 offset:{512*k + 64*(3-it)}")
                b = 168 + (k >> 1); oo = o + (0 if k & 1 else 128)
                self.tok(f"ds_read2_b32 {vr(FA[s]+4*k,2)}, v{b} offset0:{oo} offset1:{oo+1}")
                tk[("A", k)] = self.tok(f"ds_read2_b32 {vr(FA[s]+4*k+2,2)}, v{b} offset0:{oo+2} offset1:{oo+3}")
            return tk
        pre = self.p.take()
        tks = [None] * 4
        tks[0] = loads(0)
        main = self.p.take()
        carry = []
        for it in range(4):
            nxt = []
            if it < 3:
                tks[it+1] = loads(it+1); nxt = self.p.take()
            s = it & 1
            order = sorted([(u, v) for u in range(8) for v in range(8 - u)], key=lambda t: (max(t), t[0]))
            seen = set(); k = 0
            for (u, v) in order:
                need = [t for t in (("A", u), ("B", v)) if t not in seen]
                if need:
                    self.wait(*[tks[it][t] for t in need]); seen |= set(need)
                cb = u + v
                e(f"v_mfma_f32_16x16x32_bf16 {vr(ACC+4*cb,4)}, {vr(FA[s]+4*u,4)}, {vr(FB[s]+4*v,4)}, {vr(ACC+4*cb,4)}")
                if nxt and ((it > 0 and (k % 3 != 2 or len(nxt) >= 35 - k)) or (it == 0 and k >= 10)):
                    self.p.put([nxt.pop(0)])
                k += 1
            self.p.put(nxt)
            seg = self.p.take()
            if it == 0: seg = main + seg; main = []
            carry = carry + (fillers.get(it, []) if fillers else [])
            seg, carry = merge(seg, carry, 8, pace=self.cfg["cpace"])
            if it in self.cfg.get('cflush', ()): seg += carry; carry = []
            main += seg
        self.p.put(pre + main)
        self.conv_left = carry
        self.stamp(6)
        if pre_bar: pre_bar()
        p1 = self.lab("ep1"); jn = self.lab("ej")
        e(f"s_cmp_lg_u32 s{S_PAR}, 0")
        e(f"s_cbranch_scc1 {p1}")
        for par in range(2):
            e("s_nop 7")
            for c in range(4):
                r = ACC + 4 * (4*(1-par) + c)
                e(f"ds_write_b128 v180, {vr(r,4)} offset:{1024*c}")
            e("s_waitcnt lgkmcnt(0)")
            e("s_barrier")
            for c in range(4): e(f"ds_read_b128 {vr(40+4*c,4)}, v181 offset:{1024*c}")
            for c in range(4):
                e(f"s_waitcnt lgkmcnt({3-c})")
                r = ACC + 4 * (4*par + c)
                e(f"v_pk_add_f32 {vr(40+4*c,2)}, {vr(40+4*c,2)}, {vr(r,2)}")
                e(f"v_pk_add_f32 {vr(42+4*c,2)}, {vr(42+4*c,2)}, {vr(r+2,2)}")
            if par == 0:
                e(f"s_branch {jn}"); self.label(p1)
        self.label(jn)
        sB = S_M + 8
        e(f"s_cmp_eq_u32 s{S_CH}, 0")
        e(f"s_cselect_b32 s{S_T0}, s{sB}, s{sB+1}")
        e(f"v_mov_b32 v38, s{S_T0}\nv_mov_b32 v39, s{S_T0}")
        if post_bar: post_bar()
        for pr in range(2):
            a = 40 + 8*pr
            d = 60 + 8*pr
            for h in range(4): e(f"v_pk_mul_f32 {vr(76+2*h,2)}, {vr(a+2*h,2)}, v[38:39]")
            for h in range(4): e(f"v_cvt_pk_bf16_f32 v{d+h}, v{76+2*h}, v{77+2*h}")
            for h in range(4): e(f"v_cvt_pk_bf16_f32 v{d+4+h}, v{a+2*h}, v{a+2*h+1}")
            e(f"v_permlane16_swap_b32 v{d}, v{d+2}\nv_permlane16_swap_b32 v{d+1}, v{d+3}")
            e(f"buffer_store_dwordx4 {vr(d,4)}, v182, s[{S_WS}:{S_WS+3}], s{28 + 2*pr} offen sc1")
            e(f"v_permlane16_swap_b32 v{d+4}, v{d+6}\nv_permlane16_swap_b32 v{d+5}, v{d+7}")
            self.x1st = self.tok(f"buffer_store_dwordx4 {vr(d+4,4)}, v182, s[{S_WS}:{S_WS+3}], s{27 + 2*pr} offen sc1")
        self.stamp(7)
    def g1_map(self):
        e = self.e
        if self.cfg["map8"]:
            e(f"s_lshr_b32 s{S_T0}, s{S_XCD}, 1\ns_mul_i32 s{S_T0}, s{S_T0}, 28\ns_add_u32 s{S_T0}, s{S_T0}, s{S_IDX}")
            e(f"s_and_b32 s{S_G1}, s{S_XCD}, 1\ns_lshl_b32 s{S_G1}, s{S_G1}, 3\ns_and_b32 s{S_G2}, s{S_T0}, 7\ns_add_u32 s{S_G1}, s{S_G1}, s{S_G2}")
            e(f"s_lshr_b32 s{S_G2}, s{S_T0}, 3")
        else:
            e(f"s_lshr_b32 s{S_G1}, s{S_XCD}, 1\ns_lshl_b32 s{S_G1}, s{S_G1}, 2")
            e(f"s_and_b32 s{S_T0}, s{S_IDX}, 3\ns_add_u32 s{S_G1}, s{S_G1}, s{S_T0}")
            e(f"s_and_b32 s{S_G2}, s{S_XCD}, 1\ns_mul_i32 s{S_G2}, s{S_G2}, 7")
            e(f"s_lshr_b32 s{S_T0}, s{S_IDX}, 2\ns_add_u32 s{S_G2}, s{S_G2}, s{S_T0}")
        e(f"s_lshl_b32 s15, s{S_XCD}, 2\ns_add_u32 s15, s15, s{S_IDX}\ns_sub_u32 s15, s15, 28")
        e(f"s_lshr_b32 s14, s15, 1\ns_and_b32 s13, s15, 1\ns_cmp_ge_u32 s{S_IDX}, 28")
        e(f"s_cselect_b32 s{S_G2}, s14, s{S_G2}\ns_cselect_b32 s{S_G1}, 0, s{S_G1}\ns_cselect_b32 s{S_G3}, s13, 0\ns_cselect_b32 s15, s15, 0")
        e(f"s_cmp_ge_u32 s15, 28\ns_cselect_b32 s10, 0, {hx(1835008)}\ns_mov_b32 s11, 0x20000")
        e(f"s_lshl_b32 s{S_G2}, s{S_G2}, 7")
        e(f"s_lshl_b32 s{S_T0}, s{S_WV}, 5\ns_add_u32 s{S_G2}, s{S_G2}, s{S_T0}")
    AX = 176
    BX = 184
    def g1_fold(self, g, acc):
        for t in range(2):
            self.e(f"v_mfma_f32_32x32x16_bf16 {vr(acc+16*t,16)}, {vr(self.AX+4*t,4)}, {vr(self.BX+4*g,4)}, {vr(acc+16*t,16)}")
    def g1_epilogue(self, g, acc, stat, split=False):
        e = self.e
        save = self.p.take()
        T = 148
        rG, kD = stat, stat+1
        for t in range(2):
            for half in range(2):
                regs = [4*half + j for j in range(4)]
                gq = [T + 8*half + j for j in range(4)]; q = [T + 8*half + 4 + j for j in range(4)]
                for j, r in enumerate(regs): e(f"v_mul_f32 v{gq[j]}, v{rG}, v{acc+16*t+r}")
                for j in range(4): e(f"v_fma_f32 v{q[j]}, -v{gq[j]}, v{gq[j]}, s{S_T3}")
                for j in range(4): e(f"v_mul_f32 v{q[j]}, v{gq[j]}, v{q[j]}")
                for j, r in enumerate(regs):
                    e(f"v_exp_f32 v{q[j]}, v{q[j]}")
                    e(f"v_mul_f32 v{gq[j]}, v{gq[j]}, v{acc+16*t+8+r}")
                for j in range(4): e(f"v_fma_f32 v{q[j]}, v{q[j]}, v{kD}, v{kD}")
                for j in range(4): e(f"v_rcp_f32 v{q[j]}, v{q[j]}")
                for j in range(4): e(f"v_mul_f32 v{gq[j]}, v{gq[j]}, v{q[j]}")
                e(f"v_cvt_pk_bf16_f32 v{172+2*half}, v{gq[0]}, v{gq[1]}")
                e(f"v_cvt_pk_bf16_f32 v{173+2*half}, v{gq[2]}, v{gq[3]}")
            e(f"s_add_u32 s101, s{S_T2}, {g*112*1024 + t*1024}")
            tk_ = self.tok(f"buffer_store_dwordx4 v[172:175], v147, s[{S_WS}:{S_WS+3}], s101 offen sc1")
        self.htok[g] = tk_
        out = self.p.take(); self.p.put(save)
        if split: return out[:len(out)//2], out[len(out)//2:]
        return out
    def g2_map(self):
        e = self.e
        e(f"s_lshl_b32 s{S_G1}, s{S_XCD}, 1\ns_bfe_u32 s44, s{S_IDX}, 0x10004\ns_add_u32 s{S_G1}, s{S_G1}, s44")
        e(f"s_lshl_b32 s{S_G1}, s{S_G1}, 2")
        e(f"s_bfe_u32 s44, s{S_IDX}, 0x10003")
        e(f"s_sub_u32 s{S_G2}, s{S_G1}, s44\ns_add_u32 s{S_G2}, s{S_G2}, 3")
        e(f"s_add_u32 s{S_G1}, s{S_G1}, s44")
        e(f"s_and_b32 s{S_G3}, s{S_IDX}, 7")
    XT = lambda self, g: (3 - g) * 32768
    S_HB = 81
    def x1s_issue(self, g):
        t = None
        for j in range(8):
            if j % 4 == 0:
                self.e(f"s_add_u32 m0, s{S_T1}, {self.XT(g) + j*1024}")
                self.e(f"s_add_u32 s13, s{S_T0}, {g*32768 + j*1024}")
            t = self.tok(f"buffer_load_dwordx4 v147, s[{S_WS}:{S_WS+3}], s13 offen offset:{(j%4)*1024} sc1 lds")
        return t
    def x1s_check(self, g, T, explicit=False):
        e = self.e
        ad = 146 if self.XT(g) < 65536 else 143
        tk = [self.tok(f"ds_read_b32 v{T+j}, v{ad} offset:{self.XT(g) % 65536 + j*1024}") for j in range(8)]
        if explicit: e("s_waitcnt lgkmcnt(0)")
        else: self.wait(tk[7])
        e(f"v_max3_u32 v{T}, v{T}, v{T+1}, v{T+2}\nv_max3_u32 v{T+3}, v{T+3}, v{T+4}, v{T+5}\nv_max3_u32 v{T}, v{T}, v{T+6}, v{T+7}\nv_max_u32 v{T}, v{T}, v{T+3}")
        e(f"v_cmp_eq_u32 vcc, -1, v{T}")
    def x1s_guard(self, g, T, tok):
        e = self.e
        rt = self.lab("xr"); lp = self.lab("xl"); bk = self.lab("xb")
        self.wait(tok)
        self.x1s_check(g, T)
        e(f"s_cbranch_vccnz {rt}")
        self.label(bk)
        def rout():
            self.label(rt)
            e(f"s_mov_b32 s{S_SPIN}, {self.cfg['spin']}")
            if self.cfg.get("stamps"): e(f"v_writelane_b32 v255, 1, {46 + g}")
            self.label(lp)
            self.x1s_issue(g)
            e("s_waitcnt vmcnt(0) lgkmcnt(0)")
            self.x1s_check(g, T, explicit=True)
            e("s_nop 1")
            e(f"s_cbranch_vccz {bk}")
            self.spin_check(lp)
            e(f"s_branch {bk}")
        o, _ = self.capture(rout); self.ool += o
    def modf_issue(self):
        t = None
        for v in range(2):
            for kq in range(4):
                self.e(f"s_mov_b32 s47, {WS_MODP + (kq*3072 + (3+v)*512)*8}")
                t = self.tok(f"buffer_load_dwordx4 {vr(200 + 16*v + 4*kq, 4)}, v236, s[{S_WS}:{S_WS+3}], s47 offen sc1")
        return t
    def xfill(self):
        e = self.e; t = None
        for base in (WS_X1S, WS_X1S + 32*32768, WS_X1, WS_X1 + 32*32768):
            e(f"s_add_u32 s101, s31, {hx(base)}")
            t = self.tok(f"buffer_store_dwordx4 v[248:251], v252, s[{S_WS}:{S_WS+3}], s101 offen sc1")
        return t
    def hfill(self):
        e = self.e
        e("v_mov_b32 v248, -1\nv_mov_b32 v249, -1\nv_mov_b32 v250, -1\nv_mov_b32 v251, -1")
        for g in (2, 3):
            e(f"s_add_u32 s101, s{self.S_HB}, {g*112*1024}")
            self.tok(f"buffer_store_dwordx4 v[248:251], v147, s[{S_WS}:{S_WS+3}], s101 offen sc1")
            self.tok(f"buffer_store_dwordx4 v[248:251], v147, s[{S_WS}:{S_WS+3}], s101 offen offset:1024 sc1")
    S_HF = 35
    def gate_pub(self, base=WS_FL1):
        self.e(f"s_add_u32 s101, s32, {base}")
        self.e(f"buffer_store_dword v253, v199, s[{S_WS}:{S_WS+3}], s101 offen sc1")
    S_FB = 3
    def hbase(self):
        e = self.e
        e(f"s_mul_i32 s{self.S_HB}, s{S_G1}, {4*112*1024}")
        e(f"s_lshl_b32 s101, s{S_G2}, 6")
        e(f"s_add_u32 s{self.S_HB}, s{self.S_HB}, s101")
        e(f"s_add_u32 s{self.S_HB}, s{self.S_HB}, {hx(WS_H)}")
        e(f"s_mul_i32 s{self.S_FB}, s{S_G1}, {4*56*64}")
        e(f"s_lshl_b32 s101, s{S_G2}, 1")
        e(f"s_add_u32 s{self.S_FB}, s{self.S_FB}, s101")
        e(f"s_add_u32 s{self.S_FB}, s{self.S_FB}, {WS_FL2}")
        e(f"s_cmp_ge_u32 s{S_IDX}, 28")
        e(f"s_cselect_b32 s{self.S_FB}, 0x7f000000, s{self.S_FB}")
    def hflag(self, g, vz, vt):
        self.wait(self.htok[g])
        self.e(f"s_add_u32 s101, s{self.S_FB}, {g*56*64}")
        self.e(f"buffer_store_dword v{vt}, v{vz}, s[{S_WS}:{S_WS+3}], s101 offen sc1")
    def capture(self, fn):
        keep = self.p.take(); r = fn(); out = self.p.take(); self.p.put(keep); return out, r
    def cap(self, fn): return self.capture(fn)[0]
    def guard(self, name, chk, reissue, cond="vccnz"):
        e = self.e
        rt = self.lab(name + "r"); lp = self.lab(name + "l"); bk = self.lab(name + "b")
        chk(False)
        e(f"s_cbranch_vccnz {rt}")
        self.label(bk)
        def rout():
            self.label(rt); e(f"s_mov_b32 s{S_SPIN}, {self.cfg['spin']}")
            if self.cfg.get("stamps"): e(f"v_writelane_b32 v255, 1, {52 + ['mf', 'gt', 'st', 'f0', 'lt', 'g2', 'fa', 'hc', 'rs'].index(name)}")
            self.label(lp)
            reissue(); chk(True); e("s_nop 1")
            e(f"s_cbranch_vccz {bk}"); self.spin_check(lp); e(f"s_branch {bk}")
        self.ool += self.cap(rout)

    def p0_issue(self):
        e = self.e; T = self.T = {}
        e(f"s_mov_b32 s{S_X}, s{P_X}\ns_mov_b32 s{S_X+1}, s{P_X+1}")
        self.tok(f"buffer_load_dwordx4 v[10:13], v9, s[{S_X}:{S_X+3}], s{S_T0} offen")
        T["xr"] = self.tok(f"buffer_load_dwordx4 v[14:17], v9, s[{S_X}:{S_X+3}], s{S_T0} offen offset:1024")
        self.tok(f"buffer_load_dwordx4 v3, s[{S_X}:{S_X+3}], s{S_T3} offen lds")
        T["xt"] = self.tok(f"buffer_load_dwordx4 v6, s[{S_X}:{S_X+3}], s{S_T3} offen offset:1024 lds")
        for i in range(6): T["ssm"] = self.tok(f"global_load_ushort v{18+i}, v8, s[{P_ARE+2*i}:{P_ARE+2*i+1}]")
        e(f"s_load_dword s{S_E}, s[{P_WS}:{P_WS+1}], 0")
        e(f"s_lshl_b32 s{S_T0}, s{S_D0}, 1")
        e(f"s_load_dword s{S_LDT}, s[{P_LDT}:{P_LDT+1}], s{S_T0}")
        e(f"s_load_dword s{S_DSK}, s[{P_DSK}:{P_DSK+1}], s{S_T0}")
        e(f"s_mov_b32 s{S_WM}, s{P_WM}\ns_mov_b32 s{S_WM+1}, s{P_WM+1}")
        e(f"s_cmp_ge_u32 s{S_M+1}, {24 if self.cfg['split'] else 99}\ns_cselect_b32 s{S_M+4}, 1, 0\ns_cmp_ge_u32 s2, 192\ns_cselect_b32 s{S_M+4}, 2, s{S_M+4}")
        T["c"] = self.tok(f"global_load_dword v186, v7, s[{P_C}:{P_C+1}]")
        self.wm_issue(0)
        e(f"s_bitcmp1_b32 s{S_WV}, 0\ns_cselect_b32 s8, s{P_WU}, s{P_WG}\ns_cselect_b32 s9, s{P_WU+1}, s{P_WG+1}")
        if self.cfg["touch"] == 4: self.touch_w()
    def wm_issue(self, which):
        e = self.e
        sk = self.lab("wm")
        e(f"s_cmp_lg_u32 s{S_M+4}, {which}\ns_cbranch_scc1 {sk}")
        e(f"s_lshl_b32 s{S_T1}, s{S_WV}, 12")
        for j in range(4):
            e(f"s_add_u32 m0, s{S_T1}, {L_MOD + 1024*j}")
            e(f"s_add_u32 s101, s{S_M+2}, {j*8*6144}")
            self.T["wm%d" % which] = self.tok(f"buffer_load_dwordx4 v33, s[{S_WM}:{S_WM+3}], s101 offen lds")
        jn = self.lab("wmj")
        self.label(jn)
        def alt():
            self.label(sk)
            for j in range(4): e(f"global_load_dword v32, v9, s[{P_C}:{P_C+1}]")
            e(f"s_branch {jn}")
        self.ool += self.cap(alt)

    def p0_stats(self):
        e = self.e
        e("v_mov_b32 v3, 0x3f803f80")
        self.wait(self.T["xr"])
        for i in range(4):
            c = lambda r: (f"v{r}" if i else "0")
            e(f"v_dot2_f32_bf16 v4, v{10+i}, v3, {c(4)}")
            e(f"v_dot2_f32_bf16 v5, v{10+i}, v{10+i}, {c(5)}")
            e(f"v_dot2_f32_bf16 v6, v{14+i}, v3, {c(6)}")
            e(f"v_dot2_f32_bf16 v7, v{14+i}, v{14+i}, {c(7)}")
        self.reduce16([4, 5, 6, 7])
        e("v_permlane16_swap_b32 v4, v5\nv_permlane16_swap_b32 v6, v7")
        e("v_add_f32 v4, v4, v5\nv_add_f32 v6, v6, v7")
        e("v_permlane32_swap_b32 v4, v6")
        e("v_add_f32 v4, v4, v6")
        e("v_mov_b32 v5, v4")
        e("v_permlane16_swap_b32 v4, v5")
        self.stat_finish(4, 5, 6, 7)
        e(f"v_mov_b32 v5, s{S_TAG}")
        e("v_lshrrev_b32 v6, 2, v1")
        e(f"s_lshr_b32 s{S_T0}, s2, 6\ns_lshl_b32 s{S_T0}, s{S_T0}, 2\ns_add_u32 s{S_T0}, s{S_T0}, s{S_WV}\ns_lshl_b32 s{S_T0}, s{S_T0}, 10")
        e(f"s_and_b32 s{S_T1}, s2, 63\ns_lshl_b32 s{S_T1}, s{S_T1}, 4\ns_add_u32 s{S_T0}, s{S_T0}, s{S_T1}\ns_add_u32 s{S_T0}, s{S_T0}, {WS_ST1}")
        e("s_mov_b32 exec_lo, 1\ns_mov_b32 exec_hi, 1")
        e(f"buffer_store_dwordx2 v[4:5], v6, s[{S_WS}:{S_WS+3}], s{S_T0} offen sc1")
        e("s_mov_b64 exec, -1")

    def p0_xb(self):
        e = self.e
        e("v_lshrrev_b32 v187, 2, v1\nv_lshlrev_b32 v187, 7, v187\nv_and_b32 v4, 3, v1\nv_lshl_add_u32 v187, v4, 3, v187")
        e("v_lshrrev_b32 v5, 4, v1\nv_lshlrev_b32 v3, 11, v5")
        e("v_bfe_u32 v4, v1, 1, 1\nv_lshl_add_u32 v3, v4, 10, v3")
        e("v_bfe_u32 v4, v1, 2, 2\nv_lshl_add_u32 v3, v4, 7, v3")
        e("v_and_b32 v4, 1, v1\nv_lshl_add_u32 v3, v4, 3, v3")
        e(f"s_lshl_b32 s{S_T1}, s{S_WV}, 5\ns_add_u32 s{S_T1}, s{S_T1}, {L_XT}\nv_add_u32 v188, s{S_T1}, v3")
        e("v_lshlrev_b32 v4, 10, v4\nv_lshl_add_u32 v4, v5, 5, v4")
        e("v_bfe_u32 v5, v1, 3, 1\nv_lshl_add_u32 v4, v5, 4, v4")
        e("v_bfe_u32 v5, v1, 1, 2\nv_lshl_add_u32 v189, v5, 14, v4")
        e(f"s_lshl_b32 s{S_T0}, s{S_XCD}, 19\ns_lshl_b32 s{S_T1}, s{S_WV}, 17\ns_add_u32 s{S_T0}, s{S_T0}, s{S_T1}")
        e(f"s_lshr_b32 s{S_T1}, s{S_IDX}, 3\ns_lshl_b32 s{S_T1}, s{S_T1}, 12\ns_add_u32 s{S_T0}, s{S_T0}, s{S_T1}")
        e(f"s_and_b32 s{S_T1}, s{S_IDX}, 7\ns_lshl_b32 s{S_T1}, s{S_T1}, 7\ns_add_u32 s{S_T0}, s{S_T0}, s{S_T1}\ns_add_u32 s46, s{S_T0}, {hx(WS_XB)}")
        e(f"s_add_u32 s47, s46, 0x10000")
    def p0_xb2(self):
        e = self.e
        for i in range(4): e(f"v_mov_b32 v{39+4*i}, s{S_TAG}")
        self.wait(self.T["xt"])
        e("s_barrier")
        tk = [self.tok(f"ds_read_b64_tr_b16 v[{36+4*k}:{37+4*k}], v188 offset:{512*(k&1) + 16*(k>>1)}") for k in range(4)]
        for k in range(4):
            self.wait(tk[k])
            e(f"v_mov_b32 v{38+4*k}, v{37+4*k}\nv_mov_b32 v{37+4*k}, s{S_TAG}")
            e(f"buffer_store_dwordx4 v[{36+4*k}:{39+4*k}], v189, s[{S_WS}:{S_WS+3}], s{46 + (k>>1)} offen offset:{2048*(k&1)} sc1")

    def p0_mod(self, which, nyoung, base=52, tokname=None):
        e = self.e
        skip = self.lab("nomod2")
        e(f"s_cmp_lg_u32 s{S_M+4}, {which}\ns_cbranch_scc1 {skip}")
        e("v_lshlrev_b32 v56, 16, v186\nv_and_b32 v57, 0xffff0000, v186")
        e(f"v_mul_f32 v58, {fl(-LOG2E)}, v56\nv_mul_f32 v59, {fl(-LOG2E)}, v57")
        e("v_exp_f32 v58, v58\nv_exp_f32 v59, v59")
        e("v_add_f32 v58, 1.0, v58\nv_add_f32 v59, 1.0, v59")
        e("v_rcp_f32 v58, v58\nv_rcp_f32 v59, v59")
        e("v_mul_f32 v56, v56, v58\nv_mul_f32 v57, v57, v59")
        e("v_cvt_pk_bf16_f32 v56, v56, v57")
        e(f"s_lshl_b32 s44, s{S_WV}, 8\ns_add_u32 s44, s44, {L_MOD + 16384}")
        e(f"v_lshl_add_u32 v57, v1, 2, s44")
        e("ds_write_b32 v57, v56")
        e("v_lshrrev_b32 v58, 4, v1")
        e(f"v_lshl_add_u32 v57, v58, 4, s44")
        e("v_lshl_add_u32 v59, v58, 9, v187")
        e(f"s_lshl_b32 s45, s{S_WV}, 5\ns_add_u32 s45, s45, {L_MOD}")
        e(f"v_add_u32 v59, s45, v59")
        self.p.wait_nt(self.T[tokname or "wm%d" % which])
        e("s_waitcnt lgkmcnt(0)\ns_barrier")
        for ks in range(4):
            e(f"ds_read_b128 v[{60+8*ks}:{63+8*ks}], v57 offset:{64*ks}")
            e(f"ds_read_b64_tr_b16 v[{64+8*ks}:{65+8*ks}], v59 offset:{4096*ks}")
            e(f"ds_read_b64_tr_b16 v[{66+8*ks}:{67+8*ks}], v59 offset:{4096*ks+512}")
        e(f"s_mul_i32 s44, s{S_M}, {3072*8}\ns_lshl_b32 s45, s{S_M+1}, 9\ns_add_u32 s44, s44, s45")
        e(f"s_lshl_b32 s45, s{S_WV}, 7\ns_add_u32 s44, s44, s45\ns_add_u32 s44, s44, {WS_MODP}")
        e("v_lshlrev_b32 v59, 3, v1")
        for ks in range(4):
            e(f"s_waitcnt lgkmcnt({9-3*ks})")
            e(f"v_mfma_f32_16x16x32_bf16 v[92:95], v[{60+8*ks}:{63+8*ks}], v[{64+8*ks}:{67+8*ks}], {'v[92:95]' if ks else '0'}")
        e("s_barrier")
        e(f"v_mov_b32 v93, s{S_TAG}")
        e("s_mov_b64 exec, 0xffff")
        self.p.nc(f"buffer_store_dwordx2 v[92:93], v59, s[{S_WS}:{S_WS+3}], s44 offen sc1")
        e("s_mov_b64 exec, -1")
        self.label(skip)

    def touch_w(self):
        e = self.e
        e(f"s_lshr_b32 s{S_T0}, s{S_WV}, 1\ns_lshl_b32 s{S_T1}, s2, 1\ns_add_u32 s{S_T0}, s{S_T0}, s{S_T1}\ns_mul_i32 s{S_T0}, s{S_T0}, {28*128}")
        e(f"v_min_u32 v3, 27, v1\nv_lshlrev_b32 v3, 7, v3\nv_add_u32 v3, s{S_T0}, v3")
        e("global_load_dword v198, v3, s[8:9]")
    def touch_wd(self, mode):
        e = self.e
        if mode == 1:
            e(f"s_sub_u32 s{S_T0}, s2, 192\ns_lshl_b32 s{S_T0}, s{S_T0}, 2\ns_add_u32 s{S_T0}, s{S_T0}, s{S_WV}\ns_mul_i32 s{S_T0}, s{S_T0}, {56*128}")
            e(f"s_cmp_lt_u32 s2, 192\ns_cselect_b32 s{S_T0}, 0x7f000000, s{S_T0}")
            e("v_min_u32 v197, 55, v1\nv_lshlrev_b32 v197, 7, v197")
        else:
            e(f"s_lshl_b32 s{S_T0}, s2, 2\ns_add_u32 s{S_T0}, s{S_T0}, s{S_WV}\ns_mul_i32 s{S_T0}, s{S_T0}, {14*128}")
            e("v_min_u32 v197, 13, v1\nv_lshlrev_b32 v197, 7, v197")
        e(f"buffer_load_dword v198, v197, s[{S_WD}:{S_WD+3}], s{S_T0} offen")

    def touch_wdx(self):
        e = self.e
        e(f"s_lshl_b32 s47, s{S_IDX}, 2\ns_add_u32 s47, s47, s{S_WV}\ns_mul_i32 s47, s47, {112*128}")
        e("v_min_u32 v138, 55, v1\nv_lshlrev_b32 v138, 7, v138")
        e(f"buffer_load_dword v139, v138, s[{S_WD}:{S_WD+3}], s47 offen")
        e(f"s_add_u32 s47, s47, {56*128}")
        e(f"buffer_load_dword v139, v138, s[{S_WD}:{S_WD+3}], s47 offen")

    def w_setup(self):
        e = self.e
        e("v_lshrrev_b32 v241, 4, v1\nv_mul_u32_u24 v240, 3584, v241")
        e(f"s_and_b32 s13, s{S_WV}, 1\nv_lshl_add_u32 v241, v241, 1, s13")
        e("v_bfe_u32 v242, v1, 1, 3\nv_xor_b32 v241, v241, v242\nv_lshl_add_u32 v240, v241, 5, v240")
        e("v_and_b32 v241, 1, v1\nv_lshl_add_u32 v240, v241, 4, v240")
        e(f"s_lshr_b32 s14, s{S_WV}, 1\ns_mul_i32 s15, s14, {8*3584}")
        e(f"s_and_b32 s101, s{S_G2}, 0xffffff80\ns_lshl_b32 s101, s101, 1\ns_add_u32 s15, s15, s101")
        e(f"v_add_u32 v240, s15, v240\nv_add_u32 v247, {4*3584 - 1024}, v240")
        e("s_lshl_b32 s12, s13, 12\ns_lshl_b32 s14, s14, 11\ns_add_u32 s12, s12, s14")
        e("v_bfe_u32 v241, v1, 4, 1\nv_bfe_u32 v242, v1, 2, 2")
        e("v_lshl_add_u32 v243, v242, 1, v241")
        e(f"s_lshl_b32 s13, s{S_WV}, 1\nv_xor_b32 v243, s13, v243\nv_lshlrev_b32 v243, 5, v243")
        e("v_lshl_add_u32 v243, v241, 12, v243\nv_lshl_add_u32 v243, v242, 8, v243")
        e("v_lshrrev_b32 v241, 5, v1\nv_lshl_add_u32 v243, v241, 11, v243")
        e("v_and_b32 v241, 1, v1\nv_lshl_add_u32 v243, v241, 4, v243")
        e("v_bfe_u32 v241, v1, 1, 1\nv_lshl_add_u32 v241, v241, 3, v243")
        e("v_xor_b32 v242, 32, v241")
        e("v_add_u32 v243, 0x10000, v241\nv_add_u32 v244, 0x10000, v242\nv_add_u32 v245, 0x20000, v241\nv_add_u32 v246, 0x20000, v242")
        self.wt = {}
    def w_rot(self):
        e = self.e
        e(f"s_and_b32 s26, s{S_G1}, {7 if self.cfg['rot'] else 0}\ns_mul_i32 s101, s{S_G3}, {16*16*3584}")
        for j in range(8): e(f"s_add_u32 s{18+j}, s26, {j}\ns_and_b32 s{18+j}, s{18+j}, 7\ns_mul_i32 s{18+j}, s{18+j}, {16*3584}\ns_add_u32 s{18+j}, s{18+j}, s101")
    def w_issue(self, ks):
        e = self.e
        if self.cfg.get('noch'):
            self.wt[ks] = None; e("s_nop 0\ns_nop 0\ns_nop 0\ns_nop 0"); return
        e(f"s_add_u32 m0, s12, {wslot(ks)}\ns_add_u32 s14, s{18 + (ks & 7)}, {(ks >> 3)*8*16*3584}")
        self.tok("buffer_load_dwordx4 v240, s[8:11], s14 offen lds")
        self.wt[ks] = self.tok("buffer_load_dwordx4 v247, s[8:11], s14 offen offset:1024 lds")
    def w_read(self, ks):
        b = wslot(ks); t_ = None
        for t in range(2):
            for i in range(2):
                o = b + 1024*i
                t_ = self.tok(f"ds_read_b64_tr_b16 {ar((t*32+ks)*4+2*i,2)}, v{241 + 2*(o >> 16) + t} offset:{o & 0xffff}")
        return t_
    def w_issue_l(self, r):
        for ks in r: self.w_issue(ks)
    def w_chunks(self, r):
        out = []
        for ks in r:
            l = self.cap(lambda: self.w_issue(ks)); out += [l[:3], l[3:]]
        return out
    def w_read_l(self, r):
        t = None
        for ks in r: t = self.w_read(ks)
        return t

    U1 = 176; U2 = 208
    def modf_chk_only(self):
        e = self.e
        def chk(ex):
            for i in range(8):
                e(f"v_min3_u32 v232, v{201+4*i}, v{203+4*i}, {'v232' if i else 'v201'}\nv_max3_u32 v233, v{201+4*i}, v{203+4*i}, {'v233' if i else 'v201'}")
            e(f"v_xor_b32 v232, s{S_TAG}, v232\nv_xor_b32 v233, s{S_TAG}, v233\nv_or_b32 v232, v232, v233\nv_cmp_ne_u32 vcc, 0, v232")
        self.guard("mf", chk, lambda: (self.modf_issue(), e("s_waitcnt vmcnt(0)")))
    def gate_issue(self, base=WS_FL1):
        self.e(f"v_lshlrev_b32 v235, 6, v0\ns_mov_b32 s101, {base}")
        return self.tok(f"buffer_load_dword v234, v235, s[{S_WS}:{S_WS+3}], s101 offen sc1")
    def gate_check(self, tok):
        self.wait(tok)
        self.guard("gt", lambda ex: self.e(f"v_cmp_ne_u32 vcc, s{S_TAG}, v234"), lambda: (self.gate_issue(), self.e("s_waitcnt vmcnt(0)")))
    def u_addr(self, v, t):
        e = self.e
        e(f"v_bfe_u32 v{v}, v1, 4, 1\nv_mul_u32_u24 v{v}, {1792*16}, v{v}")
        e(f"v_bfe_u32 v{t}, v1, 2, 1\nv_lshl_add_u32 v{v}, v{t}, 7, v{v}")
        e(f"v_bfe_u32 v{t}, v1, 3, 1\nv_lshl_add_u32 v{v}, v{t}, 6, v{v}")
        e(f"v_and_b32 v{t}, 3, v1\nv_lshl_add_u32 v{v}, v{t}, 4, v{v}")
    def u_job(self):
        e = self.e
        self.modf_chk_only()
        for v in range(2):
            for c_ in (0, 2):
                b_ = 200 + 16*v + c_
                e(f"v_add_f32 v{b_}, v{b_}, v{b_+4}\nv_add_f32 v{b_+8}, v{b_+8}, v{b_+12}\nv_add_f32 v{b_}, v{b_}, v{b_+8}")
        e("v_cvt_pk_bf16_f32 v7, v200, v202\nv_cvt_pk_bf16_f32 v5, v216, v218")
        e("v_lshlrev_b32 v8, 16, v5\nv_and_b32 v9, 0xffff0000, v5\nv_add_f32 v8, 1.0, v8\nv_add_f32 v9, 1.0, v9\nv_cvt_pk_bf16_f32 v5, v8, v9")
        e(f"v_lshlrev_b32 v3, 2, v0\nv_add_u32 v3, {L_SS}, v3")
        e("ds_write2st64_b32 v3, v5, v7 offset0:0 offset1:4")
        e("v_and_b32 v2, 1, v1\nv_lshlrev_b32 v2, 10, v2\nv_lshrrev_b32 v4, 5, v1\nv_lshl_add_u32 v2, v4, 4, v2")
        e(f"s_lshl_b32 s101, s{S_G3}, 9\ns_add_u32 s101, s101, {L_SS}\nv_add_u32 v2, s101, v2")
        e("s_waitcnt vmcnt(4) lgkmcnt(0)\ns_barrier")
        for ks in range(self.cfg["nrec"], 16): self.w_read(ks)
        for ks in range(16): e(f"ds_read_b128 {vr(100+4*ks,4)}, v2 offset:{32*ks}")
        self.u_addr(40, 41)
        e(f"s_mul_i32 s101, s{S_G3}, {2*1792*16}\ns_lshl_b32 s44, s{S_G2}, 4\ns_add_u32 s101, s101, s44\ns_add_u32 s101, s101, {WS_U}")
        e("s_cmp_eq_u32 s10, 0\ns_cselect_b32 s101, 0x7f000000, s101")
        e("s_waitcnt lgkmcnt(0)")
        for ks in range(16):
            for t in range(2):
                acc = vr(4 + 16*t, 16)
                e(f"v_mfma_f32_32x32x16_bf16 {acc}, {vr(100+4*ks,4)}, {ar((t*32+ks)*4,4)}, {acc if ks else '0'}")
        for t in range(2):
            e(f"v_mov_b32 v{44+4*t}, v{4+16*t}\nv_mov_b32 v{45+4*t}, s{S_TAG}\nv_mov_b32 v{46+4*t}, v{5+16*t}\nv_mov_b32 v{47+4*t}, s{S_TAG}")
        e("s_mov_b32 exec_hi, 0")
        for t in range(2): e(f"buffer_store_dwordx4 {vr(44+4*t,4)}, v40, s[{S_WS}:{S_WS+3}], s101 offen offset:{256*t} sc1")
        e("s_mov_b32 exec_hi, -1")

    def shadow1(self):
        e = self.e; c = self.cfg; cap = self.cap
        nr = c["nrec"]; n1 = 13 + nr
        assert nr == 8
        self.w_read_l(range(nr, 13))
        e(f"s_lshl_b32 s{S_T1}, s{S_WV}, 13")
        e(f"s_lshl_b32 s33, s{S_G1}, 10\ns_add_u32 s33, s33, {WS_ST2}")
        e("v_lshlrev_b32 v147, 4, v1")
        e(f"v_add_u32 v146, s{S_T1}, v147\nv_add_u32 v143, 0x10000, v146")
        e(f"s_lshl_b32 s{S_T0}, s{S_G1}, 17\ns_add_u32 s{S_T0}, s{S_T0}, s{S_T1}\ns_add_u32 s{S_T0}, s{S_T0}, {hx(WS_X1S)}")
        self.wait(self.wt[n1-1])
        e("s_waitcnt lgkmcnt(0)\ns_barrier")
        self.stamp(8)
        r = self.w_read_l(range(13, n1))
        self.w_issue_l(range(n1, 26))
        tg = self.gtok or self.gate_issue()
        e("v_lshrrev_b32 v144, 5, v1\nv_lshlrev_b32 v144, 9, v144")
        e("v_bfe_u32 v145, v1, 2, 2\nv_lshl_add_u32 v144, v145, 6, v144")
        e("v_bfe_u32 v145, v1, 4, 1\nv_lshl_add_u32 v144, v145, 5, v144")
        e("v_and_b32 v145, 3, v1\nv_lshl_add_u32 v144, v145, 3, v144")
        e("v_add_u32 v144, 0x10000, v144")
        for j in range(8): e(f"s_add_u32 s101, s26, {j}\ns_and_b32 s101, s101, 7\nv_lshl_add_u32 v{BA[j]}, s101, 10, v144")
        e("v_and_b32 v145, 31, v1\nv_lshlrev_b32 v145, 3, v145")
        for r_ in range(4): e(f"v_mov_b32 v{self.BX+4*r_+2}, 0\nv_mov_b32 v{self.BX+4*r_+3}, 0")
        e(f"v_mov_b32 v{self.AX+2}, 0\nv_mov_b32 v{self.AX+3}, 0\nv_mov_b32 v{self.AX+6}, 0\nv_mov_b32 v{self.AX+7}, 0\nv_mov_b32 v252, 0")
        self.u_addr(138, 139)
        e(f"s_lshl_b32 s35, s{S_G2}, 4\ns_add_u32 s35, s35, {WS_U}\ns_add_u32 s34, s35, {2*1792*16}")
        self.wd_setup_s()
        self.wait(r)
        e("s_barrier")
        self.w_issue_l(range(26, 26 + c["wx"]))
        self.gate_check(tg)
        self.stamp(27)
        self.xt = {}
        self.xt[0] = self.x1s_issue(0)
        self.xt[1] = self.x1s_issue(1)
        self.w_issue_l(range(26 + c["wx"], 32))
        self.g2_setup()
        self.stamp(9)
        self.x1s_guard(0, 148, self.xt[0])
        e("s_waitcnt lgkmcnt(0)\ns_barrier")
        self.stamp(12)

    def stats2_job(self):
        e = self.e
        e(f"s_lshl_b32 s{S_T2}, s{S_XCD}, 2\ns_add_u32 s{S_T2}, s{S_T2}, s{S_IDX}\ns_sub_u32 s{S_T2}, s{S_T2}, 28")
        e(f"s_lshl_b32 s{S_T1}, s{S_WV}, 13")
        e(f"s_lshl_b32 s{S_T0}, s{S_T2}, 16\ns_add_u32 s{S_T0}, s{S_T0}, s{S_T1}\ns_add_u32 s{S_T0}, s{S_T0}, {hx(WS_X1)}")
        e("v_lshlrev_b32 v147, 4, v1\nv_lshlrev_b32 v146, 7, v1")
        e("v_lshrrev_b32 v144, 5, v1\nv_lshlrev_b32 v144, 9, v144")
        e("v_bfe_u32 v145, v1, 2, 2\nv_lshl_add_u32 v144, v145, 6, v144")
        e("v_bfe_u32 v145, v1, 4, 1\nv_lshl_add_u32 v144, v145, 5, v144")
        e("v_and_b32 v145, 3, v1\nv_lshl_add_u32 v144, v145, 3, v144")
        e(f"s_lshl_b32 s{S_T1}, s{S_WV}, 14\nv_add_u32 v144, s{S_T1}, v144")
        e("v_mov_b32 v5, 0x3f803f80")
        e("s_waitcnt vmcnt(0)\ns_barrier")
        self.gate_issue(); e("s_waitcnt vmcnt(0)")
        self.guard("g2", lambda ex: e(f"v_cmp_ne_u32 vcc, s{S_TAG}, v234"), lambda: (self.gate_issue(), e("s_waitcnt vmcnt(0)")))
        e(f"s_mov_b32 s{S_SPIN}, {self.cfg['spin']}")
        lp = self.lab("pj"); go = self.lab("pg"); ok = self.lab("pk")
        self.label(lp)
        e(f"s_add_u32 s101, s{S_T0}, 32768")
        e(f"buffer_load_dword v6, v146, s[{S_WS}:{S_WS+3}], s{S_T0} offen sc1")
        e(f"buffer_load_dword v7, v146, s[{S_WS}:{S_WS+3}], s101 offen offset:64 sc1")
        e("s_waitcnt vmcnt(0)\nv_max_u32 v6, v6, v7\nv_cmp_eq_u32 vcc, -1, v6\ns_nop 1")
        e(f"s_cbranch_vccz {go}")
        self.spin_check(lp)
        e(f"s_mov_b32 s{S_SPIN}, 1")
        self.label(go)
        for b in range(2):
            for j in range(8):
                e(f"s_add_u32 m0, s{S_T1}, {b*8192 + j*1024}\ns_add_u32 s101, s{S_T0}, {b*32768 + j*1024}")
                e(f"buffer_load_dwordx4 v147, s[{S_WS}:{S_WS+3}], s101 offen sc1 lds")
        for b in range(2):
            e(f"s_waitcnt vmcnt({8*(1-b)})")
            for j in range(16): e(f"ds_read_b64_tr_b16 {vr(40+2*j,2)}, v144 offset:{b*8192 + (j>>1)*1024 + (j&1)*256}")
            for j in range(32):
                if j % 8 == 0: e(f"s_waitcnt lgkmcnt({12 - j//2})")
                e(f"v_dot2_f32_bf16 v{8+2*b}, v{40+j}, v5, {'v%d' % (8+2*b) if j else '0'}")
                e(f"v_dot2_f32_bf16 v{9+2*b}, v{40+j}, v{40+j}, {'v%d' % (9+2*b) if j else '0'}")
        e("s_nop 2\nv_add_f32 v6, v9, v11\nv_cmp_u_f32 vcc, v6, v6\ns_nop 1")
        e(f"s_cbranch_vccz {ok}")
        self.spin_check(lp)
        self.label(ok)
        e("v_permlane32_swap_b32 v8, v10\nv_permlane32_swap_b32 v9, v11")
        e("v_add_f32 v8, v8, v10\nv_add_f32 v9, v9, v11")
        e(f"s_lshl_b32 s101, s{S_WV}, 9\ns_add_u32 s101, s101, {L_SS}")
        e("v_lshlrev_b32 v12, 3, v1\nv_add_u32 v13, s101, v12")
        e("ds_write_b64 v13, v[8:9]")
        e(f"v_add_u32 v13, {L_SS}, v12")
        e("s_waitcnt lgkmcnt(0)\ns_barrier")
        sk = self.lab("s2w")
        e(f"s_cmp_lg_u32 s{S_WV}, 0\ns_cbranch_scc1 {sk}")
        for w in range(4): e(f"ds_read_b64 v[{14+2*w}:{15+2*w}], v13 offset:{512*w}")
        e("s_waitcnt lgkmcnt(0)")
        e("v_pk_add_f32 v[14:15], v[14:15], v[16:17]\nv_pk_add_f32 v[18:19], v[18:19], v[20:21]\nv_pk_add_f32 v[14:15], v[14:15], v[18:19]")
        self.stat_finish(14, 15, 16, 17)
        e(f"v_mov_b32 v15, s{S_TAG}")
        e(f"s_lshl_b32 s101, s{S_T2}, 9\ns_add_u32 s101, s101, {WS_ST2}")
        e(f"buffer_store_dwordx2 v[14:15], v12, s[{S_WS}:{S_WS+3}], s101 offen sc1")
        self.label(sk)
        e("s_barrier")

    def wd_setup_s(self):
        e = self.e
        e(f"s_mul_i32 s{S_LDT}, s{S_WV}, {448*1024}")
        e(f"s_and_b32 s101, s{S_IDX}, 7\ns_lshl_b32 s101, s101, 7\ns_add_u32 s{S_LDT}, s{S_LDT}, s101")
        e(f"s_lshr_b32 s36, s{S_IDX}, 3\ns_lshl_b32 s36, s36, 1\ns_add_u32 s36, s36, s{S_IDX}\ns_and_b32 s36, s36, {7 if self.cfg['rot2'] else 0}")
        e("s_cmp_eq_u32 s36, 7\ns_cselect_b32 s36, 0, s36\ns_lshl_b32 s36, s36, 10")
        for j in range(1, 7): e(f"s_add_u32 s{36+j}, s{35+j}, 1024\ns_cmp_eq_u32 s{36+j}, 7168\ns_cselect_b32 s{36+j}, 0, s{36+j}")
        for b_ in range(1, 4): e(f"s_add_u32 s{27+b_}, s{S_LDT}, {b_*7*16384}")
        e(f"s_mul_i32 s{S_M+8}, s{S_WV}, 6144\ns_add_u32 s{S_M+8}, s{S_M+8}, {L_SP}")
        e(f"s_lshl_b32 s{S_M+9}, s{S_WV}, 13")
    def wd_setup_v(self):
        e = self.e
        e("v_lshrrev_b32 v240, 3, v1")
        e("v_bfe_u32 v241, v1, 4, 1\nv_lshlrev_b32 v241, 2, v241")
        e("v_and_b32 v242, 7, v1\nv_xor_b32 v241, v241, v242")
        e("v_lshlrev_b32 v240, 10, v240\nv_lshl_add_u32 v240, v241, 4, v240")
        e(f"v_add_u32 v241, {8192 - 1024}, v240")
        e("v_lshrrev_b32 v242, 5, v1\nv_lshlrev_b32 v242, 10, v242")
        e("v_bfe_u32 v243, v1, 2, 2\nv_lshl_add_u32 v242, v243, 7, v242")
        e("v_bfe_u32 v243, v1, 3, 1\nv_lshl_add_u32 v242, v243, 6, v242")
        e("v_and_b32 v243, 1, v1\nv_lshl_add_u32 v242, v243, 5, v242")
        e("v_bfe_u32 v243, v1, 1, 1\nv_lshl_add_u32 v242, v243, 3, v242")
        e("v_bfe_u32 v243, v1, 4, 1\nv_lshl_add_u32 v242, v243, 4, v242")
        e(f"v_add_u32 v244, s{S_M+9}, v242\nv_xor_b32 v245, 64, v244\nv_add_u32 v246, 0x10000, v244\nv_add_u32 v247, 0x10000, v245")
        e(f"v_add_u32 v242, s{S_M+8}, v242\nv_xor_b32 v243, 64, v242")
    def wd_setup(self):
        self.wd_setup_s(); self.wd_setup_v()
    def wd_loc(self, ks):
        sl = ks % 15
        if sl < 3: return 0, 2048*sl
        q, r = divmod(sl - 3, 4)
        return 1, (3 - q)*32768 + 2048*r
    def wd_issue(self, ks):
        e = self.e
        r, o = self.wd_loc(ks)
        e(f"s_add_u32 m0, s{S_M+8+r}, {o}\ns_lshl4_add_u32 s15, s{36 + ks % 7}, s{S_LDT if ks < 7 else 27 + ks // 7}")
        self.tok(f"buffer_load_dwordx4 v240, s[{S_WD}:{S_WD+3}], s15 offen lds")
        self.wdt[ks] = self.tok(f"buffer_load_dwordx4 v241, s[{S_WD}:{S_WD+3}], s15 offen offset:1024 lds")
    def wd_chunks(self, r):
        out = []
        for ks in r:
            l = self.cap(lambda: self.wd_issue(ks)); out += [l[:3], l[3:]]
        return out
    def wd_read(self, ks):
        r, o = self.wd_loc(ks); t_ = None
        for t in range(2):
            for i in range(2):
                oo = o + 512*i
                reg = 242 if r == 0 else (244 if oo < 65536 else 246)
                t_ = self.tok(f"ds_read_b64_tr_b16 {ar((t*32+ks)*4+2*i,2)}, v{reg+t} offset:{oo & 0xffff}")
        return t_

    def gemm1f(self):
        e = self.e; c = self.cfg; cap = self.cap
        e(f"s_mov_b32 s{S_T2}, s{self.S_HB}\ns_mov_b32 s{S_T3}, {fl(-GC)}")
        ACC = [4, 36, 68]; BR = 100; R = 6
        seq = [(0, k) for k in range(16)] + [(1, k) for k in range(16)] + [(0, k) for k in range(16, 32)] + [(1, k) for k in range(16, 32)] + [(g, k) for g in (2, 3) for k in range(32)]
        def bread(n):
            g, ks = seq[n]; b = BR + 4*(n % R); base = self.XT(g); ad = BA[ks & 7]
            o = base % 65536 + (ks >> 3)*8192
            self.tok(f"ds_read_b64_tr_b16 {vr(b,2)}, v{ad} offset:{o}")
            t_ = self.tok(f"ds_read_b64_tr_b16 {vr(b+2,2)}, v{ad} offset:{o+256}")
            if g == 1 and ks >= 24: e(f"v_add_u32 v{ad}, 0xffff0000, v{ad}")
            return t_
        PF = R - 1
        tk = {}
        for n in range(PF): tk[n] = bread(n)
        ST = [128, 130, 132, 134]
        def st_issue():
            t = None
            for g in range(4):
                t = self.tok(f"buffer_load_dwordx2 {vr(ST[g],2)}, v145, s[{S_WS}:{S_WS+3}], s33 offen offset:{256*g} sc1")
            return t
        def st_chk(ex):
            e(f"v_min3_u32 v136, v{ST[0]+1}, v{ST[1]+1}, v{ST[2]+1}\nv_max3_u32 v137, v{ST[0]+1}, v{ST[1]+1}, v{ST[2]+1}")
            e(f"v_min_u32 v136, v136, v{ST[3]+1}\nv_max_u32 v137, v137, v{ST[3]+1}")
            e(f"v_xor_b32 v136, s{S_TAG}, v136\nv_xor_b32 v137, s{S_TAG}, v137\nv_or_b32 v136, v136, v137")
            e("v_cmp_ne_u32 vcc, 0, v136")
        def st_guard(tok):
            self.wait(tok)
            self.guard("st", st_chk, lambda: (st_issue(), e("s_waitcnt vmcnt(0)")))
            e("s_mov_b32 s44, 0x03020302\ns_mov_b32 s47, 0x01000100")
            for g in range(4):
                b = ST[g]; x = self.BX + 4*g
                e(f"v_lshlrev_b32 v{b+1}, 16, v{b}\nv_rcp_f32 v136, v{b+1}")
                e(f"v_perm_b32 v{x}, v{b}, v{b}, s44\nv_perm_b32 v{x+1}, v{b}, v{b}, s47")
                e(f"v_mul_f32 v{b}, {fl(GAM)}, v136\nv_xor_b32 v{x}, 0x80008000, v{x}\nv_mul_f32 v{b+1}, {fl(GAM)}, v{b+1}")
        UR = 200
        def u_issue():
            t_ = None
            for t in range(2):
                for h in range(2):
                    t_ = self.tok(f"buffer_load_dwordx4 {vr(UR+8*t+4*h,4)}, v138, s[{S_WS}:{S_WS+3}], s{35-h} offen offset:{256*t} sc1")
            return t_
        def u_chk(ex):
            for i in range(4): e(f"v_min3_u32 v136, v{UR+4*i+1}, v{UR+4*i+3}, {'v136' if i else 'v%d' % (UR+1)}\nv_max3_u32 v137, v{UR+4*i+1}, v{UR+4*i+3}, {'v137' if i else 'v%d' % (UR+1)}")
            e(f"v_xor_b32 v136, s{S_TAG}, v136\nv_xor_b32 v137, s{S_TAG}, v137\nv_or_b32 v136, v136, v137\nv_cmp_ne_u32 vcc, 0, v136")
        def u_guard(tok):
            self.wait(tok)
            self.guard("mf", u_chk, lambda: (u_issue(), e("s_waitcnt vmcnt(0)")))
            e("v_cmp_gt_u32 vcc, 32, v1")
            for t in range(2):
                for k in range(2):
                    u = UR + 8*t + 2*k; d = self.AX + 4*t + k
                    e(f"v_add_f32 v{u}, v{u}, v{u+4}\nv_cvt_pk_bf16_f32 v136, v{u}, v{u}\nv_and_b32 v136, 0xffff0000, v136\nv_sub_f32 v136, v{u}, v136")
                    e(f"v_cvt_pk_bf16_f32 v136, v{u}, v136\nv_cndmask_b32 v{d}, 0, v136, vcc")
        STN = [8, 16, 24, 32, 40, 48, 56, 64, 80, 96, 104, 112, 120]
        def steps(n0, n1):
            for n in range(n0, n1):
                g, ks = seq[n]
                if n in STN: self.stamp(30 + STN.index(n))
                self.wait(tk[n])
                for t in range(2):
                    acc = vr(ACC[g % 3] + 16*t, 16)
                    e(f"v_mfma_f32_32x32x16_bf16 {acc}, {ar((t*32+ks)*4,4)}, {vr(BR+4*(n%R),4)}, {acc if ks else '0'}")
                    if t == 0 and n + PF < 128: tk[n+PF] = bread(n+PF)
                    if g == 3 and t == 1 and ks in extra: extra[ks]()
                if ks == 31 and g: self.g1_fold(g, ACC[g % 3])
        extra = {}
        def seg(n0, n1, fill, flush=True, pace=None):
            m = cap(lambda: steps(n0, n1))
            m, left = merge(m, fill, 24, pace=pace or c["gpace"])
            self.p.put(m)
            if flush:
                if left: sys.stderr.write(f"flush {len(left)} at {n1}\n")
                self.p.put(left); return []
            return left
        xt = self.xt; hold = {}; self.wdt = {}; self.htok = {}
        xi = lambda g: cap(lambda: xt.__setitem__(g, self.x1s_issue(g)))
        bar = lambda: cap(lambda: e("s_barrier"))
        wdc = lambda r: sum(self.wd_chunks(r), [])
        seg(0, c["b1"] - 6, [])
        seg(c["b1"] - 6, c["b1"], cap(lambda: self.x1s_guard(1, 148, xt[1])))
        e("s_barrier")
        seg(c["b1"], c["b2"], cap(lambda: self.wait(self.w_read_l(range(21, 26)), self.wt[31])))
        e("s_barrier")
        seg(c["b2"], c["b3"], cap(lambda: hold.__setitem__("r", self.w_read_l(range(26, 32)))) + xi(2)[:6] + cap(lambda: self.wait(hold["r"])))
        e("s_barrier")
        xs = xi(2)[6:] + xi(3); wv_ = cap(self.wd_setup_v); xs2 = []
        for ins in xs:
            xs2.append(ins)
            if ins.text.startswith("buffer_"): xs2 += wv_[:2]; wv_ = wv_[2:]
        seg(c["b3"], c["sti"], xs2 + wv_)
        f = cap(lambda: (hold.__setitem__("u", u_issue()), hold.__setitem__("t", st_issue())))
        seg(c["sti"], c["stk"], f + wdc(range(3)), pace=1)
        self.stamp(13)
        f = cap(lambda: (u_guard(hold["u"]), st_guard(hold["t"])))
        pend = seg(c["stk"], 48, f + cap(self.hfill), flush=False)
        f = cap(lambda: (self.g1_fold(0, ACC[0]), self.x1s_guard(2, 148, xt[2]), self.x1s_guard(3, 148, xt[3])))
        seg(48, c["b4"], pend + f)
        e("s_barrier")
        pend = seg(c["b4"], 64, wdc(range(3, 7)) + self.g1_epilogue(0, ACC[0], ST[0]), flush=False)
        ep1 = self.g1_epilogue(1, ACC[1], ST[1]) + cap(lambda: self.hflag(0, 252, 253))
        pend = seg(64, 66, pend + ep1, flush=False)
        e("s_barrier")
        assert not any("lds" in i.text for i in pend if i.wait is None)
        n_ep1 = len(ep1)
        pend = seg(66, 96, wdc(range(7, 11)) + pend, flush=False)
        if len(pend) > n_ep1:
            self.p.put(pend[:len(pend) - n_ep1]); pend = pend[len(pend) - n_ep1:]
        ep2 = self.g1_epilogue(2, ACC[2], ST[2])
        pend = seg(96, 98, pend + ep2, flush=False); ep2 = []
        e("s_barrier")
        assert not any("lds" in i.text for i in pend if i.wait is None)
        self.rd = {}
        plan = {}
        for j in range(4): plan.setdefault(2 + j, []).append(("i", 11 + j))
        nrc = c["nrc"]
        for j in range(nrc):
            plan.setdefault(c["rc0"] + j*c["rcs"], []).append(("r", j))
            plan.setdefault(c["rc0"] + j*c["rcs"] + 2, []).append(("i", 15 + j))
        def mk(items):
            def f():
                for kind, k_ in items:
                    if kind == "f": hold["f0"] = self.fl_issue(0, 140, 144)
                    elif kind == "g":
                        self.wait(hold["f0"])
                        self.guard("f0", lambda ex: e(f"v_cmp_ne_u32 vcc, s{S_TAG}, v144"), lambda: (self.fl_issue(0, 140, 144), e("s_waitcnt vmcnt(0)")))
                    elif kind == "p": self.hflag(1, 252, 253)
                    elif kind == "r":
                        self.wait(self.wdt[k_]); self.rd[k_] = self.wd_read(k_)
                    else:
                        if k_ >= 15: self.wait(self.rd[k_ - 15])
                        self.wd_issue(k_)
            return f
        plan.setdefault(c["f0k"], []).append(("f", 0))
        plan.setdefault(c["p1k"], []).append(("p", 1))
        self.ht = {}
        for ks_, items in plan.items():
            assert ks_ < 32 and all(k_ < ks_ for kind, k_ in items if kind == "r")
            extra[ks_] = mk(items)
        pend = seg(98, 128, pend + ep2, flush=False)
        sys.stderr.write(f"tail leftover {len(pend)}\n")
        self.stamp(14)
        self.p.put(pend)
        e3 = self.g1_epilogue(3, ACC[0], ST[3])
        k_ = c["g0at"]
        self.p.put(e3[:k_])
        slow = self.lab("ts"); jn = self.lab("tj"); lp = self.lab("tl"); ok = self.lab("to")
        self.wait(hold["f0"])
        e(f"v_cmp_ne_u32 vcc, s{S_TAG}, v144\ns_cbranch_vccnz {slow}")
        hch = [cap(lambda: self.hl(0, ks, 147)) for ks in range(c["nh"])]
        self.p.put(weave(e3[k_:], hch, c["hw"]))
        self.label(jn)
        def rout():
            self.label(slow)
            if c.get("stamps"): e("v_writelane_b32 v255, 1, 55")
            self.p.put([Ins(i.text) for i in e3[k_:]])
            e(f"s_mov_b32 s{S_SPIN}, {c['spin']}")
            self.label(lp)
            self.fl_issue(0, 140, 144)
            e(f"s_waitcnt vmcnt(0)\nv_cmp_ne_u32 vcc, s{S_TAG}, v144\ns_nop 1\ns_cbranch_vccz {ok}")
            self.spin_check(lp)
            self.label(ok)
            for ch in hch: self.p.put([Ins(i.text) for i in ch])
            e(f"s_waitcnt vmcnt(0)\ns_branch {jn}")
        self.ool += cap(rout)
        self.stamp(15)

    HB = 68
    def HR(self, ks): return 68 + 4*ks if ks < 14 else (200 + 4*(ks-14) if ks < 24 else 124 + 4*(ks-24))
    def g2_setup(self):
        e = self.e
        self.g2_map()
        e(f"s_mul_i32 s{S_M+2}, s{S_WV}, {14*64}\ns_add_u32 s{S_M+2}, s{S_M+2}, {WS_FL2}")
        e(f"s_mul_i32 s{S_M+3}, s{S_G2}, {56*64}\ns_add_u32 s{S_M+3}, s{S_M+3}, s{S_M+2}")
        e(f"s_mul_i32 s44, s{S_G1}, {56*64}\ns_add_u32 s{S_M+2}, s{S_M+2}, s44")
        e(f"s_mul_i32 s{S_M+4}, s{S_G1}, {112*1024}\ns_mul_i32 s{S_M+5}, s{S_G2}, {112*1024}")
        e(f"s_mul_i32 s{S_M+6}, s{S_WV}, {28*1024}\ns_add_u32 s{S_M+6}, s{S_M+6}, {hx(WS_H)}")
        e(f"s_add_u32 s{S_M+4}, s{S_M+4}, s{S_M+6}\ns_add_u32 s{S_M+5}, s{S_M+5}, s{S_M+6}")
        for b_ in range(4): e(f"s_add_u32 s{18+b_}, s{S_M+4}, {b_*7168}\ns_add_u32 s{22+b_}, s{S_M+5}, {b_*7168}")
        e(f"s_lshr_b32 s45, s{S_WV}, 1\ns_sub_u32 s44, s{S_G2}, s{S_G1}\ns_mul_i32 s45, s45, s44\ns_add_u32 s45, s45, s{S_G1}")
        e(f"s_and_b32 s46, s{S_WV}, 1\ns_lshl_b32 s46, s46, 5\ns_lshl_b32 s44, s{S_G3}, 6\ns_add_u32 s46, s46, s44")
        e(f"s_lshl_b32 s{S_M}, s45, 15\ns_lshl_b32 s{S_M+1}, s46, 6\ns_add_u32 s{S_M}, s{S_M}, s{S_M+1}\ns_add_u32 s{S_M}, s{S_M}, {hx(WS_X1)}")
        e(f"s_lshl_b32 s{S_M+1}, s{S_WV}, 11\ns_add_u32 s{S_M+1}, s{S_M+1}, {L_XR2}")
        e("v_min_u32 v140, 13, v1\nv_lshlrev_b32 v140, 6, v140")
    def fl_issue(self, nt, va, vd): return self.tok(f"buffer_load_dword v{vd}, v{va}, s[{S_WS}:{S_WS+3}], s{S_M+2+nt} offen sc1")
    def hl(self, nt, ks, va):
        self.e(f"s_add_u32 s47, s{36 + ks % 7}, s{18 + 4*nt + ks // 7}")
        self.ht[(nt, ks)] = self.tok(f"buffer_load_dwordx4 {vr(self.HR(ks),4)}, v{va}, s[{S_WS}:{S_WS+3}], s47 offen sc1")
    def gemm2f(self):
        e = self.e; c = self.cfg; cap = self.cap
        HB = self.HB; NH = c["nh"]; nrc = c["nrc"]; rd = self.rd; ht = self.ht
        e(f"v_mov_b32 v182, v147\nv_min_u32 v183, 27, v1\nv_lshlrev_b32 v183, 10, v183")
        e("s_barrier")
        for ks in range(nrc, 15):
            self.wait(self.wdt[ks]); rd[ks] = self.wd_read(ks)
        self.stamp(16)
        order = []
        for ks in range(28):
            if ks >= 15 + nrc: order.append(("w", ks))
            if (0, ks) not in ht: order.append(("h", ks))
        NH = min([k for kind, k in order] + [27])
        def iss(it):
            if it[0] == "h": self.hl(0, it[1], 182)
            else:
                self.wait(rd[it[1] - 15]); self.wd_issue(it[1])
        def mm(nt, ks):
            for t in range(2):
                acc = vr(4 + 32*nt + 16*t, 16)
                e(f"v_mfma_f32_32x32x16_bf16 {acc}, {ar((t*32+ks)*4,4)}, {vr(self.HR(ks),4)}, {acc if ks else '0'}")
        probe = lambda: self.tok(f"buffer_load_dword v184, v183, s[{S_WS}:{S_WS+3}], s{S_M+5} offen sc1")
        rest = list(order)
        KC = c["kc"]; f1 = None
        def rdw(ks):
            if 15 <= ks < 28 and ks not in rd:
                self.wait(self.wdt[ks]); rd[ks] = self.wd_read(ks)
        for ks in range(KC):
            for _ in range(2):
                if rest: iss(rest.pop(0))
            if ks == c["kf"]: f1 = probe()
            rdw(ks + 1)
            self.wait(ht[(0, ks)], rd[ks]); mm(0, ks)
        assert not rest and f1 is not None
        slow = self.lab("g2slow"); jn = self.lab("g2j")
        self.wait(f1)
        e(f"v_cmp_eq_u32 vcc, -1, v184\ns_cbranch_vccnz {slow}")
        pendw = [ks for ks in range(15, 28) if ks not in rd]
        nx = 0
        for ks in range(KC, 28):
            for _ in range(c["nb"]):
                if nx < ks: self.hl(1, nx, 182); nx += 1
            rdw(ks + 1)
            self.wait(ht[(0, ks)], rd[ks]); mm(0, ks)
        while nx < 28: self.hl(1, nx, 182); nx += 1
        self.label(jn)
        keep = dict(ht)
        def rout():
            lp = self.lab("g2l"); ok = self.lab("g2ok")
            self.label(slow)
            e("s_waitcnt vmcnt(0)")
            for ks in pendw: self.wd_read(ks)
            probe()
            e("s_waitcnt lgkmcnt(0)")
            for ks in range(KC, 28): mm(0, ks)
            e(f"s_mov_b32 s{S_SPIN}, {self.cfg['spin']}")
            self.label(lp)
            e(f"s_waitcnt vmcnt(0)\nv_cmp_eq_u32 vcc, -1, v184\ns_nop 1\ns_cbranch_vccz {ok}")
            probe()
            self.spin_check(lp)
            e("s_waitcnt vmcnt(0)")
            self.label(ok)
            if c.get("stamps"): e("v_writelane_b32 v255, 1, 51")
            for ks in range(28): self.hl(1, ks, 182)
            e(f"s_branch {jn}")
        self.ool += cap(rout)
        ht.update(keep)
        self.stamp(19)
        def extras():
            e(f"s_mov_b32 m0, s{S_M+1}\ns_nop 0")
            self.tok(f"buffer_load_dwordx4 v182, s[{S_WS}:{S_WS+3}], s{S_M} offen sc1 lds")
            self.xr = self.tok(f"buffer_load_dwordx4 v182, s[{S_WS}:{S_WS+3}], s{S_M} offen offset:1024 sc1 lds")
            e("v_lshrrev_b32 v185, 5, v1\nv_lshlrev_b32 v185, 8, v185")
            e(f"s_lshl_b32 s{S_M+2}, s{S46}, 4\ns_add_u32 s{S_M+2}, s{S_M+2}, {WS_MODF + 8}")
            for j in range(16): self.gbt = self.tok(f"buffer_load_dword v{140+j}, v185, s[{S_WS}:{S_WS+3}], s{S_M+2} offen offset:{16*j} sc1")
        def wr(T):
            for j in range(4): e(f"ds_write_b128 v{186 + (T >> 1)}, {vr(4+16*T+4*j,4)} offset:{(T & 1)*32768 + 1024*j}")
        def addrs():
            e(f"v_add_u32 v186, s{S_M+9}, v182\nv_add_u32 v187, 0x10000, v186")
            e(f"s_lshl_b32 s{S_T0}, s{S_WV}, 15\nv_add_u32 v188, s{S_T0}, v182")
            e("v_lshrrev_b32 v248, 5, v1\nv_lshlrev_b32 v248, 10, v248")
            e("v_bfe_u32 v249, v1, 2, 2\nv_lshl_add_u32 v248, v249, 6, v248")
            e("v_bfe_u32 v249, v1, 4, 1\nv_lshl_add_u32 v248, v249, 5, v248")
            e("v_and_b32 v249, 3, v1\nv_lshl_add_u32 v248, v249, 3, v248")
            e(f"v_add_u32 v248, s{S_M+1}, v248")
            e("v_and_b32 v249, 31, v1\nv_lshlrev_b32 v249, 10, v249")
            e("v_lshrrev_b32 v250, 5, v1\nv_lshl_add_u32 v249, v250, 5, v249")
            e(f"s_lshl_b32 s{S_T0}, s{S45}, 15\ns_lshl_b32 s{S_T1}, s{S46}, 1\ns_add_u32 s{S_T0}, s{S_T0}, s{S_T1}")
        def resid():
            self.wait(self.xr)
            tk = [self.tok(f"ds_read_b64_tr_b16 {vr(172+2*j,2)}, v248 offset:{256*j}") for j in range(4)]
            self.wait(tk[3])
            def rchk(ex):
                e("v_pk_max_u16 v190, v172, v173")
                for j in range(2, 8): e(f"v_pk_max_u16 v190, v190, v{172+j}")
                e("v_lshrrev_b32 v191, 16, v190\nv_and_b32 v190, 0xffff, v190\nv_max_u32 v190, v190, v191\nv_cmp_eq_u32 vcc, 0xffff, v190")
            def rre():
                e(f"s_mov_b32 m0, s{S_M+1}\ns_nop 0")
                e(f"buffer_load_dwordx4 v182, s[{S_WS}:{S_WS+3}], s{S_M} offen sc1 lds\nbuffer_load_dwordx4 v182, s[{S_WS}:{S_WS+3}], s{S_M} offen offset:1024 sc1 lds\ns_waitcnt vmcnt(0)")
                for j in range(4): e(f"ds_read_b64_tr_b16 {vr(172+2*j,2)}, v248 offset:{256*j}")
                e("s_waitcnt lgkmcnt(0)")
            self.guard("rs", rchk, rre)
            for j in range(8): e(f"v_lshlrev_b32 v{156+2*j}, 16, v{172+j}\nv_and_b32 v{157+2*j}, 0xffff0000, v{172+j}")
        def nt1():
            for ks in range(28):
                if ks % 7 == 0:
                    def hchk(ex, k0=ks):
                        for j in range(7):
                            b_ = self.HR(k0 + j)
                            e(f"v_max3_u32 v189, v{b_}, v{b_+1}, {'v189' if j else '0'}\nv_max3_u32 v189, v{b_+2}, v{b_+3}, v189")
                        e("v_cmp_eq_u32 vcc, -1, v189")
                    def reis(k0=ks):
                        keep_ = dict(ht)
                        for j in range(7): self.hl(1, k0 + j, 182)
                        ht.update(keep_); e("s_waitcnt vmcnt(0)")
                    self.wait(ht[(1, ks + 6)])
                    self.guard("hc", hchk, reis)
                mm(1, ks)
        fill = cap(extras) + cap(addrs) + cap(lambda: (wr(0), wr(1))) + cap(resid)
        m, left = merge(cap(nt1), fill, 24, pace=1); self.p.put(m + left)
        self.stamp(17)
        wr(2); wr(3)
        e("s_waitcnt lgkmcnt(0)\ns_barrier")
        rt = {}
        for w in range(4):
            for j in range(4): rt[(w, j)] = self.tok(f"ds_read_b128 {vr(68+16*w+4*j,4)}, v188 offset:{8192*w + 1024*j}")
        self.wait(rt[(1, 3)])
        for j in range(8): e(f"v_pk_add_f32 {vr(68+2*j,2)}, {vr(68+2*j,2)}, {vr(84+2*j,2)}")
        self.wait(rt[(3, 3)], self.gbt)
        for j in range(8): e(f"v_pk_add_f32 {vr(100+2*j,2)}, {vr(100+2*j,2)}, {vr(116+2*j,2)}")
        for h in range(2):
            for j in range(4*h, 4*h+4): e(f"v_pk_add_f32 {vr(68+2*j,2)}, {vr(68+2*j,2)}, {vr(100+2*j,2)}")
            for j in range(4*h, 4*h+4): e(f"v_pk_fma_f32 {vr(68+2*j,2)}, {vr(68+2*j,2)}, {vr(140+2*j,2)}, {vr(156+2*j,2)}")
            for j in range(4*h, 4*h+4): e(f"v_cvt_pk_bf16_f32 v{24+j}, v{68+2*j}, v{69+2*j}")
            e(f"buffer_store_dwordx4 {vr(24+4*h,4)}, v249, s[{S_OUT}:{S_OUT+3}], s{S_T0} offen offset:{16*h}")
        self.stamp(18)

    def bump_epoch(self):
        e = self.e
        sk = self.lab("ep")
        e("s_cmp_lg_u32 s2, 0")
        e(f"s_cbranch_scc1 {sk}")
        e(f"s_add_u32 s{S_T0}, s{S_E}, 1")
        e(f"v_mov_b32 v3, s{S_T0}\nv_mov_b32 v4, 0")
        e("s_mov_b64 exec, 1")
        e(f"buffer_store_dword v3, v4, s[{S_WS}:{S_WS+3}], 0 offen sc1")
        e("s_mov_b64 exec, -1")
        self.label(sk)
    def finish(self):
        if self.cfg.get("hold"):
            self.label("F_hold")
            self.e(f"s_memrealtime s[{S_ST}:{S_ST+1}]\ns_waitcnt lgkmcnt(0)\ns_sub_u32 s{S_T0}, s{S_ST}, s34\ns_cmp_lt_u32 s{S_T0}, {self.cfg['hold']}\ns_cbranch_scc1 F_hold")
        self.stamp_flush()
        self.label(f"{self.cfg['uid']}_end")
        self.e("s_endpgm")
        ins = resolve(self.p.take()) + self.ool
        ins, n = pad_hazards(ins)
        check_labels(ins)
        return render(ins)
def kernel_text(name, body, vgpr=512, accum=256):
    return f""".text
.globl {name}
.p2align 8
.type {name},@function
{name}:
{body}
.section .rodata,"a"
.p2align 6
.amdhsa_kernel {name}
  .amdhsa_next_free_vgpr {vgpr}
  .amdhsa_next_free_sgpr 102
  .amdhsa_accum_offset {accum}
  .amdhsa_group_segment_fixed_size 0
  .amdhsa_kernarg_size 144
  .amdhsa_user_sgpr_count 2
  .amdhsa_user_sgpr_kernarg_segment_ptr 1
  .amdhsa_system_sgpr_workgroup_id_x 1
.end_amdhsa_kernel
"""

def build(stamps=False, over={}):
    hdr = open("adaLN_cond__ssm_conv_s4__glu_gated_geglu__prompt.s.ref").read().split("; Override launch")[0]
    cfg = dict(spin=200000, stamps=stamps, uid="F", b1=10, b2=17, b3=23, sti=35, stk=42, b4=54, wx=6, kc=22, kf=18, nb=4, nh=0, hw=11, nrc=11, rc0=3, rcs=2, f0k=29, p1k=16, g0at=12, twx=0, npre=16, ga=24, cpace=4, gpace=2, nb1=0, twd=2, touch=2, fpos=1, wa0=4, map8=1, rot=1, rot2=1, split=0, nbp=0, nb2=6, adapt=1, cpf=9, vmhi=28, nrec=8, wpre=12, itb=1)
    cfg.update(over)
    g = G(cfg); e = g.e
    g.prologue()
    g.p0_issue()
    g.srds_late()
    if cfg.get("tlb"):
        st = cfg["tlb"]
        npg = min(64, (0x1000000 >> st))
        e(f"v_min_u32 v3, {npg-1}, v1\nv_lshlrev_b32 v3, {st}, v3\nv_lshl_add_u32 v3, v2, 7, v3")
        e(f"buffer_load_dword v195, v3, s[{S_WS}:{S_WS+3}], 0 offen")
        e(f"buffer_load_dword v195, v3, s[{S_OUT}:{S_OUT+3}], 0 offen")
        e(f"buffer_load_dword v195, v3, s[{S_WD}:{S_WD+3}], 0 offen")
    g.g1_map(); g.w_setup(); g.hbase()
    g.w_rot(); g.conv_setup(); g.p0_xb()
    g.tag_ready(); g.stamp(1)
    g.kgen_pre()
    e(f"v_mov_b32 v253, s{S_TAG}")
    g.p0_stats(); g.stamp(2)
    g.p0_xb2(); g.stamp(23)
    g.wm_issue(1)
    hold = {}
    if cfg['touch'] == 2: g.touch_w()
    if cfg['twd'] == 1: g.touch_wd(1)
    g.wait(g.T["c"]); g.stamp(20)
    if cfg["adapt"]:
        ny = 1 + 4 + 4 + (3 if cfg.get('tlb') else 0) + (1 if cfg['touch'] == 2 else 0) + (1 if cfg['twd'] == 1 else 0)
        e(f"s_getreg_b32 s13, hwreg(HW_REG_IB_STS, 0, 4)")
        if stamps: e("v_writelane_b32 v255, s13, 61")
        e(f"s_cmp_le_u32 s13, {ny}\ns_cselect_b32 s13, 3, 0\ns_add_u32 s15, s{S_M+4}, s13\ns_mov_b32 s{S_M+4}, s15")
        g.p0_mod(3, 5, tokname="wm0")
    g.kgen_tab([])
    g.stamp(24)
    g.p0_mod(0, 5); g.stamp(22)
    if cfg["adapt"]: e(f"s_cmp_ge_u32 s{S_M+4}, 3\ns_cselect_b32 s13, 3, 0\ns_sub_u32 s{S_M+4}, s{S_M+4}, s13")
    if cfg['touch'] == 1: g.touch_w()
    nb1 = cfg["nb1"]
    if cfg['fpos'] == 1: hold['fill'] = g.xfill()
    g.kgen_post()
    g.w_issue_l(range(0, nb1))
    g.stamp(3)
    def fillch():
        if cfg['fpos'] == 1: return []
        f0, hold["fill"] = g.capture(g.xfill)
        return [f0[2*i:2*i+2] for i in range(4)]
    g.hbuild(after_first=lambda: (g.p0_mod(1, 0, base=60), g.w_issue_l(range(nb1, cfg['nbp']))), mid=lambda: fillch() + g.w_chunks(range(cfg['nbp'], cfg['nb2'])))
    sk = g.lab("hm")
    e(f"s_cmp_lt_u32 s{S_IDX}, 28\ns_cbranch_scc1 {sk}")
    for i in g.cap(g.modf_issue):
        if i.text.startswith("buffer_"): g.p.nc(i.text)
        else: g.p.put([i])
    g.label(sk)
    if cfg['touch'] == 3: g.touch_w()
    if cfg['twd'] == 2: g.touch_wd(2)
    cap = g.cap
    nb2 = cfg["nb2"]; nr = cfg["nrec"]
    fa = cap(lambda: g.w_issue_l(range(nb2, 13)))
    fb = [] if not nr else cap(lambda: (g.wait(g.wt[nr-1]), e("s_barrier"), hold.__setitem__("r", g.w_read_l(range(0, nr)))))
    if cfg['fpos'] == 1:
        fa = cap(g.gate_pub) + fa
        fc = cap(lambda: (g.wait(hold["r"]), e("s_barrier"), g.w_issue_l(range(13, 13 + nr))))
    else:
        fc = cap(lambda: (g.wait(hold["r"], hold["fill"]), e("s_barrier"), g.gate_pub(), g.w_issue_l(range(13, 13 + nr))))
    f6, g.gtok = g.capture(g.gate_issue) if cfg['fpos'] == 1 else ([], None)
    f5, hold["late"] = g.capture(g.late_issue)
    g.cfg["cflush"] = (3,)
    g.conv(fillers={0: fa, cfg["itb"]: fb + f5 + fc + cap(lambda: g.late_fin(hold["late"])) + f6}, pre_bar=lambda: g.wait(g.wt[12]))
    assert not any(i.text.startswith("s_barrier") for i in g.conv_left if i.wait is None), len(g.conv_left)
    sys.stderr.write(f"conv left {len(g.conv_left)}\n")
    g.p.put(g.conv_left)
    e(f"s_cmp_ge_u32 s{S_IDX}, 28\ns_cbranch_scc1 F_alt")
    g.modf_pub()
    g.shadow1()
    g.gemm1f()
    g.label("F_g2")
    def alt():
        g.label("F_alt")
        g.u_job(); g.modf_pub(); g.stamp(10)
        g.stats2_job(); g.stamp(11)
        g.wd_setup(); g.g2_setup()
        keep = dict(g.wdt); keep2 = dict(g.ht)
        for ks in range(15): g.wd_issue(ks)
        e("s_waitcnt vmcnt(0)")
        for ks in range(cfg["nrc"]): g.wd_read(ks)
        e("s_waitcnt lgkmcnt(0)")
        for ks in range(15, 15 + cfg["nrc"]): g.wd_issue(ks)
        g.fl_issue(0, 140, 144); e("s_waitcnt vmcnt(0)")
        g.guard("fa", lambda ex: e(f"v_cmp_ne_u32 vcc, s{S_TAG}, v144"), lambda: (g.fl_issue(0, 140, 144), e("s_waitcnt vmcnt(0)")))
        for (nt_, ks) in list(keep2): g.hl(0, ks, 147)
        g.wdt = keep; g.ht.update(keep2)
        e("s_waitcnt vmcnt(0)\ns_branch F_g2")
    g.ool += g.cap(alt)
    g.gemm2f(); g.bump_epoch()
    launch = f"; @launch grid=(256,1,1) block=(256,1,1) lds={LDS_BYTES}\n"
    return hdr + launch + '.amdgcn_target "amdgcn-amd-amdhsa--gfx950"\n' + kernel_text(KN, g.finish())

if __name__ == "__main__":
    over = {}
    for a in sys.argv[1:]:
        if "=" in a:
            k, v = a.split("="); over[k] = int(v)
    print(build(stamps="stamps" in sys.argv[1:], over=over))
```

```python
import sys, struct, math
from asmlib import *
KN = "adaLN_cond__ssm_conv_s4__glu_gated_geglu__prompt_kernel"
WS_ST1 = 0x1000; WS_MODP = 0x8000; WS_MODF = 0x20000; WS_ST2 = 0x24000
WS_FL1 = 0x28000; WS_FL3 = 0x2C000; WS_FL2 = 0x40000; WS_U = 0x80000; WS_XB = int(__import__('os').environ.get('XB', '0xC00000'), 0); WS_DBG = 0x1000000; WS_X1 = 0x100000; WS_X1S = 0x300000; WS_H = 0x500000; WS_SIZE = 0x1200000
L_TAB = 0; TABW = 17408; TPITCH = 272
L_K = 69632; KCH = 8320; KODD = 4164
L_HI = 86272; HCH = 4608
L_Z = 95488
L_MOD = 111872
L_SP = 131072
L_XT = 155648
L_SS = L_XT
L_XR2 = L_XT
LDS_BYTES = 163840
_POOL = [L_SP, L_SP + 8192, L_SP + 16384, L_MOD, L_MOD + 8192] + [L_TAB + 8192*i for i in range(8)]
def wslot(ks):
    if ks < 26: return _POOL[ks % 13]
    if ks < 29: return L_SP + 8192*(ks-26)
    return L_TAB + 8192*(ks-29)
S_WS = 4; S_WG = 8; S_WU = 12
P_X, P_ARE, P_AIM, P_BRE, P_BIM, P_CRE, P_CIM, P_LDT, P_DSK, P_BX, P_WG, P_WU, P_WD, P_C, P_WM, P_OUT, P_DBG, P_WS = [16 + 2 * i for i in range(18)]
S_X = 52; S_WM = 56; S_WD = 60; S_OUT = 64
S_TAG = 68; S_E = 69; S_WV = 70; S_D0 = 71; S_LDT = 72; S_DSK = 73
S_T0 = 74; S_T1 = 75; S_T2 = 76; S_T3 = 77; S_SPIN = 78; S_IDX = 79; S_XCD = 80
S_M = 82
S_EX = 94
S_ST = 96
S45 = 45; S46 = 46
S_CH = 16; S_PAR = 17
S_G1 = 98; S_G2 = 99; S_G3 = 100
SENT = 0xFFFFFFFF
BA = [124, 125, 126, 127, 141, 142, 2, 3]
def f2u(x): return struct.unpack("<I", struct.pack("<f", x))[0]
def hx(x): return "0x%08x" % (x & 0xFFFFFFFF)
def fl(x): return hx(f2u(x))
LOG2E = 1.4426950408889634
GAM = (2 * 0.7978845608028654 * LOG2E * 0.044715) ** (1.0 / 3)
GC = 2 * 0.7978845608028654 * LOG2E / GAM
def vr(b, n): return f"v[{b}:{b+n-1}]" if n > 1 else f"v{b}"
def ar(b, n): return f"a[{b}:{b+n-1}]" if n > 1 else f"a{b}"
def sr(b, n): return f"s[{b}:{b+n-1}]" if n > 1 else f"s{b}"
class G:
    def __init__(self, cfg):
        self.cfg = cfg; self.p = Prog(); self.nlab = 0; self.nstamp = 0; self.ool = []
    def lab(self, base):
        self.nlab += 1; return f"L{self.cfg['uid']}_{base}_{self.nlab}"
    def e(self, t): self.p.e(t)
    def tok(self, t): return self.p.tok(t)
    def wait(self, *t): self.p.wait(*t)
    def label(self, l): self.p.label(l)
    def stamp(self, i):
        if not self.cfg.get("stamps"): return
        e = self.e
        e(f"s_memtime s[{S_ST}:{S_ST+1}]")
        e("s_waitcnt lgkmcnt(0)")
        e(f"v_writelane_b32 v255, s{S_ST}, {i}")
    def stamp_flush(self):
        if not self.cfg.get("stamps"): return
        e = self.e
        e(f"s_memrealtime s[{S_ST}:{S_ST+1}]")
        e("s_waitcnt lgkmcnt(0)")
        e(f"v_writelane_b32 v255, s{S_ST}, 63")
        e(f"s_lshl_b32 s{S_T0}, s2, 10")
        e(f"s_add_u32 s{S_T0}, s{S_T0}, {WS_DBG + self.cfg.get('dbgoff', 0)}")
        e("v_lshlrev_b32 v254, 2, v0")
        e(f"buffer_store_dword v255, v254, s[{S_WS}:{S_WS+3}], s{S_T0} offen")
        if self.cfg.get("dbgout"):
            sk = self.lab("dbg")
            e(f"s_cmp_lg_u32 s2, {self.cfg['dbgout']}\ns_cbranch_scc1 {sk}\ns_cmp_lg_u32 s{S_WV}, 0\ns_cbranch_scc1 {sk}")
            e(f"v_readlane_b32 s{S_T1}, v255, 0\nv_readlane_b32 s{S_T2}, v255, 62\nv_readlane_b32 s{S_T3}, v255, 63\nv_mov_b32 v4, 0")
            for i, st in enumerate([1, 2, 23, 22, 21, 3, 4, 5, 6, 7, 12, 14, 16, 19, 18]):
                e(f"v_readlane_b32 s{S_T0}, v255, {st}\ns_sub_u32 s{S_T0}, s{S_T0}, s{S_T1}\nv_mov_b32 v3, s{S_T0}")
                e(f"global_store_dword v4, v3, s[{P_DBG}:{P_DBG+1}] offset:{4*i}")
            e(f"s_sub_u32 s{S_T0}, s{S_T3}, s{S_T2}\nv_mov_b32 v3, s{S_T0}")
            e(f"global_store_dword v4, v3, s[{P_DBG}:{P_DBG+1}] offset:60")
            self.label(sk)
    def srd(self, s, ptr, size):
        self.e(f"s_mov_b32 s{s}, s{ptr}\ns_mov_b32 s{s+1}, s{ptr+1}\ns_mov_b32 s{s+2}, {hx(size)}\ns_mov_b32 s{s+3}, 0x20000")
    def prologue(self):
        e = self.e
        e("s_cmp_ge_u32 s2, 256")
        e(f"s_cbranch_scc1 {self.cfg['uid']}_end")
        e("s_load_dwordx16 s[16:31], s[0:1], 0")
        e("s_load_dwordx16 s[32:47], s[0:1], 64")
        e("s_load_dwordx4 s[48:51], s[0:1], 128")
        if self.cfg.get("stamps"):
            e("v_mov_b32 v255, 0")
            e(f"s_memrealtime s[{S_ST}:{S_ST+1}]")
        if self.cfg.get("hold"): e("s_memrealtime s[34:35]" if False else "s_nop 0")
        if self.cfg.get("cpf"):
            n = self.cfg["cpf"]
            e("s_getpc_b64 s[4:5]\ns_and_b32 s4, s4, 0xffffff00")
            e(f"s_lshr_b32 s6, s2, 3\ns_mul_i32 s6, s6, {n*128}\nv_min_u32 v254, {n-1}, v0\nv_lshlrev_b32 v254, 7, v254\nv_add_u32 v254, s6, v254")
            e("global_load_dword v196, v254, s[4:5]")
        e("v_and_b32 v1, 63, v0")
        e("v_lshrrev_b32 v2, 6, v0")
        e(f"s_and_b32 s{S_XCD}, s2, 7")
        e(f"v_readfirstlane_b32 s{S_WV}, v2")
        e(f"s_lshr_b32 s{S_IDX}, s2, 3")
        e(f"s_lshl_b32 s{S_D0}, s{S_XCD}, 5")
        e(f"s_add_u32 s{S_D0}, s{S_D0}, s{S_IDX}")
        e(f"s_lshl_b32 s{S_D0}, s{S_D0}, 1")
        e(f"s_lshl_b32 s{S_T0}, s2, 13\ns_lshl_b32 s{S_T1}, s{S_WV}, 11\ns_add_u32 s{S_T0}, s{S_T0}, s{S_T1}")
        e("v_lshlrev_b32 v9, 4, v1")
        e("v_lshrrev_b32 v4, 3, v1\nv_and_b32 v5, 7, v1\nv_lshlrev_b32 v5, 4, v5\nv_lshl_add_u32 v3, v4, 10, v5")
        e(f"s_lshl_b32 s{S_T3}, s{S_IDX}, 16\ns_lshl_b32 s{S_T2}, s{S_XCD}, 7\ns_add_u32 s{S_T3}, s{S_T3}, s{S_T2}")
        e(f"s_lshl_b32 s{S_T2}, s{S_WV}, 14\ns_add_u32 s{S_T3}, s{S_T3}, s{S_T2}")
        e(f"s_add_u32 m0, s{S_T1}, {L_XT}")
        e(f"v_add_u32 v6, {8192 - 1024}, v3")
        e(f"s_lshl_b32 s{S_T2}, s{S_D0}, 8\nv_lshl_add_u32 v8, v0, 1, s{S_T2}")
        e(f"s_mul_i32 s{S_M}, s2, 1366\ns_lshr_b32 s{S_M}, s{S_M}, 16")
        e(f"s_mul_i32 s{S_M+2}, s{S_M}, 48\ns_sub_u32 s{S_M+1}, s2, s{S_M+2}")
        e(f"s_and_b32 s{S_M+2}, s{S_M}, 3\ns_lshl_b32 s{S_M+2}, s{S_M+2}, 8\nv_lshl_add_u32 v7, v1, 2, s{S_M+2}")
        e("v_mul_u32_u24 v33, 6144, v4\nv_add_u32 v33, v33, v5")
        e(f"s_mul_i32 s{S_M+2}, s{S_M}, {128*6144}\ns_lshl_b32 s{S_M+3}, s{S_M+1}, 7\ns_add_u32 s{S_M+2}, s{S_M+2}, s{S_M+3}")
        e(f"s_mul_i32 s{S_M+3}, s{S_WV}, {32*6144}\ns_add_u32 s{S_M+2}, s{S_M+2}, s{S_M+3}")
        e(f"s_mov_b32 s{S_X+2}, {hx(2097152)}\ns_mov_b32 s{S_X+3}, 0x20000\ns_mov_b32 s{S_WM+2}, {hx(3145728)}\ns_mov_b32 s{S_WM+3}, 0x20000")
        e("s_waitcnt lgkmcnt(0)")
        if self.cfg.get("stamps"):
            e(f"v_writelane_b32 v255, s{S_ST}, 62")
        if self.cfg.get("hold"): e("s_memrealtime s[34:35]")
        self.stamp(0)
    def srds_late(self):
        self.srd(S_WS, P_WS, WS_SIZE)
        self.srd(S_WD, P_WD, 1835008)
        self.srd(S_OUT, P_OUT, 2097152)
    def tag_ready(self):
        e = self.e
        e("s_waitcnt lgkmcnt(0)")
        e(f"s_mul_i32 s{S_TAG}, s{S_E}, 0x9E3779B1")
        e(f"s_add_u32 s{S_TAG}, s{S_TAG}, 0x7F4A7C15")
    def reduce16(self, regs):
        for ctl in ["quad_perm:[1,0,3,2]", "quad_perm:[2,3,0,1]", "row_half_mirror", "row_mirror"]:
            for r in regs:
                self.e(f"v_add_f32_dpp v{r}, v{r}, v{r} {ctl} row_mask:0xf bank_mask:0xf")
    def stat_finish(self, vs, vq, t0, t1):
        e = self.e
        e(f"v_mul_f32 v{vs}, {fl(1/512)}, v{vs}")
        e(f"v_mul_f32 v{t0}, v{vs}, v{vs}")
        e(f"v_mul_f32 v{vq}, {fl(1/512)}, v{vq}")
        e(f"v_sub_f32 v{vq}, v{vq}, v{t0}")
        e(f"v_max_f32 v{vq}, 0, v{vq}")
        e(f"v_cvt_pk_bf16_f32 v{t0}, v{vq}, v{vq}")
        e(f"v_and_b32 v{t0}, 0xffff0000, v{t0}")
        e(f"v_add_f32 v{t0}, {fl(1e-5)}, v{t0}")
        e(f"v_cvt_pk_bf16_f32 v{t0}, v{t0}, v{t0}")
        e(f"v_and_b32 v{t0}, 0xffff0000, v{t0}")
        e(f"v_sqrt_f32 v{t0}, v{t0}")
        e(f"v_cvt_pk_bf16_f32 v{vs}, v{t0}, v{vs}")
    def cmul_list(self, jobs):
        e = self.e; i = 0
        f1 = lambda d, a, b: f"v_pk_mul_f32 {vr(d,2)}, {vr(a,2)}, {vr(b,2)} op_sel:[0,0] op_sel_hi:[0,1]"
        f2 = lambda d, a, b: f"v_pk_fma_f32 {vr(d,2)}, {vr(a,2)}, {vr(b,2)}, {vr(d,2)} op_sel:[1,1,0] op_sel_hi:[1,0,1] neg_lo:[0,1,0]"
        while i < len(jobs):
            j = jobs[i]
            if i + 1 < len(jobs) and j[0] not in jobs[i+1][1:] and jobs[i+1][0] not in j:
                k = jobs[i+1]
                e(f1(*j)); e(f1(*k)); e(f2(*j)); e(f2(*k)); i += 2
            else:
                e(f1(*j)); e(f2(*j)); i += 1
    def kgen_pre(self):
        e = self.e
        e("v_mov_b32 v36, 0\nv_mov_b32 v37, 0\nv_mov_b32 v38, 0\nv_mov_b32 v39, 0")
        e("v_lshrrev_b32 v3, 5, v0")
        e(f"v_mul_u32_u24 v3, {HCH}, v3")
        e("v_and_b32 v4, 31, v0")
        e("v_lshl_add_u32 v3, v4, 4, v3")
        e(f"v_add_u32 v3, {L_HI}, v3")
        e("v_bfe_u32 v4, v0, 2, 2")
        e(f"v_mul_u32_u24 v4, 4160, v4")
        e("v_and_b32 v5, 3, v0")
        e("v_lshl_add_u32 v4, v5, 4, v4")
        e(f"v_add_u32 v4, {L_K + 4096}, v4")
        e("v_cmp_gt_u32 vcc, 64, v0")
        e("v_cndmask_b32 v3, v4, v3, vcc")
        e("v_cmp_gt_u32 vcc, 80, v0")
        e(f"s_and_saveexec_b64 s[{S_EX}:{S_EX+1}], vcc")
        zl = self.lab("z")
        e(f"s_cbranch_execz {zl}")
        e("ds_write_b128 v3, v[36:39]")
        self.label(zl)
        e(f"s_mov_b64 exec, s[{S_EX}:{S_EX+1}]")
        e(f"s_lshr_b32 s{S_T0}, s{S_WV}, 1")
        e(f"s_lshl_b32 s{S_T0}, s{S_T0}, 4")
        e(f"s_lshr_b32 s{S_T1}, s{S_LDT}, s{S_T0}")
        e(f"s_lshl_b32 s{S_T1}, s{S_T1}, 16")
        e(f"v_mov_b32 v3, {fl(LOG2E)}")
        e(f"v_mul_f32 v3, s{S_T1}, v3")
        e("v_exp_f32 v3, v3")
        e("v_cvt_pk_bf16_f32 v3, v3, v3")
        e("v_and_b32 v35, 0xffff0000, v3")
    def kgen_tab(self, chunks=()):
        e = self.e
        keep = self.p.take()
        for i in range(6): e(f"v_lshlrev_b32 v{26+i}, 16, v{18+i}")
        e("v_mul_f32 v26, v26, v35\nv_mul_f32 v27, v27, v35\nv_mul_f32 v28, v28, v35\nv_mul_f32 v29, v29, v35")
        e(f"v_mul_f32 v26, {fl(LOG2E)}, v26")
        e("v_mul_f32 v27, 0.15915494, v27")
        S = lambda j: 40 + 2 * j
        Gt = lambda T: 74 + 2 * (T - 1)
        Pn = lambda n: 88 + 2 * n
        S32, S64, S128 = 138, 140, 142
        def direct(dst, t, a, b, c):
            if t == 1:
                e(f"v_exp_f32 v{a}, v26\nv_fract_f32 v{b}, v27")
            else:
                e(f"v_mul_f32 v{a}, {fl(float(t))}, v26\nv_mul_f32 v{b}, {fl(float(t))}, v27")
                e(f"v_exp_f32 v{a}, v{a}\nv_fract_f32 v{b}, v{b}")
            e(f"v_cos_f32 v{c}, v{b}\nv_sin_f32 v{b}, v{b}\ns_nop 0")
            e(f"v_mul_f32 v{dst}, v{a}, v{c}\nv_mul_f32 v{dst+1}, v{a}, v{b}")
        e(f"s_mul_i32 s{S_T3}, s{S_WV}, {TABW}\ns_mov_b32 m0, s{S_T3}")
        st = {"n": 0, "q": []}
        NBAT = 8
        def flush():
            for ent_, r_ in st["q"]: e(f"ds_write_addtid_b32 v{r_} offset:{L_TAB + ent_*TPITCH}")
            st["q"] = []
        def pair(ent, jobs, srcs, neg=False):
            self.cmul_list(jobs)
            for i in range(2):
                pk = 128 + (st["n"] % NBAT); st["n"] += 1
                if srcs[i] is None: e(f"v_mov_b32 v{pk}, 0x3f80")
                else: e(f"v_cvt_pk_bf16_f32 v{pk}, v{srcs[i]}, {'-' if neg else ''}v{srcs[i]+1}")
                st["q"].append((ent + i, pk))
            if len(st["q"]) == NBAT: flush()
        direct(S(1), 1, 120, 121, 122)
        pair(0, [], [None, S(1)])
        direct(S(16), 16, 123, 124, 125)
        pair(2, [(S(2), S(1), S(1)), (Pn(0), 30, 28), (S(3), S(2), S(1))], [S(2), S(3)])
        direct(Gt(1), 256, 120, 121, 122)
        pair(48, [(Pn(1), Pn(0), S(16)), (S32, S(16), S(16))], [Pn(0), Pn(1)], True)
        pair(4, [(S(4), S(2), S(2)), (S(5), S(3), S(2))], [S(4), S(5)])
        pair(6, [(S(6), S(4), S(2)), (S(7), S(4), S(3))], [S(6), S(7)])
        pair(50, [(Pn(2), Pn(0), S32), (Pn(3), Pn(1), S32), (S64, S32, S32)], [Pn(2), Pn(3)], True)
        pair(8, [(S(8), S(4), S(4)), (S(9), S(5), S(4))], [S(8), S(9)])
        pair(10, [(S(10), S(8), S(2)), (S(11), S(8), S(3))], [S(10), S(11)])
        pair(52, [(Pn(4), Pn(0), S64), (Pn(5), Pn(1), S64)], [Pn(4), Pn(5)], True)
        pair(54, [(Pn(6), Pn(2), S64), (Pn(7), Pn(3), S64), (S128, S64, S64)], [Pn(6), Pn(7)], True)
        pair(12, [(S(12), S(8), S(4)), (S(13), S(8), S(5))], [S(12), S(13)])
        pair(14, [(S(14), S(8), S(6)), (S(15), S(8), S(7))], [S(14), S(15)])
        aux = [[(Gt(2), Gt(1), Gt(1))], [(Gt(3), Gt(2), Gt(1))], [(Gt(4), Gt(2), Gt(2))], []]
        for i in range(4):
            pair(56 + 2*i, [(Pn(8+2*i), Pn(2*i), S128), (Pn(9+2*i), Pn(2*i+1), S128)] + aux[i], [Pn(8+2*i), Pn(9+2*i)], True)
        ents = {0: [(1, 0), (1, 2), (1, 4), (1, 6), (1, 8), (4, 0), (4, 8), (4, 16)],
                1: [(1, 8), (1, 10), (1, 12), (1, 14), (1, 16), (5, 0), (5, 8), (5, 16)],
                2: [(2, 0), (2, 4), (2, 8), (2, 12), (2, 16), (6, 0), (6, 8), (6, 16)],
                3: [(3, 0), (3, 4), (3, 8), (3, 12), (3, 16), (7, 0), (7, 8), (7, 16)]}
        extra = {(0, 0): (Gt(5), Gt(4), Gt(1)), (2, 0): (Gt(6), Gt(4), Gt(2)), (3, 0): (Gt(7), Gt(4), Gt(3))}
        tb = 0
        for q in range(4):
            for h in range(4):
                two = ents[q][2*h:2*h+2]; base = 88 + 4*(tb & 3); tb += 1
                jobs = []; srcs = []
                for i, (T, j) in enumerate(two):
                    if j == 0: srcs.append(Gt(T))
                    else: jobs.append((base + 2*i, Gt(T), S(j))); srcs.append(base + 2*i)
                if (q, h) in extra: jobs.append(extra[(q, h)])
                pair(16 + 16*(h >> 1) + 4*q + 2*(h & 1), jobs, srcs)
        body = self.p.take()
        out = []; ci = 0; nb = 0
        for k_, ins in enumerate(body):
            out.append(ins)
            last = ins.text.startswith("ds_write_addtid") and (k_ + 1 == len(body) or not body[k_+1].text.startswith("ds_write_addtid"))
            if last:
                nb += 1
                if nb > self.cfg["wa0"] and ci < len(chunks):
                    out += chunks[ci] + chunks[ci+1] + [Ins(f"s_mov_b32 m0, s{S_T3}")]; ci += 2
        for c in chunks[ci:]: out += c
        self.p.put(keep + out)

    def kgen_post(self, post_b2=None):
        e = self.e
        e(f"s_lshr_b32 s{S_T2}, s{S_WV}, 1\ns_mul_i32 s{S_T0}, s{S_T2}, {2*TABW}")
        e(f"v_and_b32 v6, 15, v1\nv_mul_u32_u24 v3, {TPITCH}, v6")
        e("v_lshrrev_b32 v7, 4, v1\nv_lshl_add_u32 v3, v7, 4, v3")
        e(f"v_add_u32 v3, s{S_T0}, v3")
        e(f"s_and_b32 s{S_T1}, s{S_WV}, 1\ns_mul_i32 s{S_T1}, s{S_T1}, {16*TPITCH}\nv_add_u32 v4, s{S_T1}, v3")
        e(f"s_mul_i32 s{S_T2}, s{S_T2}, {KCH}\ns_add_u32 s{S_T2}, s{S_T2}, {L_K}")
        e(f"v_lshlrev_b32 v6, 5, v6\nv_sub_u32 v6, s{S_T2}, v6")
        e("v_lshlrev_b32 v9, 9, v7\nv_sub_u32 v9, v6, v9")
        e("s_waitcnt lgkmcnt(0)\ns_barrier")
        self.stamp(21)
        F = 40; toks = {}
        for ks in range(8):
            o = L_TAB + (ks >> 2)*TABW + (ks & 3)*64; r = F + 12*ks
            self.tok(f"ds_read_b128 {vr(r+8,4)}, v3 offset:{o + 48*TPITCH}")
            toks[(ks, 0)] = self.tok(f"ds_read_b128 {vr(r,4)}, v4 offset:{o}")
            toks[(ks, 1)] = self.tok(f"ds_read_b128 {vr(r+4,4)}, v3 offset:{o + 32*TPITCH}")
        A0 = 136; A2 = 140
        for ks in range(8):
            r = F + 12*ks
            for b, acc in ((0, A0), (1, A2)):
                self.wait(toks[(ks, b)])
                e(f"v_mfma_f32_16x16x32_bf16 {vr(acc,4)}, {vr(r+4*b,4)}, {vr(r+8,4)}, {vr(acc,4) if ks else '0'}")
        h1 = self.lab("kh1"); jn = self.lab("kj")
        e(f"s_bitcmp1_b32 s{S_WV}, 0\ns_cbranch_scc1 {h1}")
        def cv(d, lst):
            for i, (a, b) in enumerate(lst): e(f"v_cvt_pk_bf16_f32 v{d+i}, v{a}, v{b}")
        O = KODD - 4
        e("v_lshlrev_b32 v8, 3, v7\nv_sub_u32 v8, v6, v8")
        f0, f1, f2 = A2+1, A2+2, A2+3
        cv(52, [(f2, f2), (f2, f2), (f1, f1), (f1, f1), (f1, f1), (f1, f0), (f0, f0), (f0, f0)])
        e(f"ds_write_b128 v9, v[52:55] offset:{2*(2032-1024)}")
        cv(60, [(f2, f2), (f2, f2), (f2, f1), (f1, f1), (f1, f1), (f1, f1), (f0, f0), (f0, f0)])
        e(f"ds_write_b128 v9, v[56:59] offset:{2*(2032-1024)+16}")
        cv(48, [(A0+3, A0+2), (A0+1, A0), (A0+2, A0+1)])
        e(f"ds_write_b128 v9, v[60:63] offset:{2*(2032-1024) + O}")
        e(f"ds_write_b128 v9, v[64:67] offset:{2*(2032-1024) + O + 16}")
        e(f"ds_write_b64 v8, v[48:49] offset:{2*2044}")
        e(f"ds_write_b16 v8, v48 offset:{2*2044 + O + 2}")
        e(f"ds_write_b32 v8, v50 offset:{2*2044 + O + 4}")
        e(f"ds_write_b16_d16_hi v8, v49 offset:{2*2044 + O + 8}")
        e(f"s_branch {jn}")
        self.label(h1)
        e("v_lshlrev_b32 v8, 4, v7\nv_sub_u32 v8, v6, v8")
        E_ = lambda j: A0 + j if j < 4 else A2
        C = lambda lst: [(E_(a), E_(b)) for a, b in lst]
        cv(52, C([(4, 4), (3, 3), (3, 2), (2, 2), (2, 2), (1, 1), (1, 0), (0, 0)]))
        e("s_mov_b32 exec_lo, 0")
        e(f"ds_write_b128 v9, v[52:55] offset:{2*2032}\nds_write_b128 v9, v[56:59] offset:{2*2032+16}")
        e("s_mov_b32 exec_lo, -1")
        cv(60, C([(4, 4), (4, 3), (3, 3), (2, 2), (2, 2), (2, 1), (1, 1), (0, 0)]))
        e("s_mov_b32 exec_lo, 0")
        e(f"ds_write_b128 v9, v[60:63] offset:{2*2032 + O}\nds_write_b128 v9, v[64:67] offset:{2*2032 + O + 16}")
        e("s_mov_b32 exec_lo, -1")
        cv(40, C([(4, 3), (2, 2), (2, 1), (0, 0), (4, 4), (3, 2), (2, 2), (1, 0)]))
        e("s_mov_b32 exec_hi, 0")
        e(f"ds_write_b128 v8, v[40:43] offset:{2*(2040-256)}\nds_write_b128 v8, v[44:47] offset:{2*(2040-256) + O}")
        e(f"ds_write_b16 v8, v43 offset:{2*(2040-256) + O + 16}")
        e("s_mov_b32 exec_hi, -1")
        self.label(jn)

    def spin_check(self, retry_label, out_label=None):
        e = self.e
        e(f"s_sub_u32 s{S_SPIN}, s{S_SPIN}, 1")
        e(f"s_cmp_lg_u32 s{S_SPIN}, 0")
        e(f"s_cbranch_scc1 {retry_label}")
    def hbuild(self, after_first=None, mid=None):
        e = self.e
        e(f"s_lshl_b32 s{S_T0}, s{S_WV}, 12\nv_lshl_add_u32 v3, v1, 4, s{S_T0}")
        e("v_and_b32 v4, 3, v1")
        e(f"v_mul_u32_u24 v4, {3072*8}, v4")
        e("v_lshrrev_b32 v5, 3, v1")
        e("v_min_u32 v5, 5, v5")
        e("v_lshl_add_u32 v4, v5, 12, v4")
        e("v_bfe_u32 v6, v1, 2, 1")
        e("v_lshl_add_u32 v4, v6, 3, v4")
        e(f"s_lshl_b32 s{S_T0}, s{S_D0}, 3")
        e(f"s_add_u32 s{S_T0}, s{S_T0}, {WS_MODP}")
        e(f"s_mov_b32 s{S_T1}, {WS_ST1}")
        e(f"s_lshl_b32 s{S_T2}, s{S_D0}, 13\ns_add_u32 s{S_T2}, s{S_T2}, {hx(WS_XB)}")
        e(f"s_mov_b32 s{S_SPIN}, {self.cfg['spin']}")
        rt = self.lab("h0"); ok = self.lab("h0ok"); ck = self.lab("h0ck")
        def pl():
            self.tok(f"buffer_load_dwordx2 v[8:9], v4, s[{S_WS}:{S_WS+3}], s{S_T0} offen sc1")
            for i in range(4):
                t_ = self.tok(f"buffer_load_dwordx4 v[{40+4*i}:{43+4*i}], v3, s[{S_WS}:{S_WS+3}], s{S_T1} offen offset:{1024*i} sc1")
            for i in range(4):
                t_ = self.tok(f"buffer_load_dwordx4 v[{20+4*i}:{23+4*i}], v3, s[{S_WS}:{S_WS+3}], s{S_T2} offen offset:{1024*i} sc1")
            return t_
        if after_first:
            t_ = pl(); self.stamp(26); after_first(); self.wait(t_); self.stamp(25)
            e(f"s_branch {ck}")
            keep = self.p.take()
            self.label(rt); pl(); e("s_waitcnt vmcnt(0)"); e(f"s_branch {ck}")
            self.ool += self.p.take(); self.p.put(keep[:-1])
            self.label(ck)
        else:
            self.label(rt); pl(); e("s_waitcnt vmcnt(0)")
        e(f"v_mov_b32 v10, s{S_TAG}")
        if True: e("v_cmp_gt_u32 vcc, 24, v1\nv_cndmask_b32 v9, v10, v9, vcc")
        for i in range(8):
            e(f"v_min3_u32 v11, v{41+2*i}, v{21+2*i}, {'v11' if i else 'v9'}")
            e(f"v_max3_u32 v12, v{41+2*i}, v{21+2*i}, {'v12' if i else 'v9'}")
        e("v_xor_b32 v11, v11, v10\nv_xor_b32 v12, v12, v10\nv_or_b32 v7, v11, v12")
        e("v_cmp_ne_u32 vcc, 0, v7")
        e(f"s_cbranch_vccz {ok}")
        self.spin_check(rt)
        self.label(ok)
        self.stamp(4)
        if self.cfg.get("stamps"): e(f"s_sub_u32 s{S_ST}, {self.cfg['spin']+1}, s{S_SPIN}\nv_writelane_b32 v255, s{S_ST}, 50")
        e(f"s_mov_b32 s{S_EX}, s{S_T0}\nv_mov_b32 v237, v4")
        keep_ = self.p.take()
        e("v_add_f32_dpp v8, v8, v8 quad_perm:[1,0,3,2] row_mask:0xf bank_mask:0xf")
        for i in range(4): e(f"v_lshlrev_b32 v{64+i}, 16, v{40+2*i}")
        e("v_add_f32_dpp v8, v8, v8 quad_perm:[2,3,0,1] row_mask:0xf bank_mask:0xf")
        for i in range(4, 8): e(f"v_lshlrev_b32 v{64+i}, 16, v{40+2*i}")
        e("v_cvt_pk_bf16_f32 v8, v8, v8\nv_rcp_f32 v64, v64\nv_and_b32 v8, 0xffff0000, v8\nv_rcp_f32 v65, v65")
        e("v_add_f32 v9, 1.0, v8\nv_rcp_f32 v66, v66")
        e("v_cvt_pk_bf16_f32 v9, v9, v9\nv_rcp_f32 v67, v67\nv_and_b32 v9, 0xffff0000, v9")
        X = 72; Hh = 88; Z = 104
        for i in range(8):
            if i < 3:
                src = 9 if i in (1, 4) else 8
                e(f"v_readlane_b32 s{S_M+2*i}, v{src}, {8*i}")
                e(f"v_readlane_b32 s{S_M+2*i+1}, v{src}, {8*i+4}")
            if i >= 4: e(f"v_rcp_f32 v{64+i}, v{64+i}")
            e(f"v_and_b32 v{56+i}, 0xffff0000, v{40+2*i}")
            k_ = i >> 1; src_ = 20 + 4*k_ + 2*(i & 1); dst_ = X + 8*(k_ & 1) + 4*(k_ >> 1) + 2*(i & 1)
            e(f"v_lshlrev_b32 v{dst_}, 16, v{src_}")
            e(f"v_and_b32 v{dst_+1}, 0xffff0000, v{src_}")
        sa, sA, ga, sb, sB, gb = [S_M + 2*i for i in range(6)]
        e(f"v_mov_b32 v16, s{ga}\nv_mov_b32 v17, s{ga+1}")
        for k in range(8):
            e(f"v_pk_add_f32 {vr(Hh+2*k,2)}, {vr(X+2*k,2)}, {vr(56+2*(k&3),2)} neg_lo:[0,1] neg_hi:[0,1]")
        e(f"v_mul_f32 v10, s{sA}, v16\nv_mul_f32 v11, s{sA+1}, v17")
        e(f"v_mul_f32 v12, s{sa}, v16\nv_mul_f32 v13, s{sa+1}, v17")
        e(f"s_lshl_b32 s{S_T0}, s{S_DSK}, 16\ns_and_b32 s{S_T1}, s{S_DSK}, 0xffff0000")
        e(f"v_mov_b32 v14, s{S_T0}\nv_mov_b32 v15, s{S_T1}")
        for k in range(8):
            e(f"v_pk_mul_f32 {vr(Hh+2*k,2)}, {vr(Hh+2*k,2)}, {vr(64+2*(k&3),2)}")
        for k in range(8):
            c = k >> 2
            e(f"v_pk_fma_f32 {vr(Hh+2*k,2)}, {vr(Hh+2*k,2)}, v[10:11], v[12:13] op_sel:[0,{c},{c}] op_sel_hi:[1,{c},{c}]")
        for ch in range(2):
            for j in range(4):
                e(f"v_cvt_pk_bf16_f32 v{120+4*ch+j}, v{Hh+8*ch+2*j}, v{Hh+8*ch+2*j+1}")
            e(f"ds_write_b128 v183, v[{120+4*ch}:{123+4*ch}] offset:{HCH*ch}")
        for k in range(8):
            c = k >> 2
            e(f"v_pk_fma_f32 {vr(Z+2*k,2)}, {vr(Hh+2*k,2)}, v[14:15], {vr(X+2*k,2)} op_sel:[0,{c},0] op_sel_hi:[1,{c},1]")
            if k & 1: e(f"ds_write_b128 v184, {vr(Z+2*k-2,4)} offset:{8192*c + 16*((k>>1)&1)}")
        body_ = self.p.take()
        self.p.put(keep_ + spread(body_, [(0, c_) for c_ in (mid() if mid else [])]))
    def late_issue(self): return self.tok(f"buffer_load_dwordx2 v[238:239], v237, s[{S_WS}:{S_WS+3}], s{S_EX} offen sc1")
    def late_fin(self, tl):
        e = self.e
        self.wait(tl)
        self.guard("lt", lambda ex: e(f"v_cmp_ne_u32 vcc, s{S_TAG}, v239"), lambda: (self.late_issue(), e("s_waitcnt vmcnt(0)")))
        e("v_add_f32_dpp v238, v238, v238 quad_perm:[1,0,3,2] row_mask:0xf bank_mask:0xf")
        e("s_nop 1")
        e("v_add_f32_dpp v238, v238, v238 quad_perm:[2,3,0,1] row_mask:0xf bank_mask:0xf")
        e("v_cvt_pk_bf16_f32 v238, v238, v238\nv_and_b32 v238, 0xffff0000, v238\nv_add_f32 v239, 1.0, v238")
        e("v_cvt_pk_bf16_f32 v239, v239, v239\nv_and_b32 v239, 0xffff0000, v239\ns_nop 0")
        for i in (4, 5):
            src = 239 if i == 4 else 238
            e(f"v_readlane_b32 s{S_M+2*i}, v{src}, {8*i}\nv_readlane_b32 s{S_M+2*i+1}, v{src}, {8*i+4}")
    def modf_pub(self):
        e = self.e
        sa, sA, ga, sb, sB, gb = [S_M + 2*i for i in range(6)]
        e(f"v_mov_b32 v20, s{gb}\nv_mov_b32 v21, s{gb+1}\ns_lshr_b32 s101, s32, 3\ns_cmp_lg_u32 s{S_WV}, 0\ns_cselect_b32 s101, 0x7f000000, s101\ns_add_u32 s101, s101, {WS_MODF}")
        e(f"buffer_store_dwordx2 v[20:21], v199, s[{S_WS}:{S_WS+3}], s101 offen sc1")
    def conv_setup(self):
        e = self.e
        e(f"s_lshr_b32 s{S_CH}, s{S_WV}, 1")
        e(f"s_and_b32 s{S_PAR}, s{S_WV}, 1")
        e("v_and_b32 v176, 15, v1\nv_lshrrev_b32 v177, 4, v1")
        e("v_lshlrev_b32 v178, 3, v177")
        e("v_sub_u32 v178, v178, v176")
        e("v_add_u32 v178, 2031, v178")
        e("v_lshrrev_b32 v178, 1, v178")
        e("v_and_b32 v179, 1, v1\nv_xor_b32 v179, 1, v179")
        e(f"v_mul_u32_u24 v179, {KODD}, v179")
        e("v_lshl_add_u32 v178, v178, 2, v179")
        e(f"s_mul_i32 s{S_T0}, s{S_CH}, {KCH}")
        e(f"s_lshl_b32 s{S_T1}, s{S_PAR}, 8")
        e(f"s_sub_u32 s{S_T0}, s{S_T0}, s{S_T1}")
        e(f"s_add_u32 s{S_T0}, s{S_T0}, {L_K - 192 - 512}")
        for j in range(4):
            e(f"v_add_u32 v{168+j}, s{S_T0}, v178")
            if j < 3: e(f"s_sub_u32 s{S_T0}, s{S_T0}, 1024")
        e("v_lshlrev_b32 v178, 5, v176")
        e("v_lshl_add_u32 v178, v177, 4, v178")
        e(f"s_mul_i32 s{S_T0}, s{S_CH}, {HCH}")
        e(f"s_sub_u32 s{S_T0}, s{S_T0}, s{S_T1}")
        e(f"s_add_u32 s{S_T0}, s{S_T0}, {L_HI + 480 - 192}")
        e(f"v_add_u32 v172, s{S_T0}, v178")
        e("v_lshl_add_u32 v178, v176, 5, v178")
        e(f"s_lshl_b32 s{S_T0}, s{S_CH}, 13")
        e(f"s_lshl_b32 s{S_T1}, s{S_PAR}, 12")
        e(f"s_add_u32 s{S_T0}, s{S_T0}, s{S_T1}")
        e(f"s_add_u32 s{S_T0}, s{S_T0}, {L_Z}")
        e(f"v_add_u32 v173, s{S_T0}, v178")
        e(f"s_lshl_b32 s{S_T0}, s{S_WV}, 12\ns_add_u32 s{S_T0}, s{S_T0}, {L_Z}\nv_lshl_add_u32 v180, v1, 4, s{S_T0}")
        e(f"s_xor_b32 s{S_T1}, s{S_WV}, 1\ns_lshl_b32 s{S_T1}, s{S_T1}, 12\ns_add_u32 s{S_T1}, s{S_T1}, {L_Z}\nv_lshl_add_u32 v181, v1, 4, s{S_T1}")
        e("v_and_b32 v176, 15, v1\nv_lshrrev_b32 v177, 4, v1")
        e("v_lshrrev_b32 v182, 1, v176\nv_and_b32 v179, 1, v177\nv_lshl_add_u32 v182, v179, 3, v182\nv_lshlrev_b32 v182, 15, v182")
        e("v_and_b32 v176, 1, v176\nv_lshl_add_u32 v182, v176, 5, v182\nv_lshrrev_b32 v177, 1, v177\nv_lshl_add_u32 v182, v177, 4, v182")
        e(f"s_add_u32 s27, s{S_D0}, s{S_CH}\ns_lshl_b32 s27, s27, 6\ns_lshl_b32 s28, s{S_PAR}, 20\ns_add_u32 s27, s27, s28")
        e(f"s_add_u32 s28, s27, {hx(WS_X1S)}\ns_add_u32 s27, s27, {hx(WS_X1)}\ns_add_u32 s29, s27, {hx(16*32768)}\ns_add_u32 s30, s28, {hx(16*32768)}")
        e(f"v_lshlrev_b32 v183, 4, v0\nv_add_u32 v183, {L_HI + 512}, v183\nv_lshlrev_b32 v184, 5, v0\nv_add_u32 v184, {L_Z}, v184")
        e("v_mov_b32 v248, -1\nv_mov_b32 v249, -1\nv_mov_b32 v250, -1\nv_mov_b32 v251, -1")
        e("v_lshrrev_b32 v252, 3, v0\nv_lshlrev_b32 v252, 15, v252\nv_and_b32 v176, 7, v0\nv_lshl_add_u32 v252, v176, 4, v252")
        e(f"s_lshl_b32 s31, s{S_D0}, 6\nv_lshlrev_b32 v236, 4, v0\nv_mov_b32 v199, 0")
        e(f"s_lshl_b32 s32, s{S_D0}, 5\ns_cmp_lg_u32 s{S_WV}, 0\ns_cselect_b32 s32, 0x7f000000, s32")
    def conv(self, fillers=None, pre_start=None, pre_bar=None, post_bar=None):
        e = self.e
        ACC = 4
        FA = [40, 104]; FB = [72, 136]
        if pre_start: pre_start()
        e("s_waitcnt lgkmcnt(0)")
        e("s_barrier")
        self.stamp(5)
        p1 = self.lab("cp1"); jn = self.lab("cj")
        e(f"s_cmp_lg_u32 s{S_PAR}, 0")
        e(f"s_cbranch_scc1 {p1}")
        for par in range(2):
            for c in range(4):
                r = ACC + 4 * (4*par + c)
                e(f"ds_read_b128 v[{r}:{r+3}], v173 offset:{1024*c}")
            for r in range(16): e(f"v_mov_b32 v{ACC + 16*(1-par) + r}, 0")
            if par == 0:
                e(f"s_branch {jn}"); self.label(p1)
        self.label(jn)
        def loads(it):
            s = it & 1; L = []; o = 16 * (3 - it)
            tk = {}
            for k in range(8):
                tk[("B", k)] = self.tok(f"ds_read_b128 {vr(FB[s]+4*k,4)}, v172 offset:{512*k + 64*(3-it)}")
                b = 168 + (k >> 1); oo = o + (0 if k & 1 else 128)
                self.tok(f"ds_read2_b32 {vr(FA[s]+4*k,2)}, v{b} offset0:{oo} offset1:{oo+1}")
                tk[("A", k)] = self.tok(f"ds_read2_b32 {vr(FA[s]+4*k+2,2)}, v{b} offset0:{oo+2} offset1:{oo+3}")
            return tk
        pre = self.p.take()
        tks = [None] * 4
        tks[0] = loads(0)
        main = self.p.take()
        carry = []
        for it in range(4):
            nxt = []
            if it < 3:
                tks[it+1] = loads(it+1); nxt = self.p.take()
            s = it & 1
            order = sorted([(u, v) for u in range(8) for v in range(8 - u)], key=lambda t: (max(t), t[0]))
            seen = set(); k = 0
            for (u, v) in order:
                need = [t for t in (("A", u), ("B", v)) if t not in seen]
                if need:
                    self.wait(*[tks[it][t] for t in need]); seen |= set(need)
                cb = u + v
                e(f"v_mfma_f32_16x16x32_bf16 {vr(ACC+4*cb,4)}, {vr(FA[s]+4*u,4)}, {vr(FB[s]+4*v,4)}, {vr(ACC+4*cb,4)}")
                if nxt and ((it > 0 and (k % 3 != 2 or len(nxt) >= 35 - k)) or (it == 0 and k >= 10)):
                    self.p.put([nxt.pop(0)])
                k += 1
            self.p.put(nxt)
            seg = self.p.take()
            if it == 0: seg = main + seg; main = []
            carry = carry + (fillers.get(it, []) if fillers else [])
            seg, carry = merge(seg, carry, 8, pace=self.cfg["cpace"])
            if it in self.cfg.get('cflush', ()): seg += carry; carry = []
            main += seg
        self.p.put(pre + main)
        self.conv_left = carry
        self.stamp(6)
        if pre_bar: pre_bar()
        p1 = self.lab("ep1"); jn = self.lab("ej")
        e(f"s_cmp_lg_u32 s{S_PAR}, 0")
        e(f"s_cbranch_scc1 {p1}")
        for par in range(2):
            e("s_nop 7")
            for c in range(4):
                r = ACC + 4 * (4*(1-par) + c)
                e(f"ds_write_b128 v180, {vr(r,4)} offset:{1024*c}")
            e("s_waitcnt lgkmcnt(0)")
            e("s_barrier")
            for c in range(4): e(f"ds_read_b128 {vr(40+4*c,4)}, v181 offset:{1024*c}")
            for c in range(4):
                e(f"s_waitcnt lgkmcnt({3-c})")
                r = ACC + 4 * (4*par + c)
                e(f"v_pk_add_f32 {vr(40+4*c,2)}, {vr(40+4*c,2)}, {vr(r,2)}")
                e(f"v_pk_add_f32 {vr(42+4*c,2)}, {vr(42+4*c,2)}, {vr(r+2,2)}")
            if par == 0:
                e(f"s_branch {jn}"); self.label(p1)
        self.label(jn)
        sB = S_M + 8
        e(f"s_cmp_eq_u32 s{S_CH}, 0")
        e(f"s_cselect_b32 s{S_T0}, s{sB}, s{sB+1}")
        e(f"v_mov_b32 v38, s{S_T0}\nv_mov_b32 v39, s{S_T0}")
        if post_bar: post_bar()
        for pr in range(2):
            a = 40 + 8*pr
            d = 60 + 8*pr
            for h in range(4): e(f"v_pk_mul_f32 {vr(76+2*h,2)}, {vr(a+2*h,2)}, v[38:39]")
            for h in range(4): e(f"v_cvt_pk_bf16_f32 v{d+h}, v{76+2*h}, v{77+2*h}")
            for h in range(4): e(f"v_cvt_pk_bf16_f32 v{d+4+h}, v{a+2*h}, v{a+2*h+1}")
            e(f"v_permlane16_swap_b32 v{d}, v{d+2}\nv_permlane16_swap_b32 v{d+1}, v{d+3}")
            e(f"buffer_store_dwordx4 {vr(d,4)}, v182, s[{S_WS}:{S_WS+3}], s{28 + 2*pr} offen sc1")
            e(f"v_permlane16_swap_b32 v{d+4}, v{d+6}\nv_permlane16_swap_b32 v{d+5}, v{d+7}")
            self.x1st = self.tok(f"buffer_store_dwordx4 {vr(d+4,4)}, v182, s[{S_WS}:{S_WS+3}], s{27 + 2*pr} offen sc1")
        self.stamp(7)
    def g1_map(self):
        e = self.e
        if self.cfg["map8"]:
            e(f"s_lshr_b32 s{S_T0}, s{S_XCD}, 1\ns_mul_i32 s{S_T0}, s{S_T0}, 28\ns_add_u32 s{S_T0}, s{S_T0}, s{S_IDX}")
            e(f"s_and_b32 s{S_G1}, s{S_XCD}, 1\ns_lshl_b32 s{S_G1}, s{S_G1}, 3\ns_and_b32 s{S_G2}, s{S_T0}, 7\ns_add_u32 s{S_G1}, s{S_G1}, s{S_G2}")
            e(f"s_lshr_b32 s{S_G2}, s{S_T0}, 3")
        else:
            e(f"s_lshr_b32 s{S_G1}, s{S_XCD}, 1\ns_lshl_b32 s{S_G1}, s{S_G1}, 2")
            e(f"s_and_b32 s{S_T0}, s{S_IDX}, 3\ns_add_u32 s{S_G1}, s{S_G1}, s{S_T0}")
            e(f"s_and_b32 s{S_G2}, s{S_XCD}, 1\ns_mul_i32 s{S_G2}, s{S_G2}, 7")
            e(f"s_lshr_b32 s{S_T0}, s{S_IDX}, 2\ns_add_u32 s{S_G2}, s{S_G2}, s{S_T0}")
        e(f"s_lshl_b32 s15, s{S_XCD}, 2\ns_add_u32 s15, s15, s{S_IDX}\ns_sub_u32 s15, s15, 28")
        e(f"s_lshr_b32 s14, s15, 1\ns_and_b32 s13, s15, 1\ns_cmp_ge_u32 s{S_IDX}, 28")
        e(f"s_cselect_b32 s{S_G2}, s14, s{S_G2}\ns_cselect_b32 s{S_G1}, 0, s{S_G1}\ns_cselect_b32 s{S_G3}, s13, 0\ns_cselect_b32 s15, s15, 0")
        e(f"s_cmp_ge_u32 s15, 28\ns_cselect_b32 s10, 0, {hx(1835008)}\ns_mov_b32 s11, 0x20000")
        e(f"s_lshl_b32 s{S_G2}, s{S_G2}, 7")
        e(f"s_lshl_b32 s{S_T0}, s{S_WV}, 5\ns_add_u32 s{S_G2}, s{S_G2}, s{S_T0}")
    AX = 176
    BX = 184
    def g1_fold(self, g, acc):
        for t in range(2):
            self.e(f"v_mfma_f32_32x32x16_bf16 {vr(acc+16*t,16)}, {vr(self.AX+4*t,4)}, {vr(self.BX+4*g,4)}, {vr(acc+16*t,16)}")
    def g1_epilogue(self, g, acc, stat, split=False):
        e = self.e
        save = self.p.take()
        T = 148
        rG, kD = stat, stat+1
        for t in range(2):
            for half in range(2):
                regs = [4*half + j for j in range(4)]
                gq = [T + 8*half + j for j in range(4)]; q = [T + 8*half + 4 + j for j in range(4)]
                for j, r in enumerate(regs): e(f"v_mul_f32 v{gq[j]}, v{rG}, v{acc+16*t+r}")
                for j in range(4): e(f"v_fma_f32 v{q[j]}, -v{gq[j]}, v{gq[j]}, s{S_T3}")
                for j in range(4): e(f"v_mul_f32 v{q[j]}, v{gq[j]}, v{q[j]}")
                for j, r in enumerate(regs):
                    e(f"v_exp_f32 v{q[j]}, v{q[j]}")
                    e(f"v_mul_f32 v{gq[j]}, v{gq[j]}, v{acc+16*t+8+r}")
                for j in range(4): e(f"v_fma_f32 v{q[j]}, v{q[j]}, v{kD}, v{kD}")
                for j in range(4): e(f"v_rcp_f32 v{q[j]}, v{q[j]}")
                for j in range(4): e(f"v_mul_f32 v{gq[j]}, v{gq[j]}, v{q[j]}")
                e(f"v_cvt_pk_bf16_f32 v{172+2*half}, v{gq[0]}, v{gq[1]}")
                e(f"v_cvt_pk_bf16_f32 v{173+2*half}, v{gq[2]}, v{gq[3]}")
            e(f"s_add_u32 s101, s{S_T2}, {g*112*1024 + t*1024}")
            tk_ = self.tok(f"buffer_store_dwordx4 v[172:175], v147, s[{S_WS}:{S_WS+3}], s101 offen sc1")
        self.htok[g] = tk_
        out = self.p.take(); self.p.put(save)
        if split: return out[:len(out)//2], out[len(out)//2:]
        return out
    def g2_map(self):
        e = self.e
        e(f"s_lshl_b32 s{S_G1}, s{S_XCD}, 1\ns_bfe_u32 s44, s{S_IDX}, 0x10004\ns_add_u32 s{S_G1}, s{S_G1}, s44")
        e(f"s_lshl_b32 s{S_G1}, s{S_G1}, 2")
        e(f"s_bfe_u32 s44, s{S_IDX}, 0x10003")
        e(f"s_sub_u32 s{S_G2}, s{S_G1}, s44\ns_add_u32 s{S_G2}, s{S_G2}, 3")
        e(f"s_add_u32 s{S_G1}, s{S_G1}, s44")
        e(f"s_and_b32 s{S_G3}, s{S_IDX}, 7")
    XT = lambda self, g: (3 - g) * 32768
    S_HB = 81
    def x1s_issue(self, g):
        t = None
        for j in range(8):
            if j % 4 == 0:
                self.e(f"s_add_u32 m0, s{S_T1}, {self.XT(g) + j*1024}")
                self.e(f"s_add_u32 s13, s{S_T0}, {g*32768 + j*1024}")
            t = self.tok(f"buffer_load_dwordx4 v147, s[{S_WS}:{S_WS+3}], s13 offen offset:{(j%4)*1024} sc1 lds")
        return t
    def x1s_check(self, g, T, explicit=False):
        e = self.e
        ad = 146 if self.XT(g) < 65536 else 143
        tk = [self.tok(f"ds_read_b32 v{T+j}, v{ad} offset:{self.XT(g) % 65536 + j*1024}") for j in range(8)]
        if explicit: e("s_waitcnt lgkmcnt(0)")
        else: self.wait(tk[7])
        e(f"v_max3_u32 v{T}, v{T}, v{T+1}, v{T+2}\nv_max3_u32 v{T+3}, v{T+3}, v{T+4}, v{T+5}\nv_max3_u32 v{T}, v{T}, v{T+6}, v{T+7}\nv_max_u32 v{T}, v{T}, v{T+3}")
        e(f"v_cmp_eq_u32 vcc, -1, v{T}")
    def x1s_guard(self, g, T, tok):
        e = self.e
        rt = self.lab("xr"); lp = self.lab("xl"); bk = self.lab("xb")
        self.wait(tok)
        self.x1s_check(g, T)
        e(f"s_cbranch_vccnz {rt}")
        self.label(bk)
        def rout():
            self.label(rt)
            e(f"s_mov_b32 s{S_SPIN}, {self.cfg['spin']}")
            if self.cfg.get("stamps"): e(f"v_writelane_b32 v255, 1, {46 + g}")
            self.label(lp)
            self.x1s_issue(g)
            e("s_waitcnt vmcnt(0) lgkmcnt(0)")
            self.x1s_check(g, T, explicit=True)
            e("s_nop 1")
            e(f"s_cbranch_vccz {bk}")
            self.spin_check(lp)
            e(f"s_branch {bk}")
        o, _ = self.capture(rout); self.ool += o
    def modf_issue(self):
        t = None
        for v in range(2):
            for kq in range(4):
                self.e(f"s_mov_b32 s47, {WS_MODP + (kq*3072 + (3+v)*512)*8}")
                t = self.tok(f"buffer_load_dwordx4 {vr(200 + 16*v + 4*kq, 4)}, v236, s[{S_WS}:{S_WS+3}], s47 offen sc1")
        return t
    def xfill(self):
        e = self.e; t = None
        for base in (WS_X1S, WS_X1S + 32*32768, WS_X1, WS_X1 + 32*32768):
            e(f"s_add_u32 s101, s31, {hx(base)}")
            t = self.tok(f"buffer_store_dwordx4 v[248:251], v252, s[{S_WS}:{S_WS+3}], s101 offen sc1")
        return t
    def hfill(self):
        e = self.e
        for g in range(4):
            e(f"s_add_u32 s26, s{self.S_HB}, {g*112*1024}")
            self.tok(f"buffer_store_dwordx4 v[248:251], v147, s[{S_WS}:{S_WS+3}], s26 offen sc1")
            self.htok["fill"] = self.tok(f"buffer_store_dwordx4 v[248:251], v147, s[{S_WS}:{S_WS+3}], s26 offen offset:1024 sc1")
    S_HF = 35
    def gate_pub(self, base=WS_FL1):
        self.e(f"s_add_u32 s101, s32, {base}")
        self.e(f"buffer_store_dword v253, v199, s[{S_WS}:{S_WS+3}], s101 offen sc1")
    S_FB = 3
    def hbase(self):
        e = self.e
        e(f"s_mul_i32 s{self.S_HB}, s{S_G1}, {4*112*1024}")
        e(f"s_lshl_b32 s101, s{S_G2}, 6")
        e(f"s_add_u32 s{self.S_HB}, s{self.S_HB}, s101")
        e(f"s_add_u32 s{self.S_HB}, s{self.S_HB}, {hx(WS_H)}")
        e(f"s_mul_i32 s{self.S_FB}, s{S_G1}, {4*56*64}")
        e(f"s_lshl_b32 s101, s{S_G2}, 1")
        e(f"s_add_u32 s{self.S_FB}, s{self.S_FB}, s101")
        e(f"s_add_u32 s{self.S_FB}, s{self.S_FB}, {WS_FL2}")
        e(f"s_cmp_ge_u32 s{S_IDX}, 28")
        e(f"s_cselect_b32 s{self.S_FB}, 0x7f000000, s{self.S_FB}")
    def hflag(self, g, vz, vt):
        self.wait(self.htok[g])
        self.e(f"s_add_u32 s101, s{self.S_FB}, 0")
        self.e(f"buffer_store_dword v{vt}, v{vz}, s[{S_WS}:{S_WS+3}], s101 offen sc1")
    def capture(self, fn):
        keep = self.p.take(); r = fn(); out = self.p.take(); self.p.put(keep); return out, r
    def cap(self, fn): return self.capture(fn)[0]
    def peek(self, fn):
        sv = (dict(self.wdt), dict(self.rd), dict(self.xt), self.p.ntok)
        keep = self.p.take()
        try: fn()
        except KeyError:
            self.p.take(); self.p.put([Ins("buffer_x"), Ins("buffer_x")])
        out = self.p.take(); self.p.put(keep)
        self.wdt.clear(); self.wdt.update(sv[0]); self.rd.clear(); self.rd.update(sv[1]); self.xt.clear(); self.xt.update(sv[2])
        return out
    def guard(self, name, chk, reissue, cond="vccnz"):
        e = self.e
        rt = self.lab(name + "r"); lp = self.lab(name + "l"); bk = self.lab(name + "b")
        chk(False)
        e(f"s_cbranch_vccnz {rt}")
        self.label(bk)
        def rout():
            self.label(rt); e(f"s_mov_b32 s{S_SPIN}, {self.cfg['spin']}")
            if self.cfg.get("stamps"): e(f"v_writelane_b32 v255, 1, {52 + ['mf', 'gt', 'st', 'f0', 'lt', 'g2', 'fa', 'hc', 'rs'].index(name)}")
            self.label(lp)
            reissue(); chk(True); e("s_nop 1")
            e(f"s_cbranch_vccz {bk}"); self.spin_check(lp); e(f"s_branch {bk}")
        self.ool += self.cap(rout)

    def p0_issue(self):
        e = self.e; T = self.T = {}
        e(f"s_mov_b32 s{S_X}, s{P_X}\ns_mov_b32 s{S_X+1}, s{P_X+1}")
        self.tok(f"buffer_load_dwordx4 v[10:13], v9, s[{S_X}:{S_X+3}], s{S_T0} offen")
        T["xr"] = self.tok(f"buffer_load_dwordx4 v[14:17], v9, s[{S_X}:{S_X+3}], s{S_T0} offen offset:1024")
        self.tok(f"buffer_load_dwordx4 v3, s[{S_X}:{S_X+3}], s{S_T3} offen lds")
        T["xt"] = self.tok(f"buffer_load_dwordx4 v6, s[{S_X}:{S_X+3}], s{S_T3} offen offset:1024 lds")
        for i in range(6): T["ssm"] = self.tok(f"global_load_ushort v{18+i}, v8, s[{P_ARE+2*i}:{P_ARE+2*i+1}]")
        e(f"s_load_dword s{S_E}, s[{P_WS}:{P_WS+1}], 0")
        e(f"s_lshl_b32 s{S_T0}, s{S_D0}, 1")
        e(f"s_load_dword s{S_LDT}, s[{P_LDT}:{P_LDT+1}], s{S_T0}")
        e(f"s_load_dword s{S_DSK}, s[{P_DSK}:{P_DSK+1}], s{S_T0}")
        e(f"s_mov_b32 s{S_WM}, s{P_WM}\ns_mov_b32 s{S_WM+1}, s{P_WM+1}")
        e(f"s_cmp_ge_u32 s{S_M+1}, {24 if self.cfg['split'] else 99}\ns_cselect_b32 s{S_M+4}, 1, 0\ns_cmp_ge_u32 s2, 192\ns_cselect_b32 s{S_M+4}, 2, s{S_M+4}")
        T["c"] = self.tok(f"global_load_dword v186, v7, s[{P_C}:{P_C+1}]")
        self.wm_issue(0)
        e(f"s_bitcmp1_b32 s{S_WV}, 0\ns_cselect_b32 s8, s{P_WU}, s{P_WG}\ns_cselect_b32 s9, s{P_WU+1}, s{P_WG+1}")
        if self.cfg["touch"] == 4: self.touch_w()
    def wm_issue(self, which):
        e = self.e
        sk = self.lab("wm")
        e(f"s_cmp_lg_u32 s{S_M+4}, {which}\ns_cbranch_scc1 {sk}")
        e(f"s_lshl_b32 s{S_T1}, s{S_WV}, 12")
        for j in range(4):
            e(f"s_add_u32 m0, s{S_T1}, {L_MOD + 1024*j}")
            e(f"s_add_u32 s101, s{S_M+2}, {j*8*6144}")
            self.T["wm%d" % which] = self.tok(f"buffer_load_dwordx4 v33, s[{S_WM}:{S_WM+3}], s101 offen lds")
        jn = self.lab("wmj")
        self.label(jn)
        def alt():
            self.label(sk)
            for j in range(4): e(f"global_load_dword v32, v9, s[{P_C}:{P_C+1}]")
            e(f"s_branch {jn}")
        self.ool += self.cap(alt)

    def p0_stats(self):
        e = self.e
        e("v_mov_b32 v3, 0x3f803f80")
        self.wait(self.T["xr"])
        for i in range(4):
            c = lambda r: (f"v{r}" if i else "0")
            e(f"v_dot2_f32_bf16 v4, v{10+i}, v3, {c(4)}")
            e(f"v_dot2_f32_bf16 v5, v{10+i}, v{10+i}, {c(5)}")
            e(f"v_dot2_f32_bf16 v6, v{14+i}, v3, {c(6)}")
            e(f"v_dot2_f32_bf16 v7, v{14+i}, v{14+i}, {c(7)}")
        self.reduce16([4, 5, 6, 7])
        e("v_permlane16_swap_b32 v4, v5\nv_permlane16_swap_b32 v6, v7")
        e("v_add_f32 v4, v4, v5\nv_add_f32 v6, v6, v7")
        e("v_permlane32_swap_b32 v4, v6")
        e("v_add_f32 v4, v4, v6")
        e("v_mov_b32 v5, v4")
        e("v_permlane16_swap_b32 v4, v5")
        self.stat_finish(4, 5, 6, 7)
        e(f"v_mov_b32 v5, s{S_TAG}")
        e("v_lshrrev_b32 v6, 2, v1")
        e(f"s_lshr_b32 s{S_T0}, s2, 6\ns_lshl_b32 s{S_T0}, s{S_T0}, 2\ns_add_u32 s{S_T0}, s{S_T0}, s{S_WV}\ns_lshl_b32 s{S_T0}, s{S_T0}, 10")
        e(f"s_and_b32 s{S_T1}, s2, 63\ns_lshl_b32 s{S_T1}, s{S_T1}, 4\ns_add_u32 s{S_T0}, s{S_T0}, s{S_T1}\ns_add_u32 s{S_T0}, s{S_T0}, {WS_ST1}")
        e("s_mov_b32 exec_lo, 1\ns_mov_b32 exec_hi, 1")
        e(f"buffer_store_dwordx2 v[4:5], v6, s[{S_WS}:{S_WS+3}], s{S_T0} offen sc1")
        e("s_mov_b64 exec, -1")

    def p0_xb(self):
        e = self.e
        e("v_lshrrev_b32 v187, 2, v1\nv_lshlrev_b32 v187, 7, v187\nv_and_b32 v4, 3, v1\nv_lshl_add_u32 v187, v4, 3, v187")
        e("v_lshrrev_b32 v5, 4, v1\nv_lshlrev_b32 v3, 11, v5")
        e("v_bfe_u32 v4, v1, 1, 1\nv_lshl_add_u32 v3, v4, 10, v3")
        e("v_bfe_u32 v4, v1, 2, 2\nv_lshl_add_u32 v3, v4, 7, v3")
        e("v_and_b32 v4, 1, v1\nv_lshl_add_u32 v3, v4, 3, v3")
        e(f"s_lshl_b32 s{S_T1}, s{S_WV}, 5\ns_add_u32 s{S_T1}, s{S_T1}, {L_XT}\nv_add_u32 v188, s{S_T1}, v3")
        e("v_lshlrev_b32 v4, 10, v4\nv_lshl_add_u32 v4, v5, 5, v4")
        e("v_bfe_u32 v5, v1, 3, 1\nv_lshl_add_u32 v4, v5, 4, v4")
        e("v_bfe_u32 v5, v1, 1, 2\nv_lshl_add_u32 v189, v5, 14, v4")
        e(f"s_lshl_b32 s{S_T0}, s{S_XCD}, 19\ns_lshl_b32 s{S_T1}, s{S_WV}, 17\ns_add_u32 s{S_T0}, s{S_T0}, s{S_T1}")
        e(f"s_lshr_b32 s{S_T1}, s{S_IDX}, 3\ns_lshl_b32 s{S_T1}, s{S_T1}, 12\ns_add_u32 s{S_T0}, s{S_T0}, s{S_T1}")
        e(f"s_and_b32 s{S_T1}, s{S_IDX}, 7\ns_lshl_b32 s{S_T1}, s{S_T1}, 7\ns_add_u32 s{S_T0}, s{S_T0}, s{S_T1}\ns_add_u32 s46, s{S_T0}, {hx(WS_XB)}")
        e(f"s_add_u32 s47, s46, 0x10000")
    def p0_xb2(self):
        e = self.e
        for i in range(4): e(f"v_mov_b32 v{39+4*i}, s{S_TAG}")
        self.wait(self.T["xt"])
        e("s_barrier")
        tk = [self.tok(f"ds_read_b64_tr_b16 v[{36+4*k}:{37+4*k}], v188 offset:{512*(k&1) + 16*(k>>1)}") for k in range(4)]
        for k in range(4):
            self.wait(tk[k])
            e(f"v_mov_b32 v{38+4*k}, v{37+4*k}\nv_mov_b32 v{37+4*k}, s{S_TAG}")
            e(f"buffer_store_dwordx4 v[{36+4*k}:{39+4*k}], v189, s[{S_WS}:{S_WS+3}], s{46 + (k>>1)} offen offset:{2048*(k&1)} sc1")

    def p0_mod(self, which, nyoung, base=52, tokname=None):
        e = self.e
        skip = self.lab("nomod2")
        e(f"s_cmp_lg_u32 s{S_M+4}, {which}\ns_cbranch_scc1 {skip}")
        e("v_lshlrev_b32 v56, 16, v186\nv_and_b32 v57, 0xffff0000, v186")
        e(f"v_mul_f32 v58, {fl(-LOG2E)}, v56\nv_mul_f32 v59, {fl(-LOG2E)}, v57")
        e("v_exp_f32 v58, v58\nv_exp_f32 v59, v59")
        e("v_add_f32 v58, 1.0, v58\nv_add_f32 v59, 1.0, v59")
        e("v_rcp_f32 v58, v58\nv_rcp_f32 v59, v59")
        e("v_mul_f32 v56, v56, v58\nv_mul_f32 v57, v57, v59")
        e("v_cvt_pk_bf16_f32 v56, v56, v57")
        e(f"s_lshl_b32 s44, s{S_WV}, 8\ns_add_u32 s44, s44, {L_MOD + 16384}")
        e(f"v_lshl_add_u32 v57, v1, 2, s44")
        e("ds_write_b32 v57, v56")
        e("v_lshrrev_b32 v58, 4, v1")
        e(f"v_lshl_add_u32 v57, v58, 4, s44")
        e("v_lshl_add_u32 v59, v58, 9, v187")
        e(f"s_lshl_b32 s45, s{S_WV}, 5\ns_add_u32 s45, s45, {L_MOD}")
        e(f"v_add_u32 v59, s45, v59")
        self.p.wait_nt(self.T[tokname or "wm%d" % which])
        e("s_waitcnt lgkmcnt(0)\ns_barrier")
        for ks in range(4):
            e(f"ds_read_b128 v[{60+8*ks}:{63+8*ks}], v57 offset:{64*ks}")
            e(f"ds_read_b64_tr_b16 v[{64+8*ks}:{65+8*ks}], v59 offset:{4096*ks}")
            e(f"ds_read_b64_tr_b16 v[{66+8*ks}:{67+8*ks}], v59 offset:{4096*ks+512}")
        e(f"s_mul_i32 s44, s{S_M}, {3072*8}\ns_lshl_b32 s45, s{S_M+1}, 9\ns_add_u32 s44, s44, s45")
        e(f"s_lshl_b32 s45, s{S_WV}, 7\ns_add_u32 s44, s44, s45\ns_add_u32 s44, s44, {WS_MODP}")
        e("v_lshlrev_b32 v59, 3, v1")
        for ks in range(4):
            e(f"s_waitcnt lgkmcnt({9-3*ks})")
            e(f"v_mfma_f32_16x16x32_bf16 v[92:95], v[{60+8*ks}:{63+8*ks}], v[{64+8*ks}:{67+8*ks}], {'v[92:95]' if ks else '0'}")
        e("s_barrier")
        e(f"v_mov_b32 v93, s{S_TAG}")
        e("s_mov_b64 exec, 0xffff")
        self.p.nc(f"buffer_store_dwordx2 v[92:93], v59, s[{S_WS}:{S_WS+3}], s44 offen sc1")
        e("s_mov_b64 exec, -1")
        self.label(skip)

    def touch_w(self):
        e = self.e
        e(f"s_lshr_b32 s{S_T0}, s{S_WV}, 1\ns_lshl_b32 s{S_T1}, s2, 1\ns_add_u32 s{S_T0}, s{S_T0}, s{S_T1}\ns_mul_i32 s{S_T0}, s{S_T0}, {28*128}")
        e(f"v_min_u32 v3, 27, v1\nv_lshlrev_b32 v3, 7, v3\nv_add_u32 v3, s{S_T0}, v3")
        e("global_load_dword v198, v3, s[8:9]")
    def touch_wd(self, mode):
        e = self.e
        if mode == 1:
            e(f"s_sub_u32 s{S_T0}, s2, 192\ns_lshl_b32 s{S_T0}, s{S_T0}, 2\ns_add_u32 s{S_T0}, s{S_T0}, s{S_WV}\ns_mul_i32 s{S_T0}, s{S_T0}, {56*128}")
            e(f"s_cmp_lt_u32 s2, 192\ns_cselect_b32 s{S_T0}, 0x7f000000, s{S_T0}")
            e("v_min_u32 v197, 55, v1\nv_lshlrev_b32 v197, 7, v197")
        else:
            e(f"s_lshl_b32 s{S_T0}, s2, 2\ns_add_u32 s{S_T0}, s{S_T0}, s{S_WV}\ns_mul_i32 s{S_T0}, s{S_T0}, {14*128}")
            e("v_min_u32 v197, 13, v1\nv_lshlrev_b32 v197, 7, v197")
        e(f"buffer_load_dword v198, v197, s[{S_WD}:{S_WD+3}], s{S_T0} offen")

    def touch_wdx(self):
        e = self.e
        e(f"s_lshl_b32 s47, s{S_IDX}, 2\ns_add_u32 s47, s47, s{S_WV}\ns_mul_i32 s47, s47, {112*128}")
        e("v_min_u32 v138, 55, v1\nv_lshlrev_b32 v138, 7, v138")
        e(f"buffer_load_dword v139, v138, s[{S_WD}:{S_WD+3}], s47 offen")
        e(f"s_add_u32 s47, s47, {56*128}")
        e(f"buffer_load_dword v139, v138, s[{S_WD}:{S_WD+3}], s47 offen")

    def touch_wdx2(self):
        e = self.e
        e(f"s_mul_i32 s43, s{S_IDX}, {7*1024}\ns_mul_i32 s44, s{S_WV}, {448*1024}\ns_add_u32 s43, s43, s44\ns_add_u32 s43, s43, {224*1024}")
        e("v_min_u32 v138, 55, v1\nv_lshlrev_b32 v138, 7, v138")
        e(f"buffer_load_dword v139, v138, s[{S_WD}:{S_WD+3}], s43 offen")

    def w_setup(self):
        e = self.e
        e("v_lshrrev_b32 v241, 4, v1\nv_mul_u32_u24 v240, 3584, v241")
        e(f"s_and_b32 s13, s{S_WV}, 1\nv_lshl_add_u32 v241, v241, 1, s13")
        e("v_bfe_u32 v242, v1, 1, 3\nv_xor_b32 v241, v241, v242\nv_lshl_add_u32 v240, v241, 5, v240")
        e("v_and_b32 v241, 1, v1\nv_lshl_add_u32 v240, v241, 4, v240")
        e(f"s_lshr_b32 s14, s{S_WV}, 1\ns_mul_i32 s15, s14, {8*3584}")
        e(f"s_and_b32 s101, s{S_G2}, 0xffffff80\ns_lshl_b32 s101, s101, 1\ns_add_u32 s15, s15, s101")
        e(f"v_add_u32 v240, s15, v240\nv_add_u32 v247, {4*3584 - 1024}, v240")
        e("s_lshl_b32 s12, s13, 12\ns_lshl_b32 s14, s14, 11\ns_add_u32 s12, s12, s14")
        e("v_bfe_u32 v241, v1, 4, 1\nv_bfe_u32 v242, v1, 2, 2")
        e("v_lshl_add_u32 v243, v242, 1, v241")
        e(f"s_lshl_b32 s13, s{S_WV}, 1\nv_xor_b32 v243, s13, v243\nv_lshlrev_b32 v243, 5, v243")
        e("v_lshl_add_u32 v243, v241, 12, v243\nv_lshl_add_u32 v243, v242, 8, v243")
        e("v_lshrrev_b32 v241, 5, v1\nv_lshl_add_u32 v243, v241, 11, v243")
        e("v_and_b32 v241, 1, v1\nv_lshl_add_u32 v243, v241, 4, v243")
        e("v_bfe_u32 v241, v1, 1, 1\nv_lshl_add_u32 v241, v241, 3, v243")
        e("v_xor_b32 v242, 32, v241")
        e("v_add_u32 v243, 0x10000, v241\nv_add_u32 v244, 0x10000, v242\nv_add_u32 v245, 0x20000, v241\nv_add_u32 v246, 0x20000, v242")
        self.wt = {}
    def w_rot(self):
        e = self.e
        e(f"s_and_b32 s26, s{S_G1}, {7 if self.cfg['rot'] else 0}\ns_mul_i32 s101, s{S_G3}, {16*16*3584}")
        for j in range(8): e(f"s_add_u32 s{18+j}, s26, {j}\ns_and_b32 s{18+j}, s{18+j}, 7\ns_mul_i32 s{18+j}, s{18+j}, {16*3584}\ns_add_u32 s{18+j}, s{18+j}, s101")
    def w_issue(self, ks):
        e = self.e
        if self.cfg.get('noch'):
            self.wt[ks] = None; e("s_nop 0\ns_nop 0\ns_nop 0\ns_nop 0"); return
        e(f"s_add_u32 m0, s12, {wslot(ks)}\ns_add_u32 s14, s{18 + (ks & 7)}, {(ks >> 3)*8*16*3584}")
        self.tok("buffer_load_dwordx4 v240, s[8:11], s14 offen lds")
        self.wt[ks] = self.tok("buffer_load_dwordx4 v247, s[8:11], s14 offen offset:1024 lds")
    def w_read(self, ks):
        b = wslot(ks); t_ = None
        for t in range(2):
            for i in range(2):
                o = b + 1024*i
                t_ = self.tok(f"ds_read_b64_tr_b16 {ar((t*32+ks)*4+2*i,2)}, v{241 + 2*(o >> 16) + t} offset:{o & 0xffff}")
        return t_
    def w_issue_l(self, r):
        for ks in r: self.w_issue(ks)
    def w_chunks(self, r):
        out = []
        for ks in r:
            l = self.cap(lambda: self.w_issue(ks)); out += [l[:3], l[3:]]
        return out
    def w_read_l(self, r):
        t = None
        for ks in r: t = self.w_read(ks)
        return t

    U1 = 176; U2 = 208
    def modf_chk_only(self):
        e = self.e
        def chk(ex):
            for i in range(8):
                e(f"v_min3_u32 v232, v{201+4*i}, v{203+4*i}, {'v232' if i else 'v201'}\nv_max3_u32 v233, v{201+4*i}, v{203+4*i}, {'v233' if i else 'v201'}")
            e(f"v_xor_b32 v232, s{S_TAG}, v232\nv_xor_b32 v233, s{S_TAG}, v233\nv_or_b32 v232, v232, v233\nv_cmp_ne_u32 vcc, 0, v232")
        self.guard("mf", chk, lambda: (self.modf_issue(), e("s_waitcnt vmcnt(0)")))
    def gate_issue(self, base=WS_FL1):
        self.e(f"v_lshlrev_b32 v235, 6, v0\ns_mov_b32 s101, {base}")
        return self.tok(f"buffer_load_dword v234, v235, s[{S_WS}:{S_WS+3}], s101 offen sc1")
    def gate_check(self, tok):
        self.wait(tok)
        self.guard("gt", lambda ex: self.e(f"v_cmp_ne_u32 vcc, s{S_TAG}, v234"), lambda: (self.gate_issue(), self.e("s_waitcnt vmcnt(0)")))
    def u_addr(self, v, t):
        e = self.e
        e(f"v_bfe_u32 v{v}, v1, 4, 1\nv_mul_u32_u24 v{v}, {1792*16}, v{v}")
        e(f"v_bfe_u32 v{t}, v1, 2, 1\nv_lshl_add_u32 v{v}, v{t}, 7, v{v}")
        e(f"v_bfe_u32 v{t}, v1, 3, 1\nv_lshl_add_u32 v{v}, v{t}, 6, v{v}")
        e(f"v_and_b32 v{t}, 3, v1\nv_lshl_add_u32 v{v}, v{t}, 4, v{v}")
    def u_job(self):
        e = self.e
        self.modf_chk_only()
        for v in range(2):
            for c_ in (0, 2):
                b_ = 200 + 16*v + c_
                e(f"v_add_f32 v{b_}, v{b_}, v{b_+4}\nv_add_f32 v{b_+8}, v{b_+8}, v{b_+12}\nv_add_f32 v{b_}, v{b_}, v{b_+8}")
        e("v_cvt_pk_bf16_f32 v7, v200, v202\nv_cvt_pk_bf16_f32 v5, v216, v218")
        e("v_lshlrev_b32 v8, 16, v5\nv_and_b32 v9, 0xffff0000, v5\nv_add_f32 v8, 1.0, v8\nv_add_f32 v9, 1.0, v9\nv_cvt_pk_bf16_f32 v5, v8, v9")
        e(f"v_lshlrev_b32 v3, 2, v0\nv_add_u32 v3, {L_SS}, v3")
        e("ds_write2st64_b32 v3, v5, v7 offset0:0 offset1:4")
        e("v_and_b32 v2, 1, v1\nv_lshlrev_b32 v2, 10, v2\nv_lshrrev_b32 v4, 5, v1\nv_lshl_add_u32 v2, v4, 4, v2")
        e(f"s_lshl_b32 s101, s{S_G3}, 9\ns_add_u32 s101, s101, {L_SS}\nv_add_u32 v2, s101, v2")
        e("s_waitcnt vmcnt(4) lgkmcnt(0)\ns_barrier")
        for ks in range(self.cfg["nrec"], 16): self.w_read(ks)
        for ks in range(16): e(f"ds_read_b128 {vr(100+4*ks,4)}, v2 offset:{32*ks}")
        self.u_addr(40, 41)
        e(f"s_mul_i32 s101, s{S_G3}, {2*1792*16}\ns_lshl_b32 s44, s{S_G2}, 4\ns_add_u32 s101, s101, s44\ns_add_u32 s101, s101, {WS_U}")
        e("s_cmp_eq_u32 s10, 0\ns_cselect_b32 s101, 0x7f000000, s101")
        e("s_waitcnt lgkmcnt(0)")
        for ks in range(16):
            for t in range(2):
                acc = vr(4 + 16*t, 16)
                e(f"v_mfma_f32_32x32x16_bf16 {acc}, {vr(100+4*ks,4)}, {ar((t*32+ks)*4,4)}, {acc if ks else '0'}")
        for t in range(2):
            e(f"v_mov_b32 v{44+4*t}, v{4+16*t}\nv_mov_b32 v{45+4*t}, s{S_TAG}\nv_mov_b32 v{46+4*t}, v{5+16*t}\nv_mov_b32 v{47+4*t}, s{S_TAG}")
        e("s_mov_b32 s47, s101")
    def u_pub(self):
        e = self.e
        e("s_mov_b32 exec_hi, 0")
        for t in range(2): e(f"buffer_store_dwordx4 {vr(44+4*t,4)}, v40, s[{S_WS}:{S_WS+3}], s47 offen offset:{256*t} sc1")
        e("s_mov_b32 exec_hi, -1")

    def shadow1(self):
        e = self.e; c = self.cfg; cap = self.cap
        nr = c["nrec"]; n1 = 13 + nr
        assert nr == 8
        self.w_read_l(range(nr, 13))
        e(f"s_lshl_b32 s{S_T1}, s{S_WV}, 13")
        e(f"s_lshl_b32 s33, s{S_G1}, 10\ns_add_u32 s33, s33, {WS_ST2}")
        e("v_lshlrev_b32 v147, 4, v1")
        e(f"v_add_u32 v146, s{S_T1}, v147\nv_add_u32 v143, 0x10000, v146")
        e(f"s_lshl_b32 s{S_T0}, s{S_G1}, 17\ns_add_u32 s{S_T0}, s{S_T0}, s{S_T1}\ns_add_u32 s{S_T0}, s{S_T0}, {hx(WS_X1S)}")
        self.wait(self.wt[n1-1])
        e("s_waitcnt lgkmcnt(0)\ns_barrier")
        self.stamp(8)
        r = self.w_read_l(range(13, n1))
        self.w_issue_l(range(n1, 26))
        tg = self.gtok or self.gate_issue()
        e("v_lshrrev_b32 v144, 5, v1\nv_lshlrev_b32 v144, 9, v144")
        e("v_bfe_u32 v145, v1, 2, 2\nv_lshl_add_u32 v144, v145, 6, v144")
        e("v_bfe_u32 v145, v1, 4, 1\nv_lshl_add_u32 v144, v145, 5, v144")
        e("v_and_b32 v145, 3, v1\nv_lshl_add_u32 v144, v145, 3, v144")
        e("v_add_u32 v144, 0x10000, v144")
        for j in range(8): e(f"s_add_u32 s101, s26, {j}\ns_and_b32 s101, s101, 7\nv_lshl_add_u32 v{BA[j]}, s101, 10, v144")
        e("v_and_b32 v145, 31, v1\nv_lshlrev_b32 v145, 3, v145")
        for r_ in range(4): e(f"v_mov_b32 v{self.BX+4*r_+2}, 0\nv_mov_b32 v{self.BX+4*r_+3}, 0")
        e(f"v_mov_b32 v{self.AX+2}, 0\nv_mov_b32 v{self.AX+3}, 0\nv_mov_b32 v{self.AX+6}, 0\nv_mov_b32 v{self.AX+7}, 0\nv_mov_b32 v252, 0")
        self.u_addr(138, 139)
        e(f"s_lshl_b32 s35, s{S_G2}, 4\ns_add_u32 s35, s35, {WS_U}\ns_add_u32 s34, s35, {2*1792*16}")
        self.wd_setup_s()
        self.wait(r)
        e("s_barrier")
        self.w_issue_l(range(26, 26 + c["wx"]))
        self.gate_check(tg)
        self.stamp(27)
        self.xt = {}
        self.xt[0] = self.x1s_issue(0)
        self.xt[1] = self.x1s_issue(1)
        self.w_issue_l(range(26 + c["wx"], 32))
        self.htok = {}
        if c['fe'] == 3: self.hfill()
        self.g2_setup()
        self.stamp(9)
        self.x1s_guard(0, 148, self.xt[0])
        e("s_waitcnt lgkmcnt(0)\ns_barrier")
        self.stamp(12)

    def stats2_job(self, after_issue):
        e = self.e
        e(f"s_lshl_b32 s{S_T2}, s{S_XCD}, 2\ns_add_u32 s{S_T2}, s{S_T2}, s{S_IDX}\ns_sub_u32 s{S_T2}, s{S_T2}, 28")
        e(f"s_lshr_b32 s101, s{S_T2}, 1\ns_lshl_b32 s101, s101, 2\ns_and_b32 s{S_T2}, s{S_T2}, 1\ns_add_u32 s{S_T2}, s{S_T2}, s101")
        e(f"s_lshl_b32 s{S_T1}, s{S_WV}, 13")
        e(f"s_lshl_b32 s{S_T0}, s{S_T2}, 15\ns_add_u32 s{S_T0}, s{S_T0}, s{S_T1}\ns_add_u32 s{S_T0}, s{S_T0}, {hx(WS_X1)}")
        e("v_lshlrev_b32 v147, 4, v1\nv_lshlrev_b32 v146, 7, v1")
        e("v_lshrrev_b32 v144, 5, v1\nv_lshlrev_b32 v144, 9, v144")
        e("v_bfe_u32 v145, v1, 2, 2\nv_lshl_add_u32 v144, v145, 6, v144")
        e("v_bfe_u32 v145, v1, 4, 1\nv_lshl_add_u32 v144, v145, 5, v144")
        e("v_and_b32 v145, 3, v1\nv_lshl_add_u32 v144, v145, 3, v144")
        e(f"s_lshl_b32 s{S_T1}, s{S_WV}, 14\nv_add_u32 v144, s{S_T1}, v144")
        e(f"v_mov_b32 v60, 0x3f803f80\nv_and_b32 v61, 31, v1\nv_lshlrev_b32 v62, 3, v61\ns_lshl_b32 s101, s{S_WV}, 8\ns_add_u32 s101, s101, {L_SS}")
        e(f"v_add_u32 v63, s101, v62\nv_add_u32 v61, {L_SS}, v62")
        e(f"s_lshl_b32 s{S_T3}, s{S_T2}, 8\ns_add_u32 s{S_T3}, s{S_T3}, {WS_ST2}\ns_cmp_lg_u32 s{S_WV}, 0\ns_cselect_b32 s{S_T3}, 0x7f000000, s{S_T3}")
        e("s_barrier")
        self.guard("gt", lambda ex: e(f"v_cmp_ne_u32 vcc, s{S_TAG}, v234"), lambda: (self.gate_issue(), e("s_waitcnt vmcnt(0)")))
        e(f"s_mov_b32 s{S_SPIN}, {self.cfg['spin']}")
        lp = self.lab("pj"); go = self.lab("pg")
        self.label(lp)
        e(f"buffer_load_dword v64, v146, s[{S_WS}:{S_WS+3}], s{S_T0} offen sc1")
        e(f"buffer_load_dword v65, v146, s[{S_WS}:{S_WS+3}], s{S_T0} offen offset:64 sc1")
        e("s_waitcnt vmcnt(0)\nv_max_u32 v64, v64, v65\nv_cmp_eq_u32 vcc, -1, v64\ns_nop 1")
        e(f"s_cbranch_vccz {go}")
        self.spin_check(lp)
        self.label(go)
        def dma(b):
            for j in range(8):
                if j % 4 == 0: e(f"s_add_u32 m0, s{S_T1}, {b*8192 + j*1024}\ns_add_u32 s101, s{S_T0}, {b*65536 + j*1024}")
                e(f"buffer_load_dwordx4 v147, s[{S_WS}:{S_WS+3}], s101 offen offset:{(j%4)*1024} sc1 lds")
        dma(0); dma(1); after_issue()
        for b in range(2):
            def chk(ex, b=b):
                for j in range(16): e(f"ds_read_b64_tr_b16 {vr(68+2*j,2)}, v144 offset:{b*8192 + (j>>1)*1024 + (j&1)*256}")
                for j in range(32):
                    if j % 8 == 0: e(f"s_waitcnt lgkmcnt({12 - j//2})")
                    e(f"v_dot2_f32_bf16 v64, v{68+j}, v60, {'v64' if j else '0'}")
                    e(f"v_dot2_f32_bf16 v65, v{68+j}, v{68+j}, {'v65' if j else '0'}")
                e("s_nop 2\nv_cmp_u_f32 vcc, v65, v65")
            e(f"s_waitcnt vmcnt({10 if b == 0 else 3})")
            self.guard("g2", chk, lambda b=b: (dma(b), e("s_waitcnt vmcnt(0)")))
            e("v_mov_b32 v66, v64\nv_mov_b32 v67, v65\ns_nop 0\nv_permlane32_swap_b32 v64, v66\nv_permlane32_swap_b32 v65, v67\nv_add_f32 v64, v64, v66\nv_add_f32 v65, v65, v67")
            e(f"ds_write_b64 v63, v[64:65] offset:{1024*b}\ns_waitcnt lgkmcnt(0)\ns_barrier")
            for w in range(4): e(f"ds_read_b64 {vr(68+2*w,2)}, v61 offset:{1024*b + 256*w}")
            e("s_waitcnt lgkmcnt(0)")
            e("v_pk_add_f32 v[68:69], v[68:69], v[70:71]\nv_pk_add_f32 v[72:73], v[72:73], v[74:75]\nv_pk_add_f32 v[68:69], v[68:69], v[72:73]")
            self.stat_finish(68, 69, 70, 71)
            e(f"v_mov_b32 v69, s{S_TAG}")
            e(f"buffer_store_dwordx2 v[68:69], v62, s[{S_WS}:{S_WS+3}], s{S_T3} offen offset:{512*b} sc1")
            self.stamp(11 if b else 45)
        e("s_barrier")

    def wd_setup_s(self):
        e = self.e
        e(f"s_mul_i32 s{S_LDT}, s{S_WV}, {448*1024}")
        e(f"s_and_b32 s101, s{S_IDX}, 7\ns_lshl_b32 s101, s101, 7\ns_add_u32 s{S_LDT}, s{S_LDT}, s101")
        e(f"s_lshr_b32 s36, s{S_IDX}, 3\ns_lshl_b32 s36, s36, 1\ns_add_u32 s36, s36, s{S_IDX}\ns_and_b32 s36, s36, {7 if self.cfg['rot2'] else 0}")
        e("s_cmp_eq_u32 s36, 7\ns_cselect_b32 s36, 0, s36\ns_lshl_b32 s36, s36, 10")
        for j in range(1, 7): e(f"s_add_u32 s{36+j}, s{35+j}, 1024\ns_cmp_eq_u32 s{36+j}, 7168\ns_cselect_b32 s{36+j}, 0, s{36+j}")
        for b_ in range(1, 4): e(f"s_add_u32 s{27+b_}, s{S_LDT}, {b_*7*16384}")
        e(f"s_mul_i32 s{S_M+8}, s{S_WV}, 6144\ns_add_u32 s{S_M+8}, s{S_M+8}, {L_SP}")
        e(f"s_lshl_b32 s{S_M+9}, s{S_WV}, 13")
    def wd_setup_v(self):
        e = self.e
        e("v_lshrrev_b32 v240, 3, v1")
        e("v_bfe_u32 v241, v1, 4, 1\nv_lshlrev_b32 v241, 2, v241")
        e("v_and_b32 v242, 7, v1\nv_xor_b32 v241, v241, v242")
        e("v_lshlrev_b32 v240, 10, v240\nv_lshl_add_u32 v240, v241, 4, v240")
        e(f"v_add_u32 v241, {8192 - 1024}, v240")
        e("v_lshrrev_b32 v242, 5, v1\nv_lshlrev_b32 v242, 10, v242")
        e("v_bfe_u32 v243, v1, 2, 2\nv_lshl_add_u32 v242, v243, 7, v242")
        e("v_bfe_u32 v243, v1, 3, 1\nv_lshl_add_u32 v242, v243, 6, v242")
        e("v_and_b32 v243, 1, v1\nv_lshl_add_u32 v242, v243, 5, v242")
        e("v_bfe_u32 v243, v1, 1, 1\nv_lshl_add_u32 v242, v243, 3, v242")
        e("v_bfe_u32 v243, v1, 4, 1\nv_lshl_add_u32 v242, v243, 4, v242")
        e(f"v_add_u32 v244, s{S_M+9}, v242\nv_xor_b32 v245, 64, v244\nv_add_u32 v246, 0x10000, v244\nv_add_u32 v247, 0x10000, v245")
        e(f"v_add_u32 v242, s{S_M+8}, v242\nv_xor_b32 v243, 64, v242")
    def wd_setup(self):
        self.wd_setup_s(); self.wd_setup_v()
    NV = 5
    WPOS = [0, 1, 2, 3, 4, 5, 6, 0, 1, 2, 7, 8, 9, 10, 3, 4, 11, 12, 13, 14, 5, 6, 0, 1, 2, 7, 8, 9]
    WPREV = {7: 0, 8: 1, 9: 2, 14: 3, 15: 4, 20: 5, 21: 6, 22: 7, 23: 8, 24: 9, 25: 10, 26: 11, 27: 12}
    def wd_loc(self, ks):
        sl = self.WPOS[ks]
        if sl < 3: return 0, 2048*sl
        q, r = divmod(sl - 3, 4)
        return 1, (3 - q)*32768 + 2048*r
    def WA(self, ks, t, off=0, n=4):
        if ks < self.NV: return vr(200 + 8*ks + 4*t + off, n)
        return ar((t*32 + ks - self.NV)*4 + off, n)
    def wd_issue(self, ks):
        e = self.e
        r, o = self.wd_loc(ks)
        e(f"s_add_u32 m0, s{S_M+8+r}, {o}\ns_lshl4_add_u32 s15, s{36 + ks % 7}, s{S_LDT if ks < 7 else 27 + ks // 7}")
        self.tok(f"buffer_load_dwordx4 v240, s[{S_WD}:{S_WD+3}], s15 offen lds")
        self.wdt[ks] = self.tok(f"buffer_load_dwordx4 v241, s[{S_WD}:{S_WD+3}], s15 offen offset:1024 lds")
    def wd_chunks(self, r):
        out = []
        for ks in r:
            l = self.cap(lambda: self.wd_issue(ks)); out += [l[:3], l[3:]]
        return out
    def wd_read(self, ks):
        r, o = self.wd_loc(ks); t_ = None
        for t in range(2):
            for i in range(2):
                oo = o + 512*i
                reg = 242 if r == 0 else (244 if oo < 65536 else 246)
                t_ = self.tok(f"ds_read_b64_tr_b16 {self.WA(ks, t, 2*i, 2)}, v{reg+t} offset:{oo & 0xffff}")
        return t_

    def gemm1f(self):
        e = self.e; c = self.cfg; cap = self.cap
        e(f"s_mov_b32 s{S_T2}, s{self.S_HB}\ns_mov_b32 s{S_T3}, {fl(-GC)}")
        ACC = [4, 36, 68]; BR = 100; R = 6
        seq = [(0, k) for k in range(16)] + [(1, k) for k in range(16)] + [(0, k) for k in range(16, 32)] + [(1, k) for k in range(16, 32)] + [(g, k) for g in (2, 3) for k in range(32)]
        def bread(n):
            g, ks = seq[n]; b = BR + 4*(n % R); base = self.XT(g); ad = BA[ks & 7]
            o = base % 65536 + (ks >> 3)*8192
            self.tok(f"ds_read_b64_tr_b16 {vr(b,2)}, v{ad} offset:{o}")
            t_ = self.tok(f"ds_read_b64_tr_b16 {vr(b+2,2)}, v{ad} offset:{o+256}")
            if g == 1 and ks >= 24: e(f"v_add_u32 v{ad}, 0xffff0000, v{ad}")
            return t_
        PF = R - 1
        tk = {}
        for n in range(PF): tk[n] = bread(n)
        ST = [128, 130, 132, 134]
        def st_issue(h):
            t = None
            for g in (2*h, 2*h+1):
                t = self.tok(f"buffer_load_dwordx2 {vr(ST[g],2)}, v145, s[{S_WS}:{S_WS+3}], s33 offen offset:{256*g} sc1")
            return t
        def st_guard(h, tok):
            def st_chk(ex):
                e(f"v_xor_b32 v136, s{S_TAG}, v{ST[2*h]+1}\nv_xor_b32 v137, s{S_TAG}, v{ST[2*h+1]+1}\nv_or_b32 v136, v136, v137\nv_cmp_ne_u32 vcc, 0, v136")
            self.wait(tok)
            self.guard("st", st_chk, lambda: (st_issue(h), e("s_waitcnt vmcnt(0)")))
            e("s_mov_b32 s44, 0x03020302\ns_mov_b32 s43, 0x01000100")
            for g in (2*h, 2*h+1):
                b = ST[g]; x = self.BX + 4*g
                e(f"v_lshlrev_b32 v{b+1}, 16, v{b}\nv_rcp_f32 v136, v{b+1}")
                e(f"v_perm_b32 v{x}, v{b}, v{b}, s44\nv_perm_b32 v{x+1}, v{b}, v{b}, s43")
                e(f"v_mul_f32 v{b}, {fl(GAM)}, v136\nv_xor_b32 v{x}, 0x80008000, v{x}\nv_mul_f32 v{b+1}, {fl(GAM)}, v{b+1}")
        UR = 200
        def u_issue():
            t_ = None
            for t in range(2):
                for h in range(2):
                    t_ = self.tok(f"buffer_load_dwordx4 {vr(UR+8*t+4*h,4)}, v138, s[{S_WS}:{S_WS+3}], s{35-h} offen offset:{256*t} sc1")
            return t_
        def u_chk(ex):
            for i in range(4): e(f"v_min3_u32 v136, v{UR+4*i+1}, v{UR+4*i+3}, {'v136' if i else 'v%d' % (UR+1)}\nv_max3_u32 v137, v{UR+4*i+1}, v{UR+4*i+3}, {'v137' if i else 'v%d' % (UR+1)}")
            e(f"v_xor_b32 v136, s{S_TAG}, v136\nv_xor_b32 v137, s{S_TAG}, v137\nv_or_b32 v136, v136, v137\nv_cmp_ne_u32 vcc, 0, v136")
        def u_guard(tok):
            self.wait(tok)
            self.guard("mf", u_chk, lambda: (u_issue(), e("s_waitcnt vmcnt(0)")))
            e("v_cmp_gt_u32 vcc, 32, v1")
            for t in range(2):
                for k in range(2):
                    u = UR + 8*t + 2*k; d = self.AX + 4*t + k
                    e(f"v_add_f32 v{u}, v{u}, v{u+4}\nv_cvt_pk_bf16_f32 v136, v{u}, v{u}\nv_and_b32 v136, 0xffff0000, v136\nv_sub_f32 v136, v{u}, v136")
                    e(f"v_cvt_pk_bf16_f32 v136, v{u}, v136\nv_cndmask_b32 v{d}, 0, v136, vcc")
        STN = [8, 16, 24, 32, 40, 48, 56, 64, 80, 96, 104, 112, 120]
        def steps(n0, n1):
            for n in range(n0, n1):
                g, ks = seq[n]
                if n in STN: self.stamp(30 + STN.index(n))
                self.wait(tk[n])
                for t in range(2):
                    acc = vr(ACC[g % 3] + 16*t, 16)
                    e(f"v_mfma_f32_32x32x16_bf16 {acc}, {ar((t*32+ks)*4,4)}, {vr(BR+4*(n%R),4)}, {acc if ks else '0'}")
                    if t == 0 and n + PF < 128: tk[n+PF] = bread(n+PF)
                    if t == 1:
                        for it in extra.get(n, []): self.p.put(it() or [])
                if ks == 31 and g: self.g1_fold(g, ACC[g % 3])
        extra = {}
        def seg(n0, n1, fill, flush=True, pace=None):
            m = cap(lambda: steps(n0, n1))
            m, left = merge(m, fill, 24, pace=pace or c["gpace"])
            self.p.put(m)
            if flush:
                if left: sys.stderr.write(f"flush {len(left)} at {n1}\n")
                self.p.put(left); return []
            return left
        xt = self.xt; hold = {}; self.wdt = {}; self.rd = {}; self.ht = {}
        def at(n, fn): extra.setdefault(n, []).append(fn)
        def spread_vm(n0, fn, per=1, step=1):
            box = {}
            def first():
                box["l"] = cap(fn)
            def part():
                if "l" not in box: first()
                out = []; k = 0
                while box["l"] and k < per:
                    i = box["l"].pop(0); out.append(i)
                    if i.wait is None and i.text.startswith("buffer_"): k += 1
                return out
            cnt = sum(1 for i in self.peek(fn) if i.wait is None and i.text.startswith("buffer_"))
            nst = -(-cnt // per)
            for j in range(nst): at(n0 + j*step, part)
            return n0 + nst*step
        def wrd(ks):
            def f():
                self.wait(self.wdt[ks]); self.rd[ks] = self.wd_read(ks)
            return f
        def wis(ks):
            def f():
                if ks in self.WPREV: self.wait(self.rd[self.WPREV[ks]])
                self.wd_issue(ks)
            return f
        if c["fe"] == 1: spread_vm(c["fe0"], self.hfill, step=c["fes"])
        n = spread_vm(c["b2"], lambda: xt.__setitem__(2, self.x1s_issue(2)))
        n = spread_vm(max(n, c["b3"]), lambda: xt.__setitem__(3, self.x1s_issue(3)))
        at(c["flp"], lambda: self.hflag("fill", 252, 253))
        spread_vm(c["ui"], lambda: hold.__setitem__("u", u_issue()), per=1)
        n = spread_vm(max(n, c["sti"]), lambda: hold.__setitem__("t0", st_issue(0)), per=2)
        for ks in range(3): n = spread_vm(n, wis(ks))
        n = c["b4"]
        for ks in range(3, 7): n = spread_vm(n, wis(ks))
        for j in range(3): at(c["b4"] + 1 + 2*j, wrd(j))
        at(n, lambda: hold.__setitem__("t1", st_issue(1))); n += 1
        for ks in range(7, 10): n = spread_vm(n, wis(ks))
        n = max(n, 67)
        for ks in range(10, 14): n = spread_vm(n, wis(ks))
        at(68, wrd(3)); at(70, wrd(4))
        for ks in (14, 15): n = spread_vm(n, wis(ks))
        if c["twx"]: at(n + 1, lambda: self.touch_wdx2())
        n = 98
        for ks in range(16, 20): n = spread_vm(n, wis(ks))
        for j in range(c["nrd"]): at(min(127, 98 + c["rss"]*j), wrd(5 + j))
        at(c["f0k"], lambda: hold.__setitem__("f0", self.fl_issue(0, 140, 144)))
        for ks in range(20, 20 + c["nrc"]): n = spread_vm(n, wis(ks))
        def f0g():
            self.wait(hold["f0"])
            self.guard("f0", lambda ex: e(f"v_cmp_ne_u32 vcc, s{S_TAG}, v144"), lambda: (self.fl_issue(0, 140, 144), e("s_waitcnt vmcnt(0)")))
        at(c["f0k"] + 10, f0g)
        n = max(n, c["f0k"] + 11)
        nhe = min(8, 128 - n, c["nhe"])
        for j in range(nhe): at(n + j, lambda j=j: self.hl(0, j, 147))
        seg(0, c["b1"] - 4, [])
        seg(c["b1"] - 4, c["b1"], cap(lambda: self.x1s_guard(1, 148, xt[1])))
        e("s_barrier")
        seg(c["b1"], c["b2"], cap(lambda: self.wait(self.w_read_l(range(21, 26)), self.wt[31])))
        e("s_barrier")
        seg(c["b2"], c["b3"], cap(lambda: self.wait(self.w_read_l(range(26, 32)))))
        e("s_barrier")
        seg(c["b3"], c["uk"], cap(self.wd_setup_v))
        seg(c["uk"], c["stk"], cap(lambda: (u_guard(hold["u"]), self.x1s_guard(2, 148, xt[2]))))
        self.stamp(13)
        seg(c["stk"], 48, cap(lambda: st_guard(0, hold["t0"])))
        self.g1_fold(0, ACC[0])
        pend = seg(48, c["b4"], cap(lambda: self.x1s_guard(3, 148, xt[3])) + self.g1_epilogue(0, ACC[0], ST[0]), flush=False)
        assert not any(i.kind == "label" for i in pend)
        e("s_barrier")
        pend = seg(c["b4"], 64, pend, flush=False)
        ep1 = self.g1_epilogue(1, ACC[1], ST[1], split=True)
        pend = seg(64, 66, pend + ep1[0], flush=False)
        e("s_barrier")
        pend = seg(66, c["st1k"], pend, flush=False)
        pend = seg(c["st1k"], 96, cap(lambda: st_guard(1, hold["t1"])) + pend + ep1[1], flush=False)
        n1_ = len(pend)
        pend = seg(96, 98, pend + self.g1_epilogue(2, ACC[2], ST[2]), flush=False)
        sys.stderr.write(f"ep1 backlog at 96: {n1_}\n")
        e("s_barrier")
        pend = seg(98, 128, pend, flush=False)
        sys.stderr.write(f"tail leftover {len(pend)} nhe {nhe}\n")
        self.stamp(14)
        self.p.put(pend)
        hch = [cap(lambda: self.hl(0, ks, 147)) for ks in range(nhe, nhe + c["nh"])]
        self.p.put(weave(self.g1_epilogue(3, ACC[0], ST[3]), hch, c["hw"]))
        self.stamp(15)

    HB = 68
    def HR(self, ks): return 68 + 4*ks if ks < 14 else (200 + 4*(ks-14) if ks < 24 else 124 + 4*(ks-24))
    def g2_setup(self):
        e = self.e
        self.g2_map()
        e(f"s_mul_i32 s{S_M+2}, s{S_WV}, {14*64}\ns_add_u32 s{S_M+2}, s{S_M+2}, {WS_FL2}")
        e(f"s_mul_i32 s{S_M+3}, s{S_G2}, {56*64}\ns_add_u32 s{S_M+3}, s{S_M+3}, s{S_M+2}")
        e(f"s_and_b32 s44, s{S_G1}, 0xfffffffc\ns_mul_i32 s44, s44, {56*64}\ns_add_u32 s{S_M+2}, s{S_M+2}, s44")
        e(f"s_mul_i32 s{S_M+4}, s{S_G1}, {112*1024}\ns_mul_i32 s{S_M+5}, s{S_G2}, {112*1024}")
        e(f"s_mul_i32 s{S_M+6}, s{S_WV}, {28*1024}\ns_add_u32 s{S_M+6}, s{S_M+6}, {hx(WS_H)}")
        e(f"s_add_u32 s{S_M+4}, s{S_M+4}, s{S_M+6}\ns_add_u32 s{S_M+5}, s{S_M+5}, s{S_M+6}")
        for b_ in range(4): e(f"s_add_u32 s{18+b_}, s{S_M+4}, {b_*7168}\ns_add_u32 s{22+b_}, s{S_M+5}, {b_*7168}")
        e(f"s_lshr_b32 s45, s{S_WV}, 1\ns_sub_u32 s44, s{S_G2}, s{S_G1}\ns_mul_i32 s45, s45, s44\ns_add_u32 s45, s45, s{S_G1}")
        e(f"s_and_b32 s46, s{S_WV}, 1\ns_lshl_b32 s46, s46, 5\ns_lshl_b32 s44, s{S_G3}, 6\ns_add_u32 s46, s46, s44")
        e(f"s_lshl_b32 s{S_M}, s45, 15\ns_lshl_b32 s{S_M+1}, s46, 6\ns_add_u32 s{S_M}, s{S_M}, s{S_M+1}\ns_add_u32 s{S_M}, s{S_M}, {hx(WS_X1)}")
        e(f"s_lshl_b32 s{S_M+1}, s{S_WV}, 11\ns_add_u32 s{S_M+1}, s{S_M+1}, {L_XR2}")
        e("v_min_u32 v140, 13, v1\nv_lshlrev_b32 v140, 6, v140")
    def fl_issue(self, nt, va, vd): return self.tok(f"buffer_load_dword v{vd}, v{va}, s[{S_WS}:{S_WS+3}], s{S_M+2+nt} offen sc1")
    def HX(self, nt, ks):
        spare = [92 + 4*i for i in range(9)] + [220 + 4*i for i in range(9)]
        if nt == 0: return vr(36 + 4*ks, 4) if ks < 26 else ar(spare[ks - 26], 4)
        if ks < 16: return ar(spare[2 + ks], 4)
        return vr(36 + 4*(ks - 8), 4)
    def hl(self, nt, ks, va):
        self.e(f"s_add_u32 s47, s{36 + ks % 7}, s{18 + 4*nt + ks // 7}")
        self.ht[(nt, ks)] = self.tok(f"buffer_load_dwordx4 {self.HX(nt, ks)}, v{va}, s[{S_WS}:{S_WS+3}], s47 offen sc1")
    def gemm2f(self):
        e = self.e; c = self.cfg; cap = self.cap
        rd = self.rd; ht = self.ht
        e(f"v_mov_b32 v182, v147\nv_min_u32 v183, 27, v1\nv_lshlrev_b32 v183, 10, v183")
        e("s_barrier")
        todo = [ks for ks in range(28) if ks not in self.wdt]
        for ks in range(28):
            if ks not in rd and any(self.WPREV.get(k2) == ks for k2 in todo):
                self.wait(self.wdt[ks]); rd[ks] = self.wd_read(ks)
        self.stamp(16)
        order = []
        for ks in range(28):
            if ks in todo: order.append(("w", ks))
            if (0, ks) not in ht: order.append(("h", ks))
        def iss(it):
            if it[0] == "h": self.hl(0, it[1], 182)
            else:
                self.wait(rd[self.WPREV[it[1]]]); self.wd_issue(it[1])
        def mm(nt, ks):
            for t in range(2):
                acc = vr(4 + 32*nt + 16*t, 16)
                e(f"v_mfma_f32_32x32x16_bf16 {acc}, {self.WA(ks, t)}, {self.HX(nt, ks)}, {acc if ks else '0'}")
        probe = lambda: self.tok(f"buffer_load_dword v184, v183, s[{S_WS}:{S_WS+3}], s{S_M+5} offen sc1")
        def hguard(nt, k0):
            def hchk(ex):
                for j in range(7):
                    op = self.HX(nt, k0 + j); b_ = int(op[2:op.index(":")])
                    if op[0] == "a": e(f"v_accvgpr_read_b32 v190, a{b_}"); src = "v190"
                    else: src = f"v{b_}"
                    e(f"v_max_u32 v189, {src}, {'v189' if j else src}")
                e("v_cmp_eq_u32 vcc, -1, v189")
            def reis():
                keep_ = dict(ht)
                for j in range(7): self.hl(nt, k0 + j, 182)
                ht.update(keep_); e("s_waitcnt vmcnt(0)")
            self.wait(*[ht[(nt, k0 + j)] for j in range(7)])
            self.guard("hc", hchk, reis)
        self.hguard = hguard
        rest = list(order)
        KC = c["kc"]; f1 = None
        def rdw(ks):
            if ks < 28 and ks not in rd:
                self.wait(self.wdt[ks]); rd[ks] = self.wd_read(ks)
        rdw(0)
        for ks in range(KC):
            for _ in range(c["npi"]):
                if rest: iss(rest.pop(0))
            while rest and rest[0][1] <= 7*(ks // 7) + 7: iss(rest.pop(0))
            if ks >= c["kf"] and not rest and f1 is None: f1 = probe()
            rdw(ks + 1)
            if ks % 7 == 0: hguard(0, ks)
            self.wait(rd[ks]); mm(0, ks)
        assert not rest and f1 is not None
        slow = self.lab("g2slow"); jn = self.lab("g2j")
        self.wait(f1)
        e(f"v_cmp_eq_u32 vcc, -1, v184\ns_cbranch_vccnz {slow}")
        pendw = [ks for ks in range(28) if ks not in rd]
        nx = 0
        for ks in range(KC, 28):
            for _ in range(c["nb"]):
                if nx < 28 and (nx < 16 or nx - 8 < ks): self.hl(1, nx, 182); nx += 1
            rdw(ks + 1)
            if ks % 7 == 0: hguard(0, ks)
            self.wait(rd[ks]); mm(0, ks)
        while nx < 28: self.hl(1, nx, 182); nx += 1
        self.label(jn)
        keep = dict(ht)
        def rout():
            lp = self.lab("g2l"); ok = self.lab("g2ok")
            self.label(slow)
            e("s_waitcnt vmcnt(0)")
            for ks in pendw: self.wd_read(ks)
            probe()
            e("s_waitcnt lgkmcnt(0)")
            for ks in range(KC, 28):
                if ks % 7 == 0:
                    body = cap(lambda: hguard(0, ks)); self.p.put([i for i in body if i.wait is None])
                mm(0, ks)
            e(f"s_mov_b32 s{S_SPIN}, {self.cfg['spin']}")
            self.label(lp)
            e(f"s_waitcnt vmcnt(0)\nv_cmp_eq_u32 vcc, -1, v184\ns_nop 1\ns_cbranch_vccz {ok}")
            probe()
            self.spin_check(lp)
            e("s_waitcnt vmcnt(0)")
            self.label(ok)
            if c.get("stamps"): e("v_writelane_b32 v255, 1, 51")
            for ks in range(28): self.hl(1, ks, 182)
            e(f"s_branch {jn}")
        self.ool += cap(rout)
        ht.update(keep)
        self.stamp(19)
        def extras():
            e(f"s_mov_b32 m0, s{S_M+1}\ns_nop 0")
            self.tok(f"buffer_load_dwordx4 v182, s[{S_WS}:{S_WS+3}], s{S_M} offen sc1 lds")
            self.xr = self.tok(f"buffer_load_dwordx4 v182, s[{S_WS}:{S_WS+3}], s{S_M} offen offset:1024 sc1 lds")
            e("v_lshrrev_b32 v185, 5, v1\nv_lshlrev_b32 v185, 6, v185")
            e(f"s_lshl_b32 s{S_M+2}, s{S46}, 2\ns_add_u32 s{S_M+2}, s{S_M+2}, {WS_MODF}")
            for j in range(4): self.gbt = self.tok(f"buffer_load_dwordx4 {vr(140+4*j,4)}, v185, s[{S_WS}:{S_WS+3}], s{S_M+2} offen offset:{16*j} sc1")
        def wr(T):
            for j in range(4): e(f"ds_write_b128 v{186 + (T >> 1)}, {vr(4+16*T+4*j,4)} offset:{(T & 1)*32768 + 1024*j}")
        def addrs():
            e(f"v_add_u32 v186, s{S_M+9}, v182\nv_add_u32 v187, 0x10000, v186")
            e(f"s_lshl_b32 s{S_T0}, s{S_WV}, 15\nv_add_u32 v188, s{S_T0}, v182")
            e("v_lshrrev_b32 v248, 5, v1\nv_lshlrev_b32 v248, 10, v248")
            e("v_bfe_u32 v249, v1, 2, 2\nv_lshl_add_u32 v248, v249, 6, v248")
            e("v_bfe_u32 v249, v1, 4, 1\nv_lshl_add_u32 v248, v249, 5, v248")
            e("v_and_b32 v249, 3, v1\nv_lshl_add_u32 v248, v249, 3, v248")
            e(f"v_add_u32 v248, s{S_M+1}, v248")
            e("v_and_b32 v249, 31, v1\nv_lshlrev_b32 v249, 10, v249")
            e("v_lshrrev_b32 v250, 5, v1\nv_lshl_add_u32 v249, v250, 5, v249")
            e(f"s_lshl_b32 s{S_T0}, s{S45}, 15\ns_lshl_b32 s{S_T1}, s{S46}, 1\ns_add_u32 s{S_T0}, s{S_T0}, s{S_T1}")
        def resid():
            self.wait(self.xr)
            tk = [self.tok(f"ds_read_b64_tr_b16 {vr(172+2*j,2)}, v248 offset:{256*j}") for j in range(4)]
            self.wait(tk[3])
            def rchk(ex):
                e("v_pk_max_u16 v190, v172, v173")
                for j in range(2, 8): e(f"v_pk_max_u16 v190, v190, v{172+j}")
                e("v_lshrrev_b32 v191, 16, v190\nv_and_b32 v190, 0xffff, v190\nv_max_u32 v190, v190, v191\nv_cmp_eq_u32 vcc, 0xffff, v190")
            def rre():
                e(f"s_mov_b32 m0, s{S_M+1}\ns_nop 0")
                e(f"buffer_load_dwordx4 v182, s[{S_WS}:{S_WS+3}], s{S_M} offen sc1 lds\nbuffer_load_dwordx4 v182, s[{S_WS}:{S_WS+3}], s{S_M} offen offset:1024 sc1 lds\ns_waitcnt vmcnt(0)")
                for j in range(4): e(f"ds_read_b64_tr_b16 {vr(172+2*j,2)}, v248 offset:{256*j}")
                e("s_waitcnt lgkmcnt(0)")
            self.guard("rs", rchk, rre)
            for j in range(8): e(f"v_lshlrev_b32 v{156+2*j}, 16, v{172+j}\nv_and_b32 v{157+2*j}, 0xffff0000, v{172+j}")
        def nt1():
            for ks in range(28):
                if ks % 7 == 0: hguard(1, ks)
                mm(1, ks)
        fill = cap(extras) + cap(addrs) + cap(lambda: (wr(0), wr(1))) + cap(resid)
        m, left = merge(cap(nt1), fill, 24, pace=1); self.p.put(m + left)
        self.stamp(17)
        wr(2); wr(3)
        e("s_waitcnt lgkmcnt(0)\ns_barrier")
        rt = {}
        for w in range(4):
            for j in range(4): rt[(w, j)] = self.tok(f"ds_read_b128 {vr(68+16*w+4*j,4)}, v188 offset:{8192*w + 1024*j}")
        self.wait(rt[(1, 3)])
        for j in range(8): e(f"v_pk_add_f32 {vr(68+2*j,2)}, {vr(68+2*j,2)}, {vr(84+2*j,2)}")
        self.wait(rt[(3, 3)], self.gbt)
        for j in range(8): e(f"v_pk_add_f32 {vr(100+2*j,2)}, {vr(100+2*j,2)}, {vr(116+2*j,2)}")
        for h in range(2):
            for j in range(4*h, 4*h+4): e(f"v_pk_add_f32 {vr(68+2*j,2)}, {vr(68+2*j,2)}, {vr(100+2*j,2)}")
            for j in range(4*h, 4*h+4): e(f"v_pk_fma_f32 {vr(68+2*j,2)}, {vr(68+2*j,2)}, {vr(140+2*j,2)}, {vr(156+2*j,2)}")
            for j in range(4*h, 4*h+4): e(f"v_cvt_pk_bf16_f32 v{24+j}, v{68+2*j}, v{69+2*j}")
            e(f"buffer_store_dwordx4 {vr(24+4*h,4)}, v249, s[{S_OUT}:{S_OUT+3}], s{S_T0} offen offset:{16*h}")
        self.stamp(18)

    def bump_epoch(self):
        e = self.e
        sk = self.lab("ep")
        e("s_cmp_lg_u32 s2, 0")
        e(f"s_cbranch_scc1 {sk}")
        e(f"s_add_u32 s{S_T0}, s{S_E}, 1")
        e(f"v_mov_b32 v3, s{S_T0}\nv_mov_b32 v4, 0")
        e("s_mov_b64 exec, 1")
        e(f"buffer_store_dword v3, v4, s[{S_WS}:{S_WS+3}], 0 offen sc1")
        e("s_mov_b64 exec, -1")
        self.label(sk)
    def finish(self):
        if self.cfg.get("hold"):
            self.label("F_hold")
            self.e(f"s_memrealtime s[{S_ST}:{S_ST+1}]\ns_waitcnt lgkmcnt(0)\ns_sub_u32 s{S_T0}, s{S_ST}, s34\ns_cmp_lt_u32 s{S_T0}, {self.cfg['hold']}\ns_cbranch_scc1 F_hold")
        self.stamp_flush()
        self.label(f"{self.cfg['uid']}_end")
        self.e("s_endpgm")
        ins = resolve(self.p.take()) + self.ool
        ins, n = pad_hazards(ins)
        check_labels(ins)
        return render(ins)
def kernel_text(name, body, vgpr=512, accum=256):
    return f""".text
.globl {name}
.p2align 8
.type {name},@function
{name}:
{body}
.section .rodata,"a"
.p2align 6
.amdhsa_kernel {name}
  .amdhsa_next_free_vgpr {vgpr}
  .amdhsa_next_free_sgpr 102
  .amdhsa_accum_offset {accum}
  .amdhsa_group_segment_fixed_size 0
  .amdhsa_kernarg_size 144
  .amdhsa_user_sgpr_count 2
  .amdhsa_user_sgpr_kernarg_segment_ptr 1
  .amdhsa_system_sgpr_workgroup_id_x 1
.end_amdhsa_kernel
"""

def build(stamps=False, over={}):
    hdr = open("adaLN_cond__ssm_conv_s4__glu_gated_geglu__prompt.s.ref").read().split("; Override launch")[0]
    cfg = dict(spin=200000, stamps=stamps, uid="F", b1=11, b2=17, b3=23, flp=52, ui=26, uk=34, sti=35, stk=44, fe0=0, fes=2, b4=50, st1k=72, nrd=12, rss=2, nhe=8, wx=6, kc=10, kf=4, nb=3, npi=3, nh=10, hw=13, nrc=8, cpf=9, rc0=3, rcs=2, f0k=104, fe=1, g0at=12, twx=0, npre=16, ga=24, cpace=4, gpace=2, nb1=0, twd=2, touch=2, fpos=1, wa0=4, map8=1, rot=1, rot2=1, split=0, nbp=0, nb2=5, adapt=1, s2b=1, nx1=8, nrec=8, wpre=12, itb=1)
    cfg.update(over)
    g = G(cfg); e = g.e
    g.prologue()
    g.p0_issue()
    g.srds_late()
    g.g1_map(); g.w_setup(); g.hbase()
    g.w_rot(); g.conv_setup(); g.p0_xb()
    g.tag_ready(); g.stamp(1)
    g.kgen_pre()
    e(f"v_mov_b32 v253, s{S_TAG}")
    g.p0_stats(); g.stamp(2)
    g.p0_xb2(); g.stamp(23)
    g.wm_issue(1)
    hold = {}
    if cfg['touch'] == 2: g.touch_w()
    if cfg['twd'] == 1: g.touch_wd(1)
    g.wait(g.T["c"]); g.stamp(20)
    if cfg["adapt"]:
        ny = 1 + 4 + 4 + (1 if cfg['touch'] == 2 else 0) + (1 if cfg['twd'] == 1 else 0)
        e(f"s_getreg_b32 s13, hwreg(HW_REG_IB_STS, 0, 4)")
        if stamps: e("v_writelane_b32 v255, s13, 61")
        e(f"s_cmp_le_u32 s13, {ny}\ns_cselect_b32 s13, 3, 0\ns_add_u32 s15, s{S_M+4}, s13\ns_mov_b32 s{S_M+4}, s15")
        g.p0_mod(3, 5, tokname="wm0")
    g.kgen_tab([])
    g.stamp(24)
    g.p0_mod(0, 5); g.stamp(22)
    if cfg["adapt"]: e(f"s_cmp_ge_u32 s{S_M+4}, 3\ns_cselect_b32 s13, 3, 0\ns_sub_u32 s{S_M+4}, s{S_M+4}, s13")
    if cfg['touch'] == 1: g.touch_w()
    nb1 = cfg["nb1"]
    if cfg['fpos'] == 1: hold['fill'] = g.xfill()
    g.kgen_post()
    g.w_issue_l(range(0, nb1))
    g.stamp(3)
    def fillch():
        if cfg['fpos'] == 1: return []
        f0, hold["fill"] = g.capture(g.xfill)
        return [f0[2*i:2*i+2] for i in range(4)]
    g.hbuild(after_first=lambda: (g.p0_mod(1, 0, base=60), g.w_issue_l(range(nb1, cfg['nbp']))), mid=lambda: fillch() + g.w_chunks(range(cfg['nbp'], cfg['nb2'])))
    sk = g.lab("hm")
    e(f"s_cmp_lt_u32 s{S_IDX}, 28\ns_cbranch_scc1 {sk}")
    for i in g.cap(g.modf_issue):
        if i.text.startswith("buffer_"): g.p.nc(i.text)
        else: g.p.put([i])
    g.label(sk)
    if cfg['touch'] == 3: g.touch_w()
    if cfg['twd'] == 2: g.touch_wd(2)
    cap = g.cap
    nb2 = cfg["nb2"]; nr = cfg["nrec"]
    fa = cap(lambda: g.w_issue_l(range(nb2, 13)))
    fb = [] if not nr else cap(lambda: (g.wait(g.wt[nr-1]), e("s_barrier"), hold.__setitem__("r", g.w_read_l(range(0, nr)))))
    if cfg['fpos'] == 1:
        fa = cap(g.gate_pub) + fa
        fc = cap(lambda: (g.wait(hold["r"]), e("s_barrier"), g.w_issue_l(range(13, 13 + nr))))
    else:
        fc = cap(lambda: (g.wait(hold["r"], hold["fill"]), e("s_barrier"), g.gate_pub(), g.w_issue_l(range(13, 13 + nr))))
    f6, g.gtok = g.capture(g.gate_issue) if cfg['fpos'] == 1 else ([], None)
    f5, hold["late"] = g.capture(g.late_issue)
    g.cfg["cflush"] = (3,)
    g.conv(fillers={0: fa, cfg["itb"]: fb + f5 + fc + cap(lambda: g.late_fin(hold["late"])) + f6}, pre_bar=lambda: g.wait(g.wt[12]))
    assert not any(i.text.startswith("s_barrier") for i in g.conv_left if i.wait is None), len(g.conv_left)
    sys.stderr.write(f"conv left {len(g.conv_left)}\n")
    g.p.put(g.conv_left)
    e(f"s_cmp_ge_u32 s{S_IDX}, 28\ns_cbranch_scc1 F_alt")
    g.modf_pub()
    g.shadow1()
    g.gemm1f()
    g.label("F_g2")
    def alt():
        g.label("F_alt")
        g.u_job(); g.stamp(10)
        g.stats2_job(g.u_pub); g.modf_pub()
        g.wd_setup(); g.g2_setup()
        keep = dict(g.wdt); keep2 = dict(g.ht); done = set()
        while len(done) < len(keep):
            batch = [ks for ks in sorted(keep) if ks not in done and (ks not in g.WPREV or g.WPREV[ks] in done)]
            for ks in batch: g.wd_issue(ks)
            e("s_waitcnt vmcnt(0)")
            for ks in batch:
                if ks in g.rd: g.wd_read(ks)
            e("s_waitcnt lgkmcnt(0)")
            done |= set(batch)
        g.fl_issue(0, 140, 144); e("s_waitcnt vmcnt(0)")
        g.guard("fa", lambda ex: e(f"v_cmp_ne_u32 vcc, s{S_TAG}, v144"), lambda: (g.fl_issue(0, 140, 144), e("s_waitcnt vmcnt(0)")))
        for (nt_, ks) in list(keep2): g.hl(0, ks, 147)
        g.wdt = keep; g.ht.update(keep2)
        e("s_waitcnt vmcnt(0)\ns_branch F_g2")
    g.ool += g.cap(alt)
    g.gemm2f(); g.bump_epoch()
    launch = f"; @launch grid=(256,1,1) block=(256,1,1) lds={LDS_BYTES}\n"
    return hdr + launch + '.amdgcn_target "amdgcn-amd-amdhsa--gfx950"\n' + kernel_text(KN, g.finish())

if __name__ == "__main__":
    over = {}
    for a in sys.argv[1:]:
        if "=" in a:
            k, v = a.split("="); over[k] = int(v)
    print(build(stamps="stamps" in sys.argv[1:], over=over))
```

```python
import sys, struct, math
from asmlib import *
KN = "adaLN_cond__ssm_conv_s4__glu_gated_geglu__prompt_kernel"
WS_ST1 = 0x1000; WS_MODP = 0x8000; WS_MODF = 0x20000; WS_ST2 = 0x24000
WS_FL1 = 0x28000; WS_FL3 = 0x2C000; WS_FL2 = 0x40000; WS_U = 0x80000; WS_XB = int(__import__('os').environ.get('XB', '0xC00000'), 0); WS_DBG = 0x1000000; WS_X1 = 0x100000; WS_X1S = 0x300000; WS_H = 0x500000; WS_SIZE = 0x1200000
L_TAB = 0; TABW = 17408; TPITCH = 272
L_K = 69632; KCH = 8320; KODD = 4164
L_HI = 86272; HCH = 4608
L_Z = 95488
L_MOD = 111872
L_SP = 131072
L_XT = 155648
L_SS = L_XT
L_XR2 = L_XT
LDS_BYTES = 163840
_POOL = [L_SP, L_SP + 8192, L_SP + 16384, L_MOD, L_MOD + 8192] + [L_TAB + 8192*i for i in range(8)]
def wslot(ks):
    if ks < 26: return _POOL[ks % 13]
    if ks < 29: return L_SP + 8192*(ks-26)
    return L_TAB + 8192*(ks-29)
S_WS = 4; S_WG = 8; S_WU = 12
P_X, P_ARE, P_AIM, P_BRE, P_BIM, P_CRE, P_CIM, P_LDT, P_DSK, P_BX, P_WG, P_WU, P_WD, P_C, P_WM, P_OUT, P_DBG, P_WS = [16 + 2 * i for i in range(18)]
S_X = 52; S_WM = 56; S_WD = 60; S_OUT = 64
S_TAG = 68; S_E = 69; S_WV = 70; S_D0 = 71; S_LDT = 72; S_DSK = 73
S_T0 = 74; S_T1 = 75; S_T2 = 76; S_T3 = 77; S_SPIN = 78; S_IDX = 79; S_XCD = 80
S_M = 82
S_EX = 94
S_ST = 96
S45 = 45; S46 = 46
S_CH = 16; S_PAR = 17
S_G1 = 98; S_G2 = 99; S_G3 = 100
SENT = 0xFFFFFFFF
TG = [3, 31]
BA = [124, 125, 126, 127, 141, 142, 2, 3]
def f2u(x): return struct.unpack("<I", struct.pack("<f", x))[0]
def hx(x): return "0x%08x" % (x & 0xFFFFFFFF)
def fl(x): return hx(f2u(x))
LOG2E = 1.4426950408889634
GAM = (2 * 0.7978845608028654 * LOG2E * 0.044715) ** (1.0 / 3)
GC = 2 * 0.7978845608028654 * LOG2E / GAM
def vr(b, n): return f"v[{b}:{b+n-1}]" if n > 1 else f"v{b}"
def ar(b, n): return f"a[{b}:{b+n-1}]" if n > 1 else f"a{b}"
def sr(b, n): return f"s[{b}:{b+n-1}]" if n > 1 else f"s{b}"
class G:
    def __init__(self, cfg):
        self.cfg = cfg; self.p = Prog(); self.nlab = 0; self.nstamp = 0; self.ool = []
    def lab(self, base):
        self.nlab += 1; return f"L{self.cfg['uid']}_{base}_{self.nlab}"
    def e(self, t): self.p.e(t)
    def tok(self, t): return self.p.tok(t)
    def wait(self, *t): self.p.wait(*t)
    def label(self, l): self.p.label(l)
    def stamp(self, i):
        if not self.cfg.get("stamps"): return
        e = self.e
        e(f"s_memtime s[{S_ST}:{S_ST+1}]")
        e("s_waitcnt lgkmcnt(0)")
        e(f"v_writelane_b32 v255, s{S_ST}, {i}")
    def stamp_flush(self):
        if not self.cfg.get("stamps"): return
        e = self.e
        e(f"s_memrealtime s[{S_ST}:{S_ST+1}]")
        e("s_waitcnt lgkmcnt(0)")
        e(f"v_writelane_b32 v255, s{S_ST}, 63")
        e(f"s_lshl_b32 s{S_T0}, s2, 10")
        e(f"s_add_u32 s{S_T0}, s{S_T0}, {WS_DBG + self.cfg.get('dbgoff', 0)}")
        e("v_lshlrev_b32 v254, 2, v0")
        e(f"buffer_store_dword v255, v254, s[{S_WS}:{S_WS+3}], s{S_T0} offen")
        if self.cfg.get("dbgout"):
            sk = self.lab("dbg")
            e(f"s_cmp_lg_u32 s2, {self.cfg['dbgout']}\ns_cbranch_scc1 {sk}\ns_cmp_lg_u32 s{S_WV}, 0\ns_cbranch_scc1 {sk}")
            e(f"v_readlane_b32 s{S_T1}, v255, 0\nv_readlane_b32 s{S_T2}, v255, 62\nv_readlane_b32 s{S_T3}, v255, 63\nv_mov_b32 v4, 0")
            for i, st in enumerate([1, 2, 23, 22, 21, 3, 4, 5, 6, 7, 12, 14, 16, 19, 18]):
                e(f"v_readlane_b32 s{S_T0}, v255, {st}\ns_sub_u32 s{S_T0}, s{S_T0}, s{S_T1}\nv_mov_b32 v3, s{S_T0}")
                e(f"global_store_dword v4, v3, s[{P_DBG}:{P_DBG+1}] offset:{4*i}")
            e(f"s_sub_u32 s{S_T0}, s{S_T3}, s{S_T2}\nv_mov_b32 v3, s{S_T0}")
            e(f"global_store_dword v4, v3, s[{P_DBG}:{P_DBG+1}] offset:60")
            self.label(sk)
    def srd(self, s, ptr, size):
        self.e(f"s_mov_b32 s{s}, s{ptr}\ns_mov_b32 s{s+1}, s{ptr+1}\ns_mov_b32 s{s+2}, {hx(size)}\ns_mov_b32 s{s+3}, 0x20000")
    def prologue(self):
        e = self.e
        e("s_cmp_ge_u32 s2, 256")
        e(f"s_cbranch_scc1 {self.cfg['uid']}_end")
        e("s_load_dwordx16 s[16:31], s[0:1], 0")
        e("s_load_dwordx16 s[32:47], s[0:1], 64")
        e("s_load_dwordx4 s[48:51], s[0:1], 128")
        if self.cfg.get("stamps"):
            e("v_mov_b32 v255, 0")
            e(f"s_memrealtime s[{S_ST}:{S_ST+1}]")
        if self.cfg.get("hold"): e("s_memrealtime s[34:35]" if False else "s_nop 0")
        if self.cfg.get("cpf"):
            n = self.cfg["cpf"]
            e("s_getpc_b64 s[4:5]\ns_and_b32 s4, s4, 0xffffff00")
            e(f"s_lshr_b32 s6, s2, 3\ns_mul_i32 s6, s6, {n*128}\nv_min_u32 v254, {n-1}, v0\nv_lshlrev_b32 v254, 7, v254\nv_add_u32 v254, s6, v254")
            e("global_load_dword v196, v254, s[4:5]")
        e("v_and_b32 v1, 63, v0")
        e("v_lshrrev_b32 v2, 6, v0")
        e(f"s_and_b32 s{S_XCD}, s2, 7")
        e(f"v_readfirstlane_b32 s{S_WV}, v2")
        e(f"s_lshr_b32 s{S_IDX}, s2, 3")
        e(f"s_lshl_b32 s{S_D0}, s{S_XCD}, 5")
        e(f"s_add_u32 s{S_D0}, s{S_D0}, s{S_IDX}")
        e(f"s_lshl_b32 s{S_D0}, s{S_D0}, 1")
        e(f"s_lshl_b32 s{S_T0}, s2, 13\ns_lshl_b32 s{S_T1}, s{S_WV}, 11\ns_add_u32 s{S_T0}, s{S_T0}, s{S_T1}")
        e("v_lshlrev_b32 v9, 4, v1")
        e("v_lshrrev_b32 v4, 3, v1\nv_and_b32 v5, 7, v1\nv_lshlrev_b32 v5, 4, v5\nv_lshl_add_u32 v3, v4, 10, v5")
        e(f"s_lshl_b32 s{S_T3}, s{S_IDX}, 16\ns_lshl_b32 s{S_T2}, s{S_XCD}, 7\ns_add_u32 s{S_T3}, s{S_T3}, s{S_T2}")
        e(f"s_lshl_b32 s{S_T2}, s{S_WV}, 14\ns_add_u32 s{S_T3}, s{S_T3}, s{S_T2}")
        e(f"s_add_u32 m0, s{S_T1}, {L_XT}")
        e(f"v_add_u32 v6, {8192 - 1024}, v3")
        e(f"s_lshl_b32 s{S_T2}, s{S_D0}, 8\nv_lshl_add_u32 v8, v0, 1, s{S_T2}")
        e(f"s_mul_i32 s{S_M}, s2, 1366\ns_lshr_b32 s{S_M}, s{S_M}, 16")
        e(f"s_mul_i32 s{S_M+2}, s{S_M}, 48\ns_sub_u32 s{S_M+1}, s2, s{S_M+2}")
        e(f"s_and_b32 s{S_M+2}, s{S_M}, 3\ns_lshl_b32 s{S_M+2}, s{S_M+2}, 8\nv_lshl_add_u32 v7, v1, 2, s{S_M+2}")
        e("v_mul_u32_u24 v33, 6144, v4\nv_add_u32 v33, v33, v5")
        e(f"s_mul_i32 s{S_M+2}, s{S_M}, {128*6144}\ns_lshl_b32 s{S_M+3}, s{S_M+1}, 7\ns_add_u32 s{S_M+2}, s{S_M+2}, s{S_M+3}")
        e(f"s_mul_i32 s{S_M+3}, s{S_WV}, {32*6144}\ns_add_u32 s{S_M+2}, s{S_M+2}, s{S_M+3}")
        e(f"s_mov_b32 s{S_X+2}, {hx(2097152)}\ns_mov_b32 s{S_X+3}, 0x20000\ns_mov_b32 s{S_WM+2}, {hx(3145728)}\ns_mov_b32 s{S_WM+3}, 0x20000")
        e("s_waitcnt lgkmcnt(0)")
        if self.cfg.get("stamps"):
            e(f"v_writelane_b32 v255, s{S_ST}, 62")
        if self.cfg.get("hold"): e("s_memrealtime s[34:35]")
        self.stamp(0)
    def srds_late(self):
        self.srd(S_WS, P_WS, WS_SIZE)
        self.srd(S_WD, P_WD, 1835008)
        self.srd(S_OUT, P_OUT, 2097152)
    def tag_ready(self):
        e = self.e
        e("s_waitcnt lgkmcnt(0)")
        e(f"s_mul_i32 s{S_TAG}, s{S_E}, 0x9E3779B1")
        e(f"s_add_u32 s{S_TAG}, s{S_TAG}, 0x7F4A7C15")
        e(f"s_and_b32 s{TG[1]}, s{S_E}, 1\ns_and_b32 s{TG[0]}, s{S_E}, 2\ns_lshl_b32 s{TG[0]}, s{TG[0]}, 15\ns_or_b32 s{TG[0]}, s{TG[0]}, s{TG[1]}")
        e(f"s_xor_b32 s{TG[0]}, s{TG[0]}, 1\ns_xor_b32 s{TG[1]}, s{TG[0]}, 0x00010001")
    def reduce16(self, regs):
        for ctl in ["quad_perm:[1,0,3,2]", "quad_perm:[2,3,0,1]", "row_half_mirror", "row_mirror"]:
            for r in regs:
                self.e(f"v_add_f32_dpp v{r}, v{r}, v{r} {ctl} row_mask:0xf bank_mask:0xf")
    def stat_finish(self, vs, vq, t0, t1):
        e = self.e
        e(f"v_mul_f32 v{vs}, {fl(1/512)}, v{vs}")
        e(f"v_mul_f32 v{t0}, v{vs}, v{vs}")
        e(f"v_mul_f32 v{vq}, {fl(1/512)}, v{vq}")
        e(f"v_sub_f32 v{vq}, v{vq}, v{t0}")
        e(f"v_max_f32 v{vq}, 0, v{vq}")
        e(f"v_cvt_pk_bf16_f32 v{t0}, v{vq}, v{vq}")
        e(f"v_and_b32 v{t0}, 0xffff0000, v{t0}")
        e(f"v_add_f32 v{t0}, {fl(1e-5)}, v{t0}")
        e(f"v_cvt_pk_bf16_f32 v{t0}, v{t0}, v{t0}")
        e(f"v_and_b32 v{t0}, 0xffff0000, v{t0}")
        e(f"v_sqrt_f32 v{t0}, v{t0}")
        e(f"v_cvt_pk_bf16_f32 v{vs}, v{t0}, v{vs}")
    def cmul_list(self, jobs):
        e = self.e; i = 0
        f1 = lambda d, a, b: f"v_pk_mul_f32 {vr(d,2)}, {vr(a,2)}, {vr(b,2)} op_sel:[0,0] op_sel_hi:[0,1]"
        f2 = lambda d, a, b: f"v_pk_fma_f32 {vr(d,2)}, {vr(a,2)}, {vr(b,2)}, {vr(d,2)} op_sel:[1,1,0] op_sel_hi:[1,0,1] neg_lo:[0,1,0]"
        while i < len(jobs):
            j = jobs[i]
            if i + 1 < len(jobs) and j[0] not in jobs[i+1][1:] and jobs[i+1][0] not in j:
                k = jobs[i+1]
                e(f1(*j)); e(f1(*k)); e(f2(*j)); e(f2(*k)); i += 2
            else:
                e(f1(*j)); e(f2(*j)); i += 1
    def kgen_pre(self):
        e = self.e
        e("v_mov_b32 v36, 0\nv_mov_b32 v37, 0\nv_mov_b32 v38, 0\nv_mov_b32 v39, 0")
        e("v_lshrrev_b32 v3, 5, v0")
        e(f"v_mul_u32_u24 v3, {HCH}, v3")
        e("v_and_b32 v4, 31, v0")
        e("v_lshl_add_u32 v3, v4, 4, v3")
        e(f"v_add_u32 v3, {L_HI}, v3")
        e("v_bfe_u32 v4, v0, 2, 2")
        e(f"v_mul_u32_u24 v4, 4160, v4")
        e("v_and_b32 v5, 3, v0")
        e("v_lshl_add_u32 v4, v5, 4, v4")
        e(f"v_add_u32 v4, {L_K + 4096}, v4")
        e("v_cmp_gt_u32 vcc, 64, v0")
        e("v_cndmask_b32 v3, v4, v3, vcc")
        e("v_cmp_gt_u32 vcc, 80, v0")
        e(f"s_and_saveexec_b64 s[{S_EX}:{S_EX+1}], vcc")
        zl = self.lab("z")
        e(f"s_cbranch_execz {zl}")
        e("ds_write_b128 v3, v[36:39]")
        self.label(zl)
        e(f"s_mov_b64 exec, s[{S_EX}:{S_EX+1}]")
        e(f"s_lshr_b32 s{S_T0}, s{S_WV}, 1")
        e(f"s_lshl_b32 s{S_T0}, s{S_T0}, 4")
        e(f"s_lshr_b32 s{S_T1}, s{S_LDT}, s{S_T0}")
        e(f"s_lshl_b32 s{S_T1}, s{S_T1}, 16")
        e(f"v_mov_b32 v3, {fl(LOG2E)}")
        e(f"v_mul_f32 v3, s{S_T1}, v3")
        e("v_exp_f32 v3, v3")
        e("v_cvt_pk_bf16_f32 v3, v3, v3")
        e("v_and_b32 v35, 0xffff0000, v3")
    def kgen_tab(self, chunks=()):
        e = self.e
        keep = self.p.take()
        for i in range(6): e(f"v_lshlrev_b32 v{26+i}, 16, v{18+i}")
        e("v_mul_f32 v26, v26, v35\nv_mul_f32 v27, v27, v35\nv_mul_f32 v28, v28, v35\nv_mul_f32 v29, v29, v35")
        e(f"v_mul_f32 v26, {fl(LOG2E)}, v26")
        e("v_mul_f32 v27, 0.15915494, v27")
        S = lambda j: 40 + 2 * j
        Gt = lambda T: 74 + 2 * (T - 1)
        Pn = lambda n: 88 + 2 * n
        S32, S64, S128 = 138, 140, 142
        def direct(dst, t, a, b, c):
            if t == 1:
                e(f"v_exp_f32 v{a}, v26\nv_fract_f32 v{b}, v27")
            else:
                e(f"v_mul_f32 v{a}, {fl(float(t))}, v26\nv_mul_f32 v{b}, {fl(float(t))}, v27")
                e(f"v_exp_f32 v{a}, v{a}\nv_fract_f32 v{b}, v{b}")
            e(f"v_cos_f32 v{c}, v{b}\nv_sin_f32 v{b}, v{b}\ns_nop 0")
            e(f"v_mul_f32 v{dst}, v{a}, v{c}\nv_mul_f32 v{dst+1}, v{a}, v{b}")
        e(f"s_mul_i32 s{S_T3}, s{S_WV}, {TABW}\ns_mov_b32 m0, s{S_T3}")
        st = {"n": 0, "q": []}
        NBAT = 8
        def flush():
            for ent_, r_ in st["q"]: e(f"ds_write_addtid_b32 v{r_} offset:{L_TAB + ent_*TPITCH}")
            st["q"] = []
        def pair(ent, jobs, srcs, neg=False):
            self.cmul_list(jobs)
            for i in range(2):
                pk = 128 + (st["n"] % NBAT); st["n"] += 1
                if srcs[i] is None: e(f"v_mov_b32 v{pk}, 0x3f80")
                else: e(f"v_cvt_pk_bf16_f32 v{pk}, v{srcs[i]}, {'-' if neg else ''}v{srcs[i]+1}")
                st["q"].append((ent + i, pk))
            if len(st["q"]) == NBAT: flush()
        direct(S(1), 1, 120, 121, 122)
        pair(0, [], [None, S(1)])
        direct(S(16), 16, 123, 124, 125)
        pair(2, [(S(2), S(1), S(1)), (Pn(0), 30, 28), (S(3), S(2), S(1))], [S(2), S(3)])
        direct(Gt(1), 256, 120, 121, 122)
        pair(48, [(Pn(1), Pn(0), S(16)), (S32, S(16), S(16))], [Pn(0), Pn(1)], True)
        pair(4, [(S(4), S(2), S(2)), (S(5), S(3), S(2))], [S(4), S(5)])
        pair(6, [(S(6), S(4), S(2)), (S(7), S(4), S(3))], [S(6), S(7)])
        pair(50, [(Pn(2), Pn(0), S32), (Pn(3), Pn(1), S32), (S64, S32, S32)], [Pn(2), Pn(3)], True)
        pair(8, [(S(8), S(4), S(4)), (S(9), S(5), S(4))], [S(8), S(9)])
        pair(10, [(S(10), S(8), S(2)), (S(11), S(8), S(3))], [S(10), S(11)])
        pair(52, [(Pn(4), Pn(0), S64), (Pn(5), Pn(1), S64)], [Pn(4), Pn(5)], True)
        pair(54, [(Pn(6), Pn(2), S64), (Pn(7), Pn(3), S64), (S128, S64, S64)], [Pn(6), Pn(7)], True)
        pair(12, [(S(12), S(8), S(4)), (S(13), S(8), S(5))], [S(12), S(13)])
        pair(14, [(S(14), S(8), S(6)), (S(15), S(8), S(7))], [S(14), S(15)])
        aux = [[(Gt(2), Gt(1), Gt(1))], [(Gt(3), Gt(2), Gt(1))], [(Gt(4), Gt(2), Gt(2))], []]
        for i in range(4):
            pair(56 + 2*i, [(Pn(8+2*i), Pn(2*i), S128), (Pn(9+2*i), Pn(2*i+1), S128)] + aux[i], [Pn(8+2*i), Pn(9+2*i)], True)
        ents = {0: [(1, 0), (1, 2), (1, 4), (1, 6), (1, 8), (4, 0), (4, 8), (4, 16)],
                1: [(1, 8), (1, 10), (1, 12), (1, 14), (1, 16), (5, 0), (5, 8), (5, 16)],
                2: [(2, 0), (2, 4), (2, 8), (2, 12), (2, 16), (6, 0), (6, 8), (6, 16)],
                3: [(3, 0), (3, 4), (3, 8), (3, 12), (3, 16), (7, 0), (7, 8), (7, 16)]}
        extra = {(0, 0): (Gt(5), Gt(4), Gt(1)), (2, 0): (Gt(6), Gt(4), Gt(2)), (3, 0): (Gt(7), Gt(4), Gt(3))}
        tb = 0
        for q in range(4):
            for h in range(4):
                two = ents[q][2*h:2*h+2]; base = 88 + 4*(tb & 3); tb += 1
                jobs = []; srcs = []
                for i, (T, j) in enumerate(two):
                    if j == 0: srcs.append(Gt(T))
                    else: jobs.append((base + 2*i, Gt(T), S(j))); srcs.append(base + 2*i)
                if (q, h) in extra: jobs.append(extra[(q, h)])
                pair(16 + 16*(h >> 1) + 4*q + 2*(h & 1), jobs, srcs)
        body = self.p.take()
        out = []; ci = 0; nb = 0
        for k_, ins in enumerate(body):
            out.append(ins)
            last = ins.text.startswith("ds_write_addtid") and (k_ + 1 == len(body) or not body[k_+1].text.startswith("ds_write_addtid"))
            if last:
                nb += 1
                if nb > self.cfg["wa0"] and ci < len(chunks):
                    out += chunks[ci] + chunks[ci+1] + [Ins(f"s_mov_b32 m0, s{S_T3}")]; ci += 2
        for c in chunks[ci:]: out += c
        self.p.put(keep + out)

    def kgen_post(self, post_b2=None):
        e = self.e
        e(f"s_lshr_b32 s{S_T2}, s{S_WV}, 1\ns_mul_i32 s{S_T0}, s{S_T2}, {2*TABW}")
        e(f"v_and_b32 v6, 15, v1\nv_mul_u32_u24 v3, {TPITCH}, v6")
        e("v_lshrrev_b32 v7, 4, v1\nv_lshl_add_u32 v3, v7, 4, v3")
        e(f"v_add_u32 v3, s{S_T0}, v3")
        e(f"s_and_b32 s{S_T1}, s{S_WV}, 1\ns_mul_i32 s{S_T1}, s{S_T1}, {16*TPITCH}\nv_add_u32 v4, s{S_T1}, v3")
        e(f"s_mul_i32 s{S_T2}, s{S_T2}, {KCH}\ns_add_u32 s{S_T2}, s{S_T2}, {L_K}")
        e(f"v_lshlrev_b32 v6, 5, v6\nv_sub_u32 v6, s{S_T2}, v6")
        e("v_lshlrev_b32 v9, 9, v7\nv_sub_u32 v9, v6, v9")
        e("s_waitcnt lgkmcnt(0)\ns_barrier")
        self.stamp(21)
        F = 40; toks = {}
        for ks in range(8):
            o = L_TAB + (ks >> 2)*TABW + (ks & 3)*64; r = F + 12*ks
            self.tok(f"ds_read_b128 {vr(r+8,4)}, v3 offset:{o + 48*TPITCH}")
            toks[(ks, 0)] = self.tok(f"ds_read_b128 {vr(r,4)}, v4 offset:{o}")
            toks[(ks, 1)] = self.tok(f"ds_read_b128 {vr(r+4,4)}, v3 offset:{o + 32*TPITCH}")
        A0 = 136; A2 = 140
        for ks in range(8):
            r = F + 12*ks
            for b, acc in ((0, A0), (1, A2)):
                self.wait(toks[(ks, b)])
                e(f"v_mfma_f32_16x16x32_bf16 {vr(acc,4)}, {vr(r+4*b,4)}, {vr(r+8,4)}, {vr(acc,4) if ks else '0'}")
        h1 = self.lab("kh1"); jn = self.lab("kj")
        e(f"s_bitcmp1_b32 s{S_WV}, 0\ns_cbranch_scc1 {h1}")
        def cv(d, lst):
            for i, (a, b) in enumerate(lst): e(f"v_cvt_pk_bf16_f32 v{d+i}, v{a}, v{b}")
        O = KODD - 4
        e("v_lshlrev_b32 v8, 3, v7\nv_sub_u32 v8, v6, v8")
        f0, f1, f2 = A2+1, A2+2, A2+3
        cv(52, [(f2, f2), (f2, f2), (f1, f1), (f1, f1), (f1, f1), (f1, f0), (f0, f0), (f0, f0)])
        e(f"ds_write_b128 v9, v[52:55] offset:{2*(2032-1024)}")
        cv(60, [(f2, f2), (f2, f2), (f2, f1), (f1, f1), (f1, f1), (f1, f1), (f0, f0), (f0, f0)])
        e(f"ds_write_b128 v9, v[56:59] offset:{2*(2032-1024)+16}")
        cv(48, [(A0+3, A0+2), (A0+1, A0), (A0+2, A0+1)])
        e(f"ds_write_b128 v9, v[60:63] offset:{2*(2032-1024) + O}")
        e(f"ds_write_b128 v9, v[64:67] offset:{2*(2032-1024) + O + 16}")
        e(f"ds_write_b64 v8, v[48:49] offset:{2*2044}")
        e(f"ds_write_b16 v8, v48 offset:{2*2044 + O + 2}")
        e(f"ds_write_b32 v8, v50 offset:{2*2044 + O + 4}")
        e(f"ds_write_b16_d16_hi v8, v49 offset:{2*2044 + O + 8}")
        e(f"s_branch {jn}")
        self.label(h1)
        e("v_lshlrev_b32 v8, 4, v7\nv_sub_u32 v8, v6, v8")
        E_ = lambda j: A0 + j if j < 4 else A2
        C = lambda lst: [(E_(a), E_(b)) for a, b in lst]
        cv(52, C([(4, 4), (3, 3), (3, 2), (2, 2), (2, 2), (1, 1), (1, 0), (0, 0)]))
        e("s_mov_b32 exec_lo, 0")
        e(f"ds_write_b128 v9, v[52:55] offset:{2*2032}\nds_write_b128 v9, v[56:59] offset:{2*2032+16}")
        e("s_mov_b32 exec_lo, -1")
        cv(60, C([(4, 4), (4, 3), (3, 3), (2, 2), (2, 2), (2, 1), (1, 1), (0, 0)]))
        e("s_mov_b32 exec_lo, 0")
        e(f"ds_write_b128 v9, v[60:63] offset:{2*2032 + O}\nds_write_b128 v9, v[64:67] offset:{2*2032 + O + 16}")
        e("s_mov_b32 exec_lo, -1")
        cv(40, C([(4, 3), (2, 2), (2, 1), (0, 0), (4, 4), (3, 2), (2, 2), (1, 0)]))
        e("s_mov_b32 exec_hi, 0")
        e(f"ds_write_b128 v8, v[40:43] offset:{2*(2040-256)}\nds_write_b128 v8, v[44:47] offset:{2*(2040-256) + O}")
        e(f"ds_write_b16 v8, v43 offset:{2*(2040-256) + O + 16}")
        e("s_mov_b32 exec_hi, -1")
        self.label(jn)

    def spin_check(self, retry_label, out_label=None):
        e = self.e
        e(f"s_sub_u32 s{S_SPIN}, s{S_SPIN}, 1")
        e(f"s_cmp_lg_u32 s{S_SPIN}, 0")
        e(f"s_cbranch_scc1 {retry_label}")
    def hbuild(self, after_first=None, mid=None):
        e = self.e
        e(f"s_lshl_b32 s{S_T0}, s{S_WV}, 12\nv_lshl_add_u32 v3, v1, 4, s{S_T0}")
        e("v_and_b32 v4, 3, v1")
        e(f"v_mul_u32_u24 v4, {3072*8}, v4")
        e("v_lshrrev_b32 v5, 3, v1")
        e("v_min_u32 v5, 5, v5")
        e("v_lshl_add_u32 v4, v5, 12, v4")
        e("v_bfe_u32 v6, v1, 2, 1")
        e("v_lshl_add_u32 v4, v6, 3, v4")
        e(f"s_lshl_b32 s{S_T0}, s{S_D0}, 3")
        e(f"s_add_u32 s{S_T0}, s{S_T0}, {WS_MODP}")
        e(f"s_mov_b32 s{S_T1}, {WS_ST1}")
        e(f"s_lshl_b32 s{S_T2}, s{S_D0}, 13\ns_add_u32 s{S_T2}, s{S_T2}, {hx(WS_XB)}")
        e(f"s_mov_b32 s{S_SPIN}, {self.cfg['spin']}")
        rt = self.lab("h0"); ok = self.lab("h0ok"); ck = self.lab("h0ck")
        def pl():
            self.tok(f"buffer_load_dwordx2 v[8:9], v4, s[{S_WS}:{S_WS+3}], s{S_T0} offen sc1")
            for i in range(4):
                t_ = self.tok(f"buffer_load_dwordx4 v[{40+4*i}:{43+4*i}], v3, s[{S_WS}:{S_WS+3}], s{S_T1} offen offset:{1024*i} sc1")
            for i in range(4):
                t_ = self.tok(f"buffer_load_dwordx4 v[{20+4*i}:{23+4*i}], v3, s[{S_WS}:{S_WS+3}], s{S_T2} offen offset:{1024*i} sc1")
            return t_
        if after_first:
            t_ = pl(); self.stamp(26); after_first(); self.wait(t_); self.stamp(25)
            e(f"s_branch {ck}")
            keep = self.p.take()
            self.label(rt); pl(); e("s_waitcnt vmcnt(0)"); e(f"s_branch {ck}")
            self.ool += self.p.take(); self.p.put(keep[:-1])
            self.label(ck)
        else:
            self.label(rt); pl(); e("s_waitcnt vmcnt(0)")
        e(f"v_mov_b32 v10, s{S_TAG}")
        if True: e("v_cmp_gt_u32 vcc, 24, v1\nv_cndmask_b32 v9, v10, v9, vcc")
        for i in range(8):
            e(f"v_min3_u32 v11, v{41+2*i}, v{21+2*i}, {'v11' if i else 'v9'}")
            e(f"v_max3_u32 v12, v{41+2*i}, v{21+2*i}, {'v12' if i else 'v9'}")
        e("v_xor_b32 v11, v11, v10\nv_xor_b32 v12, v12, v10\nv_or_b32 v7, v11, v12")
        e("v_cmp_ne_u32 vcc, 0, v7")
        e(f"s_cbranch_vccz {ok}")
        self.spin_check(rt)
        self.label(ok)
        self.stamp(4)
        if self.cfg.get("stamps"): e(f"s_sub_u32 s{S_ST}, {self.cfg['spin']+1}, s{S_SPIN}\nv_writelane_b32 v255, s{S_ST}, 50")
        e(f"s_mov_b32 s{S_EX}, s{S_T0}\nv_mov_b32 v237, v4")
        keep_ = self.p.take()
        e("v_add_f32_dpp v8, v8, v8 quad_perm:[1,0,3,2] row_mask:0xf bank_mask:0xf")
        for i in range(4): e(f"v_lshlrev_b32 v{64+i}, 16, v{40+2*i}")
        e("v_add_f32_dpp v8, v8, v8 quad_perm:[2,3,0,1] row_mask:0xf bank_mask:0xf")
        for i in range(4, 8): e(f"v_lshlrev_b32 v{64+i}, 16, v{40+2*i}")
        e("v_cvt_pk_bf16_f32 v8, v8, v8\nv_rcp_f32 v64, v64\nv_and_b32 v8, 0xffff0000, v8\nv_rcp_f32 v65, v65")
        e("v_add_f32 v9, 1.0, v8\nv_rcp_f32 v66, v66")
        e("v_cvt_pk_bf16_f32 v9, v9, v9\nv_rcp_f32 v67, v67\nv_and_b32 v9, 0xffff0000, v9")
        X = 72; Hh = 88; Z = 104
        for i in range(8):
            if i < 3:
                src = 9 if i in (1, 4) else 8
                e(f"v_readlane_b32 s{S_M+2*i}, v{src}, {8*i}")
                e(f"v_readlane_b32 s{S_M+2*i+1}, v{src}, {8*i+4}")
            if i >= 4: e(f"v_rcp_f32 v{64+i}, v{64+i}")
            e(f"v_and_b32 v{56+i}, 0xffff0000, v{40+2*i}")
            k_ = i >> 1; src_ = 20 + 4*k_ + 2*(i & 1); dst_ = X + 8*(k_ & 1) + 4*(k_ >> 1) + 2*(i & 1)
            e(f"v_lshlrev_b32 v{dst_}, 16, v{src_}")
            e(f"v_and_b32 v{dst_+1}, 0xffff0000, v{src_}")
        sa, sA, ga, sb, sB, gb = [S_M + 2*i for i in range(6)]
        e(f"v_mov_b32 v16, s{ga}\nv_mov_b32 v17, s{ga+1}")
        for k in range(8):
            e(f"v_pk_add_f32 {vr(Hh+2*k,2)}, {vr(X+2*k,2)}, {vr(56+2*(k&3),2)} neg_lo:[0,1] neg_hi:[0,1]")
        e(f"v_mul_f32 v10, s{sA}, v16\nv_mul_f32 v11, s{sA+1}, v17")
        e(f"v_mul_f32 v12, s{sa}, v16\nv_mul_f32 v13, s{sa+1}, v17")
        e(f"s_lshl_b32 s{S_T0}, s{S_DSK}, 16\ns_and_b32 s{S_T1}, s{S_DSK}, 0xffff0000")
        e(f"v_mov_b32 v14, s{S_T0}\nv_mov_b32 v15, s{S_T1}")
        for k in range(8):
            e(f"v_pk_mul_f32 {vr(Hh+2*k,2)}, {vr(Hh+2*k,2)}, {vr(64+2*(k&3),2)}")
        for k in range(8):
            c = k >> 2
            e(f"v_pk_fma_f32 {vr(Hh+2*k,2)}, {vr(Hh+2*k,2)}, v[10:11], v[12:13] op_sel:[0,{c},{c}] op_sel_hi:[1,{c},{c}]")
        for ch in range(2):
            for j in range(4):
                e(f"v_cvt_pk_bf16_f32 v{120+4*ch+j}, v{Hh+8*ch+2*j}, v{Hh+8*ch+2*j+1}")
            e(f"ds_write_b128 v183, v[{120+4*ch}:{123+4*ch}] offset:{HCH*ch}")
        for k in range(8):
            c = k >> 2
            e(f"v_pk_fma_f32 {vr(Z+2*k,2)}, {vr(Hh+2*k,2)}, v[14:15], {vr(X+2*k,2)} op_sel:[0,{c},0] op_sel_hi:[1,{c},1]")
            if k & 1: e(f"ds_write_b128 v184, {vr(Z+2*k-2,4)} offset:{8192*c + 16*((k>>1)&1)}")
        body_ = self.p.take()
        self.p.put(keep_ + spread(body_, [(0, c_) for c_ in (mid() if mid else [])]))
    def late_issue(self): return self.tok(f"buffer_load_dwordx2 v[238:239], v237, s[{S_WS}:{S_WS+3}], s{S_EX} offen sc1")
    def late_fin(self, tl):
        e = self.e
        self.wait(tl)
        self.guard("lt", lambda ex: e(f"v_cmp_ne_u32 vcc, s{S_TAG}, v239"), lambda: (self.late_issue(), e("s_waitcnt vmcnt(0)")))
        e("v_add_f32_dpp v238, v238, v238 quad_perm:[1,0,3,2] row_mask:0xf bank_mask:0xf")
        e("s_nop 1")
        e("v_add_f32_dpp v238, v238, v238 quad_perm:[2,3,0,1] row_mask:0xf bank_mask:0xf")
        e("v_cvt_pk_bf16_f32 v238, v238, v238\nv_and_b32 v238, 0xffff0000, v238\nv_add_f32 v239, 1.0, v238")
        e("v_cvt_pk_bf16_f32 v239, v239, v239\nv_and_b32 v239, 0xffff0000, v239\ns_nop 0")
        for i in (4, 5):
            src = 239 if i == 4 else 238
            e(f"v_readlane_b32 s{S_M+2*i}, v{src}, {8*i}\nv_readlane_b32 s{S_M+2*i+1}, v{src}, {8*i+4}")
    def modf_pub(self):
        e = self.e
        sa, sA, ga, sb, sB, gb = [S_M + 2*i for i in range(6)]
        e(f"v_mov_b32 v20, s{gb}\nv_mov_b32 v21, s{gb+1}\ns_lshr_b32 s101, s32, 3\ns_cmp_lg_u32 s{S_WV}, 0\ns_cselect_b32 s101, 0x7f000000, s101\ns_add_u32 s101, s101, {WS_MODF}")
        e(f"buffer_store_dwordx2 v[20:21], v199, s[{S_WS}:{S_WS+3}], s101 offen sc1")
    def conv_setup(self):
        e = self.e
        e(f"s_lshr_b32 s{S_CH}, s{S_WV}, 1")
        e(f"s_and_b32 s{S_PAR}, s{S_WV}, 1")
        e("v_and_b32 v176, 15, v1\nv_lshrrev_b32 v177, 4, v1")
        e("v_lshlrev_b32 v178, 3, v177")
        e("v_sub_u32 v178, v178, v176")
        e("v_add_u32 v178, 2031, v178")
        e("v_lshrrev_b32 v178, 1, v178")
        e("v_and_b32 v179, 1, v1\nv_xor_b32 v179, 1, v179")
        e(f"v_mul_u32_u24 v179, {KODD}, v179")
        e("v_lshl_add_u32 v178, v178, 2, v179")
        e(f"s_mul_i32 s{S_T0}, s{S_CH}, {KCH}")
        e(f"s_lshl_b32 s{S_T1}, s{S_PAR}, 8")
        e(f"s_sub_u32 s{S_T0}, s{S_T0}, s{S_T1}")
        e(f"s_add_u32 s{S_T0}, s{S_T0}, {L_K - 192 - 512}")
        for j in range(4):
            e(f"v_add_u32 v{168+j}, s{S_T0}, v178")
            if j < 3: e(f"s_sub_u32 s{S_T0}, s{S_T0}, 1024")
        e("v_lshlrev_b32 v178, 5, v176")
        e("v_lshl_add_u32 v178, v177, 4, v178")
        e(f"s_mul_i32 s{S_T0}, s{S_CH}, {HCH}")
        e(f"s_sub_u32 s{S_T0}, s{S_T0}, s{S_T1}")
        e(f"s_add_u32 s{S_T0}, s{S_T0}, {L_HI + 480 - 192}")
        e(f"v_add_u32 v172, s{S_T0}, v178")
        e("v_lshl_add_u32 v178, v176, 5, v178")
        e(f"s_lshl_b32 s{S_T0}, s{S_CH}, 13")
        e(f"s_lshl_b32 s{S_T1}, s{S_PAR}, 12")
        e(f"s_add_u32 s{S_T0}, s{S_T0}, s{S_T1}")
        e(f"s_add_u32 s{S_T0}, s{S_T0}, {L_Z}")
        e(f"v_add_u32 v173, s{S_T0}, v178")
        e(f"s_lshl_b32 s{S_T0}, s{S_WV}, 12\ns_add_u32 s{S_T0}, s{S_T0}, {L_Z}\nv_lshl_add_u32 v180, v1, 4, s{S_T0}")
        e(f"s_xor_b32 s{S_T1}, s{S_WV}, 1\ns_lshl_b32 s{S_T1}, s{S_T1}, 12\ns_add_u32 s{S_T1}, s{S_T1}, {L_Z}\nv_lshl_add_u32 v181, v1, 4, s{S_T1}")
        e("v_and_b32 v176, 15, v1\nv_lshrrev_b32 v177, 4, v1")
        e("v_lshrrev_b32 v182, 1, v176\nv_and_b32 v179, 1, v177\nv_lshl_add_u32 v182, v179, 3, v182\nv_lshlrev_b32 v182, 15, v182")
        e("v_and_b32 v176, 1, v176\nv_lshl_add_u32 v182, v176, 5, v182\nv_lshrrev_b32 v177, 1, v177\nv_lshl_add_u32 v182, v177, 4, v182")
        e(f"s_add_u32 s27, s{S_D0}, s{S_CH}\ns_lshl_b32 s27, s27, 6\ns_lshl_b32 s28, s{S_PAR}, 20\ns_add_u32 s27, s27, s28")
        e(f"s_add_u32 s28, s27, {hx(WS_X1S)}\ns_add_u32 s27, s27, {hx(WS_X1)}\ns_add_u32 s29, s27, {hx(16*32768)}\ns_add_u32 s30, s28, {hx(16*32768)}")
        e(f"v_lshlrev_b32 v183, 4, v0\nv_add_u32 v183, {L_HI + 512}, v183\nv_lshlrev_b32 v184, 5, v0\nv_add_u32 v184, {L_Z}, v184")
        e(f"v_mov_b32 v252, 0xfffefffe\nv_lshlrev_b32 v236, 4, v0\nv_mov_b32 v199, 0")
        e(f"s_lshl_b32 s32, s{S_D0}, 5\ns_cmp_lg_u32 s{S_WV}, 0\ns_cselect_b32 s32, 0x7f000000, s32")
    def conv(self, fillers=None, pre_start=None, pre_bar=None, post_bar=None):
        e = self.e
        ACC = 4
        FA = [40, 104]; FB = [72, 136]
        if pre_start: pre_start()
        e("s_waitcnt lgkmcnt(0)")
        e("s_barrier")
        self.stamp(5)
        p1 = self.lab("cp1"); jn = self.lab("cj")
        e(f"s_cmp_lg_u32 s{S_PAR}, 0")
        e(f"s_cbranch_scc1 {p1}")
        for par in range(2):
            for c in range(4):
                r = ACC + 4 * (4*par + c)
                e(f"ds_read_b128 v[{r}:{r+3}], v173 offset:{1024*c}")
            for r in range(16): e(f"v_mov_b32 v{ACC + 16*(1-par) + r}, 0")
            if par == 0:
                e(f"s_branch {jn}"); self.label(p1)
        self.label(jn)
        def loads(it):
            s = it & 1; L = []; o = 16 * (3 - it)
            tk = {}
            for k in range(8):
                tk[("B", k)] = self.tok(f"ds_read_b128 {vr(FB[s]+4*k,4)}, v172 offset:{512*k + 64*(3-it)}")
                b = 168 + (k >> 1); oo = o + (0 if k & 1 else 128)
                self.tok(f"ds_read2_b32 {vr(FA[s]+4*k,2)}, v{b} offset0:{oo} offset1:{oo+1}")
                tk[("A", k)] = self.tok(f"ds_read2_b32 {vr(FA[s]+4*k+2,2)}, v{b} offset0:{oo+2} offset1:{oo+3}")
            return tk
        pre = self.p.take()
        tks = [None] * 4
        tks[0] = loads(0)
        main = self.p.take()
        carry = []
        for it in range(4):
            nxt = []
            if it < 3:
                tks[it+1] = loads(it+1); nxt = self.p.take()
            s = it & 1
            order = sorted([(u, v) for u in range(8) for v in range(8 - u)], key=lambda t: (max(t), t[0]))
            seen = set(); k = 0
            for (u, v) in order:
                need = [t for t in (("A", u), ("B", v)) if t not in seen]
                if need:
                    self.wait(*[tks[it][t] for t in need]); seen |= set(need)
                cb = u + v
                e(f"v_mfma_f32_16x16x32_bf16 {vr(ACC+4*cb,4)}, {vr(FA[s]+4*u,4)}, {vr(FB[s]+4*v,4)}, {vr(ACC+4*cb,4)}")
                if nxt and ((it > 0 and (k % 3 != 2 or len(nxt) >= 35 - k)) or (it == 0 and k >= 10)):
                    self.p.put([nxt.pop(0)])
                k += 1
            self.p.put(nxt)
            seg = self.p.take()
            if it == 0: seg = main + seg; main = []
            carry = carry + (fillers.get(it, []) if fillers else [])
            seg, carry = merge(seg, carry, 8, pace=self.cfg["cpace"])
            if it in self.cfg.get('cflush', ()): seg += carry; carry = []
            main += seg
        self.p.put(pre + main)
        self.conv_left = carry
        self.stamp(6)
        if pre_bar: pre_bar()
        p1 = self.lab("ep1"); jn = self.lab("ej")
        e(f"s_cmp_lg_u32 s{S_PAR}, 0")
        e(f"s_cbranch_scc1 {p1}")
        for par in range(2):
            e("s_nop 7")
            for c in range(4):
                r = ACC + 4 * (4*(1-par) + c)
                e(f"ds_write_b128 v180, {vr(r,4)} offset:{1024*c}")
            e("s_waitcnt lgkmcnt(0)")
            e("s_barrier")
            for c in range(4): e(f"ds_read_b128 {vr(40+4*c,4)}, v181 offset:{1024*c}")
            for c in range(4):
                e(f"s_waitcnt lgkmcnt({3-c})")
                r = ACC + 4 * (4*par + c)
                e(f"v_pk_add_f32 {vr(40+4*c,2)}, {vr(40+4*c,2)}, {vr(r,2)}")
                e(f"v_pk_add_f32 {vr(42+4*c,2)}, {vr(42+4*c,2)}, {vr(r+2,2)}")
            if par == 0:
                e(f"s_branch {jn}"); self.label(p1)
        self.label(jn)
        sB = S_M + 8
        e(f"s_cmp_eq_u32 s{S_CH}, 0")
        e(f"s_cselect_b32 s{S_T0}, s{sB}, s{sB+1}")
        e(f"v_mov_b32 v38, s{S_T0}\nv_mov_b32 v39, s{S_T0}")
        if post_bar: post_bar()
        for pr in range(2):
            a = 40 + 8*pr
            d = 60 + 8*pr
            for h in range(4): e(f"v_pk_mul_f32 {vr(76+2*h,2)}, {vr(a+2*h,2)}, v[38:39]")
            for h in range(4): e(f"v_cvt_pk_bf16_f32 v{d+h}, v{76+2*h}, v{77+2*h}")
            for h in range(4): e(f"v_and_or_b32 v{d+h}, v{d+h}, v252, s{TG[h&1]}")
            for h in range(4): e(f"v_cvt_pk_bf16_f32 v{d+4+h}, v{a+2*h}, v{a+2*h+1}")
            e(f"v_permlane16_swap_b32 v{d}, v{d+2}\nv_permlane16_swap_b32 v{d+1}, v{d+3}")
            e(f"buffer_store_dwordx4 {vr(d,4)}, v182, s[{S_WS}:{S_WS+3}], s{28 + 2*pr} offen sc1")
            for h in range(4): e(f"v_and_or_b32 v{d+4+h}, v{d+4+h}, v252, s{TG[h&1]}")
            e(f"v_permlane16_swap_b32 v{d+4}, v{d+6}\nv_permlane16_swap_b32 v{d+5}, v{d+7}")
            self.x1st = self.tok(f"buffer_store_dwordx4 {vr(d+4,4)}, v182, s[{S_WS}:{S_WS+3}], s{27 + 2*pr} offen sc1")
        self.stamp(7)
    def g1_map(self):
        e = self.e
        if self.cfg["map8"]:
            e(f"s_lshr_b32 s{S_T0}, s{S_XCD}, 1\ns_mul_i32 s{S_T0}, s{S_T0}, 28\ns_add_u32 s{S_T0}, s{S_T0}, s{S_IDX}")
            e(f"s_and_b32 s{S_G1}, s{S_XCD}, 1\ns_lshl_b32 s{S_G1}, s{S_G1}, 3\ns_and_b32 s{S_G2}, s{S_T0}, 7\ns_add_u32 s{S_G1}, s{S_G1}, s{S_G2}")
            e(f"s_lshr_b32 s{S_G2}, s{S_T0}, 3")
        else:
            e(f"s_lshr_b32 s{S_G1}, s{S_XCD}, 1\ns_lshl_b32 s{S_G1}, s{S_G1}, 2")
            e(f"s_and_b32 s{S_T0}, s{S_IDX}, 3\ns_add_u32 s{S_G1}, s{S_G1}, s{S_T0}")
            e(f"s_and_b32 s{S_G2}, s{S_XCD}, 1\ns_mul_i32 s{S_G2}, s{S_G2}, 7")
            e(f"s_lshr_b32 s{S_T0}, s{S_IDX}, 2\ns_add_u32 s{S_G2}, s{S_G2}, s{S_T0}")
        e(f"s_lshl_b32 s15, s{S_XCD}, 2\ns_add_u32 s15, s15, s{S_IDX}\ns_sub_u32 s15, s15, 28")
        e(f"s_lshr_b32 s14, s15, 1\ns_and_b32 s13, s15, 1\ns_cmp_ge_u32 s{S_IDX}, 28")
        e(f"s_cselect_b32 s{S_G2}, s14, s{S_G2}\ns_cselect_b32 s{S_G1}, 0, s{S_G1}\ns_cselect_b32 s{S_G3}, s13, 0\ns_cselect_b32 s15, s15, 0")
        e(f"s_cmp_ge_u32 s15, 28\ns_cselect_b32 s10, 0, {hx(1835008)}\ns_mov_b32 s11, 0x20000")
        e(f"s_lshl_b32 s{S_G2}, s{S_G2}, 7")
        e(f"s_lshl_b32 s{S_T0}, s{S_WV}, 5\ns_add_u32 s{S_G2}, s{S_G2}, s{S_T0}")
    AX = 176
    BX = 184
    def g1_fold(self, g, acc):
        for t in range(2):
            self.e(f"v_mfma_f32_32x32x16_bf16 {vr(acc+16*t,16)}, {vr(self.AX+4*t,4)}, {vr(self.BX+4*g,4)}, {vr(acc+16*t,16)}")
    def g1_epilogue(self, g, acc, stat, split=False):
        e = self.e
        save = self.p.take()
        T = 148
        rG, kD = stat, stat+1
        for t in range(2):
            for half in range(2):
                regs = [4*half + j for j in range(4)]
                gq = [T + 8*half + j for j in range(4)]; q = [T + 8*half + 4 + j for j in range(4)]
                for j, r in enumerate(regs): e(f"v_mul_f32 v{gq[j]}, v{rG}, v{acc+16*t+r}")
                for j in range(4): e(f"v_fma_f32 v{q[j]}, -v{gq[j]}, v{gq[j]}, s{S_T3}")
                for j in range(4): e(f"v_mul_f32 v{q[j]}, v{gq[j]}, v{q[j]}")
                for j, r in enumerate(regs):
                    e(f"v_exp_f32 v{q[j]}, v{q[j]}")
                    e(f"v_mul_f32 v{gq[j]}, v{gq[j]}, v{acc+16*t+8+r}")
                for j in range(4): e(f"v_fma_f32 v{q[j]}, v{q[j]}, v{kD}, v{kD}")
                for j in range(4): e(f"v_rcp_f32 v{q[j]}, v{q[j]}")
                for j in range(4): e(f"v_mul_f32 v{gq[j]}, v{gq[j]}, v{q[j]}")
                e(f"v_cvt_pk_bf16_f32 v{172+2*half}, v{gq[0]}, v{gq[1]}")
                e(f"v_cvt_pk_bf16_f32 v{173+2*half}, v{gq[2]}, v{gq[3]}")
                if half == 0: e(f"v_and_or_b32 v172, v172, v252, s{TG[0]}\nv_and_or_b32 v173, v173, v252, s{TG[1]}")
            e(f"s_add_u32 s101, s{S_T2}, {g*112*1024 + t*1024}")
            tk_ = self.tok(f"buffer_store_dwordx4 v[172:175], v147, s[{S_WS}:{S_WS+3}], s101 offen sc1")
        self.htok[g] = tk_
        out = self.p.take(); self.p.put(save)
        if split: return out[:len(out)//2], out[len(out)//2:]
        return out
    def g2_map(self):
        e = self.e
        e(f"s_lshl_b32 s{S_G1}, s{S_XCD}, 1\ns_bfe_u32 s44, s{S_IDX}, 0x10004\ns_add_u32 s{S_G1}, s{S_G1}, s44")
        e(f"s_lshl_b32 s{S_G1}, s{S_G1}, 2")
        e(f"s_bfe_u32 s44, s{S_IDX}, 0x10003")
        e(f"s_sub_u32 s{S_G2}, s{S_G1}, s44\ns_add_u32 s{S_G2}, s{S_G2}, 3")
        e(f"s_add_u32 s{S_G1}, s{S_G1}, s44")
        e(f"s_and_b32 s{S_G3}, s{S_IDX}, 7")
    XT = lambda self, g: (3 - g) * 32768
    S_HB = 81
    def x1s_issue(self, g):
        t = None
        for j in range(8):
            if j % 4 == 0:
                self.e(f"s_add_u32 m0, s{S_T1}, {self.XT(g) + j*1024}")
                self.e(f"s_add_u32 s13, s{S_T0}, {g*32768 + j*1024}")
            t = self.tok(f"buffer_load_dwordx4 v147, s[{S_WS}:{S_WS+3}], s13 offen offset:{(j%4)*1024} sc1 lds")
        return t
    def x1s_check(self, g, T, explicit=False):
        e = self.e
        ad = 146 if self.XT(g) < 65536 else 143
        if g >= 2:
            tk = [self.tok(f"ds_read_b32 v{T+j}, v{ad} offset:{self.XT(g) % 65536 + j*1024}") for j in range(8)]
            if explicit: e("s_waitcnt lgkmcnt(0)")
            else: self.wait(tk[7])
            for j in range(4): e(f"v_bitop3_b32 v{T+2*j}, v{T+2*j}, v{T+2*j+1}, s{TG[0]} bitop3:0x7e")
            e(f"v_or3_b32 v{T}, v{T}, v{T+2}, v{T+4}\nv_or_b32 v{T}, v{T}, v{T+6}\nv_and_b32 v{T}, 0x00010001, v{T}\nv_cmp_ne_u32 vcc, 0, v{T}")
            return
        for rnd in range(2):
            tk = [self.tok(f"ds_read_b128 {vr(T+4*j,4)}, v{ad} offset:{self.XT(g) % 65536 + (4*rnd+j)*1024}") for j in range(4)]
            for j in range(4):
                if explicit: e(f"s_waitcnt lgkmcnt({3-j})")
                elif j in (1, 3): pass
                else: self.wait(tk[j+1])
                r = T + 4*j
                e(f"v_bitop3_b32 v{r}, v{r}, v{r+2}, s{TG[0]} bitop3:0x7e\nv_bitop3_b32 v{r+1}, v{r+1}, v{r+3}, s{TG[1]} bitop3:0x7e")
                e(f"v_or3_b32 v{T+16}, v{r}, v{r+1}, {'v%d' % (T+16) if (rnd or j) else '0'}")
        e(f"v_and_b32 v{T+16}, 0x00010001, v{T+16}\nv_cmp_ne_u32 vcc, 0, v{T+16}")
    def tlane(self, d, t):
        e = self.e
        e(f"v_mov_b32 v{d}, s{TG[0]}\nv_bfe_u32 v{t}, v1, 1, 1\nv_mul_u32_u24 v{t}, 0x10001, v{t}\nv_xor_b32 v{d}, v{d}, v{t}")
        e(f"v_and_b32 v{t}, 1, v1\nv_lshlrev_b32 v{t}, 4, v{t}\nv_bfe_u32 v{d}, v{d}, v{t}, 1\nv_mul_u32_u24 v{d}, 0x10001, v{d}")
    def x1s_guard(self, g, T, tok, keepm0=True):
        e = self.e
        rt = self.lab("xr"); lp = self.lab("xl"); bk = self.lab("xb")
        self.wait(tok)
        self.x1s_check(g, T)
        e(f"s_cbranch_vccnz {rt}")
        self.label(bk)
        def rout():
            self.label(rt)
            e(f"s_mov_b32 s{S_SPIN}, {self.cfg['spin']}")
            if self.cfg.get("stamps"): e(f"v_writelane_b32 v255, 1, {46 + g}")
            e(f"s_mov_b32 s{S_ST+1 if False else 9}, m0")
            self.label(lp)
            self.x1s_issue(g)
            e("s_waitcnt vmcnt(0) lgkmcnt(0)\ns_mov_b32 m0, s9")
            self.x1s_check(g, T, explicit=True)
            e("s_nop 1")
            e(f"s_cbranch_vccz {bk}")
            self.spin_check(lp)
            e(f"s_branch {bk}")
        o, _ = self.capture(rout); self.ool += o
    def modf_issue(self):
        t = None
        for v in range(2):
            for kq in range(4):
                self.e(f"s_mov_b32 s47, {WS_MODP + (kq*3072 + (3+v)*512)*8}")
                t = self.tok(f"buffer_load_dwordx4 {vr(200 + 16*v + 4*kq, 4)}, v236, s[{S_WS}:{S_WS+3}], s47 offen sc1")
        return t
    def xfill(self):
        e = self.e; t = None
        for base in (WS_X1S, WS_X1S + 32*32768, WS_X1, WS_X1 + 32*32768):
            e(f"s_add_u32 s101, s31, {hx(base)}")
            t = self.tok(f"buffer_store_dwordx4 v[248:251], v252, s[{S_WS}:{S_WS+3}], s101 offen sc1")
        return t
    def hfill(self):
        e = self.e
        for g in range(4):
            e(f"s_add_u32 s26, s{self.S_HB}, {g*112*1024}")
            self.tok(f"buffer_store_dwordx4 v[248:251], v147, s[{S_WS}:{S_WS+3}], s26 offen sc1")
            self.htok["fill"] = self.tok(f"buffer_store_dwordx4 v[248:251], v147, s[{S_WS}:{S_WS+3}], s26 offen offset:1024 sc1")
    S_HF = 35
    def gate_pub(self, base=WS_FL1):
        self.e(f"s_add_u32 s101, s32, {base}")
        self.e(f"buffer_store_dword v253, v199, s[{S_WS}:{S_WS+3}], s101 offen sc1")
    S_FB = 3
    def hbase(self):
        e = self.e
        e(f"s_mul_i32 s{self.S_HB}, s{S_G1}, {4*112*1024}")
        e(f"s_lshl_b32 s101, s{S_G2}, 6")
        e(f"s_add_u32 s{self.S_HB}, s{self.S_HB}, s101")
        e(f"s_add_u32 s{self.S_HB}, s{self.S_HB}, {hx(WS_H)}")
    def hflag(self, g, vz, vt):
        self.wait(self.htok[g])
        self.e(f"s_add_u32 s101, s{self.S_FB}, 0")
        self.e(f"buffer_store_dword v{vt}, v{vz}, s[{S_WS}:{S_WS+3}], s101 offen sc1")
    def capture(self, fn):
        keep = self.p.take(); r = fn(); out = self.p.take(); self.p.put(keep); return out, r
    def cap(self, fn): return self.capture(fn)[0]
    def peek(self, fn):
        sv = (dict(self.wdt), dict(self.rd), dict(self.xt), self.p.ntok)
        keep = self.p.take()
        try: fn()
        except KeyError:
            self.p.take(); self.p.put([Ins("buffer_x"), Ins("buffer_x")])
        out = self.p.take(); self.p.put(keep)
        self.wdt.clear(); self.wdt.update(sv[0]); self.rd.clear(); self.rd.update(sv[1]); self.xt.clear(); self.xt.update(sv[2])
        return out
    def guard(self, name, chk, reissue, cond="vccnz"):
        e = self.e
        rt = self.lab(name + "r"); lp = self.lab(name + "l"); bk = self.lab(name + "b")
        chk(False)
        e(f"s_cbranch_vccnz {rt}")
        self.label(bk)
        def rout():
            self.label(rt); e(f"s_mov_b32 s{S_SPIN}, {self.cfg['spin']}")
            if self.cfg.get("stamps"): e(f"v_writelane_b32 v255, 1, {52 + ['mf', 'gt', 'st', 'f0', 'lt', 'g2', 'fa', 'hc', 'rs'].index(name)}")
            self.label(lp)
            reissue(); chk(True); e("s_nop 1")
            e(f"s_cbranch_vccz {bk}"); self.spin_check(lp); e(f"s_branch {bk}")
        self.ool += self.cap(rout)

    def p0_issue(self):
        e = self.e; T = self.T = {}
        e(f"s_mov_b32 s{S_X}, s{P_X}\ns_mov_b32 s{S_X+1}, s{P_X+1}")
        self.tok(f"buffer_load_dwordx4 v[10:13], v9, s[{S_X}:{S_X+3}], s{S_T0} offen")
        T["xr"] = self.tok(f"buffer_load_dwordx4 v[14:17], v9, s[{S_X}:{S_X+3}], s{S_T0} offen offset:1024")
        self.tok(f"buffer_load_dwordx4 v3, s[{S_X}:{S_X+3}], s{S_T3} offen lds")
        T["xt"] = self.tok(f"buffer_load_dwordx4 v6, s[{S_X}:{S_X+3}], s{S_T3} offen offset:1024 lds")
        for i in range(6): T["ssm"] = self.tok(f"global_load_ushort v{18+i}, v8, s[{P_ARE+2*i}:{P_ARE+2*i+1}]")
        e(f"s_load_dword s{S_E}, s[{P_WS}:{P_WS+1}], 0")
        e(f"s_lshl_b32 s{S_T0}, s{S_D0}, 1")
        e(f"s_load_dword s{S_LDT}, s[{P_LDT}:{P_LDT+1}], s{S_T0}")
        e(f"s_load_dword s{S_DSK}, s[{P_DSK}:{P_DSK+1}], s{S_T0}")
        e(f"s_mov_b32 s{S_WM}, s{P_WM}\ns_mov_b32 s{S_WM+1}, s{P_WM+1}")
        e(f"s_cmp_ge_u32 s{S_M+1}, {24 if self.cfg['split'] else 99}\ns_cselect_b32 s{S_M+4}, 1, 0\ns_cmp_ge_u32 s2, 192\ns_cselect_b32 s{S_M+4}, 2, s{S_M+4}")
        T["c"] = self.tok(f"global_load_dword v186, v7, s[{P_C}:{P_C+1}]")
        self.wm_issue(0)
        e(f"s_bitcmp1_b32 s{S_WV}, 0\ns_cselect_b32 s8, s{P_WU}, s{P_WG}\ns_cselect_b32 s9, s{P_WU+1}, s{P_WG+1}")
        if self.cfg["touch"] == 4: self.touch_w()
    def wm_issue(self, which):
        e = self.e
        sk = self.lab("wm")
        e(f"s_cmp_lg_u32 s{S_M+4}, {which}\ns_cbranch_scc1 {sk}")
        e(f"s_lshl_b32 s{S_T1}, s{S_WV}, 12")
        for j in range(4):
            e(f"s_add_u32 m0, s{S_T1}, {L_MOD + 1024*j}")
            e(f"s_add_u32 s101, s{S_M+2}, {j*8*6144}")
            self.T["wm%d" % which] = self.tok(f"buffer_load_dwordx4 v33, s[{S_WM}:{S_WM+3}], s101 offen lds")
        jn = self.lab("wmj")
        self.label(jn)
        def alt():
            self.label(sk)
            for j in range(4): e(f"global_load_dword v32, v9, s[{P_C}:{P_C+1}]")
            e(f"s_branch {jn}")
        self.ool += self.cap(alt)

    def p0_stats(self):
        e = self.e
        e("v_mov_b32 v3, 0x3f803f80")
        self.wait(self.T["xr"])
        for i in range(4):
            c = lambda r: (f"v{r}" if i else "0")
            e(f"v_dot2_f32_bf16 v4, v{10+i}, v3, {c(4)}")
            e(f"v_dot2_f32_bf16 v5, v{10+i}, v{10+i}, {c(5)}")
            e(f"v_dot2_f32_bf16 v6, v{14+i}, v3, {c(6)}")
            e(f"v_dot2_f32_bf16 v7, v{14+i}, v{14+i}, {c(7)}")
        self.reduce16([4, 5, 6, 7])
        e("v_permlane16_swap_b32 v4, v5\nv_permlane16_swap_b32 v6, v7")
        e("v_add_f32 v4, v4, v5\nv_add_f32 v6, v6, v7")
        e("v_permlane32_swap_b32 v4, v6")
        e("v_add_f32 v4, v4, v6")
        e("v_mov_b32 v5, v4")
        e("v_permlane16_swap_b32 v4, v5")
        self.stat_finish(4, 5, 6, 7)
        e(f"v_mov_b32 v5, s{S_TAG}")
        e("v_lshrrev_b32 v6, 2, v1")
        e(f"s_lshr_b32 s{S_T0}, s2, 6\ns_lshl_b32 s{S_T0}, s{S_T0}, 2\ns_add_u32 s{S_T0}, s{S_T0}, s{S_WV}\ns_lshl_b32 s{S_T0}, s{S_T0}, 10")
        e(f"s_and_b32 s{S_T1}, s2, 63\ns_lshl_b32 s{S_T1}, s{S_T1}, 4\ns_add_u32 s{S_T0}, s{S_T0}, s{S_T1}\ns_add_u32 s{S_T0}, s{S_T0}, {WS_ST1}")
        e("s_mov_b32 exec_lo, 1\ns_mov_b32 exec_hi, 1")
        e(f"buffer_store_dwordx2 v[4:5], v6, s[{S_WS}:{S_WS+3}], s{S_T0} offen sc1")
        e("s_mov_b64 exec, -1")

    def p0_xb(self):
        e = self.e
        e("v_lshrrev_b32 v187, 2, v1\nv_lshlrev_b32 v187, 7, v187\nv_and_b32 v4, 3, v1\nv_lshl_add_u32 v187, v4, 3, v187")
        e("v_lshrrev_b32 v5, 4, v1\nv_lshlrev_b32 v3, 11, v5")
        e("v_bfe_u32 v4, v1, 1, 1\nv_lshl_add_u32 v3, v4, 10, v3")
        e("v_bfe_u32 v4, v1, 2, 2\nv_lshl_add_u32 v3, v4, 7, v3")
        e("v_and_b32 v4, 1, v1\nv_lshl_add_u32 v3, v4, 3, v3")
        e(f"s_lshl_b32 s{S_T1}, s{S_WV}, 5\ns_add_u32 s{S_T1}, s{S_T1}, {L_XT}\nv_add_u32 v188, s{S_T1}, v3")
        e("v_lshlrev_b32 v4, 10, v4\nv_lshl_add_u32 v4, v5, 5, v4")
        e("v_bfe_u32 v5, v1, 3, 1\nv_lshl_add_u32 v4, v5, 4, v4")
        e("v_bfe_u32 v5, v1, 1, 2\nv_lshl_add_u32 v189, v5, 14, v4")
        e(f"s_lshl_b32 s{S_T0}, s{S_XCD}, 19\ns_lshl_b32 s{S_T1}, s{S_WV}, 17\ns_add_u32 s{S_T0}, s{S_T0}, s{S_T1}")
        e(f"s_lshr_b32 s{S_T1}, s{S_IDX}, 3\ns_lshl_b32 s{S_T1}, s{S_T1}, 12\ns_add_u32 s{S_T0}, s{S_T0}, s{S_T1}")
        e(f"s_and_b32 s{S_T1}, s{S_IDX}, 7\ns_lshl_b32 s{S_T1}, s{S_T1}, 7\ns_add_u32 s{S_T0}, s{S_T0}, s{S_T1}\ns_add_u32 s46, s{S_T0}, {hx(WS_XB)}")
        e(f"s_add_u32 s47, s46, 0x10000")
    def p0_xb2(self):
        e = self.e
        for i in range(4): e(f"v_mov_b32 v{39+4*i}, s{S_TAG}")
        self.wait(self.T["xt"])
        e("s_barrier")
        tk = [self.tok(f"ds_read_b64_tr_b16 v[{36+4*k}:{37+4*k}], v188 offset:{512*(k&1) + 16*(k>>1)}") for k in range(4)]
        for k in range(4):
            self.wait(tk[k])
            e(f"v_mov_b32 v{38+4*k}, v{37+4*k}\nv_mov_b32 v{37+4*k}, s{S_TAG}")
            e(f"buffer_store_dwordx4 v[{36+4*k}:{39+4*k}], v189, s[{S_WS}:{S_WS+3}], s{46 + (k>>1)} offen offset:{2048*(k&1)} sc1")

    def p0_mod(self, which, nyoung, base=52, tokname=None):
        e = self.e
        skip = self.lab("nomod2")
        e(f"s_cmp_lg_u32 s{S_M+4}, {which}\ns_cbranch_scc1 {skip}")
        e("v_lshlrev_b32 v56, 16, v186\nv_and_b32 v57, 0xffff0000, v186")
        e(f"v_mul_f32 v58, {fl(-LOG2E)}, v56\nv_mul_f32 v59, {fl(-LOG2E)}, v57")
        e("v_exp_f32 v58, v58\nv_exp_f32 v59, v59")
        e("v_add_f32 v58, 1.0, v58\nv_add_f32 v59, 1.0, v59")
        e("v_rcp_f32 v58, v58\nv_rcp_f32 v59, v59")
        e("v_mul_f32 v56, v56, v58\nv_mul_f32 v57, v57, v59")
        e("v_cvt_pk_bf16_f32 v56, v56, v57")
        e(f"s_lshl_b32 s44, s{S_WV}, 8\ns_add_u32 s44, s44, {L_MOD + 16384}")
        e(f"v_lshl_add_u32 v57, v1, 2, s44")
        e("ds_write_b32 v57, v56")
        e("v_lshrrev_b32 v58, 4, v1")
        e(f"v_lshl_add_u32 v57, v58, 4, s44")
        e("v_lshl_add_u32 v59, v58, 9, v187")
        e(f"s_lshl_b32 s45, s{S_WV}, 5\ns_add_u32 s45, s45, {L_MOD}")
        e(f"v_add_u32 v59, s45, v59")
        self.p.wait_nt(self.T[tokname or "wm%d" % which])
        e("s_waitcnt lgkmcnt(0)\ns_barrier")
        for ks in range(4):
            e(f"ds_read_b128 v[{60+8*ks}:{63+8*ks}], v57 offset:{64*ks}")
            e(f"ds_read_b64_tr_b16 v[{64+8*ks}:{65+8*ks}], v59 offset:{4096*ks}")
            e(f"ds_read_b64_tr_b16 v[{66+8*ks}:{67+8*ks}], v59 offset:{4096*ks+512}")
        e(f"s_mul_i32 s44, s{S_M}, {3072*8}\ns_lshl_b32 s45, s{S_M+1}, 9\ns_add_u32 s44, s44, s45")
        e(f"s_lshl_b32 s45, s{S_WV}, 7\ns_add_u32 s44, s44, s45\ns_add_u32 s44, s44, {WS_MODP}")
        e("v_lshlrev_b32 v59, 3, v1")
        for ks in range(4):
            e(f"s_waitcnt lgkmcnt({9-3*ks})")
            e(f"v_mfma_f32_16x16x32_bf16 v[92:95], v[{60+8*ks}:{63+8*ks}], v[{64+8*ks}:{67+8*ks}], {'v[92:95]' if ks else '0'}")
        e("s_barrier")
        e(f"v_mov_b32 v93, s{S_TAG}")
        e("s_mov_b64 exec, 0xffff")
        self.p.nc(f"buffer_store_dwordx2 v[92:93], v59, s[{S_WS}:{S_WS+3}], s44 offen sc1")
        e("s_mov_b64 exec, -1")
        self.label(skip)

    def touch_w(self):
        e = self.e
        e(f"s_lshr_b32 s{S_T0}, s{S_WV}, 1\ns_lshl_b32 s{S_T1}, s2, 1\ns_add_u32 s{S_T0}, s{S_T0}, s{S_T1}\ns_mul_i32 s{S_T0}, s{S_T0}, {28*128}")
        e(f"v_min_u32 v3, 27, v1\nv_lshlrev_b32 v3, 7, v3\nv_add_u32 v3, s{S_T0}, v3")
        e("global_load_dword v198, v3, s[8:9]")
    def touch_wd(self, mode):
        e = self.e
        if mode == 1:
            e(f"s_sub_u32 s{S_T0}, s2, 192\ns_lshl_b32 s{S_T0}, s{S_T0}, 2\ns_add_u32 s{S_T0}, s{S_T0}, s{S_WV}\ns_mul_i32 s{S_T0}, s{S_T0}, {56*128}")
            e(f"s_cmp_lt_u32 s2, 192\ns_cselect_b32 s{S_T0}, 0x7f000000, s{S_T0}")
            e("v_min_u32 v197, 55, v1\nv_lshlrev_b32 v197, 7, v197")
        else:
            e(f"s_lshl_b32 s{S_T0}, s2, 2\ns_add_u32 s{S_T0}, s{S_T0}, s{S_WV}\ns_mul_i32 s{S_T0}, s{S_T0}, {14*128}")
            e("v_min_u32 v197, 13, v1\nv_lshlrev_b32 v197, 7, v197")
        e(f"buffer_load_dword v198, v197, s[{S_WD}:{S_WD+3}], s{S_T0} offen")

    def touch_wdx(self):
        e = self.e
        e(f"s_lshl_b32 s47, s{S_IDX}, 2\ns_add_u32 s47, s47, s{S_WV}\ns_mul_i32 s47, s47, {112*128}")
        e("v_min_u32 v138, 55, v1\nv_lshlrev_b32 v138, 7, v138")
        e(f"buffer_load_dword v139, v138, s[{S_WD}:{S_WD+3}], s47 offen")
        e(f"s_add_u32 s47, s47, {56*128}")
        e(f"buffer_load_dword v139, v138, s[{S_WD}:{S_WD+3}], s47 offen")

    def touch_wdx2(self):
        e = self.e
        e(f"s_mul_i32 s43, s{S_IDX}, {7*1024}\ns_mul_i32 s44, s{S_WV}, {448*1024}\ns_add_u32 s43, s43, s44\ns_add_u32 s43, s43, {224*1024}")
        e("v_min_u32 v138, 55, v1\nv_lshlrev_b32 v138, 7, v138")
        e(f"buffer_load_dword v139, v138, s[{S_WD}:{S_WD+3}], s43 offen")

    def w_setup(self):
        e = self.e
        e("v_lshrrev_b32 v241, 4, v1\nv_mul_u32_u24 v240, 3584, v241")
        e(f"s_and_b32 s13, s{S_WV}, 1\nv_lshl_add_u32 v241, v241, 1, s13")
        e("v_bfe_u32 v242, v1, 1, 3\nv_xor_b32 v241, v241, v242\nv_lshl_add_u32 v240, v241, 5, v240")
        e("v_and_b32 v241, 1, v1\nv_lshl_add_u32 v240, v241, 4, v240")
        e(f"s_lshr_b32 s14, s{S_WV}, 1\ns_mul_i32 s15, s14, {8*3584}")
        e(f"s_and_b32 s101, s{S_G2}, 0xffffff80\ns_lshl_b32 s101, s101, 1\ns_add_u32 s15, s15, s101")
        e(f"v_add_u32 v240, s15, v240\nv_add_u32 v247, {4*3584 - 1024}, v240")
        e("s_lshl_b32 s12, s13, 12\ns_lshl_b32 s14, s14, 11\ns_add_u32 s12, s12, s14")
        e("v_bfe_u32 v241, v1, 4, 1\nv_bfe_u32 v242, v1, 2, 2")
        e("v_lshl_add_u32 v243, v242, 1, v241")
        e(f"s_lshl_b32 s13, s{S_WV}, 1\nv_xor_b32 v243, s13, v243\nv_lshlrev_b32 v243, 5, v243")
        e("v_lshl_add_u32 v243, v241, 12, v243\nv_lshl_add_u32 v243, v242, 8, v243")
        e("v_lshrrev_b32 v241, 5, v1\nv_lshl_add_u32 v243, v241, 11, v243")
        e("v_and_b32 v241, 1, v1\nv_lshl_add_u32 v243, v241, 4, v243")
        e("v_bfe_u32 v241, v1, 1, 1\nv_lshl_add_u32 v241, v241, 3, v243")
        e("v_xor_b32 v242, 32, v241")
        e("v_add_u32 v243, 0x10000, v241\nv_add_u32 v244, 0x10000, v242\nv_add_u32 v245, 0x20000, v241\nv_add_u32 v246, 0x20000, v242")
        self.wt = {}
    def w_rot(self):
        e = self.e
        e(f"s_and_b32 s26, s{S_G1}, {7 if self.cfg['rot'] else 0}\ns_mul_i32 s101, s{S_G3}, {16*16*3584}")
        for j in range(8): e(f"s_add_u32 s{18+j}, s26, {j}\ns_and_b32 s{18+j}, s{18+j}, 7\ns_mul_i32 s{18+j}, s{18+j}, {16*3584}\ns_add_u32 s{18+j}, s{18+j}, s101")
    def w_issue(self, ks):
        e = self.e
        if self.cfg.get('noch'):
            self.wt[ks] = None; e("s_nop 0\ns_nop 0\ns_nop 0\ns_nop 0"); return
        e(f"s_add_u32 m0, s12, {wslot(ks)}\ns_add_u32 s14, s{18 + (ks & 7)}, {(ks >> 3)*8*16*3584}")
        self.tok("buffer_load_dwordx4 v240, s[8:11], s14 offen lds")
        self.wt[ks] = self.tok("buffer_load_dwordx4 v247, s[8:11], s14 offen offset:1024 lds")
    def w_read(self, ks):
        b = wslot(ks); t_ = None
        for t in range(2):
            for i in range(2):
                o = b + 1024*i
                t_ = self.tok(f"ds_read_b64_tr_b16 {ar((t*32+ks)*4+2*i,2)}, v{241 + 2*(o >> 16) + t} offset:{o & 0xffff}")
        return t_
    def w_issue_l(self, r):
        for ks in r: self.w_issue(ks)
    def w_chunks(self, r):
        out = []
        for ks in r:
            l = self.cap(lambda: self.w_issue(ks)); out += [l[:3], l[3:]]
        return out
    def w_read_l(self, r):
        t = None
        for ks in r: t = self.w_read(ks)
        return t

    U1 = 176; U2 = 208
    def modf_chk_only(self):
        e = self.e
        def chk(ex):
            for i in range(8):
                e(f"v_min3_u32 v232, v{201+4*i}, v{203+4*i}, {'v232' if i else 'v201'}\nv_max3_u32 v233, v{201+4*i}, v{203+4*i}, {'v233' if i else 'v201'}")
            e(f"v_xor_b32 v232, s{S_TAG}, v232\nv_xor_b32 v233, s{S_TAG}, v233\nv_or_b32 v232, v232, v233\nv_cmp_ne_u32 vcc, 0, v232")
        self.guard("mf", chk, lambda: (self.modf_issue(), e("s_waitcnt vmcnt(0)")))
    def gate_issue(self, base=WS_FL1):
        self.e(f"v_lshlrev_b32 v235, 6, v0\ns_mov_b32 s101, {base}")
        return self.tok(f"buffer_load_dword v234, v235, s[{S_WS}:{S_WS+3}], s101 offen sc1")
    def gate_check(self, tok):
        self.wait(tok)
        self.guard("gt", lambda ex: self.e(f"v_cmp_ne_u32 vcc, s{S_TAG}, v234"), lambda: (self.gate_issue(), self.e("s_waitcnt vmcnt(0)")))
    def u_addr(self, v, t):
        e = self.e
        e(f"v_bfe_u32 v{v}, v1, 4, 1\nv_mul_u32_u24 v{v}, {1792*16}, v{v}")
        e(f"v_bfe_u32 v{t}, v1, 2, 1\nv_lshl_add_u32 v{v}, v{t}, 7, v{v}")
        e(f"v_bfe_u32 v{t}, v1, 3, 1\nv_lshl_add_u32 v{v}, v{t}, 6, v{v}")
        e(f"v_and_b32 v{t}, 3, v1\nv_lshl_add_u32 v{v}, v{t}, 4, v{v}")
    def u_job(self):
        e = self.e
        self.modf_chk_only()
        for v in range(2):
            for c_ in (0, 2):
                b_ = 200 + 16*v + c_
                e(f"v_add_f32 v{b_}, v{b_}, v{b_+4}\nv_add_f32 v{b_+8}, v{b_+8}, v{b_+12}\nv_add_f32 v{b_}, v{b_}, v{b_+8}")
        e("v_cvt_pk_bf16_f32 v7, v200, v202\nv_cvt_pk_bf16_f32 v5, v216, v218")
        e("v_lshlrev_b32 v8, 16, v5\nv_and_b32 v9, 0xffff0000, v5\nv_add_f32 v8, 1.0, v8\nv_add_f32 v9, 1.0, v9\nv_cvt_pk_bf16_f32 v5, v8, v9")
        e(f"v_lshlrev_b32 v3, 2, v0\nv_add_u32 v3, {L_SS}, v3")
        e("ds_write2st64_b32 v3, v5, v7 offset0:0 offset1:4")
        e("v_and_b32 v2, 1, v1\nv_lshlrev_b32 v2, 10, v2\nv_lshrrev_b32 v4, 5, v1\nv_lshl_add_u32 v2, v4, 4, v2")
        e(f"s_lshl_b32 s101, s{S_G3}, 9\ns_add_u32 s101, s101, {L_SS}\nv_add_u32 v2, s101, v2")
        e("s_waitcnt vmcnt(4) lgkmcnt(0)\ns_barrier")
        for ks in range(self.cfg["nrec"], 16): self.w_read(ks)
        for ks in range(16): e(f"ds_read_b128 {vr(100+4*ks,4)}, v2 offset:{32*ks}")
        self.u_addr(40, 41)
        e(f"s_mul_i32 s101, s{S_G3}, {2*1792*16}\ns_lshl_b32 s44, s{S_G2}, 4\ns_add_u32 s101, s101, s44\ns_add_u32 s101, s101, {WS_U}")
        e("s_cmp_eq_u32 s10, 0\ns_cselect_b32 s101, 0x7f000000, s101")
        e("s_waitcnt lgkmcnt(0)")
        for ks in range(16):
            for t in range(2):
                acc = vr(4 + 16*t, 16)
                e(f"v_mfma_f32_32x32x16_bf16 {acc}, {vr(100+4*ks,4)}, {ar((t*32+ks)*4,4)}, {acc if ks else '0'}")
        for t in range(2):
            e(f"v_mov_b32 v{44+4*t}, v{4+16*t}\nv_mov_b32 v{45+4*t}, s{S_TAG}\nv_mov_b32 v{46+4*t}, v{5+16*t}\nv_mov_b32 v{47+4*t}, s{S_TAG}")
        e("s_mov_b32 s47, s101")
    def u_pub(self):
        e = self.e
        e("s_mov_b32 exec_hi, 0")
        for t in range(2): e(f"buffer_store_dwordx4 {vr(44+4*t,4)}, v40, s[{S_WS}:{S_WS+3}], s47 offen offset:{256*t} sc1")
        e("s_mov_b32 exec_hi, -1")

    def shadow1(self):
        e = self.e; c = self.cfg; cap = self.cap
        nr = c["nrec"]; n1 = 13 + nr
        assert nr == 8
        self.w_read_l(range(nr, 13))
        e(f"s_lshl_b32 s{S_T1}, s{S_WV}, 13")
        e(f"s_lshl_b32 s33, s{S_G1}, 10\ns_add_u32 s33, s33, {WS_ST2}")
        e("v_lshlrev_b32 v147, 4, v1")
        e(f"v_add_u32 v146, s{S_T1}, v147\nv_add_u32 v143, 0x10000, v146")
        e(f"s_lshl_b32 s{S_T0}, s{S_G1}, 17\ns_add_u32 s{S_T0}, s{S_T0}, s{S_T1}\ns_add_u32 s{S_T0}, s{S_T0}, {hx(WS_X1S)}")
        self.wait(self.wt[n1-1])
        e("s_waitcnt lgkmcnt(0)\ns_barrier")
        self.stamp(8)
        r = self.w_read_l(range(13, n1))
        self.w_issue_l(range(n1, 26))
        e("v_lshrrev_b32 v144, 5, v1\nv_lshlrev_b32 v144, 9, v144")
        e("v_bfe_u32 v145, v1, 2, 2\nv_lshl_add_u32 v144, v145, 6, v144")
        e("v_bfe_u32 v145, v1, 4, 1\nv_lshl_add_u32 v144, v145, 5, v144")
        e("v_and_b32 v145, 3, v1\nv_lshl_add_u32 v144, v145, 3, v144")
        e("v_add_u32 v144, 0x10000, v144")
        for j in range(8): e(f"s_add_u32 s101, s26, {j}\ns_and_b32 s101, s101, 7\nv_lshl_add_u32 v{BA[j]}, s101, 10, v144")
        e("v_and_b32 v145, 31, v1\nv_lshlrev_b32 v145, 3, v145")
        for r_ in range(4): e(f"v_mov_b32 v{self.BX+4*r_+2}, 0\nv_mov_b32 v{self.BX+4*r_+3}, 0")
        e(f"v_mov_b32 v{self.AX+2}, 0\nv_mov_b32 v{self.AX+3}, 0\nv_mov_b32 v{self.AX+6}, 0\nv_mov_b32 v{self.AX+7}, 0")
        self.u_addr(138, 139)
        e(f"s_lshl_b32 s35, s{S_G2}, 4\ns_add_u32 s35, s35, {WS_U}\ns_add_u32 s34, s35, {2*1792*16}")
        self.wd_setup_s()
        self.wait(r)
        e("s_barrier")
        self.w_issue_l(range(26, 26 + c["wx"]))
        self.stamp(27)
        self.xt = {}
        self.xt[0] = self.x1s_issue(0)
        self.xt[1] = self.x1s_issue(1)
        self.w_issue_l(range(26 + c["wx"], 32))
        self.htok = {}
        self.g2_setup()
        self.stamp(9)
        self.x1s_guard(0, 148, self.xt[0])
        e("s_waitcnt lgkmcnt(0)\ns_barrier")
        self.stamp(12)

    def stats2_job(self, after_issue):
        e = self.e
        e(f"s_lshl_b32 s{S_T2}, s{S_XCD}, 2\ns_add_u32 s{S_T2}, s{S_T2}, s{S_IDX}\ns_sub_u32 s{S_T2}, s{S_T2}, 28")
        e(f"s_lshr_b32 s101, s{S_T2}, 1\ns_lshl_b32 s101, s101, 2\ns_and_b32 s{S_T2}, s{S_T2}, 1\ns_add_u32 s{S_T2}, s{S_T2}, s101")
        e(f"s_lshl_b32 s{S_T1}, s{S_WV}, 13")
        e(f"s_lshl_b32 s{S_T0}, s{S_T2}, 15\ns_add_u32 s{S_T0}, s{S_T0}, s{S_T1}\ns_add_u32 s{S_T0}, s{S_T0}, {hx(WS_X1)}")
        e("v_lshlrev_b32 v147, 4, v1\nv_lshlrev_b32 v146, 7, v1")
        e("v_lshrrev_b32 v144, 5, v1\nv_lshlrev_b32 v144, 9, v144")
        e("v_bfe_u32 v145, v1, 2, 2\nv_lshl_add_u32 v144, v145, 6, v144")
        e("v_bfe_u32 v145, v1, 4, 1\nv_lshl_add_u32 v144, v145, 5, v144")
        e("v_and_b32 v145, 3, v1\nv_lshl_add_u32 v144, v145, 3, v144")
        e(f"s_lshl_b32 s{S_T1}, s{S_WV}, 14\nv_add_u32 v144, s{S_T1}, v144")
        e(f"v_mov_b32 v60, 0x3f803f80\nv_and_b32 v61, 31, v1\nv_lshlrev_b32 v62, 3, v61\ns_lshl_b32 s101, s{S_WV}, 8\ns_add_u32 s101, s101, {L_SS}")
        e(f"v_add_u32 v63, s101, v62\nv_add_u32 v61, {L_SS}, v62")
        e(f"s_lshl_b32 s{S_T3}, s{S_T2}, 8\ns_add_u32 s{S_T3}, s{S_T3}, {WS_ST2}\ns_cmp_lg_u32 s{S_WV}, 0\ns_cselect_b32 s{S_T3}, 0x7f000000, s{S_T3}")
        e("s_barrier")
        self.tlane(58, 59)
        e(f"s_mov_b32 s{S_SPIN}, {self.cfg['spin']}")
        lp = self.lab("pj"); go = self.lab("pg")
        self.label(lp)
        e(f"buffer_load_dword v64, v146, s[{S_WS}:{S_WS+3}], s{S_T0} offen sc1")
        e(f"buffer_load_dword v65, v146, s[{S_WS}:{S_WS+3}], s{S_T0} offen offset:64 sc1")
        e(f"s_waitcnt vmcnt(0)\nv_bitop3_b32 v64, v64, v65, s{TG[0]} bitop3:0x7e\nv_and_b32 v64, 0x00010001, v64\nv_cmp_ne_u32 vcc, 0, v64\ns_nop 1")
        e(f"s_cbranch_vccz {go}")
        self.spin_check(lp)
        self.label(go)
        def dma(b):
            for j in range(8):
                if j % 4 == 0: e(f"s_add_u32 m0, s{S_T1}, {b*8192 + j*1024}\ns_add_u32 s101, s{S_T0}, {b*65536 + j*1024}")
                e(f"buffer_load_dwordx4 v147, s[{S_WS}:{S_WS+3}], s101 offen offset:{(j%4)*1024} sc1 lds")
        dma(0); dma(1); after_issue()
        for b in range(2):
            def chk(ex, b=b):
                for j in range(16): e(f"ds_read_b64_tr_b16 {vr(68+2*j,2)}, v144 offset:{b*8192 + (j>>1)*1024 + (j&1)*256}")
                for j in range(32):
                    if j % 8 == 0: e(f"s_waitcnt lgkmcnt({12 - j//2})")
                    e(f"v_dot2_f32_bf16 v64, v{68+j}, v60, {'v64' if j else '0'}")
                    e(f"v_dot2_f32_bf16 v65, v{68+j}, v{68+j}, {'v65' if j else '0'}")
                    if j & 1: e(f"v_bitop3_b32 v59, v{67+j}, v{68+j}, v58 bitop3:0x7e\nv_or_b32 v57, v59, {'v57' if j > 1 else 'v59'}")
                e("v_and_b32 v57, 0x00010001, v57\nv_cmp_ne_u32 vcc, 0, v57")
            e(f"s_waitcnt vmcnt({10 if b == 0 else 3})")
            self.guard("g2", chk, lambda b=b: (dma(b), e("s_waitcnt vmcnt(0)")))
            e("v_mov_b32 v66, v64\nv_mov_b32 v67, v65\ns_nop 0\nv_permlane32_swap_b32 v64, v66\nv_permlane32_swap_b32 v65, v67\nv_add_f32 v64, v64, v66\nv_add_f32 v65, v65, v67")
            e(f"ds_write_b64 v63, v[64:65] offset:{1024*b}\ns_waitcnt lgkmcnt(0)\ns_barrier")
            for w in range(4): e(f"ds_read_b64 {vr(68+2*w,2)}, v61 offset:{1024*b + 256*w}")
            e("s_waitcnt lgkmcnt(0)")
            e("v_pk_add_f32 v[68:69], v[68:69], v[70:71]\nv_pk_add_f32 v[72:73], v[72:73], v[74:75]\nv_pk_add_f32 v[68:69], v[68:69], v[72:73]")
            self.stat_finish(68, 69, 70, 71)
            e(f"v_mov_b32 v69, s{S_TAG}")
            e(f"buffer_store_dwordx2 v[68:69], v62, s[{S_WS}:{S_WS+3}], s{S_T3} offen offset:{512*b} sc1")
            self.stamp(11 if b else 45)
        e("s_barrier")

    def wd_setup_s(self):
        e = self.e
        e(f"s_mul_i32 s{S_LDT}, s{S_WV}, {448*1024}")
        e(f"s_and_b32 s101, s{S_IDX}, 7\ns_lshl_b32 s101, s101, 7\ns_add_u32 s{S_LDT}, s{S_LDT}, s101")
        e(f"s_lshr_b32 s36, s{S_IDX}, 3\ns_lshl_b32 s36, s36, 1\ns_add_u32 s36, s36, s{S_IDX}\ns_and_b32 s36, s36, {7 if self.cfg['rot2'] else 0}")
        e("s_cmp_eq_u32 s36, 7\ns_cselect_b32 s36, 0, s36\ns_lshl_b32 s36, s36, 10")
        for j in range(1, 7): e(f"s_add_u32 s{36+j}, s{35+j}, 1024\ns_cmp_eq_u32 s{36+j}, 7168\ns_cselect_b32 s{36+j}, 0, s{36+j}")
        for b_ in range(1, 4): e(f"s_add_u32 s{27+b_}, s{S_LDT}, {b_*7*16384}")
        e(f"s_mul_i32 s{S_M+8}, s{S_WV}, 6144\ns_add_u32 s{S_M+8}, s{S_M+8}, {L_SP}")
        e(f"s_lshl_b32 s{S_M+9}, s{S_WV}, 13")
    def wd_setup_v(self):
        e = self.e
        e("v_lshrrev_b32 v240, 3, v1")
        e("v_bfe_u32 v241, v1, 4, 1\nv_lshlrev_b32 v241, 2, v241")
        e("v_and_b32 v242, 7, v1\nv_xor_b32 v241, v241, v242")
        e("v_lshlrev_b32 v240, 10, v240\nv_lshl_add_u32 v240, v241, 4, v240")
        e(f"v_add_u32 v241, {8192 - 1024}, v240")
        e("v_lshrrev_b32 v242, 5, v1\nv_lshlrev_b32 v242, 10, v242")
        e("v_bfe_u32 v243, v1, 2, 2\nv_lshl_add_u32 v242, v243, 7, v242")
        e("v_bfe_u32 v243, v1, 3, 1\nv_lshl_add_u32 v242, v243, 6, v242")
        e("v_and_b32 v243, 1, v1\nv_lshl_add_u32 v242, v243, 5, v242")
        e("v_bfe_u32 v243, v1, 1, 1\nv_lshl_add_u32 v242, v243, 3, v242")
        e("v_bfe_u32 v243, v1, 4, 1\nv_lshl_add_u32 v242, v243, 4, v242")
        e(f"v_add_u32 v244, s{S_M+9}, v242\nv_xor_b32 v245, 64, v244\nv_add_u32 v246, 0x10000, v244\nv_add_u32 v247, 0x10000, v245")
        e(f"v_add_u32 v242, s{S_M+8}, v242\nv_xor_b32 v243, 64, v242")
    def wd_setup(self):
        self.wd_setup_s(); self.wd_setup_v()
    NV = 5
    WPOS = [0, 1, 2, 3, 4, 5, 6, 0, 1, 2, 7, 8, 9, 10, 3, 4, 11, 12, 13, 14, 5, 6, 0, 1, 2, 7, 8, 9]
    WPREV = {7: 0, 8: 1, 9: 2, 14: 3, 15: 4, 20: 5, 21: 6, 22: 7, 23: 8, 24: 9, 25: 10, 26: 11, 27: 12}
    def wd_loc(self, ks):
        sl = self.WPOS[ks]
        if sl < 3: return 0, 2048*sl
        q, r = divmod(sl - 3, 4)
        return 1, (3 - q)*32768 + 2048*r
    def WA(self, ks, t, off=0, n=4):
        if ks < self.NV: return vr(200 + 8*ks + 4*t + off, n)
        return ar((t*32 + ks - self.NV)*4 + off, n)
    def wd_issue(self, ks):
        e = self.e
        r, o = self.wd_loc(ks)
        e(f"s_add_u32 m0, s{S_M+8+r}, {o}\ns_lshl4_add_u32 s15, s{36 + ks % 7}, s{S_LDT if ks < 7 else 27 + ks // 7}")
        self.tok(f"buffer_load_dwordx4 v240, s[{S_WD}:{S_WD+3}], s15 offen lds")
        self.wdt[ks] = self.tok(f"buffer_load_dwordx4 v241, s[{S_WD}:{S_WD+3}], s15 offen offset:1024 lds")
    def wd_chunks(self, r):
        out = []
        for ks in r:
            l = self.cap(lambda: self.wd_issue(ks)); out += [l[:3], l[3:]]
        return out
    def wd_read(self, ks):
        r, o = self.wd_loc(ks); t_ = None
        for t in range(2):
            for i in range(2):
                oo = o + 512*i
                reg = 242 if r == 0 else (244 if oo < 65536 else 246)
                t_ = self.tok(f"ds_read_b64_tr_b16 {self.WA(ks, t, 2*i, 2)}, v{reg+t} offset:{oo & 0xffff}")
        return t_

    def gemm1f(self):
        e = self.e; c = self.cfg; cap = self.cap
        e(f"s_mov_b32 s{S_T2}, s{self.S_HB}\ns_mov_b32 s{S_T3}, {fl(-GC)}")
        ACC = [4, 36, 68]; BR = 100; R = 6
        seq = [(0, k) for k in range(16)] + [(1, k) for k in range(16)] + [(0, k) for k in range(16, 32)] + [(1, k) for k in range(16, 32)] + [(g, k) for g in (2, 3) for k in range(32)]
        def bread(n):
            g, ks = seq[n]; b = BR + 4*(n % R); base = self.XT(g); ad = BA[ks & 7]
            o = base % 65536 + (ks >> 3)*8192
            self.tok(f"ds_read_b64_tr_b16 {vr(b,2)}, v{ad} offset:{o}")
            t_ = self.tok(f"ds_read_b64_tr_b16 {vr(b+2,2)}, v{ad} offset:{o+256}")
            if g == 1 and ks >= 24: e(f"v_add_u32 v{ad}, 0xffff0000, v{ad}")
            return t_
        PF = R - 1
        tk = {}
        for n in range(PF): tk[n] = bread(n)
        ST = [128, 130, 132, 134]
        def st_issue(h):
            t = None
            for g in (2*h, 2*h+1):
                t = self.tok(f"buffer_load_dwordx2 {vr(ST[g],2)}, v145, s[{S_WS}:{S_WS+3}], s33 offen offset:{256*g} sc1")
            return t
        def st_guard(h, tok):
            def st_chk(ex):
                e(f"v_xor_b32 v136, s{S_TAG}, v{ST[2*h]+1}\nv_xor_b32 v137, s{S_TAG}, v{ST[2*h+1]+1}\nv_or_b32 v136, v136, v137\nv_cmp_ne_u32 vcc, 0, v136")
            self.wait(tok)
            self.guard("st", st_chk, lambda: (st_issue(h), e("s_waitcnt vmcnt(0)")))
            e("s_mov_b32 s44, 0x03020302\ns_mov_b32 s43, 0x01000100")
            for g in (2*h, 2*h+1):
                b = ST[g]; x = self.BX + 4*g
                e(f"v_lshlrev_b32 v{b+1}, 16, v{b}\nv_rcp_f32 v136, v{b+1}")
                e(f"v_perm_b32 v{x}, v{b}, v{b}, s44\nv_perm_b32 v{x+1}, v{b}, v{b}, s43")
                e(f"v_mul_f32 v{b}, {fl(GAM)}, v136\nv_xor_b32 v{x}, 0x80008000, v{x}\nv_mul_f32 v{b+1}, {fl(GAM)}, v{b+1}")
        UR = 200
        def u_issue():
            t_ = None
            for t in range(2):
                for h in range(2):
                    t_ = self.tok(f"buffer_load_dwordx4 {vr(UR+8*t+4*h,4)}, v138, s[{S_WS}:{S_WS+3}], s{35-h} offen offset:{256*t} sc1")
            return t_
        def u_chk(ex):
            for i in range(4): e(f"v_min3_u32 v136, v{UR+4*i+1}, v{UR+4*i+3}, {'v136' if i else 'v%d' % (UR+1)}\nv_max3_u32 v137, v{UR+4*i+1}, v{UR+4*i+3}, {'v137' if i else 'v%d' % (UR+1)}")
            e(f"v_xor_b32 v136, s{S_TAG}, v136\nv_xor_b32 v137, s{S_TAG}, v137\nv_or_b32 v136, v136, v137\nv_cmp_ne_u32 vcc, 0, v136")
        def u_guard(tok):
            self.wait(tok)
            self.guard("mf", u_chk, lambda: (u_issue(), e("s_waitcnt vmcnt(0)")))
            e("v_cmp_gt_u32 vcc, 32, v1")
            for t in range(2):
                for k in range(2):
                    u = UR + 8*t + 2*k; d = self.AX + 4*t + k
                    e(f"v_add_f32 v{u}, v{u}, v{u+4}\nv_cvt_pk_bf16_f32 v136, v{u}, v{u}\nv_and_b32 v136, 0xffff0000, v136\nv_sub_f32 v136, v{u}, v136")
                    e(f"v_cvt_pk_bf16_f32 v136, v{u}, v136\nv_cndmask_b32 v{d}, 0, v136, vcc")
        STN = [8, 16, 24, 32, 40, 48, 56, 64, 80, 96, 104, 112, 120]
        def steps(n0, n1):
            for n in range(n0, n1):
                g, ks = seq[n]
                if n in STN: self.stamp(30 + STN.index(n))
                self.wait(tk[n])
                for t in range(2):
                    acc = vr(ACC[g % 3] + 16*t, 16)
                    e(f"v_mfma_f32_32x32x16_bf16 {acc}, {ar((t*32+ks)*4,4)}, {vr(BR+4*(n%R),4)}, {acc if ks else '0'}")
                    if t == 0 and n + PF < 128: tk[n+PF] = bread(n+PF)
                    for it in extra.get((n, t), []): self.p.put(it() or [])
                if ks == 31 and g: self.g1_fold(g, ACC[g % 3])
        extra = {}
        def seg(n0, n1, fill, flush=True, pace=None):
            m = cap(lambda: steps(n0, n1))
            m, left = merge(m, fill, 24, pace=pace or c["gpace"])
            self.p.put(m)
            if flush:
                if left: sys.stderr.write(f"flush {len(left)} at {n1}\n")
                self.p.put(left); return []
            return left
        xt = self.xt; hold = {}; self.wdt = {}; self.rd = {}; self.ht = {}
        def at(n, fn, t=1): extra.setdefault((n, t), []).append(fn)
        def spread_vm(n0, fn, per=1, step=1):
            box = {}
            def first():
                box["l"] = cap(fn)
            def part():
                if "l" not in box: first()
                out = []; k = 0
                while box["l"] and k < per:
                    i = box["l"].pop(0); out.append(i)
                    if i.wait is None and i.text.startswith("buffer_"): k += 1
                return out
            cnt = sum(1 for i in self.peek(fn) if i.wait is None and i.text.startswith("buffer_"))
            nst = -(-cnt // per)
            for j in range(nst): at(n0 + j*step, part, c['vt'])
            return n0 + nst*step
        def wrd(ks):
            def f():
                self.wait(self.wdt[ks]); self.rd[ks] = self.wd_read(ks)
            return f
        def wis(ks):
            def f():
                if ks in self.WPREV: self.wait(self.rd[self.WPREV[ks]])
                self.wd_issue(ks)
            return f
        n = spread_vm(c["b2"], lambda: xt.__setitem__(2, self.x1s_issue(2)))
        n = spread_vm(max(n, c["b3"]), lambda: xt.__setitem__(3, self.x1s_issue(3)))
        spread_vm(c["ui"], lambda: hold.__setitem__("u", u_issue()), per=1)
        n = spread_vm(max(n, c["sti"]), lambda: hold.__setitem__("t0", st_issue(0)), per=2)
        for ks in range(3): n = spread_vm(n, wis(ks))
        n = c["b4"]
        for ks in range(3, 7): n = spread_vm(n, wis(ks))
        for j in range(3): at(c["b4"] + 1 + 2*j, wrd(j))
        at(n, lambda: hold.__setitem__("t1", st_issue(1))); n += 1
        for ks in range(7, 10): n = spread_vm(n, wis(ks))
        n = max(n, 67)
        for ks in range(10, 14): n = spread_vm(n, wis(ks))
        at(68, wrd(3)); at(70, wrd(4))
        for ks in (14, 15): n = spread_vm(n, wis(ks))
        if c["twx"]: at(n + 1, lambda: self.touch_wdx2())
        n = 98
        for ks in range(16, 20): n = spread_vm(n, wis(ks))
        for j in range(c["nrd"]): at(min(127, 98 + c["rss"]*j), wrd(5 + j))
        for ks in range(20, 20 + c["nrc"]): n = spread_vm(n, wis(ks))
        nhe = min(8, 128 - n, c["nhe"])
        for j in range(nhe): at(n + j, lambda j=j: self.hl(0, j, 147), c['vt'])
        seg(0, c["b1"] - 5, [])
        seg(c["b1"] - 5, c["b1"], cap(lambda: self.x1s_guard(1, 148, xt[1])))
        e("s_barrier")
        seg(c["b1"], c["b2"], cap(lambda: self.wait(self.w_read_l(range(21, 26)), self.wt[31])))
        e("s_barrier")
        seg(c["b2"], c["b3"], cap(lambda: self.wait(self.w_read_l(range(26, 32)))))
        e("s_barrier")
        seg(c["b3"], c["g2k"], cap(self.wd_setup_v))
        seg(c["g2k"], c["uk"], cap(lambda: self.x1s_guard(2, 148, xt[2])))
        seg(c["uk"], c["stk"], cap(lambda: u_guard(hold["u"])))
        self.stamp(13)
        seg(c["stk"], 48, cap(lambda: st_guard(0, hold["t0"])))
        self.g1_fold(0, ACC[0])
        pend = seg(48, c["b4"], self.g1_epilogue(0, ACC[0], ST[0]) + cap(lambda: self.x1s_guard(3, 148, xt[3], keepm0=True)), flush=False)
        e("s_barrier")
        pend = seg(c["b4"], 64, pend, flush=False)
        ep1 = self.g1_epilogue(1, ACC[1], ST[1], split=True)
        pend = seg(64, 66, pend + ep1[0], flush=False)
        e("s_barrier")
        pend = seg(66, c["st1k"], pend, flush=False)
        pend = seg(c["st1k"], 88, cap(lambda: st_guard(1, hold["t1"])) + pend + ep1[1], flush=False)
        assert not any(i.kind == "label" for i in pend)
        e("s_barrier")
        pend = seg(88, 96, pend, flush=False)
        n1_ = len(pend)
        pend = seg(96, 98, pend + self.g1_epilogue(2, ACC[2], ST[2]), flush=False)
        sys.stderr.write(f"ep1 backlog at 96: {n1_}\n")
        e("s_barrier")
        pend = seg(98, 128, pend, flush=False)
        sys.stderr.write(f"tail leftover {len(pend)} nhe {nhe}\n")
        self.stamp(14)
        self.p.put(pend)
        hch = [cap(lambda: self.hl(0, ks, 147)) for ks in range(nhe, nhe + c["nh"])]
        self.p.put(weave(self.g1_epilogue(3, ACC[0], ST[3]), hch, c["hw"]))
        self.stamp(15)

    HB = 68
    def HR(self, ks): return 68 + 4*ks if ks < 14 else (200 + 4*(ks-14) if ks < 24 else 124 + 4*(ks-24))
    def g2_setup(self):
        e = self.e
        self.g2_map()
        e(f"s_mul_i32 s{S_M+4}, s{S_G1}, {112*1024}\ns_mul_i32 s{S_M+5}, s{S_G2}, {112*1024}")
        e(f"s_mul_i32 s{S_M+6}, s{S_WV}, {28*1024}\ns_add_u32 s{S_M+6}, s{S_M+6}, {hx(WS_H)}")
        e(f"s_add_u32 s{S_M+4}, s{S_M+4}, s{S_M+6}\ns_add_u32 s{S_M+5}, s{S_M+5}, s{S_M+6}")
        for b_ in range(4): e(f"s_add_u32 s{18+b_}, s{S_M+4}, {b_*7168}\ns_add_u32 s{22+b_}, s{S_M+5}, {b_*7168}")
        e(f"s_lshr_b32 s45, s{S_WV}, 1\ns_sub_u32 s44, s{S_G2}, s{S_G1}\ns_mul_i32 s45, s45, s44\ns_add_u32 s45, s45, s{S_G1}")
        e(f"s_and_b32 s46, s{S_WV}, 1\ns_lshl_b32 s46, s46, 5\ns_lshl_b32 s44, s{S_G3}, 6\ns_add_u32 s46, s46, s44")
        e(f"s_lshl_b32 s{S_M}, s45, 15\ns_lshl_b32 s{S_M+1}, s46, 6\ns_add_u32 s{S_M}, s{S_M}, s{S_M+1}\ns_add_u32 s{S_M}, s{S_M}, {hx(WS_X1)}")
        e(f"s_lshl_b32 s{S_M+1}, s{S_WV}, 11\ns_add_u32 s{S_M+1}, s{S_M+1}, {L_XR2}")
    def fl_issue(self, nt, va, vd): return self.tok(f"buffer_load_dword v{vd}, v{va}, s[{S_WS}:{S_WS+3}], s{S_M+2+nt} offen sc1")
    def HX(self, nt, ks):
        spare = [92 + 4*i for i in range(9)] + [220 + 4*i for i in range(9)]
        if nt == 0: return vr(36 + 4*ks, 4) if ks < 26 else ar(spare[ks - 26], 4)
        if ks < 16: return ar(spare[2 + ks], 4)
        return vr(36 + 4*(ks - 8), 4)
    def hl(self, nt, ks, va):
        self.e(f"s_add_u32 s47, s{36 + ks % 7}, s{18 + 4*nt + ks // 7}")
        self.ht[(nt, ks)] = self.tok(f"buffer_load_dwordx4 {self.HX(nt, ks)}, v{va}, s[{S_WS}:{S_WS+3}], s47 offen sc1")
    def gemm2f(self):
        e = self.e; c = self.cfg; cap = self.cap
        rd = self.rd; ht = self.ht
        e(f"v_mov_b32 v182, v147\nv_min_u32 v183, 27, v1\nv_lshlrev_b32 v183, 10, v183")
        e("s_barrier")
        todo = [ks for ks in range(28) if ks not in self.wdt]
        for ks in range(28):
            if ks not in rd and any(self.WPREV.get(k2) == ks for k2 in todo):
                self.wait(self.wdt[ks]); rd[ks] = self.wd_read(ks)
        self.stamp(16)
        order = []
        for ks in range(28):
            if ks in todo: order.append(("w", ks))
            if (0, ks) not in ht: order.append(("h", ks))
        def iss(it):
            if it[0] == "h": self.hl(0, it[1], 182)
            else:
                self.wait(rd[self.WPREV[it[1]]]); self.wd_issue(it[1])
        def mm(nt, ks):
            for t in range(2):
                acc = vr(4 + 32*nt + 16*t, 16)
                e(f"v_mfma_f32_32x32x16_bf16 {acc}, {self.WA(ks, t)}, {self.HX(nt, ks)}, {acc if ks else '0'}")
        probe = lambda: self.tok(f"buffer_load_dword v184, v183, s[{S_WS}:{S_WS+3}], s{S_M+5} offen sc1")
        def hguard(nt, k0):
            def hchk(ex):
                for j in range(7):
                    op = self.HX(nt, k0 + j); b_ = int(op[2:op.index(":")])
                    if op[0] == "a":
                        e(f"v_accvgpr_read_b32 v190, a{b_}\nv_accvgpr_read_b32 v191, a{b_+1}"); s0, s1 = 190, 191
                    else: s0, s1 = b_, b_ + 1
                    if j == 0: e(f"v_xor_b32 v189, s{TG[0]}, v{s0}")
                    else: e(f"v_bitop3_b32 v189, v189, v{s0}, s{TG[0]} bitop3:0xf6")
                    e(f"v_bitop3_b32 v189, v189, v{s1}, s{TG[1]} bitop3:0xf6")
                e("v_and_b32 v189, 0x00010001, v189\nv_cmp_ne_u32 vcc, 0, v189")
            def reis():
                keep_ = dict(ht)
                for j in range(7): self.hl(nt, k0 + j, 182)
                ht.update(keep_); e("s_waitcnt vmcnt(0)")
            self.wait(*[ht[(nt, k0 + j)] for j in range(7)])
            self.guard("hc", hchk, reis)
        self.hguard = hguard
        rest = list(order)
        KC = c["kc"]; f1 = None
        def rdw(ks):
            if ks < 28 and ks not in rd:
                self.wait(self.wdt[ks]); rd[ks] = self.wd_read(ks)
        rdw(0)
        for ks in range(KC):
            for _ in range(c["npi"]):
                if rest: iss(rest.pop(0))
            while rest and rest[0][1] <= 7*(ks // 7) + 7: iss(rest.pop(0))
            if ks >= c["kf"] and not rest and f1 is None: f1 = probe()
            rdw(ks + 1)
            if ks % 7 == 0: hguard(0, ks)
            self.wait(rd[ks]); mm(0, ks)
        assert not rest and f1 is not None
        slow = self.lab("g2slow"); jn = self.lab("g2j")
        self.wait(f1)
        e(f"v_xor_b32 v184, s{TG[0]}, v184\nv_and_b32 v184, 0x00010001, v184\nv_cmp_ne_u32 vcc, 0, v184\ns_cbranch_vccnz {slow}")
        pendw = [ks for ks in range(28) if ks not in rd]
        nx = 0
        for ks in range(KC, 28):
            for _ in range(c["nb"]):
                if nx < 28 and (nx < 16 or nx - 8 < ks): self.hl(1, nx, 182); nx += 1
            rdw(ks + 1)
            if ks % 7 == 0: hguard(0, ks)
            self.wait(rd[ks]); mm(0, ks)
        while nx < 28: self.hl(1, nx, 182); nx += 1
        self.label(jn)
        keep = dict(ht)
        def rout():
            lp = self.lab("g2l"); ok = self.lab("g2ok")
            self.label(slow)
            e("s_waitcnt vmcnt(0)")
            for ks in pendw: self.wd_read(ks)
            probe()
            e("s_waitcnt lgkmcnt(0)")
            for ks in range(KC, 28):
                if ks % 7 == 0:
                    body = cap(lambda: hguard(0, ks)); self.p.put([i for i in body if i.wait is None])
                mm(0, ks)
            e(f"s_mov_b32 s{S_SPIN}, {self.cfg['spin']}")
            self.label(lp)
            e(f"s_waitcnt vmcnt(0)\nv_xor_b32 v184, s{TG[0]}, v184\nv_and_b32 v184, 0x00010001, v184\nv_cmp_ne_u32 vcc, 0, v184\ns_nop 1\ns_cbranch_vccz {ok}")
            probe()
            self.spin_check(lp)
            e("s_waitcnt vmcnt(0)")
            self.label(ok)
            if c.get("stamps"): e("v_writelane_b32 v255, 1, 51")
            for ks in range(28): self.hl(1, ks, 182)
            e(f"s_branch {jn}")
        self.ool += cap(rout)
        ht.update(keep)
        self.stamp(19)
        def extras():
            e(f"s_mov_b32 m0, s{S_M+1}\ns_nop 0")
            self.tok(f"buffer_load_dwordx4 v182, s[{S_WS}:{S_WS+3}], s{S_M} offen sc1 lds")
            self.xr = self.tok(f"buffer_load_dwordx4 v182, s[{S_WS}:{S_WS+3}], s{S_M} offen offset:1024 sc1 lds")
            e("v_lshrrev_b32 v185, 5, v1\nv_lshlrev_b32 v185, 6, v185")
            e(f"s_lshl_b32 s{S_M+2}, s{S46}, 2\ns_add_u32 s{S_M+2}, s{S_M+2}, {WS_MODF}")
            for j in range(4): self.gbt = self.tok(f"buffer_load_dwordx4 {vr(140+4*j,4)}, v185, s[{S_WS}:{S_WS+3}], s{S_M+2} offen offset:{16*j} sc1")
        def wr(T):
            for j in range(4): e(f"ds_write_b128 v{186 + (T >> 1)}, {vr(4+16*T+4*j,4)} offset:{(T & 1)*32768 + 1024*j}")
        def addrs():
            self.tlane(181, 180)
            e(f"v_add_u32 v186, s{S_M+9}, v182\nv_add_u32 v187, 0x10000, v186")
            e(f"s_lshl_b32 s{S_T0}, s{S_WV}, 15\nv_add_u32 v188, s{S_T0}, v182")
            e("v_lshrrev_b32 v248, 5, v1\nv_lshlrev_b32 v248, 10, v248")
            e("v_bfe_u32 v249, v1, 2, 2\nv_lshl_add_u32 v248, v249, 6, v248")
            e("v_bfe_u32 v249, v1, 4, 1\nv_lshl_add_u32 v248, v249, 5, v248")
            e("v_and_b32 v249, 3, v1\nv_lshl_add_u32 v248, v249, 3, v248")
            e(f"v_add_u32 v248, s{S_M+1}, v248")
            e("v_and_b32 v249, 31, v1\nv_lshlrev_b32 v249, 10, v249")
            e("v_lshrrev_b32 v250, 5, v1\nv_lshl_add_u32 v249, v250, 5, v249")
            e(f"s_lshl_b32 s{S_T0}, s{S45}, 15\ns_lshl_b32 s{S_T1}, s{S46}, 1\ns_add_u32 s{S_T0}, s{S_T0}, s{S_T1}")
        def resid():
            self.wait(self.xr)
            tk = [self.tok(f"ds_read_b64_tr_b16 {vr(172+2*j,2)}, v248 offset:{256*j}") for j in range(4)]
            self.wait(tk[3])
            def rchk(ex):
                for j in range(4): e(f"v_bitop3_b32 v190, v{172+2*j}, v{173+2*j}, v181 bitop3:0x7e\nv_or_b32 v191, v190, {'v191' if j else 'v190'}")
                e("v_and_b32 v191, 0x00010001, v191\nv_cmp_ne_u32 vcc, 0, v191")
            def rre():
                e(f"s_mov_b32 m0, s{S_M+1}\ns_nop 0")
                e(f"buffer_load_dwordx4 v182, s[{S_WS}:{S_WS+3}], s{S_M} offen sc1 lds\nbuffer_load_dwordx4 v182, s[{S_WS}:{S_WS+3}], s{S_M} offen offset:1024 sc1 lds\ns_waitcnt vmcnt(0)")
                for j in range(4): e(f"ds_read_b64_tr_b16 {vr(172+2*j,2)}, v248 offset:{256*j}")
                e("s_waitcnt lgkmcnt(0)")
            self.guard("rs", rchk, rre)
            for j in range(8): e(f"v_lshlrev_b32 v{156+2*j}, 16, v{172+j}\nv_and_b32 v{157+2*j}, 0xffff0000, v{172+j}")
        def nt1():
            for ks in range(28):
                if ks % 7 == 0: hguard(1, ks)
                mm(1, ks)
        fill = cap(extras) + cap(addrs) + cap(lambda: (wr(0), wr(1))) + cap(resid)
        m, left = merge(cap(nt1), fill, 24, pace=1); self.p.put(m + left)
        self.stamp(17)
        wr(2); wr(3)
        e("s_waitcnt lgkmcnt(0)\ns_barrier")
        rt = {}
        for w in range(4):
            for j in range(4): rt[(w, j)] = self.tok(f"ds_read_b128 {vr(68+16*w+4*j,4)}, v188 offset:{8192*w + 1024*j}")
        self.wait(rt[(1, 3)])
        for j in range(8): e(f"v_pk_add_f32 {vr(68+2*j,2)}, {vr(68+2*j,2)}, {vr(84+2*j,2)}")
        self.wait(rt[(3, 3)], self.gbt)
        for j in range(8): e(f"v_pk_add_f32 {vr(100+2*j,2)}, {vr(100+2*j,2)}, {vr(116+2*j,2)}")
        for h in range(2):
            for j in range(4*h, 4*h+4): e(f"v_pk_add_f32 {vr(68+2*j,2)}, {vr(68+2*j,2)}, {vr(100+2*j,2)}")
            for j in range(4*h, 4*h+4): e(f"v_pk_fma_f32 {vr(68+2*j,2)}, {vr(68+2*j,2)}, {vr(140+2*j,2)}, {vr(156+2*j,2)}")
            for j in range(4*h, 4*h+4): e(f"v_cvt_pk_bf16_f32 v{24+j}, v{68+2*j}, v{69+2*j}")
            e(f"buffer_store_dwordx4 {vr(24+4*h,4)}, v249, s[{S_OUT}:{S_OUT+3}], s{S_T0} offen offset:{16*h}")
        self.stamp(18)

    def bump_epoch(self):
        e = self.e
        sk = self.lab("ep")
        e("s_cmp_lg_u32 s2, 0")
        e(f"s_cbranch_scc1 {sk}")
        e(f"s_add_u32 s{S_T0}, s{S_E}, 1")
        e(f"v_mov_b32 v3, s{S_T0}\nv_mov_b32 v4, 0")
        e("s_mov_b64 exec, 1")
        e(f"buffer_store_dword v3, v4, s[{S_WS}:{S_WS+3}], 0 offen sc1")
        e("s_mov_b64 exec, -1")
        self.label(sk)
    def finish(self):
        if self.cfg.get("hold"):
            self.label("F_hold")
            self.e(f"s_memrealtime s[{S_ST}:{S_ST+1}]\ns_waitcnt lgkmcnt(0)\ns_sub_u32 s{S_T0}, s{S_ST}, s34\ns_cmp_lt_u32 s{S_T0}, {self.cfg['hold']}\ns_cbranch_scc1 F_hold")
        self.stamp_flush()
        self.label(f"{self.cfg['uid']}_end")
        self.e("s_endpgm")
        ins = resolve(self.p.take()) + self.ool
        ins, n = pad_hazards(ins)
        check_labels(ins)
        return render(ins)
def kernel_text(name, body, vgpr=512, accum=256):
    return f""".text
.globl {name}
.p2align 8
.type {name},@function
{name}:
{body}
.section .rodata,"a"
.p2align 6
.amdhsa_kernel {name}
  .amdhsa_next_free_vgpr {vgpr}
  .amdhsa_next_free_sgpr 102
  .amdhsa_accum_offset {accum}
  .amdhsa_group_segment_fixed_size 0
  .amdhsa_kernarg_size 144
  .amdhsa_user_sgpr_count 2
  .amdhsa_user_sgpr_kernarg_segment_ptr 1
  .amdhsa_system_sgpr_workgroup_id_x 1
.end_amdhsa_kernel
"""

def build(stamps=False, over={}):
    hdr = open("adaLN_cond__ssm_conv_s4__glu_gated_geglu__prompt.s.ref").read().split("; Override launch")[0]
    cfg = dict(spin=200000, stamps=stamps, uid="F", b1=11, b2=17, b3=23, flp=52, ui=26, g2k=36, uk=39, sti=34, stk=45, fe0=0, fes=2, vt=0, b4=50, st1k=72, nrd=12, rss=2, nhe=8, wx=6, kc=10, kf=4, nb=3, npi=3, nh=10, hw=13, nrc=8, cpf=9, rc0=3, rcs=2, f0k=104, fe=1, g0at=12, twx=0, npre=16, ga=24, cpace=4, gpace=2, nb1=0, twd=2, touch=2, fpos=1, wa0=4, map8=1, rot=1, rot2=1, split=0, nbp=0, nb2=5, adapt=1, s2b=1, nx1=8, nrec=8, wpre=12, itb=1)
    cfg.update(over)
    g = G(cfg); e = g.e
    g.prologue()
    g.p0_issue()
    g.srds_late()
    g.g1_map(); g.w_setup(); g.hbase()
    g.w_rot(); g.conv_setup(); g.p0_xb()
    g.tag_ready(); g.stamp(1)
    g.kgen_pre()
    g.p0_stats(); g.stamp(2)
    g.p0_xb2(); g.stamp(23)
    g.wm_issue(1)
    hold = {}
    if cfg['touch'] == 2: g.touch_w()
    if cfg['twd'] == 1: g.touch_wd(1)
    g.wait(g.T["c"]); g.stamp(20)
    if cfg["adapt"]:
        ny = 1 + 4 + 4 + (1 if cfg['touch'] == 2 else 0) + (1 if cfg['twd'] == 1 else 0)
        e(f"s_getreg_b32 s13, hwreg(HW_REG_IB_STS, 0, 4)")
        if stamps: e("v_writelane_b32 v255, s13, 61")
        e(f"s_cmp_le_u32 s13, {ny}\ns_cselect_b32 s13, 3, 0\ns_add_u32 s15, s{S_M+4}, s13\ns_mov_b32 s{S_M+4}, s15")
        g.p0_mod(3, 5, tokname="wm0")
    g.kgen_tab([])
    g.stamp(24)
    g.p0_mod(0, 5); g.stamp(22)
    if cfg["adapt"]: e(f"s_cmp_ge_u32 s{S_M+4}, 3\ns_cselect_b32 s13, 3, 0\ns_sub_u32 s{S_M+4}, s{S_M+4}, s13")
    if cfg['touch'] == 1: g.touch_w()
    nb1 = cfg["nb1"]
    g.kgen_post()
    g.w_issue_l(range(0, nb1))
    g.stamp(3)
    g.hbuild(after_first=lambda: (g.p0_mod(1, 0, base=60), g.w_issue_l(range(nb1, cfg['nbp']))), mid=lambda: g.w_chunks(range(cfg['nbp'], cfg['nb2'])))
    sk = g.lab("hm")
    e(f"s_cmp_lt_u32 s{S_IDX}, 28\ns_cbranch_scc1 {sk}")
    for i in g.cap(g.modf_issue):
        if i.text.startswith("buffer_"): g.p.nc(i.text)
        else: g.p.put([i])
    g.label(sk)
    if cfg['touch'] == 3: g.touch_w()
    if cfg['twd'] == 2: g.touch_wd(2)
    cap = g.cap
    nb2 = cfg["nb2"]; nr = cfg["nrec"]
    fa = cap(lambda: g.w_issue_l(range(nb2, 13)))
    fb = [] if not nr else cap(lambda: (g.wait(g.wt[nr-1]), e("s_barrier"), hold.__setitem__("r", g.w_read_l(range(0, nr)))))
    fc = cap(lambda: (g.wait(hold["r"]), e("s_barrier"), g.w_issue_l(range(13, 13 + nr))))
    f6 = []
    f5, hold["late"] = g.capture(g.late_issue)
    g.cfg["cflush"] = (3,)
    g.conv(fillers={0: fa, cfg["itb"]: fb + f5 + fc + cap(lambda: g.late_fin(hold["late"])) + f6}, pre_bar=lambda: g.wait(g.wt[12]))
    assert not any(i.text.startswith("s_barrier") for i in g.conv_left if i.wait is None), len(g.conv_left)
    sys.stderr.write(f"conv left {len(g.conv_left)}\n")
    g.p.put(g.conv_left)
    e(f"s_cmp_ge_u32 s{S_IDX}, 28\ns_cbranch_scc1 F_alt")
    g.modf_pub()
    g.shadow1()
    g.gemm1f()
    g.label("F_g2")
    def alt():
        g.label("F_alt")
        g.u_job(); g.stamp(10)
        g.stats2_job(g.u_pub); g.modf_pub()
        g.wd_setup(); g.g2_setup()
        keep = dict(g.wdt); keep2 = dict(g.ht); done = set()
        while len(done) < len(keep):
            batch = [ks for ks in sorted(keep) if ks not in done and (ks not in g.WPREV or g.WPREV[ks] in done)]
            for ks in batch: g.wd_issue(ks)
            e("s_waitcnt vmcnt(0)")
            for ks in batch:
                if ks in g.rd: g.wd_read(ks)
            e("s_waitcnt lgkmcnt(0)")
            done |= set(batch)
        e("v_min_u32 v140, 27, v1\nv_lshlrev_b32 v140, 10, v140")
        pr = lambda: e(f"buffer_load_dword v144, v140, s[{S_WS}:{S_WS+3}], s{S_M+4} offen sc1\ns_waitcnt vmcnt(0)")
        pr()
        g.guard("fa", lambda ex: e(f"v_xor_b32 v144, s{TG[0]}, v144\nv_and_b32 v144, 0x00010001, v144\nv_cmp_ne_u32 vcc, 0, v144"), pr)
        for (nt_, ks) in list(keep2): g.hl(0, ks, 147)
        g.wdt = keep; g.ht.update(keep2)
        e("s_waitcnt vmcnt(0)\ns_branch F_g2")
    g.ool += g.cap(alt)
    g.gemm2f(); g.bump_epoch()
    launch = f"; @launch grid=(256,1,1) block=(256,1,1) lds={LDS_BYTES}\n"
    return hdr + launch + '.amdgcn_target "amdgcn-amd-amdhsa--gfx950"\n' + kernel_text(KN, g.finish())

if __name__ == "__main__":
    over = {}
    for a in sys.argv[1:]:
        if "=" in a:
            k, v = a.split("="); over[k] = int(v)
    print(build(stamps="stamps" in sys.argv[1:], over=over))
```

```python
import sys, struct, math
from asmlib import *
KN = "adaLN_cond__ssm_conv_s4__glu_gated_geglu__prompt_kernel"
WS_ST1 = 0x1000; WS_MODP = 0x8000; WS_MODF = 0x20000; WS_ST2 = 0x24000
WS_FL1 = 0x28000; WS_FL3 = 0x2C000; WS_FL2 = 0x40000; WS_U = 0x80000; WS_XB = int(__import__('os').environ.get('XB', '0xC00000'), 0); WS_DBG = 0x1000000; WS_X1 = 0x100000; WS_X1S = 0x300000; WS_H = 0x500000; WS_SIZE = 0x1200000
L_TAB = 0; TABW = 17408; TPITCH = 272
L_K = 69632; KCH = 8320; KODD = 4164
L_HI = 86272; HCH = 4608
L_Z = 95488
L_MOD = 111872
L_SP = 131072
L_XT = 155648
L_SS = L_XT
L_XR2 = L_XT
LDS_BYTES = 163840
_POOL = [L_SP, L_SP + 8192, L_SP + 16384, L_MOD, L_MOD + 8192] + [L_TAB + 8192*i for i in range(8)]
def wslot(ks):
    if ks < 26: return _POOL[ks % 13]
    if ks < 29: return L_SP + 8192*(ks-26)
    return L_TAB + 8192*(ks-29)
S_WS = 4; S_WG = 8; S_WU = 12
P_X, P_ARE, P_AIM, P_BRE, P_BIM, P_CRE, P_CIM, P_LDT, P_DSK, P_BX, P_WG, P_WU, P_WD, P_C, P_WM, P_OUT, P_DBG, P_WS = [16 + 2 * i for i in range(18)]
S_X = 52; S_WM = 56; S_WD = 60; S_OUT = 64
S_TAG = 68; S_E = 69; S_WV = 70; S_D0 = 71; S_LDT = 72; S_DSK = 73
S_T0 = 74; S_T1 = 75; S_T2 = 76; S_T3 = 77; S_SPIN = 78; S_IDX = 79; S_XCD = 80
S_M = 82
S_EX = 94
S_ST = 96
S45 = 45; S46 = 46
S_CH = 16; S_PAR = 17
S_G1 = 98; S_G2 = 99; S_G3 = 100
SENT = 0xFFFFFFFF
TG = [3, 31]
BA = [124, 125, 126, 127, 141, 142, 2, 3]
def f2u(x): return struct.unpack("<I", struct.pack("<f", x))[0]
def hx(x): return "0x%08x" % (x & 0xFFFFFFFF)
def fl(x): return hx(f2u(x))
LOG2E = 1.4426950408889634
GAM = (2 * 0.7978845608028654 * LOG2E * 0.044715) ** (1.0 / 3)
GC = 2 * 0.7978845608028654 * LOG2E / GAM
def vr(b, n): return f"v[{b}:{b+n-1}]" if n > 1 else f"v{b}"
def ar(b, n): return f"a[{b}:{b+n-1}]" if n > 1 else f"a{b}"
def sr(b, n): return f"s[{b}:{b+n-1}]" if n > 1 else f"s{b}"
class G:
    def __init__(self, cfg):
        self.cfg = cfg; self.p = Prog(); self.nlab = 0; self.nstamp = 0; self.ool = []
    def lab(self, base):
        self.nlab += 1; return f"L{self.cfg['uid']}_{base}_{self.nlab}"
    def e(self, t): self.p.e(t)
    def tok(self, t): return self.p.tok(t)
    def wait(self, *t): self.p.wait(*t)
    def label(self, l): self.p.label(l)
    def stamp(self, i):
        if not self.cfg.get("stamps"): return
        e = self.e
        e(f"s_memtime s[{S_ST}:{S_ST+1}]")
        e("s_waitcnt lgkmcnt(0)")
        e(f"v_writelane_b32 v255, s{S_ST}, {i}")
    def stamp_flush(self):
        if not self.cfg.get("stamps"): return
        e = self.e
        e(f"s_memrealtime s[{S_ST}:{S_ST+1}]")
        e("s_waitcnt lgkmcnt(0)")
        e(f"v_writelane_b32 v255, s{S_ST}, 63")
        e(f"s_lshl_b32 s{S_T0}, s2, 10")
        e(f"s_add_u32 s{S_T0}, s{S_T0}, {WS_DBG + self.cfg.get('dbgoff', 0)}")
        e("v_lshlrev_b32 v254, 2, v0")
        e(f"buffer_store_dword v255, v254, s[{S_WS}:{S_WS+3}], s{S_T0} offen")
        if self.cfg.get("dbgout"):
            sk = self.lab("dbg")
            e(f"s_cmp_lg_u32 s2, {self.cfg['dbgout']}\ns_cbranch_scc1 {sk}\ns_cmp_lg_u32 s{S_WV}, 0\ns_cbranch_scc1 {sk}")
            e(f"v_readlane_b32 s{S_T1}, v255, 0\nv_readlane_b32 s{S_T2}, v255, 62\nv_readlane_b32 s{S_T3}, v255, 63\nv_mov_b32 v4, 0")
            for i, st in enumerate([1, 2, 23, 22, 21, 3, 4, 5, 6, 7, 12, 14, 16, 19, 18]):
                e(f"v_readlane_b32 s{S_T0}, v255, {st}\ns_sub_u32 s{S_T0}, s{S_T0}, s{S_T1}\nv_mov_b32 v3, s{S_T0}")
                e(f"global_store_dword v4, v3, s[{P_DBG}:{P_DBG+1}] offset:{4*i}")
            e(f"s_sub_u32 s{S_T0}, s{S_T3}, s{S_T2}\nv_mov_b32 v3, s{S_T0}")
            e(f"global_store_dword v4, v3, s[{P_DBG}:{P_DBG+1}] offset:60")
            self.label(sk)
    def srd(self, s, ptr, size):
        self.e(f"s_mov_b32 s{s}, s{ptr}\ns_mov_b32 s{s+1}, s{ptr+1}\ns_mov_b32 s{s+2}, {hx(size)}\ns_mov_b32 s{s+3}, 0x20000")
    def prologue(self):
        e = self.e
        self.label("F_first")
        e("s_cmp_ge_u32 s2, 256")
        e(f"s_cbranch_scc1 {self.cfg['uid']}_end")
        e("s_load_dwordx16 s[16:31], s[0:1], 0")
        e("s_load_dwordx16 s[32:47], s[0:1], 64")
        e("s_load_dwordx4 s[48:51], s[0:1], 128")
        if self.cfg.get("stamps"):
            e("v_mov_b32 v255, 0")
            e(f"s_memrealtime s[{S_ST}:{S_ST+1}]")
        if self.cfg.get("hold"): e("s_memrealtime s[34:35]" if False else "s_nop 0")
        if self.cfg.get("cpf"):
            n = self.cfg["cpf"]
            e("s_getpc_b64 s[4:5]\ns_and_b32 s4, s4, 0xffffff00")
            e(f"s_lshr_b32 s6, s2, 3\ns_mul_i32 s6, s6, {n*128}\nv_min_u32 v254, {n-1}, v0\nv_lshlrev_b32 v254, 7, v254\nv_add_u32 v254, s6, v254" + (f"\nv_min_u32 v254, F_last - F_first, v254" if n > 10 else ""))
            e("global_load_dword v196, v254, s[4:5]")
        e("v_and_b32 v1, 63, v0")
        e("v_lshrrev_b32 v2, 6, v0")
        e(f"s_and_b32 s{S_XCD}, s2, 7")
        e(f"v_readfirstlane_b32 s{S_WV}, v2")
        e(f"s_lshr_b32 s{S_IDX}, s2, 3")
        e(f"s_lshl_b32 s{S_D0}, s{S_XCD}, 5")
        e(f"s_add_u32 s{S_D0}, s{S_D0}, s{S_IDX}")
        e(f"s_lshl_b32 s{S_D0}, s{S_D0}, 1")
        e(f"s_lshl_b32 s{S_T0}, s2, 13\ns_lshl_b32 s{S_T1}, s{S_WV}, 11\ns_add_u32 s{S_T0}, s{S_T0}, s{S_T1}")
        e("v_lshlrev_b32 v9, 4, v1")
        e("v_lshrrev_b32 v4, 3, v1\nv_and_b32 v5, 7, v1\nv_lshlrev_b32 v5, 4, v5\nv_lshl_add_u32 v3, v4, 10, v5")
        e(f"s_lshl_b32 s{S_T3}, s{S_IDX}, 16\ns_lshl_b32 s{S_T2}, s{S_XCD}, 7\ns_add_u32 s{S_T3}, s{S_T3}, s{S_T2}")
        e(f"s_lshl_b32 s{S_T2}, s{S_WV}, 14\ns_add_u32 s{S_T3}, s{S_T3}, s{S_T2}")
        e(f"s_add_u32 m0, s{S_T1}, {L_XT}")
        e(f"v_add_u32 v6, {8192 - 1024}, v3")
        e(f"s_lshl_b32 s{S_T2}, s{S_D0}, 8\nv_lshl_add_u32 v8, v0, 1, s{S_T2}")
        e(f"s_mul_i32 s{S_M}, s2, 1366\ns_lshr_b32 s{S_M}, s{S_M}, 16")
        e(f"s_mul_i32 s{S_M+2}, s{S_M}, 48\ns_sub_u32 s{S_M+1}, s2, s{S_M+2}")
        e(f"s_and_b32 s{S_M+2}, s{S_M}, 3\ns_lshl_b32 s{S_M+2}, s{S_M+2}, 8\nv_lshl_add_u32 v7, v1, 2, s{S_M+2}")
        e("v_mul_u32_u24 v33, 6144, v4\nv_add_u32 v33, v33, v5")
        e(f"s_mul_i32 s{S_M+2}, s{S_M}, {128*6144}\ns_lshl_b32 s{S_M+3}, s{S_M+1}, 7\ns_add_u32 s{S_M+2}, s{S_M+2}, s{S_M+3}")
        e(f"s_mul_i32 s{S_M+3}, s{S_WV}, {32*6144}\ns_add_u32 s{S_M+2}, s{S_M+2}, s{S_M+3}")
        e(f"s_mov_b32 s{S_X+2}, {hx(2097152)}\ns_mov_b32 s{S_X+3}, 0x20000\ns_mov_b32 s{S_WM+2}, {hx(3145728)}\ns_mov_b32 s{S_WM+3}, 0x20000")
        e("s_waitcnt lgkmcnt(0)")
        if self.cfg.get("stamps"):
            e(f"v_writelane_b32 v255, s{S_ST}, 62")
        if self.cfg.get("hold"): e("s_memrealtime s[34:35]")
        self.stamp(0)
    def srds_late(self):
        self.srd(S_WS, P_WS, WS_SIZE)
        self.srd(S_WD, P_WD, 1835008)
        self.srd(S_OUT, P_OUT, 2097152)
    def tag_ready(self):
        e = self.e
        e("s_waitcnt lgkmcnt(0)")
        e(f"s_mul_i32 s{S_TAG}, s{S_E}, 0x9E3779B1")
        e(f"s_add_u32 s{S_TAG}, s{S_TAG}, 0x7F4A7C15")
        e(f"s_and_b32 s{TG[1]}, s{S_E}, 1\ns_and_b32 s{TG[0]}, s{S_E}, 2\ns_lshl_b32 s{TG[0]}, s{TG[0]}, 15\ns_or_b32 s{TG[0]}, s{TG[0]}, s{TG[1]}")
        e(f"s_xor_b32 s{TG[0]}, s{TG[0]}, 1\ns_xor_b32 s{TG[1]}, s{TG[0]}, 0x00010001")
    def reduce16(self, regs):
        for ctl in ["quad_perm:[1,0,3,2]", "quad_perm:[2,3,0,1]", "row_half_mirror", "row_mirror"]:
            for r in regs:
                self.e(f"v_add_f32_dpp v{r}, v{r}, v{r} {ctl} row_mask:0xf bank_mask:0xf")
    def stat_finish(self, vs, vq, t0, t1):
        e = self.e
        e(f"v_mul_f32 v{vs}, {fl(1/512)}, v{vs}")
        e(f"v_mul_f32 v{t0}, v{vs}, v{vs}")
        e(f"v_mul_f32 v{vq}, {fl(1/512)}, v{vq}")
        e(f"v_sub_f32 v{vq}, v{vq}, v{t0}")
        e(f"v_max_f32 v{vq}, 0, v{vq}")
        e(f"v_cvt_pk_bf16_f32 v{t0}, v{vq}, v{vq}")
        e(f"v_and_b32 v{t0}, 0xffff0000, v{t0}")
        e(f"v_add_f32 v{t0}, {fl(1e-5)}, v{t0}")
        e(f"v_cvt_pk_bf16_f32 v{t0}, v{t0}, v{t0}")
        e(f"v_and_b32 v{t0}, 0xffff0000, v{t0}")
        e(f"v_sqrt_f32 v{t0}, v{t0}")
        e(f"v_cvt_pk_bf16_f32 v{vs}, v{t0}, v{vs}")
    def cmul_list(self, jobs):
        e = self.e; i = 0
        f1 = lambda d, a, b: f"v_pk_mul_f32 {vr(d,2)}, {vr(a,2)}, {vr(b,2)} op_sel:[0,0] op_sel_hi:[0,1]"
        f2 = lambda d, a, b: f"v_pk_fma_f32 {vr(d,2)}, {vr(a,2)}, {vr(b,2)}, {vr(d,2)} op_sel:[1,1,0] op_sel_hi:[1,0,1] neg_lo:[0,1,0]"
        while i < len(jobs):
            j = jobs[i]
            if i + 1 < len(jobs) and j[0] not in jobs[i+1][1:] and jobs[i+1][0] not in j:
                k = jobs[i+1]
                e(f1(*j)); e(f1(*k)); e(f2(*j)); e(f2(*k)); i += 2
            else:
                e(f1(*j)); e(f2(*j)); i += 1
    def kgen_pre(self):
        e = self.e
        e("v_mov_b32 v36, 0\nv_mov_b32 v37, 0\nv_mov_b32 v38, 0\nv_mov_b32 v39, 0")
        e("v_lshrrev_b32 v3, 5, v0")
        e(f"v_mul_u32_u24 v3, {HCH}, v3")
        e("v_and_b32 v4, 31, v0")
        e("v_lshl_add_u32 v3, v4, 4, v3")
        e(f"v_add_u32 v3, {L_HI}, v3")
        e("v_bfe_u32 v4, v0, 2, 2")
        e(f"v_mul_u32_u24 v4, 4160, v4")
        e("v_and_b32 v5, 3, v0")
        e("v_lshl_add_u32 v4, v5, 4, v4")
        e(f"v_add_u32 v4, {L_K + 4096}, v4")
        e("v_cmp_gt_u32 vcc, 64, v0")
        e("v_cndmask_b32 v3, v4, v3, vcc")
        e("v_cmp_gt_u32 vcc, 80, v0")
        e(f"s_and_saveexec_b64 s[{S_EX}:{S_EX+1}], vcc")
        zl = self.lab("z")
        e(f"s_cbranch_execz {zl}")
        e("ds_write_b128 v3, v[36:39]")
        self.label(zl)
        e(f"s_mov_b64 exec, s[{S_EX}:{S_EX+1}]")
        e(f"s_lshr_b32 s{S_T0}, s{S_WV}, 1")
        e(f"s_lshl_b32 s{S_T0}, s{S_T0}, 4")
        e(f"s_lshr_b32 s{S_T1}, s{S_LDT}, s{S_T0}")
        e(f"s_lshl_b32 s{S_T1}, s{S_T1}, 16")
        e(f"v_mov_b32 v3, {fl(LOG2E)}")
        e(f"v_mul_f32 v3, s{S_T1}, v3")
        e("v_exp_f32 v3, v3")
        e("v_cvt_pk_bf16_f32 v3, v3, v3")
        e("v_and_b32 v35, 0xffff0000, v3")
    def kgen_tab(self, chunks=()):
        e = self.e
        keep = self.p.take()
        for i in range(6): e(f"v_lshlrev_b32 v{26+i}, 16, v{18+i}")
        e("v_mul_f32 v26, v26, v35\nv_mul_f32 v27, v27, v35\nv_mul_f32 v28, v28, v35\nv_mul_f32 v29, v29, v35")
        e(f"v_mul_f32 v26, {fl(LOG2E)}, v26")
        e("v_mul_f32 v27, 0.15915494, v27")
        S = lambda j: 40 + 2 * j
        Gt = lambda T: 74 + 2 * (T - 1)
        Pn = lambda n: 88 + 2 * n
        S32, S64, S128 = 138, 140, 142
        def direct(dst, t, a, b, c):
            if t == 1:
                e(f"v_exp_f32 v{a}, v26\nv_fract_f32 v{b}, v27")
            else:
                e(f"v_mul_f32 v{a}, {fl(float(t))}, v26\nv_mul_f32 v{b}, {fl(float(t))}, v27")
                e(f"v_exp_f32 v{a}, v{a}\nv_fract_f32 v{b}, v{b}")
            e(f"v_cos_f32 v{c}, v{b}\nv_sin_f32 v{b}, v{b}\ns_nop 0")
            e(f"v_mul_f32 v{dst}, v{a}, v{c}\nv_mul_f32 v{dst+1}, v{a}, v{b}")
        e(f"s_mul_i32 s{S_T3}, s{S_WV}, {TABW}\ns_mov_b32 m0, s{S_T3}")
        st = {"n": 0, "q": []}
        NBAT = 8
        def flush():
            for ent_, r_ in st["q"]: e(f"ds_write_addtid_b32 v{r_} offset:{L_TAB + ent_*TPITCH}")
            st["q"] = []
        def pair(ent, jobs, srcs, neg=False):
            self.cmul_list(jobs)
            for i in range(2):
                pk = 128 + (st["n"] % NBAT); st["n"] += 1
                if srcs[i] is None: e(f"v_mov_b32 v{pk}, 0x3f80")
                else: e(f"v_cvt_pk_bf16_f32 v{pk}, v{srcs[i]}, {'-' if neg else ''}v{srcs[i]+1}")
                st["q"].append((ent + i, pk))
            if len(st["q"]) == NBAT: flush()
        direct(S(1), 1, 120, 121, 122)
        pair(0, [], [None, S(1)])
        direct(S(16), 16, 123, 124, 125)
        pair(2, [(S(2), S(1), S(1)), (Pn(0), 30, 28), (S(3), S(2), S(1))], [S(2), S(3)])
        direct(Gt(1), 256, 120, 121, 122)
        pair(48, [(Pn(1), Pn(0), S(16)), (S32, S(16), S(16))], [Pn(0), Pn(1)], True)
        pair(4, [(S(4), S(2), S(2)), (S(5), S(3), S(2))], [S(4), S(5)])
        pair(6, [(S(6), S(4), S(2)), (S(7), S(4), S(3))], [S(6), S(7)])
        pair(50, [(Pn(2), Pn(0), S32), (Pn(3), Pn(1), S32), (S64, S32, S32)], [Pn(2), Pn(3)], True)
        pair(8, [(S(8), S(4), S(4)), (S(9), S(5), S(4))], [S(8), S(9)])
        pair(10, [(S(10), S(8), S(2)), (S(11), S(8), S(3))], [S(10), S(11)])
        pair(52, [(Pn(4), Pn(0), S64), (Pn(5), Pn(1), S64)], [Pn(4), Pn(5)], True)
        pair(54, [(Pn(6), Pn(2), S64), (Pn(7), Pn(3), S64), (S128, S64, S64)], [Pn(6), Pn(7)], True)
        pair(12, [(S(12), S(8), S(4)), (S(13), S(8), S(5))], [S(12), S(13)])
        pair(14, [(S(14), S(8), S(6)), (S(15), S(8), S(7))], [S(14), S(15)])
        aux = [[(Gt(2), Gt(1), Gt(1))], [(Gt(3), Gt(2), Gt(1))], [(Gt(4), Gt(2), Gt(2))], []]
        for i in range(4):
            pair(56 + 2*i, [(Pn(8+2*i), Pn(2*i), S128), (Pn(9+2*i), Pn(2*i+1), S128)] + aux[i], [Pn(8+2*i), Pn(9+2*i)], True)
        ents = {0: [(1, 0), (1, 2), (1, 4), (1, 6), (1, 8), (4, 0), (4, 8), (4, 16)],
                1: [(1, 8), (1, 10), (1, 12), (1, 14), (1, 16), (5, 0), (5, 8), (5, 16)],
                2: [(2, 0), (2, 4), (2, 8), (2, 12), (2, 16), (6, 0), (6, 8), (6, 16)],
                3: [(3, 0), (3, 4), (3, 8), (3, 12), (3, 16), (7, 0), (7, 8), (7, 16)]}
        extra = {(0, 0): (Gt(5), Gt(4), Gt(1)), (2, 0): (Gt(6), Gt(4), Gt(2)), (3, 0): (Gt(7), Gt(4), Gt(3))}
        tb = 0
        for q in range(4):
            for h in range(4):
                two = ents[q][2*h:2*h+2]; base = 88 + 4*(tb & 3); tb += 1
                jobs = []; srcs = []
                for i, (T, j) in enumerate(two):
                    if j == 0: srcs.append(Gt(T))
                    else: jobs.append((base + 2*i, Gt(T), S(j))); srcs.append(base + 2*i)
                if (q, h) in extra: jobs.append(extra[(q, h)])
                pair(16 + 16*(h >> 1) + 4*q + 2*(h & 1), jobs, srcs)
        body = self.p.take()
        out = []; ci = 0; nb = 0
        for k_, ins in enumerate(body):
            out.append(ins)
            last = ins.text.startswith("ds_write_addtid") and (k_ + 1 == len(body) or not body[k_+1].text.startswith("ds_write_addtid"))
            if last:
                nb += 1
                if nb > self.cfg["wa0"] and ci < len(chunks):
                    out += chunks[ci] + chunks[ci+1] + [Ins(f"s_mov_b32 m0, s{S_T3}")]; ci += 2
        for c in chunks[ci:]: out += c
        self.p.put(keep + out)

    def kgen_post(self, post_b2=None):
        e = self.e
        e(f"s_lshr_b32 s{S_T2}, s{S_WV}, 1\ns_mul_i32 s{S_T0}, s{S_T2}, {2*TABW}")
        e(f"v_and_b32 v6, 15, v1\nv_mul_u32_u24 v3, {TPITCH}, v6")
        e("v_lshrrev_b32 v7, 4, v1\nv_lshl_add_u32 v3, v7, 4, v3")
        e(f"v_add_u32 v3, s{S_T0}, v3")
        e(f"s_and_b32 s{S_T1}, s{S_WV}, 1\ns_mul_i32 s{S_T1}, s{S_T1}, {16*TPITCH}\nv_add_u32 v4, s{S_T1}, v3")
        e(f"s_mul_i32 s{S_T2}, s{S_T2}, {KCH}\ns_add_u32 s{S_T2}, s{S_T2}, {L_K}")
        e(f"v_lshlrev_b32 v6, 5, v6\nv_sub_u32 v6, s{S_T2}, v6")
        e("v_lshlrev_b32 v9, 9, v7\nv_sub_u32 v9, v6, v9")
        e("s_waitcnt lgkmcnt(0)\ns_barrier")
        self.stamp(21)
        F = 40; toks = {}
        for ks in range(8):
            o = L_TAB + (ks >> 2)*TABW + (ks & 3)*64; r = F + 12*ks
            self.tok(f"ds_read_b128 {vr(r+8,4)}, v3 offset:{o + 48*TPITCH}")
            toks[(ks, 0)] = self.tok(f"ds_read_b128 {vr(r,4)}, v4 offset:{o}")
            toks[(ks, 1)] = self.tok(f"ds_read_b128 {vr(r+4,4)}, v3 offset:{o + 32*TPITCH}")
        A0 = 136; A2 = 140
        for ks in range(8):
            r = F + 12*ks
            for b, acc in ((0, A0), (1, A2)):
                self.wait(toks[(ks, b)])
                e(f"v_mfma_f32_16x16x32_bf16 {vr(acc,4)}, {vr(r+4*b,4)}, {vr(r+8,4)}, {vr(acc,4) if ks else '0'}")
        h1 = self.lab("kh1"); jn = self.lab("kj")
        e(f"s_bitcmp1_b32 s{S_WV}, 0\ns_cbranch_scc1 {h1}")
        def cv(d, lst):
            for i, (a, b) in enumerate(lst): e(f"v_cvt_pk_bf16_f32 v{d+i}, v{a}, v{b}")
        O = KODD - 4
        e("v_lshlrev_b32 v8, 3, v7\nv_sub_u32 v8, v6, v8")
        f0, f1, f2 = A2+1, A2+2, A2+3
        cv(52, [(f2, f2), (f2, f2), (f1, f1), (f1, f1), (f1, f1), (f1, f0), (f0, f0), (f0, f0)])
        e(f"ds_write_b128 v9, v[52:55] offset:{2*(2032-1024)}")
        cv(60, [(f2, f2), (f2, f2), (f2, f1), (f1, f1), (f1, f1), (f1, f1), (f0, f0), (f0, f0)])
        e(f"ds_write_b128 v9, v[56:59] offset:{2*(2032-1024)+16}")
        cv(48, [(A0+3, A0+2), (A0+1, A0), (A0+2, A0+1)])
        e(f"ds_write_b128 v9, v[60:63] offset:{2*(2032-1024) + O}")
        e(f"ds_write_b128 v9, v[64:67] offset:{2*(2032-1024) + O + 16}")
        e(f"ds_write_b64 v8, v[48:49] offset:{2*2044}")
        e(f"ds_write_b16 v8, v48 offset:{2*2044 + O + 2}")
        e(f"ds_write_b32 v8, v50 offset:{2*2044 + O + 4}")
        e(f"ds_write_b16_d16_hi v8, v49 offset:{2*2044 + O + 8}")
        e(f"s_branch {jn}")
        self.label(h1)
        e("v_lshlrev_b32 v8, 4, v7\nv_sub_u32 v8, v6, v8")
        E_ = lambda j: A0 + j if j < 4 else A2
        C = lambda lst: [(E_(a), E_(b)) for a, b in lst]
        cv(52, C([(4, 4), (3, 3), (3, 2), (2, 2), (2, 2), (1, 1), (1, 0), (0, 0)]))
        e("s_mov_b32 exec_lo, 0")
        e(f"ds_write_b128 v9, v[52:55] offset:{2*2032}\nds_write_b128 v9, v[56:59] offset:{2*2032+16}")
        e("s_mov_b32 exec_lo, -1")
        cv(60, C([(4, 4), (4, 3), (3, 3), (2, 2), (2, 2), (2, 1), (1, 1), (0, 0)]))
        e("s_mov_b32 exec_lo, 0")
        e(f"ds_write_b128 v9, v[60:63] offset:{2*2032 + O}\nds_write_b128 v9, v[64:67] offset:{2*2032 + O + 16}")
        e("s_mov_b32 exec_lo, -1")
        cv(40, C([(4, 3), (2, 2), (2, 1), (0, 0), (4, 4), (3, 2), (2, 2), (1, 0)]))
        e("s_mov_b32 exec_hi, 0")
        e(f"ds_write_b128 v8, v[40:43] offset:{2*(2040-256)}\nds_write_b128 v8, v[44:47] offset:{2*(2040-256) + O}")
        e(f"ds_write_b16 v8, v43 offset:{2*(2040-256) + O + 16}")
        e("s_mov_b32 exec_hi, -1")
        self.label(jn)

    def spin_check(self, retry_label, out_label=None):
        e = self.e
        e(f"s_sub_u32 s{S_SPIN}, s{S_SPIN}, 1")
        e(f"s_cmp_lg_u32 s{S_SPIN}, 0")
        e(f"s_cbranch_scc1 {retry_label}")
    def hbuild(self, after_first=None, mid=None):
        e = self.e
        e(f"s_lshl_b32 s{S_T0}, s{S_WV}, 12\nv_lshl_add_u32 v3, v1, 4, s{S_T0}")
        e("v_and_b32 v4, 3, v1")
        e(f"v_mul_u32_u24 v4, {3072*8}, v4")
        e("v_lshrrev_b32 v5, 3, v1")
        e("v_min_u32 v5, 5, v5")
        e("v_lshl_add_u32 v4, v5, 12, v4")
        e("v_bfe_u32 v6, v1, 2, 1")
        e("v_lshl_add_u32 v4, v6, 3, v4")
        e(f"s_lshl_b32 s{S_T0}, s{S_D0}, 3")
        e(f"s_add_u32 s{S_T0}, s{S_T0}, {WS_MODP}")
        e(f"s_mov_b32 s{S_T1}, {WS_ST1}")
        e(f"s_lshl_b32 s{S_T2}, s{S_D0}, 13\ns_add_u32 s{S_T2}, s{S_T2}, {hx(WS_XB)}")
        e(f"s_mov_b32 s{S_SPIN}, {self.cfg['spin']}")
        rt = self.lab("h0"); ok = self.lab("h0ok"); ck = self.lab("h0ck")
        def pl():
            self.tok(f"buffer_load_dwordx2 v[8:9], v4, s[{S_WS}:{S_WS+3}], s{S_T0} offen sc1")
            for i in range(4):
                t_ = self.tok(f"buffer_load_dwordx4 v[{40+4*i}:{43+4*i}], v3, s[{S_WS}:{S_WS+3}], s{S_T1} offen offset:{1024*i} sc1")
            for i in range(4):
                t_ = self.tok(f"buffer_load_dwordx4 v[{20+4*i}:{23+4*i}], v3, s[{S_WS}:{S_WS+3}], s{S_T2} offen offset:{1024*i} sc1")
            return t_
        if after_first:
            t_ = pl(); self.stamp(26); after_first(); self.wait(t_); self.stamp(25)
            e(f"s_branch {ck}")
            keep = self.p.take()
            self.label(rt); pl(); e("s_waitcnt vmcnt(0)"); e(f"s_branch {ck}")
            self.ool += self.p.take(); self.p.put(keep[:-1])
            self.label(ck)
        else:
            self.label(rt); pl(); e("s_waitcnt vmcnt(0)")
        e(f"v_mov_b32 v10, s{S_TAG}")
        if True: e("v_cmp_gt_u32 vcc, 24, v1\nv_cndmask_b32 v9, v10, v9, vcc")
        for i in range(8):
            e(f"v_min3_u32 v11, v{41+2*i}, v{21+2*i}, {'v11' if i else 'v9'}")
            e(f"v_max3_u32 v12, v{41+2*i}, v{21+2*i}, {'v12' if i else 'v9'}")
        e("v_xor_b32 v11, v11, v10\nv_xor_b32 v12, v12, v10\nv_or_b32 v7, v11, v12")
        e("v_cmp_ne_u32 vcc, 0, v7")
        e(f"s_cbranch_vccz {ok}")
        self.spin_check(rt)
        self.label(ok)
        self.stamp(4)
        if self.cfg.get("stamps"): e(f"s_sub_u32 s{S_ST}, {self.cfg['spin']+1}, s{S_SPIN}\nv_writelane_b32 v255, s{S_ST}, 50")
        e(f"s_mov_b32 s{S_EX}, s{S_T0}\nv_mov_b32 v237, v4")
        keep_ = self.p.take()
        e("v_add_f32_dpp v8, v8, v8 quad_perm:[1,0,3,2] row_mask:0xf bank_mask:0xf")
        for i in range(4): e(f"v_lshlrev_b32 v{64+i}, 16, v{40+2*i}")
        e("v_add_f32_dpp v8, v8, v8 quad_perm:[2,3,0,1] row_mask:0xf bank_mask:0xf")
        for i in range(4, 8): e(f"v_lshlrev_b32 v{64+i}, 16, v{40+2*i}")
        e("v_cvt_pk_bf16_f32 v8, v8, v8\nv_rcp_f32 v64, v64\nv_and_b32 v8, 0xffff0000, v8\nv_rcp_f32 v65, v65")
        e("v_add_f32 v9, 1.0, v8\nv_rcp_f32 v66, v66")
        e("v_cvt_pk_bf16_f32 v9, v9, v9\nv_rcp_f32 v67, v67\nv_and_b32 v9, 0xffff0000, v9")
        X = 72; Hh = 88; Z = 104
        for i in range(8):
            if i < 3:
                src = 9 if i in (1, 4) else 8
                e(f"v_readlane_b32 s{S_M+2*i}, v{src}, {8*i}")
                e(f"v_readlane_b32 s{S_M+2*i+1}, v{src}, {8*i+4}")
            if i >= 4: e(f"v_rcp_f32 v{64+i}, v{64+i}")
            e(f"v_and_b32 v{56+i}, 0xffff0000, v{40+2*i}")
            k_ = i >> 1; src_ = 20 + 4*k_ + 2*(i & 1); dst_ = X + 8*(k_ & 1) + 4*(k_ >> 1) + 2*(i & 1)
            e(f"v_lshlrev_b32 v{dst_}, 16, v{src_}")
            e(f"v_and_b32 v{dst_+1}, 0xffff0000, v{src_}")
        sa, sA, ga, sb, sB, gb = [S_M + 2*i for i in range(6)]
        e(f"v_mov_b32 v16, s{ga}\nv_mov_b32 v17, s{ga+1}")
        for k in range(8):
            e(f"v_pk_add_f32 {vr(Hh+2*k,2)}, {vr(X+2*k,2)}, {vr(56+2*(k&3),2)} neg_lo:[0,1] neg_hi:[0,1]")
        e(f"v_mul_f32 v10, s{sA}, v16\nv_mul_f32 v11, s{sA+1}, v17")
        e(f"v_mul_f32 v12, s{sa}, v16\nv_mul_f32 v13, s{sa+1}, v17")
        e(f"s_lshl_b32 s{S_T0}, s{S_DSK}, 16\ns_and_b32 s{S_T1}, s{S_DSK}, 0xffff0000")
        e(f"v_mov_b32 v14, s{S_T0}\nv_mov_b32 v15, s{S_T1}")
        for k in range(8):
            e(f"v_pk_mul_f32 {vr(Hh+2*k,2)}, {vr(Hh+2*k,2)}, {vr(64+2*(k&3),2)}")
        for k in range(8):
            c = k >> 2
            e(f"v_pk_fma_f32 {vr(Hh+2*k,2)}, {vr(Hh+2*k,2)}, v[10:11], v[12:13] op_sel:[0,{c},{c}] op_sel_hi:[1,{c},{c}]")
        for ch in range(2):
            for j in range(4):
                e(f"v_cvt_pk_bf16_f32 v{120+4*ch+j}, v{Hh+8*ch+2*j}, v{Hh+8*ch+2*j+1}")
            e(f"ds_write_b128 v183, v[{120+4*ch}:{123+4*ch}] offset:{HCH*ch}")
        for k in range(8):
            c = k >> 2
            e(f"v_pk_fma_f32 {vr(Z+2*k,2)}, {vr(Hh+2*k,2)}, v[14:15], {vr(X+2*k,2)} op_sel:[0,{c},0] op_sel_hi:[1,{c},1]")
            if k & 1: e(f"ds_write_b128 v184, {vr(Z+2*k-2,4)} offset:{8192*c + 16*((k>>1)&1)}")
        body_ = self.p.take()
        self.p.put(keep_ + spread(body_, [(0, c_) for c_ in (mid() if mid else [])]))
    def late_issue(self): return self.tok(f"buffer_load_dwordx2 v[238:239], v237, s[{S_WS}:{S_WS+3}], s{S_EX} offen sc1")
    def late_fin(self, tl):
        e = self.e
        self.wait(tl)
        self.guard("lt", lambda ex: e(f"v_cmp_ne_u32 vcc, s{S_TAG}, v239"), lambda: (self.late_issue(), e("s_waitcnt vmcnt(0)")))
        e("v_add_f32_dpp v238, v238, v238 quad_perm:[1,0,3,2] row_mask:0xf bank_mask:0xf")
        e("s_nop 1")
        e("v_add_f32_dpp v238, v238, v238 quad_perm:[2,3,0,1] row_mask:0xf bank_mask:0xf")
        e("v_cvt_pk_bf16_f32 v238, v238, v238\nv_and_b32 v238, 0xffff0000, v238\nv_add_f32 v239, 1.0, v238")
        e("v_cvt_pk_bf16_f32 v239, v239, v239\nv_and_b32 v239, 0xffff0000, v239\ns_nop 0")
        for i in (4, 5):
            src = 239 if i == 4 else 238
            e(f"v_readlane_b32 s{S_M+2*i}, v{src}, {8*i}\nv_readlane_b32 s{S_M+2*i+1}, v{src}, {8*i+4}")
    def modf_pub(self):
        e = self.e
        sa, sA, ga, sb, sB, gb = [S_M + 2*i for i in range(6)]
        e(f"v_mov_b32 v20, s{gb}\nv_mov_b32 v21, s{gb+1}\ns_lshr_b32 s101, s32, 3\ns_cmp_lg_u32 s{S_WV}, 0\ns_cselect_b32 s101, 0x7f000000, s101\ns_add_u32 s101, s101, {WS_MODF}")
        e(f"buffer_store_dwordx2 v[20:21], v199, s[{S_WS}:{S_WS+3}], s101 offen sc1")
    def conv_setup(self):
        e = self.e
        e(f"s_lshr_b32 s{S_CH}, s{S_WV}, 1")
        e(f"s_and_b32 s{S_PAR}, s{S_WV}, 1")
        e("v_and_b32 v176, 15, v1\nv_lshrrev_b32 v177, 4, v1")
        e("v_lshlrev_b32 v178, 3, v177")
        e("v_sub_u32 v178, v178, v176")
        e("v_add_u32 v178, 2031, v178")
        e("v_lshrrev_b32 v178, 1, v178")
        e("v_and_b32 v179, 1, v1\nv_xor_b32 v179, 1, v179")
        e(f"v_mul_u32_u24 v179, {KODD}, v179")
        e("v_lshl_add_u32 v178, v178, 2, v179")
        e(f"s_mul_i32 s{S_T0}, s{S_CH}, {KCH}")
        e(f"s_lshl_b32 s{S_T1}, s{S_PAR}, 8")
        e(f"s_sub_u32 s{S_T0}, s{S_T0}, s{S_T1}")
        e(f"s_add_u32 s{S_T0}, s{S_T0}, {L_K - 192 - 512}")
        for j in range(4):
            e(f"v_add_u32 v{168+j}, s{S_T0}, v178")
            if j < 3: e(f"s_sub_u32 s{S_T0}, s{S_T0}, 1024")
        e("v_lshlrev_b32 v178, 5, v176")
        e("v_lshl_add_u32 v178, v177, 4, v178")
        e(f"s_mul_i32 s{S_T0}, s{S_CH}, {HCH}")
        e(f"s_sub_u32 s{S_T0}, s{S_T0}, s{S_T1}")
        e(f"s_add_u32 s{S_T0}, s{S_T0}, {L_HI + 480 - 192}")
        e(f"v_add_u32 v172, s{S_T0}, v178")
        e("v_lshl_add_u32 v178, v176, 5, v178")
        e(f"s_lshl_b32 s{S_T0}, s{S_CH}, 13")
        e(f"s_lshl_b32 s{S_T1}, s{S_PAR}, 12")
        e(f"s_add_u32 s{S_T0}, s{S_T0}, s{S_T1}")
        e(f"s_add_u32 s{S_T0}, s{S_T0}, {L_Z}")
        e(f"v_add_u32 v173, s{S_T0}, v178")
        e(f"s_lshl_b32 s{S_T0}, s{S_WV}, 12\ns_add_u32 s{S_T0}, s{S_T0}, {L_Z}\nv_lshl_add_u32 v180, v1, 4, s{S_T0}")
        e(f"s_xor_b32 s{S_T1}, s{S_WV}, 1\ns_lshl_b32 s{S_T1}, s{S_T1}, 12\ns_add_u32 s{S_T1}, s{S_T1}, {L_Z}\nv_lshl_add_u32 v181, v1, 4, s{S_T1}")
        e("v_and_b32 v176, 15, v1\nv_lshrrev_b32 v177, 4, v1")
        e("v_lshrrev_b32 v182, 1, v176\nv_and_b32 v179, 1, v177\nv_lshl_add_u32 v182, v179, 3, v182\nv_lshlrev_b32 v182, 15, v182")
        e("v_and_b32 v176, 1, v176\nv_lshl_add_u32 v182, v176, 5, v182\nv_lshrrev_b32 v177, 1, v177\nv_lshl_add_u32 v182, v177, 4, v182")
        e(f"s_add_u32 s27, s{S_D0}, s{S_CH}\ns_lshl_b32 s27, s27, 6\ns_lshl_b32 s28, s{S_PAR}, 20\ns_add_u32 s27, s27, s28")
        e(f"s_add_u32 s28, s27, {hx(WS_X1S)}\ns_add_u32 s27, s27, {hx(WS_X1)}\ns_add_u32 s29, s27, {hx(16*32768)}\ns_add_u32 s30, s28, {hx(16*32768)}")
        e(f"v_lshlrev_b32 v183, 4, v0\nv_add_u32 v183, {L_HI + 512}, v183\nv_lshlrev_b32 v184, 5, v0\nv_add_u32 v184, {L_Z}, v184")
        e(f"v_mov_b32 v252, 0xfffefffe\nv_lshlrev_b32 v236, 4, v0\nv_mov_b32 v199, 0")
        e(f"s_lshl_b32 s32, s{S_D0}, 5\ns_cmp_lg_u32 s{S_WV}, 0\ns_cselect_b32 s32, 0x7f000000, s32")
    def conv(self, fillers=None, pre_start=None, pre_bar=None, post_bar=None):
        e = self.e
        ACC = 4
        FA = [40, 104]; FB = [72, 136]
        if pre_start: pre_start()
        e("s_waitcnt lgkmcnt(0)")
        e("s_barrier")
        self.stamp(5)
        p1 = self.lab("cp1"); jn = self.lab("cj")
        e(f"s_cmp_lg_u32 s{S_PAR}, 0")
        e(f"s_cbranch_scc1 {p1}")
        for par in range(2):
            for c in range(4):
                r = ACC + 4 * (4*par + c)
                e(f"ds_read_b128 v[{r}:{r+3}], v173 offset:{1024*c}")
            for r in range(16): e(f"v_mov_b32 v{ACC + 16*(1-par) + r}, 0")
            if par == 0:
                e(f"s_branch {jn}"); self.label(p1)
        self.label(jn)
        def loads(it):
            s = it & 1; L = []; o = 16 * (3 - it)
            tk = {}
            for k in range(8):
                tk[("B", k)] = self.tok(f"ds_read_b128 {vr(FB[s]+4*k,4)}, v172 offset:{512*k + 64*(3-it)}")
                b = 168 + (k >> 1); oo = o + (0 if k & 1 else 128)
                self.tok(f"ds_read2_b32 {vr(FA[s]+4*k,2)}, v{b} offset0:{oo} offset1:{oo+1}")
                tk[("A", k)] = self.tok(f"ds_read2_b32 {vr(FA[s]+4*k+2,2)}, v{b} offset0:{oo+2} offset1:{oo+3}")
            return tk
        pre = self.p.take()
        tks = [None] * 4
        tks[0] = loads(0)
        main = self.p.take()
        carry = []
        for it in range(4):
            nxt = []
            if it < 3:
                tks[it+1] = loads(it+1); nxt = self.p.take()
            s = it & 1
            order = sorted([(u, v) for u in range(8) for v in range(8 - u)], key=lambda t: (max(t), t[0]))
            seen = set(); k = 0
            for (u, v) in order:
                need = [t for t in (("A", u), ("B", v)) if t not in seen]
                if need:
                    self.wait(*[tks[it][t] for t in need]); seen |= set(need)
                cb = u + v
                e(f"v_mfma_f32_16x16x32_bf16 {vr(ACC+4*cb,4)}, {vr(FA[s]+4*u,4)}, {vr(FB[s]+4*v,4)}, {vr(ACC+4*cb,4)}")
                if nxt and ((it > 0 and (k % 3 != 2 or len(nxt) >= 35 - k)) or (it == 0 and k >= 10)):
                    self.p.put([nxt.pop(0)])
                k += 1
            self.p.put(nxt)
            seg = self.p.take()
            if it == 0: seg = main + seg; main = []
            carry = carry + (fillers.get(it, []) if fillers else [])
            seg, carry = merge(seg, carry, 8, pace=self.cfg["cpace"])
            if it in self.cfg.get('cflush', ()): seg += carry; carry = []
            main += seg
        self.p.put(pre + main)
        self.conv_left = carry
        self.stamp(6)
        if pre_bar: pre_bar()
        p1 = self.lab("ep1"); jn = self.lab("ej")
        e(f"s_cmp_lg_u32 s{S_PAR}, 0")
        e(f"s_cbranch_scc1 {p1}")
        for par in range(2):
            e("s_nop 7")
            for c in range(4):
                r = ACC + 4 * (4*(1-par) + c)
                e(f"ds_write_b128 v180, {vr(r,4)} offset:{1024*c}")
            e("s_waitcnt lgkmcnt(0)")
            e("s_barrier")
            for c in range(4): e(f"ds_read_b128 {vr(40+4*c,4)}, v181 offset:{1024*c}")
            for c in range(4):
                e(f"s_waitcnt lgkmcnt({3-c})")
                r = ACC + 4 * (4*par + c)
                e(f"v_pk_add_f32 {vr(40+4*c,2)}, {vr(40+4*c,2)}, {vr(r,2)}")
                e(f"v_pk_add_f32 {vr(42+4*c,2)}, {vr(42+4*c,2)}, {vr(r+2,2)}")
            if par == 0:
                e(f"s_branch {jn}"); self.label(p1)
        self.label(jn)
        sB = S_M + 8
        e(f"s_cmp_eq_u32 s{S_CH}, 0")
        e(f"s_cselect_b32 s{S_T0}, s{sB}, s{sB+1}")
        e(f"v_mov_b32 v38, s{S_T0}\nv_mov_b32 v39, s{S_T0}")
        if post_bar: post_bar()
        for pr in range(2):
            a = 40 + 8*pr
            d = 60 + 8*pr
            for h in range(4): e(f"v_pk_mul_f32 {vr(76+2*h,2)}, {vr(a+2*h,2)}, v[38:39]")
            for h in range(4): e(f"v_cvt_pk_bf16_f32 v{d+h}, v{76+2*h}, v{77+2*h}")
            for h in range(4): e(f"v_and_or_b32 v{d+h}, v{d+h}, v252, s{TG[h&1]}")
            for h in range(4): e(f"v_cvt_pk_bf16_f32 v{d+4+h}, v{a+2*h}, v{a+2*h+1}")
            e(f"v_permlane16_swap_b32 v{d}, v{d+2}\nv_permlane16_swap_b32 v{d+1}, v{d+3}")
            e(f"buffer_store_dwordx4 {vr(d,4)}, v182, s[{S_WS}:{S_WS+3}], s{28 + 2*pr} offen sc1")
            for h in range(4): e(f"v_and_or_b32 v{d+4+h}, v{d+4+h}, v252, s{TG[h&1]}")
            e(f"v_permlane16_swap_b32 v{d+4}, v{d+6}\nv_permlane16_swap_b32 v{d+5}, v{d+7}")
            self.x1st = self.tok(f"buffer_store_dwordx4 {vr(d+4,4)}, v182, s[{S_WS}:{S_WS+3}], s{27 + 2*pr} offen sc1")
        self.stamp(7)
    def g1_map(self):
        e = self.e
        if self.cfg["map8"]:
            e(f"s_lshr_b32 s{S_T0}, s{S_XCD}, 1\ns_mul_i32 s{S_T0}, s{S_T0}, 28\ns_add_u32 s{S_T0}, s{S_T0}, s{S_IDX}")
            e(f"s_and_b32 s{S_G1}, s{S_XCD}, 1\ns_lshl_b32 s{S_G1}, s{S_G1}, 3\ns_and_b32 s{S_G2}, s{S_T0}, 7\ns_add_u32 s{S_G1}, s{S_G1}, s{S_G2}")
            e(f"s_lshr_b32 s{S_G2}, s{S_T0}, 3")
        else:
            e(f"s_lshr_b32 s{S_G1}, s{S_XCD}, 1\ns_lshl_b32 s{S_G1}, s{S_G1}, 2")
            e(f"s_and_b32 s{S_T0}, s{S_IDX}, 3\ns_add_u32 s{S_G1}, s{S_G1}, s{S_T0}")
            e(f"s_and_b32 s{S_G2}, s{S_XCD}, 1\ns_mul_i32 s{S_G2}, s{S_G2}, 7")
            e(f"s_lshr_b32 s{S_T0}, s{S_IDX}, 2\ns_add_u32 s{S_G2}, s{S_G2}, s{S_T0}")
        e(f"s_lshl_b32 s15, s{S_XCD}, 2\ns_add_u32 s15, s15, s{S_IDX}\ns_sub_u32 s15, s15, 28")
        e(f"s_lshr_b32 s14, s15, 1\ns_and_b32 s13, s15, 1\ns_cmp_ge_u32 s{S_IDX}, 28")
        e(f"s_cselect_b32 s{S_G2}, s14, s{S_G2}\ns_cselect_b32 s{S_G1}, 0, s{S_G1}\ns_cselect_b32 s{S_G3}, s13, 0\ns_cselect_b32 s15, s15, 0")
        e(f"s_cmp_ge_u32 s15, 28\ns_cselect_b32 s10, 0, {hx(1835008)}\ns_mov_b32 s11, 0x20000")
        e(f"s_lshl_b32 s{S_G2}, s{S_G2}, 7")
        e(f"s_lshl_b32 s{S_T0}, s{S_WV}, 5\ns_add_u32 s{S_G2}, s{S_G2}, s{S_T0}")
    AX = 176
    BX = 184
    def g1_fold(self, g, acc):
        for t in range(2):
            self.e(f"v_mfma_f32_32x32x16_bf16 {vr(acc+16*t,16)}, {vr(self.AX+4*t,4)}, {vr(self.BX+4*g,4)}, {vr(acc+16*t,16)}")
    def g1_epilogue(self, g, acc, stat, split=False):
        e = self.e
        save = self.p.take()
        T = 148
        rG, kD = stat, stat+1
        for t in range(2):
            for half in range(2):
                regs = [4*half + j for j in range(4)]
                gq = [T + 8*half + j for j in range(4)]; q = [T + 8*half + 4 + j for j in range(4)]
                for j, r in enumerate(regs): e(f"v_mul_f32 v{gq[j]}, v{rG}, v{acc+16*t+r}")
                for j in range(4): e(f"v_fma_f32 v{q[j]}, -v{gq[j]}, v{gq[j]}, s{S_T3}")
                for j in range(4): e(f"v_mul_f32 v{q[j]}, v{gq[j]}, v{q[j]}")
                for j, r in enumerate(regs):
                    e(f"v_exp_f32 v{q[j]}, v{q[j]}")
                    e(f"v_mul_f32 v{gq[j]}, v{gq[j]}, v{acc+16*t+8+r}")
                for j in range(4): e(f"v_fma_f32 v{q[j]}, v{q[j]}, v{kD}, v{kD}")
                for j in range(4): e(f"v_rcp_f32 v{q[j]}, v{q[j]}")
                for j in range(4): e(f"v_mul_f32 v{gq[j]}, v{gq[j]}, v{q[j]}")
                e(f"v_cvt_pk_bf16_f32 v{172+2*half}, v{gq[0]}, v{gq[1]}")
                e(f"v_cvt_pk_bf16_f32 v{173+2*half}, v{gq[2]}, v{gq[3]}")
                if half == 0: e(f"v_and_or_b32 v172, v172, v252, s{TG[0]}\nv_and_or_b32 v173, v173, v252, s{TG[1]}")
            e(f"s_add_u32 s101, s{S_T2}, {g*112*1024 + t*1024}")
            tk_ = self.tok(f"buffer_store_dwordx4 v[172:175], v147, s[{S_WS}:{S_WS+3}], s101 offen sc1")
        self.htok[g] = tk_
        out = self.p.take(); self.p.put(save)
        if split: return out[:len(out)//2], out[len(out)//2:]
        return out
    def g2_map(self):
        e = self.e
        e(f"s_lshl_b32 s{S_G1}, s{S_XCD}, 1\ns_bfe_u32 s44, s{S_IDX}, 0x10004\ns_add_u32 s{S_G1}, s{S_G1}, s44")
        e(f"s_lshl_b32 s{S_G1}, s{S_G1}, 2")
        e(f"s_bfe_u32 s44, s{S_IDX}, 0x10003")
        e(f"s_sub_u32 s{S_G2}, s{S_G1}, s44\ns_add_u32 s{S_G2}, s{S_G2}, 3")
        e(f"s_add_u32 s{S_G1}, s{S_G1}, s44")
        e(f"s_and_b32 s{S_G3}, s{S_IDX}, 7")
    XT = lambda self, g: (3 - g) * 32768
    S_HB = 81
    def x1s_issue(self, g):
        t = None
        for j in range(8):
            if j % 4 == 0:
                self.e(f"s_add_u32 m0, s{S_T1}, {self.XT(g) + j*1024}")
                self.e(f"s_add_u32 s13, s{S_T0}, {g*32768 + j*1024}")
            t = self.tok(f"buffer_load_dwordx4 v147, s[{S_WS}:{S_WS+3}], s13 offen offset:{(j%4)*1024} sc1 lds")
        return t
    def x1s_check(self, g, T, explicit=False):
        e = self.e
        ad = 146 if self.XT(g) < 65536 else 143
        if g >= 2:
            tk = [self.tok(f"ds_read_b32 v{T+j}, v{ad} offset:{self.XT(g) % 65536 + j*1024}") for j in range(8)]
            if explicit: e("s_waitcnt lgkmcnt(0)")
            else: self.wait(tk[7])
            for j in range(4): e(f"v_bitop3_b32 v{T+2*j}, v{T+2*j}, v{T+2*j+1}, s{TG[0]} bitop3:0x7e")
            e(f"v_or3_b32 v{T}, v{T}, v{T+2}, v{T+4}\nv_or_b32 v{T}, v{T}, v{T+6}\nv_and_b32 v{T}, 0x00010001, v{T}\nv_cmp_ne_u32 vcc, 0, v{T}")
            return
        for rnd in range(2):
            tk = [self.tok(f"ds_read_b128 {vr(T+4*j,4)}, v{ad} offset:{self.XT(g) % 65536 + (4*rnd+j)*1024}") for j in range(4)]
            for j in range(4):
                if explicit: e(f"s_waitcnt lgkmcnt({3-j})")
                elif j in (1, 3): pass
                else: self.wait(tk[j+1])
                r = T + 4*j
                e(f"v_bitop3_b32 v{r}, v{r}, v{r+2}, s{TG[0]} bitop3:0x7e\nv_bitop3_b32 v{r+1}, v{r+1}, v{r+3}, s{TG[1]} bitop3:0x7e")
                e(f"v_or3_b32 v{T+16}, v{r}, v{r+1}, {'v%d' % (T+16) if (rnd or j) else '0'}")
        e(f"v_and_b32 v{T+16}, 0x00010001, v{T+16}\nv_cmp_ne_u32 vcc, 0, v{T+16}")
    def tlane(self, d, t):
        e = self.e
        e(f"v_mov_b32 v{d}, s{TG[0]}\nv_bfe_u32 v{t}, v1, 1, 1\nv_mul_u32_u24 v{t}, 0x10001, v{t}\nv_xor_b32 v{d}, v{d}, v{t}")
        e(f"v_and_b32 v{t}, 1, v1\nv_lshlrev_b32 v{t}, 4, v{t}\nv_bfe_u32 v{d}, v{d}, v{t}, 1\nv_mul_u32_u24 v{d}, 0x10001, v{d}")
    def x1s_guard(self, g, T, tok, keepm0=True):
        e = self.e
        rt = self.lab("xr"); lp = self.lab("xl"); bk = self.lab("xb")
        self.wait(tok)
        self.x1s_check(g, T)
        e(f"s_cbranch_vccnz {rt}")
        self.label(bk)
        def rout():
            self.label(rt)
            e(f"s_mov_b32 s{S_SPIN}, {self.cfg['spin']}")
            if self.cfg.get("stamps"): e(f"v_writelane_b32 v255, 1, {46 + g}")
            e(f"s_mov_b32 s{S_ST+1 if False else 9}, m0")
            self.label(lp)
            self.x1s_issue(g)
            e("s_waitcnt vmcnt(0) lgkmcnt(0)\ns_mov_b32 m0, s9")
            self.x1s_check(g, T, explicit=True)
            e("s_nop 1")
            e(f"s_cbranch_vccz {bk}")
            self.spin_check(lp)
            e(f"s_branch {bk}")
        o, _ = self.capture(rout); self.ool += o
    def modf_issue(self):
        t = None
        for v in range(2):
            for kq in range(4):
                self.e(f"s_mov_b32 s47, {WS_MODP + (kq*3072 + (3+v)*512)*8}")
                t = self.tok(f"buffer_load_dwordx4 {vr(200 + 16*v + 4*kq, 4)}, v236, s[{S_WS}:{S_WS+3}], s47 offen sc1")
        return t
    def xfill(self):
        e = self.e; t = None
        for base in (WS_X1S, WS_X1S + 32*32768, WS_X1, WS_X1 + 32*32768):
            e(f"s_add_u32 s101, s31, {hx(base)}")
            t = self.tok(f"buffer_store_dwordx4 v[248:251], v252, s[{S_WS}:{S_WS+3}], s101 offen sc1")
        return t
    def hfill(self):
        e = self.e
        for g in range(4):
            e(f"s_add_u32 s26, s{self.S_HB}, {g*112*1024}")
            self.tok(f"buffer_store_dwordx4 v[248:251], v147, s[{S_WS}:{S_WS+3}], s26 offen sc1")
            self.htok["fill"] = self.tok(f"buffer_store_dwordx4 v[248:251], v147, s[{S_WS}:{S_WS+3}], s26 offen offset:1024 sc1")
    S_HF = 35
    def gate_pub(self, base=WS_FL1):
        self.e(f"s_add_u32 s101, s32, {base}")
        self.e(f"buffer_store_dword v253, v199, s[{S_WS}:{S_WS+3}], s101 offen sc1")
    S_FB = 3
    def hbase(self):
        e = self.e
        e(f"s_mul_i32 s{self.S_HB}, s{S_G1}, {4*112*1024}")
        e(f"s_lshl_b32 s101, s{S_G2}, 6")
        e(f"s_add_u32 s{self.S_HB}, s{self.S_HB}, s101")
        e(f"s_add_u32 s{self.S_HB}, s{self.S_HB}, {hx(WS_H)}")
    def hflag(self, g, vz, vt):
        self.wait(self.htok[g])
        self.e(f"s_add_u32 s101, s{self.S_FB}, 0")
        self.e(f"buffer_store_dword v{vt}, v{vz}, s[{S_WS}:{S_WS+3}], s101 offen sc1")
    def capture(self, fn):
        keep = self.p.take(); r = fn(); out = self.p.take(); self.p.put(keep); return out, r
    def cap(self, fn): return self.capture(fn)[0]
    def peek(self, fn):
        sv = (dict(self.wdt), dict(self.rd), dict(self.xt), self.p.ntok)
        keep = self.p.take()
        try: fn()
        except KeyError:
            self.p.take(); self.p.put([Ins("buffer_x"), Ins("buffer_x")])
        out = self.p.take(); self.p.put(keep)
        self.wdt.clear(); self.wdt.update(sv[0]); self.rd.clear(); self.rd.update(sv[1]); self.xt.clear(); self.xt.update(sv[2])
        return out
    def guard(self, name, chk, reissue, cond="vccnz"):
        e = self.e
        rt = self.lab(name + "r"); lp = self.lab(name + "l"); bk = self.lab(name + "b")
        chk(False)
        e(f"s_cbranch_vccnz {rt}")
        self.label(bk)
        def rout():
            self.label(rt); e(f"s_mov_b32 s{S_SPIN}, {self.cfg['spin']}")
            if self.cfg.get("stamps"): e(f"v_writelane_b32 v255, 1, {52 + ['mf', 'gt', 'st', 'f0', 'lt', 'g2', 'fa', 'hc', 'rs'].index(name)}")
            self.label(lp)
            reissue(); chk(True); e("s_nop 1")
            e(f"s_cbranch_vccz {bk}"); self.spin_check(lp); e(f"s_branch {bk}")
        self.ool += self.cap(rout)

    def p0_issue(self):
        e = self.e; T = self.T = {}
        e(f"s_mov_b32 s{S_X}, s{P_X}\ns_mov_b32 s{S_X+1}, s{P_X+1}")
        self.tok(f"buffer_load_dwordx4 v[10:13], v9, s[{S_X}:{S_X+3}], s{S_T0} offen")
        T["xr"] = self.tok(f"buffer_load_dwordx4 v[14:17], v9, s[{S_X}:{S_X+3}], s{S_T0} offen offset:1024")
        self.tok(f"buffer_load_dwordx4 v3, s[{S_X}:{S_X+3}], s{S_T3} offen lds")
        T["xt"] = self.tok(f"buffer_load_dwordx4 v6, s[{S_X}:{S_X+3}], s{S_T3} offen offset:1024 lds")
        for i in range(6): T["ssm"] = self.tok(f"global_load_ushort v{18+i}, v8, s[{P_ARE+2*i}:{P_ARE+2*i+1}]")
        e(f"s_load_dword s{S_E}, s[{P_WS}:{P_WS+1}], 0")
        e(f"s_lshl_b32 s{S_T0}, s{S_D0}, 1")
        e(f"s_load_dword s{S_LDT}, s[{P_LDT}:{P_LDT+1}], s{S_T0}")
        e(f"s_load_dword s{S_DSK}, s[{P_DSK}:{P_DSK+1}], s{S_T0}")
        e(f"s_mov_b32 s{S_WM}, s{P_WM}\ns_mov_b32 s{S_WM+1}, s{P_WM+1}")
        e(f"s_cmp_ge_u32 s{S_M+1}, {24 if self.cfg['split'] else 99}\ns_cselect_b32 s{S_M+4}, 1, 0\ns_cmp_ge_u32 s2, 192\ns_cselect_b32 s{S_M+4}, 2, s{S_M+4}")
        T["c"] = self.tok(f"global_load_dword v186, v7, s[{P_C}:{P_C+1}]")
        self.wm_issue(0)
        e(f"s_bitcmp1_b32 s{S_WV}, 0\ns_cselect_b32 s8, s{P_WU}, s{P_WG}\ns_cselect_b32 s9, s{P_WU+1}, s{P_WG+1}")
        if self.cfg["touch"] == 4: self.touch_w()
    def wm_issue(self, which):
        e = self.e
        sk = self.lab("wm")
        e(f"s_cmp_lg_u32 s{S_M+4}, {which}\ns_cbranch_scc1 {sk}")
        e(f"s_lshl_b32 s{S_T1}, s{S_WV}, 12")
        for j in range(4):
            e(f"s_add_u32 m0, s{S_T1}, {L_MOD + 1024*j}")
            e(f"s_add_u32 s101, s{S_M+2}, {j*8*6144}")
            self.T["wm%d" % which] = self.tok(f"buffer_load_dwordx4 v33, s[{S_WM}:{S_WM+3}], s101 offen lds")
        jn = self.lab("wmj")
        self.label(jn)
        def alt():
            self.label(sk)
            for j in range(4): e(f"global_load_dword v32, v9, s[{P_C}:{P_C+1}]")
            e(f"s_branch {jn}")
        self.ool += self.cap(alt)

    def p0_stats(self):
        e = self.e
        e("v_mov_b32 v3, 0x3f803f80")
        self.wait(self.T["xr"])
        for i in range(4):
            c = lambda r: (f"v{r}" if i else "0")
            e(f"v_dot2_f32_bf16 v4, v{10+i}, v3, {c(4)}")
            e(f"v_dot2_f32_bf16 v5, v{10+i}, v{10+i}, {c(5)}")
            e(f"v_dot2_f32_bf16 v6, v{14+i}, v3, {c(6)}")
            e(f"v_dot2_f32_bf16 v7, v{14+i}, v{14+i}, {c(7)}")
        self.reduce16([4, 5, 6, 7])
        e("v_permlane16_swap_b32 v4, v5\nv_permlane16_swap_b32 v6, v7")
        e("v_add_f32 v4, v4, v5\nv_add_f32 v6, v6, v7")
        e("v_permlane32_swap_b32 v4, v6")
        e("v_add_f32 v4, v4, v6")
        e("v_mov_b32 v5, v4")
        e("v_permlane16_swap_b32 v4, v5")
        self.stat_finish(4, 5, 6, 7)
        e(f"v_mov_b32 v5, s{S_TAG}")
        e("v_lshrrev_b32 v6, 2, v1")
        e(f"s_lshr_b32 s{S_T0}, s2, 6\ns_lshl_b32 s{S_T0}, s{S_T0}, 2\ns_add_u32 s{S_T0}, s{S_T0}, s{S_WV}\ns_lshl_b32 s{S_T0}, s{S_T0}, 10")
        e(f"s_and_b32 s{S_T1}, s2, 63\ns_lshl_b32 s{S_T1}, s{S_T1}, 4\ns_add_u32 s{S_T0}, s{S_T0}, s{S_T1}\ns_add_u32 s{S_T0}, s{S_T0}, {WS_ST1}")
        e("s_mov_b32 exec_lo, 1\ns_mov_b32 exec_hi, 1")
        e(f"buffer_store_dwordx2 v[4:5], v6, s[{S_WS}:{S_WS+3}], s{S_T0} offen sc1")
        e("s_mov_b64 exec, -1")

    def p0_xb(self):
        e = self.e
        e("v_lshrrev_b32 v187, 2, v1\nv_lshlrev_b32 v187, 7, v187\nv_and_b32 v4, 3, v1\nv_lshl_add_u32 v187, v4, 3, v187")
        e("v_lshrrev_b32 v5, 4, v1\nv_lshlrev_b32 v3, 11, v5")
        e("v_bfe_u32 v4, v1, 1, 1\nv_lshl_add_u32 v3, v4, 10, v3")
        e("v_bfe_u32 v4, v1, 2, 2\nv_lshl_add_u32 v3, v4, 7, v3")
        e("v_and_b32 v4, 1, v1\nv_lshl_add_u32 v3, v4, 3, v3")
        e(f"s_lshl_b32 s{S_T1}, s{S_WV}, 5\ns_add_u32 s{S_T1}, s{S_T1}, {L_XT}\nv_add_u32 v188, s{S_T1}, v3")
        e("v_lshlrev_b32 v4, 10, v4\nv_lshl_add_u32 v4, v5, 5, v4")
        e("v_bfe_u32 v5, v1, 3, 1\nv_lshl_add_u32 v4, v5, 4, v4")
        e("v_bfe_u32 v5, v1, 1, 2\nv_lshl_add_u32 v189, v5, 14, v4")
        e(f"s_lshl_b32 s{S_T0}, s{S_XCD}, 19\ns_lshl_b32 s{S_T1}, s{S_WV}, 17\ns_add_u32 s{S_T0}, s{S_T0}, s{S_T1}")
        e(f"s_lshr_b32 s{S_T1}, s{S_IDX}, 3\ns_lshl_b32 s{S_T1}, s{S_T1}, 12\ns_add_u32 s{S_T0}, s{S_T0}, s{S_T1}")
        e(f"s_and_b32 s{S_T1}, s{S_IDX}, 7\ns_lshl_b32 s{S_T1}, s{S_T1}, 7\ns_add_u32 s{S_T0}, s{S_T0}, s{S_T1}\ns_add_u32 s46, s{S_T0}, {hx(WS_XB)}")
        e(f"s_add_u32 s47, s46, 0x10000")
    def p0_xb2(self):
        e = self.e
        for i in range(4): e(f"v_mov_b32 v{39+4*i}, s{S_TAG}")
        self.wait(self.T["xt"])
        e("s_barrier")
        tk = [self.tok(f"ds_read_b64_tr_b16 v[{36+4*k}:{37+4*k}], v188 offset:{512*(k&1) + 16*(k>>1)}") for k in range(4)]
        for k in range(4):
            self.wait(tk[k])
            e(f"v_mov_b32 v{38+4*k}, v{37+4*k}\nv_mov_b32 v{37+4*k}, s{S_TAG}")
            e(f"buffer_store_dwordx4 v[{36+4*k}:{39+4*k}], v189, s[{S_WS}:{S_WS+3}], s{46 + (k>>1)} offen offset:{2048*(k&1)} sc1")

    def p0_mod(self, which, nyoung, base=52, tokname=None):
        e = self.e
        skip = self.lab("nomod2")
        e(f"s_cmp_lg_u32 s{S_M+4}, {which}\ns_cbranch_scc1 {skip}")
        e("v_lshlrev_b32 v56, 16, v186\nv_and_b32 v57, 0xffff0000, v186")
        e(f"v_mul_f32 v58, {fl(-LOG2E)}, v56\nv_mul_f32 v59, {fl(-LOG2E)}, v57")
        e("v_exp_f32 v58, v58\nv_exp_f32 v59, v59")
        e("v_add_f32 v58, 1.0, v58\nv_add_f32 v59, 1.0, v59")
        e("v_rcp_f32 v58, v58\nv_rcp_f32 v59, v59")
        e("v_mul_f32 v56, v56, v58\nv_mul_f32 v57, v57, v59")
        e("v_cvt_pk_bf16_f32 v56, v56, v57")
        e(f"s_lshl_b32 s44, s{S_WV}, 8\ns_add_u32 s44, s44, {L_MOD + 16384}")
        e(f"v_lshl_add_u32 v57, v1, 2, s44")
        e("ds_write_b32 v57, v56")
        e("v_lshrrev_b32 v58, 4, v1")
        e(f"v_lshl_add_u32 v57, v58, 4, s44")
        e("v_lshl_add_u32 v59, v58, 9, v187")
        e(f"s_lshl_b32 s45, s{S_WV}, 5\ns_add_u32 s45, s45, {L_MOD}")
        e(f"v_add_u32 v59, s45, v59")
        self.p.wait_nt(self.T[tokname or "wm%d" % which])
        e("s_waitcnt lgkmcnt(0)\ns_barrier")
        for ks in range(4):
            e(f"ds_read_b128 v[{60+8*ks}:{63+8*ks}], v57 offset:{64*ks}")
            e(f"ds_read_b64_tr_b16 v[{64+8*ks}:{65+8*ks}], v59 offset:{4096*ks}")
            e(f"ds_read_b64_tr_b16 v[{66+8*ks}:{67+8*ks}], v59 offset:{4096*ks+512}")
        e(f"s_mul_i32 s44, s{S_M}, {3072*8}\ns_lshl_b32 s45, s{S_M+1}, 9\ns_add_u32 s44, s44, s45")
        e(f"s_lshl_b32 s45, s{S_WV}, 7\ns_add_u32 s44, s44, s45\ns_add_u32 s44, s44, {WS_MODP}")
        e("v_lshlrev_b32 v59, 3, v1")
        for ks in range(4):
            e(f"s_waitcnt lgkmcnt({9-3*ks})")
            e(f"v_mfma_f32_16x16x32_bf16 v[92:95], v[{60+8*ks}:{63+8*ks}], v[{64+8*ks}:{67+8*ks}], {'v[92:95]' if ks else '0'}")
        e("s_barrier")
        e(f"v_mov_b32 v93, s{S_TAG}")
        e("s_mov_b64 exec, 0xffff")
        self.p.nc(f"buffer_store_dwordx2 v[92:93], v59, s[{S_WS}:{S_WS+3}], s44 offen sc1")
        e("s_mov_b64 exec, -1")
        self.label(skip)

    def touch_w(self):
        e = self.e
        e(f"s_lshr_b32 s{S_T0}, s{S_WV}, 1\ns_lshl_b32 s{S_T1}, s2, 1\ns_add_u32 s{S_T0}, s{S_T0}, s{S_T1}\ns_mul_i32 s{S_T0}, s{S_T0}, {28*128}")
        e(f"v_min_u32 v3, 27, v1\nv_lshlrev_b32 v3, 7, v3\nv_add_u32 v3, s{S_T0}, v3")
        e("global_load_dword v198, v3, s[8:9]")
    def touch_wd(self, mode):
        e = self.e
        if mode == 1:
            e(f"s_sub_u32 s{S_T0}, s2, 192\ns_lshl_b32 s{S_T0}, s{S_T0}, 2\ns_add_u32 s{S_T0}, s{S_T0}, s{S_WV}\ns_mul_i32 s{S_T0}, s{S_T0}, {56*128}")
            e(f"s_cmp_lt_u32 s2, 192\ns_cselect_b32 s{S_T0}, 0x7f000000, s{S_T0}")
            e("v_min_u32 v197, 55, v1\nv_lshlrev_b32 v197, 7, v197")
        else:
            e(f"s_lshl_b32 s{S_T0}, s2, 2\ns_add_u32 s{S_T0}, s{S_T0}, s{S_WV}\ns_mul_i32 s{S_T0}, s{S_T0}, {14*128}")
            e("v_min_u32 v197, 13, v1\nv_lshlrev_b32 v197, 7, v197")
        e(f"buffer_load_dword v198, v197, s[{S_WD}:{S_WD+3}], s{S_T0} offen")

    def touch_wdx(self):
        e = self.e
        e(f"s_lshl_b32 s47, s{S_IDX}, 2\ns_add_u32 s47, s47, s{S_WV}\ns_mul_i32 s47, s47, {112*128}")
        e("v_min_u32 v138, 55, v1\nv_lshlrev_b32 v138, 7, v138")
        e(f"buffer_load_dword v139, v138, s[{S_WD}:{S_WD+3}], s47 offen")
        e(f"s_add_u32 s47, s47, {56*128}")
        e(f"buffer_load_dword v139, v138, s[{S_WD}:{S_WD+3}], s47 offen")

    def touch_wdx2(self):
        e = self.e
        e(f"s_mul_i32 s43, s{S_IDX}, {7*1024}\ns_mul_i32 s44, s{S_WV}, {448*1024}\ns_add_u32 s43, s43, s44\ns_add_u32 s43, s43, {224*1024}")
        e("v_min_u32 v138, 55, v1\nv_lshlrev_b32 v138, 7, v138")
        e(f"buffer_load_dword v139, v138, s[{S_WD}:{S_WD+3}], s43 offen")

    def w_setup(self):
        e = self.e
        e("v_lshrrev_b32 v241, 4, v1\nv_mul_u32_u24 v240, 3584, v241")
        e(f"s_and_b32 s13, s{S_WV}, 1\nv_lshl_add_u32 v241, v241, 1, s13")
        e("v_bfe_u32 v242, v1, 1, 3\nv_xor_b32 v241, v241, v242\nv_lshl_add_u32 v240, v241, 5, v240")
        e("v_and_b32 v241, 1, v1\nv_lshl_add_u32 v240, v241, 4, v240")
        e(f"s_lshr_b32 s14, s{S_WV}, 1\ns_mul_i32 s15, s14, {8*3584}")
        e(f"s_and_b32 s101, s{S_G2}, 0xffffff80\ns_lshl_b32 s101, s101, 1\ns_add_u32 s15, s15, s101")
        e(f"v_add_u32 v240, s15, v240\nv_add_u32 v247, {4*3584 - 1024}, v240")
        e("s_lshl_b32 s12, s13, 12\ns_lshl_b32 s14, s14, 11\ns_add_u32 s12, s12, s14")
        e("v_bfe_u32 v241, v1, 4, 1\nv_bfe_u32 v242, v1, 2, 2")
        e("v_lshl_add_u32 v243, v242, 1, v241")
        e(f"s_lshl_b32 s13, s{S_WV}, 1\nv_xor_b32 v243, s13, v243\nv_lshlrev_b32 v243, 5, v243")
        e("v_lshl_add_u32 v243, v241, 12, v243\nv_lshl_add_u32 v243, v242, 8, v243")
        e("v_lshrrev_b32 v241, 5, v1\nv_lshl_add_u32 v243, v241, 11, v243")
        e("v_and_b32 v241, 1, v1\nv_lshl_add_u32 v243, v241, 4, v243")
        e("v_bfe_u32 v241, v1, 1, 1\nv_lshl_add_u32 v241, v241, 3, v243")
        e("v_xor_b32 v242, 32, v241")
        e("v_add_u32 v243, 0x10000, v241\nv_add_u32 v244, 0x10000, v242\nv_add_u32 v245, 0x20000, v241\nv_add_u32 v246, 0x20000, v242")
        self.wt = {}
    def w_rot(self):
        e = self.e
        e(f"s_and_b32 s26, s{S_G1}, {7 if self.cfg['rot'] else 0}\ns_mul_i32 s101, s{S_G3}, {16*16*3584}")
        for j in range(8): e(f"s_add_u32 s{18+j}, s26, {j}\ns_and_b32 s{18+j}, s{18+j}, 7\ns_mul_i32 s{18+j}, s{18+j}, {16*3584}\ns_add_u32 s{18+j}, s{18+j}, s101")
    def w_issue(self, ks):
        e = self.e
        if self.cfg.get('noch'):
            self.wt[ks] = None; e("s_nop 0\ns_nop 0\ns_nop 0\ns_nop 0"); return
        e(f"s_add_u32 m0, s12, {wslot(ks)}\ns_add_u32 s14, s{18 + (ks & 7)}, {(ks >> 3)*8*16*3584}")
        self.tok("buffer_load_dwordx4 v240, s[8:11], s14 offen lds")
        self.wt[ks] = self.tok("buffer_load_dwordx4 v247, s[8:11], s14 offen offset:1024 lds")
    def w_read(self, ks):
        b = wslot(ks); t_ = None
        for t in range(2):
            for i in range(2):
                o = b + 1024*i
                t_ = self.tok(f"ds_read_b64_tr_b16 {ar((t*32+ks)*4+2*i,2)}, v{241 + 2*(o >> 16) + t} offset:{o & 0xffff}")
        return t_
    def w_issue_l(self, r):
        for ks in r: self.w_issue(ks)
    def w_chunks(self, r):
        out = []
        for ks in r:
            l = self.cap(lambda: self.w_issue(ks)); out += [l[:3], l[3:]]
        return out
    def w_read_l(self, r):
        t = None
        for ks in r: t = self.w_read(ks)
        return t

    U1 = 176; U2 = 208
    def modf_chk_only(self):
        e = self.e
        def chk(ex):
            for i in range(8):
                e(f"v_min3_u32 v232, v{201+4*i}, v{203+4*i}, {'v232' if i else 'v201'}\nv_max3_u32 v233, v{201+4*i}, v{203+4*i}, {'v233' if i else 'v201'}")
            e(f"v_xor_b32 v232, s{S_TAG}, v232\nv_xor_b32 v233, s{S_TAG}, v233\nv_or_b32 v232, v232, v233\nv_cmp_ne_u32 vcc, 0, v232")
        self.guard("mf", chk, lambda: (self.modf_issue(), e("s_waitcnt vmcnt(0)")))
    def gate_issue(self, base=WS_FL1):
        self.e(f"v_lshlrev_b32 v235, 6, v0\ns_mov_b32 s101, {base}")
        return self.tok(f"buffer_load_dword v234, v235, s[{S_WS}:{S_WS+3}], s101 offen sc1")
    def gate_check(self, tok):
        self.wait(tok)
        self.guard("gt", lambda ex: self.e(f"v_cmp_ne_u32 vcc, s{S_TAG}, v234"), lambda: (self.gate_issue(), self.e("s_waitcnt vmcnt(0)")))
    def u_addr(self, v, t):
        e = self.e
        e(f"v_bfe_u32 v{v}, v1, 4, 1\nv_mul_u32_u24 v{v}, {1792*16}, v{v}")
        e(f"v_bfe_u32 v{t}, v1, 2, 1\nv_lshl_add_u32 v{v}, v{t}, 7, v{v}")
        e(f"v_bfe_u32 v{t}, v1, 3, 1\nv_lshl_add_u32 v{v}, v{t}, 6, v{v}")
        e(f"v_and_b32 v{t}, 3, v1\nv_lshl_add_u32 v{v}, v{t}, 4, v{v}")
    def u_job(self):
        e = self.e
        self.modf_chk_only()
        for v in range(2):
            for c_ in (0, 2):
                b_ = 200 + 16*v + c_
                e(f"v_add_f32 v{b_}, v{b_}, v{b_+4}\nv_add_f32 v{b_+8}, v{b_+8}, v{b_+12}\nv_add_f32 v{b_}, v{b_}, v{b_+8}")
        e("v_cvt_pk_bf16_f32 v7, v200, v202\nv_cvt_pk_bf16_f32 v5, v216, v218")
        e("v_lshlrev_b32 v8, 16, v5\nv_and_b32 v9, 0xffff0000, v5\nv_add_f32 v8, 1.0, v8\nv_add_f32 v9, 1.0, v9\nv_cvt_pk_bf16_f32 v5, v8, v9")
        e(f"v_lshlrev_b32 v3, 2, v0\nv_add_u32 v3, {L_SS}, v3")
        e("ds_write2st64_b32 v3, v5, v7 offset0:0 offset1:4")
        e("v_and_b32 v2, 1, v1\nv_lshlrev_b32 v2, 10, v2\nv_lshrrev_b32 v4, 5, v1\nv_lshl_add_u32 v2, v4, 4, v2")
        e(f"s_lshl_b32 s101, s{S_G3}, 9\ns_add_u32 s101, s101, {L_SS}\nv_add_u32 v2, s101, v2")
        e("s_waitcnt vmcnt(4) lgkmcnt(0)\ns_barrier")
        for ks in range(self.cfg["nrec"], 16): self.w_read(ks)
        for ks in range(16): e(f"ds_read_b128 {vr(100+4*ks,4)}, v2 offset:{32*ks}")
        self.u_addr(40, 41)
        e(f"s_mul_i32 s101, s{S_G3}, {2*1792*16}\ns_lshl_b32 s44, s{S_G2}, 4\ns_add_u32 s101, s101, s44\ns_add_u32 s101, s101, {WS_U}")
        e("s_cmp_eq_u32 s10, 0\ns_cselect_b32 s101, 0x7f000000, s101")
        e("s_waitcnt lgkmcnt(0)")
        for ks in range(16):
            for t in range(2):
                acc = vr(4 + 16*t, 16)
                e(f"v_mfma_f32_32x32x16_bf16 {acc}, {vr(100+4*ks,4)}, {ar((t*32+ks)*4,4)}, {acc if ks else '0'}")
        for t in range(2):
            e(f"v_mov_b32 v{44+4*t}, v{4+16*t}\nv_mov_b32 v{45+4*t}, s{S_TAG}\nv_mov_b32 v{46+4*t}, v{5+16*t}\nv_mov_b32 v{47+4*t}, s{S_TAG}")
        e("s_mov_b32 s47, s101")
    def u_pub(self):
        e = self.e
        e("s_mov_b32 exec_hi, 0")
        for t in range(2): e(f"buffer_store_dwordx4 {vr(44+4*t,4)}, v40, s[{S_WS}:{S_WS+3}], s47 offen offset:{256*t} sc1")
        e("s_mov_b32 exec_hi, -1")

    def shadow1(self):
        e = self.e; c = self.cfg; cap = self.cap
        nr = c["nrec"]; n1 = 13 + nr
        assert nr == 8
        self.w_read_l(range(nr, 13))
        e(f"s_lshl_b32 s{S_T1}, s{S_WV}, 13")
        e(f"s_lshl_b32 s33, s{S_G1}, 10\ns_add_u32 s33, s33, {WS_ST2}")
        e("v_lshlrev_b32 v147, 4, v1")
        e(f"v_add_u32 v146, s{S_T1}, v147\nv_add_u32 v143, 0x10000, v146")
        e(f"s_lshl_b32 s{S_T0}, s{S_G1}, 17\ns_add_u32 s{S_T0}, s{S_T0}, s{S_T1}\ns_add_u32 s{S_T0}, s{S_T0}, {hx(WS_X1S)}")
        self.wait(self.wt[n1-1])
        e("s_waitcnt lgkmcnt(0)\ns_barrier")
        self.stamp(8)
        r = self.w_read_l(range(13, n1))
        self.w_issue_l(range(n1, 26))
        e("v_lshrrev_b32 v144, 5, v1\nv_lshlrev_b32 v144, 9, v144")
        e("v_bfe_u32 v145, v1, 2, 2\nv_lshl_add_u32 v144, v145, 6, v144")
        e("v_bfe_u32 v145, v1, 4, 1\nv_lshl_add_u32 v144, v145, 5, v144")
        e("v_and_b32 v145, 3, v1\nv_lshl_add_u32 v144, v145, 3, v144")
        e("v_add_u32 v144, 0x10000, v144")
        for j in range(8): e(f"s_add_u32 s101, s26, {j}\ns_and_b32 s101, s101, 7\nv_lshl_add_u32 v{BA[j]}, s101, 10, v144")
        e("v_and_b32 v145, 31, v1\nv_lshlrev_b32 v145, 3, v145")
        for r_ in range(4): e(f"v_mov_b32 v{self.BX+4*r_+2}, 0\nv_mov_b32 v{self.BX+4*r_+3}, 0")
        e(f"v_mov_b32 v{self.AX+2}, 0\nv_mov_b32 v{self.AX+3}, 0\nv_mov_b32 v{self.AX+6}, 0\nv_mov_b32 v{self.AX+7}, 0")
        self.u_addr(138, 139)
        e(f"s_lshl_b32 s35, s{S_G2}, 4\ns_add_u32 s35, s35, {WS_U}\ns_add_u32 s34, s35, {2*1792*16}")
        self.wd_setup_s()
        self.wait(r)
        e("s_barrier")
        self.w_issue_l(range(26, 26 + c["wx"]))
        self.stamp(27)
        self.xt = {}
        self.xt[0] = self.x1s_issue(0)
        self.xt[1] = self.x1s_issue(1)
        self.w_issue_l(range(26 + c["wx"], 32))
        self.htok = {}
        self.g2_setup()
        e('WARMCALL 3')
        self.stamp(9)
        self.x1s_guard(0, 148, self.xt[0])
        e("s_waitcnt lgkmcnt(0)\ns_barrier")
        self.stamp(12)

    def stats2_job(self, after_issue):
        e = self.e
        e(f"s_lshl_b32 s{S_T2}, s{S_XCD}, 2\ns_add_u32 s{S_T2}, s{S_T2}, s{S_IDX}\ns_sub_u32 s{S_T2}, s{S_T2}, 28")
        e(f"s_lshr_b32 s101, s{S_T2}, 1\ns_lshl_b32 s101, s101, 2\ns_and_b32 s{S_T2}, s{S_T2}, 1\ns_add_u32 s{S_T2}, s{S_T2}, s101")
        e(f"s_lshl_b32 s{S_T1}, s{S_WV}, 13")
        e(f"s_lshl_b32 s{S_T0}, s{S_T2}, 15\ns_add_u32 s{S_T0}, s{S_T0}, s{S_T1}\ns_add_u32 s{S_T0}, s{S_T0}, {hx(WS_X1)}")
        e("v_lshlrev_b32 v147, 4, v1\nv_lshlrev_b32 v146, 7, v1")
        e("v_lshrrev_b32 v144, 5, v1\nv_lshlrev_b32 v144, 9, v144")
        e("v_bfe_u32 v145, v1, 2, 2\nv_lshl_add_u32 v144, v145, 6, v144")
        e("v_bfe_u32 v145, v1, 4, 1\nv_lshl_add_u32 v144, v145, 5, v144")
        e("v_and_b32 v145, 3, v1\nv_lshl_add_u32 v144, v145, 3, v144")
        e(f"s_lshl_b32 s{S_T1}, s{S_WV}, 14\nv_add_u32 v144, s{S_T1}, v144")
        e(f"v_mov_b32 v60, 0x3f803f80\nv_and_b32 v61, 31, v1\nv_lshlrev_b32 v62, 3, v61\ns_lshl_b32 s101, s{S_WV}, 8\ns_add_u32 s101, s101, {L_SS}")
        e(f"v_add_u32 v63, s101, v62\nv_add_u32 v61, {L_SS}, v62")
        e(f"s_lshl_b32 s{S_T3}, s{S_T2}, 8\ns_add_u32 s{S_T3}, s{S_T3}, {WS_ST2}\ns_cmp_lg_u32 s{S_WV}, 0\ns_cselect_b32 s{S_T3}, 0x7f000000, s{S_T3}")
        e("s_barrier")
        self.tlane(58, 59)
        e(f"s_mov_b32 s{S_SPIN}, {self.cfg['spin']}")
        lp = self.lab("pj"); go = self.lab("pg")
        self.label(lp)
        e(f"buffer_load_dword v64, v146, s[{S_WS}:{S_WS+3}], s{S_T0} offen sc1")
        e(f"buffer_load_dword v65, v146, s[{S_WS}:{S_WS+3}], s{S_T0} offen offset:64 sc1")
        e(f"s_waitcnt vmcnt(0)\nv_bitop3_b32 v64, v64, v65, s{TG[0]} bitop3:0x7e\nv_and_b32 v64, 0x00010001, v64\nv_cmp_ne_u32 vcc, 0, v64\ns_nop 1")
        e(f"s_cbranch_vccz {go}")
        self.spin_check(lp)
        self.label(go)
        def dma(b):
            for j in range(8):
                if j % 4 == 0: e(f"s_add_u32 m0, s{S_T1}, {b*8192 + j*1024}\ns_add_u32 s101, s{S_T0}, {b*65536 + j*1024}")
                e(f"buffer_load_dwordx4 v147, s[{S_WS}:{S_WS+3}], s101 offen offset:{(j%4)*1024} sc1 lds")
        dma(0); dma(1); after_issue()
        for b in range(2):
            def chk(ex, b=b):
                for j in range(16): e(f"ds_read_b64_tr_b16 {vr(68+2*j,2)}, v144 offset:{b*8192 + (j>>1)*1024 + (j&1)*256}")
                for j in range(32):
                    if j % 8 == 0: e(f"s_waitcnt lgkmcnt({12 - j//2})")
                    e(f"v_dot2_f32_bf16 v64, v{68+j}, v60, {'v64' if j else '0'}")
                    e(f"v_dot2_f32_bf16 v65, v{68+j}, v{68+j}, {'v65' if j else '0'}")
                    if j & 1: e(f"v_bitop3_b32 v59, v{67+j}, v{68+j}, v58 bitop3:0x7e\nv_or_b32 v57, v59, {'v57' if j > 1 else 'v59'}")
                e("v_and_b32 v57, 0x00010001, v57\nv_cmp_ne_u32 vcc, 0, v57")
            e(f"s_waitcnt vmcnt({10 if b == 0 else 3})")
            self.guard("g2", chk, lambda b=b: (dma(b), e("s_waitcnt vmcnt(0)")))
            e("v_mov_b32 v66, v64\nv_mov_b32 v67, v65\ns_nop 0\nv_permlane32_swap_b32 v64, v66\nv_permlane32_swap_b32 v65, v67\nv_add_f32 v64, v64, v66\nv_add_f32 v65, v65, v67")
            e(f"ds_write_b64 v63, v[64:65] offset:{1024*b}\ns_waitcnt lgkmcnt(0)\ns_barrier")
            for w in range(4): e(f"ds_read_b64 {vr(68+2*w,2)}, v61 offset:{1024*b + 256*w}")
            e("s_waitcnt lgkmcnt(0)")
            e("v_pk_add_f32 v[68:69], v[68:69], v[70:71]\nv_pk_add_f32 v[72:73], v[72:73], v[74:75]\nv_pk_add_f32 v[68:69], v[68:69], v[72:73]")
            self.stat_finish(68, 69, 70, 71)
            e(f"v_mov_b32 v69, s{S_TAG}")
            e(f"buffer_store_dwordx2 v[68:69], v62, s[{S_WS}:{S_WS+3}], s{S_T3} offen offset:{512*b} sc1")
            self.stamp(11 if b else 45)
        e("s_barrier")

    def wd_setup_s(self):
        e = self.e
        e(f"s_mul_i32 s{S_LDT}, s{S_WV}, {448*1024}")
        e(f"s_and_b32 s101, s{S_IDX}, 7\ns_lshl_b32 s101, s101, 7\ns_add_u32 s{S_LDT}, s{S_LDT}, s101")
        e(f"s_lshr_b32 s36, s{S_IDX}, 3\ns_lshl_b32 s36, s36, 1\ns_add_u32 s36, s36, s{S_IDX}\ns_and_b32 s36, s36, {7 if self.cfg['rot2'] else 0}")
        e("s_cmp_eq_u32 s36, 7\ns_cselect_b32 s36, 0, s36\ns_lshl_b32 s36, s36, 10")
        for j in range(1, 7): e(f"s_add_u32 s{36+j}, s{35+j}, 1024\ns_cmp_eq_u32 s{36+j}, 7168\ns_cselect_b32 s{36+j}, 0, s{36+j}")
        for b_ in range(1, 4): e(f"s_add_u32 s{27+b_}, s{S_LDT}, {b_*7*16384}")
        e(f"s_mul_i32 s{S_M+8}, s{S_WV}, 6144\ns_add_u32 s{S_M+8}, s{S_M+8}, {L_SP}")
        e(f"s_lshl_b32 s{S_M+9}, s{S_WV}, 13")
    def wd_setup_v(self):
        e = self.e
        e("v_lshrrev_b32 v240, 3, v1")
        e("v_bfe_u32 v241, v1, 4, 1\nv_lshlrev_b32 v241, 2, v241")
        e("v_and_b32 v242, 7, v1\nv_xor_b32 v241, v241, v242")
        e("v_lshlrev_b32 v240, 10, v240\nv_lshl_add_u32 v240, v241, 4, v240")
        e(f"v_add_u32 v241, {8192 - 1024}, v240")
        e("v_lshrrev_b32 v242, 5, v1\nv_lshlrev_b32 v242, 10, v242")
        e("v_bfe_u32 v243, v1, 2, 2\nv_lshl_add_u32 v242, v243, 7, v242")
        e("v_bfe_u32 v243, v1, 3, 1\nv_lshl_add_u32 v242, v243, 6, v242")
        e("v_and_b32 v243, 1, v1\nv_lshl_add_u32 v242, v243, 5, v242")
        e("v_bfe_u32 v243, v1, 1, 1\nv_lshl_add_u32 v242, v243, 3, v242")
        e("v_bfe_u32 v243, v1, 4, 1\nv_lshl_add_u32 v242, v243, 4, v242")
        e(f"v_add_u32 v244, s{S_M+9}, v242\nv_xor_b32 v245, 64, v244\nv_add_u32 v246, 0x10000, v244\nv_add_u32 v247, 0x10000, v245")
        e(f"v_add_u32 v242, s{S_M+8}, v242\nv_xor_b32 v243, 64, v242")
    def wd_setup(self):
        self.wd_setup_s(); self.wd_setup_v()
    NV = 5
    WPOS = [0, 1, 2, 3, 4, 5, 6, 0, 1, 2, 7, 8, 9, 10, 3, 4, 11, 12, 13, 14, 5, 6, 0, 1, 2, 7, 8, 9]
    WPREV = {7: 0, 8: 1, 9: 2, 14: 3, 15: 4, 20: 5, 21: 6, 22: 7, 23: 8, 24: 9, 25: 10, 26: 11, 27: 12}
    def wd_loc(self, ks):
        sl = self.WPOS[ks]
        if sl < 3: return 0, 2048*sl
        q, r = divmod(sl - 3, 4)
        return 1, (3 - q)*32768 + 2048*r
    def WA(self, ks, t, off=0, n=4):
        if ks < self.NV: return vr(200 + 8*ks + 4*t + off, n)
        return ar((t*32 + ks - self.NV)*4 + off, n)
    def wd_issue(self, ks):
        e = self.e
        r, o = self.wd_loc(ks)
        e(f"s_add_u32 m0, s{S_M+8+r}, {o}\ns_lshl4_add_u32 s15, s{36 + ks % 7}, s{S_LDT if ks < 7 else 27 + ks // 7}")
        self.tok(f"buffer_load_dwordx4 v240, s[{S_WD}:{S_WD+3}], s15 offen lds")
        self.wdt[ks] = self.tok(f"buffer_load_dwordx4 v241, s[{S_WD}:{S_WD+3}], s15 offen offset:1024 lds")
    def wd_chunks(self, r):
        out = []
        for ks in r:
            l = self.cap(lambda: self.wd_issue(ks)); out += [l[:3], l[3:]]
        return out
    def wd_read(self, ks):
        r, o = self.wd_loc(ks); t_ = None
        for t in range(2):
            for i in range(2):
                oo = o + 512*i
                reg = 242 if r == 0 else (244 if oo < 65536 else 246)
                t_ = self.tok(f"ds_read_b64_tr_b16 {self.WA(ks, t, 2*i, 2)}, v{reg+t} offset:{oo & 0xffff}")
        return t_

    def gemm1f(self):
        e = self.e; c = self.cfg; cap = self.cap
        e(f"s_mov_b32 s{S_T2}, s{self.S_HB}\ns_mov_b32 s{S_T3}, {fl(-GC)}")
        ACC = [4, 36, 68]; BR = 100; R = 6
        seq = [(0, k) for k in range(16)] + [(1, k) for k in range(16)] + [(0, k) for k in range(16, 32)] + [(1, k) for k in range(16, 32)] + [(g, k) for g in (2, 3) for k in range(32)]
        def bread(n):
            g, ks = seq[n]; b = BR + 4*(n % R); base = self.XT(g); ad = BA[ks & 7]
            o = base % 65536 + (ks >> 3)*8192
            self.tok(f"ds_read_b64_tr_b16 {vr(b,2)}, v{ad} offset:{o}")
            t_ = self.tok(f"ds_read_b64_tr_b16 {vr(b+2,2)}, v{ad} offset:{o+256}")
            if g == 1 and ks >= 24: e(f"v_add_u32 v{ad}, 0xffff0000, v{ad}")
            return t_
        PF = R - 1
        tk = {}
        for n in range(PF): tk[n] = bread(n)
        ST = [128, 130, 132, 134]
        def st_issue(h):
            t = None
            for g in (2*h, 2*h+1):
                t = self.tok(f"buffer_load_dwordx2 {vr(ST[g],2)}, v145, s[{S_WS}:{S_WS+3}], s33 offen offset:{256*g} sc1")
            return t
        def st_guard(h, tok):
            def st_chk(ex):
                e(f"v_xor_b32 v136, s{S_TAG}, v{ST[2*h]+1}\nv_xor_b32 v137, s{S_TAG}, v{ST[2*h+1]+1}\nv_or_b32 v136, v136, v137\nv_cmp_ne_u32 vcc, 0, v136")
            self.wait(tok)
            self.guard("st", st_chk, lambda: (st_issue(h), e("s_waitcnt vmcnt(0)")))
            e("s_mov_b32 s44, 0x03020302\ns_mov_b32 s43, 0x01000100")
            for g in (2*h, 2*h+1):
                b = ST[g]; x = self.BX + 4*g
                e(f"v_lshlrev_b32 v{b+1}, 16, v{b}\nv_rcp_f32 v136, v{b+1}")
                e(f"v_perm_b32 v{x}, v{b}, v{b}, s44\nv_perm_b32 v{x+1}, v{b}, v{b}, s43")
                e(f"v_mul_f32 v{b}, {fl(GAM)}, v136\nv_xor_b32 v{x}, 0x80008000, v{x}\nv_mul_f32 v{b+1}, {fl(GAM)}, v{b+1}")
        UR = 200
        def u_issue():
            t_ = None
            for t in range(2):
                for h in range(2):
                    t_ = self.tok(f"buffer_load_dwordx4 {vr(UR+8*t+4*h,4)}, v138, s[{S_WS}:{S_WS+3}], s{35-h} offen offset:{256*t} sc1")
            return t_
        def u_chk(ex):
            for i in range(4): e(f"v_min3_u32 v136, v{UR+4*i+1}, v{UR+4*i+3}, {'v136' if i else 'v%d' % (UR+1)}\nv_max3_u32 v137, v{UR+4*i+1}, v{UR+4*i+3}, {'v137' if i else 'v%d' % (UR+1)}")
            e(f"v_xor_b32 v136, s{S_TAG}, v136\nv_xor_b32 v137, s{S_TAG}, v137\nv_or_b32 v136, v136, v137\nv_cmp_ne_u32 vcc, 0, v136")
        def u_guard(tok):
            self.wait(tok)
            self.guard("mf", u_chk, lambda: (u_issue(), e("s_waitcnt vmcnt(0)")))
            e("v_cmp_gt_u32 vcc, 32, v1")
            for t in range(2):
                for k in range(2):
                    u = UR + 8*t + 2*k; d = self.AX + 4*t + k
                    e(f"v_add_f32 v{u}, v{u}, v{u+4}\nv_cvt_pk_bf16_f32 v136, v{u}, v{u}\nv_and_b32 v136, 0xffff0000, v136\nv_sub_f32 v136, v{u}, v136")
                    e(f"v_cvt_pk_bf16_f32 v136, v{u}, v136\nv_cndmask_b32 v{d}, 0, v136, vcc")
        STN = [8, 16, 24, 32, 40, 48, 56, 64, 80, 96, 104, 112, 120]
        def steps(n0, n1):
            for n in range(n0, n1):
                g, ks = seq[n]
                if n in STN: self.stamp(30 + STN.index(n))
                self.wait(tk[n])
                for t in range(2):
                    acc = vr(ACC[g % 3] + 16*t, 16)
                    e(f"v_mfma_f32_32x32x16_bf16 {acc}, {ar((t*32+ks)*4,4)}, {vr(BR+4*(n%R),4)}, {acc if ks else '0'}")
                    if t == 0 and n + PF < 128: tk[n+PF] = bread(n+PF)
                    for it in extra.get((n, t), []): self.p.put(it() or [])
                if ks == 31 and g: self.g1_fold(g, ACC[g % 3])
        extra = {}
        def seg(n0, n1, fill, flush=True, pace=None):
            m = cap(lambda: steps(n0, n1))
            m, left = merge(m, fill, 24, pace=pace or c["gpace"])
            self.p.put(m)
            if flush:
                if left: sys.stderr.write(f"flush {len(left)} at {n1}\n")
                self.p.put(left); return []
            return left
        xt = self.xt; hold = {}; self.wdt = {}; self.rd = {}; self.ht = {}
        def at(n, fn, t=1): extra.setdefault((n, t), []).append(fn)
        def spread_vm(n0, fn, per=1, step=1):
            box = {}
            def first():
                box["l"] = cap(fn)
            def part():
                if "l" not in box: first()
                out = []; k = 0
                while box["l"] and k < per:
                    i = box["l"].pop(0); out.append(i)
                    if i.wait is None and i.text.startswith("buffer_"): k += 1
                return out
            cnt = sum(1 for i in self.peek(fn) if i.wait is None and i.text.startswith("buffer_"))
            nst = -(-cnt // per)
            for j in range(nst): at(n0 + j*step, part, c['vt'])
            return n0 + nst*step
        def wrd(ks):
            def f():
                self.wait(self.wdt[ks]); self.rd[ks] = self.wd_read(ks)
            return f
        def wis(ks):
            def f():
                if ks in self.WPREV: self.wait(self.rd[self.WPREV[ks]])
                self.wd_issue(ks)
            return f
        n = spread_vm(c["b2"], lambda: xt.__setitem__(2, self.x1s_issue(2)))
        n = spread_vm(max(n, c["b3"]), lambda: xt.__setitem__(3, self.x1s_issue(3)))
        spread_vm(c["ui"], lambda: hold.__setitem__("u", u_issue()), per=1)
        n = spread_vm(max(n, c["sti"]), lambda: hold.__setitem__("t0", st_issue(0)), per=2)
        for ks in range(3): n = spread_vm(n, wis(ks))
        n = c["b4"]
        for ks in range(3, 7): n = spread_vm(n, wis(ks))
        for j in range(3): at(c["b4"] + 1 + 2*j, wrd(j))
        at(n, lambda: hold.__setitem__("t1", st_issue(1))); n += 1
        for ks in range(7, 10): n = spread_vm(n, wis(ks))
        n = max(n, 67)
        for ks in range(10, 14): n = spread_vm(n, wis(ks))
        at(68, wrd(3)); at(70, wrd(4))
        for ks in (14, 15): n = spread_vm(n, wis(ks))
        if c["twx"]: at(n + 1, lambda: self.touch_wdx2())
        n = 98
        for ks in range(16, 20): n = spread_vm(n, wis(ks))
        for j in range(c["nrd"]): at(min(127, 98 + c["rss"]*j), wrd(5 + j))
        for ks in range(20, 20 + c["nrc"]): n = spread_vm(n, wis(ks))
        nhe = min(8, 128 - n, c["nhe"])
        for j in range(nhe): at(n + j, lambda j=j: self.hl(0, j, 147), c['vt'])
        seg(0, c["b1"] - 5, [])
        seg(c["b1"] - 5, c["b1"], cap(lambda: self.x1s_guard(1, 148, xt[1])))
        e("s_barrier")
        seg(c["b1"], c["b2"], cap(lambda: self.wait(self.w_read_l(range(21, 26)), self.wt[31])))
        e("s_barrier")
        seg(c["b2"], c["b3"], cap(lambda: self.wait(self.w_read_l(range(26, 32)))))
        e("s_barrier")
        seg(c["b3"], c["g2k"], cap(self.wd_setup_v))
        seg(c["g2k"], c["uk"], cap(lambda: self.x1s_guard(2, 148, xt[2])))
        seg(c["uk"], c["stk"], cap(lambda: u_guard(hold["u"])))
        self.stamp(13)
        seg(c["stk"], 48, cap(lambda: st_guard(0, hold["t0"])))
        e('WARMREG 3')
        self.g1_fold(0, ACC[0])
        pend = seg(48, c["b4"], self.g1_epilogue(0, ACC[0], ST[0]) + cap(lambda: self.x1s_guard(3, 148, xt[3], keepm0=True)), flush=False)
        e("s_barrier")
        pend = seg(c["b4"], 64, pend, flush=False)
        ep1 = self.g1_epilogue(1, ACC[1], ST[1], split=True)
        pend = seg(64, 66, pend + ep1[0], flush=False)
        e("s_barrier")
        pend = seg(66, c["st1k"], pend, flush=False)
        pend = seg(c["st1k"], 88, cap(lambda: st_guard(1, hold["t1"])) + pend + ep1[1], flush=False)
        assert not any(i.kind == "label" for i in pend)
        e("s_barrier")
        pend = seg(88, 96, pend, flush=False)
        n1_ = len(pend)
        pend = seg(96, 98, pend + self.g1_epilogue(2, ACC[2], ST[2]), flush=False)
        sys.stderr.write(f"ep1 backlog at 96: {n1_}\n")
        e("s_barrier")
        pend = seg(98, 128, pend, flush=False)
        sys.stderr.write(f"tail leftover {len(pend)} nhe {nhe}\n")
        self.stamp(14)
        self.p.put(pend)
        hch = [cap(lambda: self.hl(0, ks, 147)) for ks in range(nhe, nhe + c["nh"])]
        self.p.put(weave(self.g1_epilogue(3, ACC[0], ST[3]), hch, c["hw"]))
        self.stamp(15)
        if c.get('warm') == 1: e('WARMREG -1')

    HB = 68
    def HR(self, ks): return 68 + 4*ks if ks < 14 else (200 + 4*(ks-14) if ks < 24 else 124 + 4*(ks-24))
    def g2_setup(self):
        e = self.e
        self.g2_map()
        e(f"s_mul_i32 s{S_M+4}, s{S_G1}, {112*1024}\ns_mul_i32 s{S_M+5}, s{S_G2}, {112*1024}")
        e(f"s_mul_i32 s{S_M+6}, s{S_WV}, {28*1024}\ns_add_u32 s{S_M+6}, s{S_M+6}, {hx(WS_H)}")
        e(f"s_add_u32 s{S_M+4}, s{S_M+4}, s{S_M+6}\ns_add_u32 s{S_M+5}, s{S_M+5}, s{S_M+6}")
        for b_ in range(4): e(f"s_add_u32 s{18+b_}, s{S_M+4}, {b_*7168}\ns_add_u32 s{22+b_}, s{S_M+5}, {b_*7168}")
        e(f"s_lshr_b32 s45, s{S_WV}, 1\ns_sub_u32 s44, s{S_G2}, s{S_G1}\ns_mul_i32 s45, s45, s44\ns_add_u32 s45, s45, s{S_G1}")
        e(f"s_and_b32 s46, s{S_WV}, 1\ns_lshl_b32 s46, s46, 5\ns_lshl_b32 s44, s{S_G3}, 6\ns_add_u32 s46, s46, s44")
        e(f"s_lshl_b32 s{S_M}, s45, 15\ns_lshl_b32 s{S_M+1}, s46, 6\ns_add_u32 s{S_M}, s{S_M}, s{S_M+1}\ns_add_u32 s{S_M}, s{S_M}, {hx(WS_X1)}")
        e(f"s_lshl_b32 s{S_M+1}, s{S_WV}, 11\ns_add_u32 s{S_M+1}, s{S_M+1}, {L_XR2}")
    def fl_issue(self, nt, va, vd): return self.tok(f"buffer_load_dword v{vd}, v{va}, s[{S_WS}:{S_WS+3}], s{S_M+2+nt} offen sc1")
    def HX(self, nt, ks):
        spare = [92 + 4*i for i in range(9)] + [220 + 4*i for i in range(9)]
        if nt == 0: return vr(36 + 4*ks, 4) if ks < 26 else ar(spare[ks - 26], 4)
        if ks < 16: return ar(spare[2 + ks], 4)
        return vr(36 + 4*(ks - 8), 4)
    def hl(self, nt, ks, va):
        self.e(f"s_add_u32 s47, s{36 + ks % 7}, s{18 + 4*nt + ks // 7}")
        self.ht[(nt, ks)] = self.tok(f"buffer_load_dwordx4 {self.HX(nt, ks)}, v{va}, s[{S_WS}:{S_WS+3}], s47 offen sc1")
    def gemm2f(self):
        e = self.e; c = self.cfg; cap = self.cap
        rd = self.rd; ht = self.ht
        e(f"v_mov_b32 v182, v147\nv_min_u32 v183, 27, v1\nv_lshlrev_b32 v183, 10, v183")
        e("s_barrier")
        todo = [ks for ks in range(28) if ks not in self.wdt]
        for ks in range(28):
            if ks not in rd and any(self.WPREV.get(k2) == ks for k2 in todo):
                self.wait(self.wdt[ks]); rd[ks] = self.wd_read(ks)
        self.stamp(16)
        order = []
        for ks in range(28):
            if ks in todo: order.append(("w", ks))
            if (0, ks) not in ht: order.append(("h", ks))
        def iss(it):
            if it[0] == "h": self.hl(0, it[1], 182)
            else:
                self.wait(rd[self.WPREV[it[1]]]); self.wd_issue(it[1])
        def mm(nt, ks):
            for t in range(2):
                acc = vr(4 + 32*nt + 16*t, 16)
                e(f"v_mfma_f32_32x32x16_bf16 {acc}, {self.WA(ks, t)}, {self.HX(nt, ks)}, {acc if ks else '0'}")
        probe = lambda: self.tok(f"buffer_load_dword v184, v183, s[{S_WS}:{S_WS+3}], s{S_M+5} offen sc1")
        def hguard(nt, k0):
            def hchk(ex):
                for j in range(7):
                    op = self.HX(nt, k0 + j); b_ = int(op[2:op.index(":")])
                    if op[0] == "a":
                        e(f"v_accvgpr_read_b32 v190, a{b_}\nv_accvgpr_read_b32 v191, a{b_+1}"); s0, s1 = 190, 191
                    else: s0, s1 = b_, b_ + 1
                    if j == 0: e(f"v_xor_b32 v189, s{TG[0]}, v{s0}")
                    else: e(f"v_bitop3_b32 v189, v189, v{s0}, s{TG[0]} bitop3:0xf6")
                    e(f"v_bitop3_b32 v189, v189, v{s1}, s{TG[1]} bitop3:0xf6")
                e("v_and_b32 v189, 0x00010001, v189\nv_cmp_ne_u32 vcc, 0, v189")
            def reis():
                keep_ = dict(ht)
                for j in range(7): self.hl(nt, k0 + j, 182)
                ht.update(keep_); e("s_waitcnt vmcnt(0)")
            self.wait(*[ht[(nt, k0 + j)] for j in range(7)])
            self.guard("hc", hchk, reis)
        self.hguard = hguard
        rest = list(order)
        KC = c["kc"]; f1 = None
        def rdw(ks):
            if ks < 28 and ks not in rd:
                self.wait(self.wdt[ks]); rd[ks] = self.wd_read(ks)
        rdw(0)
        for ks in range(KC):
            for _ in range(c["npi"]):
                if rest: iss(rest.pop(0))
            while rest and rest[0][1] <= 7*(ks // 7) + 7: iss(rest.pop(0))
            if ks >= c["kf"] and not rest and f1 is None: f1 = probe()
            rdw(ks + 1)
            if ks % 7 == 0: hguard(0, ks)
            self.wait(rd[ks]); mm(0, ks)
        assert not rest and f1 is not None
        slow = self.lab("g2slow"); jn = self.lab("g2j")
        self.wait(f1)
        e(f"v_xor_b32 v184, s{TG[0]}, v184\nv_and_b32 v184, 0x00010001, v184\nv_cmp_ne_u32 vcc, 0, v184\ns_cbranch_vccnz {slow}")
        pendw = [ks for ks in range(28) if ks not in rd]
        nx = 0
        for ks in range(KC, 28):
            for _ in range(c["nb"]):
                if nx < 28 and (nx < 16 or nx - 8 < ks): self.hl(1, nx, 182); nx += 1
            rdw(ks + 1)
            if ks % 7 == 0: hguard(0, ks)
            self.wait(rd[ks]); mm(0, ks)
        while nx < 28: self.hl(1, nx, 182); nx += 1
        self.label(jn)
        keep = dict(ht)
        def rout():
            lp = self.lab("g2l"); ok = self.lab("g2ok")
            self.label(slow)
            e("s_waitcnt vmcnt(0)")
            for ks in pendw: self.wd_read(ks)
            probe()
            e("s_waitcnt lgkmcnt(0)")
            for ks in range(KC, 28):
                if ks % 7 == 0:
                    body = cap(lambda: hguard(0, ks)); self.p.put([i for i in body if i.wait is None])
                mm(0, ks)
            e(f"s_mov_b32 s{S_SPIN}, {self.cfg['spin']}")
            self.label(lp)
            e(f"s_waitcnt vmcnt(0)\nv_xor_b32 v184, s{TG[0]}, v184\nv_and_b32 v184, 0x00010001, v184\nv_cmp_ne_u32 vcc, 0, v184\ns_nop 1\ns_cbranch_vccz {ok}")
            probe()
            self.spin_check(lp)
            e("s_waitcnt vmcnt(0)")
            self.label(ok)
            if c.get("stamps"): e("v_writelane_b32 v255, 1, 51")
            for ks in range(28): self.hl(1, ks, 182)
            e(f"s_branch {jn}")
        self.ool += cap(rout)
        ht.update(keep)
        self.stamp(19)
        def extras():
            e(f"s_mov_b32 m0, s{S_M+1}\ns_nop 0")
            self.tok(f"buffer_load_dwordx4 v182, s[{S_WS}:{S_WS+3}], s{S_M} offen sc1 lds")
            self.xr = self.tok(f"buffer_load_dwordx4 v182, s[{S_WS}:{S_WS+3}], s{S_M} offen offset:1024 sc1 lds")
            e("v_lshrrev_b32 v185, 5, v1\nv_lshlrev_b32 v185, 6, v185")
            e(f"s_lshl_b32 s{S_M+2}, s{S46}, 2\ns_add_u32 s{S_M+2}, s{S_M+2}, {WS_MODF}")
            for j in range(4): self.gbt = self.tok(f"buffer_load_dwordx4 {vr(140+4*j,4)}, v185, s[{S_WS}:{S_WS+3}], s{S_M+2} offen offset:{16*j} sc1")
        def wr(T):
            for j in range(4): e(f"ds_write_b128 v{186 + (T >> 1)}, {vr(4+16*T+4*j,4)} offset:{(T & 1)*32768 + 1024*j}")
        def addrs():
            self.tlane(181, 180)
            e(f"v_add_u32 v186, s{S_M+9}, v182\nv_add_u32 v187, 0x10000, v186")
            e(f"s_lshl_b32 s{S_T0}, s{S_WV}, 15\nv_add_u32 v188, s{S_T0}, v182")
            e("v_lshrrev_b32 v248, 5, v1\nv_lshlrev_b32 v248, 10, v248")
            e("v_bfe_u32 v249, v1, 2, 2\nv_lshl_add_u32 v248, v249, 6, v248")
            e("v_bfe_u32 v249, v1, 4, 1\nv_lshl_add_u32 v248, v249, 5, v248")
            e("v_and_b32 v249, 3, v1\nv_lshl_add_u32 v248, v249, 3, v248")
            e(f"v_add_u32 v248, s{S_M+1}, v248")
            e("v_and_b32 v249, 31, v1\nv_lshlrev_b32 v249, 10, v249")
            e("v_lshrrev_b32 v250, 5, v1\nv_lshl_add_u32 v249, v250, 5, v249")
            e(f"s_lshl_b32 s{S_T0}, s{S45}, 15\ns_lshl_b32 s{S_T1}, s{S46}, 1\ns_add_u32 s{S_T0}, s{S_T0}, s{S_T1}")
        def resid():
            self.wait(self.xr)
            tk = [self.tok(f"ds_read_b64_tr_b16 {vr(172+2*j,2)}, v248 offset:{256*j}") for j in range(4)]
            self.wait(tk[3])
            def rchk(ex):
                for j in range(4): e(f"v_bitop3_b32 v190, v{172+2*j}, v{173+2*j}, v181 bitop3:0x7e\nv_or_b32 v191, v190, {'v191' if j else 'v190'}")
                e("v_and_b32 v191, 0x00010001, v191\nv_cmp_ne_u32 vcc, 0, v191")
            def rre():
                e(f"s_mov_b32 m0, s{S_M+1}\ns_nop 0")
                e(f"buffer_load_dwordx4 v182, s[{S_WS}:{S_WS+3}], s{S_M} offen sc1 lds\nbuffer_load_dwordx4 v182, s[{S_WS}:{S_WS+3}], s{S_M} offen offset:1024 sc1 lds\ns_waitcnt vmcnt(0)")
                for j in range(4): e(f"ds_read_b64_tr_b16 {vr(172+2*j,2)}, v248 offset:{256*j}")
                e("s_waitcnt lgkmcnt(0)")
            self.guard("rs", rchk, rre)
            for j in range(8): e(f"v_lshlrev_b32 v{156+2*j}, 16, v{172+j}\nv_and_b32 v{157+2*j}, 0xffff0000, v{172+j}")
        def nt1():
            for ks in range(28):
                if ks % 7 == 0: hguard(1, ks)
                mm(1, ks)
        fill = cap(extras) + cap(addrs) + cap(lambda: (wr(0), wr(1))) + cap(resid)
        m, left = merge(cap(nt1), fill, 24, pace=1); self.p.put(m + left)
        self.stamp(17)
        wr(2); wr(3)
        e("s_waitcnt lgkmcnt(0)\ns_barrier")
        rt = {}
        for w in range(4):
            for j in range(4): rt[(w, j)] = self.tok(f"ds_read_b128 {vr(68+16*w+4*j,4)}, v188 offset:{8192*w + 1024*j}")
        self.wait(rt[(1, 3)])
        for j in range(8): e(f"v_pk_add_f32 {vr(68+2*j,2)}, {vr(68+2*j,2)}, {vr(84+2*j,2)}")
        self.wait(rt[(3, 3)], self.gbt)
        for j in range(8): e(f"v_pk_add_f32 {vr(100+2*j,2)}, {vr(100+2*j,2)}, {vr(116+2*j,2)}")
        for h in range(2):
            for j in range(4*h, 4*h+4): e(f"v_pk_add_f32 {vr(68+2*j,2)}, {vr(68+2*j,2)}, {vr(100+2*j,2)}")
            for j in range(4*h, 4*h+4): e(f"v_pk_fma_f32 {vr(68+2*j,2)}, {vr(68+2*j,2)}, {vr(140+2*j,2)}, {vr(156+2*j,2)}")
            for j in range(4*h, 4*h+4): e(f"v_cvt_pk_bf16_f32 v{24+j}, v{68+2*j}, v{69+2*j}")
            e(f"buffer_store_dwordx4 {vr(24+4*h,4)}, v249, s[{S_OUT}:{S_OUT+3}], s{S_T0} offen offset:{16*h}")
        self.stamp(18)

    def bump_epoch(self):
        e = self.e
        sk = self.lab("ep")
        e("s_cmp_lg_u32 s2, 0")
        e(f"s_cbranch_scc1 {sk}")
        e(f"s_add_u32 s{S_T0}, s{S_E}, 1")
        e(f"v_mov_b32 v3, s{S_T0}\nv_mov_b32 v4, 0")
        e("s_mov_b64 exec, 1")
        e(f"buffer_store_dword v3, v4, s[{S_WS}:{S_WS+3}], 0 offen sc1")
        e("s_mov_b64 exec, -1")
        self.label(sk)
    def finish(self):
        if self.cfg.get("hold"):
            self.label("F_hold")
            self.e(f"s_memrealtime s[{S_ST}:{S_ST+1}]\ns_waitcnt lgkmcnt(0)\ns_sub_u32 s{S_T0}, s{S_ST}, s34\ns_cmp_lt_u32 s{S_T0}, {self.cfg['hold']}\ns_cbranch_scc1 F_hold")
        self.stamp_flush()
        self.e('WARMREG -1')
        self.label(f"{self.cfg['uid']}_end")
        self.e("s_endpgm")
        ins = resolve(self.p.take()) + self.ool[:-1] + [Ins("F_last:", kind="label")] + self.ool[-1:]
        ins, n = pad_hazards(ins)
        check_labels(ins)
        if self.cfg.get('warm'):
            ins, info = add_warm(ins); sys.stderr.write(f'stubs {info}\n')
        else: ins = [i for i in ins if not i.text.startswith('WARM')]
        return render(ins)
def kernel_text(name, body, vgpr=512, accum=256):
    return f""".text
.globl {name}
.p2align 8
.type {name},@function
{name}:
{body}
.section .rodata,"a"
.p2align 6
.amdhsa_kernel {name}
  .amdhsa_next_free_vgpr {vgpr}
  .amdhsa_next_free_sgpr 102
  .amdhsa_accum_offset {accum}
  .amdhsa_group_segment_fixed_size 0
  .amdhsa_kernarg_size 144
  .amdhsa_user_sgpr_count 2
  .amdhsa_user_sgpr_kernarg_segment_ptr 1
  .amdhsa_system_sgpr_workgroup_id_x 1
.end_amdhsa_kernel
"""

def build(stamps=False, over={}):
    hdr = open("adaLN_cond__ssm_conv_s4__glu_gated_geglu__prompt.s.ref").read().split("; Override launch")[0]
    cfg = dict(spin=200000, stamps=stamps, uid="F", b1=11, b2=17, b3=23, flp=52, ui=26, g2k=36, uk=39, sti=34, stk=45, fe0=0, fes=2, vt=0, b4=50, st1k=72, nrd=12, rss=2, nhe=8, wx=6, kc=10, kf=4, nb=3, npi=3, nh=10, hw=13, nrc=8, cpf=11, rc0=3, rcs=2, f0k=104, fe=1, g0at=12, twx=0, npre=16, ga=24, cpace=4, gpace=2, nb1=0, twd=2, touch=2, fpos=1, wa0=4, map8=1, rot=1, rot2=1, split=0, nbp=0, nb2=5, adapt=1, s2b=1, nx1=8, nrec=8, wpre=12, itb=1)
    cfg.update(over)
    g = G(cfg); e = g.e
    g.prologue()
    g.p0_issue()
    g.srds_late()
    g.g1_map(); g.w_setup(); g.hbase()
    g.w_rot(); g.conv_setup(); g.p0_xb()
    g.tag_ready(); g.stamp(1)
    g.kgen_pre()
    g.p0_stats(); g.stamp(2)
    g.p0_xb2(); g.stamp(23)
    g.wm_issue(1)
    hold = {}
    if cfg['touch'] == 2: g.touch_w()
    if cfg['twd'] == 1: g.touch_wd(1)
    g.wait(g.T["c"]); g.stamp(20)
    if cfg["adapt"]:
        ny = 1 + 4 + 4 + (1 if cfg['touch'] == 2 else 0) + (1 if cfg['twd'] == 1 else 0)
        e(f"s_getreg_b32 s13, hwreg(HW_REG_IB_STS, 0, 4)")
        if stamps: e("v_writelane_b32 v255, s13, 61")
        e(f"s_cmp_le_u32 s13, {ny}\ns_cselect_b32 s13, 3, 0\ns_add_u32 s15, s{S_M+4}, s13\ns_mov_b32 s{S_M+4}, s15")
        g.p0_mod(3, 5, tokname="wm0")
    g.kgen_tab([])
    g.stamp(24)
    g.p0_mod(0, 5); g.stamp(22)
    if cfg["adapt"]: e(f"s_cmp_ge_u32 s{S_M+4}, 3\ns_cselect_b32 s13, 3, 0\ns_sub_u32 s{S_M+4}, s{S_M+4}, s13")
    if cfg['touch'] == 1: g.touch_w()
    nb1 = cfg["nb1"]
    g.kgen_post()
    g.w_issue_l(range(0, nb1))
    g.stamp(3)
    g.hbuild(after_first=lambda: (g.p0_mod(1, 0, base=60), g.w_issue_l(range(nb1, cfg['nbp']))), mid=lambda: g.w_chunks(range(cfg['nbp'], cfg['nb2'])))
    sk = g.lab("hm")
    e(f"s_cmp_lt_u32 s{S_IDX}, 28\ns_cbranch_scc1 {sk}")
    for i in g.cap(g.modf_issue):
        if i.text.startswith("buffer_"): g.p.nc(i.text)
        else: g.p.put([i])
    g.label(sk)
    if cfg['touch'] == 3: g.touch_w()
    if cfg['twd'] == 2: g.touch_wd(2)
    cap = g.cap
    nb2 = cfg["nb2"]; nr = cfg["nrec"]
    fa = cap(lambda: g.w_issue_l(range(nb2, 13)))
    fb = [] if not nr else cap(lambda: (g.wait(g.wt[nr-1]), e("s_barrier"), hold.__setitem__("r", g.w_read_l(range(0, nr)))))
    fc = cap(lambda: (g.wait(hold["r"]), e("s_barrier"), g.w_issue_l(range(13, 13 + nr))))
    f6 = []
    f5, hold["late"] = g.capture(g.late_issue)
    g.cfg["cflush"] = (3,)
    g.conv(fillers={0: fa, cfg["itb"]: fb + f5 + fc + cap(lambda: g.late_fin(hold["late"])) + f6}, pre_bar=lambda: g.wait(g.wt[12]))
    assert not any(i.text.startswith("s_barrier") for i in g.conv_left if i.wait is None), len(g.conv_left)
    sys.stderr.write(f"conv left {len(g.conv_left)}\n")
    g.p.put(g.conv_left)
    e(f"s_cmp_ge_u32 s{S_IDX}, 28\ns_cbranch_scc1 F_alt")
    g.modf_pub()
    g.shadow1()
    g.gemm1f()
    g.label("F_g2")
    def alt():
        g.label("F_alt")
        g.u_job(); g.stamp(10)
        g.stats2_job(g.u_pub); g.modf_pub()
        g.wd_setup(); g.g2_setup()
        keep = dict(g.wdt); keep2 = dict(g.ht); done = set()
        while len(done) < len(keep):
            batch = [ks for ks in sorted(keep) if ks not in done and (ks not in g.WPREV or g.WPREV[ks] in done)]
            for ks in batch: g.wd_issue(ks)
            e("s_waitcnt vmcnt(0)")
            for ks in batch:
                if ks in g.rd: g.wd_read(ks)
            e("s_waitcnt lgkmcnt(0)")
            done |= set(batch)
        e("v_min_u32 v140, 27, v1\nv_lshlrev_b32 v140, 10, v140")
        pr = lambda: e(f"buffer_load_dword v144, v140, s[{S_WS}:{S_WS+3}], s{S_M+4} offen sc1\ns_waitcnt vmcnt(0)")
        pr()
        g.guard("fa", lambda ex: e(f"v_xor_b32 v144, s{TG[0]}, v144\nv_and_b32 v144, 0x00010001, v144\nv_cmp_ne_u32 vcc, 0, v144"), pr)
        for (nt_, ks) in list(keep2): g.hl(0, ks, 147)
        g.wdt = keep; g.ht.update(keep2)
        e("s_waitcnt vmcnt(0)\ns_branch F_g2")
    g.ool += g.cap(alt)
    g.gemm2f(); g.bump_epoch()
    launch = f"; @launch grid=(256,1,1) block=(256,1,1) lds={LDS_BYTES}\n"
    return hdr + launch + '.amdgcn_target "amdgcn-amd-amdhsa--gfx950"\n' + kernel_text(KN, g.finish())

if __name__ == "__main__":
    over = {}
    for a in sys.argv[1:]:
        if "=" in a:
            k, v = a.split("="); over[k] = int(v)
    print(build(stamps="stamps" in sys.argv[1:], over=over))
```

```python
import re

TRANS = ("v_exp_f32", "v_log_f32", "v_rcp_f32", "v_rsq_f32", "v_sqrt_f32", "v_sin_f32", "v_cos_f32")

class Ins:
    __slots__ = ("text", "kind", "tok", "wait", "note")
    def __init__(self, text, kind=None, tok=None, wait=None):
        self.text = text; self.kind = kind; self.tok = tok; self.wait = wait

def _expand(op):
    op = op.strip()
    op = re.sub(r"^-", "", op)
    m = re.match(r"^abs\((.*)\)$", op)
    if m: op = m.group(1)
    op = op.strip("|")
    m = re.match(r"^([vas])(\d+)$", op)
    if m: return [(m.group(1), int(m.group(2)))]
    m = re.match(r"^([vas])\[(\d+):(\d+)\]$", op)
    if m: return [(m.group(1), i) for i in range(int(m.group(2)), int(m.group(3)) + 1)]
    if op == "vcc": return [("s", 106), ("s", 107)]
    if op == "vcc_lo": return [("s", 106)]
    if op == "vcc_hi": return [("s", 107)]
    if op == "m0": return [("s", 124)]
    if op == "exec": return [("s", 126), ("s", 127)]
    return []

def parse(text):
    t = text.split(";")[0].strip()
    parts = t.split(None, 1)
    mn = parts[0]
    ops = []
    if len(parts) > 1:
        depth = 0; cur = ""
        for ch in parts[1]:
            if ch in "[(": depth += 1
            if ch in "])": depth -= 1
            if ch == "," and depth == 0:
                ops.append(cur.strip()); cur = ""
            else: cur += ch
        ops.append(cur.strip())
        ops = [o.split()[0] if o and not o.startswith("hwreg") else o for o in ops]
    return mn, ops

def classify(text):
    mn, ops = parse(text)
    base = re.sub(r"_(e32|e64|dpp|sdwa)$", "", mn)
    d = dict(mn=base, kind="other", dst=set(), src=set(), srcc=set(), srcab=set(), passes=0, dpp=False, wide_store=set(), _ops=(mn, ops))
    E = lambda i: set(_expand(ops[i])) if i < len(ops) else set()
    allops = lambda a: set().union(*[E(i) for i in range(a, len(ops))]) if len(ops) > a else set()
    if base.startswith("v_mfma"):
        d["kind"] = "mfma"; d["dst"] = E(0); d["srcab"] = E(1) | E(2); d["srcc"] = E(3); d["src"] = d["srcab"] | d["srcc"]
        d["passes"] = 8 if "32x32" in base else 4
    elif base.startswith("v_"):
        d["kind"] = "valu"
        if base in TRANS: d["kind"] = "trans"
        d["dpp"] = mn.endswith("_dpp") or "row_" in text or "quad_perm" in text
        if base.startswith("v_cmp"):
            d["dst"] = E(0); d["src"] = allops(1)
        elif base in ("v_readlane_b32", "v_readfirstlane_b32"):
            d["dst"] = E(0); d["src"] = allops(1); d["kind"] = "readlane"
        elif base.startswith("v_permlane") and "swap" in base:
            d["dst"] = E(0) | E(1); d["src"] = E(0) | E(1); d["kind"] = "permlane"
        elif base in ("v_add_co_u32", "v_addc_co_u32", "v_sub_co_u32"):
            d["dst"] = E(0) | E(1); d["src"] = allops(2)
        else:
            d["dst"] = E(0); d["src"] = allops(1)
            if base in ("v_fmac_f32", "v_dot2c_f32_bf16", "v_writelane_b32") or d["dpp"] or "sdwa" in mn: d["src"] |= E(0)
            if base == "v_cndmask_b32" and len(ops) == 3: d["src"] |= {("s", 106), ("s", 107)}
    elif base.startswith("ds_"):
        d["kind"] = "ds"
        if "read" in base or "permute" in base or "swizzle" in base:
            d["dst"] = E(0); d["src"] = allops(1)
        else: d["src"] = allops(0)
        if "addtid" in base: d["ldsdma"] = True
    elif base.startswith("buffer_") or base.startswith("global_"):
        d["kind"] = "vmem"
        lds = " lds" in text or "_lds_" in base
        if base in ("buffer_inv", "buffer_wbl2"): pass
        elif "load" in base and not lds:
            d["dst"] = E(0); d["src"] = allops(1)
            if "d16" in base: d["src"] |= E(0)
        elif lds:
            d["src"] = allops(0) | {("s", 124)}; d["ldsdma"] = True
        else:
            d["src"] = allops(0)
            if base.endswith("x4") or base.endswith("x3"):
                d["wide_store"] = E(0) if base.startswith("buffer_") else E(1)
            if "atomic" in base and " sc0" in text: d["dst"] = E(0)
    elif base.startswith("s_"):
        d["kind"] = "salu"
        if base.startswith("s_load") or base.startswith("s_memtime") or base.startswith("s_memrealtime"):
            d["kind"] = "smem"; d["dst"] = E(0); d["src"] = allops(1)
        elif base.startswith("s_cmp") or base.startswith("s_cbranch") or base in ("s_branch", "s_barrier", "s_waitcnt", "s_nop", "s_endpgm", "s_setprio", "s_sleep") or base.startswith("s_bitcmp"):
            d["src"] = allops(0)
        else:
            d["dst"] = E(0); d["src"] = allops(1)
            if "saveexec" in base: d["dst"] |= {("s", 126), ("s", 127)}
        if base == "s_nop": d["nop"] = int(ops[0], 0) + 1
    return d

def need_states(p, c):
    n = 0
    pv = p["kind"] in ("valu", "trans", "readlane", "permlane")
    cv = c["kind"] in ("valu", "trans", "readlane", "permlane")
    vd = {r for r in p["dst"] if r[0] in "va"}
    sd = {r for r in p["dst"] if r[0] == "s"}
    if pv:
        if c["kind"] == "mfma" and vd & c["src"]: n = max(n, 2)
        if cv and c["dpp"] and vd & c["src"]: n = max(n, 2)
        if c["kind"] == "readlane" and vd & c["src"]: n = max(n, 1)
        if c["kind"] == "permlane" and vd & c["src"]: n = max(n, 2)
        if p["kind"] == "trans" and cv and vd & c["src"] and c["kind"] != "trans": n = max(n, 1)
        if p["kind"] == "trans" and c["kind"] == "trans" and vd & c["src"]: n = max(n, 1)
        if p["kind"] == "trans" and c["kind"] in ("ds", "vmem") and vd & c["src"]: n = max(n, 1)
        if sd:
            if cv and sd & c["src"]: n = max(n, 4 if c["kind"] == "readlane" else 2)
            if c["kind"] == "vmem" and sd & c["src"]: n = max(n, 5)
            if c["kind"] in ("salu", "smem") and sd & c["src"]: n = max(n, 1)
            if c["mn"] in ("s_cbranch_vccz", "s_cbranch_vccnz") and sd & {("s", 106), ("s", 107)}: n = max(n, 1)
    if p["mn"].startswith("v_dot2") and vd:
        if c["mn"] == p["mn"]:
            mn_, ops_ = c["_ops"]
            ab = set(_expand(ops_[1])) | set(_expand(ops_[2]))
            if vd & ab: n = max(n, 3)
        elif vd & (c["src"] | c["dst"]): n = max(n, 3)
    if p["kind"] == "mfma":
        P = p["passes"]
        big = {4: 8, 8: 12}[P]; mid = {4: 6, 8: 10}[P]; war = {4: 3, 8: 7}[P]
        if c["kind"] == "mfma":
            if vd & c["srcab"]: n = max(n, big)
            if vd & c["srcc"]:
                if not (c["srcc"] == p["dst"] and c["passes"] == P): n = max(n, mid)
            if vd & c["dst"] and not vd & c["srcc"]: n = max(n, mid)
        elif cv or c["kind"] in ("ds", "vmem"):
            if vd & (c["src"] | c["dst"]): n = max(n, big)
        if cv and p["srcc"] & c["dst"]: n = max(n, war)
    if p["kind"] == "vmem" and p["wide_store"]:
        if p["wide_store"] & c["dst"]: n = max(n, 2)
    if p["kind"] == "salu" and ("s", 124) in p["dst"] and c.get("ldsdma"): n = max(n, 1)
    return n

class Prog:
    def __init__(self):
        self.ins = []
        self.ntok = 0
    def e(self, text):
        for line in text.strip().split("\n"):
            line = line.strip()
            if line: self.ins.append(Ins(line))
    def tok(self, text):
        self.ntok += 1
        self.ins.append(Ins(text, tok=self.ntok))
        return self.ntok
    def wait(self, *toks):
        toks = [t for t in toks if t is not None]
        flat = []
        for t in toks:
            if isinstance(t, (list, tuple)): flat += list(t)
            else: flat.append(t)
        if flat: self.ins.append(Ins("WAIT", wait=flat))
    def wait_nt(self, tok):
        self.ins.append(Ins("WAIT", kind="nt", wait=[tok]))
    def nc(self, text): self.ins.append(Ins(text, kind="nc"))
    def label(self, name): self.ins.append(Ins(name + ":", kind="label"))
    def take(self):
        r = self.ins; self.ins = []; return r
    def put(self, lst): self.ins += lst

def resolve(ins):
    out = []
    vm = []
    lg = []
    smem_out = False
    seen = set()
    for i in ins:
        if i.tok: seen.add(i.tok)
        if i.wait is not None:
            for t in i.wait: assert t in seen, f"wait on token {t} before issue"
            nv = None; nl = None
            for t in i.wait:
                if t in vm:
                    k = len(vm) - 1 - vm.index(t)
                    nv = k if nv is None else min(nv, k)
                elif t in lg:
                    k = len(lg) - 1 - lg.index(t)
                    if smem_out: k = 0
                    nl = k if nl is None else min(nl, k)
            s = []
            if i.kind == "nt":
                if nv is not None: out.append(Ins(f"s_waitcnt vmcnt({min(nv, 63)})"))
                continue
            if nv is not None:
                nv = min(nv, 63); s.append(f"vmcnt({nv})"); vm = vm[len(vm) - nv:] if nv else []
            if nl is not None:
                nl = min(nl, 15); s.append(f"lgkmcnt({nl})"); lg = lg[len(lg) - nl:] if nl else []
                if nl == 0: smem_out = False
            if s: out.append(Ins("s_waitcnt " + " ".join(s)))
            continue
        if i.kind == "label":
            out.append(i); continue
        mn = i.text.split()[0]
        if i.kind == "nc":
            pass
        elif mn.startswith("buffer_") or mn.startswith("global_"):
            vm.append(i.tok)
        elif mn.startswith("ds_"):
            lg.append(i.tok)
        elif mn.startswith("s_load") or mn.startswith("s_memtime") or mn.startswith("s_memrealtime"):
            lg.append(i.tok); smem_out = True
        elif mn == "s_waitcnt":
            m = re.search(r"vmcnt\((\d+)\)", i.text)
            if m:
                n = int(m.group(1)); vm = vm[len(vm) - n:] if n and n <= len(vm) else ([] if n == 0 else vm)
            m = re.search(r"lgkmcnt\((\d+)\)", i.text)
            if m:
                n = int(m.group(1)); lg = lg[len(lg) - n:] if n and n <= len(lg) else ([] if n == 0 else lg)
                if n == 0: smem_out = False
        out.append(i)
    return out

def pad_hazards(ins, window=24):
    out = []; hist = []
    nins = 0
    for i in ins:
        if i.kind == "label" or i.text.startswith(".") or i.text.startswith("WARM"):
            out.append(i); continue
        c = classify(i.text)
        need = 0; dist = 0
        for p in reversed(hist):
            n = need_states(p, c)
            if n - dist > need: need = n - dist
            dist += p.get("nop", 1)
            if dist >= window: break
        while need > 0:
            k = min(need, 16)
            t = f"s_nop {k-1}"
            out.append(Ins(t)); hist.append(classify(t)); need -= k; nins += 1
        out.append(i); hist.append(c)
        if len(hist) > 64: hist = hist[-40:]
    return out, nins

def _isscalar(i):
    return i.kind != "label" and (i.wait is not None or i.text.startswith("s_"))
def _isv(i): return i.wait is None and i.kind != "label" and (i.text.startswith("buffer_") or i.text.startswith("global_"))
def _cost(i):
    if i.kind == "label": return 0
    if i.wait is not None: return 4
    mn = i.text.split()[0]
    if re.sub(r"_(e32|e64)$", "", mn) in TRANS: return 8
    if mn.startswith("ds_write_b128"): return 20
    if mn.startswith("buffer_store_dwordx4"): return 16
    if mn.startswith("buffer_") or mn.startswith("global_"): return 8
    return 4
def merge(main, fill, slots, pace=2, start=0, side=None):
    out = []; fi = 0; fill = list(fill)
    n = len(main); k = 0; nm = 0; lastv = -99
    ism = lambda i: i.wait is None and i.kind != "label" and i.text.startswith("v_mfma")
    while k < n:
        i = main[k]; out.append(i); k += 1
        if not ism(i): continue
        nm += 1
        seg = []
        while k < n and not ism(main[k]):
            seg.append(main[k]); k += 1
        free = True
        if seg and seg[-1].wait is not None and not any(s.tok in seg[-1].wait for s in seg if s.tok) and not any(s.wait is None and s.text.startswith("s_barrier") for s in seg):
            out.append(seg.pop()); free = False
        elif seg and _isscalar(seg[0]):
            out.append(seg.pop(0)); free = False
        elif len(seg) > 2 and seg[0].text.startswith("ds_read") and seg[1].text.startswith("ds_read") and seg[2].wait is None and seg[2].kind != "label" and seg[2].text.startswith("s_add"):
            out.append(seg.pop(2)); free = False
        elif side and nm - lastv >= pace and _isscalar(side[0]): pass
        elif nm > start and fi < len(fill) and _isscalar(fill[fi]):
            out.append(fill[fi]); fi += 1; free = False
            while fi < len(fill) and fill[fi].kind == "label": out.append(fill[fi]); fi += 1
        tail = []
        while seg and (seg[-1].wait is not None or seg[-1].text.startswith("s_waitcnt") or seg[-1].text.startswith("s_barrier")):
            tail.insert(0, seg.pop())
        used = sum(_cost(s) for s in seg) + sum(_cost(s) for s in tail)
        out += seg
        if side and nm - lastv >= pace:
            k2 = 0
            while k2 < len(side) and not _isv(side[k2]): k2 += 1
            part = side[:k2+1]; del side[:k2+1]
            if free and part and _isscalar(part[0]):
                pos = len(out) - len(seg); out.insert(pos, part.pop(0))
            out += part; used += sum(_cost(s) for s in part); lastv = nm
        hadv = any(s.wait is None and s.kind != "label" and s.text.startswith("v_") for s in seg)
        while nm > start and fi < len(fill):
            f = fill[fi]
            fits = used + _cost(f) <= slots + (4 if _isv(f) else 0) or used == 0
            mem = f.wait is None and f.kind != "label" and (f.text.startswith("ds_") or _isv(f))
            if fits and mem and hadv: fits = False
            if fits and _isv(f) and nm - lastv < pace: fits = False
            if fits and _isscalar(f) and used + 8 > slots: fits = False
            if fits:
                if _isv(f): lastv = nm
                if f.wait is None and f.kind != "label" and f.text.startswith("v_"): hadv = True
                used += _cost(f); out.append(f); fi += 1
                while fi < len(fill) and fill[fi].kind == "label": out.append(fill[fi]); fi += 1
                continue
            if used + 4 > slots: break
            got = None; blockd = set(); blocks = set()
            for j in range(fi, min(len(fill), fi + 10)):
                g = fill[j]
                if g.wait is not None or g.kind == "label" or g.text.startswith("s_cbranch") or g.text.startswith("s_barrier") or g.text.startswith("v_cmp") or g.text.startswith("v_mfma"): break
                cg = classify(g.text)
                if j > fi and cg["kind"] == "valu" and not cg["dpp"] and _cost(g) == 4 and not (cg["src"] & blockd) and not (cg["dst"] & (blockd | blocks)):
                    pc = classify(out[-1].text) if out[-1].wait is None and out[-1].kind != "label" else None
                    if not (pc and pc["kind"] == "trans" and pc["dst"] & cg["src"]):
                        got = j; break
                blockd |= cg["dst"]; blocks |= cg["src"]
            if got is None: break
            g = fill.pop(got); out.append(g); used += 4; hadv = True
        out += tail
    return out, fill[fi:]

def spread(a, b):
    out = []; nb = len(b); bi = 0
    step = len(a) / (nb + 1) if nb else 0
    nxt = step
    for idx, ins in enumerate(a):
        while bi < nb and idx >= max(nxt, b[bi][0]):
            out += b[bi][1]; bi += 1; nxt = max(nxt + step, idx + step * 0.6)
            break
        out.append(ins)
    for c in b[bi:]: out += c[1]
    return out

def weave(a, b, every):
    out = []; bi = 0; cnt = 0
    for ins in a:
        if cnt >= every and bi < len(b) and ins.wait is None and ins.kind != "label" and ins.text.startswith("v_") and not ins.text.startswith("v_cmp"):
            out += b[bi]; bi += 1; cnt = 0
        out.append(ins); cnt += 1
    for c in b[bi:]: out += c
    return out

def check_labels(ins):
    for k, i in enumerate(ins):
        if i.kind == "label" and re.match(r"LF_(x|mf|gt|st|f0|lt|hc|g2|fa|ss)b_\d+:", i.text):
            assert ins[k-1].text.startswith("s_cbranch_vccnz"), (i.text, ins[k-1].text)

def render(ins):
    return "\n".join(("" if i.kind == "label" else "    ") + i.text for i in ins)


import subprocess, tempfile, os
def sizes_of(ins):
    body = "\n".join(i.text for i in ins if not i.text.startswith("WARM"))
    src = '.amdgcn_target "amdgcn-amd-amdhsa--gfx950"\n.text\n' + body + "\n"
    d = tempfile.mkdtemp()
    open(d + "/a.s", "w").write(src)
    subprocess.run(["clang", "-x", "assembler", "-target", "amdgcn-amd-amdhsa", "-mcpu=gfx950", "-c", d + "/a.s", "-o", d + "/a.o"], check=True)
    out = subprocess.run(["llvm-objdump", "-d", "--mcpu=gfx950", d + "/a.o"], capture_output=True, text=True).stdout
    sz = []
    for l in out.splitlines():
        m = re.search(r"// [0-9A-F]+: ((?:[0-9A-F]{8} ?)+)", l)
        if m: sz.append(4 * len(m.group(1).split()))
    return sz

def add_warm(ins, nw=4, line=128):
    sz = sizes_of([i for i in ins])
    def call(k):
        r = [Ins("s_mov_b64 exec, 0")]
        for w in range(nw - 1): r += [Ins(f"s_cmp_eq_u32 s70, {w}"), Ins(f"s_cbranch_scc1 WS{k}_{w}")]
        r += [Ins(f"s_branch WS{k}_{nw-1}"), Ins(f"WB{k}:", kind="label"), Ins("s_mov_b64 exec, -1")]
        return r, 4 + 8 * (nw - 1) + 4 + 4
    out = []; off = 0; si = 0; reg = -1; stubs = {}
    seq = []
    for i in ins:
        if i.text.startswith("WARM") or i.kind == "label": seq.append((i, 0))
        else: seq.append((i, sz[si])); si += 1
    assert si == len(sz), (si, len(sz))
    have = -1; insave = False; k = 0; n = len(seq)
    def ok_after(prev, nxt):
        if prev is None: return True
        t = prev.text
        if "exec" in t.split(",")[0] or insave: return False
        if nxt is not None and nxt.kind == "label": return False
        if t.startswith("s_branch") or t.startswith("s_endpgm"): return False
        return True
    prev = None
    while k < n:
        i, s_ = seq[k]
        if i.text.startswith("WARMCALL"):
            c, b = call(int(i.text.split()[1])); out += c; off += b; prev = c[-1]; k += 1; continue
        if i.text.startswith("WARMREG"):
            reg = int(i.text.split()[1]); k += 1; continue
        if reg >= 0 and i.kind != "label" and off // line != have:
            rem = line - off % line; o2 = 0; better = False
            for j in range(k, min(n, k + 40)):
                if seq[j][0].text.startswith("WARM"): break
                o2 += seq[j][1]
                if o2 + 4 > rem: break
                nx = seq[j+1][0] if j + 1 < n else None
                if seq[j][0].text.startswith("v_mfma") and nx is not None and nx.kind != "label" and not nx.text.startswith("s_"): better = True; break
            free = prev is not None and prev.text.startswith("v_mfma") and not i.text.startswith("s_")
            if ok_after(prev, i) and (free or not better):
                st = Ins("STUB"); stubs.setdefault(reg, []).append(st)
                lab = Ins("STUBLAB", kind="label"); st.note = lab
                out += [lab, st]; off += 4; have = (off - 4) // line; prev = st
        if "saveexec" in i.text: insave = True
        elif i.text.startswith("s_mov_b64 exec"): insave = False
        out.append(i); off += s_
        if i.kind != "label": prev = i
        k += 1
    for r, l in stubs.items():
        per = -(-len(l) // nw)
        for j, st in enumerate(l):
            w, p = divmod(j, per)
            st.note.text = f"WS{r}_{w}:" if p == 0 else f"WT{r}_{j}:"
            last = (p == per - 1) or j == len(l) - 1
            st.text = f"s_cbranch_execz WB{r}" if last else f"s_cbranch_execz WT{r}_{j+1}"
        for w in range(nw):
            assert w * per < len(l), "region too small"
    return out, {r: len(l) for r, l in stubs.items()}
```

```python
import sys, struct, math
from asmlib import *
KN = "adaLN_cond__ssm_conv_s4__glu_gated_geglu__prompt_kernel"
WS_ST1 = 0x1000; WS_MODP = 0x8000; WS_MODF = 0x20000; WS_ST2 = 0x24000
WS_FL1 = 0x28000; WS_FL3 = 0x2C000; WS_FL2 = 0x40000; WS_U = 0x80000; WS_XB = int(__import__('os').environ.get('XB', '0xC00000'), 0); WS_DBG = 0x1000000; WS_X1 = 0x100000; WS_X1S = 0x300000; WS_H = 0x500000; WS_SIZE = 0x1200000
L_TAB = 0; TABW = 17408; TPITCH = 272
L_K = 69632; KCH = 8320; KODD = 4164
L_HI = 86272; HCH = 4608
L_Z = 95488
L_MOD = 111872
L_SP = 131072
L_XT = 155648
L_SS = L_XT
L_XR2 = L_XT
LDS_BYTES = 163840
_POOL = [L_SP, L_SP + 8192, L_SP + 16384, L_MOD, L_MOD + 8192] + [L_TAB + 8192*i for i in range(8)]
def wslot(ks):
    if ks < 26: return _POOL[ks % 13]
    if ks < 29: return L_SP + 8192*(ks-26)
    return L_TAB + 8192*(ks-29)
S_WS = 4; S_WG = 8; S_WU = 12
P_X, P_ARE, P_AIM, P_BRE, P_BIM, P_CRE, P_CIM, P_LDT, P_DSK, P_BX, P_WG, P_WU, P_WD, P_C, P_WM, P_OUT, P_DBG, P_WS = [16 + 2 * i for i in range(18)]
S_X = 52; S_WM = 56; S_WD = 60; S_OUT = 64
S_TAG = 68; S_E = 69; S_WV = 70; S_D0 = 71; S_LDT = 72; S_DSK = 73
S_T0 = 74; S_T1 = 75; S_T2 = 76; S_T3 = 77; S_SPIN = 78; S_IDX = 79; S_XCD = 80
S_M = 82
S_EX = 94
S_ST = 96
S45 = 45; S46 = 46
S_CH = 16; S_PAR = 17
S_G1 = 98; S_G2 = 99; S_G3 = 100
SENT = 0xFFFFFFFF
TG = [3, 31]
BA = [124, 125, 126, 127, 141, 142, 2, 3]
def f2u(x): return struct.unpack("<I", struct.pack("<f", x))[0]
def hx(x): return "0x%08x" % (x & 0xFFFFFFFF)
def fl(x): return hx(f2u(x))
LOG2E = 1.4426950408889634
GAM = (2 * 0.7978845608028654 * LOG2E * 0.044715) ** (1.0 / 3)
GC = 2 * 0.7978845608028654 * LOG2E / GAM
def vr(b, n): return f"v[{b}:{b+n-1}]" if n > 1 else f"v{b}"
def ar(b, n): return f"a[{b}:{b+n-1}]" if n > 1 else f"a{b}"
def sr(b, n): return f"s[{b}:{b+n-1}]" if n > 1 else f"s{b}"
class G:
    def __init__(self, cfg):
        self.cfg = cfg; self.p = Prog(); self.nlab = 0; self.nstamp = 0; self.ool = []
    def lab(self, base):
        self.nlab += 1; return f"L{self.cfg['uid']}_{base}_{self.nlab}"
    def e(self, t): self.p.e(t)
    def tok(self, t): return self.p.tok(t)
    def wait(self, *t): self.p.wait(*t)
    def label(self, l): self.p.label(l)
    def stamp(self, i):
        if not self.cfg.get("stamps"): return
        e = self.e
        e(f"s_memtime s[{S_ST}:{S_ST+1}]")
        e("s_waitcnt lgkmcnt(0)")
        e(f"v_writelane_b32 v255, s{S_ST}, {i}")
    def stamp_flush(self):
        if not self.cfg.get("stamps"): return
        e = self.e
        e(f"s_memrealtime s[{S_ST}:{S_ST+1}]")
        e("s_waitcnt lgkmcnt(0)")
        e(f"v_writelane_b32 v255, s{S_ST}, 63")
        e(f"s_lshl_b32 s{S_T0}, s2, 10")
        e(f"s_add_u32 s{S_T0}, s{S_T0}, {WS_DBG + self.cfg.get('dbgoff', 0)}")
        e("v_lshlrev_b32 v254, 2, v0")
        e(f"buffer_store_dword v255, v254, s[{S_WS}:{S_WS+3}], s{S_T0} offen")
        if self.cfg.get("dbgout"):
            sk = self.lab("dbg")
            e(f"s_cmp_lg_u32 s2, {self.cfg['dbgout']}\ns_cbranch_scc1 {sk}\ns_cmp_lg_u32 s{S_WV}, 0\ns_cbranch_scc1 {sk}")
            e(f"v_readlane_b32 s{S_T1}, v255, 0\nv_readlane_b32 s{S_T2}, v255, 62\nv_readlane_b32 s{S_T3}, v255, 63\nv_mov_b32 v4, 0")
            for i, st in enumerate([1, 2, 23, 22, 21, 3, 4, 5, 6, 7, 12, 14, 16, 19, 18]):
                e(f"v_readlane_b32 s{S_T0}, v255, {st}\ns_sub_u32 s{S_T0}, s{S_T0}, s{S_T1}\nv_mov_b32 v3, s{S_T0}")
                e(f"global_store_dword v4, v3, s[{P_DBG}:{P_DBG+1}] offset:{4*i}")
            e(f"s_sub_u32 s{S_T0}, s{S_T3}, s{S_T2}\nv_mov_b32 v3, s{S_T0}")
            e(f"global_store_dword v4, v3, s[{P_DBG}:{P_DBG+1}] offset:60")
            self.label(sk)
    def srd(self, s, ptr, size):
        self.e(f"s_mov_b32 s{s}, s{ptr}\ns_mov_b32 s{s+1}, s{ptr+1}\ns_mov_b32 s{s+2}, {hx(size)}\ns_mov_b32 s{s+3}, 0x20000")
    def prologue(self):
        e = self.e
        self.label("F_first")
        e("s_cmp_ge_u32 s2, 256")
        e(f"s_cbranch_scc1 {self.cfg['uid']}_end")
        e("s_load_dwordx16 s[16:31], s[0:1], 0")
        e("s_load_dwordx16 s[32:47], s[0:1], 64")
        e("s_load_dwordx4 s[48:51], s[0:1], 128")
        if self.cfg.get("stamps"):
            e("v_mov_b32 v255, 0")
            e(f"s_memrealtime s[{S_ST}:{S_ST+1}]")
        if self.cfg.get("hold"): e("s_memrealtime s[34:35]" if False else "s_nop 0")
        if self.cfg.get("cpf"):
            n = self.cfg["cpf"]
            e("s_getpc_b64 s[4:5]\ns_and_b32 s4, s4, 0xffffff00")
            e(f"s_lshr_b32 s6, s2, 3\ns_mul_i32 s6, s6, {n*128}\nv_min_u32 v254, {n-1}, v0\nv_lshlrev_b32 v254, 7, v254\nv_add_u32 v254, s6, v254" + (f"\nv_min_u32 v254, F_last - F_first, v254" if n > 10 else ""))
            e("global_load_dword v196, v254, s[4:5]")
        e("v_and_b32 v1, 63, v0")
        e("v_lshrrev_b32 v2, 6, v0")
        e(f"s_and_b32 s{S_XCD}, s2, 7")
        e(f"v_readfirstlane_b32 s{S_WV}, v2")
        e(f"s_lshr_b32 s{S_IDX}, s2, 3")
        e(f"s_lshl_b32 s{S_D0}, s{S_XCD}, 5")
        e(f"s_add_u32 s{S_D0}, s{S_D0}, s{S_IDX}")
        e(f"s_lshl_b32 s{S_D0}, s{S_D0}, 1")
        e(f"s_lshl_b32 s{S_T0}, s2, 13\ns_lshl_b32 s{S_T1}, s{S_WV}, 11\ns_add_u32 s{S_T0}, s{S_T0}, s{S_T1}")
        e("v_lshlrev_b32 v9, 4, v1")
        e("v_lshrrev_b32 v4, 3, v1\nv_and_b32 v5, 7, v1\nv_lshlrev_b32 v5, 4, v5\nv_lshl_add_u32 v3, v4, 10, v5")
        e(f"s_lshl_b32 s{S_T3}, s{S_IDX}, 16\ns_lshl_b32 s{S_T2}, s{S_XCD}, 7\ns_add_u32 s{S_T3}, s{S_T3}, s{S_T2}")
        e(f"s_lshl_b32 s{S_T2}, s{S_WV}, 14\ns_add_u32 s{S_T3}, s{S_T3}, s{S_T2}")
        e(f"s_add_u32 m0, s{S_T1}, {L_XT}")
        e(f"v_add_u32 v6, {8192 - 1024}, v3")
        e(f"s_lshl_b32 s{S_T2}, s{S_D0}, 8\nv_lshl_add_u32 v8, v0, 1, s{S_T2}")
        e(f"s_mul_i32 s{S_M}, s2, 1366\ns_lshr_b32 s{S_M}, s{S_M}, 16")
        e(f"s_mul_i32 s{S_M+2}, s{S_M}, 48\ns_sub_u32 s{S_M+1}, s2, s{S_M+2}")
        e(f"s_and_b32 s{S_M+2}, s{S_M}, 3\ns_lshl_b32 s{S_M+2}, s{S_M+2}, 8\nv_lshl_add_u32 v7, v1, 2, s{S_M+2}")
        e("v_mul_u32_u24 v33, 6144, v4\nv_add_u32 v33, v33, v5")
        e(f"s_mul_i32 s{S_M+2}, s{S_M}, {128*6144}\ns_lshl_b32 s{S_M+3}, s{S_M+1}, 7\ns_add_u32 s{S_M+2}, s{S_M+2}, s{S_M+3}")
        e(f"s_mul_i32 s{S_M+3}, s{S_WV}, {32*6144}\ns_add_u32 s{S_M+2}, s{S_M+2}, s{S_M+3}")
        e(f"s_mov_b32 s{S_X+2}, {hx(2097152)}\ns_mov_b32 s{S_X+3}, 0x20000\ns_mov_b32 s{S_WM+2}, {hx(3145728)}\ns_mov_b32 s{S_WM+3}, 0x20000")
        e("s_waitcnt lgkmcnt(0)")
        if self.cfg.get("stamps"):
            e(f"v_writelane_b32 v255, s{S_ST}, 62")
        if self.cfg.get("hold"): e("s_memrealtime s[34:35]")
        self.stamp(0)
    def srds_late(self):
        self.srd(S_WS, P_WS, WS_SIZE)
        self.srd(S_WD, P_WD, 1835008)
        self.srd(S_OUT, P_OUT, 2097152)
    def tag_ready(self):
        e = self.e
        e("s_waitcnt lgkmcnt(0)")
        e(f"s_mul_i32 s{S_TAG}, s{S_E}, 0x9E3779B1")
        e(f"s_add_u32 s{S_TAG}, s{S_TAG}, 0x7F4A7C15")
        e(f"s_and_b32 s{TG[1]}, s{S_E}, 1\ns_and_b32 s{TG[0]}, s{S_E}, 2\ns_lshl_b32 s{TG[0]}, s{TG[0]}, 15\ns_or_b32 s{TG[0]}, s{TG[0]}, s{TG[1]}")
        e(f"s_xor_b32 s{TG[0]}, s{TG[0]}, 1\ns_xor_b32 s{TG[1]}, s{TG[0]}, 0x00010001")
    def reduce16(self, regs):
        for ctl in ["quad_perm:[1,0,3,2]", "quad_perm:[2,3,0,1]", "row_half_mirror", "row_mirror"]:
            for r in regs:
                self.e(f"v_add_f32_dpp v{r}, v{r}, v{r} {ctl} row_mask:0xf bank_mask:0xf")
    def stat_finish(self, vs, vq, t0, t1):
        e = self.e
        e(f"v_mul_f32 v{vs}, {fl(1/512)}, v{vs}")
        e(f"v_mul_f32 v{t0}, v{vs}, v{vs}")
        e(f"v_mul_f32 v{vq}, {fl(1/512)}, v{vq}")
        e(f"v_sub_f32 v{vq}, v{vq}, v{t0}")
        e(f"v_max_f32 v{vq}, 0, v{vq}")
        e(f"v_cvt_pk_bf16_f32 v{t0}, v{vq}, v{vq}")
        e(f"v_and_b32 v{t0}, 0xffff0000, v{t0}")
        e(f"v_add_f32 v{t0}, {fl(1e-5)}, v{t0}")
        e(f"v_cvt_pk_bf16_f32 v{t0}, v{t0}, v{t0}")
        e(f"v_and_b32 v{t0}, 0xffff0000, v{t0}")
        e(f"v_sqrt_f32 v{t0}, v{t0}")
        e(f"v_cvt_pk_bf16_f32 v{vs}, v{t0}, v{vs}")
    def cmul_list(self, jobs):
        e = self.e; i = 0
        f1 = lambda d, a, b: f"v_pk_mul_f32 {vr(d,2)}, {vr(a,2)}, {vr(b,2)} op_sel:[0,0] op_sel_hi:[0,1]"
        f2 = lambda d, a, b: f"v_pk_fma_f32 {vr(d,2)}, {vr(a,2)}, {vr(b,2)}, {vr(d,2)} op_sel:[1,1,0] op_sel_hi:[1,0,1] neg_lo:[0,1,0]"
        while i < len(jobs):
            j = jobs[i]
            if i + 1 < len(jobs) and j[0] not in jobs[i+1][1:] and jobs[i+1][0] not in j:
                k = jobs[i+1]
                e(f1(*j)); e(f1(*k)); e(f2(*j)); e(f2(*k)); i += 2
            else:
                e(f1(*j)); e(f2(*j)); i += 1
    def kgen_pre(self):
        e = self.e
        e("v_mov_b32 v36, 0\nv_mov_b32 v37, 0\nv_mov_b32 v38, 0\nv_mov_b32 v39, 0")
        e("v_lshrrev_b32 v3, 5, v0")
        e(f"v_mul_u32_u24 v3, {HCH}, v3")
        e("v_and_b32 v4, 31, v0")
        e("v_lshl_add_u32 v3, v4, 4, v3")
        e(f"v_add_u32 v3, {L_HI}, v3")
        e("v_bfe_u32 v4, v0, 2, 2")
        e(f"v_mul_u32_u24 v4, 4160, v4")
        e("v_and_b32 v5, 3, v0")
        e("v_lshl_add_u32 v4, v5, 4, v4")
        e(f"v_add_u32 v4, {L_K + 4096}, v4")
        e("v_cmp_gt_u32 vcc, 64, v0")
        e("v_cndmask_b32 v3, v4, v3, vcc")
        e("v_cmp_gt_u32 vcc, 80, v0")
        e(f"s_and_saveexec_b64 s[{S_EX}:{S_EX+1}], vcc")
        zl = self.lab("z")
        e(f"s_cbranch_execz {zl}")
        e("ds_write_b128 v3, v[36:39]")
        self.label(zl)
        e(f"s_mov_b64 exec, s[{S_EX}:{S_EX+1}]")
        e(f"s_lshr_b32 s{S_T0}, s{S_WV}, 1")
        e(f"s_lshl_b32 s{S_T0}, s{S_T0}, 4")
        e(f"s_lshr_b32 s{S_T1}, s{S_LDT}, s{S_T0}")
        e(f"s_lshl_b32 s{S_T1}, s{S_T1}, 16")
        e(f"v_mov_b32 v3, {fl(LOG2E)}")
        e(f"v_mul_f32 v3, s{S_T1}, v3")
        e("v_exp_f32 v3, v3")
        e("v_cvt_pk_bf16_f32 v3, v3, v3")
        e("v_and_b32 v35, 0xffff0000, v3")
    def kgen_tab(self, chunks=()):
        e = self.e
        keep = self.p.take()
        for i in range(6): e(f"v_lshlrev_b32 v{26+i}, 16, v{18+i}")
        e("v_mul_f32 v26, v26, v35\nv_mul_f32 v27, v27, v35\nv_mul_f32 v28, v28, v35\nv_mul_f32 v29, v29, v35")
        e(f"v_mul_f32 v26, {fl(LOG2E)}, v26")
        e("v_mul_f32 v27, 0.15915494, v27")
        S = lambda j: 40 + 2 * j
        Gt = lambda T: 74 + 2 * (T - 1)
        Pn = lambda n: 88 + 2 * n
        S32, S64, S128 = 138, 140, 142
        def direct(dst, t, a, b, c):
            if t == 1:
                e(f"v_exp_f32 v{a}, v26\nv_fract_f32 v{b}, v27")
            else:
                e(f"v_mul_f32 v{a}, {fl(float(t))}, v26\nv_mul_f32 v{b}, {fl(float(t))}, v27")
                e(f"v_exp_f32 v{a}, v{a}\nv_fract_f32 v{b}, v{b}")
            e(f"v_cos_f32 v{c}, v{b}\nv_sin_f32 v{b}, v{b}\ns_nop 0")
            e(f"v_mul_f32 v{dst}, v{a}, v{c}\nv_mul_f32 v{dst+1}, v{a}, v{b}")
        e(f"s_mul_i32 s{S_T3}, s{S_WV}, {TABW}\ns_mov_b32 m0, s{S_T3}")
        st = {"n": 0, "q": []}
        NBAT = 8
        def flush():
            for ent_, r_ in st["q"]: e(f"ds_write_addtid_b32 v{r_} offset:{L_TAB + ent_*TPITCH}")
            st["q"] = []
        def pair(ent, jobs, srcs, neg=False):
            self.cmul_list(jobs)
            for i in range(2):
                pk = 128 + (st["n"] % NBAT); st["n"] += 1
                if srcs[i] is None: e(f"v_mov_b32 v{pk}, 0x3f80")
                else: e(f"v_cvt_pk_bf16_f32 v{pk}, v{srcs[i]}, {'-' if neg else ''}v{srcs[i]+1}")
                st["q"].append((ent + i, pk))
            if len(st["q"]) == NBAT: flush()
        direct(S(1), 1, 120, 121, 122)
        pair(0, [], [None, S(1)])
        direct(S(16), 16, 123, 124, 125)
        pair(2, [(S(2), S(1), S(1)), (Pn(0), 30, 28), (S(3), S(2), S(1))], [S(2), S(3)])
        direct(Gt(1), 256, 120, 121, 122)
        pair(48, [(Pn(1), Pn(0), S(16)), (S32, S(16), S(16))], [Pn(0), Pn(1)], True)
        pair(4, [(S(4), S(2), S(2)), (S(5), S(3), S(2))], [S(4), S(5)])
        pair(6, [(S(6), S(4), S(2)), (S(7), S(4), S(3))], [S(6), S(7)])
        pair(50, [(Pn(2), Pn(0), S32), (Pn(3), Pn(1), S32), (S64, S32, S32)], [Pn(2), Pn(3)], True)
        pair(8, [(S(8), S(4), S(4)), (S(9), S(5), S(4))], [S(8), S(9)])
        pair(10, [(S(10), S(8), S(2)), (S(11), S(8), S(3))], [S(10), S(11)])
        pair(52, [(Pn(4), Pn(0), S64), (Pn(5), Pn(1), S64)], [Pn(4), Pn(5)], True)
        pair(54, [(Pn(6), Pn(2), S64), (Pn(7), Pn(3), S64), (S128, S64, S64)], [Pn(6), Pn(7)], True)
        pair(12, [(S(12), S(8), S(4)), (S(13), S(8), S(5))], [S(12), S(13)])
        pair(14, [(S(14), S(8), S(6)), (S(15), S(8), S(7))], [S(14), S(15)])
        aux = [[(Gt(2), Gt(1), Gt(1))], [(Gt(3), Gt(2), Gt(1))], [(Gt(4), Gt(2), Gt(2))], []]
        for i in range(4):
            pair(56 + 2*i, [(Pn(8+2*i), Pn(2*i), S128), (Pn(9+2*i), Pn(2*i+1), S128)] + aux[i], [Pn(8+2*i), Pn(9+2*i)], True)
        ents = {0: [(1, 0), (1, 2), (1, 4), (1, 6), (1, 8), (4, 0), (4, 8), (4, 16)],
                1: [(1, 8), (1, 10), (1, 12), (1, 14), (1, 16), (5, 0), (5, 8), (5, 16)],
                2: [(2, 0), (2, 4), (2, 8), (2, 12), (2, 16), (6, 0), (6, 8), (6, 16)],
                3: [(3, 0), (3, 4), (3, 8), (3, 12), (3, 16), (7, 0), (7, 8), (7, 16)]}
        extra = {(0, 0): (Gt(5), Gt(4), Gt(1)), (2, 0): (Gt(6), Gt(4), Gt(2)), (3, 0): (Gt(7), Gt(4), Gt(3))}
        tb = 0
        for q in range(4):
            for h in range(4):
                two = ents[q][2*h:2*h+2]; base = 88 + 4*(tb & 3); tb += 1
                jobs = []; srcs = []
                for i, (T, j) in enumerate(two):
                    if j == 0: srcs.append(Gt(T))
                    else: jobs.append((base + 2*i, Gt(T), S(j))); srcs.append(base + 2*i)
                if (q, h) in extra: jobs.append(extra[(q, h)])
                pair(16 + 16*(h >> 1) + 4*q + 2*(h & 1), jobs, srcs)
        body = self.p.take()
        out = []; ci = 0; nb = 0
        for k_, ins in enumerate(body):
            out.append(ins)
            last = ins.text.startswith("ds_write_addtid") and (k_ + 1 == len(body) or not body[k_+1].text.startswith("ds_write_addtid"))
            if last:
                nb += 1
                if nb > self.cfg["wa0"] and ci < len(chunks):
                    out += chunks[ci] + chunks[ci+1] + [Ins(f"s_mov_b32 m0, s{S_T3}")]; ci += 2
        for c in chunks[ci:]: out += c
        self.p.put(keep + out)

    def kgen_post(self, pre=None, mid=None):
        e = self.e
        e(f"s_lshr_b32 s{S_T2}, s{S_WV}, 1\ns_mul_i32 s{S_T0}, s{S_T2}, {2*TABW}")
        e(f"v_and_b32 v6, 15, v1\nv_mul_u32_u24 v3, {TPITCH}, v6")
        e("v_lshrrev_b32 v7, 4, v1\nv_lshl_add_u32 v3, v7, 4, v3")
        e(f"v_add_u32 v3, s{S_T0}, v3")
        e(f"s_and_b32 s{S_T1}, s{S_WV}, 1\ns_mul_i32 s{S_T1}, s{S_T1}, {16*TPITCH}\nv_add_u32 v4, s{S_T1}, v3")
        e(f"s_mul_i32 s{S_T2}, s{S_T2}, {KCH}\ns_add_u32 s{S_T2}, s{S_T2}, {L_K}")
        e(f"v_lshlrev_b32 v6, 5, v6\nv_sub_u32 v6, s{S_T2}, v6")
        e("v_lshlrev_b32 v9, 9, v7\nv_sub_u32 v9, v6, v9")
        if pre: pre()
        e("s_waitcnt lgkmcnt(0)\ns_barrier")
        self.stamp(21)
        F = 40; toks = {}
        for ks in range(8):
            o = L_TAB + (ks >> 2)*TABW + (ks & 3)*64; r = F + 12*ks
            self.tok(f"ds_read_b128 {vr(r+8,4)}, v3 offset:{o + 48*TPITCH}")
            toks[(ks, 0)] = self.tok(f"ds_read_b128 {vr(r,4)}, v4 offset:{o}")
            toks[(ks, 1)] = self.tok(f"ds_read_b128 {vr(r+4,4)}, v3 offset:{o + 32*TPITCH}")
        A0 = 136; A2 = 140
        for ks in range(8):
            r = F + 12*ks
            for b, acc in ((0, A0), (1, A2)):
                self.wait(toks[(ks, b)])
                e(f"v_mfma_f32_16x16x32_bf16 {vr(acc,4)}, {vr(r+4*b,4)}, {vr(r+8,4)}, {vr(acc,4) if ks else '0'}")
        if mid: mid()
        h1 = self.lab("kh1"); jn = self.lab("kj")
        e(f"s_bitcmp1_b32 s{S_WV}, 0\ns_cbranch_scc1 {h1}")
        def cv(d, lst):
            for i, (a, b) in enumerate(lst): e(f"v_cvt_pk_bf16_f32 v{d+i}, v{a}, v{b}")
        O = KODD - 4
        e("v_lshlrev_b32 v8, 3, v7\nv_sub_u32 v8, v6, v8")
        f0, f1, f2 = A2+1, A2+2, A2+3
        cv(52, [(f2, f2), (f2, f2), (f1, f1), (f1, f1), (f1, f1), (f1, f0), (f0, f0), (f0, f0)])
        e(f"ds_write_b128 v9, v[52:55] offset:{2*(2032-1024)}")
        cv(60, [(f2, f2), (f2, f2), (f2, f1), (f1, f1), (f1, f1), (f1, f1), (f0, f0), (f0, f0)])
        e(f"ds_write_b128 v9, v[56:59] offset:{2*(2032-1024)+16}")
        cv(48, [(A0+3, A0+2), (A0+1, A0), (A0+2, A0+1)])
        e(f"ds_write_b128 v9, v[60:63] offset:{2*(2032-1024) + O}")
        e(f"ds_write_b128 v9, v[64:67] offset:{2*(2032-1024) + O + 16}")
        e(f"ds_write_b64 v8, v[48:49] offset:{2*2044}")
        e(f"ds_write_b16 v8, v48 offset:{2*2044 + O + 2}")
        e(f"ds_write_b32 v8, v50 offset:{2*2044 + O + 4}")
        e(f"ds_write_b16_d16_hi v8, v49 offset:{2*2044 + O + 8}")
        e(f"s_branch {jn}")
        self.label(h1)
        e("v_lshlrev_b32 v8, 4, v7\nv_sub_u32 v8, v6, v8")
        E_ = lambda j: A0 + j if j < 4 else A2
        C = lambda lst: [(E_(a), E_(b)) for a, b in lst]
        cv(52, C([(4, 4), (3, 3), (3, 2), (2, 2), (2, 2), (1, 1), (1, 0), (0, 0)]))
        e("s_mov_b32 exec_lo, 0")
        e(f"ds_write_b128 v9, v[52:55] offset:{2*2032}\nds_write_b128 v9, v[56:59] offset:{2*2032+16}")
        e("s_mov_b32 exec_lo, -1")
        cv(60, C([(4, 4), (4, 3), (3, 3), (2, 2), (2, 2), (2, 1), (1, 1), (0, 0)]))
        e("s_mov_b32 exec_lo, 0")
        e(f"ds_write_b128 v9, v[60:63] offset:{2*2032 + O}\nds_write_b128 v9, v[64:67] offset:{2*2032 + O + 16}")
        e("s_mov_b32 exec_lo, -1")
        cv(40, C([(4, 3), (2, 2), (2, 1), (0, 0), (4, 4), (3, 2), (2, 2), (1, 0)]))
        e("s_mov_b32 exec_hi, 0")
        e(f"ds_write_b128 v8, v[40:43] offset:{2*(2040-256)}\nds_write_b128 v8, v[44:47] offset:{2*(2040-256) + O}")
        e(f"ds_write_b16 v8, v43 offset:{2*(2040-256) + O + 16}")
        e("s_mov_b32 exec_hi, -1")
        self.label(jn)

    def spin_check(self, retry_label, out_label=None):
        e = self.e
        e(f"s_sub_u32 s{S_SPIN}, s{S_SPIN}, 1")
        e(f"s_cmp_lg_u32 s{S_SPIN}, 0")
        e(f"s_cbranch_scc1 {retry_label}")
    def hb_setup(self):
        e = self.e
        e(f"s_lshl_b32 s{S_T0}, s{S_WV}, 12\nv_lshl_add_u32 v190, v1, 4, s{S_T0}")
        e(f"v_and_b32 v191, 3, v1\nv_mul_u32_u24 v191, {3072*8}, v191\nv_lshrrev_b32 v5, 3, v1\nv_min_u32 v5, 5, v5\nv_lshl_add_u32 v191, v5, 12, v191")
        e("v_bfe_u32 v5, v1, 2, 1\nv_lshl_add_u32 v191, v5, 3, v191")
        e(f"s_lshl_b32 s33, s{S_D0}, 3\ns_add_u32 s33, s33, {WS_MODP}\ns_mov_b32 s34, {WS_ST1}")
        e(f"s_lshl_b32 s35, s{S_D0}, 13\ns_add_u32 s35, s35, {hx(WS_XB)}\ns_mov_b32 s{S_SPIN}, {self.cfg['spin']}")
    def poll_issue(self):
        for i in range(4): self.tok(f"buffer_load_dwordx4 v[{144+4*i}:{147+4*i}], v190, s[{S_WS}:{S_WS+3}], s34 offen offset:{1024*i} sc1")
        for i in range(4): self.tok(f"buffer_load_dwordx4 v[{20+4*i}:{23+4*i}], v190, s[{S_WS}:{S_WS+3}], s35 offen offset:{1024*i} sc1")
        self.ptok = self.tok(f"buffer_load_dwordx2 v[160:161], v191, s[{S_WS}:{S_WS+3}], s33 offen sc1")
        self.stamp(26)
    def hbuild(self, mid=None):
        e = self.e
        rt = self.lab("h0"); ok = self.lab("h0ok"); ck = self.lab("h0ck")
        self.wait(self.ptok); self.stamp(25)
        def rout():
            self.label(rt)
            self.p.put([i for i in self.cap(self.poll_issue) if i.text.startswith("buffer_")])
            e(f"s_waitcnt vmcnt(0)\ns_branch {ck}")
        self.ool += self.cap(rout)
        self.label(ck)
        for i in range(8):
            e(f"v_min3_u32 v11, v{145+2*i}, v{21+2*i}, {'v11' if i else 'v161'}")
            e(f"v_max3_u32 v12, v{145+2*i}, v{21+2*i}, {'v12' if i else 'v161'}")
        e(f"v_xor_b32 v11, s{S_TAG}, v11\nv_xor_b32 v12, s{S_TAG}, v12\nv_or_b32 v7, v11, v12")
        e("v_cmp_ne_u32 vcc, 0, v7")
        e(f"s_cbranch_vccz {ok}")
        self.spin_check(rt)
        self.label(ok)
        self.stamp(4)
        if self.cfg.get("stamps"): e(f"s_sub_u32 s{S_ST}, {self.cfg['spin']+1}, s{S_SPIN}\nv_writelane_b32 v255, s{S_ST}, 50")
        keep_ = self.p.take()
        e("v_add_f32_dpp v8, v160, v160 quad_perm:[1,0,3,2] row_mask:0xf bank_mask:0xf")
        for i in range(4): e(f"v_lshlrev_b32 v{64+i}, 16, v{144+2*i}")
        e("v_add_f32_dpp v8, v8, v8 quad_perm:[2,3,0,1] row_mask:0xf bank_mask:0xf")
        for i in range(4, 8): e(f"v_lshlrev_b32 v{64+i}, 16, v{144+2*i}")
        e("v_cvt_pk_bf16_f32 v8, v8, v8\nv_rcp_f32 v64, v64\nv_and_b32 v8, 0xffff0000, v8\nv_rcp_f32 v65, v65")
        e("v_add_f32 v9, 1.0, v8\nv_rcp_f32 v66, v66")
        e("v_cvt_pk_bf16_f32 v9, v9, v9\nv_rcp_f32 v67, v67\nv_and_b32 v9, 0xffff0000, v9")
        X = 72; Hh = 88; Z = 104
        for i in range(8):
            if i in (0, 1, 2, 4, 5):
                src = 9 if i in (1, 4) else 8
                e(f"v_readlane_b32 s{S_M+2*i}, v{src}, {8*i}")
                e(f"v_readlane_b32 s{S_M+2*i+1}, v{src}, {8*i+4}")
            if i >= 4: e(f"v_rcp_f32 v{64+i}, v{64+i}")
            e(f"v_and_b32 v{56+i}, 0xffff0000, v{144+2*i}")
            k_ = i >> 1; src_ = 20 + 4*k_ + 2*(i & 1); dst_ = X + 8*(k_ & 1) + 4*(k_ >> 1) + 2*(i & 1)
            e(f"v_lshlrev_b32 v{dst_}, 16, v{src_}")
            e(f"v_and_b32 v{dst_+1}, 0xffff0000, v{src_}")
        sa, sA, ga, sb, sB, gb = [S_M + 2*i for i in range(6)]
        e(f"v_mov_b32 v16, s{ga}\nv_mov_b32 v17, s{ga+1}")
        for k in range(8):
            e(f"v_pk_add_f32 {vr(Hh+2*k,2)}, {vr(X+2*k,2)}, {vr(56+2*(k&3),2)} neg_lo:[0,1] neg_hi:[0,1]")
        e(f"v_mul_f32 v10, s{sA}, v16\nv_mul_f32 v11, s{sA+1}, v17")
        e(f"v_mul_f32 v12, s{sa}, v16\nv_mul_f32 v13, s{sa+1}, v17")
        e(f"s_lshl_b32 s{S_T0}, s{S_DSK}, 16\ns_and_b32 s{S_T1}, s{S_DSK}, 0xffff0000")
        e(f"v_mov_b32 v14, s{S_T0}\nv_mov_b32 v15, s{S_T1}")
        for k in range(8):
            e(f"v_pk_mul_f32 {vr(Hh+2*k,2)}, {vr(Hh+2*k,2)}, {vr(64+2*(k&3),2)}")
        for k in range(8):
            c = k >> 2
            e(f"v_pk_fma_f32 {vr(Hh+2*k,2)}, {vr(Hh+2*k,2)}, v[10:11], v[12:13] op_sel:[0,{c},{c}] op_sel_hi:[1,{c},{c}]")
        for ch in range(2):
            for j in range(4):
                e(f"v_cvt_pk_bf16_f32 v{120+4*ch+j}, v{Hh+8*ch+2*j}, v{Hh+8*ch+2*j+1}")
            e(f"ds_write_b128 v183, v[{120+4*ch}:{123+4*ch}] offset:{HCH*ch}")
        for k in range(8):
            c = k >> 2
            e(f"v_pk_fma_f32 {vr(Z+2*k,2)}, {vr(Hh+2*k,2)}, v[14:15], {vr(X+2*k,2)} op_sel:[0,{c},0] op_sel_hi:[1,{c},1]")
            if k & 1: e(f"ds_write_b128 v184, {vr(Z+2*k-2,4)} offset:{8192*c + 16*((k>>1)&1)}")
        body_ = self.p.take()
        self.p.put(keep_ + spread(body_, [(0, c_) for c_ in (mid() if mid else [])]))
    def late_issue(self): return self.tok(f"buffer_load_dwordx2 v[238:239], v237, s[{S_WS}:{S_WS+3}], s{S_EX} offen sc1")
    def late_fin(self, tl):
        e = self.e
        self.wait(tl)
        self.guard("lt", lambda ex: e(f"v_cmp_ne_u32 vcc, s{S_TAG}, v239"), lambda: (self.late_issue(), e("s_waitcnt vmcnt(0)")))
        e("v_add_f32_dpp v238, v238, v238 quad_perm:[1,0,3,2] row_mask:0xf bank_mask:0xf")
        e("s_nop 1")
        e("v_add_f32_dpp v238, v238, v238 quad_perm:[2,3,0,1] row_mask:0xf bank_mask:0xf")
        e("v_cvt_pk_bf16_f32 v238, v238, v238\nv_and_b32 v238, 0xffff0000, v238\nv_add_f32 v239, 1.0, v238")
        e("v_cvt_pk_bf16_f32 v239, v239, v239\nv_and_b32 v239, 0xffff0000, v239\ns_nop 0")
        for i in (4, 5):
            src = 239 if i == 4 else 238
            e(f"v_readlane_b32 s{S_M+2*i}, v{src}, {8*i}\nv_readlane_b32 s{S_M+2*i+1}, v{src}, {8*i+4}")
    def modf_pub(self):
        e = self.e
        sa, sA, ga, sb, sB, gb = [S_M + 2*i for i in range(6)]
        e(f"v_mov_b32 v20, s{gb}\nv_mov_b32 v21, s{gb+1}\ns_lshr_b32 s101, s32, 3\ns_cmp_lg_u32 s{S_WV}, 0\ns_cselect_b32 s101, 0x7f000000, s101\ns_add_u32 s101, s101, {WS_MODF}")
        e(f"buffer_store_dwordx2 v[20:21], v199, s[{S_WS}:{S_WS+3}], s101 offen sc1")
    def conv_setup(self):
        e = self.e
        e(f"s_lshr_b32 s{S_CH}, s{S_WV}, 1")
        e(f"s_and_b32 s{S_PAR}, s{S_WV}, 1")
        e("v_and_b32 v176, 15, v1\nv_lshrrev_b32 v177, 4, v1")
        e("v_lshlrev_b32 v178, 3, v177")
        e("v_sub_u32 v178, v178, v176")
        e("v_add_u32 v178, 2031, v178")
        e("v_lshrrev_b32 v178, 1, v178")
        e("v_and_b32 v179, 1, v1\nv_xor_b32 v179, 1, v179")
        e(f"v_mul_u32_u24 v179, {KODD}, v179")
        e("v_lshl_add_u32 v178, v178, 2, v179")
        e(f"s_mul_i32 s{S_T0}, s{S_CH}, {KCH}")
        e(f"s_lshl_b32 s{S_T1}, s{S_PAR}, 8")
        e(f"s_sub_u32 s{S_T0}, s{S_T0}, s{S_T1}")
        e(f"s_add_u32 s{S_T0}, s{S_T0}, {L_K - 192 - 512}")
        for j in range(4):
            e(f"v_add_u32 v{168+j}, s{S_T0}, v178")
            if j < 3: e(f"s_sub_u32 s{S_T0}, s{S_T0}, 1024")
        e("v_lshlrev_b32 v178, 5, v176")
        e("v_lshl_add_u32 v178, v177, 4, v178")
        e(f"s_mul_i32 s{S_T0}, s{S_CH}, {HCH}")
        e(f"s_sub_u32 s{S_T0}, s{S_T0}, s{S_T1}")
        e(f"s_add_u32 s{S_T0}, s{S_T0}, {L_HI + 480 - 192}")
        e(f"v_add_u32 v172, s{S_T0}, v178")
        e("v_lshl_add_u32 v178, v176, 5, v178")
        e(f"s_lshl_b32 s{S_T0}, s{S_CH}, 13")
        e(f"s_lshl_b32 s{S_T1}, s{S_PAR}, 12")
        e(f"s_add_u32 s{S_T0}, s{S_T0}, s{S_T1}")
        e(f"s_add_u32 s{S_T0}, s{S_T0}, {L_Z}")
        e(f"v_add_u32 v173, s{S_T0}, v178")
        e(f"s_lshl_b32 s{S_T0}, s{S_WV}, 12\ns_add_u32 s{S_T0}, s{S_T0}, {L_Z}\nv_lshl_add_u32 v180, v1, 4, s{S_T0}")
        e(f"s_xor_b32 s{S_T1}, s{S_WV}, 1\ns_lshl_b32 s{S_T1}, s{S_T1}, 12\ns_add_u32 s{S_T1}, s{S_T1}, {L_Z}\nv_lshl_add_u32 v181, v1, 4, s{S_T1}")
        e("v_and_b32 v176, 15, v1\nv_lshrrev_b32 v177, 4, v1")
        e("v_lshrrev_b32 v182, 1, v176\nv_and_b32 v179, 1, v177\nv_lshl_add_u32 v182, v179, 3, v182\nv_lshlrev_b32 v182, 15, v182")
        e("v_and_b32 v176, 1, v176\nv_lshl_add_u32 v182, v176, 5, v182\nv_lshrrev_b32 v177, 1, v177\nv_lshl_add_u32 v182, v177, 4, v182")
        e(f"s_add_u32 s27, s{S_D0}, s{S_CH}\ns_lshl_b32 s27, s27, 6\ns_lshl_b32 s28, s{S_PAR}, 20\ns_add_u32 s27, s27, s28")
        e(f"s_add_u32 s28, s27, {hx(WS_X1S)}\ns_add_u32 s27, s27, {hx(WS_X1)}\ns_add_u32 s29, s27, {hx(16*32768)}\ns_add_u32 s30, s28, {hx(16*32768)}")
        e(f"v_lshlrev_b32 v183, 4, v0\nv_add_u32 v183, {L_HI + 512}, v183\nv_lshlrev_b32 v184, 5, v0\nv_add_u32 v184, {L_Z}, v184")
        e(f"v_mov_b32 v252, 0xfffefffe\nv_lshlrev_b32 v236, 4, v0\nv_mov_b32 v199, 0")
        e(f"s_lshl_b32 s32, s{S_D0}, 5\ns_cmp_lg_u32 s{S_WV}, 0\ns_cselect_b32 s32, 0x7f000000, s32")
    def conv(self, fillers=None, pre_start=None, pre_bar=None, post_bar=None):
        e = self.e
        ACC = 4
        FA = [40, 104]; FB = [72, 136]
        if pre_start: pre_start()
        e("s_waitcnt lgkmcnt(0)")
        e("s_barrier")
        self.stamp(5)
        p1 = self.lab("cp1"); jn = self.lab("cj")
        e(f"s_cmp_lg_u32 s{S_PAR}, 0")
        e(f"s_cbranch_scc1 {p1}")
        for par in range(2):
            for c in range(4):
                r = ACC + 4 * (4*par + c)
                e(f"ds_read_b128 v[{r}:{r+3}], v173 offset:{1024*c}")
            for r in range(16): e(f"v_mov_b32 v{ACC + 16*(1-par) + r}, 0")
            if par == 0:
                e(f"s_branch {jn}"); self.label(p1)
        self.label(jn)
        def loads(it):
            s = it & 1; L = []; o = 16 * (3 - it)
            tk = {}
            for k in range(8):
                tk[("B", k)] = self.tok(f"ds_read_b128 {vr(FB[s]+4*k,4)}, v172 offset:{512*k + 64*(3-it)}")
                b = 168 + (k >> 1); oo = o + (0 if k & 1 else 128)
                self.tok(f"ds_read2_b32 {vr(FA[s]+4*k,2)}, v{b} offset0:{oo} offset1:{oo+1}")
                tk[("A", k)] = self.tok(f"ds_read2_b32 {vr(FA[s]+4*k+2,2)}, v{b} offset0:{oo+2} offset1:{oo+3}")
            return tk
        pre = self.p.take()
        tks = [None] * 4
        tks[0] = loads(0)
        main = self.p.take()
        carry = []
        for it in range(4):
            nxt = []
            if it < 3:
                tks[it+1] = loads(it+1); nxt = self.p.take()
            s = it & 1
            order = sorted([(u, v) for u in range(8) for v in range(8 - u)], key=lambda t: (max(t), t[0]))
            seen = set(); k = 0
            for (u, v) in order:
                need = [t for t in (("A", u), ("B", v)) if t not in seen]
                if need:
                    self.wait(*[tks[it][t] for t in need]); seen |= set(need)
                cb = u + v
                e(f"v_mfma_f32_16x16x32_bf16 {vr(ACC+4*cb,4)}, {vr(FA[s]+4*u,4)}, {vr(FB[s]+4*v,4)}, {vr(ACC+4*cb,4)}")
                if nxt and ((it > 0 and (k % 3 != 2 or len(nxt) >= 35 - k)) or (it == 0 and k >= 10)):
                    self.p.put([nxt.pop(0)])
                k += 1
            self.p.put(nxt)
            seg = self.p.take()
            if it == 0: seg = main + seg; main = []
            carry = carry + (fillers.get(it, []) if fillers else [])
            seg, carry = merge(seg, carry, 8, pace=self.cfg["cpace"])
            if it in self.cfg.get('cflush', ()): seg += carry; carry = []
            main += seg
        self.p.put(pre + main)
        self.conv_left = carry
        self.stamp(6)
        if pre_bar: pre_bar()
        p1 = self.lab("ep1"); jn = self.lab("ej")
        e(f"s_cmp_lg_u32 s{S_PAR}, 0")
        e(f"s_cbranch_scc1 {p1}")
        for par in range(2):
            e("s_nop 7")
            for c in range(4):
                r = ACC + 4 * (4*(1-par) + c)
                e(f"ds_write_b128 v180, {vr(r,4)} offset:{1024*c}")
            e("s_waitcnt lgkmcnt(0)")
            e("s_barrier")
            for c in range(4): e(f"ds_read_b128 {vr(40+4*c,4)}, v181 offset:{1024*c}")
            for c in range(4):
                e(f"s_waitcnt lgkmcnt({3-c})")
                r = ACC + 4 * (4*par + c)
                e(f"v_pk_add_f32 {vr(40+4*c,2)}, {vr(40+4*c,2)}, {vr(r,2)}")
                e(f"v_pk_add_f32 {vr(42+4*c,2)}, {vr(42+4*c,2)}, {vr(r+2,2)}")
            if par == 0:
                e(f"s_branch {jn}"); self.label(p1)
        self.label(jn)
        sB = S_M + 8
        e(f"s_cmp_eq_u32 s{S_CH}, 0")
        e(f"s_cselect_b32 s{S_T0}, s{sB}, s{sB+1}")
        e(f"v_mov_b32 v38, s{S_T0}\nv_mov_b32 v39, s{S_T0}")
        if post_bar: post_bar()
        for arr in range(2):
            for pr in range(2):
                a = 40 + 8*pr; d = 60 + 8*pr + 4*arr
                if arr == 0:
                    for h in range(4): e(f"v_pk_mul_f32 {vr(76+2*h,2)}, {vr(a+2*h,2)}, v[38:39]")
                src = 76 if arr == 0 else a
                for h in range(4): e(f"v_cvt_pk_bf16_f32 v{d+h}, v{src+2*h}, v{src+2*h+1}")
                for h in range(4): e(f"v_and_or_b32 v{d+h}, v{d+h}, v252, s{TG[h&1]}")
                e(f"v_permlane16_swap_b32 v{d}, v{d+2}\nv_permlane16_swap_b32 v{d+1}, v{d+3}")
                e(f"buffer_store_dwordx4 {vr(d,4)}, v182, s[{S_WS}:{S_WS+3}], s{28 - arr + 2*pr} offen sc1")
        self.stamp(7)
    def g1_map(self):
        e = self.e
        if self.cfg["map8"] == 2:
            e(f"s_cmp_ge_u32 s{S_IDX}, 14\ns_cselect_b32 s{S_T0}, 1, 0\ns_lshl_b32 s{S_G1}, s{S_XCD}, 1\ns_add_u32 s{S_G1}, s{S_G1}, s{S_T0}")
            e(f"s_mul_i32 s{S_T0}, s{S_T0}, 14\ns_sub_u32 s{S_G2}, s{S_IDX}, s{S_T0}")
        elif self.cfg["map8"]:
            e(f"s_lshr_b32 s{S_T0}, s{S_XCD}, 1\ns_mul_i32 s{S_T0}, s{S_T0}, 28\ns_add_u32 s{S_T0}, s{S_T0}, s{S_IDX}")
            e(f"s_and_b32 s{S_G1}, s{S_XCD}, 1\ns_lshl_b32 s{S_G1}, s{S_G1}, 3\ns_and_b32 s{S_G2}, s{S_T0}, 7\ns_add_u32 s{S_G1}, s{S_G1}, s{S_G2}")
            e(f"s_lshr_b32 s{S_G2}, s{S_T0}, 3")
        else:
            e(f"s_lshr_b32 s{S_G1}, s{S_XCD}, 1\ns_lshl_b32 s{S_G1}, s{S_G1}, 2")
            e(f"s_and_b32 s{S_T0}, s{S_IDX}, 3\ns_add_u32 s{S_G1}, s{S_G1}, s{S_T0}")
            e(f"s_and_b32 s{S_G2}, s{S_XCD}, 1\ns_mul_i32 s{S_G2}, s{S_G2}, 7")
            e(f"s_lshr_b32 s{S_T0}, s{S_IDX}, 2\ns_add_u32 s{S_G2}, s{S_G2}, s{S_T0}")
        e(f"s_lshl_b32 s15, s{S_XCD}, 2\ns_add_u32 s15, s15, s{S_IDX}\ns_sub_u32 s15, s15, 28")
        e(f"s_lshr_b32 s14, s15, 1\ns_and_b32 s13, s15, 1\ns_cmp_ge_u32 s{S_IDX}, 28")
        e(f"s_cselect_b32 s{S_G2}, s14, s{S_G2}\ns_cselect_b32 s{S_G1}, 0, s{S_G1}\ns_cselect_b32 s{S_G3}, s13, 0\ns_cselect_b32 s15, s15, 0")
        e(f"s_cmp_ge_u32 s15, 28\ns_cselect_b32 s10, 0, {hx(1835008)}\ns_mov_b32 s11, 0x20000")
        e(f"s_lshl_b32 s{S_G2}, s{S_G2}, 7")
        e(f"s_lshl_b32 s{S_T0}, s{S_WV}, 5\ns_add_u32 s{S_G2}, s{S_G2}, s{S_T0}")
    AX = 176
    BX = 184
    def g1_fold(self, g, acc):
        for t in range(2):
            self.e(f"v_mfma_f32_32x32x16_bf16 {vr(acc+16*t,16)}, {vr(self.AX+4*t,4)}, {vr(self.BX+4*g,4)}, {vr(acc+16*t,16)}")
    def g1_epilogue(self, g, acc, stat, split=False):
        e = self.e
        save = self.p.take()
        T = 148
        rG, kD = stat, stat+1
        for t in range(2):
            for half in range(2):
                regs = [4*half + j for j in range(4)]
                gq = [T + 8*half + j for j in range(4)]; q = [T + 8*half + 4 + j for j in range(4)]
                for j, r in enumerate(regs): e(f"v_mul_f32 v{gq[j]}, v{rG}, v{acc+16*t+r}")
                for j in range(4): e(f"v_fma_f32 v{q[j]}, -v{gq[j]}, v{gq[j]}, s{S_T3}")
                for j in range(4): e(f"v_mul_f32 v{q[j]}, v{gq[j]}, v{q[j]}")
                for j, r in enumerate(regs):
                    e(f"v_exp_f32 v{q[j]}, v{q[j]}")
                    e(f"v_mul_f32 v{gq[j]}, v{gq[j]}, v{acc+16*t+8+r}")
                for j in range(4): e(f"v_fma_f32 v{q[j]}, v{q[j]}, v{kD}, v{kD}")
                for j in range(4): e(f"v_rcp_f32 v{q[j]}, v{q[j]}")
                for j in range(4): e(f"v_mul_f32 v{gq[j]}, v{gq[j]}, v{q[j]}")
                e(f"v_cvt_pk_bf16_f32 v{172+2*half}, v{gq[0]}, v{gq[1]}")
                e(f"v_cvt_pk_bf16_f32 v{173+2*half}, v{gq[2]}, v{gq[3]}")
                if half == 0: e(f"v_and_or_b32 v172, v172, v252, s{TG[0]}\nv_and_or_b32 v173, v173, v252, s{TG[1]}")
            e(f"s_add_u32 s101, s{S_T2}, {g*112*1024 + t*1024}")
            tk_ = self.tok(f"buffer_store_dwordx4 v[172:175], v147, s[{S_WS}:{S_WS+3}], s101 offen" + ("" if self.cfg.get("hp") else " sc1"))
        self.htok[g] = tk_
        out = self.p.take(); self.p.put(save)
        if split: return out[:len(out)//2], out[len(out)//2:]
        return out
    def g2_map(self):
        e = self.e
        e(f"s_lshl_b32 s{S_G1}, s{S_XCD}, 1\ns_bfe_u32 s44, s{S_IDX}, 0x10004\ns_add_u32 s{S_G1}, s{S_G1}, s44")
        e(f"s_lshl_b32 s{S_G1}, s{S_G1}, 2")
        e(f"s_bfe_u32 s44, s{S_IDX}, 0x10003")
        e(f"s_sub_u32 s{S_G2}, s{S_G1}, s44\ns_add_u32 s{S_G2}, s{S_G2}, 3")
        e(f"s_add_u32 s{S_G1}, s{S_G1}, s44")
        e(f"s_and_b32 s{S_G3}, s{S_IDX}, 7")
    XT = lambda self, g: (3 - g) * 32768
    S_HB = 81
    def x1s_issue(self, g):
        t = None
        for j in range(8):
            if j % 4 == 0:
                self.e(f"s_add_u32 m0, s{S_T1}, {self.XT(g) + j*1024}")
                self.e(f"s_add_u32 s13, s{S_T0}, {g*32768 + j*1024}")
            t = self.tok(f"buffer_load_dwordx4 v147, s[{S_WS}:{S_WS+3}], s13 offen offset:{(j%4)*1024} sc1 lds")
        return t
    def x1s_check(self, g, T, explicit=False):
        e = self.e
        ad = 146 if self.XT(g) < 65536 else 143
        if g >= 2:
            tk = [self.tok(f"ds_read_b32 v{T+j}, v{ad} offset:{self.XT(g) % 65536 + j*1024}") for j in range(8)]
            if explicit: e("s_waitcnt lgkmcnt(0)")
            else: self.wait(tk[7])
            for j in range(4): e(f"v_bitop3_b32 v{T+2*j}, v{T+2*j}, v{T+2*j+1}, s{TG[0]} bitop3:0x7e")
            e(f"v_or3_b32 v{T}, v{T}, v{T+2}, v{T+4}\nv_or_b32 v{T}, v{T}, v{T+6}\nv_and_b32 v{T}, 0x00010001, v{T}\nv_cmp_ne_u32 vcc, 0, v{T}")
            return
        for rnd in range(2):
            tk = [self.tok(f"ds_read_b128 {vr(T+4*j,4)}, v{ad} offset:{self.XT(g) % 65536 + (4*rnd+j)*1024}") for j in range(4)]
            for j in range(4):
                if explicit: e(f"s_waitcnt lgkmcnt({3-j})")
                elif j in (1, 3): pass
                else: self.wait(tk[j+1])
                r = T + 4*j
                e(f"v_bitop3_b32 v{r}, v{r}, v{r+2}, s{TG[0]} bitop3:0x7e\nv_bitop3_b32 v{r+1}, v{r+1}, v{r+3}, s{TG[1]} bitop3:0x7e")
                e(f"v_or3_b32 v{T+16}, v{r}, v{r+1}, {'v%d' % (T+16) if (rnd or j) else '0'}")
        e(f"v_and_b32 v{T+16}, 0x00010001, v{T+16}\nv_cmp_ne_u32 vcc, 0, v{T+16}")
    def tlane(self, d, t):
        e = self.e
        e(f"v_mov_b32 v{d}, s{TG[0]}\nv_bfe_u32 v{t}, v1, 1, 1\nv_mul_u32_u24 v{t}, 0x10001, v{t}\nv_xor_b32 v{d}, v{d}, v{t}")
        e(f"v_and_b32 v{t}, 1, v1\nv_lshlrev_b32 v{t}, 4, v{t}\nv_bfe_u32 v{d}, v{d}, v{t}, 1\nv_mul_u32_u24 v{d}, 0x10001, v{d}")
    def x1s_guard(self, g, T, tok, keepm0=True):
        e = self.e
        rt = self.lab("xr"); lp = self.lab("xl"); bk = self.lab("xb")
        self.wait(tok)
        self.x1s_check(g, T)
        e(f"s_cbranch_vccnz {rt}")
        self.label(bk)
        def rout():
            self.label(rt)
            e(f"s_mov_b32 s{S_SPIN}, {self.cfg['spin']}")
            if self.cfg.get("stamps"): e(f"v_writelane_b32 v255, 1, {46 + g}")
            e(f"s_mov_b32 s{S_EX}, m0")
            self.label(lp)
            self.x1s_issue(g)
            e("s_waitcnt vmcnt(0) lgkmcnt(0)\ns_mov_b32 m0, s94")
            self.x1s_check(g, T, explicit=True)
            e("s_nop 1")
            e(f"s_cbranch_vccz {bk}")
            self.spin_check(lp)
            e(f"s_branch {bk}")
        o, _ = self.capture(rout); self.ool += o
    def modf_issue(self):
        t = None
        for v in range(2):
            for kq in range(4):
                self.e(f"s_mov_b32 s47, {WS_MODP + (kq*3072 + (3+v)*512)*8}")
                t = self.tok(f"buffer_load_dwordx4 {vr(200 + 16*v + 4*kq, 4)}, v236, s[{S_WS}:{S_WS+3}], s47 offen sc1")
        return t
    def xfill(self):
        e = self.e; t = None
        for base in (WS_X1S, WS_X1S + 32*32768, WS_X1, WS_X1 + 32*32768):
            e(f"s_add_u32 s101, s31, {hx(base)}")
            t = self.tok(f"buffer_store_dwordx4 v[248:251], v252, s[{S_WS}:{S_WS+3}], s101 offen sc1")
        return t
    def hfill(self):
        e = self.e
        for g in range(4):
            e(f"s_add_u32 s26, s{self.S_HB}, {g*112*1024}")
            self.tok(f"buffer_store_dwordx4 v[248:251], v147, s[{S_WS}:{S_WS+3}], s26 offen sc1")
            self.htok["fill"] = self.tok(f"buffer_store_dwordx4 v[248:251], v147, s[{S_WS}:{S_WS+3}], s26 offen offset:1024 sc1")
    S_HF = 35
    def gate_pub(self, base=WS_FL1):
        self.e(f"s_add_u32 s101, s32, {base}")
        self.e(f"buffer_store_dword v253, v199, s[{S_WS}:{S_WS+3}], s101 offen sc1")
    S_FB = 3
    def hbase(self):
        e = self.e
        e(f"s_mul_i32 s{self.S_HB}, s{S_G1}, {4*112*1024}")
        e(f"s_lshl_b32 s101, s{S_G2}, 6")
        e(f"s_add_u32 s{self.S_HB}, s{self.S_HB}, s101")
        e(f"s_add_u32 s{self.S_HB}, s{self.S_HB}, {hx(WS_H)}")
    def hflag(self, g, vz, vt):
        self.wait(self.htok[g])
        self.e(f"s_add_u32 s101, s{self.S_FB}, 0")
        self.e(f"buffer_store_dword v{vt}, v{vz}, s[{S_WS}:{S_WS+3}], s101 offen sc1")
    def capture(self, fn):
        keep = self.p.take(); r = fn(); out = self.p.take(); self.p.put(keep); return out, r
    def cap(self, fn): return self.capture(fn)[0]
    def peek(self, fn):
        sv = (dict(self.wdt), dict(self.rd), dict(self.xt), self.p.ntok)
        keep = self.p.take()
        try: fn()
        except KeyError:
            self.p.take(); self.p.put([Ins("buffer_x"), Ins("buffer_x")])
        out = self.p.take(); self.p.put(keep)
        self.wdt.clear(); self.wdt.update(sv[0]); self.rd.clear(); self.rd.update(sv[1]); self.xt.clear(); self.xt.update(sv[2])
        return out
    def guard(self, name, chk, reissue, cond="vccnz"):
        e = self.e
        rt = self.lab(name + "r"); lp = self.lab(name + "l"); bk = self.lab(name + "b")
        chk(False)
        e(f"s_cbranch_vccnz {rt}")
        self.label(bk)
        def rout():
            self.label(rt); e(f"s_mov_b32 s{S_SPIN}, {self.cfg['spin']}")
            if self.cfg.get("stamps"): e(f"v_writelane_b32 v255, 1, {52 + ['mf', 'gt', 'st', 'f0', 'lt', 'g2', 'fa', 'hc', 'rs'].index(name)}")
            self.label(lp)
            reissue(); chk(True); e("s_nop 1")
            e(f"s_cbranch_vccz {bk}"); self.spin_check(lp); e(f"s_branch {bk}")
        self.ool += self.cap(rout)

    def p0_issue(self):
        e = self.e; T = self.T = {}
        e(f"s_mov_b32 s{S_X}, s{P_X}\ns_mov_b32 s{S_X+1}, s{P_X+1}")
        self.tok(f"buffer_load_dwordx4 v[10:13], v9, s[{S_X}:{S_X+3}], s{S_T0} offen")
        T["xr"] = self.tok(f"buffer_load_dwordx4 v[14:17], v9, s[{S_X}:{S_X+3}], s{S_T0} offen offset:1024")
        self.tok(f"buffer_load_dwordx4 v3, s[{S_X}:{S_X+3}], s{S_T3} offen lds")
        T["xt"] = self.tok(f"buffer_load_dwordx4 v6, s[{S_X}:{S_X+3}], s{S_T3} offen offset:1024 lds")
        for i in range(6): T["ssm"] = self.tok(f"global_load_ushort v{18+i}, v8, s[{P_ARE+2*i}:{P_ARE+2*i+1}]")
        e(f"s_load_dword s{S_E}, s[{P_WS}:{P_WS+1}], 0")
        e(f"s_lshl_b32 s{S_T0}, s{S_D0}, 1")
        e(f"s_load_dword s{S_LDT}, s[{P_LDT}:{P_LDT+1}], s{S_T0}")
        e(f"s_load_dword s{S_DSK}, s[{P_DSK}:{P_DSK+1}], s{S_T0}")
        e(f"s_mov_b32 s{S_WM}, s{P_WM}\ns_mov_b32 s{S_WM+1}, s{P_WM+1}")
        e(f"s_cmp_ge_u32 s{S_M+1}, {24 if self.cfg['split'] else 99}\ns_cselect_b32 s{S_M+4}, 1, 0\ns_cmp_ge_u32 s2, 192\ns_cselect_b32 s{S_M+4}, 2, s{S_M+4}")
        T["c"] = self.tok(f"global_load_dword v186, v7, s[{P_C}:{P_C+1}]")
        self.wm_issue(0)
        e(f"s_bitcmp1_b32 s{S_WV}, 0\ns_cselect_b32 s8, s{P_WU}, s{P_WG}\ns_cselect_b32 s9, s{P_WU+1}, s{P_WG+1}")
        if self.cfg["touch"] == 4: self.touch_w()
    def wm_issue(self, which):
        e = self.e
        sk = self.lab("wm")
        e(f"s_cmp_lg_u32 s{S_M+4}, {which}\ns_cbranch_scc1 {sk}")
        e(f"s_lshl_b32 s{S_T1}, s{S_WV}, 12")
        for j in range(4):
            e(f"s_add_u32 m0, s{S_T1}, {L_MOD + 1024*j}")
            e(f"s_add_u32 s101, s{S_M+2}, {j*8*6144}")
            self.T["wm%d" % which] = self.tok(f"buffer_load_dwordx4 v33, s[{S_WM}:{S_WM+3}], s101 offen lds")
        jn = self.lab("wmj")
        self.label(jn)
        def alt():
            self.label(sk)
            for j in range(4): e(f"global_load_dword v32, v9, s[{P_C}:{P_C+1}]")
            e(f"s_branch {jn}")
        self.ool += self.cap(alt)

    def p0_stats(self):
        e = self.e
        e("v_mov_b32 v3, 0x3f803f80")
        self.wait(self.T["xr"])
        for i in range(4):
            c = lambda r: (f"v{r}" if i else "0")
            e(f"v_dot2_f32_bf16 v4, v{10+i}, v3, {c(4)}")
            e(f"v_dot2_f32_bf16 v5, v{10+i}, v{10+i}, {c(5)}")
            e(f"v_dot2_f32_bf16 v6, v{14+i}, v3, {c(6)}")
            e(f"v_dot2_f32_bf16 v7, v{14+i}, v{14+i}, {c(7)}")
        self.reduce16([4, 5, 6, 7])
        e("v_permlane16_swap_b32 v4, v5\nv_permlane16_swap_b32 v6, v7")
        e("v_add_f32 v4, v4, v5\nv_add_f32 v6, v6, v7")
        e("v_permlane32_swap_b32 v4, v6")
        e("v_add_f32 v4, v4, v6")
        e("v_mov_b32 v5, v4")
        e("v_permlane16_swap_b32 v4, v5")
        self.stat_finish(4, 5, 6, 7)
        e(f"v_mov_b32 v5, s{S_TAG}")
        e("v_lshrrev_b32 v6, 2, v1")
        e(f"s_lshr_b32 s{S_T0}, s2, 6\ns_lshl_b32 s{S_T0}, s{S_T0}, 2\ns_add_u32 s{S_T0}, s{S_T0}, s{S_WV}\ns_lshl_b32 s{S_T0}, s{S_T0}, 10")
        e(f"s_and_b32 s{S_T1}, s2, 63\ns_lshl_b32 s{S_T1}, s{S_T1}, 4\ns_add_u32 s{S_T0}, s{S_T0}, s{S_T1}\ns_add_u32 s{S_T0}, s{S_T0}, {WS_ST1}")
        e("s_mov_b32 exec_lo, 1\ns_mov_b32 exec_hi, 1")
        e(f"buffer_store_dwordx2 v[4:5], v6, s[{S_WS}:{S_WS+3}], s{S_T0} offen sc1")
        e("s_mov_b64 exec, -1")

    def p0_xb(self):
        e = self.e
        e("v_lshrrev_b32 v187, 2, v1\nv_lshlrev_b32 v187, 7, v187\nv_and_b32 v4, 3, v1\nv_lshl_add_u32 v187, v4, 3, v187")
        e("v_lshrrev_b32 v5, 4, v1\nv_lshlrev_b32 v3, 11, v5")
        e("v_bfe_u32 v4, v1, 1, 1\nv_lshl_add_u32 v3, v4, 10, v3")
        e("v_bfe_u32 v4, v1, 2, 2\nv_lshl_add_u32 v3, v4, 7, v3")
        e("v_and_b32 v4, 1, v1\nv_lshl_add_u32 v3, v4, 3, v3")
        e(f"s_lshl_b32 s{S_T1}, s{S_WV}, 5\ns_add_u32 s{S_T1}, s{S_T1}, {L_XT}\nv_add_u32 v188, s{S_T1}, v3")
        e("v_lshlrev_b32 v4, 10, v4\nv_lshl_add_u32 v4, v5, 5, v4")
        e("v_bfe_u32 v5, v1, 3, 1\nv_lshl_add_u32 v4, v5, 4, v4")
        e("v_bfe_u32 v5, v1, 1, 2\nv_lshl_add_u32 v189, v5, 14, v4")
        e(f"s_lshl_b32 s{S_T0}, s{S_XCD}, 19\ns_lshl_b32 s{S_T1}, s{S_WV}, 17\ns_add_u32 s{S_T0}, s{S_T0}, s{S_T1}")
        e(f"s_lshr_b32 s{S_T1}, s{S_IDX}, 3\ns_lshl_b32 s{S_T1}, s{S_T1}, 12\ns_add_u32 s{S_T0}, s{S_T0}, s{S_T1}")
        e(f"s_and_b32 s{S_T1}, s{S_IDX}, 7\ns_lshl_b32 s{S_T1}, s{S_T1}, 7\ns_add_u32 s{S_T0}, s{S_T0}, s{S_T1}\ns_add_u32 s46, s{S_T0}, {hx(WS_XB)}")
        e(f"s_add_u32 s47, s46, 0x10000")
    def p0_xb2(self):
        e = self.e
        for i in range(4): e(f"v_mov_b32 v{39+4*i}, s{S_TAG}")
        self.wait(self.T["xt"])
        e("s_barrier")
        tk = [self.tok(f"ds_read_b64_tr_b16 v[{36+4*k}:{37+4*k}], v188 offset:{512*(k&1) + 16*(k>>1)}") for k in range(4)]
        for k in range(4):
            self.wait(tk[k])
            e(f"v_mov_b32 v{38+4*k}, v{37+4*k}\nv_mov_b32 v{37+4*k}, s{S_TAG}")
            e(f"buffer_store_dwordx4 v[{36+4*k}:{39+4*k}], v189, s[{S_WS}:{S_WS+3}], s{46 + (k>>1)} offen offset:{2048*(k&1)} sc1")

    def p0_mod(self, which, nyoung, base=52, tokname=None):
        e = self.e
        skip = self.lab("nomod2")
        e(f"s_cmp_lg_u32 s{S_M+4}, {which}\ns_cbranch_scc1 {skip}")
        e("v_lshlrev_b32 v56, 16, v186\nv_and_b32 v57, 0xffff0000, v186")
        e(f"v_mul_f32 v58, {fl(-LOG2E)}, v56\nv_mul_f32 v59, {fl(-LOG2E)}, v57")
        e("v_exp_f32 v58, v58\nv_exp_f32 v59, v59")
        e("v_add_f32 v58, 1.0, v58\nv_add_f32 v59, 1.0, v59")
        e("v_rcp_f32 v58, v58\nv_rcp_f32 v59, v59")
        e("v_mul_f32 v56, v56, v58\nv_mul_f32 v57, v57, v59")
        e("v_cvt_pk_bf16_f32 v56, v56, v57")
        e(f"s_lshl_b32 s44, s{S_WV}, 8\ns_add_u32 s44, s44, {L_MOD + 16384}")
        e(f"v_lshl_add_u32 v57, v1, 2, s44")
        e("ds_write_b32 v57, v56")
        e("v_lshrrev_b32 v58, 4, v1")
        e(f"v_lshl_add_u32 v57, v58, 4, s44")
        e("v_lshl_add_u32 v59, v58, 9, v187")
        e(f"s_lshl_b32 s45, s{S_WV}, 5\ns_add_u32 s45, s45, {L_MOD}")
        e(f"v_add_u32 v59, s45, v59")
        self.p.wait_nt(self.T[tokname or "wm%d" % which])
        e("s_waitcnt lgkmcnt(0)\ns_barrier")
        for ks in range(4):
            e(f"ds_read_b128 v[{60+8*ks}:{63+8*ks}], v57 offset:{64*ks}")
            e(f"ds_read_b64_tr_b16 v[{64+8*ks}:{65+8*ks}], v59 offset:{4096*ks}")
            e(f"ds_read_b64_tr_b16 v[{66+8*ks}:{67+8*ks}], v59 offset:{4096*ks+512}")
        e(f"s_mul_i32 s44, s{S_M}, {3072*8}\ns_lshl_b32 s45, s{S_M+1}, 9\ns_add_u32 s44, s44, s45")
        e(f"s_lshl_b32 s45, s{S_WV}, 7\ns_add_u32 s44, s44, s45\ns_add_u32 s44, s44, {WS_MODP}")
        e("v_lshlrev_b32 v59, 3, v1")
        for ks in range(4):
            e(f"s_waitcnt lgkmcnt({9-3*ks})")
            e(f"v_mfma_f32_16x16x32_bf16 v[92:95], v[{60+8*ks}:{63+8*ks}], v[{64+8*ks}:{67+8*ks}], {'v[92:95]' if ks else '0'}")
        e("s_barrier")
        e(f"v_mov_b32 v93, s{S_TAG}")
        e("s_mov_b64 exec, 0xffff")
        self.p.nc(f"buffer_store_dwordx2 v[92:93], v59, s[{S_WS}:{S_WS+3}], s44 offen sc1")
        e("s_mov_b64 exec, -1")
        self.label(skip)

    def touch_w(self):
        e = self.e
        e(f"s_lshr_b32 s{S_T0}, s{S_WV}, 1\ns_lshl_b32 s{S_T1}, s2, 1\ns_add_u32 s{S_T0}, s{S_T0}, s{S_T1}\ns_mul_i32 s{S_T0}, s{S_T0}, {28*128}")
        e(f"v_min_u32 v3, 27, v1\nv_lshlrev_b32 v3, 7, v3\nv_add_u32 v3, s{S_T0}, v3")
        e("global_load_dword v198, v3, s[8:9]")
    def touch_wd(self, mode):
        e = self.e
        if mode == 1:
            e(f"s_sub_u32 s{S_T0}, s2, 192\ns_lshl_b32 s{S_T0}, s{S_T0}, 2\ns_add_u32 s{S_T0}, s{S_T0}, s{S_WV}\ns_mul_i32 s{S_T0}, s{S_T0}, {56*128}")
            e(f"s_cmp_lt_u32 s2, 192\ns_cselect_b32 s{S_T0}, 0x7f000000, s{S_T0}")
            e("v_min_u32 v197, 55, v1\nv_lshlrev_b32 v197, 7, v197")
        else:
            e(f"s_lshl_b32 s{S_T0}, s2, 2\ns_add_u32 s{S_T0}, s{S_T0}, s{S_WV}\ns_mul_i32 s{S_T0}, s{S_T0}, {14*128}")
            e("v_min_u32 v197, 13, v1\nv_lshlrev_b32 v197, 7, v197")
        e(f"buffer_load_dword v198, v197, s[{S_WD}:{S_WD+3}], s{S_T0} offen")

    def touch_wdx(self):
        e = self.e
        e(f"s_lshl_b32 s47, s{S_IDX}, 2\ns_add_u32 s47, s47, s{S_WV}\ns_mul_i32 s47, s47, {112*128}")
        e("v_min_u32 v138, 55, v1\nv_lshlrev_b32 v138, 7, v138")
        e(f"buffer_load_dword v139, v138, s[{S_WD}:{S_WD+3}], s47 offen")
        e(f"s_add_u32 s47, s47, {56*128}")
        e(f"buffer_load_dword v139, v138, s[{S_WD}:{S_WD+3}], s47 offen")

    def touch_wdx2(self):
        e = self.e
        e(f"s_mul_i32 s43, s{S_IDX}, {7*1024}\ns_mul_i32 s44, s{S_WV}, {448*1024}\ns_add_u32 s43, s43, s44\ns_add_u32 s43, s43, {224*1024}")
        e("v_min_u32 v138, 55, v1\nv_lshlrev_b32 v138, 7, v138")
        e(f"buffer_load_dword v139, v138, s[{S_WD}:{S_WD+3}], s43 offen")

    def w_setup(self):
        e = self.e
        e("v_lshrrev_b32 v241, 4, v1\nv_mul_u32_u24 v240, 3584, v241")
        e(f"s_and_b32 s13, s{S_WV}, 1\nv_lshl_add_u32 v241, v241, 1, s13")
        e("v_bfe_u32 v242, v1, 1, 3\nv_xor_b32 v241, v241, v242\nv_lshl_add_u32 v240, v241, 5, v240")
        e("v_and_b32 v241, 1, v1\nv_lshl_add_u32 v240, v241, 4, v240")
        e(f"s_lshr_b32 s14, s{S_WV}, 1\ns_mul_i32 s15, s14, {8*3584}")
        e(f"s_and_b32 s101, s{S_G2}, 0xffffff80\ns_lshl_b32 s101, s101, 1\ns_add_u32 s15, s15, s101")
        e(f"v_add_u32 v240, s15, v240\nv_add_u32 v247, {4*3584 - 1024}, v240")
        e("s_lshl_b32 s12, s13, 12\ns_lshl_b32 s14, s14, 11\ns_add_u32 s12, s12, s14")
        e("v_bfe_u32 v241, v1, 4, 1\nv_bfe_u32 v242, v1, 2, 2")
        e("v_lshl_add_u32 v243, v242, 1, v241")
        e(f"s_lshl_b32 s13, s{S_WV}, 1\nv_xor_b32 v243, s13, v243\nv_lshlrev_b32 v243, 5, v243")
        e("v_lshl_add_u32 v243, v241, 12, v243\nv_lshl_add_u32 v243, v242, 8, v243")
        e("v_lshrrev_b32 v241, 5, v1\nv_lshl_add_u32 v243, v241, 11, v243")
        e("v_and_b32 v241, 1, v1\nv_lshl_add_u32 v243, v241, 4, v243")
        e("v_bfe_u32 v241, v1, 1, 1\nv_lshl_add_u32 v241, v241, 3, v243")
        e("v_xor_b32 v242, 32, v241")
        e("v_add_u32 v243, 0x10000, v241\nv_add_u32 v244, 0x10000, v242\nv_add_u32 v245, 0x20000, v241\nv_add_u32 v246, 0x20000, v242")
        self.wt = {}
    def w_rot(self):
        e = self.e
        e(f"s_lshl_b32 s26, s{S_G1}, {2 if self.cfg['map8'] == 2 else 0}\ns_and_b32 s26, s26, {7 if self.cfg['rot'] else 0}\ns_mul_i32 s101, s{S_G3}, {16*16*3584}")
        for j in range(8): e(f"s_add_u32 s{18+j}, s26, {j}\ns_and_b32 s{18+j}, s{18+j}, 7\ns_mul_i32 s{18+j}, s{18+j}, {16*3584}\ns_add_u32 s{18+j}, s{18+j}, s101")
    def w_issue(self, ks):
        e = self.e
        if self.cfg.get('noch'):
            self.wt[ks] = None; e("s_nop 0\ns_nop 0\ns_nop 0\ns_nop 0"); return
        e(f"s_add_u32 m0, s12, {wslot(ks)}\ns_add_u32 s14, s{18 + (ks & 7)}, {(ks >> 3)*8*16*3584}")
        self.tok("buffer_load_dwordx4 v240, s[8:11], s14 offen lds")
        self.wt[ks] = self.tok("buffer_load_dwordx4 v247, s[8:11], s14 offen offset:1024 lds")
    def w_read(self, ks):
        b = wslot(ks); t_ = None
        for t in range(2):
            for i in range(2):
                o = b + 1024*i
                t_ = self.tok(f"ds_read_b64_tr_b16 {ar((t*32+ks)*4+2*i,2)}, v{241 + 2*(o >> 16) + t} offset:{o & 0xffff}")
        return t_
    def w_issue_l(self, r):
        for ks in r: self.w_issue(ks)
    def w_chunks(self, r):
        out = []
        for ks in r:
            l = self.cap(lambda: self.w_issue(ks)); out += [l[:3], l[3:]]
        return out
    def w_read_l(self, r):
        t = None
        for ks in r: t = self.w_read(ks)
        return t

    U1 = 176; U2 = 208
    def modf_chk_only(self):
        e = self.e
        def chk(ex):
            for i in range(8):
                e(f"v_min3_u32 v232, v{201+4*i}, v{203+4*i}, {'v232' if i else 'v201'}\nv_max3_u32 v233, v{201+4*i}, v{203+4*i}, {'v233' if i else 'v201'}")
            e(f"v_xor_b32 v232, s{S_TAG}, v232\nv_xor_b32 v233, s{S_TAG}, v233\nv_or_b32 v232, v232, v233\nv_cmp_ne_u32 vcc, 0, v232")
        self.guard("mf", chk, lambda: (self.modf_issue(), e("s_waitcnt vmcnt(0)")))
    def gate_issue(self, base=WS_FL1):
        self.e(f"v_lshlrev_b32 v235, 6, v0\ns_mov_b32 s101, {base}")
        return self.tok(f"buffer_load_dword v234, v235, s[{S_WS}:{S_WS+3}], s101 offen sc1")
    def gate_check(self, tok):
        self.wait(tok)
        self.guard("gt", lambda ex: self.e(f"v_cmp_ne_u32 vcc, s{S_TAG}, v234"), lambda: (self.gate_issue(), self.e("s_waitcnt vmcnt(0)")))
    def u_addr(self, v, t):
        e = self.e
        e(f"v_bfe_u32 v{v}, v1, 4, 1\nv_mul_u32_u24 v{v}, {1792*16}, v{v}")
        e(f"v_bfe_u32 v{t}, v1, 2, 1\nv_lshl_add_u32 v{v}, v{t}, 7, v{v}")
        e(f"v_bfe_u32 v{t}, v1, 3, 1\nv_lshl_add_u32 v{v}, v{t}, 6, v{v}")
        e(f"v_and_b32 v{t}, 3, v1\nv_lshl_add_u32 v{v}, v{t}, 4, v{v}")
    def u_job(self):
        e = self.e
        self.modf_chk_only()
        for v in range(2):
            for c_ in (0, 2):
                b_ = 200 + 16*v + c_
                e(f"v_add_f32 v{b_}, v{b_}, v{b_+4}\nv_add_f32 v{b_+8}, v{b_+8}, v{b_+12}\nv_add_f32 v{b_}, v{b_}, v{b_+8}")
        e("v_cvt_pk_bf16_f32 v7, v200, v202\nv_cvt_pk_bf16_f32 v5, v216, v218")
        e("v_lshlrev_b32 v8, 16, v5\nv_and_b32 v9, 0xffff0000, v5\nv_add_f32 v8, 1.0, v8\nv_add_f32 v9, 1.0, v9\nv_cvt_pk_bf16_f32 v5, v8, v9")
        e(f"v_lshlrev_b32 v3, 2, v0\nv_add_u32 v3, {L_SS}, v3")
        e("ds_write2st64_b32 v3, v5, v7 offset0:0 offset1:4")
        e("v_and_b32 v2, 1, v1\nv_lshlrev_b32 v2, 10, v2\nv_lshrrev_b32 v4, 5, v1\nv_lshl_add_u32 v2, v4, 4, v2")
        e(f"s_lshl_b32 s101, s{S_G3}, 9\ns_add_u32 s101, s101, {L_SS}\nv_add_u32 v2, s101, v2")
        e("s_waitcnt vmcnt(4) lgkmcnt(0)\ns_barrier")
        for ks in range(self.cfg["nrec"], 16): self.w_read(ks)
        for ks in range(16): e(f"ds_read_b128 {vr(100+4*ks,4)}, v2 offset:{32*ks}")
        self.u_addr(40, 41)
        e(f"s_mul_i32 s101, s{S_G3}, {2*1792*16}\ns_lshl_b32 s44, s{S_G2}, 4\ns_add_u32 s101, s101, s44\ns_add_u32 s101, s101, {WS_U}")
        e("s_cmp_eq_u32 s10, 0\ns_cselect_b32 s101, 0x7f000000, s101")
        e("s_waitcnt lgkmcnt(0)")
        for ks in range(16):
            for t in range(2):
                acc = vr(4 + 16*t, 16)
                e(f"v_mfma_f32_32x32x16_bf16 {acc}, {vr(100+4*ks,4)}, {ar((t*32+ks)*4,4)}, {acc if ks else '0'}")
        for t in range(2):
            e(f"v_mov_b32 v{44+4*t}, v{4+16*t}\nv_mov_b32 v{45+4*t}, s{S_TAG}\nv_mov_b32 v{46+4*t}, v{5+16*t}\nv_mov_b32 v{47+4*t}, s{S_TAG}")
        e("s_mov_b32 s47, s101")
    def u_pub(self):
        e = self.e
        e("s_mov_b32 exec_hi, 0")
        for t in range(2): e(f"buffer_store_dwordx4 {vr(44+4*t,4)}, v40, s[{S_WS}:{S_WS+3}], s47 offen offset:{256*t} sc1")
        e("s_mov_b32 exec_hi, -1")

    def shadow1(self):
        e = self.e; c = self.cfg; cap = self.cap
        nr = c["nrec"]; n1 = 13 + nr
        assert nr == 8
        self.w_read_l(range(nr, 13))
        e(f"s_lshl_b32 s{S_T1}, s{S_WV}, 13")
        e(f"s_lshl_b32 s33, s{S_G1}, 10\ns_add_u32 s33, s33, {WS_ST2}")
        e("v_lshlrev_b32 v147, 4, v1")
        e(f"v_add_u32 v146, s{S_T1}, v147\nv_add_u32 v143, 0x10000, v146")
        e(f"s_lshl_b32 s{S_T0}, s{S_G1}, 17\ns_add_u32 s{S_T0}, s{S_T0}, s{S_T1}\ns_add_u32 s{S_T0}, s{S_T0}, {hx(WS_X1S)}")
        self.wait(self.wt[n1-1])
        e("s_waitcnt lgkmcnt(0)\ns_barrier")
        self.stamp(8)
        r = self.w_read_l(range(13, n1))
        self.w_issue_l(range(n1, 26))
        e("v_lshrrev_b32 v144, 5, v1\nv_lshlrev_b32 v144, 9, v144")
        e("v_bfe_u32 v145, v1, 2, 2\nv_lshl_add_u32 v144, v145, 6, v144")
        e("v_bfe_u32 v145, v1, 4, 1\nv_lshl_add_u32 v144, v145, 5, v144")
        e("v_and_b32 v145, 3, v1\nv_lshl_add_u32 v144, v145, 3, v144")
        e("v_add_u32 v144, 0x10000, v144")
        for j in range(8): e(f"s_add_u32 s101, s26, {j}\ns_and_b32 s101, s101, 7\nv_lshl_add_u32 v{BA[j]}, s101, 10, v144")
        e("v_and_b32 v145, 31, v1\nv_lshlrev_b32 v145, 3, v145")
        for r_ in range(4): e(f"v_mov_b32 v{self.BX+4*r_+2}, 0\nv_mov_b32 v{self.BX+4*r_+3}, 0")
        e(f"v_mov_b32 v{self.AX+2}, 0\nv_mov_b32 v{self.AX+3}, 0\nv_mov_b32 v{self.AX+6}, 0\nv_mov_b32 v{self.AX+7}, 0")
        self.u_addr(138, 139)
        e(f"s_lshl_b32 s35, s{S_G2}, 4\ns_add_u32 s35, s35, {WS_U}\ns_add_u32 s34, s35, {2*1792*16}")
        self.wd_setup_s()
        self.wait(r)
        e("s_barrier")
        self.w_issue_l(range(26, 26 + c["wx"]))
        self.stamp(27)
        self.xt = {}
        self.xt[0] = self.x1s_issue(0)
        self.htok = {}
        if c["late1"]:
            self.g2_setup_a()
            self.lateq = self.cap(lambda: (self.xt.__setitem__(1, self.x1s_issue(1)), self.w_issue_l(range(26 + c["wx"], 32)), self.g2_setup_b()))
        else:
            self.xt[1] = self.x1s_issue(1)
            self.w_issue_l(range(26 + c["wx"], 32))
            self.g2_setup(); self.lateq = []
        e('WARMCALL 3')
        self.stamp(9)
        self.x1s_guard(0, 148, self.xt[0])
        e("s_waitcnt lgkmcnt(0)\ns_barrier")
        self.stamp(12)

    def stats2_job(self, after_issue):
        e = self.e
        e(f"s_lshl_b32 s{S_T2}, s{S_XCD}, 2\ns_add_u32 s{S_T2}, s{S_T2}, s{S_IDX}\ns_sub_u32 s{S_T2}, s{S_T2}, 28")
        e(f"s_lshr_b32 s101, s{S_T2}, 1\ns_lshl_b32 s101, s101, 2\ns_and_b32 s{S_T2}, s{S_T2}, 1\ns_add_u32 s{S_T2}, s{S_T2}, s101")
        e(f"s_lshl_b32 s{S_T1}, s{S_WV}, 13")
        e(f"s_lshl_b32 s{S_T0}, s{S_T2}, 15\ns_add_u32 s{S_T0}, s{S_T0}, s{S_T1}\ns_add_u32 s{S_T0}, s{S_T0}, {hx(WS_X1)}")
        e("v_lshlrev_b32 v147, 4, v1\nv_lshlrev_b32 v146, 7, v1")
        e("v_lshrrev_b32 v144, 5, v1\nv_lshlrev_b32 v144, 9, v144")
        e("v_bfe_u32 v145, v1, 2, 2\nv_lshl_add_u32 v144, v145, 6, v144")
        e("v_bfe_u32 v145, v1, 4, 1\nv_lshl_add_u32 v144, v145, 5, v144")
        e("v_and_b32 v145, 3, v1\nv_lshl_add_u32 v144, v145, 3, v144")
        e(f"s_lshl_b32 s{S_T1}, s{S_WV}, 14\nv_add_u32 v144, s{S_T1}, v144")
        e(f"v_mov_b32 v60, 0x3f803f80\nv_and_b32 v61, 31, v1\nv_lshlrev_b32 v62, 3, v61\ns_lshl_b32 s101, s{S_WV}, 8\ns_add_u32 s101, s101, {L_SS}")
        e(f"v_add_u32 v63, s101, v62\nv_add_u32 v61, {L_SS}, v62")
        e(f"s_lshl_b32 s{S_T3}, s{S_T2}, 8\ns_add_u32 s{S_T3}, s{S_T3}, {WS_ST2}\ns_cmp_lg_u32 s{S_WV}, 0\ns_cselect_b32 s{S_T3}, 0x7f000000, s{S_T3}")
        e("s_barrier")
        self.tlane(58, 59)
        e(f"s_mov_b32 s{S_SPIN}, {self.cfg['spin']}")
        lp = self.lab("pj"); go = self.lab("pg")
        self.label(lp)
        e(f"buffer_load_dword v64, v146, s[{S_WS}:{S_WS+3}], s{S_T0} offen sc1")
        e(f"buffer_load_dword v65, v146, s[{S_WS}:{S_WS+3}], s{S_T0} offen offset:64 sc1")
        e(f"s_waitcnt vmcnt(0)\nv_bitop3_b32 v64, v64, v65, s{TG[0]} bitop3:0x7e\nv_and_b32 v64, 0x00010001, v64\nv_cmp_ne_u32 vcc, 0, v64\ns_nop 1")
        e(f"s_cbranch_vccz {go}")
        self.spin_check(lp)
        self.label(go)
        def dma(b):
            for j in range(8):
                if j % 4 == 0: e(f"s_add_u32 m0, s{S_T1}, {b*8192 + j*1024}\ns_add_u32 s101, s{S_T0}, {b*65536 + j*1024}")
                e(f"buffer_load_dwordx4 v147, s[{S_WS}:{S_WS+3}], s101 offen offset:{(j%4)*1024} sc1 lds")
        dma(0); dma(1); after_issue()
        for b in range(2):
            def chk(ex, b=b):
                for j in range(16): e(f"ds_read_b64_tr_b16 {vr(68+2*j,2)}, v144 offset:{b*8192 + (j>>1)*1024 + (j&1)*256}")
                for j in range(32):
                    if j % 8 == 0: e(f"s_waitcnt lgkmcnt({12 - j//2})")
                    e(f"v_dot2_f32_bf16 v64, v{68+j}, v60, {'v64' if j else '0'}")
                    e(f"v_dot2_f32_bf16 v65, v{68+j}, v{68+j}, {'v65' if j else '0'}")
                    if j & 1: e(f"v_bitop3_b32 v59, v{67+j}, v{68+j}, v58 bitop3:0x7e\nv_or_b32 v57, v59, {'v57' if j > 1 else 'v59'}")
                e("v_and_b32 v57, 0x00010001, v57\nv_cmp_ne_u32 vcc, 0, v57")
            e(f"s_waitcnt vmcnt({10 if b == 0 else 3})")
            self.guard("g2", chk, lambda b=b: (dma(b), e("s_waitcnt vmcnt(0)")))
            e("v_mov_b32 v66, v64\nv_mov_b32 v67, v65\ns_nop 0\nv_permlane32_swap_b32 v64, v66\nv_permlane32_swap_b32 v65, v67\nv_add_f32 v64, v64, v66\nv_add_f32 v65, v65, v67")
            e(f"ds_write_b64 v63, v[64:65] offset:{1024*b}\ns_waitcnt lgkmcnt(0)\ns_barrier")
            for w in range(4): e(f"ds_read_b64 {vr(68+2*w,2)}, v61 offset:{1024*b + 256*w}")
            e("s_waitcnt lgkmcnt(0)")
            e("v_pk_add_f32 v[68:69], v[68:69], v[70:71]\nv_pk_add_f32 v[72:73], v[72:73], v[74:75]\nv_pk_add_f32 v[68:69], v[68:69], v[72:73]")
            self.stat_finish(68, 69, 70, 71)
            e(f"v_mov_b32 v69, s{S_TAG}")
            e(f"buffer_store_dwordx2 v[68:69], v62, s[{S_WS}:{S_WS+3}], s{S_T3} offen offset:{512*b} sc1")
            self.stamp(11 if b else 45)
        e("s_barrier")

    def wd_setup_s(self):
        e = self.e
        e(f"s_mul_i32 s{S_LDT}, s{S_WV}, {448*1024}")
        e(f"s_and_b32 s101, s{S_IDX}, 7\ns_lshl_b32 s101, s101, 7\ns_add_u32 s{S_LDT}, s{S_LDT}, s101")
        e(f"s_lshr_b32 s36, s{S_IDX}, 3\ns_lshl_b32 s36, s36, 1\ns_add_u32 s36, s36, s{S_IDX}\ns_and_b32 s36, s36, {7 if self.cfg['rot2'] else 0}")
        e("s_cmp_eq_u32 s36, 7\ns_cselect_b32 s36, 0, s36\ns_lshl_b32 s36, s36, 10")
        for j in range(1, 7): e(f"s_add_u32 s{36+j}, s{35+j}, 1024\ns_cmp_eq_u32 s{36+j}, 7168\ns_cselect_b32 s{36+j}, 0, s{36+j}")
        for b_ in range(1, 4): e(f"s_add_u32 s{27+b_}, s{S_LDT}, {b_*7*16384}")
        e(f"s_mul_i32 s{S_M+8}, s{S_WV}, 6144\ns_add_u32 s{S_M+8}, s{S_M+8}, {L_SP}")
        e(f"s_lshl_b32 s{S_M+9}, s{S_WV}, 13")
    def wd_setup_v(self):
        e = self.e
        e("v_lshrrev_b32 v240, 3, v1")
        e("v_bfe_u32 v241, v1, 4, 1\nv_lshlrev_b32 v241, 2, v241")
        e("v_and_b32 v242, 7, v1\nv_xor_b32 v241, v241, v242")
        e("v_lshlrev_b32 v240, 10, v240\nv_lshl_add_u32 v240, v241, 4, v240")
        e(f"v_add_u32 v241, {8192 - 1024}, v240")
        e("v_lshrrev_b32 v242, 5, v1\nv_lshlrev_b32 v242, 10, v242")
        e("v_bfe_u32 v243, v1, 2, 2\nv_lshl_add_u32 v242, v243, 7, v242")
        e("v_bfe_u32 v243, v1, 3, 1\nv_lshl_add_u32 v242, v243, 6, v242")
        e("v_and_b32 v243, 1, v1\nv_lshl_add_u32 v242, v243, 5, v242")
        e(f"v_bfe_u32 v243, v1, 1, 1\nv_bfe_u32 v244, v1, 4, 1\nv_lshl_add_u32 v243, v244, 1, v243\nv_add_u32 v243, s{S_WV}, v243\nv_and_b32 v243, 3, v243\nv_lshl_add_u32 v242, v243, 3, v242")
        e(f"v_add_u32 v244, s{S_M+9}, v242\nv_xor_b32 v245, 64, v244\nv_add_u32 v246, 0x10000, v244\nv_add_u32 v247, 0x10000, v245")
        e(f"v_add_u32 v242, s{S_M+8}, v242\nv_xor_b32 v243, 64, v242")
    def wd_setup(self):
        self.wd_setup_s(); self.wd_setup_v()
    NV = 5
    WPOS = [0, 1, 2, 3, 4, 5, 6, 0, 1, 2, 7, 8, 9, 10, 3, 4, 11, 12, 13, 14, 5, 6, 0, 1, 2, 7, 8, 9]
    WPREV = {7: 0, 8: 1, 9: 2, 14: 3, 15: 4, 20: 5, 21: 6, 22: 7, 23: 8, 24: 9, 25: 10, 26: 11, 27: 12}
    def wd_loc(self, ks):
        sl = self.WPOS[ks]
        if sl < 3: return 0, 2048*sl
        q, r = divmod(sl - 3, 4)
        return 1, (3 - q)*32768 + 2048*r
    def WA(self, ks, t, off=0, n=4):
        if ks < self.NV: return vr(200 + 8*ks + 4*t + off, n)
        return ar((t*32 + ks - self.NV)*4 + off, n)
    def wd_issue(self, ks):
        e = self.e
        r, o = self.wd_loc(ks)
        e(f"s_add_u32 m0, s{S_M+8+r}, {o}\ns_lshl4_add_u32 s15, s{36 + ks % 7}, s{S_LDT if ks < 7 else 27 + ks // 7}")
        self.tok(f"buffer_load_dwordx4 v240, s[{S_WD}:{S_WD+3}], s15 offen lds")
        self.wdt[ks] = self.tok(f"buffer_load_dwordx4 v241, s[{S_WD}:{S_WD+3}], s15 offen offset:1024 lds")
    def wd_chunks(self, r):
        out = []
        for ks in r:
            l = self.cap(lambda: self.wd_issue(ks)); out += [l[:3], l[3:]]
        return out
    def wd_read(self, ks):
        r, o = self.wd_loc(ks); t_ = None
        for t in range(2):
            for i in range(2):
                oo = o + 512*i
                reg = 242 if r == 0 else (244 if oo < 65536 else 246)
                t_ = self.tok(f"ds_read_b64_tr_b16 {self.WA(ks, t, 2*i, 2)}, v{reg+t} offset:{oo & 0xffff}")
        return t_

    def gemm1f(self):
        e = self.e; c = self.cfg; cap = self.cap
        e(f"s_mov_b32 s{S_T2}, s{self.S_HB}\ns_mov_b32 s{S_T3}, {fl(-GC)}")
        ACC = [4, 36, 68]; BR = 100; R = 6
        seq = [(0, k) for k in range(16)] + [(1, k) for k in range(16)] + [(0, k) for k in range(16, 32)] + [(1, k) for k in range(16, 32)] + [(g, k) for g in (2, 3) for k in range(32)]
        def bread(n):
            g, ks = seq[n]; b = BR + 4*(n % R); base = self.XT(g); ad = BA[ks & 7]
            o = base % 65536 + (ks >> 3)*8192
            self.tok(f"ds_read_b64_tr_b16 {vr(b,2)}, v{ad} offset:{o}")
            t_ = self.tok(f"ds_read_b64_tr_b16 {vr(b+2,2)}, v{ad} offset:{o+256}")
            if g == 1 and ks >= 24: e(f"v_add_u32 v{ad}, 0xffff0000, v{ad}")
            return t_
        PF = R - 1
        tk = {}
        for n in range(PF): tk[n] = bread(n)
        ST = [128, 130, 132, 134]
        def st_issue(h):
            t = None
            for g in (2*h, 2*h+1):
                t = self.tok(f"buffer_load_dwordx2 {vr(ST[g],2)}, v145, s[{S_WS}:{S_WS+3}], s33 offen offset:{256*g} sc1")
            return t
        def st_guard(h, tok):
            def st_chk(ex):
                e(f"v_xor_b32 v136, s{S_TAG}, v{ST[2*h]+1}\nv_xor_b32 v137, s{S_TAG}, v{ST[2*h+1]+1}\nv_or_b32 v136, v136, v137\nv_cmp_ne_u32 vcc, 0, v136")
            self.wait(tok)
            self.guard("st", st_chk, lambda: (st_issue(h), e("s_waitcnt vmcnt(0)")))
            e("s_mov_b32 s44, 0x03020302\ns_mov_b32 s43, 0x01000100")
            for g in (2*h, 2*h+1):
                b = ST[g]; x = self.BX + 4*g
                e(f"v_lshlrev_b32 v{b+1}, 16, v{b}\nv_rcp_f32 v136, v{b+1}")
                e(f"v_perm_b32 v{x}, v{b}, v{b}, s44\nv_perm_b32 v{x+1}, v{b}, v{b}, s43")
                e(f"v_mul_f32 v{b}, {fl(GAM)}, v136\nv_xor_b32 v{x}, 0x80008000, v{x}\nv_mul_f32 v{b+1}, {fl(GAM)}, v{b+1}")
        UR = 200
        def u_issue():
            t_ = None
            for t in range(2):
                for h in range(2):
                    t_ = self.tok(f"buffer_load_dwordx4 {vr(UR+8*t+4*h,4)}, v138, s[{S_WS}:{S_WS+3}], s{35-h} offen offset:{256*t} sc1")
            return t_
        def u_chk(ex):
            for i in range(4): e(f"v_min3_u32 v136, v{UR+4*i+1}, v{UR+4*i+3}, {'v136' if i else 'v%d' % (UR+1)}\nv_max3_u32 v137, v{UR+4*i+1}, v{UR+4*i+3}, {'v137' if i else 'v%d' % (UR+1)}")
            e(f"v_xor_b32 v136, s{S_TAG}, v136\nv_xor_b32 v137, s{S_TAG}, v137\nv_or_b32 v136, v136, v137\nv_cmp_ne_u32 vcc, 0, v136")
        def u_guard(tok):
            self.wait(tok)
            self.guard("mf", u_chk, lambda: (u_issue(), e("s_waitcnt vmcnt(0)")))
            e("v_cmp_gt_u32 vcc, 32, v1")
            for t in range(2):
                for k in range(2):
                    u = UR + 8*t + 2*k; d = self.AX + 4*t + k
                    e(f"v_add_f32 v{u}, v{u}, v{u+4}\nv_cvt_pk_bf16_f32 v136, v{u}, v{u}\nv_and_b32 v136, 0xffff0000, v136\nv_sub_f32 v136, v{u}, v136")
                    e(f"v_cvt_pk_bf16_f32 v136, v{u}, v136\nv_cndmask_b32 v{d}, 0, v136, vcc")
        STN = [8, 16, 24, 32, 40, 48, 56, 64, 80, 96, 104, 112, 120]
        def steps(n0, n1):
            for n in range(n0, n1):
                g, ks = seq[n]
                if n in STN: self.stamp(30 + STN.index(n))
                self.wait(tk[n])
                for t in range(2):
                    acc = vr(ACC[g % 3] + 16*t, 16)
                    e(f"v_mfma_f32_32x32x16_bf16 {acc}, {ar((t*32+ks)*4,4)}, {vr(BR+4*(n%R),4)}, {acc if ks else '0'}")
                    if t == 0 and n + PF < 128: tk[n+PF] = bread(n+PF)
                    for it in extra.get((n, t), []): self.p.put(it() or [])
                if ks == 31 and g: self.g1_fold(g, ACC[g % 3])
        extra = {}
        def seg(n0, n1, fill, flush=True, pace=None):
            m = cap(lambda: steps(n0, n1))
            m, left = merge(m, fill, 24, pace=pace or c["gpace"])
            self.p.put(m)
            if flush:
                if left: sys.stderr.write(f"flush {len(left)} at {n1}\n")
                self.p.put(left); return []
            return left
        xt = self.xt; hold = {}; self.wdt = {}; self.rd = {}; self.ht = {}
        def at(n, fn, t=1): extra.setdefault((n, t), []).append(fn)
        def spread_vm(n0, fn, per=1, step=1):
            box = {}
            def first():
                box["l"] = cap(fn)
            def part():
                if "l" not in box: first()
                out = []; k = 0
                while box["l"] and k < per:
                    i = box["l"].pop(0); out.append(i)
                    if i.wait is None and i.text.startswith("buffer_"): k += 1
                return out
            cnt = sum(1 for i in self.peek(fn) if i.wait is None and i.text.startswith("buffer_"))
            nst = -(-cnt // per)
            for j in range(nst): at(n0 + j*step, part, c['vt'])
            return n0 + nst*step
        def wrd(ks):
            def f():
                self.wait(self.wdt[ks]); self.rd[ks] = self.wd_read(ks)
            return f
        def wis(ks):
            def f():
                if ks in self.WPREV: self.wait(self.rd[self.WPREV[ks]])
                self.wd_issue(ks)
            return f
        n = spread_vm(c["b2"], lambda: xt.__setitem__(2, self.x1s_issue(2)))
        n = spread_vm(max(n, c["b3"]), lambda: xt.__setitem__(3, self.x1s_issue(3)))
        spread_vm(c["ui"], lambda: hold.__setitem__("u", u_issue()), per=1)
        n = spread_vm(max(n, c["sti"]), lambda: hold.__setitem__("t0", st_issue(0)), per=2)
        for ks in range(3): n = spread_vm(n, wis(ks))
        n = c["b4"]
        for ks in range(3, 7): n = spread_vm(n, wis(ks))
        for j in range(3): at(c["b4"] + 1 + 2*j, wrd(j))
        at(n, lambda: hold.__setitem__("t1", st_issue(1))); n += 1
        for ks in range(7, 10): n = spread_vm(n, wis(ks))
        n = max(n, 67)
        for ks in range(10, 14): n = spread_vm(n, wis(ks))
        at(68, wrd(3)); at(70, wrd(4))
        for ks in (14, 15): n = spread_vm(n, wis(ks))
        if c["twx"]: at(n + 1, lambda: self.touch_wdx2())
        n = 98
        for ks in range(16, 20): n = spread_vm(n, wis(ks))
        for j in range(c["nrd"]): at(min(127, 98 + c["rss"]*j), wrd(5 + j))
        for ks in range(20, 20 + c["nrc"]): n = spread_vm(n, wis(ks))
        nhe = min(8, 128 - n, c["nhe"])
        for j in range(nhe): at(n + j, lambda j=j: self.hl(0, j, 147), c['vt'])
        seg(0, c["b1"] - 5, self.lateq, pace=1)
        seg(c["b1"] - 5, c["b1"], cap(lambda: self.x1s_guard(1, 148, xt[1])))
        e("s_barrier")
        seg(c["b1"], c["b2"], cap(lambda: self.wait(self.w_read_l(range(21, 26)), self.wt[31])))
        e("s_barrier")
        seg(c["b2"], c["b3"], cap(lambda: self.wait(self.w_read_l(range(26, 32)))))
        e("s_barrier")
        seg(c["b3"], c["g2k"], cap(self.wd_setup_v))
        seg(c["g2k"], c["uk"], cap(lambda: self.x1s_guard(2, 148, xt[2])))
        seg(c["uk"], c["stk"], cap(lambda: u_guard(hold["u"])))
        self.stamp(13)
        seg(c["stk"], 48, cap(lambda: st_guard(0, hold["t0"])))
        e('WARMREG 3')
        self.g1_fold(0, ACC[0])
        g3 = cap(lambda: self.x1s_guard(3, 164, xt[3])); e0 = self.g1_epilogue(0, ACC[0], ST[0])
        pend = seg(48, c["b4"], e0[:24] + g3[:9] + e0[24:48] + g3[9:] + e0[48:], flush=False)
        e("s_barrier")
        pend = seg(c["b4"], 64, pend, flush=False)
        ep1 = self.g1_epilogue(1, ACC[1], ST[1], split=True)
        pend = seg(64, 66, pend + ep1[0], flush=False)
        e("s_barrier")
        pend = seg(66, c["st1k"], pend, flush=False)
        pend = seg(c["st1k"], 88, cap(lambda: st_guard(1, hold["t1"])) + pend + ep1[1], flush=False)
        assert not any(i.kind == "label" for i in pend)
        e("s_barrier")
        pend = seg(88, 96, pend, flush=False)
        n1_ = len(pend)
        pend = seg(96, 98, pend + self.g1_epilogue(2, ACC[2], ST[2]), flush=False)
        sys.stderr.write(f"ep1 backlog at 96: {n1_}\n")
        e("s_barrier")
        pend = seg(98, 128, pend, flush=False)
        sys.stderr.write(f"tail leftover {len(pend)} nhe {nhe}\n")
        self.stamp(14)
        self.p.put(pend)
        hch = [cap(lambda: self.hl(0, ks, 147)) for ks in range(nhe, nhe + c["nh"])]
        self.p.put(weave(self.g1_epilogue(3, ACC[0], ST[3]), hch, c["hw"]))
        self.stamp(15)
        if c.get('warm') == 1: e('WARMREG -1')

    HB = 68
    def HR(self, ks): return 68 + 4*ks if ks < 14 else (200 + 4*(ks-14) if ks < 24 else 124 + 4*(ks-24))
    def g2_setup_b(self):
        for b_ in range(4): self.e(f"s_add_u32 s{18+b_}, s{S_M+4}, {b_*7168}\ns_add_u32 s{22+b_}, s{S_M+5}, {b_*7168}")
    def g2_setup(self):
        self.g2_setup_a(); self.g2_setup_b()
    def g2_setup_a(self):
        e = self.e
        self.g2_map()
        e(f"s_mul_i32 s{S_M+4}, s{S_G1}, {112*1024}\ns_mul_i32 s{S_M+5}, s{S_G2}, {112*1024}")
        e(f"s_mul_i32 s{S_M+6}, s{S_WV}, {28*1024}\ns_add_u32 s{S_M+6}, s{S_M+6}, {hx(WS_H)}")
        e(f"s_add_u32 s{S_M+4}, s{S_M+4}, s{S_M+6}\ns_add_u32 s{S_M+5}, s{S_M+5}, s{S_M+6}")
        e(f"s_lshr_b32 s45, s{S_WV}, 1\ns_sub_u32 s44, s{S_G2}, s{S_G1}\ns_mul_i32 s45, s45, s44\ns_add_u32 s45, s45, s{S_G1}")
        e(f"s_and_b32 s46, s{S_WV}, 1\ns_lshl_b32 s46, s46, 5\ns_lshl_b32 s44, s{S_G3}, 6\ns_add_u32 s46, s46, s44")
        e(f"s_lshl_b32 s{S_M}, s45, 15\ns_lshl_b32 s{S_M+1}, s46, 6\ns_add_u32 s{S_M}, s{S_M}, s{S_M+1}\ns_add_u32 s{S_M}, s{S_M}, {hx(WS_X1)}")
        e(f"s_lshl_b32 s{S_M+1}, s{S_WV}, 11\ns_add_u32 s{S_M+1}, s{S_M+1}, {L_XR2}")
    def fl_issue(self, nt, va, vd): return self.tok(f"buffer_load_dword v{vd}, v{va}, s[{S_WS}:{S_WS+3}], s{S_M+2+nt} offen sc1")
    def HX(self, nt, ks):
        spare = [92 + 4*i for i in range(9)] + [220 + 4*i for i in range(9)]
        if nt == 0: return vr(36 + 4*ks, 4) if ks < 26 else ar(spare[ks - 26], 4)
        if ks < 16: return ar(spare[2 + ks], 4)
        return vr(36 + 4*(ks - 8), 4)
    def hl(self, nt, ks, va):
        self.e(f"s_add_u32 s47, s{36 + ks % 7}, s{18 + 4*nt + ks // 7}")
        self.ht[(nt, ks)] = self.tok(f"buffer_load_dwordx4 {self.HX(nt, ks)}, v{va}, s[{S_WS}:{S_WS+3}], s47 offen" + {2: "", 3: " sc0", 4: " nt"}.get(self.cfg.get("hp"), " sc1"))
    def gemm2f(self):
        e = self.e; c = self.cfg; cap = self.cap
        rd = self.rd; ht = self.ht
        e(f"v_mov_b32 v182, v147\nv_min_u32 v183, 27, v1\nv_lshlrev_b32 v183, 10, v183")
        e("s_barrier")
        todo = [ks for ks in range(28) if ks not in self.wdt]
        for ks in range(28):
            if ks not in rd and any(self.WPREV.get(k2) == ks for k2 in todo):
                self.wait(self.wdt[ks]); rd[ks] = self.wd_read(ks)
        self.stamp(16)
        order = []
        for ks in range(28):
            if ks in todo: order.append(("w", ks))
            if (0, ks) not in ht: order.append(("h", ks))
        def iss(it):
            if it[0] == "h": self.hl(0, it[1], 182)
            else:
                self.wait(rd[self.WPREV[it[1]]]); self.wd_issue(it[1])
        def mm(nt, ks):
            for t in range(2):
                acc = vr(4 + 32*nt + 16*t, 16)
                e(f"v_mfma_f32_32x32x16_bf16 {acc}, {self.WA(ks, t)}, {self.HX(nt, ks)}, {acc if ks else '0'}")
        probe = lambda: self.tok(f"buffer_load_dword v184, v183, s[{S_WS}:{S_WS+3}], s{S_M+5} offen sc1")
        def hguard(nt, k0):
            def hchk(ex):
                for j in range(7):
                    op = self.HX(nt, k0 + j); b_ = int(op[2:op.index(":")])
                    if op[0] == "a":
                        e(f"v_accvgpr_read_b32 v190, a{b_}\nv_accvgpr_read_b32 v191, a{b_+1}"); s0, s1 = 190, 191
                    else: s0, s1 = b_, b_ + 1
                    if j == 0: e(f"v_xor_b32 v189, s{TG[0]}, v{s0}")
                    else: e(f"v_bitop3_b32 v189, v189, v{s0}, s{TG[0]} bitop3:0xf6")
                    e(f"v_bitop3_b32 v189, v189, v{s1}, s{TG[1]} bitop3:0xf6")
                e("v_and_b32 v189, 0x00010001, v189\nv_cmp_ne_u32 vcc, 0, v189")
            def reis():
                keep_ = dict(ht)
                for j in range(7): self.hl(nt, k0 + j, 182)
                ht.update(keep_); e("s_waitcnt vmcnt(0)")
            self.wait(*[ht[(nt, k0 + j)] for j in range(7)])
            self.guard("hc", hchk, reis)
        self.hguard = hguard
        GB = 140; RS = 148; RX = 156; SU = 160
        def extras():
            e(f"s_mov_b32 m0, s{S_M+1}\ns_nop 0")
            self.tok(f"buffer_load_dwordx4 v182, s[{S_WS}:{S_WS+3}], s{S_M} offen sc1 lds")
            self.xr = self.tok(f"buffer_load_dwordx4 v182, s[{S_WS}:{S_WS+3}], s{S_M} offen offset:1024 sc1 lds")
            e("v_lshrrev_b32 v185, 5, v1\nv_lshlrev_b32 v250, 5, v185\nv_lshlrev_b32 v185, 6, v185")
            e(f"s_lshl_b32 s{S_M+2}, s{S_G3}, 8\ns_lshl_b32 s44, s{S_WV}, 4\ns_add_u32 s{S_M+2}, s{S_M+2}, s44\ns_add_u32 s{S_M+2}, s{S_M+2}, {WS_MODF}")
            for mt in range(2): self.gbt = self.tok(f"buffer_load_dwordx4 {vr(GB+4*mt,4)}, v185, s[{S_WS}:{S_WS+3}], s{S_M+2} offen offset:{128*mt} sc1")
        rest = list(order)
        KC = c["kc"]; box = {}
        def rdw(ks):
            if ks < 28 and ks not in rd:
                self.wait(self.wdt[ks]); rd[ks] = self.wd_read(ks)
        def run(lst, fill, pace=1):
            m, left = merge(lst, fill, 24, pace=pace); self.p.put(m + left)
        def part0(k0, k1):
            for ks in range(k0, k1):
                for _ in range(c["npi"]):
                    if rest: iss(rest.pop(0))
                if ks >= c["kf"] and not rest and "f1" not in box: extras(); box["f1"] = probe()
                rdw(ks + 1)
                self.wait(rd[ks]); mm(0, ks)
        st = {"nx": 0}
        def part1(k0, k1):
            for ks in range(k0, k1):
                for _ in range(c["nb"]):
                    nx = st["nx"]
                    if nx < 28 and (nx < 16 or nx - 8 < ks): self.hl(1, nx, 182); st["nx"] += 1
                rdw(ks + 1)
                self.wait(rd[ks]); mm(0, ks)
        rdw(0)
        while rest and rest[0][1] < 7: iss(rest.pop(0))
        hguard(0, 0)
        assert 7 < KC <= 14
        LA = c["la"]
        self.p.put(cap(lambda: part0(0, 7 - LA)))
        while rest and rest[0][1] < 14: iss(rest.pop(0))
        run(cap(lambda: part0(7 - LA, 7)), cap(lambda: hguard(0, 7)))
        self.p.put(cap(lambda: part0(7, KC)))
        assert not rest and "f1" in box
        slow = self.lab("g2slow"); jn = self.lab("g2j")
        self.wait(box["f1"])
        e(f"v_xor_b32 v184, s{TG[0]}, v184\nv_and_b32 v184, 0x00010001, v184\nv_cmp_ne_u32 vcc, 0, v184\ns_cbranch_vccnz {slow}")
        pendw = [ks for ks in range(28) if ks not in rd]
        run(cap(lambda: part1(KC, 14)), cap(lambda: hguard(0, 14)))
        self.p.put(cap(lambda: part1(14, 21 - LA)))
        run(cap(lambda: part1(21 - LA, 21)), cap(lambda: hguard(0, 21)))
        self.p.put(cap(lambda: part1(21, 28 - LA)))
        run(cap(lambda: part1(28 - LA, 28)), cap(lambda: hguard(1, 0)))
        NJ = st["nx"]
        self.label(jn)
        keep = dict(ht)
        def rout():
            lp = self.lab("g2l"); ok = self.lab("g2ok")
            plain = lambda body: self.p.put([i for i in body if i.wait is None])
            self.label(slow)
            e("s_waitcnt vmcnt(0)")
            for ks in pendw: self.wd_read(ks)
            probe()
            e("s_waitcnt lgkmcnt(0)")
            for ks in range(KC, 28):
                if ks % 7 == 0: plain(cap(lambda: hguard(0, ks)))
                mm(0, ks)
            e(f"s_mov_b32 s{S_SPIN}, {self.cfg['spin']}")
            self.label(lp)
            e(f"s_waitcnt vmcnt(0)\nv_xor_b32 v184, s{TG[0]}, v184\nv_and_b32 v184, 0x00010001, v184\nv_cmp_ne_u32 vcc, 0, v184\ns_nop 1\ns_cbranch_vccz {ok}")
            probe()
            self.spin_check(lp)
            e("s_waitcnt vmcnt(0)")
            self.label(ok)
            if c.get("stamps"): e("v_writelane_b32 v255, 1, 51")
            for ks in range(NJ): self.hl(1, ks, 182)
            e(f"s_waitcnt vmcnt({NJ - 7})")
            plain(cap(lambda: hguard(1, 0)))
            e(f"s_branch {jn}")
        self.ool += cap(rout)
        ht.update(keep)
        self.stamp(19)
        def wr(T):
            t_ = None
            for j in range(1, 4): t_ = self.tok(f"ds_write_b128 v{186 + (T >> 1)}, {vr(4+16*T+4*j,4)} offset:{(T & 1)*32768 + 1024*j}")
            return t_
        def addrs():
            e(f"v_add_u32 v186, s{S_M+9}, v182\nv_add_u32 v187, 0x10000, v186")
            for j in range(1, 4):
                e(f"s_sub_u32 s44, s{S_WV}, {j}\ns_and_b32 s44, s44, 3\ns_lshl_b32 s44, s44, 13\nv_add_u32 v{191+j}, s44, v182")
            e("v_lshrrev_b32 v248, 5, v1\nv_lshlrev_b32 v248, 10, v248")
            e("v_bfe_u32 v249, v1, 2, 2\nv_lshl_add_u32 v248, v249, 6, v248")
            e("v_bfe_u32 v249, v1, 4, 1\nv_lshl_add_u32 v248, v249, 5, v248")
            e("v_and_b32 v249, 3, v1\nv_lshl_add_u32 v248, v249, 3, v248")
            e(f"s_lshl_b32 s44, s{S_WV}, 8\ns_add_u32 s44, s44, {L_XR2}\nv_add_u32 v248, s44, v248")
            e("v_and_b32 v249, 31, v1\nv_lshl_add_u32 v249, v249, 10, v250")
            e(f"s_lshl_b32 s{S_T0}, s{S_G3}, 7\ns_lshl_b32 s44, s{S_WV}, 3\ns_add_u32 s{S_T0}, s{S_T0}, s44")
            e(f"s_lshl_b32 s44, s{S_G2}, 15\ns_add_u32 s{S_T1}, s{S_T0}, s44\ns_lshl_b32 s44, s{S_G1}, 15\ns_add_u32 s{S_T0}, s{S_T0}, s44")
        def xown():
            self.wait(self.xr)
            def rchk(ex):
                tk = [self.tok(f"ds_read_b128 {vr(SU+4*j,4)}, v195 offset:{1024*j}") for j in range(2)]
                if ex: e("s_waitcnt lgkmcnt(0)")
                else: self.wait(tk[1])
                for j in range(2):
                    r = SU + 4*j
                    e(f"v_bitop3_b32 v{r}, v{r}, v{r+2}, s{TG[0]} bitop3:0x7e\nv_bitop3_b32 v{r+1}, v{r+1}, v{r+3}, s{TG[1]} bitop3:0x7e")
                e(f"v_or3_b32 v{SU}, v{SU}, v{SU+1}, v{SU+4}\nv_or_b32 v{SU}, v{SU}, v{SU+5}\nv_and_b32 v{SU}, 0x00010001, v{SU}\nv_cmp_ne_u32 vcc, 0, v{SU}")
            def rre():
                e(f"s_mov_b32 m0, s{S_M+1}\ns_nop 0")
                e(f"buffer_load_dwordx4 v182, s[{S_WS}:{S_WS+3}], s{S_M} offen sc1 lds\nbuffer_load_dwordx4 v182, s[{S_WS}:{S_WS+3}], s{S_M} offen offset:1024 sc1 lds\ns_waitcnt vmcnt(0)")
            e(f"v_add_u32 v195, s{S_M+1}, v182")
            self.guard("rs", rchk, rre)
        def rdres():
            box["rr"] = [self.tok(f"ds_read_b64_tr_b16 {vr(RS+2*T,2)}, v248 offset:{2048*T}") for T in range(4)][-1]
        def fin(h, pk):
            tk = {}
            for T in (2*h, 2*h+1):
                for j in range(1, 4):
                    if h: pass
                    tk[(T, j)] = self.tok(f"ds_read_b128 {vr(SU + 12*(T&1) + 4*(j-1), 4)}, v{191+j} offset:{(T&1)*32768 + 1024*j}")
            for T in (2*h, 2*h+1):
                b_ = SU + 12*(T & 1); o = 4 + 16*T
                e(f"v_lshlrev_b32 v{RX}, 16, v{RS+2*T}\nv_and_b32 v{RX+1}, 0xffff0000, v{RS+2*T}\nv_lshlrev_b32 v{RX+2}, 16, v{RS+2*T+1}\nv_and_b32 v{RX+3}, 0xffff0000, v{RS+2*T+1}")
                self.wait(tk[(T, 3)])
                if pk:
                    for k in (0, 2): e(f"v_pk_add_f32 {vr(o+k,2)}, {vr(o+k,2)}, {vr(b_+k,2)}\nv_pk_add_f32 {vr(b_+4+k,2)}, {vr(b_+4+k,2)}, {vr(b_+8+k,2)}")
                    for k in (0, 2): e(f"v_pk_add_f32 {vr(o+k,2)}, {vr(o+k,2)}, {vr(b_+4+k,2)}")
                    for k in (0, 2): e(f"v_pk_fma_f32 {vr(o+k,2)}, {vr(o+k,2)}, {vr(GB+4*(T&1)+k,2)}, {vr(RX+k,2)}")
                else:
                    for k in range(4): e(f"v_add_f32 v{o+k}, v{o+k}, v{b_+k}\nv_add_f32 v{b_+4+k}, v{b_+4+k}, v{b_+8+k}")
                    for k in range(4): e(f"v_add_f32 v{o+k}, v{o+k}, v{b_+4+k}")
                    for k in range(4): e(f"v_fma_f32 v{o+k}, v{o+k}, v{GB+4*(T&1)+k}, v{RX+k}")
                e(f"v_cvt_pk_bf16_f32 v{o+4}, v{o}, v{o+1}\nv_cvt_pk_bf16_f32 v{o+5}, v{o+2}, v{o+3}")
                e(f"buffer_store_dwordx2 {vr(o+4,2)}, v249, s[{S_OUT}:{S_OUT+3}], s{S_T0 + h} offen offset:{64*(T&1)}")
        def seg1(k0, k1):
            for ks in range(k0, k1):
                for _ in range(c["nb1"]):
                    if st["nx"] < 28: self.hl(1, st["nx"], 182); st["nx"] += 1
                mm(1, ks)
        left = cap(addrs) + cap(lambda: (wr(0), box.__setitem__("w", wr(1))))
        left += cap(lambda: (xown(), self.wait(box["w"], self.gbt), e("s_barrier"), rdres(), self.wait(box["rr"]), fin(0, False)))
        for b0 in (0, 7, 14, 21):
            hi = b0 + 7 - (LA if b0 < 21 else 0)
            m, left = merge(cap(lambda: seg1(b0, hi)), left, 24, pace=1); self.p.put(m)
            if b0 < 21:
                gl = cap(lambda: hguard(1, b0 + 7)) + [Ins("MARK", kind="label")]
                m, left = merge(cap(lambda: seg1(hi, b0 + 7)), gl + left, 24, pace=1)
                self.p.put([i for i in m if i.text != "MARK"])
                if any(i.text == "MARK" for i in left):
                    k_ = [i.text for i in left].index("MARK"); self.p.put(left[:k_]); left = left[k_+1:]
        sys.stderr.write(f"g2 left {len(left)}\n")
        self.p.put(left)
        e("v_add_u32 v192, 0x10000, v192\nv_add_u32 v193, 0x10000, v193\nv_add_u32 v194, 0x10000, v194")
        self.stamp(17)
        wr(2); wr(3)
        e("s_waitcnt lgkmcnt(0)\ns_barrier")
        fin(1, True)
        self.stamp(18)

    def bump_epoch(self):
        e = self.e
        sk = self.lab("ep")
        e("s_cmp_lg_u32 s2, 0")
        e(f"s_cbranch_scc1 {sk}")
        e(f"s_add_u32 s{S_T0}, s{S_E}, 1")
        e(f"v_mov_b32 v3, s{S_T0}\nv_mov_b32 v4, 0")
        e("s_mov_b64 exec, 1")
        e(f"buffer_store_dword v3, v4, s[{S_WS}:{S_WS+3}], 0 offen sc1")
        e("s_mov_b64 exec, -1")
        self.label(sk)
    def finish(self):
        if self.cfg.get("hold"):
            self.label("F_hold")
            self.e(f"s_memrealtime s[{S_ST}:{S_ST+1}]\ns_waitcnt lgkmcnt(0)\ns_sub_u32 s{S_T0}, s{S_ST}, s34\ns_cmp_lt_u32 s{S_T0}, {self.cfg['hold']}\ns_cbranch_scc1 F_hold")
        self.stamp_flush()
        self.e('WARMREG -1')
        self.label(f"{self.cfg['uid']}_end")
        self.e("s_endpgm")
        ins = resolve(self.p.take()) + self.ool[:-1] + [Ins("F_last:", kind="label")] + self.ool[-1:]
        ins, n = pad_hazards(ins)
        check_labels(ins)
        if self.cfg.get('warm'):
            ins, info = add_warm(ins); sys.stderr.write(f'stubs {info}\n')
        else: ins = [i for i in ins if not i.text.startswith('WARM')]
        return render(ins)
def kernel_text(name, body, vgpr=512, accum=256):
    return f""".text
.globl {name}
.p2align 8
.type {name},@function
{name}:
{body}
.section .rodata,"a"
.p2align 6
.amdhsa_kernel {name}
  .amdhsa_next_free_vgpr {vgpr}
  .amdhsa_next_free_sgpr 102
  .amdhsa_accum_offset {accum}
  .amdhsa_group_segment_fixed_size 0
  .amdhsa_kernarg_size 144
  .amdhsa_user_sgpr_count 2
  .amdhsa_user_sgpr_kernarg_segment_ptr 1
  .amdhsa_system_sgpr_workgroup_id_x 1
.end_amdhsa_kernel
"""

def build(stamps=False, over={}):
    hdr = open("adaLN_cond__ssm_conv_s4__glu_gated_geglu__prompt.s.ref").read().split("; Override launch")[0]
    cfg = dict(spin=200000, stamps=stamps, uid="F", b1=11, b2=17, b3=23, flp=52, ui=26, g2k=36, uk=39, sti=34, stk=45, fe0=0, fes=2, vt=0, b4=50, st1k=72, nrd=8, rss=2, nhe=8, wx=6, kc=8, kf=2, la=3, nb=1, npi=4, nh=10, hw=13, nrc=8, cpf=10, rc0=3, rcs=2, f0k=104, fe=1, g0at=12, twx=0, npre=16, ga=24, cpace=4, gpace=2, nb1=1, twd=2, touch=2, fpos=1, wa0=4, map8=1, rot=1, rot2=1, split=0, nbp=0, nb2=5, adapt=1, ppos=1, late1=0, s2b=1, nx1=8, nrec=8, wpre=12, itb=1)
    cfg.update(over)
    g = G(cfg); e = g.e
    g.prologue()
    g.p0_issue()
    g.srds_late()
    g.g1_map(); g.w_setup(); g.hbase()
    g.w_rot(); g.conv_setup(); g.p0_xb(); g.hb_setup()
    g.tag_ready(); g.stamp(1)
    g.kgen_pre()
    g.p0_stats(); g.stamp(2)
    g.p0_xb2(); g.stamp(23)
    hold = {}
    if cfg['touch'] == 2: g.touch_w()
    if cfg['twd'] == 1: g.touch_wd(1)
    g.wait(g.T["c"]); g.stamp(20)
    if cfg["adapt"]:
        ny = 1 + 4 + (1 if cfg['touch'] == 2 else 0) + (1 if cfg['twd'] == 1 else 0)
        e(f"s_getreg_b32 s13, hwreg(HW_REG_IB_STS, 0, 4)")
        if stamps: e("v_writelane_b32 v255, s13, 61")
        e(f"s_cmp_le_u32 s13, {ny}\ns_cselect_b32 s13, 3, 0\ns_add_u32 s15, s{S_M+4}, s13\ns_mov_b32 s{S_M+4}, s15")
        g.p0_mod(3, 5, tokname="wm0")
    g.kgen_tab([])
    g.stamp(24)
    g.p0_mod(0, 5); g.stamp(22)
    if cfg["adapt"]: e(f"s_cmp_ge_u32 s{S_M+4}, 3\ns_cselect_b32 s13, 3, 0\ns_sub_u32 s{S_M+4}, s{S_M+4}, s13")
    if cfg['touch'] == 1: g.touch_w()
    pp = cfg["ppos"]
    g.kgen_post(pre=g.poll_issue if pp == 2 else None, mid=g.poll_issue if pp == 1 else None)
    g.stamp(3)
    if pp == 0: g.poll_issue()
    g.w_issue_l(range(0, cfg["nbp"]))
    g.hbuild(mid=lambda: g.w_chunks(range(cfg['nbp'], cfg['nb2'])))
    sk = g.lab("hm")
    e(f"s_cmp_lt_u32 s{S_IDX}, 28\ns_cbranch_scc1 {sk}")
    for i in g.cap(g.modf_issue):
        if i.text.startswith("buffer_"): g.p.nc(i.text)
        else: g.p.put([i])
    g.label(sk)
    if cfg['touch'] == 3: g.touch_w()
    if cfg['twd'] == 2: g.touch_wd(2)
    cap = g.cap
    nb2 = cfg["nb2"]; nr = cfg["nrec"]
    fa = cap(lambda: g.w_issue_l(range(nb2, 13)))
    fb = [] if not nr else cap(lambda: (g.wait(g.wt[nr-1]), e("s_barrier"), hold.__setitem__("r", g.w_read_l(range(0, nr)))))
    fc = cap(lambda: (g.wait(hold["r"]), e("s_barrier"), g.w_issue_l(range(13, 13 + nr))))
    f6 = []
    g.cfg["cflush"] = (3,)
    g.conv(fillers={0: fa, cfg["itb"]: fb + fc}, pre_bar=lambda: g.wait(g.wt[12]))
    assert not any(i.text.startswith("s_barrier") for i in g.conv_left if i.wait is None), len(g.conv_left)
    sys.stderr.write(f"conv left {len(g.conv_left)}\n")
    g.p.put(g.conv_left)
    e(f"s_cmp_ge_u32 s{S_IDX}, 28\ns_cbranch_scc1 F_alt")
    g.modf_pub()
    g.shadow1()
    g.gemm1f()
    g.label("F_g2")
    def alt():
        g.label("F_alt")
        g.u_job(); g.stamp(10)
        g.stats2_job(g.u_pub); g.modf_pub()
        g.wd_setup(); g.g2_setup()
        keep = dict(g.wdt); keep2 = dict(g.ht); done = set()
        while len(done) < len(keep):
            batch = [ks for ks in sorted(keep) if ks not in done and (ks not in g.WPREV or g.WPREV[ks] in done)]
            for ks in batch: g.wd_issue(ks)
            e("s_waitcnt vmcnt(0)")
            for ks in batch:
                if ks in g.rd: g.wd_read(ks)
            e("s_waitcnt lgkmcnt(0)")
            done |= set(batch)
        e("v_min_u32 v140, 27, v1\nv_lshlrev_b32 v140, 10, v140")
        pr = lambda: e(f"buffer_load_dword v144, v140, s[{S_WS}:{S_WS+3}], s{S_M+4} offen sc1\ns_waitcnt vmcnt(0)")
        pr()
        g.guard("fa", lambda ex: e(f"v_xor_b32 v144, s{TG[0]}, v144\nv_and_b32 v144, 0x00010001, v144\nv_cmp_ne_u32 vcc, 0, v144"), pr)
        for (nt_, ks) in list(keep2): g.hl(0, ks, 147)
        g.wdt = keep; g.ht.update(keep2)
        e("s_waitcnt vmcnt(0)\ns_branch F_g2")
    g.ool += g.cap(alt)
    g.gemm2f(); g.bump_epoch()
    launch = f"; @launch grid=(256,1,1) block=(256,1,1) lds={LDS_BYTES}\n"
    return hdr + launch + '.amdgcn_target "amdgcn-amd-amdhsa--gfx950"\n' + kernel_text(KN, g.finish())

if __name__ == "__main__":
    over = {}
    for a in sys.argv[1:]:
        if "=" in a:
            k, v = a.split("="); over[k] = int(v)
    print(build(stamps="stamps" in sys.argv[1:], over=over))
```
